```python
import torch

def _softmax(x, axis=-1):
    return torch.softmax(x, dim=axis)
def _gelu(x):
    return torch.nn.functional.gelu(x, approximate="tanh")
def _silu(x):
    return torch.nn.functional.silu(x)
def _sigmoid(x):
    return torch.sigmoid(x)
def _layernorm(x, axis=-1, eps=1e-5):
    m = x.mean(dim=axis, keepdim=True)
    v = x.var(dim=axis, keepdim=True, unbiased=False)
    return (x - m) / torch.sqrt(v + eps)
def _scatter_add(tgt, idx, src, axis=0):
    return tgt.clone().index_add_(axis, idx, src)
def _segment_sum(src, seg, n):
    out = torch.zeros((n,) + src.shape[1:], dtype=src.dtype)
    return out.index_add_(0, seg, src)
def _pad(x, pw):
    flat = tuple(v for pair in reversed(pw) for v in pair)
    return torch.nn.functional.pad(x, flat)

kernel_name = 'sequential_preLN__grouped_kv_mqa__dense_activation_mish__prompt'

def setup_inputs():

    _w = (lambda a: (lambda t: t.to(torch.bfloat16) if t.is_floating_point() else t)(torch.as_tensor(a)))
    def _A_setup():
        B, S, D, H = 1, 2048, 448, 16
        Dh = D // H
        return {
            "x": _w((lambda *s: torch.randn(*s, dtype=torch.bfloat16) * 0.05)(B, S, D)),
            "wq": _w((lambda *s: torch.randn(*s, dtype=torch.bfloat16) * 0.05)(D, H * Dh)),
            "wk": _w((lambda *s: torch.randn(*s, dtype=torch.bfloat16) * 0.05)(D, Dh)),
            "wv": _w((lambda *s: torch.randn(*s, dtype=torch.bfloat16) * 0.05)(D, Dh)),
            "wo": _w((lambda *s: torch.randn(*s, dtype=torch.bfloat16) * 0.05)(H * Dh, D)),
        }
    _A_in = _A_setup()

    def _B_setup():
        B, S, D, F = 1, 2048, 448, 1792
        return {
            "x": _w((lambda *s: torch.randn(*s, dtype=torch.bfloat16) * 0.05)(B, S, D)),
            "w1": _w((lambda *s: torch.randn(*s, dtype=torch.bfloat16) * 0.8)(D, F) * (D ** -0.5)),
            "b1": _w((lambda *s: torch.randn(*s, dtype=torch.bfloat16) * 0.8)(F)),
            "w2": _w((lambda *s: torch.randn(*s, dtype=torch.bfloat16) * 0.2)(F, D) * (F ** -0.5)),
        }
    _B_in = _B_setup()

    return {
        "A_x": _A_in["x"],
        "A_wq": _A_in["wq"],
        "A_wk": _A_in["wk"],
        "A_wv": _A_in["wv"],
        "A_wo": _A_in["wo"],
        "B_x": _B_in["x"],
        "B_w1": _B_in["w1"],
        "B_b1": _B_in["b1"],
        "B_w2": _B_in["w2"],
    }

def reference(A_x, A_wq, A_wk, A_wv, A_wo, B_x, B_w1, B_b1, B_w2):
    def _A_ref(x, wq, wk, wv, wo):
        B, S, D = x.shape
        H = 16
        Dh = D // H
        q = (lambda x, *d: x.permute(*d))((x @ wq).reshape(B, S, H, Dh), 0, 2, 1, 3)
        k = x @ wk
        v = x @ wv
        scores = torch.einsum("bhqd,bkd->bhqk", q, k) * (Dh ** -0.5)
        p = _softmax(scores, axis=-1)
        o = torch.einsum("bhqk,bkd->bhqd", p, v)
        return (lambda x, *d: x.permute(*d))(o, 0, 2, 1, 3).reshape(B, S, H * Dh) @ wo

    def _B_ref(x, w1, b1, w2):
        h = torch.einsum("bsd,df->bsf", x, w1) + b1
        sp = torch.log1p(torch.exp(-torch.abs(h))) + torch.where(h > 0, h, torch.zeros_like(h))
        act = h * torch.tanh(sp)
        return torch.einsum("bsf,fd->bsd", act, w2)

    x = A_x
    h = x + _A_ref(_layernorm(x, axis=-1), A_wq, A_wk, A_wv, A_wo)
    h2 = h + _B_ref(_layernorm(h, axis=-1), B_w1, B_b1, B_w2)
    return h2
```

```python
import re, sys

TRANS = ("v_exp_", "v_log_", "v_rcp_", "v_rsq_", "v_sqrt_", "v_sin_", "v_cos_")

def regs_of(tok):
    tok = tok.strip()
    tok = re.sub(r"^-|^abs\(|\)$|^\|| \|$|\|$", "", tok)
    tok = tok.lstrip("-")
    m = re.fullmatch(r"([vas])(\d+)", tok)
    if m: return {(m.group(1), int(m.group(2)))}
    m = re.fullmatch(r"([vas])\[(\d+):(\d+)\]", tok)
    if m: return {(m.group(1), i) for i in range(int(m.group(2)), int(m.group(3)) + 1)}
    if tok == "vcc": return {("s", 106), ("s", 107)}
    if tok == "vcc_lo": return {("s", 106)}
    if tok == "vcc_hi": return {("s", 107)}
    if tok == "exec": return {("s", 126), ("s", 127)}
    if tok == "exec_lo": return {("s", 126)}
    if tok == "exec_hi": return {("s", 127)}
    if tok == "m0": return {("s", 124)}
    return set()

class I:
    pass

def parse(text):
    ins, labels = [], {}
    for ln, raw in enumerate(text.splitlines(), 1):
        s = raw.split(";")[0].split("//")[0].strip()
        if not s: continue
        m = re.match(r"^([A-Za-z_.$][\w.$]*):\s*(.*)$", s)
        if m:
            labels[m.group(1)] = len(ins)
            s = m.group(2).strip()
            if not s: continue
        if s.startswith("."):
            if s.startswith(".section"): break
            continue
        parts = s.split(None, 1)
        mn = parts[0]
        rest = parts[1] if len(parts) > 1 else ""
        ops = [o.strip() for o in re.split(r",(?![^\[]*\])", rest)] if rest else []
        mods = ""
        if ops:
            last = ops[-1].split(None, 1)
            if len(last) > 1:
                ops[-1], mods = last[0], last[1]
        i = I(); i.ln = ln; i.text = s; i.mn = mn; i.ops = ops; i.mods = mods
        i.mfma = mn.startswith("v_mfma")
        i.valu = mn.startswith("v_") and not i.mfma
        i.trans = mn.startswith(TRANS)
        i.dot = mn.startswith("v_dot")
        i.vmem = mn.startswith(("buffer_", "global_"))
        i.ds = mn.startswith("ds_")
        i.salu = mn.startswith("s_")
        i.dpp = "_dpp" in mn or "quad_perm" in mods or "row_" in mods
        i.perml = mn.startswith("v_permlane")
        i.rdlane = mn.startswith(("v_readfirstlane", "v_readlane"))
        R = [regs_of(o) for o in ops]
        w, r = set(), set()
        i.srcC = set(); i.srcAB = set()
        if i.mfma:
            w = R[0]; i.srcAB = R[1] | R[2]; i.srcC = R[3]; r = i.srcAB | i.srcC
            i.passes = 8 if "32x32x16" in mn else 4 if "16x16x32" in mn else None
            assert i.passes, mn
        elif i.valu:
            if i.perml:
                w = R[0] | R[1]; r = R[0] | R[1]
            elif mn.startswith(("v_add_co", "v_sub_co", "v_addc_co", "v_subb_co")):
                w = R[0] | R[1]; r = set().union(*R[2:])
            else:
                w = R[0]; r = set().union(*R[1:]) if len(R) > 1 else set()
                if mn.startswith(("v_fmac", "v_dot2c", "v_writelane")) or "UNUSED_PRESERVE" in mods or i.dpp:
                    r |= R[0]
            if mn.startswith("v_cmpx"): w |= regs_of("exec")
        elif i.vmem:
            lds = " lds" in (" " + mods)
            i.lds = lds
            if "load" in mn and not lds:
                w = R[0]; r = set().union(*R[1:])
            elif "atomic" in mn and "sc0" in mods:
                w = R[0]; r = set().union(*R)
            else:
                r = set().union(*R) if R else set()
            if lds: r |= regs_of("m0")
            i.wide_store = ("store" in mn) and ("x3" in mn or "x4" in mn)
            i.sdata = (R[0] if mn.startswith("buffer_") else R[1]) if "store" in mn else set()
        elif i.ds:
            if mn.startswith(("ds_read", "ds_bpermute", "ds_permute", "ds_swizzle")):
                w = R[0]; r = set().union(*R[1:])
            else:
                r = set().union(*R)
        elif i.salu:
            if mn.startswith(("s_cmp", "s_cbranch", "s_branch", "s_waitcnt", "s_barrier", "s_nop", "s_endpgm", "s_setprio", "s_sleep", "s_setpc", "s_bitcmp")):
                r = set().union(*R) if R else set()
            else:
                w = R[0] if R else set(); r = set().union(*R[1:]) if len(R) > 1 else set()
                if "saveexec" in mn: w |= regs_of("exec")
        i.w, i.r = w, r
        i.states = int(ops[0], 0) + 1 if mn == "s_nop" else 1
        ins.append(i)
    calls = [k for k, i in enumerate(ins) if i.mn == "s_call_b64"]
    for k, i in enumerate(ins):
        if i.mn == "s_endpgm": i.succ = []
        elif i.mn == "s_branch": i.succ = [labels[i.ops[0]]]
        elif i.mn.startswith("s_cbranch"): i.succ = [labels[i.ops[0]], k + 1]
        elif i.mn == "s_call_b64": i.succ = [labels[i.ops[1]]]
        elif i.mn == "s_setpc_b64": i.succ = [c + 1 for c in calls]
        else: i.succ = [k + 1]
        i.succ = [s for s in i.succ if s < len(ins)]
    return ins

def vec(s): return {x for x in s if x[0] in "va"}
def sc(s): return {x for x in s if x[0] == "s"}

def need(p, c):
    n = 0
    why = ""
    def up(v, w):
        nonlocal n, why
        if v > n: n, why = v, w
    if p.valu and not p.rdlane:
        pw = vec(p.w)
        if c.mfma and pw & c.r: up(2, "valu->mfma")
        if c.perml and pw & c.r: up(2, "valu->permlane")
        if c.valu and c.dpp and pw & c.r: up(2, "valu->dpp")
        if c.rdlane and pw & c.r: up(1, "valu->readlane")
        if p.trans and c.valu and not c.trans and pw & c.r: up(1, "trans->valu")
        if p.trans and (c.vmem or c.ds) and pw & c.r: up(1, "trans->mem")
        if p.dot and (c.valu or c.vmem or c.ds or c.mfma):
            if c.mn == p.mn and c.dot:
                srcs = set()
                for o in (c.ops[1:3]): srcs |= regs_of(o)
                if pw & srcs: up(3, "dot->dot srcAB")
            elif pw & (c.r | c.w): up(3, "dot->other")
        if ("sdwa" in p.mn or "op_sel" in p.mods) and c.valu and pw & (c.r | c.w): up(1, "opsel->valu")
    if p.valu:
        ps = sc(p.w)
        if ps:
            if c.vmem and ps & c.r: up(5, "valu sgpr->vmem")
            if c.valu and ps & c.r: up(2, "valu sgpr->valu")
            if c.valu and c.mn.startswith("v_cndmask") and len(c.ops) == 3 and ps & regs_of("vcc"): up(2, "vcc->cndmask")
            if c.mn.startswith(("v_readlane", "v_writelane")) and ps & c.r: up(4, "valu sgpr->lanesel")
            if ps & regs_of("exec"):
                if c.mfma: up(4, "valu exec->mfma")
                if c.dpp: up(5, "valu exec->dpp")
                if c.perml or c.rdlane: up(4, "valu exec->lane")
            if c.salu and ps & c.r: up(1, "valu sgpr->salu (pad)")
    if p.mfma:
        t = {4: (6, 8, 3), 8: (10, 12, 7)}[p.passes]
        D = p.w
        if c.mfma:
            if D & c.srcAB: up(t[1], "mfma D->mfma AB")
            if D & c.srcC and not (c.srcC == D and c.passes == p.passes): up(t[0], "mfma D->mfma C overlap")
            if D & c.w and not (c.w == D): up(t[0], "mfma D->mfma D overlap")
        else:
            if (c.valu or c.vmem or c.ds) and D & (c.r | c.w): up(t[1], "mfma D->valu/mem")
            if c.valu and p.srcC & c.w: up(t[2], "mfma srcC WAR")
    if p.salu and regs_of("m0") & p.w and c.vmem and getattr(c, "lds", False): up(1, "m0->lds dma")
    if p.vmem and getattr(p, "wide_store", False) and p.sdata & c.w:
        up(2 if c.valu else 1, "wide store data WAR")
    return n, why

def check(text, verbose=True):
    ins = parse(text)
    bad = 0
    for k, p in enumerate(ins):
        if not (p.valu or p.mfma or p.salu or p.vmem): continue
        seen = {}
        stack = [(s, 0) for s in p.succ]
        while stack:
            j, d = stack.pop()
            if d >= 13: continue
            if j in seen and seen[j] <= d: continue
            seen[j] = d
            c = ins[j]
            n, why = need(p, c)
            if n > d:
                bad += 1
                if verbose: print(f"HAZARD {why}: need {n}, have {d}\n   L{p.ln}: {p.text}\n   L{c.ln}: {c.text}")
            for s in c.succ: stack.append((s, d + c.states))
    return bad

if __name__ == "__main__":
    b = check(open(sys.argv[1]).read())
    print("hazards:", b)
    sys.exit(1 if b else 0)
```

```python
import math, struct, sys

NAME = "sequential_preLN__grouped_kv_mqa__dense_activation_mish__prompt"

QF   = 0x000000
KV   = 0x200000
KMAX = 0x240000
WOF  = 0x250000
W1F  = 0x300000
W2F  = 0x500000
HN   = 0x700000
HD   = 0x900000
PART = 0xB00000
WS_SIZE = PART + 64*28*8*1024

X_BYTES = 2048*896
WQ_BYTES = 448*896
WK_BYTES = 448*56
W1_BYTES = 448*3584
W2_BYTES = 1792*896

def f2u(f): return struct.unpack("<I", struct.pack("<f", f))[0]
def hexf(f): return "0x%08x" % f2u(f)
LOG2E = math.log2(math.e)
QSCALE = LOG2E / math.sqrt(28.0)
ONES_BF = "0x3f803f80"

class Asm:
    def __init__(self):
        self.L = []
    def __call__(self, s):
        for ln in s.split("\n"):
            ln = ln.strip()
            if ln: self.L.append("    " + ln)
    def label(self, s): self.L.append(s + ":")
    def c(self, s): self.L.append("    ; " + s)
    def text(self): return "\n".join(self.L) + "\n"

def vr(b, n=1): return f"v{b}" if n == 1 else f"v[{b}:{b+n-1}]"
def ar(b, n=1): return f"a{b}" if n == 1 else f"a[{b}:{b+n-1}]"
def sr(b, n=1): return f"s{b}" if n == 1 else f"s[{b}:{b+n-1}]"

def srd(a, d, lo, hi, nbytes):
    a(f"s_mov_b32 s{d}, s{lo}")
    a(f"s_mov_b32 s{d+1}, s{hi}")
    a(f"s_mov_b32 s{d+2}, {nbytes if isinstance(nbytes, str) else hex(nbytes)}")
    a(f"s_mov_b32 s{d+3}, 0x20000")

def header(a, name):
    a.L.append(f".globl {name}")
    a.L.append(".p2align 8")
    a.L.append(f".type {name},@function")
    a.label(name)

def kd(name, vgpr, sgpr, accum):
    return f""".p2align 6
.amdhsa_kernel {name}
  .amdhsa_next_free_vgpr {vgpr}
  .amdhsa_next_free_sgpr {sgpr}
  .amdhsa_accum_offset {accum}
  .amdhsa_group_segment_fixed_size 0
  .amdhsa_kernarg_size 96
  .amdhsa_user_sgpr_count 2
  .amdhsa_user_sgpr_kernarg_segment_ptr 1
  .amdhsa_system_sgpr_workgroup_id_x 1
.end_amdhsa_kernel
"""

def mfma32(d, A, B, C): return f"v_mfma_f32_32x32x16_bf16 {d}, {A}, {B}, {C}"
def mfma16(d, A, B, C): return f"v_mfma_f32_16x16x32_bf16 {d}, {A}, {B}, {C}"

def half_sum(a, x, t, op="v_add_f32"):
    a(f"v_mov_b32 v{t}, v{x}")
    a("s_nop 1")
    a(f"v_permlane32_swap_b32 v{t}, v{x}")
    a("s_nop 1")
    a(f"{op} v{x}, v{x}, v{t}")

K1_X, K1_W0, K1_W4, K1_ST, K1_CS = 0, 57344, 114688, 143360, 143872
K1_LDS = 144640

def gen_k1(a):
    n = "k1_kernel"
    header(a, n)
    a("s_cmp_ge_u32 s2, 256")
    a("s_cbranch_scc1 K1_end")
    a("s_load_dwordx4 s[24:27], s[0:1], 0")
    a("s_load_dwordx4 s[28:31], s[0:1], 16")
    a("s_load_dwordx2 s[32:33], s[0:1], 32")
    a("s_load_dwordx2 s[34:35], s[0:1], 48")
    a("s_load_dwordx2 s[36:37], s[0:1], 64")
    a("s_load_dwordx2 s[38:39], s[0:1], 88")
    a("v_lshrrev_b32 v1, 6, v0")
    a("v_and_b32 v0, 63, v0")
    a("v_readfirstlane_b32 s3, v1")
    a("s_and_b32 s4, s2, 7")
    a("s_lshl_b32 s4, s4, 2")
    a("s_bfe_u32 s6, s2, 0x20003")
    a("s_add_u32 s4, s4, s6")
    a("s_lshr_b32 s5, s2, 5")
    a("v_lshrrev_b32 v2, 5, v0")
    a("v_bfe_u32 v3, v0, 4, 1")
    a("v_bfe_u32 v4, v0, 2, 2")
    a("v_and_b32 v5, 3, v0")
    a("v_lshrrev_b32 v6, 2, v0")
    a("v_lshlrev_b32 v7, 4, v5")
    a("s_cmp_eq_u32 s3, 4")
    a("s_cbranch_scc1 K1_w4")
    a("v_lshrrev_b32 v8, 3, v0")
    a("v_and_b32 v9, 7, v0")
    a("v_lshrrev_b32 v10, 1, v8")
    a("v_xor_b32 v9, v9, v10")
    a("s_and_b32 s6, s3, 1")
    a("s_lshl_b32 s7, s6, 2")
    a("v_xor_b32 v9, s7, v9")
    a("v_mul_u32_u24 v8, 896, v8")
    a("v_lshl_add_u32 v8, v9, 4, v8")
    a("v_mul_u32_u24 v9, 896, v6")
    a("v_add_u32 v9, v9, v7")
    a("s_lshl_b32 s40, s4, 6")
    a("s_lshl_b32 s41, s3, 4")
    a("s_add_u32 s40, s40, s41")
    a("s_mul_i32 s40, s40, 896")
    a("s_mul_i32 s41, s3, 14336")
    a("s_lshl_b32 s42, s5, 1")
    a("s_add_u32 s42, s42, s6")
    a("s_mul_i32 s43, s42, 56")
    a("s_lshr_b32 s44, s3, 1")
    a("s_mul_i32 s45, s44, 224*896")
    a("s_add_u32 s43, s43, s45")
    a("s_mul_i32 s45, s6, 28672")
    a("s_mul_i32 s46, s44, 14336")
    a("s_add_u32 s45, s45, s46")
    a(f"s_add_u32 s45, s45, {K1_W0}")
    a("s_waitcnt lgkmcnt(0)")
    srd(a, 8, 24, 25, X_BYTES)
    srd(a, 12, 26, 27, WQ_BYTES)
    srd(a, 16, 38, 39, WS_SIZE)
    for j in range(14):
        a("s_mov_b32 m0, s41")
        a("s_add_u32 s41, s41, 1024")
        a("buffer_load_dwordx4 v8, s[8:11], s40 offen lds")
        a(f"s_add_u32 s40, s40, {128 if j != 6 else 8*896 - 6*128}")
        a("s_mov_b32 m0, s45")
        a("s_add_u32 s45, s45, 1024")
        a("buffer_load_dwordx4 v9, s[12:15], s43 offen lds")
        a(f"s_add_u32 s43, s43, {16*896}")
    a("v_lshlrev_b32 v10, 3, v2")
    a("v_add_u32 v10, v10, v4")
    a("v_lshlrev_b32 v10, 6, v10")
    a("v_lshl_add_u32 v10, v3, 5, v10")
    a("v_lshl_add_u32 v10, v5, 3, v10")
    a("s_mul_i32 s46, s6, 28672")
    a(f"s_add_u32 s46, s46, {K1_W0}")
    a("v_add_u32 v10, s46, v10")
    a("s_mov_b32 s47, 0")
    a("s_mul_i32 s46, s3, 14336")
    a("v_mul_u32_u24 v11, 7168, v2")
    a("v_and_b32 v12, 7, v6")
    a("v_lshl_add_u32 v11, v12, 7, v11")
    a("v_lshl_add_u32 v11, v5, 5, v11")
    a("v_add_u32 v11, s46, v11")
    a("s_waitcnt vmcnt(0)")
    a("s_barrier")
    for kg in range(7):
        a(f"ds_read_b128 {vr(32+8*kg,4)}, v11 offset:{kg*1024}")
        a(f"ds_read_b128 {vr(36+8*kg,4)}, v11 offset:{kg*1024+16}")
    for i in range(4): a(f"v_mov_b32 v{20+i}, 0")
    a(f"s_mov_b32 s48, {ONES_BF}")
    for q in range(14):
        a(f"s_waitcnt lgkmcnt({13-q})")
        for i in range(4):
            r = 32 + 4*q + i
            a(f"v_dot2c_f32_bf16 v{20+(i&1)}, s48, v{r}")
            a(f"v_dot2c_f32_bf16 v{22+(i&1)}, v{r}, v{r}")
    a("s_nop 2")
    a("v_add_f32 v20, v20, v21")
    a("v_add_f32 v22, v22, v23")
    a("s_nop 1")
    a("v_add_f32_dpp v20, v20, v20 quad_perm:[1,0,3,2] row_mask:0xf bank_mask:0xf")
    a("v_add_f32_dpp v22, v22, v22 quad_perm:[1,0,3,2] row_mask:0xf bank_mask:0xf")
    a("s_nop 1")
    a("v_add_f32_dpp v20, v20, v20 quad_perm:[2,3,0,1] row_mask:0xf bank_mask:0xf")
    a("v_add_f32_dpp v22, v22, v22 quad_perm:[2,3,0,1] row_mask:0xf bank_mask:0xf")
    a(f"v_mul_f32 v20, {hexf(1.0/448)}, v20")
    a(f"v_mul_f32 v22, {hexf(1.0/448)}, v22")
    a("v_fma_f32 v22, -v20, v20, v22")
    a("v_max_f32 v22, 0, v22")
    a(f"v_add_f32 v22, {hexf(1e-5)}, v22")
    a("v_rsq_f32 v22, v22")
    a("s_lshl_b32 s46, s3, 6")
    a(f"s_add_u32 s46, s46, {K1_ST}")
    a("v_mul_f32 v20, -v20, v22")
    a("v_lshl_add_u32 v12, v6, 2, s46")
    a("ds_write_b32 v12, v22")
    a("ds_write_b32 v12, v20 offset:256")
    a("s_branch K1_proj")

    a.label("K1_w4")
    a("s_waitcnt lgkmcnt(0)")
    srd(a, 16, 38, 39, WS_SIZE)
    a("s_cmp_ge_u32 s5, 4")
    a("s_cbranch_scc1 K1_prep")
    a("s_lshr_b32 s47, s5, 1")
    a("s_cmp_eq_u32 s47, 0")
    a("s_cselect_b32 s12, s28, s30")
    a("s_cselect_b32 s13, s29, s31")
    a(f"s_mov_b32 s14, {WK_BYTES}")
    a("s_mov_b32 s15, 0x20000")
    a("s_add_u32 s47, s47, 1")
    a("s_and_b32 s44, s5, 1")
    a("v_mul_u32_u24 v9, 56, v6")
    a("v_add_u32 v9, v9, v7")
    a("s_mov_b32 s43, 0")
    a(f"s_mov_b32 s45, {K1_W4}")
    for j in range(28):
        a("s_mov_b32 m0, s45")
        a("s_add_u32 s45, s45, 1024")
        a("buffer_load_dwordx4 v9, s[12:15], s43 offen lds")
        a(f"s_add_u32 s43, s43, {16*56}")
    a("v_lshlrev_b32 v10, 3, v2")
    a("v_add_u32 v10, v10, v4")
    a("v_lshlrev_b32 v10, 6, v10")
    a("v_lshl_add_u32 v10, v3, 5, v10")
    a("v_lshl_add_u32 v10, v5, 3, v10")
    a(f"v_add_u32 v10, {K1_W4}, v10")
    a("s_waitcnt vmcnt(0)")
    a("s_barrier")

    a.label("K1_proj")
    a("v_and_b32 v13, 31, v0")
    a("v_bfe_u32 v14, v13, 1, 2")
    a("v_lshrrev_b32 v15, 2, v13")
    a("v_and_b32 v15, 4, v15")
    a("v_or_b32 v14, v14, v15")
    a("v_xor_b32 v14, v14, v2")
    a("v_lshrrev_b32 v15, 3, v13")
    a("v_mul_u32_u24 v15, 7168, v15")
    a("v_and_b32 v16, 7, v13")
    a("v_lshl_add_u32 v15, v16, 7, v15")
    a("s_mul_i32 s46, s44, 28672")
    a("v_add_u32 v15, s46, v15")
    for j in range(4):
        a(f"v_xor_b32 v16, {2*j}, v14")
        a(f"v_lshl_add_u32 v{24+j}, v16, 4, v15")
    a(f"s_mov_b32 s48, {ONES_BF}")
    a("v_mov_b32 v28, 0")
    a("v_mov_b32 v29, 0")
    a("s_cmp_eq_u32 s47, 2")
    a("s_cbranch_scc1 K1_projv")
    RING = 4
    def rd(ks):
        b = 32 + 8*(ks % RING)
        a(f"ds_read_b64_tr_b16 {vr(b,2)}, v10 offset:{ks*1024}")
        a(f"ds_read_b64_tr_b16 {vr(b+2,2)}, v10 offset:{ks*1024+256}")
        a(f"ds_read_b128 {vr(b+4,4)}, v{24+(ks&3)} offset:{(ks>>2)*1024}")
    def loop(swap):
        for ks in range(RING-1): rd(ks)
        for ks in range(28):
            if ks + RING - 1 < 28: rd(ks + RING - 1)
            out = min(RING - 1, 27 - ks) * 3
            a(f"s_waitcnt lgkmcnt({out})")
            b = 32 + 8*(ks % RING)
            W, X = vr(b,4), vr(b+4,4)
            C = "0" if ks == 0 else vr(64,16)
            a(mfma32(vr(64,16), X, W, C) if swap else mfma32(vr(64,16), W, X, C))
            for i in range(4): a(f"v_dot2c_f32_bf16 v{28+(i&1)}, s48, v{b+i}")
    loop(False)
    a("s_nop 2")
    a("v_add_f32 v28, v28, v29")
    half_sum(a, 28, 29)
    a("s_lshl_b32 s46, s3, 7")
    a(f"s_add_u32 s46, s46, {K1_CS}")
    a("v_lshl_add_u32 v16, v13, 2, s46")
    a("ds_write_b32 v16, v28")
    a("v_lshl_add_u32 v16, v2, 4, s46")
    a("s_waitcnt lgkmcnt(0)")
    for i in range(4): a(f"ds_read_b128 {vr(32+4*i,4)}, v16 offset:{32*i}")
    a("s_barrier")
    a("s_lshl_b32 s46, s44, 7")
    a(f"s_add_u32 s46, s46, {K1_ST}")
    a("v_lshl_add_u32 v16, v13, 2, s46")
    a("ds_read_b32 v20, v16")
    a("ds_read_b32 v21, v16 offset:256")
    a("s_cmp_eq_u32 s47, 0")
    a(f"s_cselect_b32 s49, {hexf(QSCALE)}, 1.0")
    a("s_cselect_b32 s50, 0, 0x3f80")
    a("s_waitcnt lgkmcnt(0)")
    a("v_mul_f32 v20, s49, v20")
    a("v_mul_f32 v21, s49, v21")
    for i in range(16):
        a(f"v_mul_f32 v{64+i}, v{64+i}, v20")
        a(f"v_fmac_f32 v{64+i}, v{32+i}, v21")
    for i in range(8): a(f"v_cvt_pk_bf16_f32 v{48+i}, v{64+2*i}, v{65+2*i}")
    a("v_cmp_ne_u32 s[52:53], 0, v2")
    a("s_nop 1")
    a("v_cndmask_b32 v54, v54, 0, s[52:53]")
    a("v_cndmask_b32 v55, v55, 0, s[52:53]")
    a("s_cmp_eq_u32 s47, 0")
    a("s_cbranch_scc0 K1_epk")
    a("v_lshrrev_b32 v16, 3, v13")
    a("v_lshlrev_b32 v16, 13, v16")
    a("v_lshl_add_u32 v16, v2, 9, v16")
    a("v_and_b32 v17, 7, v13")
    a("v_lshl_add_u32 v16, v17, 4, v16")
    a("s_lshl_b32 s46, s4, 3")
    a("s_lshl_b32 s49, s44, 2")
    a("s_add_u32 s46, s46, s49")
    a("s_lshl_b32 s46, s46, 13")
    a("s_lshr_b32 s49, s42, 2")
    a("s_lshl_b32 s49, s49, 11")
    a("s_add_u32 s46, s46, s49")
    a("s_and_b32 s49, s42, 3")
    a("s_lshl_b32 s49, s49, 7")
    a("s_add_u32 s46, s46, s49")
    if QF: a(f"s_add_u32 s46, s46, {QF}")
    a("buffer_store_dwordx4 v[48:51], v16, s[16:19], s46 offen")
    a("buffer_store_dwordx4 v[52:55], v16, s[16:19], s46 offen offset:1024")
    a("s_endpgm")
    a.label("K1_epk")
    a("v_mov_b32 v20, 0")
    for i in range(8): a(f"v_dot2c_f32_bf16 v20, v{48+i}, v{48+i}")
    a("v_mov_b32 v22, s50")
    a("v_cndmask_b32 v54, v54, v22, s[52:53]")
    a("s_nop 1")
    half_sum(a, 20, 21)
    a("s_nop 1")
    for m in ("quad_perm:[1,0,3,2]", "quad_perm:[2,3,0,1]", "row_half_mirror", "row_mirror"):
        a(f"v_max_f32_dpp v20, v20, v20 {m} row_mask:0xf bank_mask:0xf")
        a("s_nop 1")
    a("v_mov_b32 v21, v20")
    a("s_nop 1")
    a("v_permlane16_swap_b32 v21, v20")
    a("s_nop 1")
    a("v_max_f32 v20, v20, v21")
    a("s_lshl_b32 s46, s4, 1")
    a("s_add_u32 s46, s46, s44")
    a("s_lshl_b32 s49, s46, 2")
    a(f"s_add_u32 s49, s49, {KMAX}")
    a("s_lshl_b32 s46, s46, 12")
    a(f"s_add_u32 s46, s46, {KV}")
    a("v_lshlrev_b32 v16, 4, v0")
    a("v_mov_b32 v17, 0")
    a("buffer_store_dwordx4 v[48:51], v16, s[16:19], s46 offen")
    a("buffer_store_dwordx4 v[52:55], v16, s[16:19], s46 offen offset:1024")
    a("s_mov_b64 exec, 1")
    a("buffer_store_dword v20, v17, s[16:19], s49 offen")
    a("s_endpgm")
    a.label("K1_projv")
    loop(True)
    a("s_nop 2")
    a("v_add_f32 v28, v28, v29")
    half_sum(a, 28, 29)
    a("s_barrier")
    a("s_lshl_b32 s46, s44, 7")
    a(f"s_add_u32 s46, s46, {K1_ST}")
    a("v_lshl_add_u32 v16, v2, 4, s46")
    for i in range(4): a(f"ds_read_b128 {vr(32+4*i,4)}, v16 offset:{32*i}")
    for i in range(4): a(f"ds_read_b128 {vr(48+4*i,4)}, v16 offset:{256+32*i}")
    a("s_waitcnt lgkmcnt(0)")
    for i in range(16):
        a(f"v_mul_f32 v{64+i}, v{64+i}, v{32+i}")
        a(f"v_fmac_f32 v{64+i}, v{48+i}, v28")
    for i in range(8): a(f"v_cvt_pk_bf16_f32 v{48+i}, v{64+2*i}, v{65+2*i}")
    a("v_cmp_eq_u32 s[52:53], 28, v13")
    a(f"v_mov_b32 v21, {ONES_BF}")
    a("s_nop 0")
    a("v_cndmask_b32 v21, 0, v21, s[52:53]")
    a("v_cmp_lt_u32 s[52:53], 27, v13")
    a("s_nop 1")
    for i in range(8): a(f"v_cndmask_b32 v{48+i}, v{48+i}, v21, s[52:53]")
    a("s_lshl_b32 s46, s4, 1")
    a("s_add_u32 s46, s46, s44")
    a("s_lshl_b32 s46, s46, 12")
    a(f"s_add_u32 s46, s46, {KV}")
    a("v_lshlrev_b32 v16, 4, v0")
    a("buffer_store_dwordx4 v[48:51], v16, s[16:19], s46 offen offset:2048")
    a("buffer_store_dwordx4 v[52:55], v16, s[16:19], s46 offen offset:3072")
    a("s_endpgm")

    a.label("K1_prep")
    a("s_lshl_b32 s40, s4, 2")
    a("s_add_u32 s40, s40, s5")
    a("s_sub_u32 s40, s40, 4")
    a("s_cmp_ge_u32 s40, 126")
    a("s_cbranch_scc1 K1_end")
    a("v_lshlrev_b32 v10, 2, v2")
    a("v_add_u32 v10, v10, v4")
    a("v_lshlrev_b32 v10, 6, v10")
    a("v_lshl_add_u32 v10, v3, 5, v10")
    a("v_lshl_add_u32 v10, v5, 3, v10")
    a("s_mov_b32 s50, 512")
    a("s_mov_b32 s51, 1024")
    a("s_mov_b32 s52, 2048")
    a("s_mov_b32 s53, 1024")
    a("s_cmp_ge_u32 s40, 56")
    a("s_cbranch_scc1 K1_prep2")
    srd(a, 12, 34, 35, W1_BYTES)
    a("s_mov_b32 s41, 3584")
    a("s_lshl_b32 s43, s40, 6")
    a("s_mul_i32 s46, s40, 28672")
    a(f"s_add_u32 s46, s46, {W1F}")
    a("s_branch K1_prep4")
    a.label("K1_prep2")
    a("s_cmp_ge_u32 s40, 112")
    a("s_cbranch_scc1 K1_prep3")
    srd(a, 12, 36, 37, W2_BYTES)
    a("s_mov_b32 s41, 896")
    a("s_sub_u32 s40, s40, 56")
    a("s_lshr_b32 s6, s40, 2")
    a("s_and_b32 s7, s40, 3")
    a("s_mul_i32 s43, s7, 448*896")
    a("s_lshl_b32 s44, s6, 6")
    a("s_add_u32 s43, s43, s44")
    a("s_mul_i32 s46, s40, 28672")
    a(f"s_add_u32 s46, s46, {W2F}")
    a("s_branch K1_prep4")
    a.label("K1_prep3")
    srd(a, 12, 32, 33, WQ_BYTES)
    a("s_mov_b32 s41, 896")
    a("s_sub_u32 s40, s40, 112")
    a("s_lshl_b32 s43, s40, 6")
    a("s_mul_i32 s46, s40, 28672")
    a(f"s_add_u32 s46, s46, {WOF}")
    a("v_lshrrev_b32 v10, 4, v0")
    a("v_lshlrev_b32 v10, 3, v10")
    a("v_add_u32 v10, v10, v4")
    a("v_lshlrev_b32 v10, 6, v10")
    a("v_lshl_add_u32 v10, v5, 3, v10")
    a("s_mov_b32 s50, 256")
    a("s_mov_b32 s51, 32")
    a("s_mov_b32 s52, 1024")
    a("s_mov_b32 s53, 14336")
    a.label("K1_prep4")
    a("v_mul_lo_u32 v9, v6, s41")
    a("v_add_u32 v9, v9, v7")
    a("s_lshl_b32 s41, s41, 4")
    a(f"s_mov_b32 s45, {K1_W4}")
    for j in range(28):
        a("s_mov_b32 m0, s45")
        a("s_add_u32 s45, s45, 1024")
        a("buffer_load_dwordx4 v9, s[12:15], s43 offen lds")
        a("s_add_u32 s43, s43, s41")
    a(f"v_add_u32 v10, {K1_W4}, v10")
    a("v_add_u32 v11, s50, v10")
    a("v_add_u32 v12, s51, v10")
    a("v_add_u32 v13, s51, v11")
    a("v_lshlrev_b32 v16, 4, v0")
    a("s_add_u32 s47, s46, s53")
    a("s_waitcnt vmcnt(0)")
    a("s_barrier")
    def prd(p):
        b = 32 + 8*(p % 4)
        a(f"ds_read_b64_tr_b16 {vr(b,2)}, v10 offset:{p*2048}")
        a(f"ds_read_b64_tr_b16 {vr(b+2,2)}, v11 offset:{p*2048}")
        a(f"ds_read_b64_tr_b16 {vr(b+4,2)}, v12 offset:{p*2048}")
        a(f"ds_read_b64_tr_b16 {vr(b+6,2)}, v13 offset:{p*2048}")
    prd(0); prd(1)
    for p in range(14):
        if p + 2 < 14: prd(p + 2)
        a(f"s_waitcnt lgkmcnt({4*min(2, 13-p)})")
        b = 32 + 8*(p % 4)
        a(f"buffer_store_dwordx4 {vr(b,4)}, v16, s[16:19], s46 offen")
        a(f"buffer_store_dwordx4 {vr(b+4,4)}, v16, s[16:19], s47 offen")
        a("s_add_u32 s46, s46, s52")
        a("s_add_u32 s47, s47, s52")
    a("s_barrier")
    a.label("K1_end")
    a("s_endpgm")
    return kd(n, 96, 64, 96), f"; @launch kernel={n} grid=(256,1,1) block=(320,1,1) lds={K1_LDS}"

K2_RED, K2_OB, K2_ST, K2_MX = 0, 49152, 57344, 57856
K2_LDS = 90112
OB_STRIDE = 912
SHIFT_LIMIT = 40.0

def gen_k2(a, force_slow=False):
    n = "k2_kernel"
    header(a, n)
    XR, Q, KVR, S, P = 16, 32, 64, 96, 128
    a("s_cmp_ge_u32 s2, 256")
    a("s_cbranch_scc1 K2_end")
    a("s_load_dwordx2 s[24:25], s[0:1], 0")
    a("s_load_dwordx2 s[26:27], s[0:1], 88")
    a("v_lshrrev_b32 v1, 6, v0")
    a("v_and_b32 v0, 63, v0")
    a("v_readfirstlane_b32 s3, v1")
    a("s_and_b32 s4, s2, 7")
    a("s_lshl_b32 s4, s4, 5")
    a("s_lshr_b32 s5, s2, 3")
    a("s_add_u32 s4, s4, s5")
    a("v_lshlrev_b32 v1, 4, v0")
    a("v_lshrrev_b32 v2, 5, v0")
    a("v_lshlrev_b32 v3, 2, v0")
    for i in range(8): a(f"v_mov_b32 v{KVR+16+8+i}, 0")
    for i in range(8): a(f"v_mov_b32 v{P+8+i}, 0")
    a("s_lshl_b32 s30, s3, 16")
    a(f"s_add_u32 s30, s30, {KV}")
    a("s_and_b32 s31, s5, 15")
    a("s_lshl_b32 s31, s31, 12")
    a("s_add_u32 s32, s30, s31")
    a("s_add_u32 s31, s31, 4096")
    a("s_and_b32 s31, s31, 0xffff")
    a("s_add_u32 s33, s30, s31")
    a("s_lshl_b32 s34, s4, 13")
    if QF: a(f"s_add_u32 s34, s34, {QF}")
    a(f"s_mov_b32 s35, {KMAX}")
    a("s_waitcnt lgkmcnt(0)")
    srd(a, 8, 26, 27, WS_SIZE)
    srd(a, 12, 24, 25, X_BYTES)
    a("buffer_load_dword v4, v3, s[8:11], s35 offen")
    for t in range(4):
        a(f"s_add_u32 s36, s3, {t}")
        a("s_and_b32 s36, s36, 3")
        a("s_lshl_b32 s36, s36, 11")
        a("s_add_u32 s36, s36, s34")
        a(f"buffer_load_dwordx4 {vr(Q+8*t,4)}, v1, s[8:11], s36 offen")
        a(f"buffer_load_dwordx4 {vr(Q+8*t+4,4)}, v1, s[8:11], s36 offen offset:1024")
    for i in range(4): a(f"buffer_load_dwordx4 {vr(KVR+4*i,4)}, v1, s[8:11], s32 offen offset:{1024*i}")
    for i in range(2): a(f"buffer_load_dwordx4 {vr(KVR+16+4*i,4)}, v1, s[8:11], s33 offen offset:{1024*i}")
    a("v_and_b32 v5, 7, v0")
    a("v_lshrrev_b32 v6, 4, v0")
    a("v_mul_u32_u24 v7, 896, v5")
    a("v_lshl_add_u32 v7, v6, 3, v7")
    a("s_mul_i32 s36, s4, 8*896")
    a("s_mul_i32 s37, s3, 224")
    a("s_add_u32 s36, s36, s37")
    for i in range(7): a(f"buffer_load_dwordx2 {vr(XR+2*i,2)}, v7, s[12:15], s36 offen offset:{32*i}")
    for i in range(64): a(f"v_accvgpr_write_b32 a{i}, 0")
    a("s_waitcnt vmcnt(21)")
    for m in ("quad_perm:[1,0,3,2]", "quad_perm:[2,3,0,1]", "row_half_mirror", "row_mirror"):
        a(f"v_max_f32_dpp v4, v4, v4 {m} row_mask:0xf bank_mask:0xf")
        a("s_nop 1")
    a("v_mov_b32 v8, v4")
    a("s_nop 1")
    a("v_permlane16_swap_b32 v8, v4")
    a("s_nop 1")
    a("v_max_f32 v4, v4, v8")
    half_sum(a, 4, 8, "v_max_f32")
    a(f"v_mul_f32 v4, {hexf(1.02)}, v4")
    a("v_cmp_ne_u32 s[40:41], 0, v2")
    for t in range(4): a(f"v_mov_b32 v{8+t}, 0")
    for t in range(4):
        a(f"s_waitcnt vmcnt({19-2*t})")
        for i in range(8): a(f"v_dot2c_f32_bf16 v{8+t}, v{Q+8*t+i}, v{Q+8*t+i}")
    a("s_nop 2")
    for t in range(4): half_sum(a, 8+t, 12)
    for t in range(4): a(f"v_mul_f32 v{8+t}, v{8+t}, v4")
    for t in range(4): a(f"v_sqrt_f32 v{8+t}, v{8+t}")
    a("s_nop 0")
    a("v_max3_f32 v12, v8, v9, v10")
    a("v_max_f32 v12, v12, v11")
    lim = -1.0 if force_slow else SHIFT_LIMIT
    a(f"v_cmp_nge_f32 vcc, {hexf(lim)}, v12")
    a("s_cbranch_vccnz K2_slow")
    for t in range(4): a(f"v_cvt_pk_bf16_f32 v{8+t}, -v{8+t}, 0")
    for t in range(4): a(f"v_cndmask_b32 v{Q+8*t+6}, v{Q+8*t+6}, v{8+t}, s[40:41]")
    a("s_waitcnt vmcnt(11)")
    a("s_mov_b32 s38, 0")
    a(mfma32(vr(S,16), vr(KVR,4), vr(Q,4), "0"))
    a(mfma32(vr(S,16), vr(KVR+4,4), vr(Q+4,4), vr(S,16)))
    a("s_nop 7")
    a("s_nop 3")
    a.label("K2_loop")
    for u in range(8):
        i, t = u >> 2, u & 3
        sb, pb = S + 16*(u & 1), P + 8*(u & 1)
        sn, pp = S + 16*((u+1) & 1), P + 8*((u-1) & 1)
        un, up = (u + 1) & 7, (u - 1) & 7
        kslot = KVR + 16*(un >> 2); qn = Q + 8*(un & 3)
        vslot = KVR + 16*(up >> 2) + 8; oa = ar(16*(up & 3), 16)
        M = [mfma32(vr(sn,16), vr(kslot,4), vr(qn,4), "0"),
             mfma32(vr(sn,16), vr(kslot+4,4), vr(qn+4,4), vr(sn,16)),
             mfma32(oa, vr(vslot,4), vr(pp,4), oa),
             mfma32(oa, vr(vslot+4,4), vr(pp+4,4), oa)]
        free = [[], [], [], []]
        cur = 32 + i
        if t == 3:
            free[0] = [f"buffer_load_dwordx4 {vr(KVR+16*i,4)}, v1, s[8:11], s{cur} offen"]
            free[1] = [f"buffer_load_dwordx4 {vr(KVR+16*i+4,4)}, v1, s[8:11], s{cur} offen offset:1024"]
        if t == 1:
            j = i ^ 1
            free[1] = ["s_waitcnt vmcnt(2)"]
            free[2] = [f"buffer_load_dwordx4 {vr(KVR+16*j+8,4)}, v1, s[8:11], s{32+j} offen offset:2048"]
            free[3] = [f"buffer_load_dwordx4 {vr(KVR+16*j+12,4)}, v1, s[8:11], s{32+j} offen offset:3072"]
        if t == 2:
            free[0] = ["s_add_u32 s31, s31, 4096"]
            free[1] = ["s_and_b32 s31, s31, 0xffff"]
            free[2] = [f"s_add_u32 s{cur}, s30, s31"]
            free[3] = ["s_waitcnt vmcnt(2)"]
        if u == 7:
            free[2] = ["s_add_u32 s38, s38, 1"]
            free[3] = ["s_cmp_lt_u32 s38, 8"]
        e = lambda k: f"v_exp_f32 v{sb+k}, v{sb+k}"
        c = lambda k: f"v_cvt_pk_bf16_f32 v{pb+k}, v{sb+2*k}, v{sb+2*k+1}"
        seq = [M[0], *free[0], e(0), e(1), e(2), e(3), c(0),
               M[1], *free[1], e(4), c(1), e(5), e(6), e(7), c(2),
               M[2], *free[2], e(8), c(3), e(9), e(10), e(11), c(4),
               M[3], *free[3], e(12), c(5), e(13), e(14), e(15), c(6), c(7)]
        for x in seq: a(x)
    a("s_cbranch_scc1 K2_loop")
    a("s_nop 1")
    a(mfma32(ar(48,16), vr(KVR+24,4), vr(P+8,4), ar(48,16)))
    a(mfma32(ar(48,16), vr(KVR+28,4), vr(P+12,4), ar(48,16)))
    a.label("K2_epi")
    a("s_waitcnt vmcnt(0)")
    a("s_mul_i32 s36, s3, 7*14*1024")
    a(f"s_add_u32 s36, s36, {WOF}")
    def woreg(ks, tile):
        f = (ks % 7)*7 + tile
        return ar(64+4*f, 4) if f < 48 else vr(144, 4)
    def woload(ks):
        for tile in range(7):
            a(f"s_add_u32 s37, s36, {(tile*14+ks)*1024}")
            a(f"buffer_load_dwordx4 {woreg(ks,tile)}, v1, s[8:11], s37 offen")
    for ks in range(7): woload(ks)
    for tp in range(1, 4):
        a(f"s_add_u32 s37, s3, {tp}")
        a("s_and_b32 s37, s37, 3")
        a("s_mul_i32 s37, s37, 12288")
        a(f"s_add_u32 s37, s37, {K2_RED + (tp-1)*4096}")
        a("v_add_u32 v8, s37, v1")
        for q in range(4): a(f"ds_write_b128 v8, {ar(16*tp+4*q,4)} offset:{1024*q}")
    a("s_mul_i32 s37, s3, 12288")
    a("v_add_u32 v8, s37, v1")
    for i in range(16): a(f"v_accvgpr_read_b32 v{32+i}, a{i}")
    a("s_waitcnt lgkmcnt(0)")
    a("s_barrier")
    for j in range(12): a(f"ds_read_b128 {vr(48+4*j,4)}, v8 offset:{K2_RED+1024*j}")
    a("v_bfe_u32 v9, v0, 3, 2")
    a("s_lshl_b32 s37, s3, 2")
    a("v_add_u32 v9, s37, v9")
    a("v_mul_u32_u24 v9, 56, v9")
    a(f"v_mul_u32_u24 v10, {OB_STRIDE}, v5")
    a("v_add_u32 v9, v9, v10")
    a("v_lshl_add_u32 v9, v2, 3, v9")
    a(f"v_add_u32 v9, {K2_OB}, v9")
    a(f"v_mov_b32 v11, {K2_MX+1024}")
    a("v_add_u32 v12, 48, v9")
    a("v_cndmask_b32 v11, v12, v11, s[40:41]")
    for j in range(3):
        a(f"s_waitcnt lgkmcnt({8-4*j})")
        for i in range(16): a(f"v_add_f32 v{32+i}, v{32+i}, v{48+16*j+i}")
    a("v_mov_b32 v12, v44")
    a("v_mov_b32 v13, v44")
    a("s_nop 1")
    a("v_permlane32_swap_b32 v12, v13")
    a("s_nop 1")
    a("v_rcp_f32 v13, v13")
    a("s_nop 0")
    for i in range(16): a(f"v_mul_f32 v{32+i}, v{32+i}, v13")
    for i in range(8): a(f"v_cvt_pk_bf16_f32 v{48+i}, v{32+2*i}, v{33+2*i}")
    for i in range(3): a(f"ds_write_b64 v9, {vr(48+2*i,2)} offset:{16*i}")
    a("ds_write_b64 v11, v[54:55]")
    a(f"v_lshl_add_u32 v10, v6, 4, v10")
    a(f"v_add_u32 v10, {K2_OB}, v10")
    ACC = 96
    for i in range(14):
        a(f"v_lshlrev_b32 v{ACC+2*i}, 16, v{XR+i}")
        a(f"v_and_b32 v{ACC+2*i+1}, 0xffff0000, v{XR+i}")
    a("s_waitcnt lgkmcnt(0)")
    a("s_barrier")
    for ks in range(14): a(f"ds_read_b128 {ar(4*ks,4)}, v10 offset:{64*ks}")
    a("s_waitcnt lgkmcnt(0)")
    for ks in range(14):
        a(f"s_waitcnt vmcnt({42 if ks < 7 else 7*(13-ks)})")
        for tile in range(7):
            a(mfma16(vr(ACC+4*tile,4), woreg(ks,tile), ar(4*ks,4), vr(ACC+4*tile,4)))
        if ks < 7: woload(ks + 7)
    a("s_nop 7")
    H = 32
    for i in range(14): a(f"v_cvt_pk_bf16_f32 v{H+i}, v{ACC+2*i}, v{ACC+2*i+1}")
    a(f"s_mov_b32 s42, {ONES_BF}")
    a("v_mov_b32 v12, 0")
    a("v_mov_b32 v13, 0")
    for i in range(14):
        a(f"v_dot2c_f32_bf16 v12, s42, v{H+i}")
        a(f"v_dot2c_f32_bf16 v13, v{H+i}, v{H+i}")
    a("s_nop 2")
    for r in (12, 13):
        a(f"v_mov_b32 v14, v{r}")
        a("s_nop 1")
        a(f"v_permlane16_swap_b32 v14, v{r}")
        a("s_nop 1")
        a(f"v_add_f32 v{r}, v{r}, v14")
        half_sum(a, r, 14)
    a("v_and_b32 v14, 15, v0")
    a("v_lshlrev_b32 v14, 3, v14")
    a(f"v_add_u32 v14, {K2_ST}, v14")
    a("s_lshl_b32 s37, s3, 7")
    a("v_add_u32 v15, s37, v14")
    a("ds_write_b64 v15, v[12:13]")
    a("s_and_b32 s37, s4, 3")
    a("s_lshl_b32 s37, s37, 7")
    a("v_and_b32 v8, 1, v6")
    a("v_lshlrev_b32 v8, 9, v8")
    a("v_lshl_add_u32 v8, v5, 4, v8")
    a("v_lshl_add_u32 v8, v2, 3, v8")
    a("v_add_u32 v8, s37, v8")
    a("s_lshr_b32 s37, s4, 2")
    a("s_mul_i32 s37, s37, 28672")
    a("s_mul_i32 s43, s3, 7168")
    a("s_add_u32 s37, s37, s43")
    a(f"s_add_u32 s43, s37, {HD}")
    a(f"s_add_u32 s44, s37, {HD+4096}")
    a(f"s_add_u32 s45, s37, {HN}")
    a(f"s_add_u32 s46, s37, {HN+4096}")
    a("s_mov_b32 s48, 0x00ff00ff")
    a("s_mov_b32 s49, 0x00ff00ff")
    a("s_waitcnt lgkmcnt(0)")
    a("s_barrier")
    for w in range(4): a(f"ds_read_b64 {vr(48+2*w,2)}, v14 offset:{128*w}")
    a("s_mov_b64 exec, s[48:49]")
    for i in range(7):
        a(f"buffer_store_dwordx2 {vr(H+2*i,2)}, v8, s[8:11], s{43+(i>>2)} offen offset:{1024*(i&3)}")
    a("s_waitcnt lgkmcnt(0)")
    a("v_add_f32 v48, v48, v50")
    a("v_add_f32 v49, v49, v51")
    a("v_add_f32 v52, v52, v54")
    a("v_add_f32 v53, v53, v55")
    a("v_add_f32 v48, v48, v52")
    a("v_add_f32 v49, v49, v53")
    a(f"v_mul_f32 v48, {hexf(1.0/448)}, v48")
    a(f"v_mul_f32 v49, {hexf(1.0/448)}, v49")
    a("v_fma_f32 v49, -v48, v48, v49")
    a("v_max_f32 v49, 0, v49")
    a(f"v_add_f32 v49, {hexf(1e-5)}, v49")
    a("v_rsq_f32 v49, v49")
    a("s_nop 0")
    a("v_mul_f32 v48, -v48, v49")
    for i in range(14):
        a(f"v_lshlrev_b32 v{ACC+2*i}, 16, v{H+i}")
        a(f"v_and_b32 v{ACC+2*i+1}, 0xffff0000, v{H+i}")
    for i in range(28): a(f"v_fma_f32 v{ACC+i}, v{ACC+i}, v49, v48")
    for i in range(14): a(f"v_cvt_pk_bf16_f32 v{64+i}, v{ACC+2*i}, v{ACC+2*i+1}")
    for i in range(7):
        a(f"buffer_store_dwordx2 {vr(64+2*i,2)}, v8, s[8:11], s{45+(i>>2)} offen offset:{1024*(i&3)}")
    a.label("K2_end")
    a("s_endpgm")

    a.label("K2_slow")
    MX = 8
    for t in range(4): a(f"v_mov_b32 v{MX+t}, 0xff800000")
    a("s_mov_b32 s38, 0")
    a("s_waitcnt vmcnt(0)")
    a.label("K2_s1")
    a("s_add_u32 s32, s30, s38")
    for i in range(2): a(f"buffer_load_dwordx4 {vr(KVR+4*i,4)}, v1, s[8:11], s32 offen offset:{1024*i}")
    a("s_waitcnt vmcnt(0)")
    for t in range(4):
        a(mfma32(vr(S,16), vr(KVR,4), vr(Q+8*t,4), "0"))
        a(mfma32(vr(S,16), vr(KVR+4,4), vr(Q+8*t+4,4), vr(S,16)))
        a("s_nop 7")
        a("s_nop 3")
        for i in range(8): a(f"v_max3_f32 v{MX+t}, v{S+2*i}, v{S+2*i+1}, v{MX+t}")
    a("s_add_u32 s38, s38, 4096")
    a("s_cmp_lt_u32 s38, 0x10000")
    a("s_cbranch_scc1 K2_s1")
    for t in range(4):
        half_sum(a, MX+t, 12, "v_max_f32")
        a(f"s_add_u32 s37, s3, {t}")
        a("s_and_b32 s37, s37, 3")
        a("s_lshl_b32 s37, s37, 10")
        a("s_lshl_b32 s36, s3, 8")
        a("s_add_u32 s37, s37, s36")
        a("v_add_u32 v12, s37, v3")
        a(f"ds_write_b32 v12, v{MX+t}")
    a("s_waitcnt lgkmcnt(0)")
    a("s_barrier")
    for t in range(4):
        a(f"s_add_u32 s37, s3, {t}")
        a("s_and_b32 s37, s37, 3")
        a("s_lshl_b32 s37, s37, 10")
        a("v_add_u32 v12, s37, v3")
        for w in range(4): a(f"ds_read_b32 v{S+w}, v12 offset:{256*w}")
        a("s_waitcnt lgkmcnt(0)")
        a(f"v_max3_f32 v{MX+t}, v{S}, v{S+1}, v{S+2}")
        a(f"v_max_f32 v{MX+t}, v{MX+t}, v{S+3}")
    a("s_barrier")
    a("s_mov_b32 s38, 0")
    a.label("K2_s2")
    a("s_add_u32 s32, s30, s38")
    for i in range(4): a(f"buffer_load_dwordx4 {vr(KVR+4*i,4)}, v1, s[8:11], s32 offen offset:{1024*i}")
    a("s_waitcnt vmcnt(0)")
    for t in range(4):
        a(mfma32(vr(S,16), vr(KVR,4), vr(Q+8*t,4), "0"))
        a(mfma32(vr(S,16), vr(KVR+4,4), vr(Q+8*t+4,4), vr(S,16)))
        a("s_nop 7")
        a("s_nop 3")
        for i in range(16): a(f"v_sub_f32 v{S+i}, v{S+i}, v{MX+t}")
        for i in range(16): a(f"v_exp_f32 v{S+i}, v{S+i}")
        a("s_nop 0")
        for i in range(8): a(f"v_cvt_pk_bf16_f32 v{P+i}, v{S+2*i}, v{S+2*i+1}")
        a("s_nop 1")
        a(mfma32(ar(16*t,16), vr(KVR+8,4), vr(P,4), ar(16*t,16)))
        a(mfma32(ar(16*t,16), vr(KVR+12,4), vr(P+4,4), ar(16*t,16)))
    a("s_add_u32 s38, s38, 4096")
    a("s_cmp_lt_u32 s38, 0x10000")
    a("s_cbranch_scc1 K2_s2")
    a("s_branch K2_epi")
    return kd(n, 512, 64, 256), f"; @launch kernel={n} grid=(256,1,1) block=(256,1,1) lds={K2_LDS}"

K3_ACT = 57344
K3_LDS = 57344 + 28672

def mish(a, x0, n, t0):
    for i in range(n): a(f"v_mul_f32 v{t0+i}, s40, v{x0+i}")
    for i in range(n): a(f"v_exp_f32 v{t0+i}, v{t0+i}")
    for i in range(n):
        a(f"v_add_f32 v{t0+n+(i&1)}, 2.0, v{t0+i}")
        a(f"v_fma_f32 v{t0+i}, v{t0+i}, v{t0+n+(i&1)}, 2.0")
    for i in range(n): a(f"v_rcp_f32 v{t0+i}, v{t0+i}")
    for i in range(n):
        a(f"v_mul_f32 v{t0+i}, v{t0+i}, v{x0+i}")
        a(f"v_fma_f32 v{x0+i}, v{t0+i}, -2.0, v{x0+i}")

def gen_k3(a):
    n = "k3_kernel"
    header(a, n)
    W, BR, ACC, BIAS = 16, 128, 160, 224
    a("s_cmp_ge_u32 s2, 256")
    a("s_cbranch_scc1 K3_end")
    a("s_load_dwordx2 s[24:25], s[0:1], 56")
    a("s_load_dwordx2 s[26:27], s[0:1], 88")
    a("v_lshrrev_b32 v1, 6, v0")
    a("v_and_b32 v0, 63, v0")
    a("v_readfirstlane_b32 s3, v1")
    a("s_and_b32 s4, s2, 7")
    a("s_lshl_b32 s4, s4, 2")
    a("s_bfe_u32 s6, s2, 0x20003")
    a("s_add_u32 s4, s4, s6")
    a("s_lshr_b32 s5, s2, 5")
    a("v_lshlrev_b32 v1, 4, v0")
    a("v_lshrrev_b32 v2, 5, v0")
    a("s_mul_i32 s30, s4, 57344")
    a("s_lshl_b32 s31, s3, 13")
    a("s_add_u32 s30, s30, s31")
    a(f"s_add_u32 s30, s30, {HN}")
    a("s_mul_i32 s32, s5, 7")
    a("s_add_u32 s32, s32, s3")
    a("s_lshl_b32 s33, s32, 6")
    a("s_mul_i32 s32, s32, 28672")
    a(f"s_add_u32 s32, s32, {W1F}")
    a("s_mul_i32 s34, s3, 2*112*1024")
    a("s_mul_i32 s35, s5, 14*1024")
    a("s_add_u32 s34, s34, s35")
    a(f"s_add_u32 s34, s34, {W2F}")
    a(f"s_mov_b32 s40, {hexf(LOG2E)}")
    a("v_lshlrev_b32 v3, 3, v2")
    a("s_waitcnt lgkmcnt(0)")
    srd(a, 8, 26, 27, WS_SIZE)
    srd(a, 12, 24, 25, 3584)
    for j in range(2):
        a("s_mov_b32 m0, s31")
        a("s_add_u32 s31, s31, 4096")
        for i in range(4): a(f"buffer_load_dwordx4 v1, s[8:11], s30 offen offset:{1024*i} lds")
        a("s_add_u32 s30, s30, 4096")
    for i in range(4): a(f"buffer_load_dwordx2 {vr(4+2*i,2)}, v3, s[12:15], s33 offen offset:{16*i}")
    for ks in range(28):
        a(f"buffer_load_dwordx4 {vr(W+4*ks,4)}, v1, s[8:11], s32 offen offset:{1024*(ks&3)}")
        if ks & 3 == 3: a("s_add_u32 s32, s32, 4096")
    a("s_waitcnt vmcnt(28)")
    for i in range(8):
        a(f"v_lshlrev_b32 v{BIAS+2*i}, 16, v{4+i}")
        a(f"v_and_b32 v{BIAS+2*i+1}, 0xffff0000, v{4+i}")
    a("s_barrier")
    RING = 4
    def rdA(ks):
        b = BR + 8*(ks % RING)
        a(f"ds_read_b128 {vr(b,4)}, v1 offset:{ks*1024}")
        a(f"ds_read_b128 {vr(b+4,4)}, v1 offset:{28672+ks*1024}")
    def w2load(f):
        nt, ks = f & 1, f >> 1
        a(f"s_add_u32 s36, s34, {(nt*112+ks)*1024}")
        a(f"buffer_load_dwordx4 {vr(W+4*f,4)}, v1, s[8:11], s36 offen")
    for ks in range(RING-1): rdA(ks)
    for ks in range(28):
        if ks + RING - 1 < 28: rdA(ks + RING - 1)
        a(f"s_waitcnt vmcnt(27) lgkmcnt({2*min(RING-1, 27-ks)})")
        b = BR + 8*(ks % RING)
        for tt in range(2):
            C = vr(BIAS,16) if ks == 0 else vr(ACC+16*tt,16)
            a(mfma32(vr(ACC+16*tt,16), vr(W+4*ks,4), vr(b+4*tt,4), C))
        w2load(ks)
    a("s_nop 7")
    a("s_nop 3")
    a("s_lshl_b32 s36, s3, 11")
    a(f"s_add_u32 s36, s36, {K3_ACT}")
    a("v_add_u32 v4, s36, v1")
    a(f"v_add_u32 v5, {K3_ACT}, v1")
    for tt in range(2):
        mish(a, ACC+16*tt, 16, 192)
        for i in range(8): a(f"v_cvt_pk_bf16_f32 v{BR+8*tt+i}, v{ACC+16*tt+2*i}, v{ACC+16*tt+2*i+1}")
        a(f"ds_write_b128 v4, {vr(BR+8*tt,4)} offset:{14336*tt}")
        a(f"ds_write_b128 v4, {vr(BR+8*tt+4,4)} offset:{14336*tt+1024}")
    a("s_waitcnt lgkmcnt(0)")
    a("s_barrier")
    def rdB(ks):
        b = BR + 8*(ks % RING)
        a(f"ds_read_b128 {vr(b,4)}, v5 offset:{ks*1024}")
        a(f"ds_read_b128 {vr(b+4,4)}, v5 offset:{14336+ks*1024}")
    for ks in range(RING-1): rdB(ks)
    for ks in range(14):
        if ks + RING - 1 < 14: rdB(ks + RING - 1)
        a(f"s_waitcnt vmcnt({26-2*ks}) lgkmcnt({2*min(RING-1, 13-ks)})")
        b = BR + 8*(ks % RING)
        for nt in range(2):
            for tt in range(2):
                d = vr(ACC+32*nt+16*tt,16)
                a(mfma32(d, vr(W+4*(2*ks+nt),4), vr(b+4*tt,4), "0" if ks == 0 else d))
    a("s_nop 7")
    a("s_nop 3")
    a("s_mul_i32 s36, s4, 2*28*8192")
    a("s_lshl_b32 s37, s3, 15")
    a("s_add_u32 s36, s36, s37")
    a("s_lshl_b32 s37, s5, 10")
    a("s_add_u32 s36, s36, s37")
    a(f"s_add_u32 s36, s36, {PART}")
    for nt in range(2):
        for tt in range(2):
            d = ACC+32*nt+16*tt
            p = W + 16*nt + 8*tt
            for i in range(8): a(f"v_cvt_pk_bf16_f32 v{p+i}, v{d+2*i}, v{d+2*i+1}")
            for half in range(2):
                a(f"s_add_u32 s37, s36, {tt*28*8192 + (2*nt+half)*8192}")
                a(f"buffer_store_dwordx4 {vr(p+4*half,4)}, v1, s[8:11], s37 offen")
    a.label("K3_end")
    a("s_endpgm")
    return kd(n, 256, 64, 256), f"; @launch kernel={n} grid=(256,1,1) block=(448,1,1) lds={K3_LDS}"

def gen_k4(a):
    n = "k4_kernel"
    header(a, n)
    a("s_cmp_ge_u32 s2, 256")
    a("s_cbranch_scc1 K4_end")
    a("s_load_dwordx2 s[24:25], s[0:1], 72")
    a("s_load_dwordx2 s[26:27], s[0:1], 88")
    a("v_lshrrev_b32 v1, 6, v0")
    a("v_and_b32 v0, 63, v0")
    a("v_readfirstlane_b32 s3, v1")
    a("s_and_b32 s4, s2, 7")
    a("s_lshl_b32 s4, s4, 3")
    a("s_lshr_b32 s5, s2, 5")
    a("s_add_u32 s4, s4, s5")
    a("s_bfe_u32 s5, s2, 0x20003")
    a("s_mul_i32 s5, s5, 7")
    a("s_add_u32 s5, s5, s3")
    a("s_mul_i32 s6, s4, 28")
    a("s_add_u32 s6, s6, s5")
    a("s_lshl_b32 s30, s6, 13")
    a(f"s_add_u32 s30, s30, {PART}")
    a("s_add_u32 s31, s30, 4096")
    a("s_lshl_b32 s32, s6, 10")
    a(f"s_add_u32 s32, s32, {HD}")
    a("v_lshlrev_b32 v1, 4, v0")
    a("s_mul_i32 s33, s4, 32*896")
    a("s_lshl_b32 s34, s5, 5")
    a("s_add_u32 s33, s33, s34")
    a("v_and_b32 v2, 31, v0")
    a("v_mul_u32_u24 v2, 896, v2")
    a("v_lshrrev_b32 v3, 5, v0")
    a("v_lshl_add_u32 v2, v3, 4, v2")
    a("s_mov_b32 s40, 0x00003f80")
    a("s_mov_b32 s41, 0x3f800000")
    a("s_waitcnt lgkmcnt(0)")
    srd(a, 8, 26, 27, WS_SIZE)
    srd(a, 12, 24, 25, X_BYTES)
    a("buffer_load_dwordx4 v[4:7], v1, s[8:11], s32 offen")
    for g in range(8): a(f"buffer_load_dwordx4 {vr(8+4*g,4)}, v1, s[8:11], s{30+(g>>2)} offen offset:{1024*(g&3)}")
    a("s_waitcnt vmcnt(8)")
    for i in range(4):
        a(f"v_lshlrev_b32 v{40+2*i}, 16, v{4+i}")
        a(f"v_and_b32 v{41+2*i}, 0xffff0000, v{4+i}")
    for g in range(8):
        a(f"s_waitcnt vmcnt({7-g})")
        for i in range(4):
            a(f"v_lshlrev_b32 v{48+2*i}, 16, v{8+4*g+i}")
            a(f"v_and_b32 v{49+2*i}, 0xffff0000, v{8+4*g+i}")
        for i in range(8): a(f"v_add_f32 v{40+i}, v{40+i}, v{48+i}")
    for i in range(4): a(f"v_cvt_pk_bf16_f32 v{4+i}, v{40+2*i}, v{41+2*i}")
    a("s_nop 1")
    a("v_permlane32_swap_b32 v4, v6")
    a("v_permlane32_swap_b32 v5, v7")
    a("s_nop 1")
    a("buffer_store_dwordx4 v[4:7], v2, s[12:15], s33 offen")
    a.label("K4_end")
    a("s_endpgm")
    return kd(n, 64, 64, 64), f"; @launch kernel={n} grid=(256,1,1) block=(448,1,1) lds=0"

def build(force_slow=False, extra=0):
    a = Asm()
    parts = [gen_k1(a), gen_k2(a, force_slow), gen_k3(a), gen_k4(a)]
    launches = [p[1] for p in parts]
    kds = [p[0] for p in parts]
    if extra:
        header(a, "nop_kernel")
        a("s_endpgm")
        kds.append(kd("nop_kernel", 8, 16, 8))
        launches += ["; @launch kernel=nop_kernel grid=(256,1,1) block=(64,1,1) lds=0"] * extra
    out = "\n".join(launches) + "\n"
    out += '.amdgcn_target "amdgcn-amd-amdhsa--gfx950"\n.text\n'
    out += a.text()
    out += '.section .rodata,"a"\n' + "".join(kds)
    return out

if __name__ == "__main__":
    import argparse
    ap = argparse.ArgumentParser()
    ap.add_argument("-o", default=f"cdna_kernels/{NAME}.s")
    ap.add_argument("--slow", action="store_true")
    ap.add_argument("--extra", type=int, default=0)
    args = ap.parse_args()
    txt = build(args.slow, args.extra)
    open(args.o, "w").write(txt)
    import hazard
    print("hazards:", hazard.check(txt))
```

```python
import math, struct, sys

NAME = "sequential_preLN__grouped_kv_mqa__dense_activation_mish__prompt"

QF   = 0x000000
KV   = 0x200000
KMAX = 0x240000
WOF  = 0x250000
W1F  = 0x300000
W2F  = 0x500000
HN   = 0x700000
HD   = 0x900000
PART = 0xB00000
WS_SIZE = PART + 64*28*8*1024

X_BYTES = 2048*896
WQ_BYTES = 448*896
WK_BYTES = 448*56
W1_BYTES = 448*3584
W2_BYTES = 1792*896

def f2u(f): return struct.unpack("<I", struct.pack("<f", f))[0]
def hexf(f): return "0x%08x" % f2u(f)
LOG2E = math.log2(math.e)
QSCALE = LOG2E / math.sqrt(28.0)
ONES_BF = "0x3f803f80"

class Asm:
    def __init__(self):
        self.L = []
    def __call__(self, s):
        for ln in s.split("\n"):
            ln = ln.strip()
            if ln: self.L.append("    " + ln)
    def label(self, s): self.L.append(s + ":")
    def c(self, s): self.L.append("    ; " + s)
    def text(self): return "\n".join(self.L) + "\n"

def vr(b, n=1): return f"v{b}" if n == 1 else f"v[{b}:{b+n-1}]"
def ar(b, n=1): return f"a{b}" if n == 1 else f"a[{b}:{b+n-1}]"
def sr(b, n=1): return f"s{b}" if n == 1 else f"s[{b}:{b+n-1}]"

def srd(a, d, lo, hi, nbytes):
    a(f"s_mov_b32 s{d}, s{lo}")
    a(f"s_mov_b32 s{d+1}, s{hi}")
    a(f"s_mov_b32 s{d+2}, {nbytes if isinstance(nbytes, str) else hex(nbytes)}")
    a(f"s_mov_b32 s{d+3}, 0x20000")

def header(a, name):
    a.L.append(f".globl {name}")
    a.L.append(".p2align 8")
    a.L.append(f".type {name},@function")
    a.label(name)

def kd(name, vgpr, sgpr, accum):
    return f""".p2align 6
.amdhsa_kernel {name}
  .amdhsa_next_free_vgpr {vgpr}
  .amdhsa_next_free_sgpr {96 if STAMPS else sgpr}
  .amdhsa_accum_offset {accum}
  .amdhsa_group_segment_fixed_size 0
  .amdhsa_kernarg_size 96
  .amdhsa_user_sgpr_count 2
  .amdhsa_user_sgpr_kernarg_segment_ptr 1
  .amdhsa_system_sgpr_workgroup_id_x 1
.end_amdhsa_kernel
"""

STAMPS = False
STAMP_BASE = 0x8000000
def stamp(a, i):
    if STAMPS: a(f"s_memrealtime s[{72+2*i}:{73+2*i}]")
def stamp_init(a):
    if STAMPS:
        for i in range(8): a(f"s_mov_b32 s{72+2*i}, 0")
        stamp(a, 0)
def fin(a, kidx, wslo):
    if STAMPS:
        stamp(a, 7)
        a("s_mov_b64 exec, 1")
        a("s_waitcnt lgkmcnt(0)")
        for i in range(8): a(f"v_mov_b32 v{i}, s{72+2*i}")
        srd(a, 68, wslo, wslo+1, 0x10000000)
        a("s_lshl_b32 s90, s2, 3")
        a("s_add_u32 s90, s90, s3")
        a(f"s_add_u32 s90, s90, {kidx*4096}")
        a("s_lshl_b32 s90, s90, 5")
        a(f"s_add_u32 s90, s90, {STAMP_BASE}")
        a("v_mov_b32 v8, 0")
        a("buffer_store_dwordx4 v[0:3], v8, s[68:71], s90 offen")
        a("buffer_store_dwordx4 v[4:7], v8, s[68:71], s90 offen offset:16")
    a("s_endpgm")

def mfma32(d, A, B, C): return f"v_mfma_f32_32x32x16_bf16 {d}, {A}, {B}, {C}"
def mfma16(d, A, B, C): return f"v_mfma_f32_16x16x32_bf16 {d}, {A}, {B}, {C}"

def half_sum(a, x, t, op="v_add_f32"):
    a(f"v_mov_b32 v{t}, v{x}")
    a("s_nop 1")
    a(f"v_permlane32_swap_b32 v{t}, v{x}")
    a("s_nop 1")
    a(f"{op} v{x}, v{x}, v{t}")

K1_X, K1_W0, K1_W4, K1_ST, K1_CS = 0, 57344, 114688, 143360, 143872
K1_LDS = 144640

def gen_k1(a):
    n = "k1_kernel"
    header(a, n)
    a("s_cmp_ge_u32 s2, 256")
    a("s_cbranch_scc1 K1_end")
    stamp_init(a)
    a("s_load_dwordx4 s[24:27], s[0:1], 0")
    a("s_load_dwordx4 s[28:31], s[0:1], 16")
    a("s_load_dwordx2 s[32:33], s[0:1], 32")
    a("s_load_dwordx2 s[34:35], s[0:1], 48")
    a("s_load_dwordx2 s[36:37], s[0:1], 64")
    a("s_load_dwordx2 s[38:39], s[0:1], 88")
    a("v_lshrrev_b32 v1, 6, v0")
    a("v_and_b32 v0, 63, v0")
    a("v_readfirstlane_b32 s3, v1")
    a("s_and_b32 s4, s2, 7")
    a("s_lshl_b32 s4, s4, 2")
    a("s_bfe_u32 s6, s2, 0x20003")
    a("s_add_u32 s4, s4, s6")
    a("s_lshr_b32 s5, s2, 5")
    a("v_lshrrev_b32 v2, 5, v0")
    a("v_bfe_u32 v3, v0, 4, 1")
    a("v_bfe_u32 v4, v0, 2, 2")
    a("v_and_b32 v5, 3, v0")
    a("v_lshrrev_b32 v6, 2, v0")
    a("v_lshlrev_b32 v7, 4, v5")
    a("s_cmp_eq_u32 s3, 4")
    a("s_cbranch_scc1 K1_w4")
    a("v_lshrrev_b32 v8, 3, v0")
    a("v_and_b32 v9, 7, v0")
    a("v_lshrrev_b32 v10, 1, v8")
    a("v_xor_b32 v9, v9, v10")
    a("s_and_b32 s6, s3, 1")
    a("s_lshl_b32 s7, s6, 2")
    a("v_xor_b32 v9, s7, v9")
    a("v_mul_u32_u24 v8, 896, v8")
    a("v_lshl_add_u32 v8, v9, 4, v8")
    a("v_mul_u32_u24 v9, 896, v6")
    a("v_add_u32 v9, v9, v7")
    a("s_lshl_b32 s40, s4, 6")
    a("s_lshl_b32 s41, s3, 4")
    a("s_add_u32 s40, s40, s41")
    a("s_mul_i32 s40, s40, 896")
    a("s_mul_i32 s41, s3, 14336")
    a("s_lshl_b32 s42, s5, 1")
    a("s_add_u32 s42, s42, s6")
    a("s_mul_i32 s43, s42, 56")
    a("s_lshr_b32 s44, s3, 1")
    a("s_mul_i32 s45, s44, 224*896")
    a("s_add_u32 s43, s43, s45")
    a("s_mul_i32 s45, s6, 28672")
    a("s_mul_i32 s46, s44, 14336")
    a("s_add_u32 s45, s45, s46")
    a(f"s_add_u32 s45, s45, {K1_W0}")
    a("s_waitcnt lgkmcnt(0)")
    srd(a, 8, 24, 25, X_BYTES)
    srd(a, 12, 26, 27, WQ_BYTES)
    srd(a, 16, 38, 39, WS_SIZE)
    for j in range(14):
        a("s_mov_b32 m0, s41")
        a("s_add_u32 s41, s41, 1024")
        a("buffer_load_dwordx4 v8, s[8:11], s40 offen lds")
        a(f"s_add_u32 s40, s40, {128 if j != 6 else 8*896 - 6*128}")
        a("s_mov_b32 m0, s45")
        a("s_add_u32 s45, s45, 1024")
        a("buffer_load_dwordx4 v9, s[12:15], s43 offen lds")
        a(f"s_add_u32 s43, s43, {16*896}")
    a("v_lshlrev_b32 v10, 3, v2")
    a("v_add_u32 v10, v10, v4")
    a("v_lshlrev_b32 v10, 6, v10")
    a("v_lshl_add_u32 v10, v3, 5, v10")
    a("v_lshl_add_u32 v10, v5, 3, v10")
    a("s_mul_i32 s46, s6, 28672")
    a(f"s_add_u32 s46, s46, {K1_W0}")
    a("v_add_u32 v10, s46, v10")
    a("s_mov_b32 s47, 0")
    a("s_mul_i32 s46, s3, 14336")
    a("v_mul_u32_u24 v11, 7168, v2")
    a("v_and_b32 v12, 7, v6")
    a("v_lshl_add_u32 v11, v12, 7, v11")
    a("v_lshl_add_u32 v11, v5, 5, v11")
    a("v_add_u32 v11, s46, v11")
    stamp(a, 1)
    a("s_waitcnt vmcnt(0)")
    stamp(a, 2)
    a("s_barrier")
    stamp(a, 3)
    for kg in range(7):
        a(f"ds_read_b128 {vr(32+8*kg,4)}, v11 offset:{kg*1024}")
        a(f"ds_read_b128 {vr(36+8*kg,4)}, v11 offset:{kg*1024+16}")
    for i in range(4): a(f"v_mov_b32 v{20+i}, 0")
    a(f"s_mov_b32 s48, {ONES_BF}")
    for q in range(14):
        a(f"s_waitcnt lgkmcnt({13-q})")
        for i in range(4):
            r = 32 + 4*q + i
            a(f"v_dot2c_f32_bf16 v{20+(i&1)}, s48, v{r}")
            a(f"v_dot2c_f32_bf16 v{22+(i&1)}, v{r}, v{r}")
    a("s_nop 2")
    a("v_add_f32 v20, v20, v21")
    a("v_add_f32 v22, v22, v23")
    a("s_nop 1")
    a("v_add_f32_dpp v20, v20, v20 quad_perm:[1,0,3,2] row_mask:0xf bank_mask:0xf")
    a("v_add_f32_dpp v22, v22, v22 quad_perm:[1,0,3,2] row_mask:0xf bank_mask:0xf")
    a("s_nop 1")
    a("v_add_f32_dpp v20, v20, v20 quad_perm:[2,3,0,1] row_mask:0xf bank_mask:0xf")
    a("v_add_f32_dpp v22, v22, v22 quad_perm:[2,3,0,1] row_mask:0xf bank_mask:0xf")
    a(f"v_mul_f32 v20, {hexf(1.0/448)}, v20")
    a(f"v_mul_f32 v22, {hexf(1.0/448)}, v22")
    a("v_fma_f32 v22, -v20, v20, v22")
    a("v_max_f32 v22, 0, v22")
    a(f"v_add_f32 v22, {hexf(1e-5)}, v22")
    a("v_rsq_f32 v22, v22")
    a("s_lshl_b32 s46, s3, 6")
    a(f"s_add_u32 s46, s46, {K1_ST}")
    a("v_mul_f32 v20, -v20, v22")
    a("v_lshl_add_u32 v12, v6, 2, s46")
    a("ds_write_b32 v12, v22")
    a("ds_write_b32 v12, v20 offset:256")
    a("s_branch K1_proj")

    a.label("K1_w4")
    a("s_waitcnt lgkmcnt(0)")
    srd(a, 16, 38, 39, WS_SIZE)
    a("s_cmp_ge_u32 s5, 4")
    a("s_cbranch_scc1 K1_prep")
    a("s_lshr_b32 s47, s5, 1")
    a("s_cmp_eq_u32 s47, 0")
    a("s_cselect_b32 s12, s28, s30")
    a("s_cselect_b32 s13, s29, s31")
    a(f"s_mov_b32 s14, {WK_BYTES}")
    a("s_mov_b32 s15, 0x20000")
    a("s_add_u32 s47, s47, 1")
    a("s_and_b32 s44, s5, 1")
    a("v_mul_u32_u24 v9, 56, v6")
    a("v_add_u32 v9, v9, v7")
    a("s_mov_b32 s43, 0")
    a(f"s_mov_b32 s45, {K1_W4}")
    for j in range(28):
        a("s_mov_b32 m0, s45")
        a("s_add_u32 s45, s45, 1024")
        a("buffer_load_dwordx4 v9, s[12:15], s43 offen lds")
        a(f"s_add_u32 s43, s43, {16*56}")
    a("v_lshlrev_b32 v10, 3, v2")
    a("v_add_u32 v10, v10, v4")
    a("v_lshlrev_b32 v10, 6, v10")
    a("v_lshl_add_u32 v10, v3, 5, v10")
    a("v_lshl_add_u32 v10, v5, 3, v10")
    a(f"v_add_u32 v10, {K1_W4}, v10")
    stamp(a, 1)
    a("s_waitcnt vmcnt(0)")
    stamp(a, 2)
    a("s_barrier")
    stamp(a, 3)

    a.label("K1_proj")
    stamp(a, 4)
    a("v_and_b32 v13, 31, v0")
    a("v_bfe_u32 v14, v13, 1, 2")
    a("v_lshrrev_b32 v15, 2, v13")
    a("v_and_b32 v15, 4, v15")
    a("v_or_b32 v14, v14, v15")
    a("v_xor_b32 v14, v14, v2")
    a("v_lshrrev_b32 v15, 3, v13")
    a("v_mul_u32_u24 v15, 7168, v15")
    a("v_and_b32 v16, 7, v13")
    a("v_lshl_add_u32 v15, v16, 7, v15")
    a("s_mul_i32 s46, s44, 28672")
    a("v_add_u32 v15, s46, v15")
    for j in range(4):
        a(f"v_xor_b32 v16, {2*j}, v14")
        a(f"v_lshl_add_u32 v{24+j}, v16, 4, v15")
    a(f"s_mov_b32 s48, {ONES_BF}")
    a("v_mov_b32 v28, 0")
    a("v_mov_b32 v29, 0")
    a("s_cmp_eq_u32 s47, 2")
    a("s_cbranch_scc1 K1_projv")
    RING = 4
    def rd(ks):
        b = 32 + 8*(ks % RING)
        a(f"ds_read_b64_tr_b16 {vr(b,2)}, v10 offset:{ks*1024}")
        a(f"ds_read_b64_tr_b16 {vr(b+2,2)}, v10 offset:{ks*1024+256}")
        a(f"ds_read_b128 {vr(b+4,4)}, v{24+(ks&3)} offset:{(ks>>2)*1024}")
    def loop(swap):
        for ks in range(RING-1): rd(ks)
        for ks in range(28):
            if ks + RING - 1 < 28: rd(ks + RING - 1)
            out = min(RING - 1, 27 - ks) * 3
            a(f"s_waitcnt lgkmcnt({out})")
            b = 32 + 8*(ks % RING)
            W, X = vr(b,4), vr(b+4,4)
            C = "0" if ks == 0 else vr(64,16)
            a(mfma32(vr(64,16), X, W, C) if swap else mfma32(vr(64,16), W, X, C))
            for i in range(4): a(f"v_dot2c_f32_bf16 v{28+(i&1)}, s48, v{b+i}")
    loop(False)
    stamp(a, 5)
    a("s_nop 2")
    a("v_add_f32 v28, v28, v29")
    half_sum(a, 28, 29)
    a("s_lshl_b32 s46, s3, 7")
    a(f"s_add_u32 s46, s46, {K1_CS}")
    a("v_lshl_add_u32 v16, v13, 2, s46")
    a("ds_write_b32 v16, v28")
    a("v_lshl_add_u32 v16, v2, 4, s46")
    a("s_waitcnt lgkmcnt(0)")
    for i in range(4): a(f"ds_read_b128 {vr(32+4*i,4)}, v16 offset:{32*i}")
    a("s_barrier")
    a("s_lshl_b32 s46, s44, 7")
    a(f"s_add_u32 s46, s46, {K1_ST}")
    a("v_lshl_add_u32 v16, v13, 2, s46")
    a("ds_read_b32 v20, v16")
    a("ds_read_b32 v21, v16 offset:256")
    a("s_cmp_eq_u32 s47, 0")
    a(f"s_cselect_b32 s49, {hexf(QSCALE)}, 1.0")
    a("s_cselect_b32 s50, 0, 0x3f80")
    a("s_waitcnt lgkmcnt(0)")
    a("v_mul_f32 v20, s49, v20")
    a("v_mul_f32 v21, s49, v21")
    for i in range(16):
        a(f"v_mul_f32 v{64+i}, v{64+i}, v20")
        a(f"v_fmac_f32 v{64+i}, v{32+i}, v21")
    for i in range(8): a(f"v_cvt_pk_bf16_f32 v{48+i}, v{64+2*i}, v{65+2*i}")
    a("v_cmp_ne_u32 s[52:53], 0, v2")
    a("s_nop 1")
    a("v_cndmask_b32 v54, v54, 0, s[52:53]")
    a("v_cndmask_b32 v55, v55, 0, s[52:53]")
    a("s_cmp_eq_u32 s47, 0")
    a("s_cbranch_scc0 K1_epk")
    a("v_lshrrev_b32 v16, 3, v13")
    a("v_lshlrev_b32 v16, 13, v16")
    a("v_lshl_add_u32 v16, v2, 9, v16")
    a("v_and_b32 v17, 7, v13")
    a("v_lshl_add_u32 v16, v17, 4, v16")
    a("s_lshl_b32 s46, s4, 3")
    a("s_lshl_b32 s49, s44, 2")
    a("s_add_u32 s46, s46, s49")
    a("s_lshl_b32 s46, s46, 13")
    a("s_lshr_b32 s49, s42, 2")
    a("s_lshl_b32 s49, s49, 11")
    a("s_add_u32 s46, s46, s49")
    a("s_and_b32 s49, s42, 3")
    a("s_lshl_b32 s49, s49, 7")
    a("s_add_u32 s46, s46, s49")
    if QF: a(f"s_add_u32 s46, s46, {QF}")
    a("buffer_store_dwordx4 v[48:51], v16, s[16:19], s46 offen")
    a("buffer_store_dwordx4 v[52:55], v16, s[16:19], s46 offen offset:1024")
    fin(a, 0, 38)
    a.label("K1_epk")
    a("v_mov_b32 v20, 0")
    for i in range(8): a(f"v_dot2c_f32_bf16 v20, v{48+i}, v{48+i}")
    a("v_mov_b32 v22, s50")
    a("v_cndmask_b32 v54, v54, v22, s[52:53]")
    a("s_nop 1")
    half_sum(a, 20, 21)
    a("s_nop 1")
    for m in ("quad_perm:[1,0,3,2]", "quad_perm:[2,3,0,1]", "row_half_mirror", "row_mirror"):
        a(f"v_max_f32_dpp v20, v20, v20 {m} row_mask:0xf bank_mask:0xf")
        a("s_nop 1")
    a("v_mov_b32 v21, v20")
    a("s_nop 1")
    a("v_permlane16_swap_b32 v21, v20")
    a("s_nop 1")
    a("v_max_f32 v20, v20, v21")
    a("s_lshl_b32 s46, s4, 1")
    a("s_add_u32 s46, s46, s44")
    a("s_lshl_b32 s49, s46, 2")
    a(f"s_add_u32 s49, s49, {KMAX}")
    a("s_lshl_b32 s46, s46, 12")
    a(f"s_add_u32 s46, s46, {KV}")
    a("v_lshlrev_b32 v16, 4, v0")
    a("v_mov_b32 v17, 0")
    a("buffer_store_dwordx4 v[48:51], v16, s[16:19], s46 offen")
    a("buffer_store_dwordx4 v[52:55], v16, s[16:19], s46 offen offset:1024")
    a("s_mov_b64 exec, 1")
    a("buffer_store_dword v20, v17, s[16:19], s49 offen")
    fin(a, 0, 38)
    a.label("K1_projv")
    loop(True)
    stamp(a, 5)
    a("s_nop 2")
    a("v_add_f32 v28, v28, v29")
    half_sum(a, 28, 29)
    a("s_barrier")
    a("s_lshl_b32 s46, s44, 7")
    a(f"s_add_u32 s46, s46, {K1_ST}")
    a("v_lshl_add_u32 v16, v2, 4, s46")
    for i in range(4): a(f"ds_read_b128 {vr(32+4*i,4)}, v16 offset:{32*i}")
    for i in range(4): a(f"ds_read_b128 {vr(48+4*i,4)}, v16 offset:{256+32*i}")
    a("s_waitcnt lgkmcnt(0)")
    for i in range(16):
        a(f"v_mul_f32 v{64+i}, v{64+i}, v{32+i}")
        a(f"v_fmac_f32 v{64+i}, v{48+i}, v28")
    for i in range(8): a(f"v_cvt_pk_bf16_f32 v{48+i}, v{64+2*i}, v{65+2*i}")
    a("v_cmp_eq_u32 s[52:53], 28, v13")
    a(f"v_mov_b32 v21, {ONES_BF}")
    a("s_nop 0")
    a("v_cndmask_b32 v21, 0, v21, s[52:53]")
    a("v_cmp_lt_u32 s[52:53], 27, v13")
    a("s_nop 1")
    for i in range(8): a(f"v_cndmask_b32 v{48+i}, v{48+i}, v21, s[52:53]")
    a("s_lshl_b32 s46, s4, 1")
    a("s_add_u32 s46, s46, s44")
    a("s_lshl_b32 s46, s46, 12")
    a(f"s_add_u32 s46, s46, {KV}")
    a("v_lshlrev_b32 v16, 4, v0")
    a("buffer_store_dwordx4 v[48:51], v16, s[16:19], s46 offen offset:2048")
    a("buffer_store_dwordx4 v[52:55], v16, s[16:19], s46 offen offset:3072")
    fin(a, 0, 38)

    a.label("K1_prep")
    a("s_lshl_b32 s40, s4, 2")
    a("s_add_u32 s40, s40, s5")
    a("s_sub_u32 s40, s40, 4")
    a("s_cmp_ge_u32 s40, 126")
    a("s_cbranch_scc1 K1_end")
    a("v_lshlrev_b32 v10, 2, v2")
    a("v_add_u32 v10, v10, v4")
    a("v_lshlrev_b32 v10, 6, v10")
    a("v_lshl_add_u32 v10, v3, 5, v10")
    a("v_lshl_add_u32 v10, v5, 3, v10")
    a("s_mov_b32 s50, 512")
    a("s_mov_b32 s51, 1024")
    a("s_mov_b32 s52, 2048")
    a("s_mov_b32 s53, 1024")
    a("s_cmp_ge_u32 s40, 56")
    a("s_cbranch_scc1 K1_prep2")
    srd(a, 12, 34, 35, W1_BYTES)
    a("s_mov_b32 s41, 3584")
    a("s_lshl_b32 s43, s40, 6")
    a("s_mul_i32 s46, s40, 28672")
    a(f"s_add_u32 s46, s46, {W1F}")
    a("s_branch K1_prep4")
    a.label("K1_prep2")
    a("s_cmp_ge_u32 s40, 112")
    a("s_cbranch_scc1 K1_prep3")
    srd(a, 12, 36, 37, W2_BYTES)
    a("s_mov_b32 s41, 896")
    a("s_sub_u32 s40, s40, 56")
    a("s_lshr_b32 s6, s40, 2")
    a("s_and_b32 s7, s40, 3")
    a("s_mul_i32 s43, s7, 448*896")
    a("s_lshl_b32 s44, s6, 6")
    a("s_add_u32 s43, s43, s44")
    a("s_mul_i32 s46, s40, 28672")
    a(f"s_add_u32 s46, s46, {W2F}")
    a("s_branch K1_prep4")
    a.label("K1_prep3")
    srd(a, 12, 32, 33, WQ_BYTES)
    a("s_mov_b32 s41, 896")
    a("s_sub_u32 s40, s40, 112")
    a("s_lshl_b32 s43, s40, 6")
    a("s_mul_i32 s46, s40, 28672")
    a(f"s_add_u32 s46, s46, {WOF}")
    a("v_lshrrev_b32 v10, 4, v0")
    a("v_lshlrev_b32 v10, 3, v10")
    a("v_add_u32 v10, v10, v4")
    a("v_lshlrev_b32 v10, 6, v10")
    a("v_lshl_add_u32 v10, v5, 3, v10")
    a("s_mov_b32 s50, 256")
    a("s_mov_b32 s51, 32")
    a("s_mov_b32 s52, 1024")
    a("s_mov_b32 s53, 14336")
    a.label("K1_prep4")
    a("v_mul_lo_u32 v9, v6, s41")
    a("v_add_u32 v9, v9, v7")
    a("s_lshl_b32 s41, s41, 4")
    a(f"s_mov_b32 s45, {K1_W4}")
    for j in range(28):
        a("s_mov_b32 m0, s45")
        a("s_add_u32 s45, s45, 1024")
        a("buffer_load_dwordx4 v9, s[12:15], s43 offen lds")
        a("s_add_u32 s43, s43, s41")
    a(f"v_add_u32 v10, {K1_W4}, v10")
    a("v_add_u32 v11, s50, v10")
    a("v_add_u32 v12, s51, v10")
    a("v_add_u32 v13, s51, v11")
    a("v_lshlrev_b32 v16, 4, v0")
    a("s_add_u32 s47, s46, s53")
    stamp(a, 1)
    a("s_waitcnt vmcnt(0)")
    stamp(a, 2)
    a("s_barrier")
    stamp(a, 3)
    def prd(p):
        b = 32 + 8*(p % 4)
        a(f"ds_read_b64_tr_b16 {vr(b,2)}, v10 offset:{p*2048}")
        a(f"ds_read_b64_tr_b16 {vr(b+2,2)}, v11 offset:{p*2048}")
        a(f"ds_read_b64_tr_b16 {vr(b+4,2)}, v12 offset:{p*2048}")
        a(f"ds_read_b64_tr_b16 {vr(b+6,2)}, v13 offset:{p*2048}")
    prd(0); prd(1)
    for p in range(14):
        if p + 2 < 14: prd(p + 2)
        a(f"s_waitcnt lgkmcnt({4*min(2, 13-p)})")
        b = 32 + 8*(p % 4)
        a(f"buffer_store_dwordx4 {vr(b,4)}, v16, s[16:19], s46 offen")
        a(f"buffer_store_dwordx4 {vr(b+4,4)}, v16, s[16:19], s47 offen")
        a("s_add_u32 s46, s46, s52")
        a("s_add_u32 s47, s47, s52")
    a("s_barrier")
    fin(a, 0, 38)
    a.label("K1_end")
    a("s_endpgm")
    return kd(n, 96, 64, 96), f"; @launch kernel={n} grid=(256,1,1) block=(320,1,1) lds={K1_LDS}"

K2_RED, K2_OB, K2_ST, K2_MX = 0, 49152, 57344, 57856
K2_LDS = 90112
OB_STRIDE = 912
SHIFT_LIMIT = 40.0

def gen_k2(a, force_slow=False):
    n = "k2_kernel"
    header(a, n)
    XR, Q, KVR, S, P = 16, 32, 64, 96, 128
    a("s_cmp_ge_u32 s2, 256")
    a("s_cbranch_scc1 K2_end")
    stamp_init(a)
    a("s_load_dwordx2 s[24:25], s[0:1], 0")
    a("s_load_dwordx2 s[26:27], s[0:1], 88")
    a("v_lshrrev_b32 v1, 6, v0")
    a("v_and_b32 v0, 63, v0")
    a("v_readfirstlane_b32 s3, v1")
    a("s_and_b32 s4, s2, 7")
    a("s_lshl_b32 s4, s4, 5")
    a("s_lshr_b32 s5, s2, 3")
    a("s_add_u32 s4, s4, s5")
    a("v_lshlrev_b32 v1, 4, v0")
    a("v_lshrrev_b32 v2, 5, v0")
    a("v_lshlrev_b32 v3, 2, v0")
    for i in range(8): a(f"v_mov_b32 v{KVR+16+8+i}, 0")
    for i in range(8): a(f"v_mov_b32 v{P+8+i}, 0")
    a("s_lshl_b32 s30, s3, 16")
    a(f"s_add_u32 s30, s30, {KV}")
    a("s_and_b32 s31, s5, 15")
    a("s_lshl_b32 s31, s31, 12")
    a("s_add_u32 s32, s30, s31")
    a("s_add_u32 s31, s31, 4096")
    a("s_and_b32 s31, s31, 0xffff")
    a("s_add_u32 s33, s30, s31")
    a("s_lshl_b32 s34, s4, 13")
    if QF: a(f"s_add_u32 s34, s34, {QF}")
    a(f"s_mov_b32 s35, {KMAX}")
    a("s_waitcnt lgkmcnt(0)")
    srd(a, 8, 26, 27, WS_SIZE)
    srd(a, 12, 24, 25, X_BYTES)
    a("buffer_load_dword v4, v3, s[8:11], s35 offen")
    for t in range(4):
        a(f"s_add_u32 s36, s3, {t}")
        a("s_and_b32 s36, s36, 3")
        a("s_lshl_b32 s36, s36, 11")
        a("s_add_u32 s36, s36, s34")
        a(f"buffer_load_dwordx4 {vr(Q+8*t,4)}, v1, s[8:11], s36 offen")
        a(f"buffer_load_dwordx4 {vr(Q+8*t+4,4)}, v1, s[8:11], s36 offen offset:1024")
    for i in range(4): a(f"buffer_load_dwordx4 {vr(KVR+4*i,4)}, v1, s[8:11], s32 offen offset:{1024*i}")
    for i in range(2): a(f"buffer_load_dwordx4 {vr(KVR+16+4*i,4)}, v1, s[8:11], s33 offen offset:{1024*i}")
    a("v_and_b32 v5, 7, v0")
    a("v_lshrrev_b32 v6, 4, v0")
    a("v_mul_u32_u24 v7, 896, v5")
    a("v_lshl_add_u32 v7, v6, 3, v7")
    a("s_mul_i32 s36, s4, 8*896")
    a("s_mul_i32 s37, s3, 224")
    a("s_add_u32 s36, s36, s37")
    for i in range(7): a(f"buffer_load_dwordx2 {vr(XR+2*i,2)}, v7, s[12:15], s36 offen offset:{32*i}")
    for i in range(64): a(f"v_accvgpr_write_b32 a{i}, 0")
    stamp(a, 1)
    a("s_waitcnt vmcnt(21)")
    stamp(a, 2)
    for m in ("quad_perm:[1,0,3,2]", "quad_perm:[2,3,0,1]", "row_half_mirror", "row_mirror"):
        a(f"v_max_f32_dpp v4, v4, v4 {m} row_mask:0xf bank_mask:0xf")
        a("s_nop 1")
    a("v_mov_b32 v8, v4")
    a("s_nop 1")
    a("v_permlane16_swap_b32 v8, v4")
    a("s_nop 1")
    a("v_max_f32 v4, v4, v8")
    half_sum(a, 4, 8, "v_max_f32")
    a(f"v_mul_f32 v4, {hexf(1.02)}, v4")
    a("v_cmp_ne_u32 s[40:41], 0, v2")
    for t in range(4): a(f"v_mov_b32 v{8+t}, 0")
    for t in range(4):
        a(f"s_waitcnt vmcnt({19-2*t})")
        for i in range(8): a(f"v_dot2c_f32_bf16 v{8+t}, v{Q+8*t+i}, v{Q+8*t+i}")
    a("s_nop 2")
    for t in range(4): half_sum(a, 8+t, 12)
    for t in range(4): a(f"v_mul_f32 v{8+t}, v{8+t}, v4")
    for t in range(4): a(f"v_sqrt_f32 v{8+t}, v{8+t}")
    a("s_nop 0")
    a("v_max3_f32 v12, v8, v9, v10")
    a("v_max_f32 v12, v12, v11")
    lim = -1.0 if force_slow else SHIFT_LIMIT
    a(f"v_cmp_nge_f32 vcc, {hexf(lim)}, v12")
    a("s_cbranch_vccnz K2_slow")
    for t in range(4): a(f"v_cvt_pk_bf16_f32 v{8+t}, -v{8+t}, 0")
    for t in range(4): a(f"v_cndmask_b32 v{Q+8*t+6}, v{Q+8*t+6}, v{8+t}, s[40:41]")
    a("s_waitcnt vmcnt(11)")
    a("s_mov_b32 s38, 0")
    a(mfma32(vr(S,16), vr(KVR,4), vr(Q,4), "0"))
    a(mfma32(vr(S,16), vr(KVR+4,4), vr(Q+4,4), vr(S,16)))
    a("s_nop 7")
    a("s_nop 3")
    stamp(a, 3)
    a.label("K2_loop")
    for u in range(8):
        i, t = u >> 2, u & 3
        sb, pb = S + 16*(u & 1), P + 8*(u & 1)
        sn, pp = S + 16*((u+1) & 1), P + 8*((u-1) & 1)
        un, up = (u + 1) & 7, (u - 1) & 7
        kslot = KVR + 16*(un >> 2); qn = Q + 8*(un & 3)
        vslot = KVR + 16*(up >> 2) + 8; oa = ar(16*(up & 3), 16)
        M = [mfma32(vr(sn,16), vr(kslot,4), vr(qn,4), "0"),
             mfma32(vr(sn,16), vr(kslot+4,4), vr(qn+4,4), vr(sn,16)),
             mfma32(oa, vr(vslot,4), vr(pp,4), oa),
             mfma32(oa, vr(vslot+4,4), vr(pp+4,4), oa)]
        free = [[], [], [], []]
        cur = 32 + i
        if t == 3:
            free[0] = [f"buffer_load_dwordx4 {vr(KVR+16*i,4)}, v1, s[8:11], s{cur} offen"]
            free[1] = [f"buffer_load_dwordx4 {vr(KVR+16*i+4,4)}, v1, s[8:11], s{cur} offen offset:1024"]
        if t == 1:
            j = i ^ 1
            free[1] = ["s_waitcnt vmcnt(2)"]
            free[2] = [f"buffer_load_dwordx4 {vr(KVR+16*j+8,4)}, v1, s[8:11], s{32+j} offen offset:2048"]
            free[3] = [f"buffer_load_dwordx4 {vr(KVR+16*j+12,4)}, v1, s[8:11], s{32+j} offen offset:3072"]
        if t == 2:
            free[0] = ["s_add_u32 s31, s31, 4096"]
            free[1] = ["s_and_b32 s31, s31, 0xffff"]
            free[2] = [f"s_add_u32 s{cur}, s30, s31"]
            free[3] = ["s_waitcnt vmcnt(2)"]
        if u == 7:
            free[2] = ["s_add_u32 s38, s38, 1"]
            free[3] = ["s_cmp_lt_u32 s38, 8"]
        e = lambda k: f"v_exp_f32 v{sb+k}, v{sb+k}"
        c = lambda k: f"v_cvt_pk_bf16_f32 v{pb+k}, v{sb+2*k}, v{sb+2*k+1}"
        seq = [M[0], *free[0], e(0), e(1), e(2), e(3), c(0),
               M[1], *free[1], e(4), c(1), e(5), e(6), e(7), c(2),
               M[2], *free[2], e(8), c(3), e(9), e(10), e(11), c(4),
               M[3], *free[3], e(12), c(5), e(13), e(14), e(15), c(6), c(7)]
        for x in seq: a(x)
    a("s_cbranch_scc1 K2_loop")
    a("s_nop 1")
    a(mfma32(ar(48,16), vr(KVR+24,4), vr(P+8,4), ar(48,16)))
    a(mfma32(ar(48,16), vr(KVR+28,4), vr(P+12,4), ar(48,16)))
    a.label("K2_epi")
    stamp(a, 4)
    a("s_waitcnt vmcnt(0)")
    a("s_mul_i32 s36, s3, 7*14*1024")
    a(f"s_add_u32 s36, s36, {WOF}")
    def woreg(ks, tile):
        f = (ks % 7)*7 + tile
        return ar(64+4*f, 4) if f < 48 else vr(144, 4)
    def woload(ks):
        for tile in range(7):
            a(f"s_add_u32 s37, s36, {(tile*14+ks)*1024}")
            a(f"buffer_load_dwordx4 {woreg(ks,tile)}, v1, s[8:11], s37 offen")
    for ks in range(7): woload(ks)
    for tp in range(1, 4):
        a(f"s_add_u32 s37, s3, {tp}")
        a("s_and_b32 s37, s37, 3")
        a("s_mul_i32 s37, s37, 12288")
        a(f"s_add_u32 s37, s37, {K2_RED + (tp-1)*4096}")
        a("v_add_u32 v8, s37, v1")
        for q in range(4): a(f"ds_write_b128 v8, {ar(16*tp+4*q,4)} offset:{1024*q}")
    a("s_mul_i32 s37, s3, 12288")
    a("v_add_u32 v8, s37, v1")
    for i in range(16): a(f"v_accvgpr_read_b32 v{32+i}, a{i}")
    a("s_waitcnt lgkmcnt(0)")
    a("s_barrier")
    for j in range(12): a(f"ds_read_b128 {vr(48+4*j,4)}, v8 offset:{K2_RED+1024*j}")
    a("v_bfe_u32 v9, v0, 3, 2")
    a("s_lshl_b32 s37, s3, 2")
    a("v_add_u32 v9, s37, v9")
    a("v_mul_u32_u24 v9, 56, v9")
    a(f"v_mul_u32_u24 v10, {OB_STRIDE}, v5")
    a("v_add_u32 v9, v9, v10")
    a("v_lshl_add_u32 v9, v2, 3, v9")
    a(f"v_add_u32 v9, {K2_OB}, v9")
    a(f"v_mov_b32 v11, {K2_MX+1024}")
    a("v_add_u32 v12, 48, v9")
    a("v_cndmask_b32 v11, v12, v11, s[40:41]")
    for j in range(3):
        a(f"s_waitcnt lgkmcnt({8-4*j})")
        for i in range(16): a(f"v_add_f32 v{32+i}, v{32+i}, v{48+16*j+i}")
    a("v_mov_b32 v12, v44")
    a("v_mov_b32 v13, v44")
    a("s_nop 1")
    a("v_permlane32_swap_b32 v12, v13")
    a("s_nop 1")
    a("v_rcp_f32 v13, v13")
    a("s_nop 0")
    for i in range(16): a(f"v_mul_f32 v{32+i}, v{32+i}, v13")
    for i in range(8): a(f"v_cvt_pk_bf16_f32 v{48+i}, v{32+2*i}, v{33+2*i}")
    for i in range(3): a(f"ds_write_b64 v9, {vr(48+2*i,2)} offset:{16*i}")
    a("ds_write_b64 v11, v[54:55]")
    a(f"v_lshl_add_u32 v10, v6, 4, v10")
    a(f"v_add_u32 v10, {K2_OB}, v10")
    ACC = 96
    for i in range(14):
        a(f"v_lshlrev_b32 v{ACC+2*i}, 16, v{XR+i}")
        a(f"v_and_b32 v{ACC+2*i+1}, 0xffff0000, v{XR+i}")
    a("s_waitcnt lgkmcnt(0)")
    a("s_barrier")
    stamp(a, 5)
    for ks in range(14): a(f"ds_read_b128 {ar(4*ks,4)}, v10 offset:{64*ks}")
    a("s_waitcnt lgkmcnt(0)")
    for ks in range(14):
        a(f"s_waitcnt vmcnt({42 if ks < 7 else 7*(13-ks)})")
        for tile in range(7):
            a(mfma16(vr(ACC+4*tile,4), woreg(ks,tile), ar(4*ks,4), vr(ACC+4*tile,4)))
        if ks < 7: woload(ks + 7)
    stamp(a, 6)
    a("s_nop 7")
    H = 32
    for i in range(14): a(f"v_cvt_pk_bf16_f32 v{H+i}, v{ACC+2*i}, v{ACC+2*i+1}")
    a(f"s_mov_b32 s42, {ONES_BF}")
    a("v_mov_b32 v12, 0")
    a("v_mov_b32 v13, 0")
    for i in range(14):
        a(f"v_dot2c_f32_bf16 v12, s42, v{H+i}")
        a(f"v_dot2c_f32_bf16 v13, v{H+i}, v{H+i}")
    a("s_nop 2")
    for r in (12, 13):
        a(f"v_mov_b32 v14, v{r}")
        a("s_nop 1")
        a(f"v_permlane16_swap_b32 v14, v{r}")
        a("s_nop 1")
        a(f"v_add_f32 v{r}, v{r}, v14")
        half_sum(a, r, 14)
    a("v_and_b32 v14, 15, v0")
    a("v_lshlrev_b32 v14, 3, v14")
    a(f"v_add_u32 v14, {K2_ST}, v14")
    a("s_lshl_b32 s37, s3, 7")
    a("v_add_u32 v15, s37, v14")
    a("ds_write_b64 v15, v[12:13]")
    a("s_and_b32 s37, s4, 3")
    a("s_lshl_b32 s37, s37, 7")
    a("v_and_b32 v8, 1, v6")
    a("v_lshlrev_b32 v8, 9, v8")
    a("v_lshl_add_u32 v8, v5, 4, v8")
    a("v_lshl_add_u32 v8, v2, 3, v8")
    a("v_add_u32 v8, s37, v8")
    a("s_lshr_b32 s37, s4, 2")
    a("s_mul_i32 s37, s37, 28672")
    a("s_mul_i32 s43, s3, 7168")
    a("s_add_u32 s37, s37, s43")
    a(f"s_add_u32 s43, s37, {HD}")
    a(f"s_add_u32 s44, s37, {HD+4096}")
    a(f"s_add_u32 s45, s37, {HN}")
    a(f"s_add_u32 s46, s37, {HN+4096}")
    a("s_mov_b32 s48, 0x00ff00ff")
    a("s_mov_b32 s49, 0x00ff00ff")
    a("s_waitcnt lgkmcnt(0)")
    a("s_barrier")
    for w in range(4): a(f"ds_read_b64 {vr(48+2*w,2)}, v14 offset:{128*w}")
    a("s_mov_b64 exec, s[48:49]")
    for i in range(7):
        a(f"buffer_store_dwordx2 {vr(H+2*i,2)}, v8, s[8:11], s{43+(i>>2)} offen offset:{1024*(i&3)}")
    a("s_waitcnt lgkmcnt(0)")
    a("v_add_f32 v48, v48, v50")
    a("v_add_f32 v49, v49, v51")
    a("v_add_f32 v52, v52, v54")
    a("v_add_f32 v53, v53, v55")
    a("v_add_f32 v48, v48, v52")
    a("v_add_f32 v49, v49, v53")
    a(f"v_mul_f32 v48, {hexf(1.0/448)}, v48")
    a(f"v_mul_f32 v49, {hexf(1.0/448)}, v49")
    a("v_fma_f32 v49, -v48, v48, v49")
    a("v_max_f32 v49, 0, v49")
    a(f"v_add_f32 v49, {hexf(1e-5)}, v49")
    a("v_rsq_f32 v49, v49")
    a("s_nop 0")
    a("v_mul_f32 v48, -v48, v49")
    for i in range(14):
        a(f"v_lshlrev_b32 v{ACC+2*i}, 16, v{H+i}")
        a(f"v_and_b32 v{ACC+2*i+1}, 0xffff0000, v{H+i}")
    for i in range(28): a(f"v_fma_f32 v{ACC+i}, v{ACC+i}, v49, v48")
    for i in range(14): a(f"v_cvt_pk_bf16_f32 v{64+i}, v{ACC+2*i}, v{ACC+2*i+1}")
    for i in range(7):
        a(f"buffer_store_dwordx2 {vr(64+2*i,2)}, v8, s[8:11], s{45+(i>>2)} offen offset:{1024*(i&3)}")
    fin(a, 1, 26)
    a.label("K2_end")
    a("s_endpgm")

    a.label("K2_slow")
    MX = 8
    for t in range(4): a(f"v_mov_b32 v{MX+t}, 0xff800000")
    a("s_mov_b32 s38, 0")
    a("s_waitcnt vmcnt(0)")
    a.label("K2_s1")
    a("s_add_u32 s32, s30, s38")
    for i in range(2): a(f"buffer_load_dwordx4 {vr(KVR+4*i,4)}, v1, s[8:11], s32 offen offset:{1024*i}")
    a("s_waitcnt vmcnt(0)")
    for t in range(4):
        a(mfma32(vr(S,16), vr(KVR,4), vr(Q+8*t,4), "0"))
        a(mfma32(vr(S,16), vr(KVR+4,4), vr(Q+8*t+4,4), vr(S,16)))
        a("s_nop 7")
        a("s_nop 3")
        for i in range(8): a(f"v_max3_f32 v{MX+t}, v{S+2*i}, v{S+2*i+1}, v{MX+t}")
    a("s_add_u32 s38, s38, 4096")
    a("s_cmp_lt_u32 s38, 0x10000")
    a("s_cbranch_scc1 K2_s1")
    for t in range(4):
        half_sum(a, MX+t, 12, "v_max_f32")
        a(f"s_add_u32 s37, s3, {t}")
        a("s_and_b32 s37, s37, 3")
        a("s_lshl_b32 s37, s37, 10")
        a("s_lshl_b32 s36, s3, 8")
        a("s_add_u32 s37, s37, s36")
        a("v_add_u32 v12, s37, v3")
        a(f"ds_write_b32 v12, v{MX+t}")
    a("s_waitcnt lgkmcnt(0)")
    a("s_barrier")
    for t in range(4):
        a(f"s_add_u32 s37, s3, {t}")
        a("s_and_b32 s37, s37, 3")
        a("s_lshl_b32 s37, s37, 10")
        a("v_add_u32 v12, s37, v3")
        for w in range(4): a(f"ds_read_b32 v{S+w}, v12 offset:{256*w}")
        a("s_waitcnt lgkmcnt(0)")
        a(f"v_max3_f32 v{MX+t}, v{S}, v{S+1}, v{S+2}")
        a(f"v_max_f32 v{MX+t}, v{MX+t}, v{S+3}")
    a("s_barrier")
    a("s_mov_b32 s38, 0")
    a.label("K2_s2")
    a("s_add_u32 s32, s30, s38")
    for i in range(4): a(f"buffer_load_dwordx4 {vr(KVR+4*i,4)}, v1, s[8:11], s32 offen offset:{1024*i}")
    a("s_waitcnt vmcnt(0)")
    for t in range(4):
        a(mfma32(vr(S,16), vr(KVR,4), vr(Q+8*t,4), "0"))
        a(mfma32(vr(S,16), vr(KVR+4,4), vr(Q+8*t+4,4), vr(S,16)))
        a("s_nop 7")
        a("s_nop 3")
        for i in range(16): a(f"v_sub_f32 v{S+i}, v{S+i}, v{MX+t}")
        for i in range(16): a(f"v_exp_f32 v{S+i}, v{S+i}")
        a("s_nop 0")
        for i in range(8): a(f"v_cvt_pk_bf16_f32 v{P+i}, v{S+2*i}, v{S+2*i+1}")
        a("s_nop 1")
        a(mfma32(ar(16*t,16), vr(KVR+8,4), vr(P,4), ar(16*t,16)))
        a(mfma32(ar(16*t,16), vr(KVR+12,4), vr(P+4,4), ar(16*t,16)))
    a("s_add_u32 s38, s38, 4096")
    a("s_cmp_lt_u32 s38, 0x10000")
    a("s_cbranch_scc1 K2_s2")
    a("s_branch K2_epi")
    return kd(n, 512, 64, 256), f"; @launch kernel={n} grid=(256,1,1) block=(256,1,1) lds={K2_LDS}"

K3_ACT = 57344
K3_LDS = 57344 + 28672

def mish(a, x0, n, t0):
    for i in range(n): a(f"v_mul_f32 v{t0+i}, s40, v{x0+i}")
    for i in range(n): a(f"v_exp_f32 v{t0+i}, v{t0+i}")
    for i in range(n):
        a(f"v_add_f32 v{t0+n+(i&1)}, 2.0, v{t0+i}")
        a(f"v_fma_f32 v{t0+i}, v{t0+i}, v{t0+n+(i&1)}, 2.0")
    for i in range(n): a(f"v_rcp_f32 v{t0+i}, v{t0+i}")
    for i in range(n):
        a(f"v_mul_f32 v{t0+i}, v{t0+i}, v{x0+i}")
        a(f"v_fma_f32 v{x0+i}, v{t0+i}, -2.0, v{x0+i}")

def gen_k3(a):
    n = "k3_kernel"
    header(a, n)
    W, BR, ACC, BIAS = 16, 128, 160, 224
    a("s_cmp_ge_u32 s2, 256")
    a("s_cbranch_scc1 K3_end")
    stamp_init(a)
    a("s_load_dwordx2 s[24:25], s[0:1], 56")
    a("s_load_dwordx2 s[26:27], s[0:1], 88")
    a("v_lshrrev_b32 v1, 6, v0")
    a("v_and_b32 v0, 63, v0")
    a("v_readfirstlane_b32 s3, v1")
    a("s_and_b32 s4, s2, 7")
    a("s_lshl_b32 s4, s4, 2")
    a("s_bfe_u32 s6, s2, 0x20003")
    a("s_add_u32 s4, s4, s6")
    a("s_lshr_b32 s5, s2, 5")
    a("v_lshlrev_b32 v1, 4, v0")
    a("v_lshrrev_b32 v2, 5, v0")
    a("s_mul_i32 s30, s4, 57344")
    a("s_lshl_b32 s31, s3, 13")
    a("s_add_u32 s30, s30, s31")
    a(f"s_add_u32 s30, s30, {HN}")
    a("s_mul_i32 s32, s5, 7")
    a("s_add_u32 s32, s32, s3")
    a("s_lshl_b32 s33, s32, 6")
    a("s_mul_i32 s32, s32, 28672")
    a(f"s_add_u32 s32, s32, {W1F}")
    a("s_mul_i32 s34, s3, 2*112*1024")
    a("s_mul_i32 s35, s5, 14*1024")
    a("s_add_u32 s34, s34, s35")
    a(f"s_add_u32 s34, s34, {W2F}")
    a(f"s_mov_b32 s40, {hexf(LOG2E)}")
    a("v_lshlrev_b32 v3, 3, v2")
    a("s_waitcnt lgkmcnt(0)")
    srd(a, 8, 26, 27, WS_SIZE)
    srd(a, 12, 24, 25, 3584)
    for j in range(2):
        a("s_mov_b32 m0, s31")
        a("s_add_u32 s31, s31, 4096")
        for i in range(4): a(f"buffer_load_dwordx4 v1, s[8:11], s30 offen offset:{1024*i} lds")
        a("s_add_u32 s30, s30, 4096")
    for i in range(4): a(f"buffer_load_dwordx2 {vr(4+2*i,2)}, v3, s[12:15], s33 offen offset:{16*i}")
    for ks in range(28):
        a(f"buffer_load_dwordx4 {vr(W+4*ks,4)}, v1, s[8:11], s32 offen offset:{1024*(ks&3)}")
        if ks & 3 == 3: a("s_add_u32 s32, s32, 4096")
    stamp(a, 1)
    a("s_waitcnt vmcnt(28)")
    stamp(a, 2)
    for i in range(8):
        a(f"v_lshlrev_b32 v{BIAS+2*i}, 16, v{4+i}")
        a(f"v_and_b32 v{BIAS+2*i+1}, 0xffff0000, v{4+i}")
    a("s_barrier")
    RING = 4
    def rdA(ks):
        b = BR + 8*(ks % RING)
        a(f"ds_read_b128 {vr(b,4)}, v1 offset:{ks*1024}")
        a(f"ds_read_b128 {vr(b+4,4)}, v1 offset:{28672+ks*1024}")
    def w2load(f):
        nt, ks = f & 1, f >> 1
        a(f"s_add_u32 s36, s34, {(nt*112+ks)*1024}")
        a(f"buffer_load_dwordx4 {vr(W+4*f,4)}, v1, s[8:11], s36 offen")
    for ks in range(RING-1): rdA(ks)
    for ks in range(28):
        if ks + RING - 1 < 28: rdA(ks + RING - 1)
        a(f"s_waitcnt vmcnt(27) lgkmcnt({2*min(RING-1, 27-ks)})")
        b = BR + 8*(ks % RING)
        for tt in range(2):
            C = vr(BIAS,16) if ks == 0 else vr(ACC+16*tt,16)
            a(mfma32(vr(ACC+16*tt,16), vr(W+4*ks,4), vr(b+4*tt,4), C))
        w2load(ks)
    a("s_nop 7")
    a("s_nop 3")
    stamp(a, 3)
    a("s_lshl_b32 s36, s3, 11")
    a(f"s_add_u32 s36, s36, {K3_ACT}")
    a("v_add_u32 v4, s36, v1")
    a(f"v_add_u32 v5, {K3_ACT}, v1")
    for tt in range(2):
        mish(a, ACC+16*tt, 16, 192)
        for i in range(8): a(f"v_cvt_pk_bf16_f32 v{BR+8*tt+i}, v{ACC+16*tt+2*i}, v{ACC+16*tt+2*i+1}")
        a(f"ds_write_b128 v4, {vr(BR+8*tt,4)} offset:{14336*tt}")
        a(f"ds_write_b128 v4, {vr(BR+8*tt+4,4)} offset:{14336*tt+1024}")
    a("s_waitcnt lgkmcnt(0)")
    a("s_barrier")
    stamp(a, 4)
    def rdB(ks):
        b = BR + 8*(ks % RING)
        a(f"ds_read_b128 {vr(b,4)}, v5 offset:{ks*1024}")
        a(f"ds_read_b128 {vr(b+4,4)}, v5 offset:{14336+ks*1024}")
    for ks in range(RING-1): rdB(ks)
    for ks in range(14):
        if ks + RING - 1 < 14: rdB(ks + RING - 1)
        a(f"s_waitcnt vmcnt({26-2*ks}) lgkmcnt({2*min(RING-1, 13-ks)})")
        b = BR + 8*(ks % RING)
        for nt in range(2):
            for tt in range(2):
                d = vr(ACC+32*nt+16*tt,16)
                a(mfma32(d, vr(W+4*(2*ks+nt),4), vr(b+4*tt,4), "0" if ks == 0 else d))
    a("s_nop 7")
    a("s_nop 3")
    stamp(a, 5)
    a("s_mul_i32 s36, s4, 2*28*8192")
    a("s_lshl_b32 s37, s3, 15")
    a("s_add_u32 s36, s36, s37")
    a("s_lshl_b32 s37, s5, 10")
    a("s_add_u32 s36, s36, s37")
    a(f"s_add_u32 s36, s36, {PART}")
    for nt in range(2):
        for tt in range(2):
            d = ACC+32*nt+16*tt
            p = W + 16*nt + 8*tt
            for i in range(8): a(f"v_cvt_pk_bf16_f32 v{p+i}, v{d+2*i}, v{d+2*i+1}")
            for half in range(2):
                a(f"s_add_u32 s37, s36, {tt*28*8192 + (2*nt+half)*8192}")
                a(f"buffer_store_dwordx4 {vr(p+4*half,4)}, v1, s[8:11], s37 offen")
    fin(a, 2, 26)
    a.label("K3_end")
    a("s_endpgm")
    return kd(n, 256, 64, 256), f"; @launch kernel={n} grid=(256,1,1) block=(448,1,1) lds={K3_LDS}"

def gen_k4(a):
    n = "k4_kernel"
    header(a, n)
    a("s_cmp_ge_u32 s2, 256")
    a("s_cbranch_scc1 K4_end")
    stamp_init(a)
    a("s_load_dwordx2 s[24:25], s[0:1], 72")
    a("s_load_dwordx2 s[26:27], s[0:1], 88")
    a("v_lshrrev_b32 v1, 6, v0")
    a("v_and_b32 v0, 63, v0")
    a("v_readfirstlane_b32 s3, v1")
    a("s_and_b32 s4, s2, 7")
    a("s_lshl_b32 s4, s4, 3")
    a("s_lshr_b32 s5, s2, 5")
    a("s_add_u32 s4, s4, s5")
    a("s_bfe_u32 s5, s2, 0x20003")
    a("s_mul_i32 s5, s5, 7")
    a("s_add_u32 s5, s5, s3")
    a("s_mul_i32 s6, s4, 28")
    a("s_add_u32 s6, s6, s5")
    a("s_lshl_b32 s30, s6, 13")
    a(f"s_add_u32 s30, s30, {PART}")
    a("s_add_u32 s31, s30, 4096")
    a("s_lshl_b32 s32, s6, 10")
    a(f"s_add_u32 s32, s32, {HD}")
    a("v_lshlrev_b32 v1, 4, v0")
    a("s_mul_i32 s33, s4, 32*896")
    a("s_lshl_b32 s34, s5, 5")
    a("s_add_u32 s33, s33, s34")
    a("v_and_b32 v2, 31, v0")
    a("v_mul_u32_u24 v2, 896, v2")
    a("v_lshrrev_b32 v3, 5, v0")
    a("v_lshl_add_u32 v2, v3, 4, v2")
    a("s_mov_b32 s40, 0x00003f80")
    a("s_mov_b32 s41, 0x3f800000")
    a("s_waitcnt lgkmcnt(0)")
    srd(a, 8, 26, 27, WS_SIZE)
    srd(a, 12, 24, 25, X_BYTES)
    a("buffer_load_dwordx4 v[4:7], v1, s[8:11], s32 offen")
    for g in range(8): a(f"buffer_load_dwordx4 {vr(8+4*g,4)}, v1, s[8:11], s{30+(g>>2)} offen offset:{1024*(g&3)}")
    stamp(a, 1)
    a("s_waitcnt vmcnt(8)")
    stamp(a, 2)
    for i in range(4):
        a(f"v_lshlrev_b32 v{40+2*i}, 16, v{4+i}")
        a(f"v_and_b32 v{41+2*i}, 0xffff0000, v{4+i}")
    for g in range(8):
        a(f"s_waitcnt vmcnt({7-g})")
        for i in range(4):
            a(f"v_lshlrev_b32 v{48+2*i}, 16, v{8+4*g+i}")
            a(f"v_and_b32 v{49+2*i}, 0xffff0000, v{8+4*g+i}")
        for i in range(8): a(f"v_add_f32 v{40+i}, v{40+i}, v{48+i}")
    for i in range(4): a(f"v_cvt_pk_bf16_f32 v{4+i}, v{40+2*i}, v{41+2*i}")
    a("s_nop 1")
    a("v_permlane32_swap_b32 v4, v6")
    a("v_permlane32_swap_b32 v5, v7")
    a("s_nop 1")
    a("buffer_store_dwordx4 v[4:7], v2, s[12:15], s33 offen")
    fin(a, 3, 26)
    a.label("K4_end")
    a("s_endpgm")
    return kd(n, 64, 64, 64), f"; @launch kernel={n} grid=(256,1,1) block=(448,1,1) lds=0"

def build(force_slow=False, extra=0):
    a = Asm()
    parts = [gen_k1(a), gen_k2(a, force_slow), gen_k3(a), gen_k4(a)]
    launches = [p[1] for p in parts]
    kds = [p[0] for p in parts]
    if extra:
        header(a, "nop_kernel")
        a("s_endpgm")
        kds.append(kd("nop_kernel", 8, 16, 8))
        launches += ["; @launch kernel=nop_kernel grid=(256,1,1) block=(64,1,1) lds=0"] * extra
    out = "\n".join(launches) + "\n"
    out += '.amdgcn_target "amdgcn-amd-amdhsa--gfx950"\n.text\n'
    out += a.text()
    out += '.section .rodata,"a"\n' + "".join(kds)
    return out

if __name__ == "__main__":
    import argparse
    ap = argparse.ArgumentParser()
    ap.add_argument("-o", default=f"cdna_kernels/{NAME}.s")
    ap.add_argument("--slow", action="store_true")
    ap.add_argument("--extra", type=int, default=0)
    ap.add_argument("--stamps", action="store_true")
    args = ap.parse_args()
    STAMPS = args.stamps
    txt = build(args.slow, args.extra)
    open(args.o, "w").write(txt)
    import hazard
    print("hazards:", hazard.check(txt))
```

```python
import re, sys

TRANS = ("v_exp_", "v_log_", "v_rcp_", "v_rsq_", "v_sqrt_", "v_sin_", "v_cos_")

def regs_of(tok):
    tok = tok.strip()
    tok = re.sub(r"^-|^abs\(|\)$|^\|| \|$|\|$", "", tok)
    tok = tok.lstrip("-")
    m = re.fullmatch(r"([vas])(\d+)", tok)
    if m: return {(m.group(1), int(m.group(2)))}
    m = re.fullmatch(r"([vas])\[(\d+):(\d+)\]", tok)
    if m: return {(m.group(1), i) for i in range(int(m.group(2)), int(m.group(3)) + 1)}
    if tok == "vcc": return {("s", 106), ("s", 107)}
    if tok == "vcc_lo": return {("s", 106)}
    if tok == "vcc_hi": return {("s", 107)}
    if tok == "exec": return {("s", 126), ("s", 127)}
    if tok == "exec_lo": return {("s", 126)}
    if tok == "exec_hi": return {("s", 127)}
    if tok == "m0": return {("s", 124)}
    return set()

class I:
    pass

def parse(text):
    ins, labels = [], {}
    for ln, raw in enumerate(text.splitlines(), 1):
        s = raw.split(";")[0].split("//")[0].strip()
        if not s: continue
        m = re.match(r"^([A-Za-z_.$][\w.$]*):\s*(.*)$", s)
        if m:
            labels[m.group(1)] = len(ins)
            s = m.group(2).strip()
            if not s: continue
        if s.startswith("."):
            if s.startswith(".section"): break
            continue
        parts = s.split(None, 1)
        mn = parts[0]
        rest = parts[1] if len(parts) > 1 else ""
        ops = [o.strip() for o in re.split(r",(?![^\[]*\])", rest)] if rest else []
        mods = ""
        if ops:
            last = ops[-1].split(None, 1)
            if len(last) > 1:
                ops[-1], mods = last[0], last[1]
        i = I(); i.ln = ln; i.text = s; i.mn = mn; i.ops = ops; i.mods = mods
        i.mfma = mn.startswith("v_mfma")
        i.valu = mn.startswith("v_") and not i.mfma
        i.trans = mn.startswith(TRANS)
        i.dot = mn.startswith("v_dot")
        i.vmem = mn.startswith(("buffer_", "global_"))
        i.ds = mn.startswith("ds_")
        i.salu = mn.startswith("s_")
        i.dpp = "_dpp" in mn or "quad_perm" in mods or "row_" in mods
        i.perml = mn.startswith("v_permlane")
        i.rdlane = mn.startswith(("v_readfirstlane", "v_readlane"))
        R = [regs_of(o) for o in ops]
        w, r = set(), set()
        i.srcC = set(); i.srcAB = set()
        if i.mfma:
            w = R[0]; i.srcAB = R[1] | R[2]; i.srcC = R[3]; r = i.srcAB | i.srcC
            i.passes = 8 if "32x32x16" in mn else 4 if "16x16x32" in mn else None
            assert i.passes, mn
        elif i.valu:
            if i.perml:
                w = R[0] | R[1]; r = R[0] | R[1]
            elif mn.startswith(("v_add_co", "v_sub_co", "v_addc_co", "v_subb_co")):
                w = R[0] | R[1]; r = set().union(*R[2:])
            else:
                w = R[0]; r = set().union(*R[1:]) if len(R) > 1 else set()
                if mn.startswith(("v_fmac", "v_dot2c", "v_writelane")) or "UNUSED_PRESERVE" in mods or i.dpp:
                    r |= R[0]
            if mn.startswith("v_cmpx"): w |= regs_of("exec")
        elif i.vmem:
            lds = " lds" in (" " + mods)
            i.lds = lds
            if "load" in mn and not lds and not mn.startswith("global_load_lds"):
                w = R[0]; r = set().union(*R[1:])
            elif mn.startswith("global_load_lds"):
                r = set().union(*R); lds = True; i.lds = True
            elif "atomic" in mn and "sc0" in mods:
                w = R[0]; r = set().union(*R)
            else:
                r = set().union(*R) if R else set()
            if lds: r |= regs_of("m0")
            i.wide_store = ("store" in mn) and ("x3" in mn or "x4" in mn)
            i.sdata = (R[0] if mn.startswith("buffer_") else R[1]) if "store" in mn else set()
        elif i.ds:
            if mn.startswith(("ds_read", "ds_bpermute", "ds_permute", "ds_swizzle")):
                w = R[0]; r = set().union(*R[1:])
            else:
                r = set().union(*R)
        elif i.salu:
            if mn.startswith(("s_cmp", "s_cbranch", "s_branch", "s_waitcnt", "s_barrier", "s_nop", "s_endpgm", "s_setprio", "s_sleep", "s_setpc", "s_bitcmp")):
                r = set().union(*R) if R else set()
            else:
                w = R[0] if R else set(); r = set().union(*R[1:]) if len(R) > 1 else set()
                if "saveexec" in mn: w |= regs_of("exec")
        i.w, i.r = w, r
        i.states = int(ops[0], 0) + 1 if mn == "s_nop" else 1
        ins.append(i)
    calls = [k for k, i in enumerate(ins) if i.mn == "s_call_b64"]
    for k, i in enumerate(ins):
        if i.mn == "s_endpgm": i.succ = []
        elif i.mn == "s_branch": i.succ = [labels[i.ops[0]]]
        elif i.mn.startswith("s_cbranch"): i.succ = [labels[i.ops[0]], k + 1]
        elif i.mn == "s_call_b64": i.succ = [labels[i.ops[1]]]
        elif i.mn == "s_setpc_b64": i.succ = [c + 1 for c in calls]
        else: i.succ = [k + 1]
        i.succ = [s for s in i.succ if s < len(ins)]
    return ins

def vec(s): return {x for x in s if x[0] in "va"}
def sc(s): return {x for x in s if x[0] == "s"}

def need(p, c):
    n = 0
    why = ""
    def up(v, w):
        nonlocal n, why
        if v > n: n, why = v, w
    if p.valu and not p.rdlane:
        pw = vec(p.w)
        if c.mfma and pw & c.r: up(2, "valu->mfma")
        if c.perml and pw & c.r: up(2, "valu->permlane")
        if c.valu and c.dpp and pw & c.r: up(2, "valu->dpp")
        if c.rdlane and pw & c.r: up(1, "valu->readlane")
        if p.trans and c.valu and not c.trans and pw & c.r: up(1, "trans->valu")
        if p.trans and (c.vmem or c.ds) and pw & c.r: up(1, "trans->mem")
        if p.dot and (c.valu or c.vmem or c.ds or c.mfma):
            if c.mn == p.mn and c.dot:
                srcs = set()
                for o in (c.ops[1:3]): srcs |= regs_of(o)
                if pw & srcs: up(3, "dot->dot srcAB")
            elif pw & (c.r | c.w): up(3, "dot->other")
        if ("sdwa" in p.mn or "op_sel" in p.mods) and c.valu and pw & (c.r | c.w): up(1, "opsel->valu")
    if p.valu:
        ps = sc(p.w)
        if ps:
            if c.vmem and ps & c.r: up(5, "valu sgpr->vmem")
            if c.valu and ps & c.r: up(2, "valu sgpr->valu")
            if c.valu and c.mn.startswith("v_cndmask") and len(c.ops) == 3 and ps & regs_of("vcc"): up(2, "vcc->cndmask")
            if c.mn.startswith(("v_readlane", "v_writelane")) and ps & c.r: up(4, "valu sgpr->lanesel")
            if ps & regs_of("exec"):
                if c.mfma: up(4, "valu exec->mfma")
                if c.dpp: up(5, "valu exec->dpp")
                if c.perml or c.rdlane: up(4, "valu exec->lane")
            if c.salu and ps & c.r: up(1, "valu sgpr->salu (pad)")
    if p.mfma:
        t = {4: (6, 8, 3), 8: (10, 12, 7)}[p.passes]
        D = p.w
        if c.mfma:
            if D & c.srcAB: up(t[1], "mfma D->mfma AB")
            if D & c.srcC and not (c.srcC == D and c.passes == p.passes): up(t[0], "mfma D->mfma C overlap")
            if D & c.w and not (c.w == D): up(t[0], "mfma D->mfma D overlap")
        else:
            if (c.valu or c.vmem or c.ds) and D & (c.r | c.w): up(t[1], "mfma D->valu/mem")
            if c.valu and p.srcC & c.w: up(t[2], "mfma srcC WAR")
    if p.salu and regs_of("m0") & p.w and c.vmem and getattr(c, "lds", False): up(1, "m0->lds dma")
    if p.vmem and getattr(p, "wide_store", False) and p.sdata & c.w:
        up(2 if c.valu else 1, "wide store data WAR")
    return n, why

def check(text, verbose=True):
    ins = parse(text)
    bad = 0
    for k, p in enumerate(ins):
        if not (p.valu or p.mfma or p.salu or p.vmem): continue
        seen = {}
        f0 = p.passes - 1 if p.mfma else 0
        stack = [(s, 0, f0) for s in p.succ]
        while stack:
            j, d, fr = stack.pop()
            if d >= 13: continue
            if j in seen and seen[j] <= (d, fr): continue
            seen[j] = (d, fr)
            c = ins[j]
            n, why = need(p, c)
            if n > d:
                bad += 1
                if verbose: print(f"HAZARD {why}: need {n}, have {d}\n   L{p.ln}: {p.text}\n   L{c.ln}: {c.text}")
            if c.mfma and p.mfma:
                d = max(d, fr); fr = d + c.passes
            for s in c.succ: stack.append((s, d + c.states, fr))
    return bad

def waitcheck(text, verbose=True):
    ins = parse(text)
    starts = [0] + [k + 1 for k, i in enumerate(ins) if not any(k + 1 in j.succ for j in ins[max(0, k - 1):k + 1]) and k + 1 < len(ins)]
    targets = set()
    for i in ins: targets.update(i.succ)
    entries = [k for k in range(len(ins)) if k not in targets]
    bad = set(); seen = set(); maxvm = 0
    stack = [(e, (), ()) for e in entries]
    while stack:
        k, vm, lg = stack.pop()
        while True:
            key = (k, vm, lg)
            i = ins[k]
            if len(i.succ) != 1 or k in branch_targets(ins, targets):
                if key in seen: break
                seen.add(key)
            if i.mn == "s_waitcnt":
                t = i.text
                m = re.search(r"vmcnt\((\d+)\)", t)
                if m:
                    n = int(m.group(1)); vm = vm[len(vm) - n:] if n < len(vm) else vm
                    if n == 0: vm = ()
                m = re.search(r"lgkmcnt\((\d+)\)", t)
                if m:
                    n = int(m.group(1))
                    if n == 0: lg = ()
                    elif any(e[0] == "smem" for e in lg):
                        if ("mix", i.ln) not in bad:
                            bad.add(("mix", i.ln))
                            if verbose: print(f"WAIT: counted lgkmcnt with scalar load in flight L{i.ln}: {i.text}")
                    elif n < len(lg): lg = lg[len(lg) - n:]
            else:
                touch = i.r | i.w
                if i.mn == "global_load_dword" and i.w == {("v", 4)}: touch = i.r
                for e in vm + lg:
                    if e[1] & touch and (e[2], i.ln) not in bad:
                        bad.add((e[2], i.ln))
                        if verbose: print(f"WAIT: L{i.ln}: {i.text}   touches result of L{e[2]} still in flight")
                if i.vmem and not i.mn.startswith(("buffer_inv",)):
                    vm = vm + (("v", frozenset(i.w), i.ln),)
                    maxvm = max(maxvm, len(vm))
                    if len(vm) > 63 and ("vm63", i.ln) not in bad:
                        bad.add(("vm63", i.ln)); print(f"WAIT: more than 63 vector memory ops in flight at L{i.ln}")
                    vm = vm[-64:]
                elif i.ds:
                    lg = lg + (("ds", frozenset(i.w), i.ln),)
                    lg = lg[-64:]
                elif i.mn.startswith(("s_load", "s_memtime", "s_memrealtime")):
                    if not i.mn.startswith("s_mem"): lg = lg + (("smem", frozenset(i.w), i.ln),)
                    lg = lg[-64:]
            if not i.succ: break
            for s_ in i.succ[1:]: stack.append((s_, vm, lg))
            k = i.succ[0]
    return len(bad)

_bt = {}
def branch_targets(ins, targets):
    key = id(ins)
    if key not in _bt:
        _bt.clear()
        _bt[key] = {s for k, i in enumerate(ins) for s in i.succ if s != k + 1}
    return _bt[key]

if __name__ == "__main__":
    b = check(open(sys.argv[1]).read())
    b += waitcheck(open(sys.argv[1]).read())
    print("hazards:", b)
    sys.exit(1 if b else 0)
```

```python
import math, struct, sys

NAME = "sequential_preLN__grouped_kv_mqa__dense_activation_mish__prompt"

QF   = 0x000000
KV   = 0x200000
KMAX = 0x240000
SYNC = 0x248000
WOF  = 0x250000
W1F  = 0x300000
W2F  = 0x500000
HN   = 0x700000
PART = 0xB00000
WS_SIZE = PART + 32*8*8*7168

X_BYTES = 2048*896
WQ_BYTES = 448*896
WK_BYTES = 448*56
W1_BYTES = 448*3584
W2_BYTES = 1792*896

def f2u(f): return struct.unpack("<I", struct.pack("<f", f))[0]
def hexf(f): return "0x%08x" % f2u(f)
LOG2E = math.log2(math.e)
QSCALE = LOG2E / math.sqrt(28.0)
ONES_BF = "0x3f803f80"

class Asm:
    def __init__(self):
        self.L = []
    def __call__(self, s):
        for ln in s.split("\n"):
            ln = ln.strip()
            if ln: self.L.append("    " + ln)
    def label(self, s): self.L.append(s + ":")
    def c(self, s): self.L.append("    ; " + s)
    def text(self): return "\n".join(self.L) + "\n"

def vr(b, n=1): return f"v{b}" if n == 1 else f"v[{b}:{b+n-1}]"
def ar(b, n=1): return f"a{b}" if n == 1 else f"a[{b}:{b+n-1}]"
def sr(b, n=1): return f"s{b}" if n == 1 else f"s[{b}:{b+n-1}]"

def srd(a, d, lo, hi, nbytes):
    a(f"s_mov_b32 s{d}, s{lo}")
    a(f"s_mov_b32 s{d+1}, s{hi}")
    a(f"s_mov_b32 s{d+2}, {nbytes if isinstance(nbytes, str) else hex(nbytes)}")
    a(f"s_mov_b32 s{d+3}, 0x20000")

def header(a, name):
    a.L.append(f".globl {name}")
    a.L.append(".p2align 8")
    a.L.append(f".type {name},@function")
    a.label(name)

def kd(name, vgpr, sgpr, accum):
    return f""".p2align 6
.amdhsa_kernel {name}
  .amdhsa_next_free_vgpr {vgpr}
  .amdhsa_next_free_sgpr {96 if STAMPS else sgpr}
  .amdhsa_accum_offset {accum}
  .amdhsa_group_segment_fixed_size 0
  .amdhsa_kernarg_size 96
  .amdhsa_user_sgpr_count 2
  .amdhsa_user_sgpr_kernarg_segment_ptr 1
  .amdhsa_system_sgpr_workgroup_id_x 1
.end_amdhsa_kernel
"""

STAMPS = False
STAMP_BASE = 0x8000000
def stamp(a, i):
    if STAMPS: a(f"s_memrealtime s[{72+2*i}:{73+2*i}]")
STAMP_SET = []
OPT = {}
def nstamp(a, name):
    if STAMPS and name in STAMP_SET:
        i = 1 + STAMP_SET.index(name)
        a(f"{'s_memtime' if OPT.get('cyc') else 's_memrealtime'} s[{72+2*i}:{73+2*i}]")
def stamp_init(a):
    if STAMPS:
        for i in range(8): a(f"s_mov_b32 s{72+2*i}, 0")
        stamp(a, 0)
def fin(a, kidx, wslo):
    if STAMPS:
        stamp(a, 7)
        a("s_mov_b64 exec, 1")
        a("s_waitcnt lgkmcnt(0)")
        for i in range(8): a(f"v_mov_b32 v{i}, s{72+2*i}")
        srd(a, 68, wslo, wslo+1, 0x10000000)
        a("s_lshl_b32 s90, s2, 3")
        a("s_add_u32 s90, s90, s3")
        a(f"s_add_u32 s90, s90, {kidx*4096}")
        a("s_lshl_b32 s90, s90, 5")
        a(f"s_add_u32 s90, s90, {STAMP_BASE}")
        a("v_mov_b32 v8, 0")
        a("buffer_store_dwordx4 v[0:3], v8, s[68:71], s90 offen")
        a("buffer_store_dwordx4 v[4:7], v8, s[68:71], s90 offen offset:16")
    a("s_endpgm")

def mfma32(d, A, B, C): return f"v_mfma_f32_32x32x16_bf16 {d}, {A}, {B}, {C}"
def mfma16(d, A, B, C): return f"v_mfma_f32_16x16x32_bf16 {d}, {A}, {B}, {C}"

def half_sum(a, x, t, op="v_add_f32"):
    a(f"v_mov_b32 v{t}, v{x}")
    a("s_nop 1")
    a(f"v_permlane32_swap_b32 v{t}, v{x}")
    a("s_nop 1")
    a(f"{op} v{x}, v{x}, v{t}")

K1_X, K1_W0, K1_W4, K1_ST, K1_CS = 0, 57344, 114688, 143360, 143872
K1_LDS = 144640

def gen_k1(a):
    n = "k1_kernel"
    header(a, n)
    a("s_cmp_ge_u32 s2, 256")
    a("s_cbranch_scc1 K1_end")
    stamp_init(a)
    a("s_load_dwordx4 s[24:27], s[0:1], 0")
    a("s_load_dwordx4 s[28:31], s[0:1], 16")
    a("s_load_dwordx2 s[32:33], s[0:1], 32")
    a("s_load_dwordx2 s[34:35], s[0:1], 48")
    a("s_load_dwordx2 s[36:37], s[0:1], 64")
    a("s_load_dwordx2 s[38:39], s[0:1], 88")
    a("v_lshrrev_b32 v1, 6, v0")
    a("v_and_b32 v0, 63, v0")
    a("v_readfirstlane_b32 s3, v1")
    a("s_and_b32 s4, s2, 7")
    a("s_lshl_b32 s4, s4, 2")
    a("s_bfe_u32 s6, s2, 0x20003")
    a("s_add_u32 s4, s4, s6")
    a("s_lshr_b32 s5, s2, 5")
    a("v_lshrrev_b32 v2, 5, v0")
    a("v_bfe_u32 v3, v0, 4, 1")
    a("v_bfe_u32 v4, v0, 2, 2")
    a("v_and_b32 v5, 3, v0")
    a("v_lshrrev_b32 v6, 2, v0")
    a("v_lshlrev_b32 v7, 4, v5")
    a("s_cmp_eq_u32 s3, 4")
    a("s_cbranch_scc1 K1_w4")
    a("v_lshrrev_b32 v8, 3, v0")
    a("v_and_b32 v9, 7, v0")
    a("v_lshrrev_b32 v10, 1, v8")
    a("v_xor_b32 v9, v9, v10")
    a("s_and_b32 s6, s3, 1")
    a("s_lshl_b32 s7, s6, 2")
    a("v_xor_b32 v9, s7, v9")
    a("v_mul_u32_u24 v8, 896, v8")
    a("v_lshl_add_u32 v8, v9, 4, v8")
    a("v_mul_u32_u24 v9, 896, v6")
    a("v_add_u32 v9, v9, v7")
    a("s_lshl_b32 s40, s4, 6")
    a("s_lshl_b32 s41, s3, 4")
    a("s_add_u32 s40, s40, s41")
    a("s_mul_i32 s40, s40, 896")
    a("s_mul_i32 s41, s3, 14336")
    a("s_lshl_b32 s42, s5, 1")
    a("s_add_u32 s42, s42, s6")
    a("s_mul_i32 s43, s42, 56")
    a("s_lshr_b32 s44, s3, 1")
    a("s_mul_i32 s45, s44, 224*896")
    a("s_add_u32 s43, s43, s45")
    a("s_mul_i32 s45, s6, 28672")
    a("s_mul_i32 s46, s44, 14336")
    a("s_add_u32 s45, s45, s46")
    a(f"s_add_u32 s45, s45, {K1_W0}")
    a("s_waitcnt lgkmcnt(0)")
    srd(a, 8, 24, 25, X_BYTES)
    srd(a, 12, 26, 27, WQ_BYTES)
    srd(a, 16, 38, 39, WS_SIZE)
    a("s_cmp_ge_u32 s2, 3")
    a("s_cbranch_scc1 K1_noclr")
    for i in range(4): a(f"v_mov_b32 v{12+i}, 0")
    a("s_lshl_b32 s46, s2, 2")
    a("s_add_u32 s46, s46, s3")
    a("s_lshl_b32 s46, s46, 10")
    a(f"s_add_u32 s46, s46, {SYNC}")
    a("v_lshlrev_b32 v11, 4, v0")
    a("buffer_store_dwordx4 v[12:15], v11, s[16:19], s46 offen")
    a.label("K1_noclr")
    for j in range(14):
        a("s_mov_b32 m0, s41")
        a("s_add_u32 s41, s41, 1024")
        a("buffer_load_dwordx4 v8, s[8:11], s40 offen lds")
        a(f"s_add_u32 s40, s40, {128 if j != 6 else 8*896 - 6*128}")
        a("s_mov_b32 m0, s45")
        a("s_add_u32 s45, s45, 1024")
        a("buffer_load_dwordx4 v9, s[12:15], s43 offen lds")
        a(f"s_add_u32 s43, s43, {16*896}")
    a("v_lshlrev_b32 v10, 3, v2")
    a("v_add_u32 v10, v10, v4")
    a("v_lshlrev_b32 v10, 6, v10")
    a("v_lshl_add_u32 v10, v3, 5, v10")
    a("v_lshl_add_u32 v10, v5, 3, v10")
    a("s_mul_i32 s46, s6, 28672")
    a(f"s_add_u32 s46, s46, {K1_W0}")
    a("v_add_u32 v10, s46, v10")
    a("s_mov_b32 s47, 0")
    a("s_mul_i32 s46, s3, 14336")
    a("v_mul_u32_u24 v11, 7168, v2")
    a("v_and_b32 v12, 7, v6")
    a("v_lshl_add_u32 v11, v12, 7, v11")
    a("v_lshl_add_u32 v11, v5, 5, v11")
    a("v_add_u32 v11, s46, v11")
    stamp(a, 1)
    a("s_waitcnt vmcnt(0)")
    stamp(a, 2)
    a("s_barrier")
    stamp(a, 3)
    for kg in range(7):
        a(f"ds_read_b128 {vr(32+8*kg,4)}, v11 offset:{kg*1024}")
        a(f"ds_read_b128 {vr(36+8*kg,4)}, v11 offset:{kg*1024+16}")
    for i in range(4): a(f"v_mov_b32 v{20+i}, 0")
    a(f"s_mov_b32 s48, {ONES_BF}")
    for q in range(14):
        a(f"s_waitcnt lgkmcnt({13-q})")
        for i in range(4):
            r = 32 + 4*q + i
            a(f"v_dot2c_f32_bf16 v{20+(i&1)}, s48, v{r}")
            a(f"v_dot2c_f32_bf16 v{22+(i&1)}, v{r}, v{r}")
    a("s_nop 2")
    a("v_add_f32 v20, v20, v21")
    a("v_add_f32 v22, v22, v23")
    a("s_nop 1")
    a("v_add_f32_dpp v20, v20, v20 quad_perm:[1,0,3,2] row_mask:0xf bank_mask:0xf")
    a("v_add_f32_dpp v22, v22, v22 quad_perm:[1,0,3,2] row_mask:0xf bank_mask:0xf")
    a("s_nop 1")
    a("v_add_f32_dpp v20, v20, v20 quad_perm:[2,3,0,1] row_mask:0xf bank_mask:0xf")
    a("v_add_f32_dpp v22, v22, v22 quad_perm:[2,3,0,1] row_mask:0xf bank_mask:0xf")
    a(f"v_mul_f32 v20, {hexf(1.0/448)}, v20")
    a(f"v_mul_f32 v22, {hexf(1.0/448)}, v22")
    a("v_fma_f32 v22, -v20, v20, v22")
    a("v_max_f32 v22, 0, v22")
    a(f"v_add_f32 v22, {hexf(1e-5)}, v22")
    a("v_rsq_f32 v22, v22")
    a("s_lshl_b32 s46, s3, 6")
    a(f"s_add_u32 s46, s46, {K1_ST}")
    a("v_mul_f32 v20, -v20, v22")
    a("v_lshl_add_u32 v12, v6, 2, s46")
    a("ds_write_b32 v12, v22")
    a("ds_write_b32 v12, v20 offset:256")
    a("s_branch K1_proj")

    a.label("K1_w4")
    a("s_waitcnt lgkmcnt(0)")
    srd(a, 16, 38, 39, WS_SIZE)
    a("s_cmp_ge_u32 s5, 4")
    a("s_cbranch_scc1 K1_prep")
    a("s_lshr_b32 s47, s5, 1")
    a("s_cmp_eq_u32 s47, 0")
    a("s_cselect_b32 s12, s28, s30")
    a("s_cselect_b32 s13, s29, s31")
    a(f"s_mov_b32 s14, {WK_BYTES}")
    a("s_mov_b32 s15, 0x20000")
    a("s_add_u32 s47, s47, 1")
    a("s_and_b32 s44, s5, 1")
    a("v_mul_u32_u24 v9, 56, v6")
    a("v_add_u32 v9, v9, v7")
    a("s_mov_b32 s43, 0")
    a(f"s_mov_b32 s45, {K1_W4}")
    for j in range(28):
        a("s_mov_b32 m0, s45")
        a("s_add_u32 s45, s45, 1024")
        a("buffer_load_dwordx4 v9, s[12:15], s43 offen lds")
        a(f"s_add_u32 s43, s43, {16*56}")
    a("v_lshlrev_b32 v10, 3, v2")
    a("v_add_u32 v10, v10, v4")
    a("v_lshlrev_b32 v10, 6, v10")
    a("v_lshl_add_u32 v10, v3, 5, v10")
    a("v_lshl_add_u32 v10, v5, 3, v10")
    a(f"v_add_u32 v10, {K1_W4}, v10")
    stamp(a, 1)
    a("s_waitcnt vmcnt(0)")
    stamp(a, 2)
    a("s_barrier")
    stamp(a, 3)

    a.label("K1_proj")
    stamp(a, 4)
    a("v_and_b32 v13, 31, v0")
    a("v_bfe_u32 v14, v13, 1, 2")
    a("v_lshrrev_b32 v15, 2, v13")
    a("v_and_b32 v15, 4, v15")
    a("v_or_b32 v14, v14, v15")
    a("v_xor_b32 v14, v14, v2")
    a("v_lshrrev_b32 v15, 3, v13")
    a("v_mul_u32_u24 v15, 7168, v15")
    a("v_and_b32 v16, 7, v13")
    a("v_lshl_add_u32 v15, v16, 7, v15")
    a("s_mul_i32 s46, s44, 28672")
    a("v_add_u32 v15, s46, v15")
    for j in range(4):
        a(f"v_xor_b32 v16, {2*j}, v14")
        a(f"v_lshl_add_u32 v{24+j}, v16, 4, v15")
    a(f"s_mov_b32 s48, {ONES_BF}")
    a("v_mov_b32 v28, 0")
    a("v_mov_b32 v29, 0")
    a("s_cmp_eq_u32 s47, 2")
    a("s_cbranch_scc1 K1_projv")
    RING = 4
    def rd(ks):
        b = 32 + 8*(ks % RING)
        a(f"ds_read_b64_tr_b16 {vr(b,2)}, v10 offset:{ks*1024}")
        a(f"ds_read_b64_tr_b16 {vr(b+2,2)}, v10 offset:{ks*1024+256}")
        a(f"ds_read_b128 {vr(b+4,4)}, v{24+(ks&3)} offset:{(ks>>2)*1024}")
    def loop(swap):
        for ks in range(RING-1): rd(ks)
        for ks in range(28):
            if ks + RING - 1 < 28: rd(ks + RING - 1)
            out = min(RING - 1, 27 - ks) * 3
            a(f"s_waitcnt lgkmcnt({out})")
            b = 32 + 8*(ks % RING)
            W, X = vr(b,4), vr(b+4,4)
            C = "0" if ks == 0 else vr(64,16)
            a(mfma32(vr(64,16), X, W, C) if swap else mfma32(vr(64,16), W, X, C))
            for i in range(4): a(f"v_dot2c_f32_bf16 v{28+(i&1)}, s48, v{b+i}")
    loop(False)
    stamp(a, 5)
    a("s_nop 2")
    a("v_add_f32 v28, v28, v29")
    half_sum(a, 28, 29)
    a("s_lshl_b32 s46, s3, 7")
    a(f"s_add_u32 s46, s46, {K1_CS}")
    a("v_lshl_add_u32 v16, v13, 2, s46")
    a("ds_write_b32 v16, v28")
    a("v_lshl_add_u32 v16, v2, 4, s46")
    a("s_waitcnt lgkmcnt(0)")
    for i in range(4): a(f"ds_read_b128 {vr(32+4*i,4)}, v16 offset:{32*i}")
    a("s_barrier")
    a("s_lshl_b32 s46, s44, 7")
    a(f"s_add_u32 s46, s46, {K1_ST}")
    a("v_lshl_add_u32 v16, v13, 2, s46")
    a("ds_read_b32 v20, v16")
    a("ds_read_b32 v21, v16 offset:256")
    a("s_cmp_eq_u32 s47, 0")
    a(f"s_cselect_b32 s49, {hexf(QSCALE)}, 1.0")
    a("s_cselect_b32 s50, 0, 0x3f80")
    a("s_waitcnt lgkmcnt(0)")
    a("v_mul_f32 v20, s49, v20")
    a("v_mul_f32 v21, s49, v21")
    for i in range(16):
        a(f"v_mul_f32 v{64+i}, v{64+i}, v20")
        a(f"v_fmac_f32 v{64+i}, v{32+i}, v21")
    for i in range(8): a(f"v_cvt_pk_bf16_f32 v{48+i}, v{64+2*i}, v{65+2*i}")
    a("v_cmp_ne_u32 s[52:53], 0, v2")
    a("s_nop 1")
    a("v_cndmask_b32 v54, v54, 0, s[52:53]")
    a("v_cndmask_b32 v55, v55, 0, s[52:53]")
    a("s_cmp_eq_u32 s47, 0")
    a("s_cbranch_scc0 K1_epk")
    a("v_lshrrev_b32 v16, 3, v13")
    a("v_lshlrev_b32 v16, 13, v16")
    a("v_lshl_add_u32 v16, v2, 9, v16")
    a("v_and_b32 v17, 7, v13")
    a("v_lshl_add_u32 v16, v17, 4, v16")
    a("s_lshl_b32 s46, s4, 3")
    a("s_lshl_b32 s49, s44, 2")
    a("s_add_u32 s46, s46, s49")
    a("s_lshl_b32 s46, s46, 13")
    a("s_lshr_b32 s49, s42, 2")
    a("s_lshl_b32 s49, s49, 11")
    a("s_add_u32 s46, s46, s49")
    a("s_and_b32 s49, s42, 3")
    a("s_lshl_b32 s49, s49, 7")
    a("s_add_u32 s46, s46, s49")
    if QF: a(f"s_add_u32 s46, s46, {QF}")
    a("buffer_store_dwordx4 v[48:51], v16, s[16:19], s46 offen")
    a("buffer_store_dwordx4 v[52:55], v16, s[16:19], s46 offen offset:1024")
    fin(a, 0, 38)
    a.label("K1_epk")
    a("v_mov_b32 v20, 0")
    for i in range(8): a(f"v_dot2c_f32_bf16 v20, v{48+i}, v{48+i}")
    a("v_mov_b32 v22, s50")
    a("v_cndmask_b32 v54, v54, v22, s[52:53]")
    a("s_nop 1")
    half_sum(a, 20, 21)
    a("s_nop 1")
    for m in ("quad_perm:[1,0,3,2]", "quad_perm:[2,3,0,1]", "row_half_mirror", "row_mirror"):
        a(f"v_max_f32_dpp v20, v20, v20 {m} row_mask:0xf bank_mask:0xf")
        a("s_nop 1")
    a("v_mov_b32 v21, v20")
    a("s_nop 1")
    a("v_permlane16_swap_b32 v21, v20")
    a("s_nop 1")
    a("v_max_f32 v20, v20, v21")
    a("s_lshl_b32 s46, s4, 1")
    a("s_add_u32 s46, s46, s44")
    a("s_lshl_b32 s49, s46, 2")
    a(f"s_add_u32 s49, s49, {KMAX}")
    a("s_lshl_b32 s46, s46, 12")
    a(f"s_add_u32 s46, s46, {KV}")
    a("v_lshlrev_b32 v16, 4, v0")
    a("v_mov_b32 v17, 0")
    a("buffer_store_dwordx4 v[48:51], v16, s[16:19], s46 offen")
    a("buffer_store_dwordx4 v[52:55], v16, s[16:19], s46 offen offset:1024")
    a("s_mov_b64 exec, 1")
    a("buffer_store_dword v20, v17, s[16:19], s49 offen")
    fin(a, 0, 38)
    a.label("K1_projv")
    loop(True)
    stamp(a, 5)
    a("s_nop 2")
    a("v_add_f32 v28, v28, v29")
    half_sum(a, 28, 29)
    a("s_barrier")
    a("s_lshl_b32 s46, s44, 7")
    a(f"s_add_u32 s46, s46, {K1_ST}")
    a("v_lshl_add_u32 v16, v2, 4, s46")
    for i in range(4): a(f"ds_read_b128 {vr(32+4*i,4)}, v16 offset:{32*i}")
    for i in range(4): a(f"ds_read_b128 {vr(48+4*i,4)}, v16 offset:{256+32*i}")
    a("s_waitcnt lgkmcnt(0)")
    for i in range(16):
        a(f"v_mul_f32 v{64+i}, v{64+i}, v{32+i}")
        a(f"v_fmac_f32 v{64+i}, v{48+i}, v28")
    for i in range(8): a(f"v_cvt_pk_bf16_f32 v{48+i}, v{64+2*i}, v{65+2*i}")
    a("v_cmp_eq_u32 s[52:53], 28, v13")
    a(f"v_mov_b32 v21, {ONES_BF}")
    a("s_nop 0")
    a("v_cndmask_b32 v21, 0, v21, s[52:53]")
    a("v_cmp_lt_u32 s[52:53], 27, v13")
    a("s_nop 1")
    for i in range(8): a(f"v_cndmask_b32 v{48+i}, v{48+i}, v21, s[52:53]")
    a("s_lshl_b32 s46, s4, 1")
    a("s_add_u32 s46, s46, s44")
    a("s_lshl_b32 s46, s46, 12")
    a(f"s_add_u32 s46, s46, {KV}")
    a("v_lshlrev_b32 v16, 4, v0")
    a("buffer_store_dwordx4 v[48:51], v16, s[16:19], s46 offen offset:2048")
    a("buffer_store_dwordx4 v[52:55], v16, s[16:19], s46 offen offset:3072")
    fin(a, 0, 38)

    a.label("K1_prep")
    a("s_lshl_b32 s40, s4, 2")
    a("s_add_u32 s40, s40, s5")
    a("s_sub_u32 s40, s40, 4")
    a("s_cmp_ge_u32 s40, 126")
    a("s_cbranch_scc1 K1_end")
    a("v_lshlrev_b32 v10, 2, v2")
    a("v_add_u32 v10, v10, v4")
    a("v_lshlrev_b32 v10, 6, v10")
    a("v_lshl_add_u32 v10, v3, 5, v10")
    a("v_lshl_add_u32 v10, v5, 3, v10")
    a("s_mov_b32 s50, 512")
    a("s_mov_b32 s51, 1024")
    a("s_mov_b32 s52, 2048")
    a("s_mov_b32 s53, 1024")
    a("s_cmp_ge_u32 s40, 56")
    a("s_cbranch_scc1 K1_prep2")
    srd(a, 12, 34, 35, W1_BYTES)
    a("s_mov_b32 s41, 3584")
    a("s_lshl_b32 s43, s40, 6")
    a("s_mul_i32 s46, s40, 28672")
    a(f"s_add_u32 s46, s46, {W1F}")
    a("s_branch K1_prep4")
    a.label("K1_prep2")
    a("s_cmp_ge_u32 s40, 112")
    a("s_cbranch_scc1 K1_prep3")
    srd(a, 12, 36, 37, W2_BYTES)
    a("s_mov_b32 s41, 896")
    a("s_sub_u32 s40, s40, 56")
    a("s_lshr_b32 s6, s40, 2")
    a("s_and_b32 s7, s40, 3")
    a("s_mul_i32 s43, s7, 448*896")
    a("s_lshl_b32 s44, s6, 6")
    a("s_add_u32 s43, s43, s44")
    a("s_mul_i32 s46, s40, 28672")
    a(f"s_add_u32 s46, s46, {W2F}")
    a("s_branch K1_prep4")
    a.label("K1_prep3")
    srd(a, 12, 32, 33, WQ_BYTES)
    a("s_mov_b32 s41, 896")
    a("s_sub_u32 s40, s40, 112")
    a("s_lshl_b32 s43, s40, 6")
    a("s_lshl_b32 s6, s40, 1")
    for r in (46, 53):
        a("s_mul_i32 s7, s6, 37")
        a("s_lshr_b32 s7, s7, 8")
        a(f"s_mul_i32 s{r}, s7, {100352 - 7*1024}")
        a("s_lshl_b32 s7, s6, 10")
        a(f"s_add_u32 s{r}, s{r}, s7")
        a("s_add_u32 s6, s6, 1")
    a("s_sub_u32 s53, s53, s46")
    a(f"s_add_u32 s46, s46, {WOF}")
    a("v_lshrrev_b32 v10, 4, v0")
    a("v_lshlrev_b32 v10, 3, v10")
    a("v_add_u32 v10, v10, v4")
    a("v_lshlrev_b32 v10, 6, v10")
    a("v_lshl_add_u32 v10, v5, 3, v10")
    a("s_mov_b32 s50, 256")
    a("s_mov_b32 s51, 32")
    a("s_mov_b32 s52, 7168")
    a.label("K1_prep4")
    a("v_mul_lo_u32 v9, v6, s41")
    a("v_add_u32 v9, v9, v7")
    a("s_lshl_b32 s41, s41, 4")
    a(f"s_mov_b32 s45, {K1_W4}")
    for j in range(28):
        a("s_mov_b32 m0, s45")
        a("s_add_u32 s45, s45, 1024")
        a("buffer_load_dwordx4 v9, s[12:15], s43 offen lds")
        a("s_add_u32 s43, s43, s41")
    a(f"v_add_u32 v10, {K1_W4}, v10")
    a("v_add_u32 v11, s50, v10")
    a("v_add_u32 v12, s51, v10")
    a("v_add_u32 v13, s51, v11")
    a("v_lshlrev_b32 v16, 4, v0")
    a("s_add_u32 s47, s46, s53")
    stamp(a, 1)
    a("s_waitcnt vmcnt(0)")
    stamp(a, 2)
    a("s_barrier")
    stamp(a, 3)
    def prd(p):
        b = 32 + 8*(p % 4)
        a(f"ds_read_b64_tr_b16 {vr(b,2)}, v10 offset:{p*2048}")
        a(f"ds_read_b64_tr_b16 {vr(b+2,2)}, v11 offset:{p*2048}")
        a(f"ds_read_b64_tr_b16 {vr(b+4,2)}, v12 offset:{p*2048}")
        a(f"ds_read_b64_tr_b16 {vr(b+6,2)}, v13 offset:{p*2048}")
    prd(0); prd(1)
    for p in range(14):
        if p + 2 < 14: prd(p + 2)
        a(f"s_waitcnt lgkmcnt({4*min(2, 13-p)})")
        b = 32 + 8*(p % 4)
        a(f"buffer_store_dwordx4 {vr(b,4)}, v16, s[16:19], s46 offen")
        a(f"buffer_store_dwordx4 {vr(b+4,4)}, v16, s[16:19], s47 offen")
        a("s_add_u32 s46, s46, s52")
        a("s_add_u32 s47, s47, s52")
    a("s_barrier")
    fin(a, 0, 38)
    a.label("K1_end")
    a("s_endpgm")
    return kd(n, 96, 64, 96), f"; @launch kernel={n} grid=(256,1,1) block=(320,1,1) lds={K1_LDS}"

L_RED, L_OB, L_WO, L_ST, L_DUMMY, L_BIAS, L_HT = 0, 49152, 57344, 147456, 148480, 149504, 150528
L_HN, L_ACT = 0, 57344
KB_LDS = 158720
OB_STRIDE = 912
SHIFT_LIMIT = 40.0
SPIN_LIMIT = 1 << 17
LN2F = math.log(2.0)

class Cnt:
    def __init__(self, name, cap): self.q = []; self.name = name; self.cap = cap
    def issue(self, tag):
        self.q.append(tag)
        assert self.name != "vmcnt" or len(self.q) <= self.cap, (self.name, tag, len(self.q))
    def wait(self, tag):
        if tag not in self.q: return None
        k = len(self.q) - 1 - self.q[::-1].index(tag)
        n = min(len(self.q) - 1 - k, self.cap)
        self.q = self.q[len(self.q)-n:] if n else []
        return f"s_waitcnt {self.name}({n})"
    def clear(self): self.q = []

def cost(t):
    mn = t.split()[0]
    if mn.startswith(("v_exp", "v_rcp", "v_rsq", "v_sqrt")): return 8
    if mn.startswith(("ds_write_b128", "global_store")): return 20
    if mn.startswith(("ds_", "global_", "buffer_")): return 12
    if mn.startswith(("v_cvt_pk", "v_fma_")): return 5
    return 4.3

def gen_kb(a, force_slow=False, force_fence=False):
    n = "kb_kernel"
    header(a, n)
    vm = Cnt("vmcnt", 63); lg = Cnt("lgkmcnt", 15)
    def V(text, tag="-"): a(text); vm.issue(tag)
    def D(text, tag="-"): a(text); lg.issue(tag)
    def WV(tag):
        w = vm.wait(tag)
        if w: a(w)
    def WL(tag):
        w = lg.wait(tag)
        if w: a(w)
    def add64(d, s, off):
        a(f"s_add_u32 s{d}, s{s}, {off}")
        a(f"s_addc_u32 s{d+1}, s{s+1}, 0")
    XR, Q, KVR, S, P, WOV = 16, 32, 64, 96, 128, 144
    NPRE = OPT.get('npre', 0)
    a("s_cmp_ge_u32 s2, 256")
    a("s_cbranch_scc1 KB_end")
    stamp_init(a)
    a("s_load_dwordx2 s[8:9], s[0:1], 88")
    a("s_load_dwordx2 s[10:11], s[0:1], 0")
    a("s_load_dwordx2 s[12:13], s[0:1], 72")
    a("s_load_dwordx2 s[14:15], s[0:1], 56")
    a("v_lshrrev_b32 v1, 6, v0")
    a("v_and_b32 v0, 63, v0")
    a("v_readfirstlane_b32 s3, v1")
    a("s_lshr_b32 s7, s2, 3")
    a("s_and_b32 s4, s2, 7")
    a("s_lshl_b32 s4, s4, 2")
    a("s_lshr_b32 s5, s7, 3")
    a("s_add_u32 s4, s4, s5")
    a("s_and_b32 s5, s7, 7")
    a("s_lshl_b32 s6, s4, 3")
    a("s_add_u32 s6, s6, s5")
    a("v_lshlrev_b32 v1, 4, v0")
    a("v_lshrrev_b32 v2, 5, v0")
    a("v_lshlrev_b32 v3, 2, v0")
    a("s_lshl_b32 s52, s3, 16")
    a(f"s_add_u32 s52, s52, {KV + 4096}")
    a("s_lshl_b32 s53, s5, 13")
    a("s_add_u32 s53, s53, s52")
    a("s_lshl_b32 s54, s6, 13")
    if QF: a(f"s_add_u32 s54, s54, {QF}")
    a(f"s_mov_b32 s55, {KMAX}")
    for t in range(4):
        a(f"s_add_u32 s{56+t}, s3, {t+1}")
        a(f"s_and_b32 s{56+t}, s{56+t}, 3")
        a(f"s_lshl_b32 s{56+t}, s{56+t}, 11")
        a(f"s_add_u32 s{56+t}, s{56+t}, s54")
    a("s_waitcnt lgkmcnt(0)")
    srd(a, 16, 8, 9, WS_SIZE)
    add64(32, 8, "s53")
    V("buffer_load_dword v4, v3, s[16:19], s55 offen", "kmax")
    for t in range(4):
        V(f"buffer_load_dwordx4 {vr(Q+8*t,4)}, v1, s[16:19], s{56+t} offen", f"q{t}")
        V(f"buffer_load_dwordx4 {vr(Q+8*t+4,4)}, v1, s[16:19], s{56+t} offen offset:1024", f"q{t}")
    def kvld(i, part):
        b = 32 + 2*(i >> 1)
        return f"global_load_dwordx4 {vr(KVR+16*(i&1)+4*part,4)}, v1, s[{b}:{b+1}] offset:{4096*(i&1) - 4096 + 1024*part}"
    for i, part in ((0,0), (0,1), (0,2), (0,3), (1,0), (1,1), (1,2), (1,3)):
        V(kvld(i, part), f"{'KV'[part>>1]}{i}")
    srd(a, 20, 10, 11, X_BYTES)
    srd(a, 24, 12, 13, X_BYTES)
    srd(a, 28, 14, 15, 3584)
    a(f"s_mov_b32 m0, {L_BIAS}")
    a("s_lshl_b32 s53, s5, 9")
    V("buffer_load_dwordx4 v1, s[28:31], s53 offen lds", "bias")
    a("v_lshlrev_b32 v10, 7, v0")
    a("s_lshl_b32 s53, s7, 2")
    a("s_add_u32 s53, s53, s3")
    a("s_cmp_lt_u32 s53, 49")
    a("s_cbranch_scc0 KB_wcode")
    a("s_lshl_b32 s54, s53, 13")
    a(f"s_add_u32 s54, s54, {WOF}")
    add64(50, 8, "s54")
    a("global_load_dword v31, v10, s[50:51]")
    a("s_branch KB_wdone")
    a.label("KB_wcode")
    a("s_getpc_b64 s[50:51]")
    a.label("KB_pc")
    a("s_sub_u32 s54, s53, 49")
    a("s_lshl_b32 s54, s54, 13")
    a("v_add_u32 v11, s54, v10")
    a("v_min_u32 v11, KB_code_end-KB_pc-4, v11")
    a("global_load_dword v31, v11, s[50:51]")
    a.label("KB_wdone")
    vm.issue("warm")
    a("s_getreg_b32 s69, hwreg(HW_REG_XCC_ID, 0, 4)")
    a("s_add_u32 s69, s69, 1")
    a("s_lshl_b32 s53, s4, 8")
    a(f"s_add_u32 s53, s53, {SYNC}")
    add64(66, 8, "s53")
    a("s_lshl_b32 s53, s4, 7")
    a(f"s_add_u32 s53, s53, {SYNC + 0x2000}")
    add64(62, 8, "s53")
    a("v_mov_b32 v11, s69")
    a("s_lshl_b32 s53, s5, 2")
    a("v_mov_b32 v12, s53")
    a("s_mov_b64 exec, 1")
    V("global_store_dword v12, v11, s[62:63] sc0 sc1", "xccpub")
    a("s_mov_b64 exec, -1")
    a("s_load_dword s70, s[66:67], 0")
    a("s_load_dword s71, s[66:67], 128")
    a("s_mul_i32 s53, s3, 100352")
    a(f"s_add_u32 s53, s53, {WOF + 4096}")
    add64(48, 8, "s53")
    def woreg(f):
        if f < 48: return ar(64+4*f, 4)
        if f < 76: return vr(WOV+4*(f-48), 4)
        if f < 92: return vr(32+4*(f-76), 4)
        return vr(WOV+4*(f-92), 4)
    VOFF = (1, 7, 9, 8)
    def wo_items(f0, f1):
        it = []
        for f in range(f0, f1):
            if f < 76:
                if f and f % 32 == 0:
                    it += [("s", "s_add_u32 s48, s48, 32768"), ("s", "s_addc_u32 s49, s49, 0")]
                it.append(("v", f"global_load_dwordx4 {woreg(f)}, v{VOFF[(f%32)//8]}, s[48:49] offset:{1024*(f%8) - 4096}", f"wo{f}"))
            else:
                g = (f - 76) // 4
                if f % 4 == 0: it.append(("s", f"s_add_u32 m0, s60, {L_WO + 1024*(f-76)}"))
                b = 50 if g & 1 else 48
                it.append(("v", f"global_load_lds_dwordx4 v{VOFF[1 + g//2]}, s[{b}:{b+1}] offset:{1024*(f%4)}", f"wo{f}"))
        return it
    def emit_item(it):
        if it[0] == "s": a(it[1])
        elif it[0] == "v": V(it[1], it[2])
        elif it[0] == "d": D(it[1], it[2])
        elif it[0] == "wv": WV(it[1])
        elif it[0] == "wl": WL(it[1])
    add64(50, 48, 65536 + 4096)
    assert NPRE <= 8
    for it in wo_items(0, NPRE): emit_item(it)
    a("v_and_b32 v5, 7, v0")
    a("v_lshrrev_b32 v6, 4, v0")
    a("v_mul_u32_u24 v7, 896, v5")
    a("v_lshl_add_u32 v7, v6, 3, v7")
    a("s_mul_i32 s53, s6, 8*896")
    a("s_mul_i32 s54, s3, 224")
    a("s_add_u32 s53, s53, s54")
    for i in range(7): V(f"buffer_load_dwordx2 {vr(XR+2*i,2)}, v7, s[20:23], s53 offen offset:{32*i}", "xr")
    a("v_add_u32 v7, 8192, v1")
    a("v_add_u32 v9, 16384, v1")
    for p in range(1, 8):
        a(f"s_add_u32 s53, s5, {p}")
        a("s_and_b32 s53, s53, 7")
        a("s_lshl_b32 s53, s53, 13")
        a("s_add_u32 s53, s53, s52")
        add64(32+2*p, 8, "s53")
    a("s_mul_i32 s60, s3, 22528")
    for t in range(3):
        a(f"s_add_u32 s53, s3, {t+1}")
        a("s_and_b32 s53, s53, 3")
        a("s_mul_i32 s53, s53, 12288")
        a(f"s_add_u32 s53, s53, {L_RED + 4096*t}")
        a(f"v_add_u32 v{13+t}, s53, v1")
    a("s_lshl_b32 s53, s7, 2")
    a("s_add_u32 s53, s53, s3")
    a("s_mul_i32 s53, s53, 12544")
    a(f"s_add_u32 s53, s53, {W1F + 4096}")
    add64(56, 8, "s53")
    add64(58, 56, W2F - W1F)
    a("s_lshr_b32 s53, s6, 2")
    a("s_mul_i32 s53, s53, 28672")
    a("s_and_b32 s54, s5, 3")
    a("s_lshl_b32 s54, s54, 7")
    a("s_add_u32 s53, s53, s54")
    a("s_mul_i32 s54, s3, 7168")
    a("s_add_u32 s53, s53, s54")
    a(f"s_add_u32 s53, s53, {HN}")
    add64(54, 8, "s53")
    a("v_lshrrev_b32 v10, 2, v0")
    a("v_lshlrev_b32 v10, 7, v10")
    a("v_and_b32 v11, 12, v3")
    a("v_add_u32 v10, v10, v11")
    a("v_add_u32 v11, 8192, v10")
    a("v_min_u32 v12, 13, v0")
    a("v_lshlrev_b32 v12, 9, v12")
    a("v_and_b32 v30, 7, v0")
    a("v_lshlrev_b32 v30, 2, v30")
    late = [("v", "global_load_dword v30, v30, s[62:63] sc1", "xcc"),
            ("v", "global_load_dword v4, v12, s[54:55] sc1", "late")]
    warm = [("v", f"global_load_dword v4, v{10 + (k >> 2)}, s[{b}:{b+1}] offset:{2048*(k & 3) - 4096}", "warm")
            for b in (56, 58) for k in range(7)][:OPT.get('nwarm', 7)]
    nstamp(a, "pro")
    WV("kmax")
    for m_ in ("quad_perm:[1,0,3,2]", "quad_perm:[2,3,0,1]", "row_half_mirror", "row_mirror"):
        a(f"v_max_f32_dpp v4, v4, v4 {m_} row_mask:0xf bank_mask:0xf")
        a("s_nop 1")
    a("v_mov_b32 v8, v4")
    a("s_nop 1")
    a("v_permlane16_swap_b32 v8, v4")
    a("s_nop 1")
    a("v_max_f32 v4, v4, v8")
    half_sum(a, 4, 8, "v_max_f32")
    a(f"v_mul_f32 v4, {hexf(1.02)}, v4")
    a("v_cmp_ne_u32 s[64:65], 0, v2")
    B0 = S + 16
    for t in range(4): a(f"v_mov_b32 v{B0+t}, 0")
    for t in range(4):
        WV(f"q{t}")
        for i in range(8): a(f"v_dot2c_f32_bf16 v{B0+t}, v{Q+8*t+i}, v{Q+8*t+i}")
    a("s_nop 2")
    for t in range(4): a(f"v_mov_b32 v{B0+4+t}, v{B0+t}")
    a("s_nop 0")
    for t in range(4): a(f"v_permlane32_swap_b32 v{B0+4+t}, v{B0+t}")
    a("s_nop 0")
    for t in range(4): a(f"v_add_f32 v{B0+t}, v{B0+t}, v{B0+4+t}")
    for t in range(4): a(f"v_mul_f32 v{B0+t}, v{B0+t}, v4")
    for t in range(4): a(f"v_sqrt_f32 v{B0+t}, v{B0+t}")
    a("s_nop 0")
    a(f"v_max3_f32 v8, v{B0}, v{B0+1}, v{B0+2}")
    a(f"v_max_f32 v8, v8, v{B0+3}")
    lim = -1.0 if force_slow else SHIFT_LIMIT
    a(f"v_cmp_nge_f32 vcc, {hexf(lim)}, v8")
    a("v_add_u32 v8, 24576, v1")
    a("s_cbranch_vccnz KB_slow")
    vm_at_slow = list(vm.q)
    for t in range(4): a(f"v_cvt_pk_bf16_f32 v{B0+t}, -v{B0+t}, 0")
    for t in range(4): a(f"v_cndmask_b32 v{Q+8*t+6}, v{Q+8*t+6}, v{B0+t}, s[64:65]")
    WV("K0")
    a(mfma32(vr(S,16), vr(KVR,4), vr(Q,4), "0"))
    a(mfma32(vr(S,16), vr(KVR+4,4), vr(Q+4,4), vr(S,16)))
    a("s_nop 7")
    a("s_nop 3")
    nstamp(a, "loop")
    slots = {}
    for i in range(16):
        if i <= 13:
            slots[(4*i+2, 0)] = [("v", kvld(i+2, 0), f"K{i+2}")]
            slots[(4*i+2, 1)] = [("v", kvld(i+2, 1), f"K{i+2}")]
        if i <= 14: slots[(4*i+2, 3)] = [("wv", f"K{i+1}")]
        if 1 <= i <= 14:
            slots[(4*i, 2)] = [("v", kvld(i+1, 2), f"V{i+1}")]
            slots[(4*i, 3)] = [("v", kvld(i+1, 3), f"V{i+1}")]
        slots[(4*i+1, 1)] = [("wv", f"V{i}")]
    for q, it in enumerate(warm): slots[(4*(1 + q*14//len(warm)), 1)] = [it]
    free = [(u, k) for u in range(OPT.get('wo0', 1), 56) for k in range(4) if (u, k) not in slots]
    side = wo_items(NPRE, 98)
    assert len(side) <= len(free), (len(side), len(free))
    for q, it in enumerate(side): slots[free[q*len(free)//len(side)]] = [it]
    lf = [(u, k) for u in range(57, 62) for k in range(4) if (u, k) not in slots]
    for q, it in enumerate(late): slots[lf[2*q]] = [it]
    def redw(t, q): return ("d", f"ds_write_b128 v{13+t}, {ar(16*t+4*q,4)} offset:{1024*q}", "red")
    for q, sl in enumerate([(62,1), (62,2), (62,3), (63,2)]): slots.setdefault(sl, []).append(redw(0, q))
    tail63 = [redw(1, q) for q in range(4)]
    slots.setdefault((63,3), []).append(tail63[0])
    for u in range(64):
        sb, pb = S + 16*(u & 1), P + 8*(u & 1)
        sn, pp = S + 16*((u+1) & 1), P + 8*((u-1) & 1)
        un, up = u + 1, u - 1
        kslot = KVR + 16*((un >> 2) & 1); qn = Q + 8*(un & 3)
        vslot = KVR + 16*((up >> 2) & 1) + 8; oa = ar(16*(up & 3), 16)
        M = [mfma32(vr(sn,16), vr(kslot,4), vr(qn,4), "0"),
             mfma32(vr(sn,16), vr(kslot+4,4), vr(qn+4,4), vr(sn,16)),
             mfma32(oa, vr(vslot,4), vr(pp,4), "0" if up < 4 else oa),
             mfma32(oa, vr(vslot+4,4), vr(pp+4,4), oa)]
        e = lambda k: f"v_exp_f32 v{sb+k}, v{sb+k}"
        c = lambda k: f"v_cvt_pk_bf16_f32 v{pb+k}, v{sb+2*k}, v{sb+2*k+1}"
        groups = [[e(0), e(1), e(2), e(3), c(0)], [e(4), c(1), e(5), e(6), e(7), c(2)],
                  [e(8), c(3), e(9), e(10), e(11), c(4)], [e(12), c(5), e(13), e(14), e(15), c(6), c(7)]]
        nstamp(a, f"u{u}")
        for k in range(4):
            if not ((u == 63 and k < 2) or (u == 0 and k >= 2)): a(M[k])
            for it in slots.get((u, k), []): emit_item(it)
            for x in groups[k]: a(x)
    emit_item(tail63[1])
    a(mfma32(ar(48,16), vr(KVR+24,4), vr(P+8,4), ar(48,16)))
    emit_item(tail63[2])
    a(mfma32(ar(48,16), vr(KVR+28,4), vr(P+12,4), ar(48,16)))
    emit_item(tail63[3])
    for q in range(4): emit_item(redw(2, q))
    a.label("KB_red")
    nstamp(a, "red")
    a("s_mul_i32 s53, s3, 12288")
    a("v_add_u32 v8, s53, v1")
    a("v_bfe_u32 v9, v0, 3, 2")
    a("s_lshl_b32 s53, s3, 2")
    a("v_add_u32 v9, s53, v9")
    a("v_mul_u32_u24 v9, 56, v9")
    a(f"v_mul_u32_u24 v10, {OB_STRIDE}, v5")
    a("v_add_u32 v9, v9, v10")
    a("v_lshl_add_u32 v9, v2, 3, v9")
    a(f"v_add_u32 v9, {L_OB}, v9")
    a(f"v_mov_b32 v11, {L_DUMMY}")
    a("v_add_u32 v12, 48, v9")
    a("v_cndmask_b32 v11, v12, v11, s[64:65]")
    a("v_lshl_add_u32 v10, v6, 4, v10")
    a(f"v_add_u32 v10, {L_OB}, v10")
    for i in range(16): a(f"v_accvgpr_read_b32 v{32+i}, a{48+i}")
    a("s_waitcnt lgkmcnt(0)"); lg.clear()
    a("s_barrier")
    for j in range(12): D(f"ds_read_b128 {vr(48+4*j,4)}, v8 offset:{L_RED+1024*j}", f"r{j//4}")
    ACC = 96
    WV("xr")
    for i in range(14):
        a(f"v_lshlrev_b32 v{ACC+2*i}, 16, v{XR+i}")
        a(f"v_and_b32 v{ACC+2*i+1}, 0xffff0000, v{XR+i}")
    for j in range(3):
        WL(f"r{j}")
        for i in range(16): a(f"v_add_f32 v{32+i}, v{32+i}, v{48+16*j+i}")
    a("v_mov_b32 v12, v44")
    a("v_mov_b32 v13, v44")
    a("s_nop 1")
    a("v_permlane32_swap_b32 v12, v13")
    a("s_nop 1")
    a("v_rcp_f32 v13, v13")
    a("s_nop 0")
    for i in range(16): a(f"v_mul_f32 v{32+i}, v{32+i}, v13")
    for i in range(8): a(f"v_cvt_pk_bf16_f32 v{48+i}, v{32+2*i}, v{33+2*i}")
    for i in range(3): D(f"ds_write_b64 v9, {vr(48+2*i,2)} offset:{16*i}")
    D("ds_write_b64 v11, v[54:55]")
    a("s_lshl_b32 s53, s5, 3")
    a("s_add_u32 s53, s53, s3")
    a("s_mul_i32 s53, s53, 28672")
    a(f"s_add_u32 s53, s53, {W1F + 4096}")
    add64(50, 8, "s53")
    a(f"s_add_u32 s53, s60, {L_WO}")
    a("v_add_u32 v8, s53, v1")
    a("s_waitcnt lgkmcnt(0)"); lg.clear()
    a("s_barrier")
    nstamp(a, "wo")
    def w1reg(i):
        return ar(64+4*i, 4) if i < 48 else ar(4*(i-48), 4)
    def w1_items(i):
        it = []
        ks = i % 28
        if i == 28: it += [("s", f"s_add_u32 s50, s50, {4*28672 - 3*8192}"), ("s", "s_addc_u32 s51, s51, 0")]
        elif ks and ks % 8 == 0: it += [("s", "s_add_u32 s50, s50, 8192"), ("s", "s_addc_u32 s51, s51, 0")]
        it.append(("v", f"global_load_dwordx4 {w1reg(i)}, v1, s[50:51] offset:{1024*(ks%8) - 4096}", f"w1_{i}"))
        return it
    for ks in range(14): D(f"ds_read_b128 {ar(4*ks,4)}, v10 offset:{64*ks}", f"o{ks}")
    WV("wo97")
    NW1 = 24
    post = {f: [] for f in range(98)}
    for i in range(NW1):
        it = w1_items(i)
        for q, x in enumerate(it): post[4*i + 3 - (len(it) - 1 - q)].append(x)
    for q in range(16): post[20 + 2*q].append(("d", f"ds_read_b128 {woreg(76+q)}, v8 offset:{1024*q}", f"wl{76+q}"))
    for q in range(6): post[56 + 2*q].append(("d", f"ds_read_b128 {woreg(92+q)}, v8 offset:{1024*(16+q)}", f"wl{92+q}"))
    for f in range(98):
        ks, tile = divmod(f, 7)
        if tile == 0: WL(f"o{ks}")
        if f >= 76: WL(f"wl{f}")
        a(mfma16(vr(ACC+4*tile,4), woreg(f), ar(4*ks,4), vr(ACC+4*tile,4)))
        for it in post[f]: emit_item(it)
    nstamp(a, "woend")
    H = 32
    a("v_and_b32 v14, 15, v0")
    a("v_lshlrev_b32 v14, 3, v14")
    a(f"v_add_u32 v14, {L_ST}, v14")
    a("s_lshl_b32 s53, s3, 7")
    a("v_add_u32 v15, s53, v14")
    a("s_mul_i32 s53, s3, 1792")
    a(f"s_add_u32 s53, s53, {L_HT}")
    a("v_and_b32 v8, 1, v6")
    a("v_lshlrev_b32 v8, 7, v8")
    a("v_lshl_add_u32 v8, v5, 4, v8")
    a("v_lshl_add_u32 v8, v2, 3, v8")
    a("v_add_u32 v8, s53, v8")
    a("v_add_u32 v9, s53, v1")
    for i in range(14): a(f"v_cvt_pk_bf16_f32 v{H+i}, v{ACC+2*i}, v{ACC+2*i+1}")
    a(f"s_mov_b32 s53, {ONES_BF}")
    a("v_mov_b32 v12, 0")
    a("v_mov_b32 v13, 0")
    for i in range(14):
        a(f"v_dot2c_f32_bf16 v12, s53, v{H+i}")
        a(f"v_dot2c_f32_bf16 v13, v{H+i}, v{H+i}")
    for i in range(7): D(f"ds_write_b64 v8, {vr(H+2*i,2)} offset:{256*i}")
    a("v_mov_b32 v10, v12")
    a("v_mov_b32 v11, v13")
    a("s_nop 0")
    a("v_permlane16_swap_b32 v10, v12")
    a("v_permlane16_swap_b32 v11, v13")
    a("s_nop 0")
    a("v_add_f32 v12, v12, v10")
    a("v_add_f32 v13, v13, v11")
    a("v_mov_b32 v10, v12")
    a("v_mov_b32 v11, v13")
    a("s_nop 0")
    a("v_permlane32_swap_b32 v10, v12")
    a("v_permlane32_swap_b32 v11, v13")
    a("s_nop 0")
    a("v_add_f32 v12, v12, v10")
    a("v_add_f32 v13, v13, v11")
    D("ds_write_b64 v15, v[12:13]")
    H8 = 16
    D(f"ds_read_b128 {vr(H8,4)}, v9", "h8")
    D(f"ds_read_b128 {vr(H8+4,4)}, v9 offset:1024", "h8")
    WV("xcc")
    a("s_mov_b32 s68, 1")
    a("v_cmp_ne_u32 vcc, s69, v30")
    if force_fence: a("s_branch KB_xcc")
    else: a("s_cbranch_vccnz KB_xcc")
    a.label("KB_xcc_done")
    a("v_bfe_u32 v7, v0, 3, 1")
    a("v_lshlrev_b32 v8, 10, v6")
    a("v_lshl_add_u32 v8, v7, 9, v8")
    a("v_lshl_add_u32 v8, v5, 4, v8")
    a("v_add_u32 v9, 4096, v8")
    a("s_waitcnt lgkmcnt(0)"); lg.clear()
    a("s_barrier")
    for w in range(4): D(f"ds_read_b64 {vr(48+2*w,2)}, v14 offset:{128*w}", "st")
    for i in range(8):
        a(f"v_lshlrev_b32 v{ACC+2*i}, 16, v{H8+i}")
        a(f"v_and_b32 v{ACC+2*i+1}, 0xffff0000, v{H8+i}")
    WL("st")
    a("v_add_f32 v48, v48, v50")
    a("v_add_f32 v49, v49, v51")
    a("v_add_f32 v52, v52, v54")
    a("v_add_f32 v53, v53, v55")
    a("v_add_f32 v48, v48, v52")
    a("v_add_f32 v49, v49, v53")
    a(f"v_mul_f32 v48, {hexf(1.0/448)}, v48")
    a(f"v_mul_f32 v49, {hexf(1.0/448)}, v49")
    a("v_fma_f32 v49, -v48, v48, v49")
    a("v_max_f32 v49, 0, v49")
    a(f"v_add_f32 v49, {hexf(1e-5)}, v49")
    a("v_rsq_f32 v49, v49")
    a("s_nop 0")
    a(f"v_mul_f32 v49, {hexf(LOG2E)}, v49")
    a("v_mul_f32 v48, -v48, v49")
    for i in range(16): a(f"v_fma_f32 v{ACC+i}, v{ACC+i}, v49, v48")
    for i in range(8): a(f"v_cvt_pk_bf16_f32 v{32+i}, v{ACC+2*i}, v{ACC+2*i+1}")
    nstamp(a, "hnst")
    V("global_store_dwordx4 v8, v[32:35], s[54:55]", "hnst")
    a("s_mov_b32 exec_hi, 0xffff")
    V("global_store_dwordx4 v9, v[36:39], s[54:55]", "hnst")
    a("s_mov_b32 exec_hi, -1")
    a("v_mov_b32 v10, 0")
    a("v_mov_b32 v11, 1")
    a("s_lshl_b32 s53, s3, 6")
    a(f"s_add_u32 s53, s53, {L_BIAS}")
    a("v_lshl_add_u32 v12, v2, 3, s53")
    for q in range(8): D(f"ds_read_b64 {vr(48+2*q,2)}, v12 offset:{16*(q&3) + 256*(q>>2)}", "bias")
    def signal(off, lab):
        a("s_waitcnt vmcnt(0)"); vm.clear()
        a("s_cmp_eq_u32 s68, 0")
        a(f"s_cbranch_scc1 {lab}_fence")
        a("s_mov_b64 exec, 1")
        V(f"global_atomic_add v10, v11, s[66:67] offset:{off}", "sig")
        a("s_mov_b64 exec, -1")
        a.label(f"{lab}_done")
    def poll(off, target, lab):
        a("s_cmp_eq_u32 s68, 0")
        a(f"s_cbranch_scc1 {lab}_fence")
        a("s_mov_b32 s52, 0")
        a.label(f"{lab}_loop")
        a(f"s_load_dword s53, s[66:67], {off} glc")
        a("s_add_u32 s52, s52, 1")
        a("s_waitcnt lgkmcnt(0)"); lg.clear()
        a(f"s_cmp_ge_u32 s53, {target}")
        a(f"s_cbranch_scc1 {lab}_done")
        a(f"s_cmp_lt_u32 s52, {SPIN_LIMIT}")
        a(f"s_cbranch_scc1 {lab}_loop")
        a.label(f"{lab}_done")
    signal(0, "KB_sg1")
    nstamp(a, "sig1")
    a("s_cmp_eq_u32 s5, 7")
    a("s_cbranch_scc1 KB_fin")
    T0, A2, A1, HOLD = 24, 48, 80, 144
    NW1B = 40
    for i in range(NW1, NW1B):
        for it in w1_items(i): emit_item(it)
    WL("bias")
    a(f"s_mov_b32 s53, {hexf(LOG2E)}")
    accs = {("A",0): A1, ("B",0): A1+16, ("B",1): A1+32, ("A",1): A1+48}
    for X, r0 in (("A", 48), ("B", 56)):
        d = accs[(X,0)]
        for i in range(8):
            a(f"v_lshlrev_b32 v{d+2*i}, 16, v{r0+i}")
            a(f"v_and_b32 v{d+2*i+1}, 0xffff0000, v{r0+i}")
        for i in range(16): a(f"v_mul_f32 v{d+i}, s53, v{d+i}")
        for i in range(16): a(f"v_mov_b32 v{accs[(X,1)]+i}, v{d+i}")
    a("s_mul_i32 s53, s4, 57344")
    a("s_lshl_b32 s52, s3, 10")
    a("s_add_u32 s53, s53, s52")
    a(f"s_add_u32 s53, s53, {HN}")
    add64(56, 8, "s53")
    a("s_mul_i32 s53, s3, 3*112*1024")
    a("s_lshl_b32 s61, s5, 14")
    a("s_add_u32 s53, s53, s61")
    a(f"s_add_u32 s53, s53, {W2F + 4096}")
    add64(58, 8, "s53")
    a("s_lshr_b32 s53, s3, 1")
    a("s_add_u32 s53, s53, 12")
    a("s_mul_i32 s53, s53, 112*1024")
    a("s_add_u32 s53, s53, s61")
    a(f"s_add_u32 s53, s53, {W2F + 4096}")
    add64(32, 8, "s53")
    a("s_mul_i32 s53, s4, 458752")
    a("s_mul_i32 s61, s5, 7168")
    a("s_add_u32 s53, s53, s61")
    a(f"s_add_u32 s53, s53, {PART}")
    add64(34, 8, "s53")
    a("s_mul_i32 s61, s3, 1536")
    add64(36, 34, "s61")
    add64(38, 36, 229376)
    a("s_and_b32 s61, s3, 1")
    a("s_mul_i32 s61, s61, 229376")
    a("s_lshr_b32 s53, s3, 1")
    a("s_lshl_b32 s53, s53, 9")
    a("s_add_u32 s61, s61, s53")
    a("s_add_u32 s61, s61, 6144")
    add64(40, 34, "s61")
    a("s_mul_i32 s61, s3, 114688")
    add64(34, 34, "s61")
    a("v_bfe_u32 v12, v0, 3, 2")
    a("v_mul_u32_u24 v12, 57344, v12")
    a("v_lshl_add_u32 v12, v2, 7, v12")
    a("v_lshl_add_u32 v12, v5, 4, v12")
    a("v_lshrrev_b32 v13, 2, v0")
    a("v_min_u32 v13, 13, v13")
    a("v_lshlrev_b32 v13, 7, v13")
    a("v_add_u32 v13, 3584, v13")
    a("v_add_u32 v14, 57344, v13")
    a("s_lshl_b32 s53, s3, 11")
    a(f"s_add_u32 s53, s53, {L_ACT}")
    a("v_add_u32 v8, s53, v1")
    a(f"v_add_u32 v9, {L_ACT}, v1")
    a("s_and_b32 s53, s3, 1")
    a("s_lshl_b32 s53, s53, 14")
    a("v_add_u32 v15, s53, v9")
    poll(0, 32, "KB_pl1")
    nstamp(a, "poll1")
    def dma_items(q):
        it = [("s", f"s_add_u32 m0, s52, {L_HN + 4096*q}")]
        if q: it = [("s", "s_add_u32 s56, s56, 4096"), ("s", "s_addc_u32 s57, s57, 0")] + it
        return it + [("s", "s_nop 0"), ("v", "global_load_lds_dwordx4 v1, s[56:57] sc1", f"hn{q}")]
    a("s_lshl_b32 s52, s3, 10")
    for q in range(7):
        for it in dma_items(q): emit_item(it)
    def w2reg(q):
        if q < 8: return ar(32+4*q, 4)
        if q < 36: return w1reg(28 + q - 8)
        return w1reg(q - 36)
    def w2_items(q):
        u, ks = divmod(q, 16)
        b = 58 if u < 3 else 32
        it = []
        if ks == 8: it += [("s", f"s_add_u32 s{b}, s{b}, 8192"), ("s", f"s_addc_u32 s{b+1}, s{b+1}, 0")]
        elif ks == 0 and 0 < u < 3: it += [("s", f"s_add_u32 s{b}, s{b}, {112*1024 - 8192}"), ("s", f"s_addc_u32 s{b+1}, s{b+1}, 0")]
        it.append(("v", f"global_load_dwordx4 {w2reg(q)}, v1, s[{b}:{b+1}] offset:{1024*(ks%8) - 4096}", f"w2_{q}"))
        return it
    NM = 224
    pre = {i: [] for i in range(NM + 1)}
    post = {i: [] for i in range(NM)}
    mf = []
    hold = lambda ks: vr(HOLD+4*ks, 4)
    for X, tt in (("A",0), ("B",0), ("B",1), ("A",1)):
        d = vr(accs[(X,tt)], 16)
        for ks in range(28): mf.append(mfma32(d, w1reg(ks + (28 if X == "B" else 0)), hold(ks), d))
    act0 = lambda ks: vr(HOLD+4*ks, 4)
    act1 = lambda ks: vr(HOLD+64+4*ks, 4) if ks < 12 else vr(A1+4*(ks-12), 4)
    ring = lambda ks: vr(A1+16+4*(ks & 7), 4)
    units = [(0, act0, 36, 0), (1, act0, 36, 1), (2, act0, 36, 2), (3, ring, 40, 0), (0, act1, 38, 0), (1, act1, 38, 1), (2, act1, 38, 2)]
    for ui, (u, breg, sb_, no) in enumerate(units):
        d = vr(A2+16*(ui & 1), 16)
        for ks in range(16): mf.append(mfma32(d, w2reg(16*u+ks), breg(ks), "0" if ks == 0 else d))
    AHEAD = 4
    rd0 = lambda ks: ("d", f"ds_read_b128 {hold(ks)}, v1 offset:{L_HN + 1024*ks}", f"h0_{ks}")
    rd1 = lambda ks: ("d", f"ds_read_b128 {hold(ks)}, v1 offset:{L_HN + 28672 + 1024*ks}", f"h1_{ks}")
    pre[0] += [("wv", "hn2"), ("s", "s_barrier")] + [rd0(ks) for ks in range(AHEAD)]
    for ks in range(28):
        if ks + AHEAD == 12: post[ks] += [("wv", "hn6"), ("s", "s_barrier")]
        if ks + AHEAD < 28: post[ks].append(rd0(ks + AHEAD))
        pre[ks].append(("wl", f"h0_{ks}"))
    for q in range(7, 14): post[2*(q-7)] += dma_items(q)
    pre[0].append(("wv", "w1_27"))
    for i in range(NW1B, 56): post[14 + 2*(i - NW1B)] += w1_items(i)
    pre[28] += [("wv", "hn13"), ("s", "s_barrier")]
    for ks in range(28):
        pre[28+ks].append(("wv", f"w1_{28+ks}"))
        post[28+ks].append(rd1(ks))
    for q in range(8): post[46 + q] += w2_items(q)
    if OPT.get('touch', 1):
        t0_, dt_ = OPT.get('t0', 47), OPT.get('dt', 6)
        for k in range(8):
            post[t0_ + dt_*k].append(("v", f"global_load_dword v4, v{13 + (k >> 2)}, s[34:35] offset:{1792*(k & 3) - 3584} sc1", "touch"))
    for ks in range(0, 28, 4): pre[56+ks].append(("wl", f"h1_{min(ks+3, 27)}"))
    for q in range(8, 64): post[56 + 2*(q-8)] += w2_items(q)
    for q in range(64): pre[112+q].append(("wv", f"w2_{q}"))
    fill = []
    def mish_items(X, tt, start, idx):
        x0 = accs[(X,tt)]; pk = x0
        L = []
        for g in range(4):
            t = T0 + 4*(g & 1); x = x0 + 4*g
            L += [f"v_exp_f32 v{t+i}, v{x+i}" for i in range(4)]
            L += [f"v_add_f32 v{t+i}, 1.0, v{t+i}" for i in range(4)]
            L += [f"v_fma_f32 v{t+i}, v{t+i}, v{t+i}, 1.0" for i in range(4)]
            L += [f"v_rcp_f32 v{t+i}, v{t+i}" for i in range(4)]
            L += [f"v_mul_f32 v{t+i}, v{t+i}, v{x+i}" for i in range(4)]
            L += [f"v_fmac_f32 v{x+i}, -2.0, v{t+i}" for i in range(4)]
            L += [f"v_cvt_pk_bf16_f32 v{pk+2*g+i}, v{x+2*i}, v{x+2*i+1}" for i in range(2)]
        it = [("s", x, start) for x in L]
        off = tt*16384 + (8192 if X == "B" else 0)
        it += [("d", f"ds_write_b128 v8, {vr(pk+4*hf,4)} offset:{off + 1024*hf}", start) for hf in range(2)]
        return it
    fill += mish_items("A", 0, 31, 0) + mish_items("B", 0, 59, 1)
    fill += [("bar", "b1", 0)]
    fill += mish_items("B", 1, 87, 2) + mish_items("A", 1, 115, 3)
    fill += [("bar", "b2", 0)]
    rda = lambda reg, addr, tt, ks, tag: ("d", f"ds_read_b128 {reg}, {addr} offset:{16384*tt + 1024*ks}", tag)
    need_bar = {}
    for ks in range(16):
        post[101 + ks].append(rda(act0(ks), "v9", 0, ks, f"a0_{ks}"))
        pre[112+ks].append(("wl", f"a0_{ks}"))
    need_bar[101] = "b1"
    for ks in range(16):
        post[155 + ks].append(rda(ring(ks), "v15", 0, ks, f"am_{ks}"))
        pre[160+ks].append(("wl", f"am_{ks}"))
        post[161 + ks].append(rda(act1(ks), "v9", 1, ks, f"a1_{ks}"))
        pre[176+ks].append(("wl", f"a1_{ks}"))
    need_bar[155] = "b2"
    outq = []
    for ui, (u, breg, sb_, no) in enumerate(units):
        d = A2 + 16*(ui & 1); pk = d
        L = []
        for hf in range(2):
            p4 = pk + 4*hf
            L += [("s", f"v_cvt_pk_bf16_f32 v{p4+i}, v{d+8*hf+2*i}, v{d+8*hf+2*i+1}") for i in range(4)]
            L += [("v", f"global_store_dwordx4 v12, {vr(p4,4)}, s[{sb_}:{sb_+1}] offset:{512*no + 256*hf}", "pst")]
        outq.append((112 + 16*ui + 18, L))
    done_bar = set()
    fq = list(fill); cur = [0]
    def emit_fill(it):
        if it[0] == "bar":
            a("s_waitcnt lgkmcnt(0)"); lg.clear()
            a("s_barrier"); done_bar.add(it[1]); print("note: barrier", it[1], "after MFMA", cur[0])
            return 8
        if it[0] == "d": D(it[1])
        else: a(it[1])
        return cost(it[1])
    credit = 0.0
    for i in range(NM):
        cur[0] = i
        assert not outq or i < outq[0][0] + 12, i
        for it in pre[i]: emit_item(it)
        a(mf[i])
        nstamp(a, f"m{i}")
        credit = max(min(credit, 0), -8) + 24
        if i in need_bar:
            c0 = credit
            while need_bar[i] not in done_bar: credit -= emit_fill(fq.pop(0))
            if c0 != credit: print(f"note: {c0 - credit:.0f} cycles of activation work flushed before MFMA {i}")
        for k, it in enumerate(post[i]):
            emit_item(it)
            credit -= (4 if it[0] in "vd" else 0) if k == 0 else (10 if it[0] in "vd" else 4)
        while outq and outq[0][0] <= i and credit > 0:
            L = outq[0][1]
            it = L.pop(0); emit_item(it); credit -= cost(it[1])
            if not L: outq.pop(0)
        while fq and credit > 0 and (fq[0][0] == "bar" or fq[0][2] <= i):
            credit -= emit_fill(fq.pop(0))
    assert not fq, len(fq)
    a("s_nop 7")
    a("s_nop 3")
    for _, L in outq:
        for it in L: emit_item(it)
    nstamp(a, "g2end")
    signal(128, "KB_sg2")
    nstamp(a, "sig2")
    a.label("KB_fin")
    R, SUM, HF = 144, 80, 96
    a("s_mul_i32 s53, s4, 458752")
    a("s_mul_i32 s52, s5, 57344")
    a("s_add_u32 s53, s53, s52")
    a("s_mul_i32 s52, s3, 1792")
    a("s_add_u32 s53, s53, s52")
    a(f"s_add_u32 s53, s53, {PART}")
    add64(56, 8, "s53")
    for i in range(16): a(f"v_mov_b32 v{SUM+i}, 0")
    for i in range(8):
        a(f"v_lshlrev_b32 v{HF+2*i}, 16, v{H8+i}")
        a(f"v_and_b32 v{HF+2*i+1}, 0xffff0000, v{H8+i}")
    a("v_mul_u32_u24 v12, 896, v5")
    a("v_lshl_add_u32 v12, v6, 5, v12")
    a("v_lshl_add_u32 v12, v7, 4, v12")
    a("s_mul_i32 s60, s6, 8*896")
    a("s_mul_i32 s61, s3, 224")
    a("s_add_u32 s60, s60, s61")
    a("s_mov_b32 s62, 0x00003f80")
    a("s_mov_b32 s63, 0x3f800000")
    a(f"s_mov_b32 s61, {hexf(LN2F)}")
    poll(128, 28, "KB_pl2")
    nstamp(a, "poll2")
    vm.clear(); vm.issue("older")
    for p in range(7):
        if p: add64(56, 56, 7168)
        V(f"global_load_dwordx4 {vr(R+8*p,4)}, v1, s[56:57] sc1", f"p{p}")
        V(f"global_load_dwordx4 {vr(R+8*p+4,4)}, v1, s[56:57] offset:1024 sc1", f"p{p}")
    for p in range(7):
        WV(f"p{p}")
        for i in range(8):
            a(f"v_dot2c_f32_bf16 v{SUM+2*i}, s62, v{R+8*p+i}")
            a(f"v_dot2c_f32_bf16 v{SUM+2*i+1}, s63, v{R+8*p+i}")
    a("s_nop 2")
    for i in range(16): a(f"v_fmac_f32 v{HF+i}, s61, v{SUM+i}")
    for i in range(8): a(f"v_cvt_pk_bf16_f32 v{32+i}, v{HF+2*i}, v{HF+2*i+1}")
    for b in (32, 36):
        a(f"v_mov_b32 v40, v{b+2}")
        a(f"v_mov_b32 v41, v{b+3}")
        a("s_nop 0")
        a(f"v_mov_b32_dpp v{b+2}, v{b} row_ror:8 row_mask:0xf bank_mask:0x3")
        a(f"v_mov_b32_dpp v{b+3}, v{b+1} row_ror:8 row_mask:0xf bank_mask:0x3")
        a(f"v_mov_b32_dpp v{b}, v40 row_ror:8 row_mask:0xf bank_mask:0xc")
        a(f"v_mov_b32_dpp v{b+1}, v41 row_ror:8 row_mask:0xf bank_mask:0xc")
    a("buffer_store_dwordx4 v[32:35], v12, s[24:27], s60 offen")
    a("s_mov_b32 exec_hi, 0xffff")
    a("buffer_store_dwordx4 v[36:39], v12, s[24:27], s60 offen offset:128")
    fin(a, 1, 8)
    a.label("KB_end")
    a("s_endpgm")

    a.label("KB_xcc")
    a("s_mov_b32 s52, 0")
    a("v_and_b32 v10, 7, v0")
    a("v_lshlrev_b32 v10, 2, v10")
    a.label("KB_xcc_loop")
    a("v_cmp_eq_u32 vcc, 0, v30")
    a("s_cbranch_vccz KB_xcc_known")
    a("global_load_dword v30, v10, s[62:63] sc1")
    a("s_add_u32 s52, s52, 1")
    a("s_waitcnt vmcnt(0)")
    a(f"s_cmp_lt_u32 s52, {SPIN_LIMIT}")
    a("s_cbranch_scc1 KB_xcc_loop")
    a.label("KB_xcc_known")
    a("v_cmp_ne_u32 vcc, s69, v30")
    if not force_fence: a("s_cbranch_vccz KB_xcc_done")
    a("s_mov_b32 s68, 0")
    a("s_branch KB_xcc_done")
    for lab, off in (("KB_sg1", 0), ("KB_sg2", 128)):
        a.label(f"{lab}_fence")
        a("buffer_wbl2 sc1")
        a("s_waitcnt vmcnt(0)")
        a("s_mov_b64 exec, 1")
        a(f"global_atomic_add v10, v11, s[66:67] offset:{off} sc1")
        a("s_mov_b64 exec, -1")
        a(f"s_branch {lab}_done")
    for lab, off, target in (("KB_pl1", 0, 32), ("KB_pl2", 128, 28)):
        a.label(f"{lab}_fence")
        a("s_mov_b32 s52, 0")
        a.label(f"{lab}_floop")
        a(f"global_load_dword v31, v10, s[66:67] offset:{off} sc1")
        a("s_add_u32 s52, s52, 1")
        a("s_waitcnt vmcnt(0)")
        a("v_readfirstlane_b32 s53, v31")
        a("s_nop 0")
        a(f"s_cmp_ge_u32 s53, {target}")
        a(f"s_cbranch_scc1 {lab}_fdone")
        a(f"s_cmp_lt_u32 s52, {SPIN_LIMIT}")
        a(f"s_cbranch_scc1 {lab}_floop")
        a.label(f"{lab}_fdone")
        a("buffer_inv sc1")
        a("s_waitcnt vmcnt(0) lgkmcnt(0)")
        a(f"s_branch {lab}_done")

    a.label("KB_slow")
    vm.q = list(vm_at_slow)
    a("s_waitcnt vmcnt(0)"); vm.clear()
    for k, it in enumerate(wo_items(NPRE, 98) + late):
        emit_item(it)
        if it[0] == "s" and "m0" in it[1]: a("s_nop 0")
        if len(vm.q) >= 32: a("s_waitcnt vmcnt(0)"); vm.clear()
    MX = P + 8
    for t in range(4): a(f"v_mov_b32 v{MX+t}, 0xff800000")
    for i in range(64): a(f"v_accvgpr_write_b32 a{i}, 0")
    a("s_sub_u32 s52, s52, 4096")
    a("s_mov_b32 s61, 0")
    a.label("KB_s1")
    a("s_add_u32 s53, s52, s61")
    for i in range(2): a(f"buffer_load_dwordx4 {vr(KVR+4*i,4)}, v1, s[16:19], s53 offen offset:{1024*i}")
    a("s_waitcnt vmcnt(0)")
    for t in range(4):
        a(mfma32(vr(S,16), vr(KVR,4), vr(Q+8*t,4), "0"))
        a(mfma32(vr(S,16), vr(KVR+4,4), vr(Q+8*t+4,4), vr(S,16)))
        a("s_nop 7")
        a("s_nop 3")
        for i in range(8): a(f"v_max3_f32 v{MX+t}, v{S+2*i}, v{S+2*i+1}, v{MX+t}")
    a("s_add_u32 s61, s61, 4096")
    a("s_cmp_lt_u32 s61, 0x10000")
    a("s_cbranch_scc1 KB_s1")
    for t in range(4):
        half_sum(a, MX+t, 12, "v_max_f32")
        a(f"s_add_u32 s53, s3, {t+1}")
        a("s_and_b32 s53, s53, 3")
        a("s_lshl_b32 s53, s53, 10")
        a("s_lshl_b32 s61, s3, 8")
        a("s_add_u32 s53, s53, s61")
        a("v_add_u32 v12, s53, v3")
        a(f"ds_write_b32 v12, v{MX+t}")
    a("s_waitcnt lgkmcnt(0)")
    a("s_barrier")
    for t in range(4):
        a(f"s_add_u32 s53, s3, {t+1}")
        a("s_and_b32 s53, s53, 3")
        a("s_lshl_b32 s53, s53, 10")
        a("v_add_u32 v12, s53, v3")
        for w in range(4): a(f"ds_read_b32 v{S+w}, v12 offset:{256*w}")
        a("s_waitcnt lgkmcnt(0)")
        a(f"v_max3_f32 v{MX+t}, v{S}, v{S+1}, v{S+2}")
        a(f"v_max_f32 v{MX+t}, v{MX+t}, v{S+3}")
    a("s_barrier")
    a("s_mov_b32 s61, 0")
    a.label("KB_s2")
    a("s_add_u32 s53, s52, s61")
    for i in range(4): a(f"buffer_load_dwordx4 {vr(KVR+4*i,4)}, v1, s[16:19], s53 offen offset:{1024*i}")
    a("s_waitcnt vmcnt(0)")
    for t in range(4):
        a(mfma32(vr(S,16), vr(KVR,4), vr(Q+8*t,4), "0"))
        a(mfma32(vr(S,16), vr(KVR+4,4), vr(Q+8*t+4,4), vr(S,16)))
        a("s_nop 7")
        a("s_nop 3")
        for i in range(16): a(f"v_sub_f32 v{S+i}, v{S+i}, v{MX+t}")
        for i in range(16): a(f"v_exp_f32 v{S+i}, v{S+i}")
        a("s_nop 0")
        for i in range(8): a(f"v_cvt_pk_bf16_f32 v{P+i}, v{S+2*i}, v{S+2*i+1}")
        a("s_nop 1")
        a(mfma32(ar(16*t,16), vr(KVR+8,4), vr(P,4), ar(16*t,16)))
        a(mfma32(ar(16*t,16), vr(KVR+12,4), vr(P+4,4), ar(16*t,16)))
    a("s_add_u32 s61, s61, 4096")
    a("s_cmp_lt_u32 s61, 0x10000")
    a("s_cbranch_scc1 KB_s2")
    a("s_nop 7")
    a("s_nop 3")
    for t in range(3):
        for q in range(4): a(redw(t, q)[1])
    a("s_branch KB_red")
    a.label("KB_code_end")
    return kd(n, 512, 96, 256), f"; @launch kernel={n} grid=(256,1,1) block=(256,1,1) lds={KB_LDS}"


def build(force_slow=False, extra=0, force_fence=False):
    a = Asm()
    parts = [gen_k1(a), gen_kb(a, force_slow, force_fence)]
    launches = [p[1] for p in parts]
    kds = [p[0] for p in parts]
    if extra:
        header(a, "nop_kernel")
        a("s_endpgm")
        kds.append(kd("nop_kernel", 8, 16, 8))
        launches += ["; @launch kernel=nop_kernel grid=(256,1,1) block=(64,1,1) lds=0"] * extra
    out = "\n".join(launches) + "\n"
    out += '.amdgcn_target "amdgcn-amd-amdhsa--gfx950"\n.text\n'
    out += a.text()
    out += '.section .rodata,"a"\n' + "".join(kds)
    return out

if __name__ == "__main__":
    import argparse
    ap = argparse.ArgumentParser()
    ap.add_argument("-o", default="v2.s")
    ap.add_argument("--slow", action="store_true")
    ap.add_argument("--fence", action="store_true")
    ap.add_argument("--opt", default="")
    ap.add_argument("--extra", type=int, default=0)
    ap.add_argument("--stamps", default="", help="up to six stamp names for the fused kernel")
    args = ap.parse_args()
    for kv in args.opt.split(","):
        if kv:
            k_, _, v_ = kv.partition("=")
            OPT[k_] = int(v_) if v_ else 1
    STAMPS = bool(args.stamps)
    STAMP_SET = args.stamps.split(",")
    txt = build(args.slow, args.extra, args.fence)
    open(args.o, "w").write(txt)
    import hazard
    print("hazards:", hazard.check(txt), "waits:", 0 if STAMPS else hazard.waitcheck(txt))
```

```python
import math, struct, sys

NAME = "sequential_preLN__grouped_kv_mqa__dense_activation_mish__prompt"

QF   = 0x000000
KV   = 0x200000
KMAX = 0x240000
SYNC = 0x248000
WOF  = 0x250000
W1F  = 0x300000
W2F  = 0x500000
HN   = 0x700000
PART = 0xB00000
WS_SIZE = PART + 32*8*8*7168

X_BYTES = 2048*896
WQ_BYTES = 448*896
WK_BYTES = 448*56
W1_BYTES = 448*3584
W2_BYTES = 1792*896

def f2u(f): return struct.unpack("<I", struct.pack("<f", f))[0]
def hexf(f): return "0x%08x" % f2u(f)
LOG2E = math.log2(math.e)
QSCALE = LOG2E / math.sqrt(28.0)
ONES_BF = "0x3f803f80"

class Asm:
    def __init__(self):
        self.L = []
    def __call__(self, s):
        for ln in s.split("\n"):
            ln = ln.strip()
            if ln: self.L.append("    " + ln)
    def label(self, s): self.L.append(s + ":")
    def c(self, s): self.L.append("    ; " + s)
    def text(self): return "\n".join(self.L) + "\n"

def vr(b, n=1): return f"v{b}" if n == 1 else f"v[{b}:{b+n-1}]"
def ar(b, n=1): return f"a{b}" if n == 1 else f"a[{b}:{b+n-1}]"
def sr(b, n=1): return f"s{b}" if n == 1 else f"s[{b}:{b+n-1}]"

def srd(a, d, lo, hi, nbytes):
    a(f"s_mov_b32 s{d}, s{lo}")
    a(f"s_mov_b32 s{d+1}, s{hi}")
    a(f"s_mov_b32 s{d+2}, {nbytes if isinstance(nbytes, str) else hex(nbytes)}")
    a(f"s_mov_b32 s{d+3}, 0x20000")

def header(a, name):
    a.L.append(f".globl {name}")
    a.L.append(".p2align 8")
    a.L.append(f".type {name},@function")
    a.label(name)

def kd(name, vgpr, sgpr, accum):
    return f""".p2align 6
.amdhsa_kernel {name}
  .amdhsa_next_free_vgpr {vgpr}
  .amdhsa_next_free_sgpr {96 if STAMPS else sgpr}
  .amdhsa_accum_offset {accum}
  .amdhsa_group_segment_fixed_size 0
  .amdhsa_kernarg_size 96
  .amdhsa_user_sgpr_count 2
  .amdhsa_user_sgpr_kernarg_segment_ptr 1
  .amdhsa_system_sgpr_workgroup_id_x 1
.end_amdhsa_kernel
"""

STAMPS = False
STAMP_BASE = 0x8000000
def stamp(a, i):
    if STAMPS: a(f"s_memrealtime s[{72+2*i}:{73+2*i}]")
STAMP_SET = []
OPT = {}
def nstamp(a, name):
    if STAMPS and name in STAMP_SET:
        i = 1 + STAMP_SET.index(name)
        a(f"{'s_memtime' if OPT.get('cyc') else 's_memrealtime'} s[{72+2*i}:{73+2*i}]")
def stamp_init(a):
    if STAMPS:
        for i in range(8): a(f"s_mov_b32 s{72+2*i}, 0")
        stamp(a, 0)
        if OPT.get("dbg"): a("s_load_dwordx2 s[92:93], s[0:1], 80")
def fin(a, kidx, wslo):
    if STAMPS and OPT.get("dbg"):
        stamp(a, 7)
        a("s_mov_b64 exec, 0xff")
        a("s_waitcnt lgkmcnt(0)")
        a("s_not_b32 s72, s72")
        a("v_mbcnt_lo_u32_b32 v1, -1, 0")
        for i in range(8):
            a(f"v_mov_b32 v2, s{72+2*i}")
            a(f"v_cmp_eq_u32 vcc, {i}, v1")
            a("v_cndmask_b32 v0, v0, v2, vcc")
        a("v_lshlrev_b32 v1, 2, v1")
        if kidx:
            a(f"s_sub_u32 s92, s92, {512 * kidx - 32}")
            a("s_subb_u32 s93, s93, 0")
        a("global_atomic_umax v1, v0, s[92:93]")
    elif STAMPS:
        stamp(a, 7)
        a("s_mov_b64 exec, 1")
        a("s_waitcnt lgkmcnt(0)")
        for i in range(8): a(f"v_mov_b32 v{i}, s{72+2*i}")
        srd(a, 68, wslo, wslo+1, 0x10000000)
        a("s_lshl_b32 s90, s2, 3")
        a("s_add_u32 s90, s90, s3")
        a(f"s_add_u32 s90, s90, {kidx*4096}")
        a("s_lshl_b32 s90, s90, 5")
        a(f"s_add_u32 s90, s90, {STAMP_BASE}")
        a("v_mov_b32 v8, 0")
        a("buffer_store_dwordx4 v[0:3], v8, s[68:71], s90 offen")
        a("buffer_store_dwordx4 v[4:7], v8, s[68:71], s90 offen offset:16")
    a("s_endpgm")

def mfma32(d, A, B, C): return f"v_mfma_f32_32x32x16_bf16 {d}, {A}, {B}, {C}"
def mfma16(d, A, B, C): return f"v_mfma_f32_16x16x32_bf16 {d}, {A}, {B}, {C}"

def half_sum(a, x, t, op="v_add_f32"):
    a(f"v_mov_b32 v{t}, v{x}")
    a("s_nop 1")
    a(f"v_permlane32_swap_b32 v{t}, v{x}")
    a("s_nop 1")
    a(f"{op} v{x}, v{x}, v{t}")

K1_X, K1_W0, K1_W4, K1_ST, K1_CS = 0, 57344, 114688, 143360, 143872
K1_LDS = 144640

def gen_k1(a):
    n = "k1_kernel"
    header(a, n)
    a("s_cmp_ge_u32 s2, 256")
    a("s_cbranch_scc1 K1_end")
    stamp_init(a)
    a("s_load_dwordx4 s[24:27], s[0:1], 0")
    a("s_load_dwordx4 s[28:31], s[0:1], 16")
    a("s_load_dwordx2 s[32:33], s[0:1], 32")
    a("s_load_dwordx2 s[34:35], s[0:1], 48")
    a("s_load_dwordx2 s[36:37], s[0:1], 64")
    a("s_load_dwordx2 s[38:39], s[0:1], 88")
    a("v_lshrrev_b32 v1, 6, v0")
    a("v_and_b32 v0, 63, v0")
    a("v_readfirstlane_b32 s3, v1")
    a("s_and_b32 s4, s2, 7")
    a("s_lshl_b32 s4, s4, 2")
    a("s_bfe_u32 s6, s2, 0x20003")
    a("s_add_u32 s4, s4, s6")
    a("s_lshr_b32 s5, s2, 5")
    a("v_lshrrev_b32 v2, 5, v0")
    a("v_bfe_u32 v3, v0, 4, 1")
    a("v_bfe_u32 v4, v0, 2, 2")
    a("v_and_b32 v5, 3, v0")
    a("v_lshrrev_b32 v6, 2, v0")
    a("v_lshlrev_b32 v7, 4, v5")
    a("s_cmp_eq_u32 s3, 4")
    a("s_cbranch_scc1 K1_w4")
    a("v_lshrrev_b32 v8, 3, v0")
    a("v_and_b32 v9, 7, v0")
    a("v_lshrrev_b32 v10, 1, v8")
    a("v_xor_b32 v9, v9, v10")
    a("s_and_b32 s6, s3, 1")
    a("s_lshl_b32 s7, s6, 2")
    a("v_xor_b32 v9, s7, v9")
    a("v_mul_u32_u24 v8, 896, v8")
    a("v_lshl_add_u32 v8, v9, 4, v8")
    a("v_mul_u32_u24 v9, 896, v6")
    a("v_add_u32 v9, v9, v7")
    a("s_lshl_b32 s40, s4, 6")
    a("s_lshl_b32 s41, s3, 4")
    a("s_add_u32 s40, s40, s41")
    a("s_mul_i32 s40, s40, 896")
    a("s_mul_i32 s41, s3, 14336")
    a("s_lshl_b32 s42, s5, 1")
    a("s_add_u32 s42, s42, s6")
    a("s_mul_i32 s43, s42, 56")
    a("s_lshr_b32 s44, s3, 1")
    a("s_mul_i32 s45, s44, 224*896")
    a("s_add_u32 s43, s43, s45")
    a("s_mul_i32 s45, s6, 28672")
    a("s_mul_i32 s46, s44, 14336")
    a("s_add_u32 s45, s45, s46")
    a(f"s_add_u32 s45, s45, {K1_W0}")
    a("s_waitcnt lgkmcnt(0)")
    srd(a, 8, 24, 25, X_BYTES)
    srd(a, 12, 26, 27, WQ_BYTES)
    srd(a, 16, 38, 39, WS_SIZE)
    a("s_cmp_ge_u32 s2, 3")
    a("s_cbranch_scc1 K1_noclr")
    for i in range(4): a(f"v_mov_b32 v{12+i}, 0")
    a("s_lshl_b32 s46, s2, 2")
    a("s_add_u32 s46, s46, s3")
    a("s_lshl_b32 s46, s46, 10")
    a(f"s_add_u32 s46, s46, {SYNC}")
    a("v_lshlrev_b32 v11, 4, v0")
    a("buffer_store_dwordx4 v[12:15], v11, s[16:19], s46 offen")
    a.label("K1_noclr")
    for j in range(14):
        a("s_mov_b32 m0, s41")
        a("s_add_u32 s41, s41, 1024")
        a("buffer_load_dwordx4 v8, s[8:11], s40 offen lds")
        a(f"s_add_u32 s40, s40, {128 if j != 6 else 8*896 - 6*128}")
        a("s_mov_b32 m0, s45")
        a("s_add_u32 s45, s45, 1024")
        a("buffer_load_dwordx4 v9, s[12:15], s43 offen lds")
        a(f"s_add_u32 s43, s43, {16*896}")
    a("v_lshlrev_b32 v10, 3, v2")
    a("v_add_u32 v10, v10, v4")
    a("v_lshlrev_b32 v10, 6, v10")
    a("v_lshl_add_u32 v10, v3, 5, v10")
    a("v_lshl_add_u32 v10, v5, 3, v10")
    a("s_mul_i32 s46, s6, 28672")
    a(f"s_add_u32 s46, s46, {K1_W0}")
    a("v_add_u32 v10, s46, v10")
    a("s_mov_b32 s47, 0")
    a("s_mul_i32 s46, s3, 14336")
    a("v_mul_u32_u24 v11, 7168, v2")
    a("v_and_b32 v12, 7, v6")
    a("v_lshl_add_u32 v11, v12, 7, v11")
    a("v_lshl_add_u32 v11, v5, 5, v11")
    a("v_add_u32 v11, s46, v11")
    stamp(a, 1)
    a("s_waitcnt vmcnt(0)")
    stamp(a, 2)
    a("s_barrier")
    stamp(a, 3)
    for kg in range(7):
        a(f"ds_read_b128 {vr(32+8*kg,4)}, v11 offset:{kg*1024}")
        a(f"ds_read_b128 {vr(36+8*kg,4)}, v11 offset:{kg*1024+16}")
    for i in range(4): a(f"v_mov_b32 v{20+i}, 0")
    a(f"s_mov_b32 s48, {ONES_BF}")
    for q in range(14):
        a(f"s_waitcnt lgkmcnt({13-q})")
        for i in range(4):
            r = 32 + 4*q + i
            a(f"v_dot2c_f32_bf16 v{20+(i&1)}, s48, v{r}")
            a(f"v_dot2c_f32_bf16 v{22+(i&1)}, v{r}, v{r}")
    a("s_nop 2")
    a("v_add_f32 v20, v20, v21")
    a("v_add_f32 v22, v22, v23")
    a("s_nop 1")
    a("v_add_f32_dpp v20, v20, v20 quad_perm:[1,0,3,2] row_mask:0xf bank_mask:0xf")
    a("v_add_f32_dpp v22, v22, v22 quad_perm:[1,0,3,2] row_mask:0xf bank_mask:0xf")
    a("s_nop 1")
    a("v_add_f32_dpp v20, v20, v20 quad_perm:[2,3,0,1] row_mask:0xf bank_mask:0xf")
    a("v_add_f32_dpp v22, v22, v22 quad_perm:[2,3,0,1] row_mask:0xf bank_mask:0xf")
    a(f"v_mul_f32 v20, {hexf(1.0/448)}, v20")
    a(f"v_mul_f32 v22, {hexf(1.0/448)}, v22")
    a("v_fma_f32 v22, -v20, v20, v22")
    a("v_max_f32 v22, 0, v22")
    a(f"v_add_f32 v22, {hexf(1e-5)}, v22")
    a("v_rsq_f32 v22, v22")
    a("s_lshl_b32 s46, s3, 6")
    a(f"s_add_u32 s46, s46, {K1_ST}")
    a("v_mul_f32 v20, -v20, v22")
    a("v_lshl_add_u32 v12, v6, 2, s46")
    a("ds_write_b32 v12, v22")
    a("ds_write_b32 v12, v20 offset:256")
    a("s_branch K1_proj")

    a.label("K1_w4")
    a("s_waitcnt lgkmcnt(0)")
    srd(a, 16, 38, 39, WS_SIZE)
    a("s_cmp_ge_u32 s5, 4")
    a("s_cbranch_scc1 K1_prep")
    a("s_lshr_b32 s47, s5, 1")
    a("s_cmp_eq_u32 s47, 0")
    a("s_cselect_b32 s12, s28, s30")
    a("s_cselect_b32 s13, s29, s31")
    a(f"s_mov_b32 s14, {WK_BYTES}")
    a("s_mov_b32 s15, 0x20000")
    a("s_add_u32 s47, s47, 1")
    a("s_and_b32 s44, s5, 1")
    a("v_mul_u32_u24 v9, 56, v6")
    a("v_add_u32 v9, v9, v7")
    a("s_mov_b32 s43, 0")
    a(f"s_mov_b32 s45, {K1_W4}")
    for j in range(28):
        a("s_mov_b32 m0, s45")
        a("s_add_u32 s45, s45, 1024")
        a("buffer_load_dwordx4 v9, s[12:15], s43 offen lds")
        a(f"s_add_u32 s43, s43, {16*56}")
    a("v_lshlrev_b32 v10, 3, v2")
    a("v_add_u32 v10, v10, v4")
    a("v_lshlrev_b32 v10, 6, v10")
    a("v_lshl_add_u32 v10, v3, 5, v10")
    a("v_lshl_add_u32 v10, v5, 3, v10")
    a(f"v_add_u32 v10, {K1_W4}, v10")
    stamp(a, 1)
    a("s_waitcnt vmcnt(0)")
    stamp(a, 2)
    a("s_barrier")
    stamp(a, 3)

    a.label("K1_proj")
    stamp(a, 4)
    a("v_and_b32 v13, 31, v0")
    a("v_bfe_u32 v14, v13, 1, 2")
    a("v_lshrrev_b32 v15, 2, v13")
    a("v_and_b32 v15, 4, v15")
    a("v_or_b32 v14, v14, v15")
    a("v_xor_b32 v14, v14, v2")
    a("v_lshrrev_b32 v15, 3, v13")
    a("v_mul_u32_u24 v15, 7168, v15")
    a("v_and_b32 v16, 7, v13")
    a("v_lshl_add_u32 v15, v16, 7, v15")
    a("s_mul_i32 s46, s44, 28672")
    a("v_add_u32 v15, s46, v15")
    for j in range(4):
        a(f"v_xor_b32 v16, {2*j}, v14")
        a(f"v_lshl_add_u32 v{24+j}, v16, 4, v15")
    a(f"s_mov_b32 s48, {ONES_BF}")
    a("v_mov_b32 v28, 0")
    a("v_mov_b32 v29, 0")
    a("s_cmp_eq_u32 s47, 2")
    a("s_cbranch_scc1 K1_projv")
    RING = 4
    def rd(ks):
        b = 32 + 8*(ks % RING)
        a(f"ds_read_b64_tr_b16 {vr(b,2)}, v10 offset:{ks*1024}")
        a(f"ds_read_b64_tr_b16 {vr(b+2,2)}, v10 offset:{ks*1024+256}")
        a(f"ds_read_b128 {vr(b+4,4)}, v{24+(ks&3)} offset:{(ks>>2)*1024}")
    def loop(swap):
        for ks in range(RING-1): rd(ks)
        for ks in range(28):
            if ks + RING - 1 < 28: rd(ks + RING - 1)
            out = min(RING - 1, 27 - ks) * 3
            a(f"s_waitcnt lgkmcnt({out})")
            b = 32 + 8*(ks % RING)
            W, X = vr(b,4), vr(b+4,4)
            C = "0" if ks == 0 else vr(64,16)
            a(mfma32(vr(64,16), X, W, C) if swap else mfma32(vr(64,16), W, X, C))
            for i in range(4): a(f"v_dot2c_f32_bf16 v{28+(i&1)}, s48, v{b+i}")
    loop(False)
    stamp(a, 5)
    a("s_nop 2")
    a("v_add_f32 v28, v28, v29")
    half_sum(a, 28, 29)
    a("s_lshl_b32 s46, s3, 7")
    a(f"s_add_u32 s46, s46, {K1_CS}")
    a("v_lshl_add_u32 v16, v13, 2, s46")
    a("ds_write_b32 v16, v28")
    a("v_lshl_add_u32 v16, v2, 4, s46")
    a("s_waitcnt lgkmcnt(0)")
    for i in range(4): a(f"ds_read_b128 {vr(32+4*i,4)}, v16 offset:{32*i}")
    a("s_barrier")
    a("s_lshl_b32 s46, s44, 7")
    a(f"s_add_u32 s46, s46, {K1_ST}")
    a("v_lshl_add_u32 v16, v13, 2, s46")
    a("ds_read_b32 v20, v16")
    a("ds_read_b32 v21, v16 offset:256")
    a("s_cmp_eq_u32 s47, 0")
    a(f"s_cselect_b32 s49, {hexf(QSCALE)}, 1.0")
    a("s_cselect_b32 s50, 0, 0x3f80")
    a("s_waitcnt lgkmcnt(0)")
    a("v_mul_f32 v20, s49, v20")
    a("v_mul_f32 v21, s49, v21")
    for i in range(16):
        a(f"v_mul_f32 v{64+i}, v{64+i}, v20")
        a(f"v_fmac_f32 v{64+i}, v{32+i}, v21")
    for i in range(8): a(f"v_cvt_pk_bf16_f32 v{48+i}, v{64+2*i}, v{65+2*i}")
    a("v_cmp_ne_u32 s[52:53], 0, v2")
    a("s_nop 1")
    a("v_cndmask_b32 v54, v54, 0, s[52:53]")
    a("v_cndmask_b32 v55, v55, 0, s[52:53]")
    a("s_cmp_eq_u32 s47, 0")
    a("s_cbranch_scc0 K1_epk")
    a("v_lshrrev_b32 v16, 3, v13")
    a("v_lshlrev_b32 v16, 13, v16")
    a("v_lshl_add_u32 v16, v2, 9, v16")
    a("v_and_b32 v17, 7, v13")
    a("v_lshl_add_u32 v16, v17, 4, v16")
    a("s_lshl_b32 s46, s4, 3")
    a("s_lshl_b32 s49, s44, 2")
    a("s_add_u32 s46, s46, s49")
    a("s_lshl_b32 s46, s46, 13")
    a("s_lshr_b32 s49, s42, 2")
    a("s_lshl_b32 s49, s49, 11")
    a("s_add_u32 s46, s46, s49")
    a("s_and_b32 s49, s42, 3")
    a("s_lshl_b32 s49, s49, 7")
    a("s_add_u32 s46, s46, s49")
    if QF: a(f"s_add_u32 s46, s46, {QF}")
    a("buffer_store_dwordx4 v[48:51], v16, s[16:19], s46 offen")
    a("buffer_store_dwordx4 v[52:55], v16, s[16:19], s46 offen offset:1024")
    fin(a, 0, 38)
    a.label("K1_epk")
    a("v_mov_b32 v20, 0")
    for i in range(8): a(f"v_dot2c_f32_bf16 v20, v{48+i}, v{48+i}")
    a("v_mov_b32 v22, s50")
    a("v_cndmask_b32 v54, v54, v22, s[52:53]")
    a("s_nop 1")
    half_sum(a, 20, 21)
    a("s_nop 1")
    for m in ("quad_perm:[1,0,3,2]", "quad_perm:[2,3,0,1]", "row_half_mirror", "row_mirror"):
        a(f"v_max_f32_dpp v20, v20, v20 {m} row_mask:0xf bank_mask:0xf")
        a("s_nop 1")
    a("v_mov_b32 v21, v20")
    a("s_nop 1")
    a("v_permlane16_swap_b32 v21, v20")
    a("s_nop 1")
    a("v_max_f32 v20, v20, v21")
    a("s_lshl_b32 s46, s4, 1")
    a("s_add_u32 s46, s46, s44")
    a("s_lshl_b32 s49, s46, 2")
    a(f"s_add_u32 s49, s49, {KMAX}")
    a("s_lshl_b32 s46, s46, 12")
    a(f"s_add_u32 s46, s46, {KV}")
    a("v_lshlrev_b32 v16, 4, v0")
    a("v_mov_b32 v17, 0")
    a("buffer_store_dwordx4 v[48:51], v16, s[16:19], s46 offen")
    a("buffer_store_dwordx4 v[52:55], v16, s[16:19], s46 offen offset:1024")
    a("s_mov_b64 exec, 1")
    a("buffer_store_dword v20, v17, s[16:19], s49 offen")
    fin(a, 0, 38)
    a.label("K1_projv")
    loop(True)
    stamp(a, 5)
    a("s_nop 2")
    a("v_add_f32 v28, v28, v29")
    half_sum(a, 28, 29)
    a("s_barrier")
    a("s_lshl_b32 s46, s44, 7")
    a(f"s_add_u32 s46, s46, {K1_ST}")
    a("v_lshl_add_u32 v16, v2, 4, s46")
    for i in range(4): a(f"ds_read_b128 {vr(32+4*i,4)}, v16 offset:{32*i}")
    for i in range(4): a(f"ds_read_b128 {vr(48+4*i,4)}, v16 offset:{256+32*i}")
    a("s_waitcnt lgkmcnt(0)")
    for i in range(16):
        a(f"v_mul_f32 v{64+i}, v{64+i}, v{32+i}")
        a(f"v_fmac_f32 v{64+i}, v{48+i}, v28")
    for i in range(8): a(f"v_cvt_pk_bf16_f32 v{48+i}, v{64+2*i}, v{65+2*i}")
    a("v_cmp_eq_u32 s[52:53], 28, v13")
    a(f"v_mov_b32 v21, {ONES_BF}")
    a("s_nop 0")
    a("v_cndmask_b32 v21, 0, v21, s[52:53]")
    a("v_cmp_lt_u32 s[52:53], 27, v13")
    a("s_nop 1")
    for i in range(8): a(f"v_cndmask_b32 v{48+i}, v{48+i}, v21, s[52:53]")
    a("s_lshl_b32 s46, s4, 1")
    a("s_add_u32 s46, s46, s44")
    a("s_lshl_b32 s46, s46, 12")
    a(f"s_add_u32 s46, s46, {KV}")
    a("v_lshlrev_b32 v16, 4, v0")
    a("buffer_store_dwordx4 v[48:51], v16, s[16:19], s46 offen offset:2048")
    a("buffer_store_dwordx4 v[52:55], v16, s[16:19], s46 offen offset:3072")
    fin(a, 0, 38)

    a.label("K1_prep")
    a("s_lshl_b32 s40, s4, 2")
    a("s_add_u32 s40, s40, s5")
    a("s_sub_u32 s40, s40, 4")
    a("s_cmp_ge_u32 s40, 126")
    a("s_cbranch_scc1 K1_end")
    a("v_lshlrev_b32 v10, 2, v2")
    a("v_add_u32 v10, v10, v4")
    a("v_lshlrev_b32 v10, 6, v10")
    a("v_lshl_add_u32 v10, v3, 5, v10")
    a("v_lshl_add_u32 v10, v5, 3, v10")
    a("s_mov_b32 s50, 512")
    a("s_mov_b32 s51, 1024")
    a("s_mov_b32 s52, 2048")
    a("s_mov_b32 s53, 1024")
    a("s_cmp_ge_u32 s40, 56")
    a("s_cbranch_scc1 K1_prep2")
    srd(a, 12, 34, 35, W1_BYTES)
    a("s_mov_b32 s41, 3584")
    a("s_lshl_b32 s43, s40, 6")
    a("s_mul_i32 s46, s40, 28672")
    a(f"s_add_u32 s46, s46, {W1F}")
    a("s_branch K1_prep4")
    a.label("K1_prep2")
    a("s_cmp_ge_u32 s40, 112")
    a("s_cbranch_scc1 K1_prep3")
    srd(a, 12, 36, 37, W2_BYTES)
    a("s_mov_b32 s41, 896")
    a("s_sub_u32 s40, s40, 56")
    a("s_lshr_b32 s6, s40, 2")
    a("s_and_b32 s7, s40, 3")
    a("s_mul_i32 s43, s7, 448*896")
    a("s_lshl_b32 s44, s6, 6")
    a("s_add_u32 s43, s43, s44")
    a("s_mul_i32 s46, s40, 28672")
    a(f"s_add_u32 s46, s46, {W2F}")
    a("s_branch K1_prep4")
    a.label("K1_prep3")
    srd(a, 12, 32, 33, WQ_BYTES)
    a("s_mov_b32 s41, 896")
    a("s_sub_u32 s40, s40, 112")
    a("s_lshl_b32 s43, s40, 6")
    a("s_lshl_b32 s6, s40, 1")
    for r in (46, 53):
        a("s_mul_i32 s7, s6, 37")
        a("s_lshr_b32 s7, s7, 8")
        a(f"s_mul_i32 s{r}, s7, {100352 - 7*1024}")
        a("s_lshl_b32 s7, s6, 10")
        a(f"s_add_u32 s{r}, s{r}, s7")
        a("s_add_u32 s6, s6, 1")
    a("s_sub_u32 s53, s53, s46")
    a(f"s_add_u32 s46, s46, {WOF}")
    a("v_lshrrev_b32 v10, 4, v0")
    a("v_lshlrev_b32 v10, 3, v10")
    a("v_add_u32 v10, v10, v4")
    a("v_lshlrev_b32 v10, 6, v10")
    a("v_lshl_add_u32 v10, v5, 3, v10")
    a("s_mov_b32 s50, 256")
    a("s_mov_b32 s51, 32")
    a("s_mov_b32 s52, 7168")
    a.label("K1_prep4")
    a("v_mul_lo_u32 v9, v6, s41")
    a("v_add_u32 v9, v9, v7")
    a("s_lshl_b32 s41, s41, 4")
    a(f"s_mov_b32 s45, {K1_W4}")
    for j in range(28):
        a("s_mov_b32 m0, s45")
        a("s_add_u32 s45, s45, 1024")
        a("buffer_load_dwordx4 v9, s[12:15], s43 offen lds")
        a("s_add_u32 s43, s43, s41")
    a(f"v_add_u32 v10, {K1_W4}, v10")
    a("v_add_u32 v11, s50, v10")
    a("v_add_u32 v12, s51, v10")
    a("v_add_u32 v13, s51, v11")
    a("v_lshlrev_b32 v16, 4, v0")
    a("s_add_u32 s47, s46, s53")
    stamp(a, 1)
    a("s_waitcnt vmcnt(0)")
    stamp(a, 2)
    a("s_barrier")
    stamp(a, 3)
    def prd(p):
        b = 32 + 8*(p % 4)
        a(f"ds_read_b64_tr_b16 {vr(b,2)}, v10 offset:{p*2048}")
        a(f"ds_read_b64_tr_b16 {vr(b+2,2)}, v11 offset:{p*2048}")
        a(f"ds_read_b64_tr_b16 {vr(b+4,2)}, v12 offset:{p*2048}")
        a(f"ds_read_b64_tr_b16 {vr(b+6,2)}, v13 offset:{p*2048}")
    prd(0); prd(1)
    for p in range(14):
        if p + 2 < 14: prd(p + 2)
        a(f"s_waitcnt lgkmcnt({4*min(2, 13-p)})")
        b = 32 + 8*(p % 4)
        a(f"buffer_store_dwordx4 {vr(b,4)}, v16, s[16:19], s46 offen")
        a(f"buffer_store_dwordx4 {vr(b+4,4)}, v16, s[16:19], s47 offen")
        a("s_add_u32 s46, s46, s52")
        a("s_add_u32 s47, s47, s52")
    a("s_barrier")
    fin(a, 0, 38)
    a.label("K1_end")
    a("s_endpgm")
    return kd(n, 96, 64, 96), f"; @launch kernel={n} grid=(256,1,1) block=(320,1,1) lds={K1_LDS}"

L_RED, L_OB, L_WO, L_ST, L_DUMMY, L_BIAS, L_HT = 0, 49152, 57344, 147456, 148480, 149504, 150528
L_HN, L_ACT = 0, 57344
KB_LDS = 158720
OB_STRIDE = 912
SHIFT_LIMIT = 40.0
SPIN_LIMIT = 1 << 17
LN2F = math.log(2.0)

class Cnt:
    def __init__(self, name, cap): self.q = []; self.name = name; self.cap = cap
    def issue(self, tag):
        self.q.append(tag)
        assert self.name != "vmcnt" or len(self.q) <= self.cap, (self.name, tag, len(self.q))
    def wait(self, tag):
        if tag not in self.q: return None
        k = len(self.q) - 1 - self.q[::-1].index(tag)
        n = min(len(self.q) - 1 - k, self.cap)
        self.q = self.q[len(self.q)-n:] if n else []
        return f"s_waitcnt {self.name}({n})"
    def clear(self): self.q = []

def cost(t):
    mn = t.split()[0]
    if mn.startswith(("v_exp", "v_rcp", "v_rsq", "v_sqrt")): return 8
    if mn.startswith(("ds_write_b128", "global_store")): return 20
    if mn.startswith(("ds_", "global_", "buffer_")): return 12
    if mn.startswith(("v_cvt_pk", "v_fma_")): return 5
    return 4.3

def gen_kb(a, force_slow=False, force_fence=False):
    n = "kb_kernel"
    header(a, n)
    vm = Cnt("vmcnt", 63); lg = Cnt("lgkmcnt", 15)
    def V(text, tag="-"): a(text); vm.issue(tag)
    def D(text, tag="-"): a(text); lg.issue(tag)
    def WV(tag):
        w = vm.wait(tag)
        if w: a(w)
    def WL(tag):
        w = lg.wait(tag)
        if w: a(w)
    def add64(d, s, off):
        a(f"s_add_u32 s{d}, s{s}, {off}")
        a(f"s_addc_u32 s{d+1}, s{s+1}, 0")
    XR, Q, KVR, S, P, WOV = 16, 32, 64, 96, 128, 144
    NPRE = OPT.get('npre', 0)
    a("s_cmp_ge_u32 s2, 256")
    a("s_cbranch_scc1 KB_end")
    stamp_init(a)
    a("s_load_dwordx2 s[8:9], s[0:1], 88")
    a("s_load_dwordx2 s[10:11], s[0:1], 0")
    a("s_load_dwordx2 s[12:13], s[0:1], 72")
    a("s_load_dwordx2 s[14:15], s[0:1], 56")
    a("v_lshrrev_b32 v1, 6, v0")
    a("v_and_b32 v0, 63, v0")
    a("v_readfirstlane_b32 s3, v1")
    a("s_lshr_b32 s7, s2, 3")
    a("s_and_b32 s4, s2, 7")
    a("s_lshl_b32 s4, s4, 2")
    a("s_lshr_b32 s5, s7, 3")
    a("s_add_u32 s4, s4, s5")
    a("s_and_b32 s5, s7, 7")
    a("s_lshl_b32 s6, s4, 3")
    a("s_add_u32 s6, s6, s5")
    a("v_lshlrev_b32 v1, 4, v0")
    a("v_lshrrev_b32 v2, 5, v0")
    a("v_lshlrev_b32 v3, 2, v0")
    a("s_lshl_b32 s52, s3, 16")
    a(f"s_add_u32 s52, s52, {KV + 4096}")
    a("s_lshl_b32 s53, s5, 13")
    a("s_add_u32 s53, s53, s52")
    a("s_lshl_b32 s54, s6, 13")
    if QF: a(f"s_add_u32 s54, s54, {QF}")
    a(f"s_mov_b32 s55, {KMAX}")
    for t in range(4):
        a(f"s_add_u32 s{56+t}, s3, {t+1}")
        a(f"s_and_b32 s{56+t}, s{56+t}, 3")
        a(f"s_lshl_b32 s{56+t}, s{56+t}, 11")
        a(f"s_add_u32 s{56+t}, s{56+t}, s54")
    a("s_waitcnt lgkmcnt(0)")
    srd(a, 16, 8, 9, WS_SIZE)
    add64(32, 8, "s53")
    V("buffer_load_dword v4, v3, s[16:19], s55 offen", "kmax")
    for t in range(4):
        V(f"buffer_load_dwordx4 {vr(Q+8*t,4)}, v1, s[16:19], s{56+t} offen", f"q{t}")
        V(f"buffer_load_dwordx4 {vr(Q+8*t+4,4)}, v1, s[16:19], s{56+t} offen offset:1024", f"q{t}")
    def kvld(i, part):
        b = 32 + 2*(i >> 1)
        return f"global_load_dwordx4 {vr(KVR+16*(i&1)+4*part,4)}, v1, s[{b}:{b+1}] offset:{4096*(i&1) - 4096 + 1024*part}"
    for i, part in ((0,0), (0,1), (0,2), (0,3), (1,0), (1,1), (1,2), (1,3)):
        V(kvld(i, part), f"{'KV'[part>>1]}{i}")
    srd(a, 20, 10, 11, X_BYTES)
    srd(a, 24, 12, 13, X_BYTES)
    srd(a, 28, 14, 15, 3584)
    a(f"s_mov_b32 m0, {L_BIAS}")
    a("s_lshl_b32 s53, s5, 9")
    V("buffer_load_dwordx4 v1, s[28:31], s53 offen lds", "bias")
    a("v_lshlrev_b32 v10, 7, v0")
    a("s_lshl_b32 s53, s7, 2")
    a("s_add_u32 s53, s53, s3")
    a("s_cmp_lt_u32 s53, 49")
    a("s_cbranch_scc0 KB_wcode")
    a("s_lshl_b32 s54, s53, 13")
    a(f"s_add_u32 s54, s54, {WOF}")
    add64(50, 8, "s54")
    a("global_load_dword v31, v10, s[50:51]")
    a("s_branch KB_wdone")
    a.label("KB_wcode")
    a("s_getpc_b64 s[50:51]")
    a.label("KB_pc")
    a("s_sub_u32 s54, s53, 49")
    a("s_lshl_b32 s54, s54, 13")
    a("v_add_u32 v11, s54, v10")
    a("v_min_u32 v11, KB_code_end-KB_pc-4, v11")
    a("global_load_dword v31, v11, s[50:51]")
    a.label("KB_wdone")
    vm.issue("warm")
    a("s_getreg_b32 s69, hwreg(HW_REG_XCC_ID, 0, 4)")
    a("s_add_u32 s69, s69, 1")
    a("s_lshl_b32 s53, s4, 8")
    a(f"s_add_u32 s53, s53, {SYNC}")
    add64(66, 8, "s53")
    a("s_lshl_b32 s53, s4, 7")
    a(f"s_add_u32 s53, s53, {SYNC + 0x2000}")
    add64(62, 8, "s53")
    a("v_mov_b32 v11, s69")
    a("s_lshl_b32 s53, s5, 2")
    a("v_mov_b32 v12, s53")
    a("s_mov_b64 exec, 1")
    V("global_store_dword v12, v11, s[62:63] sc0 sc1", "xccpub")
    a("s_mov_b64 exec, -1")
    a("s_load_dword s70, s[66:67], 0")
    a("s_load_dword s71, s[66:67], 128")
    a("s_mul_i32 s53, s3, 100352")
    a(f"s_add_u32 s53, s53, {WOF + 4096}")
    add64(48, 8, "s53")
    def woreg(f):
        if f < 48: return ar(64+4*f, 4)
        if f < 76: return vr(WOV+4*(f-48), 4)
        if f < 92: return vr(32+4*(f-76), 4)
        return vr(WOV+4*(f-92), 4)
    VOFF = (1, 7, 9, 8)
    def wo_items(f0, f1):
        it = []
        for f in range(f0, f1):
            if f < 76:
                if f and f % 32 == 0:
                    it += [("s", "s_add_u32 s48, s48, 32768"), ("s", "s_addc_u32 s49, s49, 0")]
                it.append(("v", f"global_load_dwordx4 {woreg(f)}, v{VOFF[(f%32)//8]}, s[48:49] offset:{1024*(f%8) - 4096}", f"wo{f}"))
            else:
                g = (f - 76) // 4
                if f % 4 == 0: it.append(("s", f"s_add_u32 m0, s60, {L_WO + 1024*(f-76)}"))
                b = 50 if g & 1 else 48
                it.append(("v", f"global_load_lds_dwordx4 v{VOFF[1 + g//2]}, s[{b}:{b+1}] offset:{1024*(f%4)}", f"wo{f}"))
        return it
    def emit_item(it):
        if it[0] == "s": a(it[1])
        elif it[0] == "v": V(it[1], it[2])
        elif it[0] == "d": D(it[1], it[2])
        elif it[0] == "wv": WV(it[1])
        elif it[0] == "wl": WL(it[1])
    add64(50, 48, 65536 + 4096)
    assert NPRE <= 8
    for it in wo_items(0, NPRE): emit_item(it)
    a("v_and_b32 v5, 7, v0")
    a("v_lshrrev_b32 v6, 4, v0")
    a("v_mul_u32_u24 v7, 896, v5")
    a("v_lshl_add_u32 v7, v6, 3, v7")
    a("s_mul_i32 s53, s6, 8*896")
    a("s_mul_i32 s54, s3, 224")
    a("s_add_u32 s53, s53, s54")
    for i in range(7): V(f"buffer_load_dwordx2 {vr(XR+2*i,2)}, v7, s[20:23], s53 offen offset:{32*i}", "xr")
    a("v_add_u32 v7, 8192, v1")
    a("v_add_u32 v9, 16384, v1")
    for p in range(1, 8):
        a(f"s_add_u32 s53, s5, {p}")
        a("s_and_b32 s53, s53, 7")
        a("s_lshl_b32 s53, s53, 13")
        a("s_add_u32 s53, s53, s52")
        add64(32+2*p, 8, "s53")
    a("s_mul_i32 s60, s3, 22528")
    for t in range(3):
        a(f"s_add_u32 s53, s3, {t+1}")
        a("s_and_b32 s53, s53, 3")
        a("s_mul_i32 s53, s53, 12288")
        a(f"s_add_u32 s53, s53, {L_RED + 4096*t}")
        a(f"v_add_u32 v{13+t}, s53, v1")
    a("s_lshl_b32 s53, s7, 2")
    a("s_add_u32 s53, s53, s3")
    a("s_mul_i32 s53, s53, 12544")
    a(f"s_add_u32 s53, s53, {W1F + 4096}")
    add64(56, 8, "s53")
    add64(58, 56, W2F - W1F)
    a("s_lshr_b32 s53, s6, 2")
    a("s_mul_i32 s53, s53, 28672")
    a("s_and_b32 s54, s5, 3")
    a("s_lshl_b32 s54, s54, 7")
    a("s_add_u32 s53, s53, s54")
    a("s_mul_i32 s54, s3, 7168")
    a("s_add_u32 s53, s53, s54")
    a(f"s_add_u32 s53, s53, {HN}")
    add64(54, 8, "s53")
    a("v_lshrrev_b32 v10, 2, v0")
    a("v_lshlrev_b32 v10, 7, v10")
    a("v_and_b32 v11, 12, v3")
    a("v_add_u32 v10, v10, v11")
    a("v_add_u32 v11, 8192, v10")
    a("v_min_u32 v12, 13, v0")
    a("v_lshlrev_b32 v12, 9, v12")
    a("v_and_b32 v30, 7, v0")
    a("v_lshlrev_b32 v30, 2, v30")
    late = [("v", "global_load_dword v30, v30, s[62:63] sc1", "xcc"),
            ("v", "global_load_dword v4, v12, s[54:55] sc1", "late")]
    warm = [("v", f"global_load_dword v4, v{10 + (k >> 2)}, s[{b}:{b+1}] offset:{2048*(k & 3) - 4096}", "warm")
            for b in (56, 58) for k in range(7)][:OPT.get('nwarm', 7)]
    nstamp(a, "pro")
    WV("kmax")
    for m_ in ("quad_perm:[1,0,3,2]", "quad_perm:[2,3,0,1]", "row_half_mirror", "row_mirror"):
        a(f"v_max_f32_dpp v4, v4, v4 {m_} row_mask:0xf bank_mask:0xf")
        a("s_nop 1")
    a("v_mov_b32 v8, v4")
    a("s_nop 1")
    a("v_permlane16_swap_b32 v8, v4")
    a("s_nop 1")
    a("v_max_f32 v4, v4, v8")
    half_sum(a, 4, 8, "v_max_f32")
    a(f"v_mul_f32 v4, {hexf(1.02)}, v4")
    a("v_cmp_ne_u32 s[64:65], 0, v2")
    B0 = S + 16
    for t in range(4): a(f"v_mov_b32 v{B0+t}, 0")
    for t in range(4):
        WV(f"q{t}")
        for i in range(8): a(f"v_dot2c_f32_bf16 v{B0+t}, v{Q+8*t+i}, v{Q+8*t+i}")
    a("s_nop 2")
    for t in range(4): a(f"v_mov_b32 v{B0+4+t}, v{B0+t}")
    a("s_nop 0")
    for t in range(4): a(f"v_permlane32_swap_b32 v{B0+4+t}, v{B0+t}")
    a("s_nop 0")
    for t in range(4): a(f"v_add_f32 v{B0+t}, v{B0+t}, v{B0+4+t}")
    for t in range(4): a(f"v_mul_f32 v{B0+t}, v{B0+t}, v4")
    for t in range(4): a(f"v_sqrt_f32 v{B0+t}, v{B0+t}")
    a("s_nop 0")
    a(f"v_max3_f32 v8, v{B0}, v{B0+1}, v{B0+2}")
    a(f"v_max_f32 v8, v8, v{B0+3}")
    lim = -1.0 if force_slow else SHIFT_LIMIT
    a(f"v_cmp_nge_f32 vcc, {hexf(lim)}, v8")
    a("v_add_u32 v8, 24576, v1")
    a("s_cbranch_vccnz KB_slow")
    vm_at_slow = list(vm.q)
    for t in range(4): a(f"v_cvt_pk_bf16_f32 v{B0+t}, -v{B0+t}, 0")
    for t in range(4): a(f"v_cndmask_b32 v{Q+8*t+6}, v{Q+8*t+6}, v{B0+t}, s[64:65]")
    WV("K0")
    a(mfma32(vr(S,16), vr(KVR,4), vr(Q,4), "0"))
    a(mfma32(vr(S,16), vr(KVR+4,4), vr(Q+4,4), vr(S,16)))
    a("s_nop 7")
    a("s_nop 3")
    nstamp(a, "loop")
    slots = {}
    for i in range(16):
        if i <= 13:
            slots[(4*i+2, 0)] = [("v", kvld(i+2, 0), f"K{i+2}")]
            slots[(4*i+2, 1)] = [("v", kvld(i+2, 1), f"K{i+2}")]
        if i <= 14: slots[(4*i+2, 3)] = [("wv", f"K{i+1}")]
        if 1 <= i <= 14:
            slots[(4*i, 2)] = [("v", kvld(i+1, 2), f"V{i+1}")]
            slots[(4*i, 3)] = [("v", kvld(i+1, 3), f"V{i+1}")]
        slots[(4*i+1, 1)] = [("wv", f"V{i}")]
    for q, it in enumerate(warm): slots[(4*(1 + q*14//len(warm)), 1)] = [it]
    free = [(u, k) for u in range(OPT.get('wo0', 1), 56) for k in range(4) if (u, k) not in slots]
    side = wo_items(NPRE, 98)
    assert len(side) <= len(free), (len(side), len(free))
    for q, it in enumerate(side): slots[free[q*len(free)//len(side)]] = [it]
    lf = [(u, k) for u in range(57, 62) for k in range(4) if (u, k) not in slots]
    for q, it in enumerate(late): slots[lf[2*q]] = [it]
    def redw(t, q): return ("d", f"ds_write_b128 v{13+t}, {ar(16*t+4*q,4)} offset:{1024*q}", "red")
    for q, sl in enumerate([(62,1), (62,2), (62,3), (63,2)]): slots.setdefault(sl, []).append(redw(0, q))
    tail63 = [redw(1, q) for q in range(4)]
    slots.setdefault((63,3), []).append(tail63[0])
    for u in range(64):
        sb, pb = S + 16*(u & 1), P + 8*(u & 1)
        sn, pp = S + 16*((u+1) & 1), P + 8*((u-1) & 1)
        un, up = u + 1, u - 1
        kslot = KVR + 16*((un >> 2) & 1); qn = Q + 8*(un & 3)
        vslot = KVR + 16*((up >> 2) & 1) + 8; oa = ar(16*(up & 3), 16)
        M = [mfma32(vr(sn,16), vr(kslot,4), vr(qn,4), "0"),
             mfma32(vr(sn,16), vr(kslot+4,4), vr(qn+4,4), vr(sn,16)),
             mfma32(oa, vr(vslot,4), vr(pp,4), "0" if up < 4 else oa),
             mfma32(oa, vr(vslot+4,4), vr(pp+4,4), oa)]
        e = lambda k: f"v_exp_f32 v{sb+k}, v{sb+k}"
        c = lambda k: f"v_cvt_pk_bf16_f32 v{pb+k}, v{sb+2*k}, v{sb+2*k+1}"
        groups = [[e(0), e(1), e(2), e(3), c(0)], [e(4), c(1), e(5), e(6), e(7), c(2)],
                  [e(8), c(3), e(9), e(10), e(11), c(4)], [e(12), c(5), e(13), e(14), e(15), c(6), c(7)]]
        nstamp(a, f"u{u}")
        for k in range(4):
            if not ((u == 63 and k < 2) or (u == 0 and k >= 2)): a(M[k])
            for it in slots.get((u, k), []): emit_item(it)
            for x in groups[k]: a(x)
    emit_item(tail63[1])
    a(mfma32(ar(48,16), vr(KVR+24,4), vr(P+8,4), ar(48,16)))
    emit_item(tail63[2])
    a(mfma32(ar(48,16), vr(KVR+28,4), vr(P+12,4), ar(48,16)))
    emit_item(tail63[3])
    for q in range(4): emit_item(redw(2, q))
    a.label("KB_red")
    nstamp(a, "red")
    a("s_mul_i32 s53, s3, 12288")
    a("v_add_u32 v8, s53, v1")
    a("v_bfe_u32 v9, v0, 3, 2")
    a("s_lshl_b32 s53, s3, 2")
    a("v_add_u32 v9, s53, v9")
    a("v_mul_u32_u24 v9, 56, v9")
    a(f"v_mul_u32_u24 v10, {OB_STRIDE}, v5")
    a("v_add_u32 v9, v9, v10")
    a("v_lshl_add_u32 v9, v2, 3, v9")
    a(f"v_add_u32 v9, {L_OB}, v9")
    a(f"v_mov_b32 v11, {L_DUMMY}")
    a("v_add_u32 v12, 48, v9")
    a("v_cndmask_b32 v11, v12, v11, s[64:65]")
    a("v_lshl_add_u32 v10, v6, 4, v10")
    a(f"v_add_u32 v10, {L_OB}, v10")
    for i in range(16): a(f"v_accvgpr_read_b32 v{32+i}, a{48+i}")
    a("s_waitcnt lgkmcnt(0)"); lg.clear()
    a("s_barrier")
    for j in range(12): D(f"ds_read_b128 {vr(48+4*j,4)}, v8 offset:{L_RED+1024*j}", f"r{j//4}")
    ACC = 96
    WV("xr")
    for i in range(14):
        a(f"v_lshlrev_b32 v{ACC+2*i}, 16, v{XR+i}")
        a(f"v_and_b32 v{ACC+2*i+1}, 0xffff0000, v{XR+i}")
    for j in range(3):
        WL(f"r{j}")
        for i in range(16): a(f"v_add_f32 v{32+i}, v{32+i}, v{48+16*j+i}")
    a("v_mov_b32 v12, v44")
    a("v_mov_b32 v13, v44")
    a("s_nop 1")
    a("v_permlane32_swap_b32 v12, v13")
    a("s_nop 1")
    a("v_rcp_f32 v13, v13")
    a("s_nop 0")
    for i in range(16): a(f"v_mul_f32 v{32+i}, v{32+i}, v13")
    for i in range(8): a(f"v_cvt_pk_bf16_f32 v{48+i}, v{32+2*i}, v{33+2*i}")
    for i in range(3): D(f"ds_write_b64 v9, {vr(48+2*i,2)} offset:{16*i}")
    D("ds_write_b64 v11, v[54:55]")
    a("s_lshl_b32 s53, s5, 3")
    a("s_add_u32 s53, s53, s3")
    a("s_mul_i32 s53, s53, 28672")
    a(f"s_add_u32 s53, s53, {W1F + 4096}")
    add64(50, 8, "s53")
    a(f"s_add_u32 s53, s60, {L_WO}")
    a("v_add_u32 v8, s53, v1")
    a("s_waitcnt lgkmcnt(0)"); lg.clear()
    a("s_barrier")
    nstamp(a, "wo")
    def w1reg(i):
        return ar(64+4*i, 4) if i < 48 else ar(4*(i-48), 4)
    def w1_items(i):
        it = []
        ks = i % 28
        if i == 28: it += [("s", f"s_add_u32 s50, s50, {4*28672 - 3*8192}"), ("s", "s_addc_u32 s51, s51, 0")]
        elif ks and ks % 8 == 0: it += [("s", "s_add_u32 s50, s50, 8192"), ("s", "s_addc_u32 s51, s51, 0")]
        it.append(("v", f"global_load_dwordx4 {w1reg(i)}, v1, s[50:51] offset:{1024*(ks%8) - 4096}", f"w1_{i}"))
        return it
    for ks in range(14): D(f"ds_read_b128 {ar(4*ks,4)}, v10 offset:{64*ks}", f"o{ks}")
    WV("wo97")
    NW1 = 24
    post = {f: [] for f in range(98)}
    for i in range(NW1):
        it = w1_items(i)
        for q, x in enumerate(it): post[4*i + 3 - (len(it) - 1 - q)].append(x)
    for q in range(16): post[20 + 2*q].append(("d", f"ds_read_b128 {woreg(76+q)}, v8 offset:{1024*q}", f"wl{76+q}"))
    for q in range(6): post[56 + 2*q].append(("d", f"ds_read_b128 {woreg(92+q)}, v8 offset:{1024*(16+q)}", f"wl{92+q}"))
    for f in range(98):
        ks, tile = divmod(f, 7)
        if tile == 0: WL(f"o{ks}")
        if f >= 76: WL(f"wl{f}")
        a(mfma16(vr(ACC+4*tile,4), woreg(f), ar(4*ks,4), vr(ACC+4*tile,4)))
        for it in post[f]: emit_item(it)
    nstamp(a, "woend")
    H = 32
    a("v_and_b32 v14, 15, v0")
    a("v_lshlrev_b32 v14, 3, v14")
    a(f"v_add_u32 v14, {L_ST}, v14")
    a("s_lshl_b32 s53, s3, 7")
    a("v_add_u32 v15, s53, v14")
    a("s_mul_i32 s53, s3, 1792")
    a(f"s_add_u32 s53, s53, {L_HT}")
    a("v_and_b32 v8, 1, v6")
    a("v_lshlrev_b32 v8, 7, v8")
    a("v_lshl_add_u32 v8, v5, 4, v8")
    a("v_lshl_add_u32 v8, v2, 3, v8")
    a("v_add_u32 v8, s53, v8")
    a("v_add_u32 v9, s53, v1")
    for i in range(14): a(f"v_cvt_pk_bf16_f32 v{H+i}, v{ACC+2*i}, v{ACC+2*i+1}")
    a(f"s_mov_b32 s53, {ONES_BF}")
    a("v_mov_b32 v12, 0")
    a("v_mov_b32 v13, 0")
    for i in range(14):
        a(f"v_dot2c_f32_bf16 v12, s53, v{H+i}")
        a(f"v_dot2c_f32_bf16 v13, v{H+i}, v{H+i}")
    for i in range(7): D(f"ds_write_b64 v8, {vr(H+2*i,2)} offset:{256*i}")
    a("v_mov_b32 v10, v12")
    a("v_mov_b32 v11, v13")
    a("s_nop 0")
    a("v_permlane16_swap_b32 v10, v12")
    a("v_permlane16_swap_b32 v11, v13")
    a("s_nop 0")
    a("v_add_f32 v12, v12, v10")
    a("v_add_f32 v13, v13, v11")
    a("v_mov_b32 v10, v12")
    a("v_mov_b32 v11, v13")
    a("s_nop 0")
    a("v_permlane32_swap_b32 v10, v12")
    a("v_permlane32_swap_b32 v11, v13")
    a("s_nop 0")
    a("v_add_f32 v12, v12, v10")
    a("v_add_f32 v13, v13, v11")
    D("ds_write_b64 v15, v[12:13]")
    H8 = 16
    D(f"ds_read_b128 {vr(H8,4)}, v9", "h8")
    D(f"ds_read_b128 {vr(H8+4,4)}, v9 offset:1024", "h8")
    WV("xcc")
    a("s_mov_b32 s68, 1")
    a("v_cmp_ne_u32 vcc, s69, v30")
    if force_fence: a("s_branch KB_xcc")
    else: a("s_cbranch_vccnz KB_xcc")
    a.label("KB_xcc_done")
    a("v_bfe_u32 v7, v0, 3, 1")
    a("v_lshlrev_b32 v8, 10, v6")
    a("v_lshl_add_u32 v8, v7, 9, v8")
    a("v_lshl_add_u32 v8, v5, 4, v8")
    a("v_add_u32 v9, 4096, v8")
    a("s_waitcnt lgkmcnt(0)"); lg.clear()
    a("s_barrier")
    for w in range(4): D(f"ds_read_b64 {vr(48+2*w,2)}, v14 offset:{128*w}", "st")
    for i in range(8):
        a(f"v_lshlrev_b32 v{ACC+2*i}, 16, v{H8+i}")
        a(f"v_and_b32 v{ACC+2*i+1}, 0xffff0000, v{H8+i}")
    WL("st")
    a("v_add_f32 v48, v48, v50")
    a("v_add_f32 v49, v49, v51")
    a("v_add_f32 v52, v52, v54")
    a("v_add_f32 v53, v53, v55")
    a("v_add_f32 v48, v48, v52")
    a("v_add_f32 v49, v49, v53")
    a(f"v_mul_f32 v48, {hexf(1.0/448)}, v48")
    a(f"v_mul_f32 v49, {hexf(1.0/448)}, v49")
    a("v_fma_f32 v49, -v48, v48, v49")
    a("v_max_f32 v49, 0, v49")
    a(f"v_add_f32 v49, {hexf(1e-5)}, v49")
    a("v_rsq_f32 v49, v49")
    a("s_nop 0")
    a(f"v_mul_f32 v49, {hexf(LOG2E)}, v49")
    a("v_mul_f32 v48, -v48, v49")
    for i in range(16): a(f"v_fma_f32 v{ACC+i}, v{ACC+i}, v49, v48")
    for i in range(8): a(f"v_cvt_pk_bf16_f32 v{32+i}, v{ACC+2*i}, v{ACC+2*i+1}")
    nstamp(a, "hnst")
    V("global_store_dwordx4 v8, v[32:35], s[54:55]", "hnst")
    a("s_mov_b32 exec_hi, 0xffff")
    V("global_store_dwordx4 v9, v[36:39], s[54:55]", "hnst")
    a("s_mov_b32 exec_hi, -1")
    a("v_mov_b32 v10, 0")
    a("v_mov_b32 v11, 1")
    a("s_lshl_b32 s53, s3, 6")
    a(f"s_add_u32 s53, s53, {L_BIAS}")
    a("v_lshl_add_u32 v12, v2, 3, s53")
    for q in range(8): D(f"ds_read_b64 {vr(48+2*q,2)}, v12 offset:{16*(q&3) + 256*(q>>2)}", "bias")
    def signal(off, lab):
        a("s_waitcnt vmcnt(0)"); vm.clear()
        a("s_cmp_eq_u32 s68, 0")
        a(f"s_cbranch_scc1 {lab}_fence")
        a("s_mov_b64 exec, 1")
        V(f"global_atomic_add v10, v11, s[66:67] offset:{off}", "sig")
        a("s_mov_b64 exec, -1")
        a.label(f"{lab}_done")
    def poll(off, target, lab):
        a("s_cmp_eq_u32 s68, 0")
        a(f"s_cbranch_scc1 {lab}_fence")
        a("s_mov_b32 s52, 0")
        a.label(f"{lab}_loop")
        a(f"s_load_dword s53, s[66:67], {off} glc")
        a("s_add_u32 s52, s52, 1")
        a("s_waitcnt lgkmcnt(0)"); lg.clear()
        a(f"s_cmp_ge_u32 s53, {target}")
        a(f"s_cbranch_scc1 {lab}_done")
        a(f"s_cmp_lt_u32 s52, {SPIN_LIMIT}")
        a(f"s_cbranch_scc1 {lab}_loop")
        a.label(f"{lab}_done")
    signal(0, "KB_sg1")
    nstamp(a, "sig1")
    a("s_cmp_eq_u32 s5, 7")
    a("s_cbranch_scc1 KB_fin")
    T0, A2, A1, HOLD = 24, 48, 80, 144
    NW1B = 40
    for i in range(NW1, NW1B):
        for it in w1_items(i): emit_item(it)
    WL("bias")
    a(f"s_mov_b32 s53, {hexf(LOG2E)}")
    accs = {("A",0): A1, ("B",0): A1+16, ("B",1): A1+32, ("A",1): A1+48}
    for X, r0 in (("A", 48), ("B", 56)):
        d = accs[(X,0)]
        for i in range(8):
            a(f"v_lshlrev_b32 v{d+2*i}, 16, v{r0+i}")
            a(f"v_and_b32 v{d+2*i+1}, 0xffff0000, v{r0+i}")
        for i in range(16): a(f"v_mul_f32 v{d+i}, s53, v{d+i}")
        for i in range(16): a(f"v_mov_b32 v{accs[(X,1)]+i}, v{d+i}")
    a("s_mul_i32 s53, s4, 57344")
    a("s_lshl_b32 s52, s3, 10")
    a("s_add_u32 s53, s53, s52")
    a(f"s_add_u32 s53, s53, {HN}")
    add64(56, 8, "s53")
    a("s_mul_i32 s53, s3, 3*112*1024")
    a("s_lshl_b32 s61, s5, 14")
    a("s_add_u32 s53, s53, s61")
    a(f"s_add_u32 s53, s53, {W2F + 4096}")
    add64(58, 8, "s53")
    a("s_lshr_b32 s53, s3, 1")
    a("s_add_u32 s53, s53, 12")
    a("s_mul_i32 s53, s53, 112*1024")
    a("s_add_u32 s53, s53, s61")
    a(f"s_add_u32 s53, s53, {W2F + 4096}")
    add64(32, 8, "s53")
    a("s_mul_i32 s53, s4, 458752")
    a("s_mul_i32 s61, s5, 7168")
    a("s_add_u32 s53, s53, s61")
    a(f"s_add_u32 s53, s53, {PART}")
    add64(34, 8, "s53")
    a("s_mul_i32 s61, s3, 1536")
    add64(36, 34, "s61")
    add64(38, 36, 229376)
    a("s_and_b32 s61, s3, 1")
    a("s_mul_i32 s61, s61, 229376")
    a("s_lshr_b32 s53, s3, 1")
    a("s_lshl_b32 s53, s53, 9")
    a("s_add_u32 s61, s61, s53")
    a("s_add_u32 s61, s61, 6144")
    add64(40, 34, "s61")
    a("s_mul_i32 s61, s3, 114688")
    add64(34, 34, "s61")
    a("v_bfe_u32 v12, v0, 3, 2")
    a("v_mul_u32_u24 v12, 57344, v12")
    a("v_lshl_add_u32 v12, v2, 7, v12")
    a("v_lshl_add_u32 v12, v5, 4, v12")
    a("v_lshrrev_b32 v13, 2, v0")
    a("v_min_u32 v13, 13, v13")
    a("v_lshlrev_b32 v13, 7, v13")
    a("v_add_u32 v13, 3584, v13")
    a("v_add_u32 v14, 57344, v13")
    a("s_lshl_b32 s53, s3, 11")
    a(f"s_add_u32 s53, s53, {L_ACT}")
    a("v_add_u32 v8, s53, v1")
    a(f"v_add_u32 v9, {L_ACT}, v1")
    a("s_and_b32 s53, s3, 1")
    a("s_lshl_b32 s53, s53, 14")
    a("v_add_u32 v15, s53, v9")
    poll(0, 32, "KB_pl1")
    nstamp(a, "poll1")
    def dma_items(q):
        it = [("s", f"s_add_u32 m0, s52, {L_HN + 4096*q}")]
        if q: it = [("s", "s_add_u32 s56, s56, 4096"), ("s", "s_addc_u32 s57, s57, 0")] + it
        return it + [("s", "s_nop 0"), ("v", "global_load_lds_dwordx4 v1, s[56:57] sc1", f"hn{q}")]
    a("s_lshl_b32 s52, s3, 10")
    for q in range(7):
        for it in dma_items(q): emit_item(it)
    def w2reg(q):
        if q < 8: return ar(32+4*q, 4)
        if q < 36: return w1reg(28 + q - 8)
        return w1reg(q - 36)
    def w2_items(q):
        u, ks = divmod(q, 16)
        b = 58 if u < 3 else 32
        it = []
        if ks == 8: it += [("s", f"s_add_u32 s{b}, s{b}, 8192"), ("s", f"s_addc_u32 s{b+1}, s{b+1}, 0")]
        elif ks == 0 and 0 < u < 3: it += [("s", f"s_add_u32 s{b}, s{b}, {112*1024 - 8192}"), ("s", f"s_addc_u32 s{b+1}, s{b+1}, 0")]
        it.append(("v", f"global_load_dwordx4 {w2reg(q)}, v1, s[{b}:{b+1}] offset:{1024*(ks%8) - 4096}", f"w2_{q}"))
        return it
    NM = 224
    pre = {i: [] for i in range(NM + 1)}
    post = {i: [] for i in range(NM)}
    mf = []
    hold = lambda ks: vr(HOLD+4*ks, 4)
    for X, tt in (("A",0), ("B",0), ("B",1), ("A",1)):
        d = vr(accs[(X,tt)], 16)
        for ks in range(28): mf.append(mfma32(d, w1reg(ks + (28 if X == "B" else 0)), hold(ks), d))
    act0 = lambda ks: vr(HOLD+4*ks, 4)
    act1 = lambda ks: vr(HOLD+64+4*ks, 4) if ks < 12 else vr(A1+4*(ks-12), 4)
    ring = lambda ks: vr(A1+16+4*(ks & 7), 4)
    units = [(0, act0, 36, 0), (1, act0, 36, 1), (2, act0, 36, 2), (3, ring, 40, 0), (0, act1, 38, 0), (1, act1, 38, 1), (2, act1, 38, 2)]
    for ui, (u, breg, sb_, no) in enumerate(units):
        d = vr(A2+16*(ui & 1), 16)
        for ks in range(16): mf.append(mfma32(d, w2reg(16*u+ks), breg(ks), "0" if ks == 0 else d))
    AHEAD = 4
    rd0 = lambda ks: ("d", f"ds_read_b128 {hold(ks)}, v1 offset:{L_HN + 1024*ks}", f"h0_{ks}")
    rd1 = lambda ks: ("d", f"ds_read_b128 {hold(ks)}, v1 offset:{L_HN + 28672 + 1024*ks}", f"h1_{ks}")
    pre[0] += [("wv", "hn2"), ("s", "s_barrier")] + [rd0(ks) for ks in range(AHEAD)]
    for ks in range(28):
        if ks + AHEAD == 12: post[ks] += [("wv", "hn6"), ("s", "s_barrier")]
        if ks + AHEAD < 28: post[ks].append(rd0(ks + AHEAD))
        pre[ks].append(("wl", f"h0_{ks}"))
    for q in range(7, 14): post[2*(q-7)] += dma_items(q)
    pre[0].append(("wv", "w1_27"))
    for i in range(NW1B, 56): post[14 + 2*(i - NW1B)] += w1_items(i)
    pre[28] += [("wv", "hn13"), ("s", "s_barrier")]
    for ks in range(28):
        pre[28+ks].append(("wv", f"w1_{28+ks}"))
        post[28+ks].append(rd1(ks))
    for q in range(8): post[46 + q] += w2_items(q)
    if OPT.get('touch', 1):
        t0_, dt_ = OPT.get('t0', 47), OPT.get('dt', 6)
        for k in range(8):
            post[t0_ + dt_*k].append(("v", f"global_load_dword v4, v{13 + (k >> 2)}, s[34:35] offset:{1792*(k & 3) - 3584} sc1", "touch"))
    for ks in range(0, 28, 4): pre[56+ks].append(("wl", f"h1_{min(ks+3, 27)}"))
    for q in range(8, 64): post[56 + 2*(q-8)] += w2_items(q)
    for q in range(64): pre[112+q].append(("wv", f"w2_{q}"))
    fill = []
    def mish_items(X, tt, start, idx):
        x0 = accs[(X,tt)]; pk = x0
        L = []
        for g in range(4):
            t = T0 + 4*(g & 1); x = x0 + 4*g
            L += [f"v_exp_f32 v{t+i}, v{x+i}" for i in range(4)]
            L += [f"v_add_f32 v{t+i}, 1.0, v{t+i}" for i in range(4)]
            L += [f"v_fma_f32 v{t+i}, v{t+i}, v{t+i}, 1.0" for i in range(4)]
            L += [f"v_rcp_f32 v{t+i}, v{t+i}" for i in range(4)]
            L += [f"v_mul_f32 v{t+i}, v{t+i}, v{x+i}" for i in range(4)]
            L += [f"v_fmac_f32 v{x+i}, -2.0, v{t+i}" for i in range(4)]
            L += [f"v_cvt_pk_bf16_f32 v{pk+2*g+i}, v{x+2*i}, v{x+2*i+1}" for i in range(2)]
        it = [("s", x, start) for x in L]
        off = tt*16384 + (8192 if X == "B" else 0)
        it += [("d", f"ds_write_b128 v8, {vr(pk+4*hf,4)} offset:{off + 1024*hf}", start) for hf in range(2)]
        return it
    fill += mish_items("A", 0, 31, 0) + mish_items("B", 0, 59, 1)
    fill += [("bar", "b1", 0)]
    fill += mish_items("B", 1, 87, 2) + mish_items("A", 1, 115, 3)
    fill += [("bar", "b2", 0)]
    rda = lambda reg, addr, tt, ks, tag: ("d", f"ds_read_b128 {reg}, {addr} offset:{16384*tt + 1024*ks}", tag)
    need_bar = {}
    for ks in range(16):
        post[101 + ks].append(rda(act0(ks), "v9", 0, ks, f"a0_{ks}"))
        pre[112+ks].append(("wl", f"a0_{ks}"))
    need_bar[101] = "b1"
    for ks in range(16):
        post[155 + ks].append(rda(ring(ks), "v15", 0, ks, f"am_{ks}"))
        pre[160+ks].append(("wl", f"am_{ks}"))
        post[161 + ks].append(rda(act1(ks), "v9", 1, ks, f"a1_{ks}"))
        pre[176+ks].append(("wl", f"a1_{ks}"))
    need_bar[155] = "b2"
    outq = []
    for ui, (u, breg, sb_, no) in enumerate(units):
        d = A2 + 16*(ui & 1); pk = d
        L = []
        for hf in range(2):
            p4 = pk + 4*hf
            L += [("s", f"v_cvt_pk_bf16_f32 v{p4+i}, v{d+8*hf+2*i}, v{d+8*hf+2*i+1}") for i in range(4)]
            L += [("v", f"global_store_dwordx4 v12, {vr(p4,4)}, s[{sb_}:{sb_+1}] offset:{512*no + 256*hf}", "pst")]
        outq.append((112 + 16*ui + 18, L))
    done_bar = set()
    fq = list(fill); cur = [0]
    def emit_fill(it):
        if it[0] == "bar":
            a("s_waitcnt lgkmcnt(0)"); lg.clear()
            a("s_barrier"); done_bar.add(it[1]); print("note: barrier", it[1], "after MFMA", cur[0])
            return 8
        if it[0] == "d": D(it[1])
        else: a(it[1])
        return cost(it[1])
    credit = 0.0
    for i in range(NM):
        cur[0] = i
        assert not outq or i < outq[0][0] + 12, i
        for it in pre[i]: emit_item(it)
        a(mf[i])
        nstamp(a, f"m{i}")
        credit = max(min(credit, 0), -8) + 24
        if i in need_bar:
            c0 = credit
            while need_bar[i] not in done_bar: credit -= emit_fill(fq.pop(0))
            if c0 != credit: print(f"note: {c0 - credit:.0f} cycles of activation work flushed before MFMA {i}")
        for k, it in enumerate(post[i]):
            emit_item(it)
            credit -= (4 if it[0] in "vd" else 0) if k == 0 else (10 if it[0] in "vd" else 4)
        while outq and outq[0][0] <= i and credit > 0:
            L = outq[0][1]
            it = L.pop(0); emit_item(it); credit -= cost(it[1])
            if not L: outq.pop(0)
        while fq and credit > 0 and (fq[0][0] == "bar" or fq[0][2] <= i):
            credit -= emit_fill(fq.pop(0))
    assert not fq, len(fq)
    a("s_nop 7")
    a("s_nop 3")
    for _, L in outq:
        for it in L: emit_item(it)
    nstamp(a, "g2end")
    signal(128, "KB_sg2")
    nstamp(a, "sig2")
    a.label("KB_fin")
    R, SUM, HF = 144, 80, 96
    a("s_mul_i32 s53, s4, 458752")
    a("s_mul_i32 s52, s5, 57344")
    a("s_add_u32 s53, s53, s52")
    a("s_mul_i32 s52, s3, 1792")
    a("s_add_u32 s53, s53, s52")
    a(f"s_add_u32 s53, s53, {PART}")
    add64(56, 8, "s53")
    for i in range(16): a(f"v_mov_b32 v{SUM+i}, 0")
    for i in range(8):
        a(f"v_lshlrev_b32 v{HF+2*i}, 16, v{H8+i}")
        a(f"v_and_b32 v{HF+2*i+1}, 0xffff0000, v{H8+i}")
    a("v_mul_u32_u24 v12, 896, v5")
    a("v_lshl_add_u32 v12, v6, 5, v12")
    a("v_lshl_add_u32 v12, v7, 4, v12")
    a("s_mul_i32 s60, s6, 8*896")
    a("s_mul_i32 s61, s3, 224")
    a("s_add_u32 s60, s60, s61")
    a("s_mov_b32 s62, 0x00003f80")
    a("s_mov_b32 s63, 0x3f800000")
    a(f"s_mov_b32 s61, {hexf(LN2F)}")
    poll(128, 28, "KB_pl2")
    nstamp(a, "poll2")
    vm.clear(); vm.issue("older")
    for p in range(7):
        if p: add64(56, 56, 7168)
        V(f"global_load_dwordx4 {vr(R+8*p,4)}, v1, s[56:57] sc1", f"p{p}")
        V(f"global_load_dwordx4 {vr(R+8*p+4,4)}, v1, s[56:57] offset:1024 sc1", f"p{p}")
    for p in range(7):
        WV(f"p{p}")
        for i in range(8):
            a(f"v_dot2c_f32_bf16 v{SUM+2*i}, s62, v{R+8*p+i}")
            a(f"v_dot2c_f32_bf16 v{SUM+2*i+1}, s63, v{R+8*p+i}")
    a("s_nop 2")
    for i in range(16): a(f"v_fmac_f32 v{HF+i}, s61, v{SUM+i}")
    for i in range(8): a(f"v_cvt_pk_bf16_f32 v{32+i}, v{HF+2*i}, v{HF+2*i+1}")
    for b in (32, 36):
        a(f"v_mov_b32 v40, v{b+2}")
        a(f"v_mov_b32 v41, v{b+3}")
        a("s_nop 0")
        a(f"v_mov_b32_dpp v{b+2}, v{b} row_ror:8 row_mask:0xf bank_mask:0x3")
        a(f"v_mov_b32_dpp v{b+3}, v{b+1} row_ror:8 row_mask:0xf bank_mask:0x3")
        a(f"v_mov_b32_dpp v{b}, v40 row_ror:8 row_mask:0xf bank_mask:0xc")
        a(f"v_mov_b32_dpp v{b+1}, v41 row_ror:8 row_mask:0xf bank_mask:0xc")
    a("buffer_store_dwordx4 v[32:35], v12, s[24:27], s60 offen")
    a("s_mov_b32 exec_hi, 0xffff")
    a("buffer_store_dwordx4 v[36:39], v12, s[24:27], s60 offen offset:128")
    fin(a, 1, 8)
    a.label("KB_end")
    a("s_endpgm")

    a.label("KB_xcc")
    a("s_mov_b32 s52, 0")
    a("v_and_b32 v10, 7, v0")
    a("v_lshlrev_b32 v10, 2, v10")
    a.label("KB_xcc_loop")
    a("v_cmp_eq_u32 vcc, 0, v30")
    a("s_cbranch_vccz KB_xcc_known")
    a("global_load_dword v30, v10, s[62:63] sc1")
    a("s_add_u32 s52, s52, 1")
    a("s_waitcnt vmcnt(0)")
    a(f"s_cmp_lt_u32 s52, {SPIN_LIMIT}")
    a("s_cbranch_scc1 KB_xcc_loop")
    a.label("KB_xcc_known")
    a("v_cmp_ne_u32 vcc, s69, v30")
    if not force_fence: a("s_cbranch_vccz KB_xcc_done")
    a("s_mov_b32 s68, 0")
    a("s_branch KB_xcc_done")
    for lab, off in (("KB_sg1", 0), ("KB_sg2", 128)):
        a.label(f"{lab}_fence")
        a("buffer_wbl2 sc1")
        a("s_waitcnt vmcnt(0)")
        a("s_mov_b64 exec, 1")
        a(f"global_atomic_add v10, v11, s[66:67] offset:{off} sc1")
        a("s_mov_b64 exec, -1")
        a(f"s_branch {lab}_done")
    for lab, off, target in (("KB_pl1", 0, 32), ("KB_pl2", 128, 28)):
        a.label(f"{lab}_fence")
        a("s_mov_b32 s52, 0")
        a.label(f"{lab}_floop")
        a(f"global_load_dword v31, v10, s[66:67] offset:{off} sc1")
        a("s_add_u32 s52, s52, 1")
        a("s_waitcnt vmcnt(0)")
        a("v_readfirstlane_b32 s53, v31")
        a("s_nop 0")
        a(f"s_cmp_ge_u32 s53, {target}")
        a(f"s_cbranch_scc1 {lab}_fdone")
        a(f"s_cmp_lt_u32 s52, {SPIN_LIMIT}")
        a(f"s_cbranch_scc1 {lab}_floop")
        a.label(f"{lab}_fdone")
        a("buffer_inv sc1")
        a("s_waitcnt vmcnt(0) lgkmcnt(0)")
        a(f"s_branch {lab}_done")

    a.label("KB_slow")
    vm.q = list(vm_at_slow)
    a("s_waitcnt vmcnt(0)"); vm.clear()
    for k, it in enumerate(wo_items(NPRE, 98) + late):
        emit_item(it)
        if it[0] == "s" and "m0" in it[1]: a("s_nop 0")
        if len(vm.q) >= 32: a("s_waitcnt vmcnt(0)"); vm.clear()
    MX = P + 8
    for t in range(4): a(f"v_mov_b32 v{MX+t}, 0xff800000")
    for i in range(64): a(f"v_accvgpr_write_b32 a{i}, 0")
    a("s_sub_u32 s52, s52, 4096")
    a("s_mov_b32 s61, 0")
    a.label("KB_s1")
    a("s_add_u32 s53, s52, s61")
    for i in range(2): a(f"buffer_load_dwordx4 {vr(KVR+4*i,4)}, v1, s[16:19], s53 offen offset:{1024*i}")
    a("s_waitcnt vmcnt(0)")
    for t in range(4):
        a(mfma32(vr(S,16), vr(KVR,4), vr(Q+8*t,4), "0"))
        a(mfma32(vr(S,16), vr(KVR+4,4), vr(Q+8*t+4,4), vr(S,16)))
        a("s_nop 7")
        a("s_nop 3")
        for i in range(8): a(f"v_max3_f32 v{MX+t}, v{S+2*i}, v{S+2*i+1}, v{MX+t}")
    a("s_add_u32 s61, s61, 4096")
    a("s_cmp_lt_u32 s61, 0x10000")
    a("s_cbranch_scc1 KB_s1")
    for t in range(4):
        half_sum(a, MX+t, 12, "v_max_f32")
        a(f"s_add_u32 s53, s3, {t+1}")
        a("s_and_b32 s53, s53, 3")
        a("s_lshl_b32 s53, s53, 10")
        a("s_lshl_b32 s61, s3, 8")
        a("s_add_u32 s53, s53, s61")
        a("v_add_u32 v12, s53, v3")
        a(f"ds_write_b32 v12, v{MX+t}")
    a("s_waitcnt lgkmcnt(0)")
    a("s_barrier")
    for t in range(4):
        a(f"s_add_u32 s53, s3, {t+1}")
        a("s_and_b32 s53, s53, 3")
        a("s_lshl_b32 s53, s53, 10")
        a("v_add_u32 v12, s53, v3")
        for w in range(4): a(f"ds_read_b32 v{S+w}, v12 offset:{256*w}")
        a("s_waitcnt lgkmcnt(0)")
        a(f"v_max3_f32 v{MX+t}, v{S}, v{S+1}, v{S+2}")
        a(f"v_max_f32 v{MX+t}, v{MX+t}, v{S+3}")
    a("s_barrier")
    a("s_mov_b32 s61, 0")
    a.label("KB_s2")
    a("s_add_u32 s53, s52, s61")
    for i in range(4): a(f"buffer_load_dwordx4 {vr(KVR+4*i,4)}, v1, s[16:19], s53 offen offset:{1024*i}")
    a("s_waitcnt vmcnt(0)")
    for t in range(4):
        a(mfma32(vr(S,16), vr(KVR,4), vr(Q+8*t,4), "0"))
        a(mfma32(vr(S,16), vr(KVR+4,4), vr(Q+8*t+4,4), vr(S,16)))
        a("s_nop 7")
        a("s_nop 3")
        for i in range(16): a(f"v_sub_f32 v{S+i}, v{S+i}, v{MX+t}")
        for i in range(16): a(f"v_exp_f32 v{S+i}, v{S+i}")
        a("s_nop 0")
        for i in range(8): a(f"v_cvt_pk_bf16_f32 v{P+i}, v{S+2*i}, v{S+2*i+1}")
        a("s_nop 1")
        a(mfma32(ar(16*t,16), vr(KVR+8,4), vr(P,4), ar(16*t,16)))
        a(mfma32(ar(16*t,16), vr(KVR+12,4), vr(P+4,4), ar(16*t,16)))
    a("s_add_u32 s61, s61, 4096")
    a("s_cmp_lt_u32 s61, 0x10000")
    a("s_cbranch_scc1 KB_s2")
    a("s_nop 7")
    a("s_nop 3")
    for t in range(3):
        for q in range(4): a(redw(t, q)[1])
    a("s_branch KB_red")
    a.label("KB_code_end")
    return kd(n, 512, 96, 256), f"; @launch kernel={n} grid=(256,1,1) block=(256,1,1) lds={KB_LDS}"


def build(force_slow=False, extra=0, force_fence=False):
    a = Asm()
    parts = [gen_k1(a), gen_kb(a, force_slow, force_fence)]
    launches = [p[1] for p in parts]
    kds = [p[0] for p in parts]
    if extra:
        header(a, "nop_kernel")
        a("s_endpgm")
        kds.append(kd("nop_kernel", 8, 16, 8))
        launches += ["; @launch kernel=nop_kernel grid=(256,1,1) block=(64,1,1) lds=0"] * extra
    out = "\n".join(launches) + "\n"
    out += '.amdgcn_target "amdgcn-amd-amdhsa--gfx950"\n.text\n'
    out += a.text()
    out += '.section .rodata,"a"\n' + "".join(kds)
    return out

if __name__ == "__main__":
    import argparse
    ap = argparse.ArgumentParser()
    ap.add_argument("-o", default="v2.s")
    ap.add_argument("--slow", action="store_true")
    ap.add_argument("--fence", action="store_true")
    ap.add_argument("--opt", default="")
    ap.add_argument("--extra", type=int, default=0)
    ap.add_argument("--stamps", default="", help="up to six stamp names for the fused kernel")
    args = ap.parse_args()
    for kv in args.opt.split(","):
        if kv:
            k_, _, v_ = kv.partition("=")
            OPT[k_] = int(v_) if v_ else 1
    STAMPS = bool(args.stamps)
    STAMP_SET = args.stamps.split(",")
    txt = build(args.slow, args.extra, args.fence)
    open(args.o, "w").write(txt)
    import hazard
    print("hazards:", hazard.check(txt), "waits:", 0 if STAMPS else hazard.waitcheck(txt))
```

```python
import math, struct, sys

NAME = "sequential_preLN__grouped_kv_mqa__dense_activation_mish__prompt"

QF   = 0x000000
KV   = 0x200000
KMAX = 0x240000
SYNC = 0x248000
WOF  = 0x250000
W1F  = 0x300000
W2F  = 0x500000
HN   = 0x700000
PART = 0xB00000
WS_SIZE = PART + 32*8*8*7168

X_BYTES = 2048*896
WQ_BYTES = 448*896
WK_BYTES = 448*56
W1_BYTES = 448*3584
W2_BYTES = 1792*896

def f2u(f): return struct.unpack("<I", struct.pack("<f", f))[0]
def hexf(f): return "0x%08x" % f2u(f)
LOG2E = math.log2(math.e)
QSCALE = LOG2E / math.sqrt(28.0)
ONES_BF = "0x3f803f80"

class Asm:
    def __init__(self):
        self.L = []
    def __call__(self, s):
        for ln in s.split("\n"):
            ln = ln.strip()
            if ln: self.L.append("    " + ln)
    def label(self, s): self.L.append(s + ":")
    def c(self, s): self.L.append("    ; " + s)
    def text(self): return "\n".join(self.L) + "\n"

def vr(b, n=1): return f"v{b}" if n == 1 else f"v[{b}:{b+n-1}]"
def ar(b, n=1): return f"a{b}" if n == 1 else f"a[{b}:{b+n-1}]"
def sr(b, n=1): return f"s{b}" if n == 1 else f"s[{b}:{b+n-1}]"

def srd(a, d, lo, hi, nbytes):
    a(f"s_mov_b32 s{d}, s{lo}")
    a(f"s_mov_b32 s{d+1}, s{hi}")
    a(f"s_mov_b32 s{d+2}, {nbytes if isinstance(nbytes, str) else hex(nbytes)}")
    a(f"s_mov_b32 s{d+3}, 0x20000")

def header(a, name):
    a.L.append(f".globl {name}")
    a.L.append(".p2align 8")
    a.L.append(f".type {name},@function")
    a.label(name)

def kd(name, vgpr, sgpr, accum):
    return f""".p2align 6
.amdhsa_kernel {name}
  .amdhsa_next_free_vgpr {vgpr}
  .amdhsa_next_free_sgpr {96 if STAMPS else sgpr}
  .amdhsa_accum_offset {accum}
  .amdhsa_group_segment_fixed_size 0
  .amdhsa_kernarg_size 96
  .amdhsa_user_sgpr_count 2
  .amdhsa_user_sgpr_kernarg_segment_ptr 1
  .amdhsa_system_sgpr_workgroup_id_x 1
.end_amdhsa_kernel
"""

STAMPS = False
STAMP_BASE = 0x8000000
def stamp(a, i):
    if STAMPS: a(f"s_memrealtime s[{72+2*i}:{73+2*i}]")
STAMP_SET = []
OPT = {}
def nstamp(a, name):
    if STAMPS and name in STAMP_SET:
        i = 1 + STAMP_SET.index(name)
        a(f"{'s_memtime' if OPT.get('cyc') else 's_memrealtime'} s[{72+2*i}:{73+2*i}]")
def stamp_init(a):
    if STAMPS:
        for i in range(8): a(f"s_mov_b32 s{72+2*i}, 0")
        stamp(a, 0)
        if OPT.get("dbg"): a("s_load_dwordx2 s[92:93], s[0:1], 80")
def fin(a, kidx, wslo):
    if STAMPS and OPT.get("dbg"):
        stamp(a, 7)
        a("s_mov_b64 exec, 0xff")
        a("s_waitcnt lgkmcnt(0)")
        a("s_not_b32 s72, s72")
        a("v_mbcnt_lo_u32_b32 v1, -1, 0")
        for i in range(8):
            a(f"v_mov_b32 v2, s{72+2*i}")
            a(f"v_cmp_eq_u32 vcc, {i}, v1")
            a("v_cndmask_b32 v0, v0, v2, vcc")
        a("v_lshlrev_b32 v1, 2, v1")
        a(f"s_add_u32 s92, s92, {32 if kidx else 512}")
        a("s_addc_u32 s93, s93, 0")
        a("s_and_b32 s90, s2, 31")
        a("s_lshl_b32 s91, s3, 5")
        a("s_or_b32 s90, s90, s91")
        a("s_cmp_eq_u32 s90, 5")
        a("s_cselect_b64 exec, exec, 0")
        a("global_atomic_umax v1, v0, s[92:93]")
    elif STAMPS:
        stamp(a, 7)
        a("s_mov_b64 exec, 1")
        a("s_waitcnt lgkmcnt(0)")
        for i in range(8): a(f"v_mov_b32 v{i}, s{72+2*i}")
        srd(a, 68, wslo, wslo+1, 0x10000000)
        a("s_lshl_b32 s90, s2, 3")
        a("s_add_u32 s90, s90, s3")
        a(f"s_add_u32 s90, s90, {kidx*4096}")
        a("s_lshl_b32 s90, s90, 5")
        a(f"s_add_u32 s90, s90, {STAMP_BASE}")
        a("v_mov_b32 v8, 0")
        a("buffer_store_dwordx4 v[0:3], v8, s[68:71], s90 offen")
        a("buffer_store_dwordx4 v[4:7], v8, s[68:71], s90 offen offset:16")
    a("s_endpgm")

def mfma32(d, A, B, C): return f"v_mfma_f32_32x32x16_bf16 {d}, {A}, {B}, {C}"
def mfma16(d, A, B, C): return f"v_mfma_f32_16x16x32_bf16 {d}, {A}, {B}, {C}"

def half_sum(a, x, t, op="v_add_f32"):
    a(f"v_mov_b32 v{t}, v{x}")
    a("s_nop 1")
    a(f"v_permlane32_swap_b32 v{t}, v{x}")
    a("s_nop 1")
    a(f"{op} v{x}, v{x}, v{t}")

K1_X, K1_W0, K1_W4, K1_ST, K1_CS = 0, 57344, 114688, 143360, 143872
K1_LDS = 144640

def gen_k1(a):
    n = "k1_kernel"
    header(a, n)
    a("s_cmp_ge_u32 s2, 256")
    a("s_cbranch_scc1 K1_end")
    stamp_init(a)
    a("s_load_dwordx4 s[24:27], s[0:1], 0")
    a("s_load_dwordx4 s[28:31], s[0:1], 16")
    a("s_load_dwordx2 s[32:33], s[0:1], 32")
    a("s_load_dwordx2 s[34:35], s[0:1], 48")
    a("s_load_dwordx2 s[36:37], s[0:1], 64")
    a("s_load_dwordx2 s[38:39], s[0:1], 88")
    a("v_lshrrev_b32 v1, 6, v0")
    a("v_and_b32 v0, 63, v0")
    a("v_readfirstlane_b32 s3, v1")
    a("s_and_b32 s4, s2, 7")
    a("s_lshl_b32 s4, s4, 2")
    a("s_bfe_u32 s6, s2, 0x20003")
    a("s_add_u32 s4, s4, s6")
    a("s_lshr_b32 s5, s2, 5")
    a("v_lshrrev_b32 v2, 5, v0")
    a("v_bfe_u32 v3, v0, 4, 1")
    a("v_bfe_u32 v4, v0, 2, 2")
    a("v_and_b32 v5, 3, v0")
    a("v_lshrrev_b32 v6, 2, v0")
    a("v_lshlrev_b32 v7, 4, v5")
    a("s_cmp_eq_u32 s3, 4")
    a("s_cbranch_scc1 K1_w4")
    a("v_lshrrev_b32 v8, 3, v0")
    a("v_and_b32 v9, 7, v0")
    a("v_lshrrev_b32 v10, 1, v8")
    a("v_xor_b32 v9, v9, v10")
    a("s_and_b32 s6, s3, 1")
    a("s_lshl_b32 s7, s6, 2")
    a("v_xor_b32 v9, s7, v9")
    a("v_mul_u32_u24 v8, 896, v8")
    a("v_lshl_add_u32 v8, v9, 4, v8")
    a("v_mul_u32_u24 v9, 896, v6")
    a("v_add_u32 v9, v9, v7")
    a("s_lshl_b32 s40, s4, 6")
    a("s_lshl_b32 s41, s3, 4")
    a("s_add_u32 s40, s40, s41")
    a("s_mul_i32 s40, s40, 896")
    a("s_mul_i32 s41, s3, 14336")
    a("s_lshl_b32 s42, s5, 1")
    a("s_add_u32 s42, s42, s6")
    a("s_mul_i32 s43, s42, 56")
    a("s_lshr_b32 s44, s3, 1")
    a("s_mul_i32 s45, s44, 224*896")
    a("s_add_u32 s43, s43, s45")
    a("s_mul_i32 s45, s6, 28672")
    a("s_mul_i32 s46, s44, 14336")
    a("s_add_u32 s45, s45, s46")
    a(f"s_add_u32 s45, s45, {K1_W0}")
    a("s_waitcnt lgkmcnt(0)")
    srd(a, 8, 24, 25, X_BYTES)
    srd(a, 12, 26, 27, WQ_BYTES)
    srd(a, 16, 38, 39, WS_SIZE)
    a("s_cmp_ge_u32 s2, 3")
    a("s_cbranch_scc1 K1_noclr")
    for i in range(4): a(f"v_mov_b32 v{12+i}, 0")
    a("s_lshl_b32 s46, s2, 2")
    a("s_add_u32 s46, s46, s3")
    a("s_lshl_b32 s46, s46, 10")
    a(f"s_add_u32 s46, s46, {SYNC}")
    a("v_lshlrev_b32 v11, 4, v0")
    a("buffer_store_dwordx4 v[12:15], v11, s[16:19], s46 offen")
    a.label("K1_noclr")
    for j in range(14):
        a("s_mov_b32 m0, s41")
        a("s_add_u32 s41, s41, 1024")
        a("buffer_load_dwordx4 v8, s[8:11], s40 offen lds")
        a(f"s_add_u32 s40, s40, {128 if j != 6 else 8*896 - 6*128}")
        a("s_mov_b32 m0, s45")
        a("s_add_u32 s45, s45, 1024")
        a("buffer_load_dwordx4 v9, s[12:15], s43 offen lds")
        a(f"s_add_u32 s43, s43, {16*896}")
    a("v_lshlrev_b32 v10, 3, v2")
    a("v_add_u32 v10, v10, v4")
    a("v_lshlrev_b32 v10, 6, v10")
    a("v_lshl_add_u32 v10, v3, 5, v10")
    a("v_lshl_add_u32 v10, v5, 3, v10")
    a("s_mul_i32 s46, s6, 28672")
    a(f"s_add_u32 s46, s46, {K1_W0}")
    a("v_add_u32 v10, s46, v10")
    a("s_mov_b32 s47, 0")
    a("s_mul_i32 s46, s3, 14336")
    a("v_mul_u32_u24 v11, 7168, v2")
    a("v_and_b32 v12, 7, v6")
    a("v_lshl_add_u32 v11, v12, 7, v11")
    a("v_lshl_add_u32 v11, v5, 5, v11")
    a("v_add_u32 v11, s46, v11")
    stamp(a, 1)
    a("s_waitcnt vmcnt(0)")
    stamp(a, 2)
    a("s_barrier")
    stamp(a, 3)
    for kg in range(7):
        a(f"ds_read_b128 {vr(32+8*kg,4)}, v11 offset:{kg*1024}")
        a(f"ds_read_b128 {vr(36+8*kg,4)}, v11 offset:{kg*1024+16}")
    for i in range(4): a(f"v_mov_b32 v{20+i}, 0")
    a(f"s_mov_b32 s48, {ONES_BF}")
    for q in range(14):
        a(f"s_waitcnt lgkmcnt({13-q})")
        for i in range(4):
            r = 32 + 4*q + i
            a(f"v_dot2c_f32_bf16 v{20+(i&1)}, s48, v{r}")
            a(f"v_dot2c_f32_bf16 v{22+(i&1)}, v{r}, v{r}")
    a("s_nop 2")
    a("v_add_f32 v20, v20, v21")
    a("v_add_f32 v22, v22, v23")
    a("s_nop 1")
    a("v_add_f32_dpp v20, v20, v20 quad_perm:[1,0,3,2] row_mask:0xf bank_mask:0xf")
    a("v_add_f32_dpp v22, v22, v22 quad_perm:[1,0,3,2] row_mask:0xf bank_mask:0xf")
    a("s_nop 1")
    a("v_add_f32_dpp v20, v20, v20 quad_perm:[2,3,0,1] row_mask:0xf bank_mask:0xf")
    a("v_add_f32_dpp v22, v22, v22 quad_perm:[2,3,0,1] row_mask:0xf bank_mask:0xf")
    a(f"v_mul_f32 v20, {hexf(1.0/448)}, v20")
    a(f"v_mul_f32 v22, {hexf(1.0/448)}, v22")
    a("v_fma_f32 v22, -v20, v20, v22")
    a("v_max_f32 v22, 0, v22")
    a(f"v_add_f32 v22, {hexf(1e-5)}, v22")
    a("v_rsq_f32 v22, v22")
    a("s_lshl_b32 s46, s3, 6")
    a(f"s_add_u32 s46, s46, {K1_ST}")
    a("v_mul_f32 v20, -v20, v22")
    a("v_lshl_add_u32 v12, v6, 2, s46")
    a("ds_write_b32 v12, v22")
    a("ds_write_b32 v12, v20 offset:256")
    a("s_branch K1_proj")

    a.label("K1_w4")
    a("s_waitcnt lgkmcnt(0)")
    srd(a, 16, 38, 39, WS_SIZE)
    a("s_cmp_ge_u32 s5, 4")
    a("s_cbranch_scc1 K1_prep")
    a("s_lshr_b32 s47, s5, 1")
    a("s_cmp_eq_u32 s47, 0")
    a("s_cselect_b32 s12, s28, s30")
    a("s_cselect_b32 s13, s29, s31")
    a(f"s_mov_b32 s14, {WK_BYTES}")
    a("s_mov_b32 s15, 0x20000")
    a("s_add_u32 s47, s47, 1")
    a("s_and_b32 s44, s5, 1")
    a("v_mul_u32_u24 v9, 56, v6")
    a("v_add_u32 v9, v9, v7")
    a("s_mov_b32 s43, 0")
    a(f"s_mov_b32 s45, {K1_W4}")
    for j in range(28):
        a("s_mov_b32 m0, s45")
        a("s_add_u32 s45, s45, 1024")
        a("buffer_load_dwordx4 v9, s[12:15], s43 offen lds")
        a(f"s_add_u32 s43, s43, {16*56}")
    a("v_lshlrev_b32 v10, 3, v2")
    a("v_add_u32 v10, v10, v4")
    a("v_lshlrev_b32 v10, 6, v10")
    a("v_lshl_add_u32 v10, v3, 5, v10")
    a("v_lshl_add_u32 v10, v5, 3, v10")
    a(f"v_add_u32 v10, {K1_W4}, v10")
    stamp(a, 1)
    a("s_waitcnt vmcnt(0)")
    stamp(a, 2)
    a("s_barrier")
    stamp(a, 3)

    a.label("K1_proj")
    stamp(a, 4)
    a("v_and_b32 v13, 31, v0")
    a("v_bfe_u32 v14, v13, 1, 2")
    a("v_lshrrev_b32 v15, 2, v13")
    a("v_and_b32 v15, 4, v15")
    a("v_or_b32 v14, v14, v15")
    a("v_xor_b32 v14, v14, v2")
    a("v_lshrrev_b32 v15, 3, v13")
    a("v_mul_u32_u24 v15, 7168, v15")
    a("v_and_b32 v16, 7, v13")
    a("v_lshl_add_u32 v15, v16, 7, v15")
    a("s_mul_i32 s46, s44, 28672")
    a("v_add_u32 v15, s46, v15")
    for j in range(4):
        a(f"v_xor_b32 v16, {2*j}, v14")
        a(f"v_lshl_add_u32 v{24+j}, v16, 4, v15")
    a(f"s_mov_b32 s48, {ONES_BF}")
    a("v_mov_b32 v28, 0")
    a("v_mov_b32 v29, 0")
    a("s_cmp_eq_u32 s47, 2")
    a("s_cbranch_scc1 K1_projv")
    RING = 4
    def rd(ks):
        b = 32 + 8*(ks % RING)
        a(f"ds_read_b64_tr_b16 {vr(b,2)}, v10 offset:{ks*1024}")
        a(f"ds_read_b64_tr_b16 {vr(b+2,2)}, v10 offset:{ks*1024+256}")
        a(f"ds_read_b128 {vr(b+4,4)}, v{24+(ks&3)} offset:{(ks>>2)*1024}")
    def loop(swap):
        for ks in range(RING-1): rd(ks)
        for ks in range(28):
            if ks + RING - 1 < 28: rd(ks + RING - 1)
            out = min(RING - 1, 27 - ks) * 3
            a(f"s_waitcnt lgkmcnt({out})")
            b = 32 + 8*(ks % RING)
            W, X = vr(b,4), vr(b+4,4)
            C = "0" if ks == 0 else vr(64,16)
            a(mfma32(vr(64,16), X, W, C) if swap else mfma32(vr(64,16), W, X, C))
            for i in range(4): a(f"v_dot2c_f32_bf16 v{28+(i&1)}, s48, v{b+i}")
    loop(False)
    stamp(a, 5)
    a("s_nop 2")
    a("v_add_f32 v28, v28, v29")
    half_sum(a, 28, 29)
    a("s_lshl_b32 s46, s3, 7")
    a(f"s_add_u32 s46, s46, {K1_CS}")
    a("v_lshl_add_u32 v16, v13, 2, s46")
    a("ds_write_b32 v16, v28")
    a("v_lshl_add_u32 v16, v2, 4, s46")
    a("s_waitcnt lgkmcnt(0)")
    for i in range(4): a(f"ds_read_b128 {vr(32+4*i,4)}, v16 offset:{32*i}")
    a("s_barrier")
    a("s_lshl_b32 s46, s44, 7")
    a(f"s_add_u32 s46, s46, {K1_ST}")
    a("v_lshl_add_u32 v16, v13, 2, s46")
    a("ds_read_b32 v20, v16")
    a("ds_read_b32 v21, v16 offset:256")
    a("s_cmp_eq_u32 s47, 0")
    a(f"s_cselect_b32 s49, {hexf(QSCALE)}, 1.0")
    a("s_cselect_b32 s50, 0, 0x3f80")
    a("s_waitcnt lgkmcnt(0)")
    a("v_mul_f32 v20, s49, v20")
    a("v_mul_f32 v21, s49, v21")
    for i in range(16):
        a(f"v_mul_f32 v{64+i}, v{64+i}, v20")
        a(f"v_fmac_f32 v{64+i}, v{32+i}, v21")
    for i in range(8): a(f"v_cvt_pk_bf16_f32 v{48+i}, v{64+2*i}, v{65+2*i}")
    a("v_cmp_ne_u32 s[52:53], 0, v2")
    a("s_nop 1")
    a("v_cndmask_b32 v54, v54, 0, s[52:53]")
    a("v_cndmask_b32 v55, v55, 0, s[52:53]")
    a("s_cmp_eq_u32 s47, 0")
    a("s_cbranch_scc0 K1_epk")
    a("v_lshrrev_b32 v16, 3, v13")
    a("v_lshlrev_b32 v16, 13, v16")
    a("v_lshl_add_u32 v16, v2, 9, v16")
    a("v_and_b32 v17, 7, v13")
    a("v_lshl_add_u32 v16, v17, 4, v16")
    a("s_lshl_b32 s46, s4, 3")
    a("s_lshl_b32 s49, s44, 2")
    a("s_add_u32 s46, s46, s49")
    a("s_lshl_b32 s46, s46, 13")
    a("s_lshr_b32 s49, s42, 2")
    a("s_lshl_b32 s49, s49, 11")
    a("s_add_u32 s46, s46, s49")
    a("s_and_b32 s49, s42, 3")
    a("s_lshl_b32 s49, s49, 7")
    a("s_add_u32 s46, s46, s49")
    if QF: a(f"s_add_u32 s46, s46, {QF}")
    a("buffer_store_dwordx4 v[48:51], v16, s[16:19], s46 offen")
    a("buffer_store_dwordx4 v[52:55], v16, s[16:19], s46 offen offset:1024")
    fin(a, 0, 38)
    a.label("K1_epk")
    a("v_mov_b32 v20, 0")
    for i in range(8): a(f"v_dot2c_f32_bf16 v20, v{48+i}, v{48+i}")
    a("v_mov_b32 v22, s50")
    a("v_cndmask_b32 v54, v54, v22, s[52:53]")
    a("s_nop 1")
    half_sum(a, 20, 21)
    a("s_nop 1")
    for m in ("quad_perm:[1,0,3,2]", "quad_perm:[2,3,0,1]", "row_half_mirror", "row_mirror"):
        a(f"v_max_f32_dpp v20, v20, v20 {m} row_mask:0xf bank_mask:0xf")
        a("s_nop 1")
    a("v_mov_b32 v21, v20")
    a("s_nop 1")
    a("v_permlane16_swap_b32 v21, v20")
    a("s_nop 1")
    a("v_max_f32 v20, v20, v21")
    a("s_lshl_b32 s46, s4, 1")
    a("s_add_u32 s46, s46, s44")
    a("s_lshl_b32 s49, s46, 2")
    a(f"s_add_u32 s49, s49, {KMAX}")
    a("s_lshl_b32 s46, s46, 12")
    a(f"s_add_u32 s46, s46, {KV}")
    a("v_lshlrev_b32 v16, 4, v0")
    a("v_mov_b32 v17, 0")
    a("buffer_store_dwordx4 v[48:51], v16, s[16:19], s46 offen")
    a("buffer_store_dwordx4 v[52:55], v16, s[16:19], s46 offen offset:1024")
    a("s_mov_b64 exec, 1")
    a("buffer_store_dword v20, v17, s[16:19], s49 offen")
    fin(a, 0, 38)
    a.label("K1_projv")
    loop(True)
    stamp(a, 5)
    a("s_nop 2")
    a("v_add_f32 v28, v28, v29")
    half_sum(a, 28, 29)
    a("s_barrier")
    a("s_lshl_b32 s46, s44, 7")
    a(f"s_add_u32 s46, s46, {K1_ST}")
    a("v_lshl_add_u32 v16, v2, 4, s46")
    for i in range(4): a(f"ds_read_b128 {vr(32+4*i,4)}, v16 offset:{32*i}")
    for i in range(4): a(f"ds_read_b128 {vr(48+4*i,4)}, v16 offset:{256+32*i}")
    a("s_waitcnt lgkmcnt(0)")
    for i in range(16):
        a(f"v_mul_f32 v{64+i}, v{64+i}, v{32+i}")
        a(f"v_fmac_f32 v{64+i}, v{48+i}, v28")
    for i in range(8): a(f"v_cvt_pk_bf16_f32 v{48+i}, v{64+2*i}, v{65+2*i}")
    a("v_cmp_eq_u32 s[52:53], 28, v13")
    a(f"v_mov_b32 v21, {ONES_BF}")
    a("s_nop 0")
    a("v_cndmask_b32 v21, 0, v21, s[52:53]")
    a("v_cmp_lt_u32 s[52:53], 27, v13")
    a("s_nop 1")
    for i in range(8): a(f"v_cndmask_b32 v{48+i}, v{48+i}, v21, s[52:53]")
    a("s_lshl_b32 s46, s4, 1")
    a("s_add_u32 s46, s46, s44")
    a("s_lshl_b32 s46, s46, 12")
    a(f"s_add_u32 s46, s46, {KV}")
    a("v_lshlrev_b32 v16, 4, v0")
    a("buffer_store_dwordx4 v[48:51], v16, s[16:19], s46 offen offset:2048")
    a("buffer_store_dwordx4 v[52:55], v16, s[16:19], s46 offen offset:3072")
    fin(a, 0, 38)

    a.label("K1_prep")
    a("s_lshl_b32 s40, s4, 2")
    a("s_add_u32 s40, s40, s5")
    a("s_sub_u32 s40, s40, 4")
    a("s_cmp_ge_u32 s40, 126")
    a("s_cbranch_scc1 K1_end")
    a("v_lshlrev_b32 v10, 2, v2")
    a("v_add_u32 v10, v10, v4")
    a("v_lshlrev_b32 v10, 6, v10")
    a("v_lshl_add_u32 v10, v3, 5, v10")
    a("v_lshl_add_u32 v10, v5, 3, v10")
    a("s_mov_b32 s50, 512")
    a("s_mov_b32 s51, 1024")
    a("s_mov_b32 s52, 2048")
    a("s_mov_b32 s53, 1024")
    a("s_cmp_ge_u32 s40, 56")
    a("s_cbranch_scc1 K1_prep2")
    srd(a, 12, 34, 35, W1_BYTES)
    a("s_mov_b32 s41, 3584")
    a("s_lshl_b32 s43, s40, 6")
    a("s_mul_i32 s46, s40, 28672")
    a(f"s_add_u32 s46, s46, {W1F}")
    a("s_branch K1_prep4")
    a.label("K1_prep2")
    a("s_cmp_ge_u32 s40, 112")
    a("s_cbranch_scc1 K1_prep3")
    srd(a, 12, 36, 37, W2_BYTES)
    a("s_mov_b32 s41, 896")
    a("s_sub_u32 s40, s40, 56")
    a("s_lshr_b32 s6, s40, 2")
    a("s_and_b32 s7, s40, 3")
    a("s_mul_i32 s43, s7, 448*896")
    a("s_lshl_b32 s44, s6, 6")
    a("s_add_u32 s43, s43, s44")
    a("s_mul_i32 s46, s40, 28672")
    a(f"s_add_u32 s46, s46, {W2F}")
    a("s_branch K1_prep4")
    a.label("K1_prep3")
    srd(a, 12, 32, 33, WQ_BYTES)
    a("s_mov_b32 s41, 896")
    a("s_sub_u32 s40, s40, 112")
    a("s_lshl_b32 s43, s40, 6")
    a("s_lshl_b32 s6, s40, 1")
    for r in (46, 53):
        a("s_mul_i32 s7, s6, 37")
        a("s_lshr_b32 s7, s7, 8")
        a(f"s_mul_i32 s{r}, s7, {100352 - 7*1024}")
        a("s_lshl_b32 s7, s6, 10")
        a(f"s_add_u32 s{r}, s{r}, s7")
        a("s_add_u32 s6, s6, 1")
    a("s_sub_u32 s53, s53, s46")
    a(f"s_add_u32 s46, s46, {WOF}")
    a("v_lshrrev_b32 v10, 4, v0")
    a("v_lshlrev_b32 v10, 3, v10")
    a("v_add_u32 v10, v10, v4")
    a("v_lshlrev_b32 v10, 6, v10")
    a("v_lshl_add_u32 v10, v5, 3, v10")
    a("s_mov_b32 s50, 256")
    a("s_mov_b32 s51, 32")
    a("s_mov_b32 s52, 7168")
    a.label("K1_prep4")
    a("v_mul_lo_u32 v9, v6, s41")
    a("v_add_u32 v9, v9, v7")
    a("s_lshl_b32 s41, s41, 4")
    a(f"s_mov_b32 s45, {K1_W4}")
    for j in range(28):
        a("s_mov_b32 m0, s45")
        a("s_add_u32 s45, s45, 1024")
        a("buffer_load_dwordx4 v9, s[12:15], s43 offen lds")
        a("s_add_u32 s43, s43, s41")
    a(f"v_add_u32 v10, {K1_W4}, v10")
    a("v_add_u32 v11, s50, v10")
    a("v_add_u32 v12, s51, v10")
    a("v_add_u32 v13, s51, v11")
    a("v_lshlrev_b32 v16, 4, v0")
    a("s_add_u32 s47, s46, s53")
    stamp(a, 1)
    a("s_waitcnt vmcnt(0)")
    stamp(a, 2)
    a("s_barrier")
    stamp(a, 3)
    def prd(p):
        b = 32 + 8*(p % 4)
        a(f"ds_read_b64_tr_b16 {vr(b,2)}, v10 offset:{p*2048}")
        a(f"ds_read_b64_tr_b16 {vr(b+2,2)}, v11 offset:{p*2048}")
        a(f"ds_read_b64_tr_b16 {vr(b+4,2)}, v12 offset:{p*2048}")
        a(f"ds_read_b64_tr_b16 {vr(b+6,2)}, v13 offset:{p*2048}")
    prd(0); prd(1)
    for p in range(14):
        if p + 2 < 14: prd(p + 2)
        a(f"s_waitcnt lgkmcnt({4*min(2, 13-p)})")
        b = 32 + 8*(p % 4)
        a(f"buffer_store_dwordx4 {vr(b,4)}, v16, s[16:19], s46 offen")
        a(f"buffer_store_dwordx4 {vr(b+4,4)}, v16, s[16:19], s47 offen")
        a("s_add_u32 s46, s46, s52")
        a("s_add_u32 s47, s47, s52")
    a("s_barrier")
    fin(a, 0, 38)
    a.label("K1_end")
    a("s_endpgm")
    return kd(n, 96, 64, 96), f"; @launch kernel={n} grid=(256,1,1) block=(320,1,1) lds={K1_LDS}"

L_RED, L_OB, L_WO, L_ST, L_DUMMY, L_BIAS, L_HT = 0, 49152, 57344, 147456, 148480, 149504, 150528
L_HN, L_ACT = 0, 57344
KB_LDS = 158720
OB_STRIDE = 912
SHIFT_LIMIT = 40.0
SPIN_LIMIT = 1 << 17
LN2F = math.log(2.0)

class Cnt:
    def __init__(self, name, cap): self.q = []; self.name = name; self.cap = cap
    def issue(self, tag):
        self.q.append(tag)
        assert self.name != "vmcnt" or len(self.q) <= self.cap, (self.name, tag, len(self.q))
    def wait(self, tag):
        if tag not in self.q: return None
        k = len(self.q) - 1 - self.q[::-1].index(tag)
        n = min(len(self.q) - 1 - k, self.cap)
        self.q = self.q[len(self.q)-n:] if n else []
        return f"s_waitcnt {self.name}({n})"
    def clear(self): self.q = []

def cost(t):
    mn = t.split()[0]
    if mn.startswith(("v_exp", "v_rcp", "v_rsq", "v_sqrt")): return 8
    if mn.startswith(("ds_write_b128", "global_store")): return 20
    if mn.startswith(("ds_", "global_", "buffer_")): return 12
    if mn.startswith(("v_cvt_pk", "v_fma_")): return 5
    return 4.3

def gen_kb(a, force_slow=False, force_fence=False):
    n = "kb_kernel"
    header(a, n)
    vm = Cnt("vmcnt", 63); lg = Cnt("lgkmcnt", 15)
    def V(text, tag="-"): a(text); vm.issue(tag)
    def D(text, tag="-"): a(text); lg.issue(tag)
    def WV(tag):
        w = vm.wait(tag)
        if w: a(w)
    def WL(tag):
        w = lg.wait(tag)
        if w: a(w)
    def add64(d, s, off):
        a(f"s_add_u32 s{d}, s{s}, {off}")
        a(f"s_addc_u32 s{d+1}, s{s+1}, 0")
    XR, Q, KVR, S, P, WOV = 16, 32, 64, 96, 128, 144
    NPRE = OPT.get('npre', 0)
    a("s_cmp_ge_u32 s2, 256")
    a("s_cbranch_scc1 KB_end")
    stamp_init(a)
    a("s_load_dwordx2 s[8:9], s[0:1], 88")
    a("s_load_dwordx2 s[10:11], s[0:1], 0")
    a("s_load_dwordx2 s[12:13], s[0:1], 72")
    a("s_load_dwordx2 s[14:15], s[0:1], 56")
    a("v_lshrrev_b32 v1, 6, v0")
    a("v_and_b32 v0, 63, v0")
    a("v_readfirstlane_b32 s3, v1")
    a("s_lshr_b32 s7, s2, 3")
    a("s_and_b32 s4, s2, 7")
    a("s_lshl_b32 s4, s4, 2")
    a("s_lshr_b32 s5, s7, 3")
    a("s_add_u32 s4, s4, s5")
    a("s_and_b32 s5, s7, 7")
    a("s_lshl_b32 s6, s4, 3")
    a("s_add_u32 s6, s6, s5")
    a("v_lshlrev_b32 v1, 4, v0")
    a("v_lshrrev_b32 v2, 5, v0")
    a("v_lshlrev_b32 v3, 2, v0")
    a("s_lshl_b32 s52, s3, 16")
    a(f"s_add_u32 s52, s52, {KV + 4096}")
    a("s_lshl_b32 s53, s5, 13")
    a("s_add_u32 s53, s53, s52")
    a("s_lshl_b32 s54, s6, 13")
    if QF: a(f"s_add_u32 s54, s54, {QF}")
    a(f"s_mov_b32 s55, {KMAX}")
    for t in range(4):
        a(f"s_add_u32 s{56+t}, s3, {t+1}")
        a(f"s_and_b32 s{56+t}, s{56+t}, 3")
        a(f"s_lshl_b32 s{56+t}, s{56+t}, 11")
        a(f"s_add_u32 s{56+t}, s{56+t}, s54")
    a("s_waitcnt lgkmcnt(0)")
    srd(a, 16, 8, 9, WS_SIZE)
    add64(32, 8, "s53")
    V("buffer_load_dword v4, v3, s[16:19], s55 offen", "kmax")
    for t in range(4):
        V(f"buffer_load_dwordx4 {vr(Q+8*t,4)}, v1, s[16:19], s{56+t} offen", f"q{t}")
        V(f"buffer_load_dwordx4 {vr(Q+8*t+4,4)}, v1, s[16:19], s{56+t} offen offset:1024", f"q{t}")
    def kvld(i, part):
        b = 32 + 2*(i >> 1)
        return f"global_load_dwordx4 {vr(KVR+16*(i&1)+4*part,4)}, v1, s[{b}:{b+1}] offset:{4096*(i&1) - 4096 + 1024*part}"
    for i, part in ((0,0), (0,1), (0,2), (0,3), (1,0), (1,1), (1,2), (1,3)):
        V(kvld(i, part), f"{'KV'[part>>1]}{i}")
    srd(a, 20, 10, 11, X_BYTES)
    srd(a, 24, 12, 13, X_BYTES)
    srd(a, 28, 14, 15, 3584)
    a(f"s_mov_b32 m0, {L_BIAS}")
    a("s_lshl_b32 s53, s5, 9")
    V("buffer_load_dwordx4 v1, s[28:31], s53 offen lds", "bias")
    a("v_lshlrev_b32 v10, 7, v0")
    a("s_lshl_b32 s53, s7, 2")
    a("s_add_u32 s53, s53, s3")
    a("s_cmp_lt_u32 s53, 49")
    a("s_cbranch_scc0 KB_wcode")
    a("s_lshl_b32 s54, s53, 13")
    a(f"s_add_u32 s54, s54, {WOF}")
    add64(50, 8, "s54")
    a("global_load_dword v31, v10, s[50:51]")
    a("s_branch KB_wdone")
    a.label("KB_wcode")
    a("s_getpc_b64 s[50:51]")
    a.label("KB_pc")
    a("s_sub_u32 s54, s53, 49")
    a("s_lshl_b32 s54, s54, 13")
    a("v_add_u32 v11, s54, v10")
    a("v_min_u32 v11, KB_code_end-KB_pc-4, v11")
    a("global_load_dword v31, v11, s[50:51]")
    a.label("KB_wdone")
    vm.issue("warm")
    a("s_getreg_b32 s69, hwreg(HW_REG_XCC_ID, 0, 4)")
    a("s_add_u32 s69, s69, 1")
    a("s_lshl_b32 s53, s4, 8")
    a(f"s_add_u32 s53, s53, {SYNC}")
    add64(66, 8, "s53")
    a("s_lshl_b32 s53, s4, 7")
    a(f"s_add_u32 s53, s53, {SYNC + 0x2000}")
    add64(62, 8, "s53")
    a("v_mov_b32 v11, s69")
    a("s_lshl_b32 s53, s5, 2")
    a("v_mov_b32 v12, s53")
    a("s_mov_b64 exec, 1")
    V("global_store_dword v12, v11, s[62:63] sc0 sc1", "xccpub")
    a("s_mov_b64 exec, -1")
    a("s_load_dword s70, s[66:67], 0")
    a("s_load_dword s71, s[66:67], 128")
    a("s_mul_i32 s53, s3, 100352")
    a(f"s_add_u32 s53, s53, {WOF + 4096}")
    add64(48, 8, "s53")
    def woreg(f):
        if f < 48: return ar(64+4*f, 4)
        if f < 76: return vr(WOV+4*(f-48), 4)
        if f < 92: return vr(32+4*(f-76), 4)
        return vr(WOV+4*(f-92), 4)
    VOFF = (1, 7, 9, 8)
    def wo_items(f0, f1):
        it = []
        for f in range(f0, f1):
            if f < 76:
                if f and f % 32 == 0:
                    it += [("s", "s_add_u32 s48, s48, 32768"), ("s", "s_addc_u32 s49, s49, 0")]
                it.append(("v", f"global_load_dwordx4 {woreg(f)}, v{VOFF[(f%32)//8]}, s[48:49] offset:{1024*(f%8) - 4096}", f"wo{f}"))
            else:
                g = (f - 76) // 4
                if f % 4 == 0: it.append(("s", f"s_add_u32 m0, s60, {L_WO + 1024*(f-76)}"))
                b = 50 if g & 1 else 48
                it.append(("v", f"global_load_lds_dwordx4 v{VOFF[1 + g//2]}, s[{b}:{b+1}] offset:{1024*(f%4)}", f"wo{f}"))
        return it
    def emit_item(it):
        if it[0] == "s": a(it[1])
        elif it[0] == "v": V(it[1], it[2])
        elif it[0] == "d": D(it[1], it[2])
        elif it[0] == "wv": WV(it[1])
        elif it[0] == "wl": WL(it[1])
    add64(50, 48, 65536 + 4096)
    assert NPRE <= 8
    for it in wo_items(0, NPRE): emit_item(it)
    a("v_and_b32 v5, 7, v0")
    a("v_lshrrev_b32 v6, 4, v0")
    a("v_mul_u32_u24 v7, 896, v5")
    a("v_lshl_add_u32 v7, v6, 3, v7")
    a("s_mul_i32 s53, s6, 8*896")
    a("s_mul_i32 s54, s3, 224")
    a("s_add_u32 s53, s53, s54")
    for i in range(7): V(f"buffer_load_dwordx2 {vr(XR+2*i,2)}, v7, s[20:23], s53 offen offset:{32*i}", "xr")
    a("v_add_u32 v7, 8192, v1")
    a("v_add_u32 v9, 16384, v1")
    for p in range(1, 8):
        a(f"s_add_u32 s53, s5, {p}")
        a("s_and_b32 s53, s53, 7")
        a("s_lshl_b32 s53, s53, 13")
        a("s_add_u32 s53, s53, s52")
        add64(32+2*p, 8, "s53")
    a("s_mul_i32 s60, s3, 22528")
    for t in range(3):
        a(f"s_add_u32 s53, s3, {t+1}")
        a("s_and_b32 s53, s53, 3")
        a("s_mul_i32 s53, s53, 12288")
        a(f"s_add_u32 s53, s53, {L_RED + 4096*t}")
        a(f"v_add_u32 v{13+t}, s53, v1")
    a("s_lshl_b32 s53, s7, 2")
    a("s_add_u32 s53, s53, s3")
    a("s_mul_i32 s53, s53, 12544")
    a(f"s_add_u32 s53, s53, {W1F + 4096}")
    add64(56, 8, "s53")
    add64(58, 56, W2F - W1F)
    a("s_lshr_b32 s53, s6, 2")
    a("s_mul_i32 s53, s53, 28672")
    a("s_and_b32 s54, s5, 3")
    a("s_lshl_b32 s54, s54, 7")
    a("s_add_u32 s53, s53, s54")
    a("s_mul_i32 s54, s3, 7168")
    a("s_add_u32 s53, s53, s54")
    a(f"s_add_u32 s53, s53, {HN}")
    add64(54, 8, "s53")
    a("v_lshrrev_b32 v10, 2, v0")
    a("v_lshlrev_b32 v10, 7, v10")
    a("v_and_b32 v11, 12, v3")
    a("v_add_u32 v10, v10, v11")
    a("v_add_u32 v11, 8192, v10")
    a("v_min_u32 v12, 13, v0")
    a("v_lshlrev_b32 v12, 9, v12")
    a("v_and_b32 v30, 7, v0")
    a("v_lshlrev_b32 v30, 2, v30")
    late = [("v", "global_load_dword v30, v30, s[62:63] sc1", "xcc"),
            ("v", "global_load_dword v4, v12, s[54:55] sc1", "late")]
    warm = [("v", f"global_load_dword v4, v{10 + (k >> 2)}, s[{b}:{b+1}] offset:{2048*(k & 3) - 4096}", "warm")
            for b in (56, 58) for k in range(7)][:OPT.get('nwarm', 7)]
    nstamp(a, "pro")
    WV("kmax")
    for m_ in ("quad_perm:[1,0,3,2]", "quad_perm:[2,3,0,1]", "row_half_mirror", "row_mirror"):
        a(f"v_max_f32_dpp v4, v4, v4 {m_} row_mask:0xf bank_mask:0xf")
        a("s_nop 1")
    a("v_mov_b32 v8, v4")
    a("s_nop 1")
    a("v_permlane16_swap_b32 v8, v4")
    a("s_nop 1")
    a("v_max_f32 v4, v4, v8")
    half_sum(a, 4, 8, "v_max_f32")
    a(f"v_mul_f32 v4, {hexf(1.02)}, v4")
    a("v_cmp_ne_u32 s[64:65], 0, v2")
    B0 = S + 16
    for t in range(4): a(f"v_mov_b32 v{B0+t}, 0")
    for t in range(4):
        WV(f"q{t}")
        for i in range(8): a(f"v_dot2c_f32_bf16 v{B0+t}, v{Q+8*t+i}, v{Q+8*t+i}")
    a("s_nop 2")
    for t in range(4): a(f"v_mov_b32 v{B0+4+t}, v{B0+t}")
    a("s_nop 0")
    for t in range(4): a(f"v_permlane32_swap_b32 v{B0+4+t}, v{B0+t}")
    a("s_nop 0")
    for t in range(4): a(f"v_add_f32 v{B0+t}, v{B0+t}, v{B0+4+t}")
    for t in range(4): a(f"v_mul_f32 v{B0+t}, v{B0+t}, v4")
    for t in range(4): a(f"v_sqrt_f32 v{B0+t}, v{B0+t}")
    a("s_nop 0")
    a(f"v_max3_f32 v8, v{B0}, v{B0+1}, v{B0+2}")
    a(f"v_max_f32 v8, v8, v{B0+3}")
    lim = -1.0 if force_slow else SHIFT_LIMIT
    a(f"v_cmp_nge_f32 vcc, {hexf(lim)}, v8")
    a("v_add_u32 v8, 24576, v1")
    a("s_cbranch_vccnz KB_slow")
    vm_at_slow = list(vm.q)
    for t in range(4): a(f"v_cvt_pk_bf16_f32 v{B0+t}, -v{B0+t}, 0")
    for t in range(4): a(f"v_cndmask_b32 v{Q+8*t+6}, v{Q+8*t+6}, v{B0+t}, s[64:65]")
    WV("K0")
    a(mfma32(vr(S,16), vr(KVR,4), vr(Q,4), "0"))
    a(mfma32(vr(S,16), vr(KVR+4,4), vr(Q+4,4), vr(S,16)))
    a("s_nop 7")
    a("s_nop 3")
    nstamp(a, "loop")
    slots = {}
    for i in range(16):
        if i <= 13:
            slots[(4*i+2, 0)] = [("v", kvld(i+2, 0), f"K{i+2}")]
            slots[(4*i+2, 1)] = [("v", kvld(i+2, 1), f"K{i+2}")]
        if i <= 14: slots[(4*i+2, 3)] = [("wv", f"K{i+1}")]
        if 1 <= i <= 14:
            slots[(4*i, 2)] = [("v", kvld(i+1, 2), f"V{i+1}")]
            slots[(4*i, 3)] = [("v", kvld(i+1, 3), f"V{i+1}")]
        slots[(4*i+1, 1)] = [("wv", f"V{i}")]
    for q, it in enumerate(warm): slots[(4*(1 + q*14//len(warm)), 1)] = [it]
    free = [(u, k) for u in range(OPT.get('wo0', 1), 56) for k in range(4) if (u, k) not in slots]
    side = wo_items(NPRE, 98)
    assert len(side) <= len(free), (len(side), len(free))
    for q, it in enumerate(side): slots[free[q*len(free)//len(side)]] = [it]
    lf = [(u, k) for u in range(57, 62) for k in range(4) if (u, k) not in slots]
    for q, it in enumerate(late): slots[lf[2*q]] = [it]
    def redw(t, q): return ("d", f"ds_write_b128 v{13+t}, {ar(16*t+4*q,4)} offset:{1024*q}", "red")
    for q, sl in enumerate([(62,1), (62,2), (62,3), (63,2)]): slots.setdefault(sl, []).append(redw(0, q))
    tail63 = [redw(1, q) for q in range(4)]
    slots.setdefault((63,3), []).append(tail63[0])
    for u in range(64):
        sb, pb = S + 16*(u & 1), P + 8*(u & 1)
        sn, pp = S + 16*((u+1) & 1), P + 8*((u-1) & 1)
        un, up = u + 1, u - 1
        kslot = KVR + 16*((un >> 2) & 1); qn = Q + 8*(un & 3)
        vslot = KVR + 16*((up >> 2) & 1) + 8; oa = ar(16*(up & 3), 16)
        M = [mfma32(vr(sn,16), vr(kslot,4), vr(qn,4), "0"),
             mfma32(vr(sn,16), vr(kslot+4,4), vr(qn+4,4), vr(sn,16)),
             mfma32(oa, vr(vslot,4), vr(pp,4), "0" if up < 4 else oa),
             mfma32(oa, vr(vslot+4,4), vr(pp+4,4), oa)]
        e = lambda k: f"v_exp_f32 v{sb+k}, v{sb+k}"
        c = lambda k: f"v_cvt_pk_bf16_f32 v{pb+k}, v{sb+2*k}, v{sb+2*k+1}"
        groups = [[e(0), e(1), e(2), e(3), c(0)], [e(4), c(1), e(5), e(6), e(7), c(2)],
                  [e(8), c(3), e(9), e(10), e(11), c(4)], [e(12), c(5), e(13), e(14), e(15), c(6), c(7)]]
        nstamp(a, f"u{u}")
        for k in range(4):
            if not ((u == 63 and k < 2) or (u == 0 and k >= 2)): a(M[k])
            for it in slots.get((u, k), []): emit_item(it)
            for x in groups[k]: a(x)
    emit_item(tail63[1])
    a(mfma32(ar(48,16), vr(KVR+24,4), vr(P+8,4), ar(48,16)))
    emit_item(tail63[2])
    a(mfma32(ar(48,16), vr(KVR+28,4), vr(P+12,4), ar(48,16)))
    emit_item(tail63[3])
    for q in range(4): emit_item(redw(2, q))
    a.label("KB_red")
    nstamp(a, "red")
    a("s_mul_i32 s53, s3, 12288")
    a("v_add_u32 v8, s53, v1")
    a("v_bfe_u32 v9, v0, 3, 2")
    a("s_lshl_b32 s53, s3, 2")
    a("v_add_u32 v9, s53, v9")
    a("v_mul_u32_u24 v9, 56, v9")
    a(f"v_mul_u32_u24 v10, {OB_STRIDE}, v5")
    a("v_add_u32 v9, v9, v10")
    a("v_lshl_add_u32 v9, v2, 3, v9")
    a(f"v_add_u32 v9, {L_OB}, v9")
    a(f"v_mov_b32 v11, {L_DUMMY}")
    a("v_add_u32 v12, 48, v9")
    a("v_cndmask_b32 v11, v12, v11, s[64:65]")
    a("v_lshl_add_u32 v10, v6, 4, v10")
    a(f"v_add_u32 v10, {L_OB}, v10")
    for i in range(16): a(f"v_accvgpr_read_b32 v{32+i}, a{48+i}")
    a("s_waitcnt lgkmcnt(0)"); lg.clear()
    a("s_barrier")
    for j in range(12): D(f"ds_read_b128 {vr(48+4*j,4)}, v8 offset:{L_RED+1024*j}", f"r{j//4}")
    ACC = 96
    WV("xr")
    for i in range(14):
        a(f"v_lshlrev_b32 v{ACC+2*i}, 16, v{XR+i}")
        a(f"v_and_b32 v{ACC+2*i+1}, 0xffff0000, v{XR+i}")
    for j in range(3):
        WL(f"r{j}")
        for i in range(16): a(f"v_add_f32 v{32+i}, v{32+i}, v{48+16*j+i}")
    a("v_mov_b32 v12, v44")
    a("v_mov_b32 v13, v44")
    a("s_nop 1")
    a("v_permlane32_swap_b32 v12, v13")
    a("s_nop 1")
    a("v_rcp_f32 v13, v13")
    a("s_nop 0")
    for i in range(16): a(f"v_mul_f32 v{32+i}, v{32+i}, v13")
    for i in range(8): a(f"v_cvt_pk_bf16_f32 v{48+i}, v{32+2*i}, v{33+2*i}")
    for i in range(3): D(f"ds_write_b64 v9, {vr(48+2*i,2)} offset:{16*i}")
    D("ds_write_b64 v11, v[54:55]")
    a("s_lshl_b32 s53, s5, 3")
    a("s_add_u32 s53, s53, s3")
    a("s_mul_i32 s53, s53, 28672")
    a(f"s_add_u32 s53, s53, {W1F + 4096}")
    add64(50, 8, "s53")
    a(f"s_add_u32 s53, s60, {L_WO}")
    a("v_add_u32 v8, s53, v1")
    a("s_waitcnt lgkmcnt(0)"); lg.clear()
    a("s_barrier")
    nstamp(a, "wo")
    def w1reg(i):
        return ar(64+4*i, 4) if i < 48 else ar(4*(i-48), 4)
    def w1_items(i):
        it = []
        ks = i % 28
        if i == 28: it += [("s", f"s_add_u32 s50, s50, {4*28672 - 3*8192}"), ("s", "s_addc_u32 s51, s51, 0")]
        elif ks and ks % 8 == 0: it += [("s", "s_add_u32 s50, s50, 8192"), ("s", "s_addc_u32 s51, s51, 0")]
        it.append(("v", f"global_load_dwordx4 {w1reg(i)}, v1, s[50:51] offset:{1024*(ks%8) - 4096}", f"w1_{i}"))
        return it
    for ks in range(14): D(f"ds_read_b128 {ar(4*ks,4)}, v10 offset:{64*ks}", f"o{ks}")
    WV("wo97")
    NW1 = 24
    post = {f: [] for f in range(98)}
    for i in range(NW1):
        it = w1_items(i)
        for q, x in enumerate(it): post[4*i + 3 - (len(it) - 1 - q)].append(x)
    for q in range(16): post[20 + 2*q].append(("d", f"ds_read_b128 {woreg(76+q)}, v8 offset:{1024*q}", f"wl{76+q}"))
    for q in range(6): post[56 + 2*q].append(("d", f"ds_read_b128 {woreg(92+q)}, v8 offset:{1024*(16+q)}", f"wl{92+q}"))
    for f in range(98):
        ks, tile = divmod(f, 7)
        if tile == 0: WL(f"o{ks}")
        if f >= 76: WL(f"wl{f}")
        a(mfma16(vr(ACC+4*tile,4), woreg(f), ar(4*ks,4), vr(ACC+4*tile,4)))
        for it in post[f]: emit_item(it)
    nstamp(a, "woend")
    H = 32
    a("v_and_b32 v14, 15, v0")
    a("v_lshlrev_b32 v14, 3, v14")
    a(f"v_add_u32 v14, {L_ST}, v14")
    a("s_lshl_b32 s53, s3, 7")
    a("v_add_u32 v15, s53, v14")
    a("s_mul_i32 s53, s3, 1792")
    a(f"s_add_u32 s53, s53, {L_HT}")
    a("v_and_b32 v8, 1, v6")
    a("v_lshlrev_b32 v8, 7, v8")
    a("v_lshl_add_u32 v8, v5, 4, v8")
    a("v_lshl_add_u32 v8, v2, 3, v8")
    a("v_add_u32 v8, s53, v8")
    a("v_add_u32 v9, s53, v1")
    for i in range(14): a(f"v_cvt_pk_bf16_f32 v{H+i}, v{ACC+2*i}, v{ACC+2*i+1}")
    a(f"s_mov_b32 s53, {ONES_BF}")
    a("v_mov_b32 v12, 0")
    a("v_mov_b32 v13, 0")
    for i in range(14):
        a(f"v_dot2c_f32_bf16 v12, s53, v{H+i}")
        a(f"v_dot2c_f32_bf16 v13, v{H+i}, v{H+i}")
    for i in range(7): D(f"ds_write_b64 v8, {vr(H+2*i,2)} offset:{256*i}")
    a("v_mov_b32 v10, v12")
    a("v_mov_b32 v11, v13")
    a("s_nop 0")
    a("v_permlane16_swap_b32 v10, v12")
    a("v_permlane16_swap_b32 v11, v13")
    a("s_nop 0")
    a("v_add_f32 v12, v12, v10")
    a("v_add_f32 v13, v13, v11")
    a("v_mov_b32 v10, v12")
    a("v_mov_b32 v11, v13")
    a("s_nop 0")
    a("v_permlane32_swap_b32 v10, v12")
    a("v_permlane32_swap_b32 v11, v13")
    a("s_nop 0")
    a("v_add_f32 v12, v12, v10")
    a("v_add_f32 v13, v13, v11")
    D("ds_write_b64 v15, v[12:13]")
    H8 = 16
    D(f"ds_read_b128 {vr(H8,4)}, v9", "h8")
    D(f"ds_read_b128 {vr(H8+4,4)}, v9 offset:1024", "h8")
    WV("xcc")
    a("s_mov_b32 s68, 1")
    a("v_cmp_ne_u32 vcc, s69, v30")
    if force_fence: a("s_branch KB_xcc")
    else: a("s_cbranch_vccnz KB_xcc")
    a.label("KB_xcc_done")
    a("v_bfe_u32 v7, v0, 3, 1")
    a("v_lshlrev_b32 v8, 10, v6")
    a("v_lshl_add_u32 v8, v7, 9, v8")
    a("v_lshl_add_u32 v8, v5, 4, v8")
    a("v_add_u32 v9, 4096, v8")
    a("s_waitcnt lgkmcnt(0)"); lg.clear()
    a("s_barrier")
    for w in range(4): D(f"ds_read_b64 {vr(48+2*w,2)}, v14 offset:{128*w}", "st")
    for i in range(8):
        a(f"v_lshlrev_b32 v{ACC+2*i}, 16, v{H8+i}")
        a(f"v_and_b32 v{ACC+2*i+1}, 0xffff0000, v{H8+i}")
    WL("st")
    a("v_add_f32 v48, v48, v50")
    a("v_add_f32 v49, v49, v51")
    a("v_add_f32 v52, v52, v54")
    a("v_add_f32 v53, v53, v55")
    a("v_add_f32 v48, v48, v52")
    a("v_add_f32 v49, v49, v53")
    a(f"v_mul_f32 v48, {hexf(1.0/448)}, v48")
    a(f"v_mul_f32 v49, {hexf(1.0/448)}, v49")
    a("v_fma_f32 v49, -v48, v48, v49")
    a("v_max_f32 v49, 0, v49")
    a(f"v_add_f32 v49, {hexf(1e-5)}, v49")
    a("v_rsq_f32 v49, v49")
    a("s_nop 0")
    a(f"v_mul_f32 v49, {hexf(LOG2E)}, v49")
    a("v_mul_f32 v48, -v48, v49")
    for i in range(16): a(f"v_fma_f32 v{ACC+i}, v{ACC+i}, v49, v48")
    for i in range(8): a(f"v_cvt_pk_bf16_f32 v{32+i}, v{ACC+2*i}, v{ACC+2*i+1}")
    nstamp(a, "hnst")
    V("global_store_dwordx4 v8, v[32:35], s[54:55]", "hnst")
    a("s_mov_b32 exec_hi, 0xffff")
    V("global_store_dwordx4 v9, v[36:39], s[54:55]", "hnst")
    a("s_mov_b32 exec_hi, -1")
    a("v_mov_b32 v10, 0")
    a("v_mov_b32 v11, 1")
    a("s_lshl_b32 s53, s3, 6")
    a(f"s_add_u32 s53, s53, {L_BIAS}")
    a("v_lshl_add_u32 v12, v2, 3, s53")
    for q in range(8): D(f"ds_read_b64 {vr(48+2*q,2)}, v12 offset:{16*(q&3) + 256*(q>>2)}", "bias")
    def signal(off, lab):
        a("s_waitcnt vmcnt(0)"); vm.clear()
        a("s_cmp_eq_u32 s68, 0")
        a(f"s_cbranch_scc1 {lab}_fence")
        a("s_mov_b64 exec, 1")
        V(f"global_atomic_add v10, v11, s[66:67] offset:{off}", "sig")
        a("s_mov_b64 exec, -1")
        a.label(f"{lab}_done")
    def poll(off, target, lab):
        a("s_cmp_eq_u32 s68, 0")
        a(f"s_cbranch_scc1 {lab}_fence")
        a("s_mov_b32 s52, 0")
        a.label(f"{lab}_loop")
        a(f"s_load_dword s53, s[66:67], {off} glc")
        a("s_add_u32 s52, s52, 1")
        a("s_waitcnt lgkmcnt(0)"); lg.clear()
        a(f"s_cmp_ge_u32 s53, {target}")
        a(f"s_cbranch_scc1 {lab}_done")
        a(f"s_cmp_lt_u32 s52, {SPIN_LIMIT}")
        a(f"s_cbranch_scc1 {lab}_loop")
        a.label(f"{lab}_done")
    signal(0, "KB_sg1")
    nstamp(a, "sig1")
    a("s_cmp_eq_u32 s5, 7")
    a("s_cbranch_scc1 KB_fin")
    T0, A2, A1, HOLD = 24, 48, 80, 144
    NW1B = 40
    for i in range(NW1, NW1B):
        for it in w1_items(i): emit_item(it)
    WL("bias")
    a(f"s_mov_b32 s53, {hexf(LOG2E)}")
    accs = {("A",0): A1, ("B",0): A1+16, ("B",1): A1+32, ("A",1): A1+48}
    for X, r0 in (("A", 48), ("B", 56)):
        d = accs[(X,0)]
        for i in range(8):
            a(f"v_lshlrev_b32 v{d+2*i}, 16, v{r0+i}")
            a(f"v_and_b32 v{d+2*i+1}, 0xffff0000, v{r0+i}")
        for i in range(16): a(f"v_mul_f32 v{d+i}, s53, v{d+i}")
        for i in range(16): a(f"v_mov_b32 v{accs[(X,1)]+i}, v{d+i}")
    a("s_mul_i32 s53, s4, 57344")
    a("s_lshl_b32 s52, s3, 10")
    a("s_add_u32 s53, s53, s52")
    a(f"s_add_u32 s53, s53, {HN}")
    add64(56, 8, "s53")
    a("s_mul_i32 s53, s3, 3*112*1024")
    a("s_lshl_b32 s61, s5, 14")
    a("s_add_u32 s53, s53, s61")
    a(f"s_add_u32 s53, s53, {W2F + 4096}")
    add64(58, 8, "s53")
    a("s_lshr_b32 s53, s3, 1")
    a("s_add_u32 s53, s53, 12")
    a("s_mul_i32 s53, s53, 112*1024")
    a("s_add_u32 s53, s53, s61")
    a(f"s_add_u32 s53, s53, {W2F + 4096}")
    add64(32, 8, "s53")
    a("s_mul_i32 s53, s4, 458752")
    a("s_mul_i32 s61, s5, 7168")
    a("s_add_u32 s53, s53, s61")
    a(f"s_add_u32 s53, s53, {PART}")
    add64(34, 8, "s53")
    a("s_mul_i32 s61, s3, 1536")
    add64(36, 34, "s61")
    add64(38, 36, 229376)
    a("s_and_b32 s61, s3, 1")
    a("s_mul_i32 s61, s61, 229376")
    a("s_lshr_b32 s53, s3, 1")
    a("s_lshl_b32 s53, s53, 9")
    a("s_add_u32 s61, s61, s53")
    a("s_add_u32 s61, s61, 6144")
    add64(40, 34, "s61")
    a("s_mul_i32 s61, s3, 114688")
    add64(34, 34, "s61")
    a("v_bfe_u32 v12, v0, 3, 2")
    a("v_mul_u32_u24 v12, 57344, v12")
    a("v_lshl_add_u32 v12, v2, 7, v12")
    a("v_lshl_add_u32 v12, v5, 4, v12")
    a("v_lshrrev_b32 v13, 2, v0")
    a("v_min_u32 v13, 13, v13")
    a("v_lshlrev_b32 v13, 7, v13")
    a("v_add_u32 v13, 3584, v13")
    a("v_add_u32 v14, 57344, v13")
    a("s_lshl_b32 s53, s3, 11")
    a(f"s_add_u32 s53, s53, {L_ACT}")
    a("v_add_u32 v8, s53, v1")
    a(f"v_add_u32 v9, {L_ACT}, v1")
    a("s_and_b32 s53, s3, 1")
    a("s_lshl_b32 s53, s53, 14")
    a("v_add_u32 v15, s53, v9")
    poll(0, 32, "KB_pl1")
    nstamp(a, "poll1")
    def dma_items(q):
        it = [("s", f"s_add_u32 m0, s52, {L_HN + 4096*q}")]
        if q: it = [("s", "s_add_u32 s56, s56, 4096"), ("s", "s_addc_u32 s57, s57, 0")] + it
        return it + [("s", "s_nop 0"), ("v", "global_load_lds_dwordx4 v1, s[56:57] sc1", f"hn{q}")]
    a("s_lshl_b32 s52, s3, 10")
    for q in range(7):
        for it in dma_items(q): emit_item(it)
    def w2reg(q):
        if q < 8: return ar(32+4*q, 4)
        if q < 36: return w1reg(28 + q - 8)
        return w1reg(q - 36)
    def w2_items(q):
        u, ks = divmod(q, 16)
        b = 58 if u < 3 else 32
        it = []
        if ks == 8: it += [("s", f"s_add_u32 s{b}, s{b}, 8192"), ("s", f"s_addc_u32 s{b+1}, s{b+1}, 0")]
        elif ks == 0 and 0 < u < 3: it += [("s", f"s_add_u32 s{b}, s{b}, {112*1024 - 8192}"), ("s", f"s_addc_u32 s{b+1}, s{b+1}, 0")]
        it.append(("v", f"global_load_dwordx4 {w2reg(q)}, v1, s[{b}:{b+1}] offset:{1024*(ks%8) - 4096}", f"w2_{q}"))
        return it
    NM = 224
    pre = {i: [] for i in range(NM + 1)}
    post = {i: [] for i in range(NM)}
    mf = []
    hold = lambda ks: vr(HOLD+4*ks, 4)
    for X, tt in (("A",0), ("B",0), ("B",1), ("A",1)):
        d = vr(accs[(X,tt)], 16)
        for ks in range(28): mf.append(mfma32(d, w1reg(ks + (28 if X == "B" else 0)), hold(ks), d))
    act0 = lambda ks: vr(HOLD+4*ks, 4)
    act1 = lambda ks: vr(HOLD+64+4*ks, 4) if ks < 12 else vr(A1+4*(ks-12), 4)
    ring = lambda ks: vr(A1+16+4*(ks & 7), 4)
    units = [(0, act0, 36, 0), (1, act0, 36, 1), (2, act0, 36, 2), (3, ring, 40, 0), (0, act1, 38, 0), (1, act1, 38, 1), (2, act1, 38, 2)]
    for ui, (u, breg, sb_, no) in enumerate(units):
        d = vr(A2+16*(ui & 1), 16)
        for ks in range(16): mf.append(mfma32(d, w2reg(16*u+ks), breg(ks), "0" if ks == 0 else d))
    AHEAD = 4
    rd0 = lambda ks: ("d", f"ds_read_b128 {hold(ks)}, v1 offset:{L_HN + 1024*ks}", f"h0_{ks}")
    rd1 = lambda ks: ("d", f"ds_read_b128 {hold(ks)}, v1 offset:{L_HN + 28672 + 1024*ks}", f"h1_{ks}")
    pre[0] += [("wv", "hn2"), ("s", "s_barrier")] + [rd0(ks) for ks in range(AHEAD)]
    for ks in range(28):
        if ks + AHEAD == 12: post[ks] += [("wv", "hn6"), ("s", "s_barrier")]
        if ks + AHEAD < 28: post[ks].append(rd0(ks + AHEAD))
        pre[ks].append(("wl", f"h0_{ks}"))
    for q in range(7, 14): post[2*(q-7)] += dma_items(q)
    pre[0].append(("wv", "w1_27"))
    for i in range(NW1B, 56): post[14 + 2*(i - NW1B)] += w1_items(i)
    pre[28] += [("wv", "hn13"), ("s", "s_barrier")]
    for ks in range(28):
        pre[28+ks].append(("wv", f"w1_{28+ks}"))
        post[28+ks].append(rd1(ks))
    for q in range(8): post[46 + q] += w2_items(q)
    if OPT.get('touch', 1):
        t0_, dt_ = OPT.get('t0', 47), OPT.get('dt', 6)
        for k in range(8):
            post[t0_ + dt_*k].append(("v", f"global_load_dword v4, v{13 + (k >> 2)}, s[34:35] offset:{1792*(k & 3) - 3584} sc1", "touch"))
    for ks in range(0, 28, 4): pre[56+ks].append(("wl", f"h1_{min(ks+3, 27)}"))
    for q in range(8, 64): post[56 + 2*(q-8)] += w2_items(q)
    for q in range(64): pre[112+q].append(("wv", f"w2_{q}"))
    fill = []
    def mish_items(X, tt, start, idx):
        x0 = accs[(X,tt)]; pk = x0
        L = []
        for g in range(4):
            t = T0 + 4*(g & 1); x = x0 + 4*g
            L += [f"v_exp_f32 v{t+i}, v{x+i}" for i in range(4)]
            L += [f"v_add_f32 v{t+i}, 1.0, v{t+i}" for i in range(4)]
            L += [f"v_fma_f32 v{t+i}, v{t+i}, v{t+i}, 1.0" for i in range(4)]
            L += [f"v_rcp_f32 v{t+i}, v{t+i}" for i in range(4)]
            L += [f"v_mul_f32 v{t+i}, v{t+i}, v{x+i}" for i in range(4)]
            L += [f"v_fmac_f32 v{x+i}, -2.0, v{t+i}" for i in range(4)]
            L += [f"v_cvt_pk_bf16_f32 v{pk+2*g+i}, v{x+2*i}, v{x+2*i+1}" for i in range(2)]
        it = [("s", x, start) for x in L]
        off = tt*16384 + (8192 if X == "B" else 0)
        it += [("d", f"ds_write_b128 v8, {vr(pk+4*hf,4)} offset:{off + 1024*hf}", start) for hf in range(2)]
        return it
    fill += mish_items("A", 0, 31, 0) + mish_items("B", 0, 59, 1)
    fill += [("bar", "b1", 0)]
    fill += mish_items("B", 1, 87, 2) + mish_items("A", 1, 115, 3)
    fill += [("bar", "b2", 0)]
    rda = lambda reg, addr, tt, ks, tag: ("d", f"ds_read_b128 {reg}, {addr} offset:{16384*tt + 1024*ks}", tag)
    need_bar = {}
    for ks in range(16):
        post[101 + ks].append(rda(act0(ks), "v9", 0, ks, f"a0_{ks}"))
        pre[112+ks].append(("wl", f"a0_{ks}"))
    need_bar[101] = "b1"
    for ks in range(16):
        post[155 + ks].append(rda(ring(ks), "v15", 0, ks, f"am_{ks}"))
        pre[160+ks].append(("wl", f"am_{ks}"))
        post[161 + ks].append(rda(act1(ks), "v9", 1, ks, f"a1_{ks}"))
        pre[176+ks].append(("wl", f"a1_{ks}"))
    need_bar[155] = "b2"
    outq = []
    for ui, (u, breg, sb_, no) in enumerate(units):
        d = A2 + 16*(ui & 1); pk = d
        L = []
        for hf in range(2):
            p4 = pk + 4*hf
            L += [("s", f"v_cvt_pk_bf16_f32 v{p4+i}, v{d+8*hf+2*i}, v{d+8*hf+2*i+1}") for i in range(4)]
            L += [("v", f"global_store_dwordx4 v12, {vr(p4,4)}, s[{sb_}:{sb_+1}] offset:{512*no + 256*hf}", "pst")]
        outq.append((112 + 16*ui + 18, L))
    done_bar = set()
    fq = list(fill); cur = [0]
    def emit_fill(it):
        if it[0] == "bar":
            a("s_waitcnt lgkmcnt(0)"); lg.clear()
            a("s_barrier"); done_bar.add(it[1]); print("note: barrier", it[1], "after MFMA", cur[0])
            return 8
        if it[0] == "d": D(it[1])
        else: a(it[1])
        return cost(it[1])
    credit = 0.0
    for i in range(NM):
        cur[0] = i
        assert not outq or i < outq[0][0] + 12, i
        for it in pre[i]: emit_item(it)
        a(mf[i])
        nstamp(a, f"m{i}")
        credit = max(min(credit, 0), -8) + 24
        if i in need_bar:
            c0 = credit
            while need_bar[i] not in done_bar: credit -= emit_fill(fq.pop(0))
            if c0 != credit: print(f"note: {c0 - credit:.0f} cycles of activation work flushed before MFMA {i}")
        for k, it in enumerate(post[i]):
            emit_item(it)
            credit -= (4 if it[0] in "vd" else 0) if k == 0 else (10 if it[0] in "vd" else 4)
        while outq and outq[0][0] <= i and credit > 0:
            L = outq[0][1]
            it = L.pop(0); emit_item(it); credit -= cost(it[1])
            if not L: outq.pop(0)
        while fq and credit > 0 and (fq[0][0] == "bar" or fq[0][2] <= i):
            credit -= emit_fill(fq.pop(0))
    assert not fq, len(fq)
    a("s_nop 7")
    a("s_nop 3")
    for _, L in outq:
        for it in L: emit_item(it)
    nstamp(a, "g2end")
    signal(128, "KB_sg2")
    nstamp(a, "sig2")
    a.label("KB_fin")
    R, SUM, HF = 144, 80, 96
    a("s_mul_i32 s53, s4, 458752")
    a("s_mul_i32 s52, s5, 57344")
    a("s_add_u32 s53, s53, s52")
    a("s_mul_i32 s52, s3, 1792")
    a("s_add_u32 s53, s53, s52")
    a(f"s_add_u32 s53, s53, {PART}")
    add64(56, 8, "s53")
    for i in range(16): a(f"v_mov_b32 v{SUM+i}, 0")
    for i in range(8):
        a(f"v_lshlrev_b32 v{HF+2*i}, 16, v{H8+i}")
        a(f"v_and_b32 v{HF+2*i+1}, 0xffff0000, v{H8+i}")
    a("v_mul_u32_u24 v12, 896, v5")
    a("v_lshl_add_u32 v12, v6, 5, v12")
    a("v_lshl_add_u32 v12, v7, 4, v12")
    a("s_mul_i32 s60, s6, 8*896")
    a("s_mul_i32 s61, s3, 224")
    a("s_add_u32 s60, s60, s61")
    a("s_mov_b32 s62, 0x00003f80")
    a("s_mov_b32 s63, 0x3f800000")
    a(f"s_mov_b32 s61, {hexf(LN2F)}")
    poll(128, 28, "KB_pl2")
    nstamp(a, "poll2")
    vm.clear(); vm.issue("older")
    for p in range(7):
        if p: add64(56, 56, 7168)
        V(f"global_load_dwordx4 {vr(R+8*p,4)}, v1, s[56:57] sc1", f"p{p}")
        V(f"global_load_dwordx4 {vr(R+8*p+4,4)}, v1, s[56:57] offset:1024 sc1", f"p{p}")
    for p in range(7):
        WV(f"p{p}")
        for i in range(8):
            a(f"v_dot2c_f32_bf16 v{SUM+2*i}, s62, v{R+8*p+i}")
            a(f"v_dot2c_f32_bf16 v{SUM+2*i+1}, s63, v{R+8*p+i}")
    a("s_nop 2")
    for i in range(16): a(f"v_fmac_f32 v{HF+i}, s61, v{SUM+i}")
    for i in range(8): a(f"v_cvt_pk_bf16_f32 v{32+i}, v{HF+2*i}, v{HF+2*i+1}")
    for b in (32, 36):
        a(f"v_mov_b32 v40, v{b+2}")
        a(f"v_mov_b32 v41, v{b+3}")
        a("s_nop 0")
        a(f"v_mov_b32_dpp v{b+2}, v{b} row_ror:8 row_mask:0xf bank_mask:0x3")
        a(f"v_mov_b32_dpp v{b+3}, v{b+1} row_ror:8 row_mask:0xf bank_mask:0x3")
        a(f"v_mov_b32_dpp v{b}, v40 row_ror:8 row_mask:0xf bank_mask:0xc")
        a(f"v_mov_b32_dpp v{b+1}, v41 row_ror:8 row_mask:0xf bank_mask:0xc")
    a("buffer_store_dwordx4 v[32:35], v12, s[24:27], s60 offen")
    a("s_mov_b32 exec_hi, 0xffff")
    a("buffer_store_dwordx4 v[36:39], v12, s[24:27], s60 offen offset:128")
    fin(a, 1, 8)
    a.label("KB_end")
    a("s_endpgm")

    a.label("KB_xcc")
    a("s_mov_b32 s52, 0")
    a("v_and_b32 v10, 7, v0")
    a("v_lshlrev_b32 v10, 2, v10")
    a.label("KB_xcc_loop")
    a("v_cmp_eq_u32 vcc, 0, v30")
    a("s_cbranch_vccz KB_xcc_known")
    a("global_load_dword v30, v10, s[62:63] sc1")
    a("s_add_u32 s52, s52, 1")
    a("s_waitcnt vmcnt(0)")
    a(f"s_cmp_lt_u32 s52, {SPIN_LIMIT}")
    a("s_cbranch_scc1 KB_xcc_loop")
    a.label("KB_xcc_known")
    a("v_cmp_ne_u32 vcc, s69, v30")
    if not force_fence: a("s_cbranch_vccz KB_xcc_done")
    a("s_mov_b32 s68, 0")
    a("s_branch KB_xcc_done")
    for lab, off in (("KB_sg1", 0), ("KB_sg2", 128)):
        a.label(f"{lab}_fence")
        a("buffer_wbl2 sc1")
        a("s_waitcnt vmcnt(0)")
        a("s_mov_b64 exec, 1")
        a(f"global_atomic_add v10, v11, s[66:67] offset:{off} sc1")
        a("s_mov_b64 exec, -1")
        a(f"s_branch {lab}_done")
    for lab, off, target in (("KB_pl1", 0, 32), ("KB_pl2", 128, 28)):
        a.label(f"{lab}_fence")
        a("s_mov_b32 s52, 0")
        a.label(f"{lab}_floop")
        a(f"global_load_dword v31, v10, s[66:67] offset:{off} sc1")
        a("s_add_u32 s52, s52, 1")
        a("s_waitcnt vmcnt(0)")
        a("v_readfirstlane_b32 s53, v31")
        a("s_nop 0")
        a(f"s_cmp_ge_u32 s53, {target}")
        a(f"s_cbranch_scc1 {lab}_fdone")
        a(f"s_cmp_lt_u32 s52, {SPIN_LIMIT}")
        a(f"s_cbranch_scc1 {lab}_floop")
        a.label(f"{lab}_fdone")
        a("buffer_inv sc1")
        a("s_waitcnt vmcnt(0) lgkmcnt(0)")
        a(f"s_branch {lab}_done")

    a.label("KB_slow")
    vm.q = list(vm_at_slow)
    a("s_waitcnt vmcnt(0)"); vm.clear()
    for k, it in enumerate(wo_items(NPRE, 98) + late):
        emit_item(it)
        if it[0] == "s" and "m0" in it[1]: a("s_nop 0")
        if len(vm.q) >= 32: a("s_waitcnt vmcnt(0)"); vm.clear()
    MX = P + 8
    for t in range(4): a(f"v_mov_b32 v{MX+t}, 0xff800000")
    for i in range(64): a(f"v_accvgpr_write_b32 a{i}, 0")
    a("s_sub_u32 s52, s52, 4096")
    a("s_mov_b32 s61, 0")
    a.label("KB_s1")
    a("s_add_u32 s53, s52, s61")
    for i in range(2): a(f"buffer_load_dwordx4 {vr(KVR+4*i,4)}, v1, s[16:19], s53 offen offset:{1024*i}")
    a("s_waitcnt vmcnt(0)")
    for t in range(4):
        a(mfma32(vr(S,16), vr(KVR,4), vr(Q+8*t,4), "0"))
        a(mfma32(vr(S,16), vr(KVR+4,4), vr(Q+8*t+4,4), vr(S,16)))
        a("s_nop 7")
        a("s_nop 3")
        for i in range(8): a(f"v_max3_f32 v{MX+t}, v{S+2*i}, v{S+2*i+1}, v{MX+t}")
    a("s_add_u32 s61, s61, 4096")
    a("s_cmp_lt_u32 s61, 0x10000")
    a("s_cbranch_scc1 KB_s1")
    for t in range(4):
        half_sum(a, MX+t, 12, "v_max_f32")
        a(f"s_add_u32 s53, s3, {t+1}")
        a("s_and_b32 s53, s53, 3")
        a("s_lshl_b32 s53, s53, 10")
        a("s_lshl_b32 s61, s3, 8")
        a("s_add_u32 s53, s53, s61")
        a("v_add_u32 v12, s53, v3")
        a(f"ds_write_b32 v12, v{MX+t}")
    a("s_waitcnt lgkmcnt(0)")
    a("s_barrier")
    for t in range(4):
        a(f"s_add_u32 s53, s3, {t+1}")
        a("s_and_b32 s53, s53, 3")
        a("s_lshl_b32 s53, s53, 10")
        a("v_add_u32 v12, s53, v3")
        for w in range(4): a(f"ds_read_b32 v{S+w}, v12 offset:{256*w}")
        a("s_waitcnt lgkmcnt(0)")
        a(f"v_max3_f32 v{MX+t}, v{S}, v{S+1}, v{S+2}")
        a(f"v_max_f32 v{MX+t}, v{MX+t}, v{S+3}")
    a("s_barrier")
    a("s_mov_b32 s61, 0")
    a.label("KB_s2")
    a("s_add_u32 s53, s52, s61")
    for i in range(4): a(f"buffer_load_dwordx4 {vr(KVR+4*i,4)}, v1, s[16:19], s53 offen offset:{1024*i}")
    a("s_waitcnt vmcnt(0)")
    for t in range(4):
        a(mfma32(vr(S,16), vr(KVR,4), vr(Q+8*t,4), "0"))
        a(mfma32(vr(S,16), vr(KVR+4,4), vr(Q+8*t+4,4), vr(S,16)))
        a("s_nop 7")
        a("s_nop 3")
        for i in range(16): a(f"v_sub_f32 v{S+i}, v{S+i}, v{MX+t}")
        for i in range(16): a(f"v_exp_f32 v{S+i}, v{S+i}")
        a("s_nop 0")
        for i in range(8): a(f"v_cvt_pk_bf16_f32 v{P+i}, v{S+2*i}, v{S+2*i+1}")
        a("s_nop 1")
        a(mfma32(ar(16*t,16), vr(KVR+8,4), vr(P,4), ar(16*t,16)))
        a(mfma32(ar(16*t,16), vr(KVR+12,4), vr(P+4,4), ar(16*t,16)))
    a("s_add_u32 s61, s61, 4096")
    a("s_cmp_lt_u32 s61, 0x10000")
    a("s_cbranch_scc1 KB_s2")
    a("s_nop 7")
    a("s_nop 3")
    for t in range(3):
        for q in range(4): a(redw(t, q)[1])
    a("s_branch KB_red")
    a.label("KB_code_end")
    return kd(n, 512, 96, 256), f"; @launch kernel={n} grid=(256,1,1) block=(256,1,1) lds={KB_LDS}"


def build(force_slow=False, extra=0, force_fence=False):
    a = Asm()
    parts = [gen_k1(a), gen_kb(a, force_slow, force_fence)]
    launches = [p[1] for p in parts]
    kds = [p[0] for p in parts]
    if extra:
        header(a, "nop_kernel")
        a("s_endpgm")
        kds.append(kd("nop_kernel", 8, 16, 8))
        launches += ["; @launch kernel=nop_kernel grid=(256,1,1) block=(64,1,1) lds=0"] * extra
    out = "\n".join(launches) + "\n"
    out += '.amdgcn_target "amdgcn-amd-amdhsa--gfx950"\n.text\n'
    out += a.text()
    out += '.section .rodata,"a"\n' + "".join(kds)
    return out

if __name__ == "__main__":
    import argparse
    ap = argparse.ArgumentParser()
    ap.add_argument("-o", default="v2.s")
    ap.add_argument("--slow", action="store_true")
    ap.add_argument("--fence", action="store_true")
    ap.add_argument("--opt", default="")
    ap.add_argument("--extra", type=int, default=0)
    ap.add_argument("--stamps", default="", help="up to six stamp names for the fused kernel")
    args = ap.parse_args()
    for kv in args.opt.split(","):
        if kv:
            k_, _, v_ = kv.partition("=")
            OPT[k_] = int(v_) if v_ else 1
    STAMPS = bool(args.stamps)
    STAMP_SET = args.stamps.split(",")
    txt = build(args.slow, args.extra, args.fence)
    open(args.o, "w").write(txt)
    import hazard
    print("hazards:", hazard.check(txt), "waits:", 0 if STAMPS else hazard.waitcheck(txt))
```

```python
import math, struct, sys

NAME = "sequential_preLN__grouped_kv_mqa__dense_activation_mish__prompt"

QF   = 0x000000
KV   = 0x200000
KMAX = 0x240000
SYNC = 0x248000
WOF  = 0x250000
W1F  = 0x300000
W2F  = 0x500000
HN   = 0x700000
PART = 0xB00000
WS_SIZE = PART + 32*8*8*7168

X_BYTES = 2048*896
WQ_BYTES = 448*896
WK_BYTES = 448*56
W1_BYTES = 448*3584
W2_BYTES = 1792*896

def f2u(f): return struct.unpack("<I", struct.pack("<f", f))[0]
def hexf(f): return "0x%08x" % f2u(f)
LOG2E = math.log2(math.e)
QSCALE = LOG2E / math.sqrt(28.0)
ONES_BF = "0x3f803f80"

class Asm:
    def __init__(self):
        self.L = []
    def __call__(self, s):
        for ln in s.split("\n"):
            ln = ln.strip()
            if ln: self.L.append("    " + ln)
    def label(self, s): self.L.append(s + ":")
    def c(self, s): self.L.append("    ; " + s)
    def text(self): return "\n".join(self.L) + "\n"

def vr(b, n=1): return f"v{b}" if n == 1 else f"v[{b}:{b+n-1}]"
def ar(b, n=1): return f"a{b}" if n == 1 else f"a[{b}:{b+n-1}]"
def sr(b, n=1): return f"s{b}" if n == 1 else f"s[{b}:{b+n-1}]"

def srd(a, d, lo, hi, nbytes):
    a(f"s_mov_b32 s{d}, s{lo}")
    a(f"s_mov_b32 s{d+1}, s{hi}")
    a(f"s_mov_b32 s{d+2}, {nbytes if isinstance(nbytes, str) else hex(nbytes)}")
    a(f"s_mov_b32 s{d+3}, 0x20000")

def header(a, name):
    a.L.append(f".globl {name}")
    a.L.append(".p2align 8")
    a.L.append(f".type {name},@function")
    a.label(name)

def kd(name, vgpr, sgpr, accum):
    return f""".p2align 6
.amdhsa_kernel {name}
  .amdhsa_next_free_vgpr {vgpr}
  .amdhsa_next_free_sgpr {96 if STAMPS else sgpr}
  .amdhsa_accum_offset {accum}
  .amdhsa_group_segment_fixed_size 0
  .amdhsa_kernarg_size 96
  .amdhsa_user_sgpr_count 2
  .amdhsa_user_sgpr_kernarg_segment_ptr 1
  .amdhsa_system_sgpr_workgroup_id_x 1
.end_amdhsa_kernel
"""

STAMPS = False
STAMP_BASE = 0x8000000
def stamp(a, i):
    if STAMPS: a(f"s_memrealtime s[{72+2*i}:{73+2*i}]")
STAMP_SET = []
OPT = {}
def nstamp(a, name):
    if STAMPS and name in STAMP_SET:
        i = 1 + STAMP_SET.index(name)
        a(f"{'s_memtime' if OPT.get('cyc') else 's_memrealtime'} s[{72+2*i}:{73+2*i}]")
def stamp_init(a):
    if STAMPS:
        for i in range(8): a(f"s_mov_b32 s{72+2*i}, 0")
        stamp(a, 0)
        if OPT.get("dbg"): a("s_load_dwordx2 s[92:93], s[0:1], 80")
def fin(a, kidx, wslo):
    if STAMPS and OPT.get("dbg"):
        stamp(a, 7)
        a("s_mov_b64 exec, 0xff")
        a("s_waitcnt lgkmcnt(0)")
        a("s_not_b32 s72, s72")
        a("v_mbcnt_lo_u32_b32 v1, -1, 0")
        for i in range(8):
            a(f"v_mov_b32 v2, s{72+2*i}")
            a(f"v_cmp_eq_u32 vcc, {i}, v1")
            a("v_cndmask_b32 v0, v0, v2, vcc")
        a("v_lshlrev_b32 v1, 2, v1")
        a(f"s_add_u32 s92, s92, {32 if kidx else 512}")
        a("s_addc_u32 s93, s93, 0")
        a("s_and_b32 s90, s2, 31")
        a("s_lshl_b32 s91, s3, 5")
        a("s_or_b32 s90, s90, s91")
        a("s_cmp_eq_u32 s90, 5")
        a("s_cselect_b64 exec, exec, 0")
        a("global_atomic_umax v1, v0, s[92:93]")
    elif STAMPS:
        stamp(a, 7)
        a("s_mov_b64 exec, 1")
        a("s_waitcnt lgkmcnt(0)")
        for i in range(8): a(f"v_mov_b32 v{i}, s{72+2*i}")
        srd(a, 68, wslo, wslo+1, 0x10000000)
        a("s_lshl_b32 s90, s2, 3")
        a("s_add_u32 s90, s90, s3")
        a(f"s_add_u32 s90, s90, {kidx*4096}")
        a("s_lshl_b32 s90, s90, 5")
        a(f"s_add_u32 s90, s90, {STAMP_BASE}")
        a("v_mov_b32 v8, 0")
        a("buffer_store_dwordx4 v[0:3], v8, s[68:71], s90 offen")
        a("buffer_store_dwordx4 v[4:7], v8, s[68:71], s90 offen offset:16")
        if kidx == 1 and "pa" in OPT:
            lab = f"PRB{len(a.L)}"
            a("s_lshl_b32 s91, s3, 8")
            a("s_or_b32 s91, s91, s2")
            a("s_cmp_lg_u32 s91, 5")
            a(f"s_cbranch_scc1 {lab}_e")
            a(f"s_add_u32 s68, s68, {STAMP_BASE + 5*8*32}")
            a("s_addc_u32 s69, s69, 0")
            a("s_load_dwordx8 s[40:47], s[68:69], 0")
            a("s_waitcnt lgkmcnt(0)")
            reg = lambda i: f"s{40+i}" if i < 8 else f"s{72+2*(i-8)}"
            a(f"s_sub_u32 s91, {reg(int(OPT['pb']))}, {reg(int(OPT['pa']))}")
            a("s_lshl_b32 s91, s91, 3")
            a("s_min_u32 s91, s91, 40000")
            a("s_add_u32 s91, s91, s86")
            a.label(lab)
            a("s_memrealtime s[48:49]")
            a("s_waitcnt lgkmcnt(0)")
            a("s_sub_u32 s50, s48, s91")
            a("s_cmp_lt_i32 s50, 0")
            a(f"s_cbranch_scc1 {lab}")
            a.label(lab + "_e")
    a("s_endpgm")

def mfma32(d, A, B, C): return f"v_mfma_f32_32x32x16_bf16 {d}, {A}, {B}, {C}"
def mfma16(d, A, B, C): return f"v_mfma_f32_16x16x32_bf16 {d}, {A}, {B}, {C}"

def half_sum(a, x, t, op="v_add_f32"):
    a(f"v_mov_b32 v{t}, v{x}")
    a("s_nop 1")
    a(f"v_permlane32_swap_b32 v{t}, v{x}")
    a("s_nop 1")
    a(f"{op} v{x}, v{x}, v{t}")

K1_X, K1_W0, K1_W4, K1_ST, K1_CS = 0, 57344, 114688, 143360, 143872
K1_LDS = 144640

def gen_k1(a):
    n = "k1_kernel"
    header(a, n)
    a("s_cmp_ge_u32 s2, 256")
    a("s_cbranch_scc1 K1_end")
    stamp_init(a)
    a("s_load_dwordx4 s[24:27], s[0:1], 0")
    a("s_load_dwordx4 s[28:31], s[0:1], 16")
    a("s_load_dwordx2 s[32:33], s[0:1], 32")
    a("s_load_dwordx2 s[34:35], s[0:1], 48")
    a("s_load_dwordx2 s[36:37], s[0:1], 64")
    a("s_load_dwordx2 s[38:39], s[0:1], 88")
    a("v_lshrrev_b32 v1, 6, v0")
    a("v_and_b32 v0, 63, v0")
    a("v_readfirstlane_b32 s3, v1")
    a("s_and_b32 s4, s2, 7")
    a("s_lshl_b32 s4, s4, 2")
    a("s_bfe_u32 s6, s2, 0x20003")
    a("s_add_u32 s4, s4, s6")
    a("s_lshr_b32 s5, s2, 5")
    a("v_lshrrev_b32 v2, 5, v0")
    a("v_bfe_u32 v3, v0, 4, 1")
    a("v_bfe_u32 v4, v0, 2, 2")
    a("v_and_b32 v5, 3, v0")
    a("v_lshrrev_b32 v6, 2, v0")
    a("v_lshlrev_b32 v7, 4, v5")
    a("s_cmp_eq_u32 s3, 4")
    a("s_cbranch_scc1 K1_w4")
    a("v_lshrrev_b32 v8, 3, v0")
    a("v_and_b32 v9, 7, v0")
    a("v_lshrrev_b32 v10, 1, v8")
    a("v_xor_b32 v9, v9, v10")
    a("s_and_b32 s6, s3, 1")
    a("s_lshl_b32 s7, s6, 2")
    a("v_xor_b32 v9, s7, v9")
    a("v_mul_u32_u24 v8, 896, v8")
    a("v_lshl_add_u32 v8, v9, 4, v8")
    a("v_mul_u32_u24 v9, 896, v6")
    a("v_add_u32 v9, v9, v7")
    a("s_lshl_b32 s40, s4, 6")
    a("s_lshl_b32 s41, s3, 4")
    a("s_add_u32 s40, s40, s41")
    a("s_mul_i32 s40, s40, 896")
    a("s_mul_i32 s41, s3, 14336")
    a("s_lshl_b32 s42, s5, 1")
    a("s_add_u32 s42, s42, s6")
    a("s_mul_i32 s43, s42, 56")
    a("s_lshr_b32 s44, s3, 1")
    a("s_mul_i32 s45, s44, 224*896")
    a("s_add_u32 s43, s43, s45")
    a("s_mul_i32 s45, s6, 28672")
    a("s_mul_i32 s46, s44, 14336")
    a("s_add_u32 s45, s45, s46")
    a(f"s_add_u32 s45, s45, {K1_W0}")
    a("s_waitcnt lgkmcnt(0)")
    srd(a, 8, 24, 25, X_BYTES)
    srd(a, 12, 26, 27, WQ_BYTES)
    srd(a, 16, 38, 39, WS_SIZE)
    a("s_cmp_ge_u32 s2, 3")
    a("s_cbranch_scc1 K1_noclr")
    for i in range(4): a(f"v_mov_b32 v{12+i}, 0")
    a("s_lshl_b32 s46, s2, 2")
    a("s_add_u32 s46, s46, s3")
    a("s_lshl_b32 s46, s46, 10")
    a(f"s_add_u32 s46, s46, {SYNC}")
    a("v_lshlrev_b32 v11, 4, v0")
    a("buffer_store_dwordx4 v[12:15], v11, s[16:19], s46 offen")
    a.label("K1_noclr")
    for j in range(14):
        a("s_mov_b32 m0, s41")
        a("s_add_u32 s41, s41, 1024")
        a("buffer_load_dwordx4 v8, s[8:11], s40 offen lds")
        a(f"s_add_u32 s40, s40, {128 if j != 6 else 8*896 - 6*128}")
        a("s_mov_b32 m0, s45")
        a("s_add_u32 s45, s45, 1024")
        a("buffer_load_dwordx4 v9, s[12:15], s43 offen lds")
        a(f"s_add_u32 s43, s43, {16*896}")
    a("v_lshlrev_b32 v10, 3, v2")
    a("v_add_u32 v10, v10, v4")
    a("v_lshlrev_b32 v10, 6, v10")
    a("v_lshl_add_u32 v10, v3, 5, v10")
    a("v_lshl_add_u32 v10, v5, 3, v10")
    a("s_mul_i32 s46, s6, 28672")
    a(f"s_add_u32 s46, s46, {K1_W0}")
    a("v_add_u32 v10, s46, v10")
    a("s_mov_b32 s47, 0")
    a("s_mul_i32 s46, s3, 14336")
    a("v_mul_u32_u24 v11, 7168, v2")
    a("v_and_b32 v12, 7, v6")
    a("v_lshl_add_u32 v11, v12, 7, v11")
    a("v_lshl_add_u32 v11, v5, 5, v11")
    a("v_add_u32 v11, s46, v11")
    stamp(a, 1)
    a("s_waitcnt vmcnt(0)")
    stamp(a, 2)
    a("s_barrier")
    stamp(a, 3)
    for kg in range(7):
        a(f"ds_read_b128 {vr(32+8*kg,4)}, v11 offset:{kg*1024}")
        a(f"ds_read_b128 {vr(36+8*kg,4)}, v11 offset:{kg*1024+16}")
    for i in range(4): a(f"v_mov_b32 v{20+i}, 0")
    a(f"s_mov_b32 s48, {ONES_BF}")
    for q in range(14):
        a(f"s_waitcnt lgkmcnt({13-q})")
        for i in range(4):
            r = 32 + 4*q + i
            a(f"v_dot2c_f32_bf16 v{20+(i&1)}, s48, v{r}")
            a(f"v_dot2c_f32_bf16 v{22+(i&1)}, v{r}, v{r}")
    a("s_nop 2")
    a("v_add_f32 v20, v20, v21")
    a("v_add_f32 v22, v22, v23")
    a("s_nop 1")
    a("v_add_f32_dpp v20, v20, v20 quad_perm:[1,0,3,2] row_mask:0xf bank_mask:0xf")
    a("v_add_f32_dpp v22, v22, v22 quad_perm:[1,0,3,2] row_mask:0xf bank_mask:0xf")
    a("s_nop 1")
    a("v_add_f32_dpp v20, v20, v20 quad_perm:[2,3,0,1] row_mask:0xf bank_mask:0xf")
    a("v_add_f32_dpp v22, v22, v22 quad_perm:[2,3,0,1] row_mask:0xf bank_mask:0xf")
    a(f"v_mul_f32 v20, {hexf(1.0/448)}, v20")
    a(f"v_mul_f32 v22, {hexf(1.0/448)}, v22")
    a("v_fma_f32 v22, -v20, v20, v22")
    a("v_max_f32 v22, 0, v22")
    a(f"v_add_f32 v22, {hexf(1e-5)}, v22")
    a("v_rsq_f32 v22, v22")
    a("s_lshl_b32 s46, s3, 6")
    a(f"s_add_u32 s46, s46, {K1_ST}")
    a("v_mul_f32 v20, -v20, v22")
    a("v_lshl_add_u32 v12, v6, 2, s46")
    a("ds_write_b32 v12, v22")
    a("ds_write_b32 v12, v20 offset:256")
    a("s_branch K1_proj")

    a.label("K1_w4")
    a("s_waitcnt lgkmcnt(0)")
    srd(a, 16, 38, 39, WS_SIZE)
    a("s_cmp_ge_u32 s5, 4")
    a("s_cbranch_scc1 K1_prep")
    a("s_lshr_b32 s47, s5, 1")
    a("s_cmp_eq_u32 s47, 0")
    a("s_cselect_b32 s12, s28, s30")
    a("s_cselect_b32 s13, s29, s31")
    a(f"s_mov_b32 s14, {WK_BYTES}")
    a("s_mov_b32 s15, 0x20000")
    a("s_add_u32 s47, s47, 1")
    a("s_and_b32 s44, s5, 1")
    a("v_mul_u32_u24 v9, 56, v6")
    a("v_add_u32 v9, v9, v7")
    a("s_mov_b32 s43, 0")
    a(f"s_mov_b32 s45, {K1_W4}")
    for j in range(28):
        a("s_mov_b32 m0, s45")
        a("s_add_u32 s45, s45, 1024")
        a("buffer_load_dwordx4 v9, s[12:15], s43 offen lds")
        a(f"s_add_u32 s43, s43, {16*56}")
    a("v_lshlrev_b32 v10, 3, v2")
    a("v_add_u32 v10, v10, v4")
    a("v_lshlrev_b32 v10, 6, v10")
    a("v_lshl_add_u32 v10, v3, 5, v10")
    a("v_lshl_add_u32 v10, v5, 3, v10")
    a(f"v_add_u32 v10, {K1_W4}, v10")
    stamp(a, 1)
    a("s_waitcnt vmcnt(0)")
    stamp(a, 2)
    a("s_barrier")
    stamp(a, 3)

    a.label("K1_proj")
    stamp(a, 4)
    a("v_and_b32 v13, 31, v0")
    a("v_bfe_u32 v14, v13, 1, 2")
    a("v_lshrrev_b32 v15, 2, v13")
    a("v_and_b32 v15, 4, v15")
    a("v_or_b32 v14, v14, v15")
    a("v_xor_b32 v14, v14, v2")
    a("v_lshrrev_b32 v15, 3, v13")
    a("v_mul_u32_u24 v15, 7168, v15")
    a("v_and_b32 v16, 7, v13")
    a("v_lshl_add_u32 v15, v16, 7, v15")
    a("s_mul_i32 s46, s44, 28672")
    a("v_add_u32 v15, s46, v15")
    for j in range(4):
        a(f"v_xor_b32 v16, {2*j}, v14")
        a(f"v_lshl_add_u32 v{24+j}, v16, 4, v15")
    a(f"s_mov_b32 s48, {ONES_BF}")
    a("v_mov_b32 v28, 0")
    a("v_mov_b32 v29, 0")
    a("s_cmp_eq_u32 s47, 2")
    a("s_cbranch_scc1 K1_projv")
    RING = 4
    def rd(ks):
        b = 32 + 8*(ks % RING)
        a(f"ds_read_b64_tr_b16 {vr(b,2)}, v10 offset:{ks*1024}")
        a(f"ds_read_b64_tr_b16 {vr(b+2,2)}, v10 offset:{ks*1024+256}")
        a(f"ds_read_b128 {vr(b+4,4)}, v{24+(ks&3)} offset:{(ks>>2)*1024}")
    def loop(swap):
        for ks in range(RING-1): rd(ks)
        for ks in range(28):
            if ks + RING - 1 < 28: rd(ks + RING - 1)
            out = min(RING - 1, 27 - ks) * 3
            a(f"s_waitcnt lgkmcnt({out})")
            b = 32 + 8*(ks % RING)
            W, X = vr(b,4), vr(b+4,4)
            C = "0" if ks == 0 else vr(64,16)
            a(mfma32(vr(64,16), X, W, C) if swap else mfma32(vr(64,16), W, X, C))
            for i in range(4): a(f"v_dot2c_f32_bf16 v{28+(i&1)}, s48, v{b+i}")
    loop(False)
    stamp(a, 5)
    a("s_nop 2")
    a("v_add_f32 v28, v28, v29")
    half_sum(a, 28, 29)
    a("s_lshl_b32 s46, s3, 7")
    a(f"s_add_u32 s46, s46, {K1_CS}")
    a("v_lshl_add_u32 v16, v13, 2, s46")
    a("ds_write_b32 v16, v28")
    a("v_lshl_add_u32 v16, v2, 4, s46")
    a("s_waitcnt lgkmcnt(0)")
    for i in range(4): a(f"ds_read_b128 {vr(32+4*i,4)}, v16 offset:{32*i}")
    a("s_barrier")
    a("s_lshl_b32 s46, s44, 7")
    a(f"s_add_u32 s46, s46, {K1_ST}")
    a("v_lshl_add_u32 v16, v13, 2, s46")
    a("ds_read_b32 v20, v16")
    a("ds_read_b32 v21, v16 offset:256")
    a("s_cmp_eq_u32 s47, 0")
    a(f"s_cselect_b32 s49, {hexf(QSCALE)}, 1.0")
    a("s_cselect_b32 s50, 0, 0x3f80")
    a("s_waitcnt lgkmcnt(0)")
    a("v_mul_f32 v20, s49, v20")
    a("v_mul_f32 v21, s49, v21")
    for i in range(16):
        a(f"v_mul_f32 v{64+i}, v{64+i}, v20")
        a(f"v_fmac_f32 v{64+i}, v{32+i}, v21")
    for i in range(8): a(f"v_cvt_pk_bf16_f32 v{48+i}, v{64+2*i}, v{65+2*i}")
    a("v_cmp_ne_u32 s[52:53], 0, v2")
    a("s_nop 1")
    a("v_cndmask_b32 v54, v54, 0, s[52:53]")
    a("v_cndmask_b32 v55, v55, 0, s[52:53]")
    a("s_cmp_eq_u32 s47, 0")
    a("s_cbranch_scc0 K1_epk")
    a("v_lshrrev_b32 v16, 3, v13")
    a("v_lshlrev_b32 v16, 13, v16")
    a("v_lshl_add_u32 v16, v2, 9, v16")
    a("v_and_b32 v17, 7, v13")
    a("v_lshl_add_u32 v16, v17, 4, v16")
    a("s_lshl_b32 s46, s4, 3")
    a("s_lshl_b32 s49, s44, 2")
    a("s_add_u32 s46, s46, s49")
    a("s_lshl_b32 s46, s46, 13")
    a("s_lshr_b32 s49, s42, 2")
    a("s_lshl_b32 s49, s49, 11")
    a("s_add_u32 s46, s46, s49")
    a("s_and_b32 s49, s42, 3")
    a("s_lshl_b32 s49, s49, 7")
    a("s_add_u32 s46, s46, s49")
    if QF: a(f"s_add_u32 s46, s46, {QF}")
    a("buffer_store_dwordx4 v[48:51], v16, s[16:19], s46 offen")
    a("buffer_store_dwordx4 v[52:55], v16, s[16:19], s46 offen offset:1024")
    fin(a, 0, 38)
    a.label("K1_epk")
    a("v_mov_b32 v20, 0")
    for i in range(8): a(f"v_dot2c_f32_bf16 v20, v{48+i}, v{48+i}")
    a("v_mov_b32 v22, s50")
    a("v_cndmask_b32 v54, v54, v22, s[52:53]")
    a("s_nop 1")
    half_sum(a, 20, 21)
    a("s_nop 1")
    for m in ("quad_perm:[1,0,3,2]", "quad_perm:[2,3,0,1]", "row_half_mirror", "row_mirror"):
        a(f"v_max_f32_dpp v20, v20, v20 {m} row_mask:0xf bank_mask:0xf")
        a("s_nop 1")
    a("v_mov_b32 v21, v20")
    a("s_nop 1")
    a("v_permlane16_swap_b32 v21, v20")
    a("s_nop 1")
    a("v_max_f32 v20, v20, v21")
    a("s_lshl_b32 s46, s4, 1")
    a("s_add_u32 s46, s46, s44")
    a("s_lshl_b32 s49, s46, 2")
    a(f"s_add_u32 s49, s49, {KMAX}")
    a("s_lshl_b32 s46, s46, 12")
    a(f"s_add_u32 s46, s46, {KV}")
    a("v_lshlrev_b32 v16, 4, v0")
    a("v_mov_b32 v17, 0")
    a("buffer_store_dwordx4 v[48:51], v16, s[16:19], s46 offen")
    a("buffer_store_dwordx4 v[52:55], v16, s[16:19], s46 offen offset:1024")
    a("s_mov_b64 exec, 1")
    a("buffer_store_dword v20, v17, s[16:19], s49 offen")
    fin(a, 0, 38)
    a.label("K1_projv")
    loop(True)
    stamp(a, 5)
    a("s_nop 2")
    a("v_add_f32 v28, v28, v29")
    half_sum(a, 28, 29)
    a("s_barrier")
    a("s_lshl_b32 s46, s44, 7")
    a(f"s_add_u32 s46, s46, {K1_ST}")
    a("v_lshl_add_u32 v16, v2, 4, s46")
    for i in range(4): a(f"ds_read_b128 {vr(32+4*i,4)}, v16 offset:{32*i}")
    for i in range(4): a(f"ds_read_b128 {vr(48+4*i,4)}, v16 offset:{256+32*i}")
    a("s_waitcnt lgkmcnt(0)")
    for i in range(16):
        a(f"v_mul_f32 v{64+i}, v{64+i}, v{32+i}")
        a(f"v_fmac_f32 v{64+i}, v{48+i}, v28")
    for i in range(8): a(f"v_cvt_pk_bf16_f32 v{48+i}, v{64+2*i}, v{65+2*i}")
    a("v_cmp_eq_u32 s[52:53], 28, v13")
    a(f"v_mov_b32 v21, {ONES_BF}")
    a("s_nop 0")
    a("v_cndmask_b32 v21, 0, v21, s[52:53]")
    a("v_cmp_lt_u32 s[52:53], 27, v13")
    a("s_nop 1")
    for i in range(8): a(f"v_cndmask_b32 v{48+i}, v{48+i}, v21, s[52:53]")
    a("s_lshl_b32 s46, s4, 1")
    a("s_add_u32 s46, s46, s44")
    a("s_lshl_b32 s46, s46, 12")
    a(f"s_add_u32 s46, s46, {KV}")
    a("v_lshlrev_b32 v16, 4, v0")
    a("buffer_store_dwordx4 v[48:51], v16, s[16:19], s46 offen offset:2048")
    a("buffer_store_dwordx4 v[52:55], v16, s[16:19], s46 offen offset:3072")
    fin(a, 0, 38)

    a.label("K1_prep")
    a("s_lshl_b32 s40, s4, 2")
    a("s_add_u32 s40, s40, s5")
    a("s_sub_u32 s40, s40, 4")
    a("s_cmp_ge_u32 s40, 126")
    a("s_cbranch_scc1 K1_end")
    a("v_lshlrev_b32 v10, 2, v2")
    a("v_add_u32 v10, v10, v4")
    a("v_lshlrev_b32 v10, 6, v10")
    a("v_lshl_add_u32 v10, v3, 5, v10")
    a("v_lshl_add_u32 v10, v5, 3, v10")
    a("s_mov_b32 s50, 512")
    a("s_mov_b32 s51, 1024")
    a("s_mov_b32 s52, 2048")
    a("s_mov_b32 s53, 1024")
    a("s_cmp_ge_u32 s40, 56")
    a("s_cbranch_scc1 K1_prep2")
    srd(a, 12, 34, 35, W1_BYTES)
    a("s_mov_b32 s41, 3584")
    a("s_lshl_b32 s43, s40, 6")
    a("s_mul_i32 s46, s40, 28672")
    a(f"s_add_u32 s46, s46, {W1F}")
    a("s_branch K1_prep4")
    a.label("K1_prep2")
    a("s_cmp_ge_u32 s40, 112")
    a("s_cbranch_scc1 K1_prep3")
    srd(a, 12, 36, 37, W2_BYTES)
    a("s_mov_b32 s41, 896")
    a("s_sub_u32 s40, s40, 56")
    a("s_lshr_b32 s6, s40, 2")
    a("s_and_b32 s7, s40, 3")
    a("s_mul_i32 s43, s7, 448*896")
    a("s_lshl_b32 s44, s6, 6")
    a("s_add_u32 s43, s43, s44")
    a("s_mul_i32 s46, s40, 28672")
    a(f"s_add_u32 s46, s46, {W2F}")
    a("s_branch K1_prep4")
    a.label("K1_prep3")
    srd(a, 12, 32, 33, WQ_BYTES)
    a("s_mov_b32 s41, 896")
    a("s_sub_u32 s40, s40, 112")
    a("s_lshl_b32 s43, s40, 6")
    a("s_lshl_b32 s6, s40, 1")
    for r in (46, 53):
        a("s_mul_i32 s7, s6, 37")
        a("s_lshr_b32 s7, s7, 8")
        a(f"s_mul_i32 s{r}, s7, {100352 - 7*1024}")
        a("s_lshl_b32 s7, s6, 10")
        a(f"s_add_u32 s{r}, s{r}, s7")
        a("s_add_u32 s6, s6, 1")
    a("s_sub_u32 s53, s53, s46")
    a(f"s_add_u32 s46, s46, {WOF}")
    a("v_lshrrev_b32 v10, 4, v0")
    a("v_lshlrev_b32 v10, 3, v10")
    a("v_add_u32 v10, v10, v4")
    a("v_lshlrev_b32 v10, 6, v10")
    a("v_lshl_add_u32 v10, v5, 3, v10")
    a("s_mov_b32 s50, 256")
    a("s_mov_b32 s51, 32")
    a("s_mov_b32 s52, 7168")
    a.label("K1_prep4")
    a("v_mul_lo_u32 v9, v6, s41")
    a("v_add_u32 v9, v9, v7")
    a("s_lshl_b32 s41, s41, 4")
    a(f"s_mov_b32 s45, {K1_W4}")
    for j in range(28):
        a("s_mov_b32 m0, s45")
        a("s_add_u32 s45, s45, 1024")
        a("buffer_load_dwordx4 v9, s[12:15], s43 offen lds")
        a("s_add_u32 s43, s43, s41")
    a(f"v_add_u32 v10, {K1_W4}, v10")
    a("v_add_u32 v11, s50, v10")
    a("v_add_u32 v12, s51, v10")
    a("v_add_u32 v13, s51, v11")
    a("v_lshlrev_b32 v16, 4, v0")
    a("s_add_u32 s47, s46, s53")
    stamp(a, 1)
    a("s_waitcnt vmcnt(0)")
    stamp(a, 2)
    a("s_barrier")
    stamp(a, 3)
    def prd(p):
        b = 32 + 8*(p % 4)
        a(f"ds_read_b64_tr_b16 {vr(b,2)}, v10 offset:{p*2048}")
        a(f"ds_read_b64_tr_b16 {vr(b+2,2)}, v11 offset:{p*2048}")
        a(f"ds_read_b64_tr_b16 {vr(b+4,2)}, v12 offset:{p*2048}")
        a(f"ds_read_b64_tr_b16 {vr(b+6,2)}, v13 offset:{p*2048}")
    prd(0); prd(1)
    for p in range(14):
        if p + 2 < 14: prd(p + 2)
        a(f"s_waitcnt lgkmcnt({4*min(2, 13-p)})")
        b = 32 + 8*(p % 4)
        a(f"buffer_store_dwordx4 {vr(b,4)}, v16, s[16:19], s46 offen")
        a(f"buffer_store_dwordx4 {vr(b+4,4)}, v16, s[16:19], s47 offen")
        a("s_add_u32 s46, s46, s52")
        a("s_add_u32 s47, s47, s52")
    a("s_barrier")
    fin(a, 0, 38)
    a.label("K1_end")
    a("s_endpgm")
    return kd(n, 96, 64, 96), f"; @launch kernel={n} grid=(256,1,1) block=(320,1,1) lds={K1_LDS}"

L_RED, L_OB, L_WO, L_ST, L_DUMMY, L_BIAS, L_HT = 0, 49152, 57344, 147456, 148480, 149504, 150528
L_HN, L_ACT = 0, 57344
KB_LDS = 158720
OB_STRIDE = 912
SHIFT_LIMIT = 40.0
SPIN_LIMIT = 1 << 17
LN2F = math.log(2.0)

class Cnt:
    def __init__(self, name, cap): self.q = []; self.name = name; self.cap = cap
    def issue(self, tag):
        self.q.append(tag)
        assert self.name != "vmcnt" or len(self.q) <= self.cap, (self.name, tag, len(self.q))
    def wait(self, tag):
        if tag not in self.q: return None
        k = len(self.q) - 1 - self.q[::-1].index(tag)
        n = min(len(self.q) - 1 - k, self.cap)
        self.q = self.q[len(self.q)-n:] if n else []
        return f"s_waitcnt {self.name}({n})"
    def clear(self): self.q = []

def cost(t):
    mn = t.split()[0]
    if mn.startswith(("v_exp", "v_rcp", "v_rsq", "v_sqrt")): return 8
    if mn.startswith(("ds_write_b128", "global_store")): return 20
    if mn.startswith(("ds_", "global_", "buffer_")): return 12
    if mn.startswith(("v_cvt_pk", "v_fma_")): return 5
    return 4.3

def gen_kb(a, force_slow=False, force_fence=False):
    n = "kb_kernel"
    header(a, n)
    vm = Cnt("vmcnt", 63); lg = Cnt("lgkmcnt", 15)
    def V(text, tag="-"): a(text); vm.issue(tag)
    def D(text, tag="-"): a(text); lg.issue(tag)
    def WV(tag):
        w = vm.wait(tag)
        if w: a(w)
    def WL(tag):
        w = lg.wait(tag)
        if w: a(w)
    def add64(d, s, off):
        a(f"s_add_u32 s{d}, s{s}, {off}")
        a(f"s_addc_u32 s{d+1}, s{s+1}, 0")
    XR, Q, KVR, S, P, WOV = 16, 32, 64, 96, 128, 144
    NPRE = OPT.get('npre', 0)
    a("s_cmp_ge_u32 s2, 256")
    a("s_cbranch_scc1 KB_end")
    stamp_init(a)
    a("s_load_dwordx2 s[8:9], s[0:1], 88")
    a("s_load_dwordx2 s[10:11], s[0:1], 0")
    a("s_load_dwordx2 s[12:13], s[0:1], 72")
    a("s_load_dwordx2 s[14:15], s[0:1], 56")
    a("v_lshrrev_b32 v1, 6, v0")
    a("v_and_b32 v0, 63, v0")
    a("v_readfirstlane_b32 s3, v1")
    a("s_lshr_b32 s7, s2, 3")
    a("s_and_b32 s4, s2, 7")
    a("s_lshl_b32 s4, s4, 2")
    a("s_lshr_b32 s5, s7, 3")
    a("s_add_u32 s4, s4, s5")
    a("s_and_b32 s5, s7, 7")
    a("s_lshl_b32 s6, s4, 3")
    a("s_add_u32 s6, s6, s5")
    a("v_lshlrev_b32 v1, 4, v0")
    a("v_lshrrev_b32 v2, 5, v0")
    a("v_lshlrev_b32 v3, 2, v0")
    a("s_lshl_b32 s52, s3, 16")
    a(f"s_add_u32 s52, s52, {KV + 4096}")
    a("s_lshl_b32 s53, s5, 13")
    a("s_add_u32 s53, s53, s52")
    a("s_lshl_b32 s54, s6, 13")
    if QF: a(f"s_add_u32 s54, s54, {QF}")
    a(f"s_mov_b32 s55, {KMAX}")
    for t in range(4):
        a(f"s_add_u32 s{56+t}, s3, {t+1}")
        a(f"s_and_b32 s{56+t}, s{56+t}, 3")
        a(f"s_lshl_b32 s{56+t}, s{56+t}, 11")
        a(f"s_add_u32 s{56+t}, s{56+t}, s54")
    a("s_waitcnt lgkmcnt(0)")
    srd(a, 16, 8, 9, WS_SIZE)
    add64(32, 8, "s53")
    V("buffer_load_dword v4, v3, s[16:19], s55 offen", "kmax")
    for t in range(4):
        V(f"buffer_load_dwordx4 {vr(Q+8*t,4)}, v1, s[16:19], s{56+t} offen", f"q{t}")
        V(f"buffer_load_dwordx4 {vr(Q+8*t+4,4)}, v1, s[16:19], s{56+t} offen offset:1024", f"q{t}")
    def kvld(i, part):
        b = 32 + 2*(i >> 1)
        return f"global_load_dwordx4 {vr(KVR+16*(i&1)+4*part,4)}, v1, s[{b}:{b+1}] offset:{4096*(i&1) - 4096 + 1024*part}"
    for i, part in ((0,0), (0,1), (0,2), (0,3), (1,0), (1,1), (1,2), (1,3)):
        V(kvld(i, part), f"{'KV'[part>>1]}{i}")
    srd(a, 20, 10, 11, X_BYTES)
    srd(a, 24, 12, 13, X_BYTES)
    srd(a, 28, 14, 15, 3584)
    a(f"s_mov_b32 m0, {L_BIAS}")
    a("s_lshl_b32 s53, s5, 9")
    V("buffer_load_dwordx4 v1, s[28:31], s53 offen lds", "bias")
    a("v_lshlrev_b32 v10, 7, v0")
    a("s_lshl_b32 s53, s7, 2")
    a("s_add_u32 s53, s53, s3")
    a("s_cmp_lt_u32 s53, 49")
    a("s_cbranch_scc0 KB_wcode")
    a("s_lshl_b32 s54, s53, 13")
    a(f"s_add_u32 s54, s54, {WOF}")
    add64(50, 8, "s54")
    a("global_load_dword v31, v10, s[50:51]")
    a("s_branch KB_wdone")
    a.label("KB_wcode")
    a("s_getpc_b64 s[50:51]")
    a.label("KB_pc")
    a("s_sub_u32 s54, s53, 49")
    a("s_lshl_b32 s54, s54, 13")
    a("v_add_u32 v11, s54, v10")
    a("v_min_u32 v11, KB_code_end-KB_pc-4, v11")
    a("global_load_dword v31, v11, s[50:51]")
    a.label("KB_wdone")
    vm.issue("warm")
    a("s_getreg_b32 s69, hwreg(HW_REG_XCC_ID, 0, 4)")
    a("s_add_u32 s69, s69, 1")
    a("s_lshl_b32 s53, s4, 8")
    a(f"s_add_u32 s53, s53, {SYNC}")
    add64(66, 8, "s53")
    a("s_lshl_b32 s53, s4, 7")
    a(f"s_add_u32 s53, s53, {SYNC + 0x2000}")
    add64(62, 8, "s53")
    a("v_mov_b32 v11, s69")
    a("s_lshl_b32 s53, s5, 2")
    a("v_mov_b32 v12, s53")
    a("s_mov_b64 exec, 1")
    V("global_store_dword v12, v11, s[62:63] sc0 sc1", "xccpub")
    a("s_mov_b64 exec, -1")
    a("s_load_dword s70, s[66:67], 0")
    a("s_load_dword s71, s[66:67], 128")
    a("s_mul_i32 s53, s3, 100352")
    a(f"s_add_u32 s53, s53, {WOF + 4096}")
    add64(48, 8, "s53")
    def woreg(f):
        if f < 48: return ar(64+4*f, 4)
        if f < 76: return vr(WOV+4*(f-48), 4)
        if f < 92: return vr(32+4*(f-76), 4)
        return vr(WOV+4*(f-92), 4)
    VOFF = (1, 7, 9, 8)
    def wo_items(f0, f1):
        it = []
        for f in range(f0, f1):
            if f < 76:
                if f and f % 32 == 0:
                    it += [("s", "s_add_u32 s48, s48, 32768"), ("s", "s_addc_u32 s49, s49, 0")]
                it.append(("v", f"global_load_dwordx4 {woreg(f)}, v{VOFF[(f%32)//8]}, s[48:49] offset:{1024*(f%8) - 4096}", f"wo{f}"))
            else:
                g = (f - 76) // 4
                if f % 4 == 0: it.append(("s", f"s_add_u32 m0, s60, {L_WO + 1024*(f-76)}"))
                b = 50 if g & 1 else 48
                it.append(("v", f"global_load_lds_dwordx4 v{VOFF[1 + g//2]}, s[{b}:{b+1}] offset:{1024*(f%4)}", f"wo{f}"))
        return it
    def emit_item(it):
        if it[0] == "s": a(it[1])
        elif it[0] == "v": V(it[1], it[2])
        elif it[0] == "d": D(it[1], it[2])
        elif it[0] == "wv": WV(it[1])
        elif it[0] == "wl": WL(it[1])
    add64(50, 48, 65536 + 4096)
    assert NPRE <= 8
    for it in wo_items(0, NPRE): emit_item(it)
    a("v_and_b32 v5, 7, v0")
    a("v_lshrrev_b32 v6, 4, v0")
    a("v_mul_u32_u24 v7, 896, v5")
    a("v_lshl_add_u32 v7, v6, 3, v7")
    a("s_mul_i32 s53, s6, 8*896")
    a("s_mul_i32 s54, s3, 224")
    a("s_add_u32 s53, s53, s54")
    for i in range(7): V(f"buffer_load_dwordx2 {vr(XR+2*i,2)}, v7, s[20:23], s53 offen offset:{32*i}", "xr")
    a("v_add_u32 v7, 8192, v1")
    a("v_add_u32 v9, 16384, v1")
    for p in range(1, 8):
        a(f"s_add_u32 s53, s5, {p}")
        a("s_and_b32 s53, s53, 7")
        a("s_lshl_b32 s53, s53, 13")
        a("s_add_u32 s53, s53, s52")
        add64(32+2*p, 8, "s53")
    a("s_mul_i32 s60, s3, 22528")
    for t in range(3):
        a(f"s_add_u32 s53, s3, {t+1}")
        a("s_and_b32 s53, s53, 3")
        a("s_mul_i32 s53, s53, 12288")
        a(f"s_add_u32 s53, s53, {L_RED + 4096*t}")
        a(f"v_add_u32 v{13+t}, s53, v1")
    a("s_lshl_b32 s53, s7, 2")
    a("s_add_u32 s53, s53, s3")
    a("s_mul_i32 s53, s53, 12544")
    a(f"s_add_u32 s53, s53, {W1F + 4096}")
    add64(56, 8, "s53")
    add64(58, 56, W2F - W1F)
    a("s_lshr_b32 s53, s6, 2")
    a("s_mul_i32 s53, s53, 28672")
    a("s_and_b32 s54, s5, 3")
    a("s_lshl_b32 s54, s54, 7")
    a("s_add_u32 s53, s53, s54")
    a("s_mul_i32 s54, s3, 7168")
    a("s_add_u32 s53, s53, s54")
    a(f"s_add_u32 s53, s53, {HN}")
    add64(54, 8, "s53")
    a("v_lshrrev_b32 v10, 2, v0")
    a("v_lshlrev_b32 v10, 7, v10")
    a("v_and_b32 v11, 12, v3")
    a("v_add_u32 v10, v10, v11")
    a("v_add_u32 v11, 8192, v10")
    a("v_min_u32 v12, 13, v0")
    a("v_lshlrev_b32 v12, 9, v12")
    a("v_and_b32 v30, 7, v0")
    a("v_lshlrev_b32 v30, 2, v30")
    late = [("v", "global_load_dword v30, v30, s[62:63] sc1", "xcc"),
            ("v", "global_load_dword v4, v12, s[54:55] sc1", "late")]
    warm = [("v", f"global_load_dword v4, v{10 + (k >> 2)}, s[{b}:{b+1}] offset:{2048*(k & 3) - 4096}", "warm")
            for b in (56, 58) for k in range(7)][:OPT.get('nwarm', 7)]
    nstamp(a, "pro")
    WV("kmax")
    for m_ in ("quad_perm:[1,0,3,2]", "quad_perm:[2,3,0,1]", "row_half_mirror", "row_mirror"):
        a(f"v_max_f32_dpp v4, v4, v4 {m_} row_mask:0xf bank_mask:0xf")
        a("s_nop 1")
    a("v_mov_b32 v8, v4")
    a("s_nop 1")
    a("v_permlane16_swap_b32 v8, v4")
    a("s_nop 1")
    a("v_max_f32 v4, v4, v8")
    half_sum(a, 4, 8, "v_max_f32")
    a(f"v_mul_f32 v4, {hexf(1.02)}, v4")
    a("v_cmp_ne_u32 s[64:65], 0, v2")
    B0 = S + 16
    for t in range(4): a(f"v_mov_b32 v{B0+t}, 0")
    for t in range(4):
        WV(f"q{t}")
        for i in range(8): a(f"v_dot2c_f32_bf16 v{B0+t}, v{Q+8*t+i}, v{Q+8*t+i}")
    a("s_nop 2")
    for t in range(4): a(f"v_mov_b32 v{B0+4+t}, v{B0+t}")
    a("s_nop 0")
    for t in range(4): a(f"v_permlane32_swap_b32 v{B0+4+t}, v{B0+t}")
    a("s_nop 0")
    for t in range(4): a(f"v_add_f32 v{B0+t}, v{B0+t}, v{B0+4+t}")
    for t in range(4): a(f"v_mul_f32 v{B0+t}, v{B0+t}, v4")
    for t in range(4): a(f"v_sqrt_f32 v{B0+t}, v{B0+t}")
    a("s_nop 0")
    a(f"v_max3_f32 v8, v{B0}, v{B0+1}, v{B0+2}")
    a(f"v_max_f32 v8, v8, v{B0+3}")
    lim = -1.0 if force_slow else SHIFT_LIMIT
    a(f"v_cmp_nge_f32 vcc, {hexf(lim)}, v8")
    a("v_add_u32 v8, 24576, v1")
    a("s_cbranch_vccnz KB_slow")
    vm_at_slow = list(vm.q)
    for t in range(4): a(f"v_cvt_pk_bf16_f32 v{B0+t}, -v{B0+t}, 0")
    for t in range(4): a(f"v_cndmask_b32 v{Q+8*t+6}, v{Q+8*t+6}, v{B0+t}, s[64:65]")
    WV("K0")
    a(mfma32(vr(S,16), vr(KVR,4), vr(Q,4), "0"))
    a(mfma32(vr(S,16), vr(KVR+4,4), vr(Q+4,4), vr(S,16)))
    a("s_nop 7")
    a("s_nop 3")
    nstamp(a, "loop")
    slots = {}
    for i in range(16):
        if i <= 13:
            slots[(4*i+2, 0)] = [("v", kvld(i+2, 0), f"K{i+2}")]
            slots[(4*i+2, 1)] = [("v", kvld(i+2, 1), f"K{i+2}")]
        if i <= 14: slots[(4*i+2, 3)] = [("wv", f"K{i+1}")]
        if 1 <= i <= 14:
            slots[(4*i, 2)] = [("v", kvld(i+1, 2), f"V{i+1}")]
            slots[(4*i, 3)] = [("v", kvld(i+1, 3), f"V{i+1}")]
        slots[(4*i+1, 1)] = [("wv", f"V{i}")]
    for q, it in enumerate(warm): slots[(4*(1 + q*14//len(warm)), 1)] = [it]
    free = [(u, k) for u in range(OPT.get('wo0', 1), 56) for k in range(4) if (u, k) not in slots]
    side = wo_items(NPRE, 98)
    assert len(side) <= len(free), (len(side), len(free))
    for q, it in enumerate(side): slots[free[q*len(free)//len(side)]] = [it]
    lf = [(u, k) for u in range(57, 62) for k in range(4) if (u, k) not in slots]
    for q, it in enumerate(late): slots[lf[2*q]] = [it]
    def redw(t, q): return ("d", f"ds_write_b128 v{13+t}, {ar(16*t+4*q,4)} offset:{1024*q}", "red")
    for q, sl in enumerate([(62,1), (62,2), (62,3), (63,2)]): slots.setdefault(sl, []).append(redw(0, q))
    tail63 = [redw(1, q) for q in range(4)]
    slots.setdefault((63,3), []).append(tail63[0])
    for u in range(64):
        sb, pb = S + 16*(u & 1), P + 8*(u & 1)
        sn, pp = S + 16*((u+1) & 1), P + 8*((u-1) & 1)
        un, up = u + 1, u - 1
        kslot = KVR + 16*((un >> 2) & 1); qn = Q + 8*(un & 3)
        vslot = KVR + 16*((up >> 2) & 1) + 8; oa = ar(16*(up & 3), 16)
        M = [mfma32(vr(sn,16), vr(kslot,4), vr(qn,4), "0"),
             mfma32(vr(sn,16), vr(kslot+4,4), vr(qn+4,4), vr(sn,16)),
             mfma32(oa, vr(vslot,4), vr(pp,4), "0" if up < 4 else oa),
             mfma32(oa, vr(vslot+4,4), vr(pp+4,4), oa)]
        e = lambda k: f"v_exp_f32 v{sb+k}, v{sb+k}"
        c = lambda k: f"v_cvt_pk_bf16_f32 v{pb+k}, v{sb+2*k}, v{sb+2*k+1}"
        groups = [[e(0), e(1), e(2), e(3), c(0)], [e(4), c(1), e(5), e(6), e(7), c(2)],
                  [e(8), c(3), e(9), e(10), e(11), c(4)], [e(12), c(5), e(13), e(14), e(15), c(6), c(7)]]
        nstamp(a, f"u{u}")
        for k in range(4):
            if not ((u == 63 and k < 2) or (u == 0 and k >= 2)): a(M[k])
            for it in slots.get((u, k), []): emit_item(it)
            for x in groups[k]: a(x)
    emit_item(tail63[1])
    a(mfma32(ar(48,16), vr(KVR+24,4), vr(P+8,4), ar(48,16)))
    emit_item(tail63[2])
    a(mfma32(ar(48,16), vr(KVR+28,4), vr(P+12,4), ar(48,16)))
    emit_item(tail63[3])
    for q in range(4): emit_item(redw(2, q))
    a.label("KB_red")
    nstamp(a, "red")
    a("s_mul_i32 s53, s3, 12288")
    a("v_add_u32 v8, s53, v1")
    a("v_bfe_u32 v9, v0, 3, 2")
    a("s_lshl_b32 s53, s3, 2")
    a("v_add_u32 v9, s53, v9")
    a("v_mul_u32_u24 v9, 56, v9")
    a(f"v_mul_u32_u24 v10, {OB_STRIDE}, v5")
    a("v_add_u32 v9, v9, v10")
    a("v_lshl_add_u32 v9, v2, 3, v9")
    a(f"v_add_u32 v9, {L_OB}, v9")
    a(f"v_mov_b32 v11, {L_DUMMY}")
    a("v_add_u32 v12, 48, v9")
    a("v_cndmask_b32 v11, v12, v11, s[64:65]")
    a("v_lshl_add_u32 v10, v6, 4, v10")
    a(f"v_add_u32 v10, {L_OB}, v10")
    for i in range(16): a(f"v_accvgpr_read_b32 v{32+i}, a{48+i}")
    a("s_waitcnt lgkmcnt(0)"); lg.clear()
    a("s_barrier")
    for j in range(12): D(f"ds_read_b128 {vr(48+4*j,4)}, v8 offset:{L_RED+1024*j}", f"r{j//4}")
    ACC = 96
    WV("xr")
    for i in range(14):
        a(f"v_lshlrev_b32 v{ACC+2*i}, 16, v{XR+i}")
        a(f"v_and_b32 v{ACC+2*i+1}, 0xffff0000, v{XR+i}")
    for j in range(3):
        WL(f"r{j}")
        for i in range(16): a(f"v_add_f32 v{32+i}, v{32+i}, v{48+16*j+i}")
    a("v_mov_b32 v12, v44")
    a("v_mov_b32 v13, v44")
    a("s_nop 1")
    a("v_permlane32_swap_b32 v12, v13")
    a("s_nop 1")
    a("v_rcp_f32 v13, v13")
    a("s_nop 0")
    for i in range(16): a(f"v_mul_f32 v{32+i}, v{32+i}, v13")
    for i in range(8): a(f"v_cvt_pk_bf16_f32 v{48+i}, v{32+2*i}, v{33+2*i}")
    for i in range(3): D(f"ds_write_b64 v9, {vr(48+2*i,2)} offset:{16*i}")
    D("ds_write_b64 v11, v[54:55]")
    a("s_lshl_b32 s53, s5, 3")
    a("s_add_u32 s53, s53, s3")
    a("s_mul_i32 s53, s53, 28672")
    a(f"s_add_u32 s53, s53, {W1F + 4096}")
    add64(50, 8, "s53")
    a(f"s_add_u32 s53, s60, {L_WO}")
    a("v_add_u32 v8, s53, v1")
    a("s_waitcnt lgkmcnt(0)"); lg.clear()
    a("s_barrier")
    nstamp(a, "wo")
    def w1reg(i):
        return ar(64+4*i, 4) if i < 48 else ar(4*(i-48), 4)
    def w1_items(i):
        it = []
        ks = i % 28
        if i == 28: it += [("s", f"s_add_u32 s50, s50, {4*28672 - 3*8192}"), ("s", "s_addc_u32 s51, s51, 0")]
        elif ks and ks % 8 == 0: it += [("s", "s_add_u32 s50, s50, 8192"), ("s", "s_addc_u32 s51, s51, 0")]
        it.append(("v", f"global_load_dwordx4 {w1reg(i)}, v1, s[50:51] offset:{1024*(ks%8) - 4096}", f"w1_{i}"))
        return it
    for ks in range(14): D(f"ds_read_b128 {ar(4*ks,4)}, v10 offset:{64*ks}", f"o{ks}")
    WV("wo97")
    NW1 = 24
    post = {f: [] for f in range(98)}
    for i in range(NW1):
        it = w1_items(i)
        for q, x in enumerate(it): post[4*i + 3 - (len(it) - 1 - q)].append(x)
    for q in range(16): post[20 + 2*q].append(("d", f"ds_read_b128 {woreg(76+q)}, v8 offset:{1024*q}", f"wl{76+q}"))
    for q in range(6): post[56 + 2*q].append(("d", f"ds_read_b128 {woreg(92+q)}, v8 offset:{1024*(16+q)}", f"wl{92+q}"))
    for f in range(98):
        ks, tile = divmod(f, 7)
        if tile == 0: WL(f"o{ks}")
        if f >= 76: WL(f"wl{f}")
        a(mfma16(vr(ACC+4*tile,4), woreg(f), ar(4*ks,4), vr(ACC+4*tile,4)))
        for it in post[f]: emit_item(it)
    nstamp(a, "woend")
    H = 32
    a("v_and_b32 v14, 15, v0")
    a("v_lshlrev_b32 v14, 3, v14")
    a(f"v_add_u32 v14, {L_ST}, v14")
    a("s_lshl_b32 s53, s3, 7")
    a("v_add_u32 v15, s53, v14")
    a("s_mul_i32 s53, s3, 1792")
    a(f"s_add_u32 s53, s53, {L_HT}")
    a("v_and_b32 v8, 1, v6")
    a("v_lshlrev_b32 v8, 7, v8")
    a("v_lshl_add_u32 v8, v5, 4, v8")
    a("v_lshl_add_u32 v8, v2, 3, v8")
    a("v_add_u32 v8, s53, v8")
    a("v_add_u32 v9, s53, v1")
    for i in range(14): a(f"v_cvt_pk_bf16_f32 v{H+i}, v{ACC+2*i}, v{ACC+2*i+1}")
    a(f"s_mov_b32 s53, {ONES_BF}")
    a("v_mov_b32 v12, 0")
    a("v_mov_b32 v13, 0")
    for i in range(14):
        a(f"v_dot2c_f32_bf16 v12, s53, v{H+i}")
        a(f"v_dot2c_f32_bf16 v13, v{H+i}, v{H+i}")
    for i in range(7): D(f"ds_write_b64 v8, {vr(H+2*i,2)} offset:{256*i}")
    a("v_mov_b32 v10, v12")
    a("v_mov_b32 v11, v13")
    a("s_nop 0")
    a("v_permlane16_swap_b32 v10, v12")
    a("v_permlane16_swap_b32 v11, v13")
    a("s_nop 0")
    a("v_add_f32 v12, v12, v10")
    a("v_add_f32 v13, v13, v11")
    a("v_mov_b32 v10, v12")
    a("v_mov_b32 v11, v13")
    a("s_nop 0")
    a("v_permlane32_swap_b32 v10, v12")
    a("v_permlane32_swap_b32 v11, v13")
    a("s_nop 0")
    a("v_add_f32 v12, v12, v10")
    a("v_add_f32 v13, v13, v11")
    D("ds_write_b64 v15, v[12:13]")
    H8 = 16
    D(f"ds_read_b128 {vr(H8,4)}, v9", "h8")
    D(f"ds_read_b128 {vr(H8+4,4)}, v9 offset:1024", "h8")
    WV("xcc")
    a("s_mov_b32 s68, 1")
    a("v_cmp_ne_u32 vcc, s69, v30")
    if force_fence: a("s_branch KB_xcc")
    else: a("s_cbranch_vccnz KB_xcc")
    a.label("KB_xcc_done")
    a("v_bfe_u32 v7, v0, 3, 1")
    a("v_lshlrev_b32 v8, 10, v6")
    a("v_lshl_add_u32 v8, v7, 9, v8")
    a("v_lshl_add_u32 v8, v5, 4, v8")
    a("v_add_u32 v9, 4096, v8")
    a("s_waitcnt lgkmcnt(0)"); lg.clear()
    a("s_barrier")
    for w in range(4): D(f"ds_read_b64 {vr(48+2*w,2)}, v14 offset:{128*w}", "st")
    for i in range(8):
        a(f"v_lshlrev_b32 v{ACC+2*i}, 16, v{H8+i}")
        a(f"v_and_b32 v{ACC+2*i+1}, 0xffff0000, v{H8+i}")
    WL("st")
    a("v_add_f32 v48, v48, v50")
    a("v_add_f32 v49, v49, v51")
    a("v_add_f32 v52, v52, v54")
    a("v_add_f32 v53, v53, v55")
    a("v_add_f32 v48, v48, v52")
    a("v_add_f32 v49, v49, v53")
    a(f"v_mul_f32 v48, {hexf(1.0/448)}, v48")
    a(f"v_mul_f32 v49, {hexf(1.0/448)}, v49")
    a("v_fma_f32 v49, -v48, v48, v49")
    a("v_max_f32 v49, 0, v49")
    a(f"v_add_f32 v49, {hexf(1e-5)}, v49")
    a("v_rsq_f32 v49, v49")
    a("s_nop 0")
    a(f"v_mul_f32 v49, {hexf(LOG2E)}, v49")
    a("v_mul_f32 v48, -v48, v49")
    for i in range(16): a(f"v_fma_f32 v{ACC+i}, v{ACC+i}, v49, v48")
    for i in range(8): a(f"v_cvt_pk_bf16_f32 v{32+i}, v{ACC+2*i}, v{ACC+2*i+1}")
    nstamp(a, "hnst")
    V("global_store_dwordx4 v8, v[32:35], s[54:55]", "hnst")
    a("s_mov_b32 exec_hi, 0xffff")
    V("global_store_dwordx4 v9, v[36:39], s[54:55]", "hnst")
    a("s_mov_b32 exec_hi, -1")
    a("v_mov_b32 v10, 0")
    a("v_mov_b32 v11, 1")
    a("s_lshl_b32 s53, s3, 6")
    a(f"s_add_u32 s53, s53, {L_BIAS}")
    a("v_lshl_add_u32 v12, v2, 3, s53")
    for q in range(8): D(f"ds_read_b64 {vr(48+2*q,2)}, v12 offset:{16*(q&3) + 256*(q>>2)}", "bias")
    def signal(off, lab):
        a("s_waitcnt vmcnt(0)"); vm.clear()
        a("s_cmp_eq_u32 s68, 0")
        a(f"s_cbranch_scc1 {lab}_fence")
        a("s_mov_b64 exec, 1")
        V(f"global_atomic_add v10, v11, s[66:67] offset:{off}", "sig")
        a("s_mov_b64 exec, -1")
        a.label(f"{lab}_done")
    def poll(off, target, lab):
        a("s_cmp_eq_u32 s68, 0")
        a(f"s_cbranch_scc1 {lab}_fence")
        a("s_mov_b32 s52, 0")
        a.label(f"{lab}_loop")
        a(f"s_load_dword s53, s[66:67], {off} glc")
        a("s_add_u32 s52, s52, 1")
        a("s_waitcnt lgkmcnt(0)"); lg.clear()
        a(f"s_cmp_ge_u32 s53, {target}")
        a(f"s_cbranch_scc1 {lab}_done")
        a(f"s_cmp_lt_u32 s52, {SPIN_LIMIT}")
        a(f"s_cbranch_scc1 {lab}_loop")
        a.label(f"{lab}_done")
    signal(0, "KB_sg1")
    nstamp(a, "sig1")
    a("s_cmp_eq_u32 s5, 7")
    a("s_cbranch_scc1 KB_fin")
    T0, A2, A1, HOLD = 24, 48, 80, 144
    NW1B = 40
    for i in range(NW1, NW1B):
        for it in w1_items(i): emit_item(it)
    WL("bias")
    a(f"s_mov_b32 s53, {hexf(LOG2E)}")
    accs = {("A",0): A1, ("B",0): A1+16, ("B",1): A1+32, ("A",1): A1+48}
    for X, r0 in (("A", 48), ("B", 56)):
        d = accs[(X,0)]
        for i in range(8):
            a(f"v_lshlrev_b32 v{d+2*i}, 16, v{r0+i}")
            a(f"v_and_b32 v{d+2*i+1}, 0xffff0000, v{r0+i}")
        for i in range(16): a(f"v_mul_f32 v{d+i}, s53, v{d+i}")
        for i in range(16): a(f"v_mov_b32 v{accs[(X,1)]+i}, v{d+i}")
    a("s_mul_i32 s53, s4, 57344")
    a("s_lshl_b32 s52, s3, 10")
    a("s_add_u32 s53, s53, s52")
    a(f"s_add_u32 s53, s53, {HN}")
    add64(56, 8, "s53")
    a("s_mul_i32 s53, s3, 3*112*1024")
    a("s_lshl_b32 s61, s5, 14")
    a("s_add_u32 s53, s53, s61")
    a(f"s_add_u32 s53, s53, {W2F + 4096}")
    add64(58, 8, "s53")
    a("s_lshr_b32 s53, s3, 1")
    a("s_add_u32 s53, s53, 12")
    a("s_mul_i32 s53, s53, 112*1024")
    a("s_add_u32 s53, s53, s61")
    a(f"s_add_u32 s53, s53, {W2F + 4096}")
    add64(32, 8, "s53")
    a("s_mul_i32 s53, s4, 458752")
    a("s_mul_i32 s61, s5, 7168")
    a("s_add_u32 s53, s53, s61")
    a(f"s_add_u32 s53, s53, {PART}")
    add64(34, 8, "s53")
    a("s_mul_i32 s61, s3, 1536")
    add64(36, 34, "s61")
    add64(38, 36, 229376)
    a("s_and_b32 s61, s3, 1")
    a("s_mul_i32 s61, s61, 229376")
    a("s_lshr_b32 s53, s3, 1")
    a("s_lshl_b32 s53, s53, 9")
    a("s_add_u32 s61, s61, s53")
    a("s_add_u32 s61, s61, 6144")
    add64(40, 34, "s61")
    a("s_mul_i32 s61, s3, 114688")
    add64(34, 34, "s61")
    a("v_bfe_u32 v12, v0, 3, 2")
    a("v_mul_u32_u24 v12, 57344, v12")
    a("v_lshl_add_u32 v12, v2, 7, v12")
    a("v_lshl_add_u32 v12, v5, 4, v12")
    a("v_lshrrev_b32 v13, 2, v0")
    a("v_min_u32 v13, 13, v13")
    a("v_lshlrev_b32 v13, 7, v13")
    a("v_add_u32 v13, 3584, v13")
    a("v_add_u32 v14, 57344, v13")
    a("s_lshl_b32 s53, s3, 11")
    a(f"s_add_u32 s53, s53, {L_ACT}")
    a("v_add_u32 v8, s53, v1")
    a(f"v_add_u32 v9, {L_ACT}, v1")
    a("s_and_b32 s53, s3, 1")
    a("s_lshl_b32 s53, s53, 14")
    a("v_add_u32 v15, s53, v9")
    poll(0, 32, "KB_pl1")
    nstamp(a, "poll1")
    def dma_items(q):
        it = [("s", f"s_add_u32 m0, s52, {L_HN + 4096*q}")]
        if q: it = [("s", "s_add_u32 s56, s56, 4096"), ("s", "s_addc_u32 s57, s57, 0")] + it
        return it + [("s", "s_nop 0"), ("v", "global_load_lds_dwordx4 v1, s[56:57] sc1", f"hn{q}")]
    a("s_lshl_b32 s52, s3, 10")
    for q in range(7):
        for it in dma_items(q): emit_item(it)
    def w2reg(q):
        if q < 8: return ar(32+4*q, 4)
        if q < 36: return w1reg(28 + q - 8)
        return w1reg(q - 36)
    def w2_items(q):
        u, ks = divmod(q, 16)
        b = 58 if u < 3 else 32
        it = []
        if ks == 8: it += [("s", f"s_add_u32 s{b}, s{b}, 8192"), ("s", f"s_addc_u32 s{b+1}, s{b+1}, 0")]
        elif ks == 0 and 0 < u < 3: it += [("s", f"s_add_u32 s{b}, s{b}, {112*1024 - 8192}"), ("s", f"s_addc_u32 s{b+1}, s{b+1}, 0")]
        it.append(("v", f"global_load_dwordx4 {w2reg(q)}, v1, s[{b}:{b+1}] offset:{1024*(ks%8) - 4096}", f"w2_{q}"))
        return it
    NM = 224
    pre = {i: [] for i in range(NM + 1)}
    post = {i: [] for i in range(NM)}
    mf = []
    hold = lambda ks: vr(HOLD+4*ks, 4)
    for X, tt in (("A",0), ("B",0), ("B",1), ("A",1)):
        d = vr(accs[(X,tt)], 16)
        for ks in range(28): mf.append(mfma32(d, w1reg(ks + (28 if X == "B" else 0)), hold(ks), d))
    act0 = lambda ks: vr(HOLD+4*ks, 4)
    act1 = lambda ks: vr(HOLD+64+4*ks, 4) if ks < 12 else vr(A1+4*(ks-12), 4)
    ring = lambda ks: vr(A1+16+4*(ks & 7), 4)
    units = [(0, act0, 36, 0), (1, act0, 36, 1), (2, act0, 36, 2), (3, ring, 40, 0), (0, act1, 38, 0), (1, act1, 38, 1), (2, act1, 38, 2)]
    for ui, (u, breg, sb_, no) in enumerate(units):
        d = vr(A2+16*(ui & 1), 16)
        for ks in range(16): mf.append(mfma32(d, w2reg(16*u+ks), breg(ks), "0" if ks == 0 else d))
    AHEAD = 4
    rd0 = lambda ks: ("d", f"ds_read_b128 {hold(ks)}, v1 offset:{L_HN + 1024*ks}", f"h0_{ks}")
    rd1 = lambda ks: ("d", f"ds_read_b128 {hold(ks)}, v1 offset:{L_HN + 28672 + 1024*ks}", f"h1_{ks}")
    pre[0] += [("wv", "hn2"), ("s", "s_barrier")] + [rd0(ks) for ks in range(AHEAD)]
    for ks in range(28):
        if ks + AHEAD == 12: post[ks] += [("wv", "hn6"), ("s", "s_barrier")]
        if ks + AHEAD < 28: post[ks].append(rd0(ks + AHEAD))
        pre[ks].append(("wl", f"h0_{ks}"))
    for q in range(7, 14): post[2*(q-7)] += dma_items(q)
    pre[0].append(("wv", "w1_27"))
    for i in range(NW1B, 56): post[14 + 2*(i - NW1B)] += w1_items(i)
    pre[28] += [("wv", "hn13"), ("s", "s_barrier")]
    for ks in range(28):
        pre[28+ks].append(("wv", f"w1_{28+ks}"))
        post[28+ks].append(rd1(ks))
    for q in range(8): post[46 + q] += w2_items(q)
    if OPT.get('touch', 1):
        t0_, dt_ = OPT.get('t0', 47), OPT.get('dt', 6)
        for k in range(8):
            post[t0_ + dt_*k].append(("v", f"global_load_dword v4, v{13 + (k >> 2)}, s[34:35] offset:{1792*(k & 3) - 3584} sc1", "touch"))
    for ks in range(0, 28, 4): pre[56+ks].append(("wl", f"h1_{min(ks+3, 27)}"))
    for q in range(8, 64): post[56 + 2*(q-8)] += w2_items(q)
    for q in range(64): pre[112+q].append(("wv", f"w2_{q}"))
    fill = []
    def mish_items(X, tt, start, idx):
        x0 = accs[(X,tt)]; pk = x0
        L = []
        for g in range(4):
            t = T0 + 4*(g & 1); x = x0 + 4*g
            L += [f"v_exp_f32 v{t+i}, v{x+i}" for i in range(4)]
            L += [f"v_add_f32 v{t+i}, 1.0, v{t+i}" for i in range(4)]
            L += [f"v_fma_f32 v{t+i}, v{t+i}, v{t+i}, 1.0" for i in range(4)]
            L += [f"v_rcp_f32 v{t+i}, v{t+i}" for i in range(4)]
            L += [f"v_mul_f32 v{t+i}, v{t+i}, v{x+i}" for i in range(4)]
            L += [f"v_fmac_f32 v{x+i}, -2.0, v{t+i}" for i in range(4)]
            L += [f"v_cvt_pk_bf16_f32 v{pk+2*g+i}, v{x+2*i}, v{x+2*i+1}" for i in range(2)]
        it = [("s", x, start) for x in L]
        off = tt*16384 + (8192 if X == "B" else 0)
        it += [("d", f"ds_write_b128 v8, {vr(pk+4*hf,4)} offset:{off + 1024*hf}", start) for hf in range(2)]
        return it
    fill += mish_items("A", 0, 31, 0) + mish_items("B", 0, 59, 1)
    fill += [("bar", "b1", 0)]
    fill += mish_items("B", 1, 87, 2) + mish_items("A", 1, 115, 3)
    fill += [("bar", "b2", 0)]
    rda = lambda reg, addr, tt, ks, tag: ("d", f"ds_read_b128 {reg}, {addr} offset:{16384*tt + 1024*ks}", tag)
    need_bar = {}
    for ks in range(16):
        post[101 + ks].append(rda(act0(ks), "v9", 0, ks, f"a0_{ks}"))
        pre[112+ks].append(("wl", f"a0_{ks}"))
    need_bar[101] = "b1"
    for ks in range(16):
        post[155 + ks].append(rda(ring(ks), "v15", 0, ks, f"am_{ks}"))
        pre[160+ks].append(("wl", f"am_{ks}"))
        post[161 + ks].append(rda(act1(ks), "v9", 1, ks, f"a1_{ks}"))
        pre[176+ks].append(("wl", f"a1_{ks}"))
    need_bar[155] = "b2"
    outq = []
    for ui, (u, breg, sb_, no) in enumerate(units):
        d = A2 + 16*(ui & 1); pk = d
        L = []
        for hf in range(2):
            p4 = pk + 4*hf
            L += [("s", f"v_cvt_pk_bf16_f32 v{p4+i}, v{d+8*hf+2*i}, v{d+8*hf+2*i+1}") for i in range(4)]
            L += [("v", f"global_store_dwordx4 v12, {vr(p4,4)}, s[{sb_}:{sb_+1}] offset:{512*no + 256*hf}", "pst")]
        outq.append((112 + 16*ui + 18, L))
    done_bar = set()
    fq = list(fill); cur = [0]
    def emit_fill(it):
        if it[0] == "bar":
            a("s_waitcnt lgkmcnt(0)"); lg.clear()
            a("s_barrier"); done_bar.add(it[1]); print("note: barrier", it[1], "after MFMA", cur[0])
            return 8
        if it[0] == "d": D(it[1])
        else: a(it[1])
        return cost(it[1])
    credit = 0.0
    for i in range(NM):
        cur[0] = i
        assert not outq or i < outq[0][0] + 12, i
        for it in pre[i]: emit_item(it)
        a(mf[i])
        nstamp(a, f"m{i}")
        credit = max(min(credit, 0), -8) + 24
        if i in need_bar:
            c0 = credit
            while need_bar[i] not in done_bar: credit -= emit_fill(fq.pop(0))
            if c0 != credit: print(f"note: {c0 - credit:.0f} cycles of activation work flushed before MFMA {i}")
        for k, it in enumerate(post[i]):
            emit_item(it)
            credit -= (4 if it[0] in "vd" else 0) if k == 0 else (10 if it[0] in "vd" else 4)
        while outq and outq[0][0] <= i and credit > 0:
            L = outq[0][1]
            it = L.pop(0); emit_item(it); credit -= cost(it[1])
            if not L: outq.pop(0)
        while fq and credit > 0 and (fq[0][0] == "bar" or fq[0][2] <= i):
            credit -= emit_fill(fq.pop(0))
    assert not fq, len(fq)
    a("s_nop 7")
    a("s_nop 3")
    for _, L in outq:
        for it in L: emit_item(it)
    nstamp(a, "g2end")
    signal(128, "KB_sg2")
    nstamp(a, "sig2")
    a.label("KB_fin")
    R, SUM, HF = 144, 80, 96
    a("s_mul_i32 s53, s4, 458752")
    a("s_mul_i32 s52, s5, 57344")
    a("s_add_u32 s53, s53, s52")
    a("s_mul_i32 s52, s3, 1792")
    a("s_add_u32 s53, s53, s52")
    a(f"s_add_u32 s53, s53, {PART}")
    add64(56, 8, "s53")
    for i in range(16): a(f"v_mov_b32 v{SUM+i}, 0")
    for i in range(8):
        a(f"v_lshlrev_b32 v{HF+2*i}, 16, v{H8+i}")
        a(f"v_and_b32 v{HF+2*i+1}, 0xffff0000, v{H8+i}")
    a("v_mul_u32_u24 v12, 896, v5")
    a("v_lshl_add_u32 v12, v6, 5, v12")
    a("v_lshl_add_u32 v12, v7, 4, v12")
    a("s_mul_i32 s60, s6, 8*896")
    a("s_mul_i32 s61, s3, 224")
    a("s_add_u32 s60, s60, s61")
    a("s_mov_b32 s62, 0x00003f80")
    a("s_mov_b32 s63, 0x3f800000")
    a(f"s_mov_b32 s61, {hexf(LN2F)}")
    poll(128, 28, "KB_pl2")
    nstamp(a, "poll2")
    vm.clear(); vm.issue("older")
    for p in range(7):
        if p: add64(56, 56, 7168)
        V(f"global_load_dwordx4 {vr(R+8*p,4)}, v1, s[56:57] sc1", f"p{p}")
        V(f"global_load_dwordx4 {vr(R+8*p+4,4)}, v1, s[56:57] offset:1024 sc1", f"p{p}")
    for p in range(7):
        WV(f"p{p}")
        for i in range(8):
            a(f"v_dot2c_f32_bf16 v{SUM+2*i}, s62, v{R+8*p+i}")
            a(f"v_dot2c_f32_bf16 v{SUM+2*i+1}, s63, v{R+8*p+i}")
    a("s_nop 2")
    for i in range(16): a(f"v_fmac_f32 v{HF+i}, s61, v{SUM+i}")
    for i in range(8): a(f"v_cvt_pk_bf16_f32 v{32+i}, v{HF+2*i}, v{HF+2*i+1}")
    for b in (32, 36):
        a(f"v_mov_b32 v40, v{b+2}")
        a(f"v_mov_b32 v41, v{b+3}")
        a("s_nop 0")
        a(f"v_mov_b32_dpp v{b+2}, v{b} row_ror:8 row_mask:0xf bank_mask:0x3")
        a(f"v_mov_b32_dpp v{b+3}, v{b+1} row_ror:8 row_mask:0xf bank_mask:0x3")
        a(f"v_mov_b32_dpp v{b}, v40 row_ror:8 row_mask:0xf bank_mask:0xc")
        a(f"v_mov_b32_dpp v{b+1}, v41 row_ror:8 row_mask:0xf bank_mask:0xc")
    a("buffer_store_dwordx4 v[32:35], v12, s[24:27], s60 offen")
    a("s_mov_b32 exec_hi, 0xffff")
    a("buffer_store_dwordx4 v[36:39], v12, s[24:27], s60 offen offset:128")
    fin(a, 1, 8)
    a.label("KB_end")
    a("s_endpgm")

    a.label("KB_xcc")
    a("s_mov_b32 s52, 0")
    a("v_and_b32 v10, 7, v0")
    a("v_lshlrev_b32 v10, 2, v10")
    a.label("KB_xcc_loop")
    a("v_cmp_eq_u32 vcc, 0, v30")
    a("s_cbranch_vccz KB_xcc_known")
    a("global_load_dword v30, v10, s[62:63] sc1")
    a("s_add_u32 s52, s52, 1")
    a("s_waitcnt vmcnt(0)")
    a(f"s_cmp_lt_u32 s52, {SPIN_LIMIT}")
    a("s_cbranch_scc1 KB_xcc_loop")
    a.label("KB_xcc_known")
    a("v_cmp_ne_u32 vcc, s69, v30")
    if not force_fence: a("s_cbranch_vccz KB_xcc_done")
    a("s_mov_b32 s68, 0")
    a("s_branch KB_xcc_done")
    for lab, off in (("KB_sg1", 0), ("KB_sg2", 128)):
        a.label(f"{lab}_fence")
        a("buffer_wbl2 sc1")
        a("s_waitcnt vmcnt(0)")
        a("s_mov_b64 exec, 1")
        a(f"global_atomic_add v10, v11, s[66:67] offset:{off} sc1")
        a("s_mov_b64 exec, -1")
        a(f"s_branch {lab}_done")
    for lab, off, target in (("KB_pl1", 0, 32), ("KB_pl2", 128, 28)):
        a.label(f"{lab}_fence")
        a("s_mov_b32 s52, 0")
        a.label(f"{lab}_floop")
        a(f"global_load_dword v31, v10, s[66:67] offset:{off} sc1")
        a("s_add_u32 s52, s52, 1")
        a("s_waitcnt vmcnt(0)")
        a("v_readfirstlane_b32 s53, v31")
        a("s_nop 0")
        a(f"s_cmp_ge_u32 s53, {target}")
        a(f"s_cbranch_scc1 {lab}_fdone")
        a(f"s_cmp_lt_u32 s52, {SPIN_LIMIT}")
        a(f"s_cbranch_scc1 {lab}_floop")
        a.label(f"{lab}_fdone")
        a("buffer_inv sc1")
        a("s_waitcnt vmcnt(0) lgkmcnt(0)")
        a(f"s_branch {lab}_done")

    a.label("KB_slow")
    vm.q = list(vm_at_slow)
    a("s_waitcnt vmcnt(0)"); vm.clear()
    for k, it in enumerate(wo_items(NPRE, 98) + late):
        emit_item(it)
        if it[0] == "s" and "m0" in it[1]: a("s_nop 0")
        if len(vm.q) >= 32: a("s_waitcnt vmcnt(0)"); vm.clear()
    MX = P + 8
    for t in range(4): a(f"v_mov_b32 v{MX+t}, 0xff800000")
    for i in range(64): a(f"v_accvgpr_write_b32 a{i}, 0")
    a("s_sub_u32 s52, s52, 4096")
    a("s_mov_b32 s61, 0")
    a.label("KB_s1")
    a("s_add_u32 s53, s52, s61")
    for i in range(2): a(f"buffer_load_dwordx4 {vr(KVR+4*i,4)}, v1, s[16:19], s53 offen offset:{1024*i}")
    a("s_waitcnt vmcnt(0)")
    for t in range(4):
        a(mfma32(vr(S,16), vr(KVR,4), vr(Q+8*t,4), "0"))
        a(mfma32(vr(S,16), vr(KVR+4,4), vr(Q+8*t+4,4), vr(S,16)))
        a("s_nop 7")
        a("s_nop 3")
        for i in range(8): a(f"v_max3_f32 v{MX+t}, v{S+2*i}, v{S+2*i+1}, v{MX+t}")
    a("s_add_u32 s61, s61, 4096")
    a("s_cmp_lt_u32 s61, 0x10000")
    a("s_cbranch_scc1 KB_s1")
    for t in range(4):
        half_sum(a, MX+t, 12, "v_max_f32")
        a(f"s_add_u32 s53, s3, {t+1}")
        a("s_and_b32 s53, s53, 3")
        a("s_lshl_b32 s53, s53, 10")
        a("s_lshl_b32 s61, s3, 8")
        a("s_add_u32 s53, s53, s61")
        a("v_add_u32 v12, s53, v3")
        a(f"ds_write_b32 v12, v{MX+t}")
    a("s_waitcnt lgkmcnt(0)")
    a("s_barrier")
    for t in range(4):
        a(f"s_add_u32 s53, s3, {t+1}")
        a("s_and_b32 s53, s53, 3")
        a("s_lshl_b32 s53, s53, 10")
        a("v_add_u32 v12, s53, v3")
        for w in range(4): a(f"ds_read_b32 v{S+w}, v12 offset:{256*w}")
        a("s_waitcnt lgkmcnt(0)")
        a(f"v_max3_f32 v{MX+t}, v{S}, v{S+1}, v{S+2}")
        a(f"v_max_f32 v{MX+t}, v{MX+t}, v{S+3}")
    a("s_barrier")
    a("s_mov_b32 s61, 0")
    a.label("KB_s2")
    a("s_add_u32 s53, s52, s61")
    for i in range(4): a(f"buffer_load_dwordx4 {vr(KVR+4*i,4)}, v1, s[16:19], s53 offen offset:{1024*i}")
    a("s_waitcnt vmcnt(0)")
    for t in range(4):
        a(mfma32(vr(S,16), vr(KVR,4), vr(Q+8*t,4), "0"))
        a(mfma32(vr(S,16), vr(KVR+4,4), vr(Q+8*t+4,4), vr(S,16)))
        a("s_nop 7")
        a("s_nop 3")
        for i in range(16): a(f"v_sub_f32 v{S+i}, v{S+i}, v{MX+t}")
        for i in range(16): a(f"v_exp_f32 v{S+i}, v{S+i}")
        a("s_nop 0")
        for i in range(8): a(f"v_cvt_pk_bf16_f32 v{P+i}, v{S+2*i}, v{S+2*i+1}")
        a("s_nop 1")
        a(mfma32(ar(16*t,16), vr(KVR+8,4), vr(P,4), ar(16*t,16)))
        a(mfma32(ar(16*t,16), vr(KVR+12,4), vr(P+4,4), ar(16*t,16)))
    a("s_add_u32 s61, s61, 4096")
    a("s_cmp_lt_u32 s61, 0x10000")
    a("s_cbranch_scc1 KB_s2")
    a("s_nop 7")
    a("s_nop 3")
    for t in range(3):
        for q in range(4): a(redw(t, q)[1])
    a("s_branch KB_red")
    a.label("KB_code_end")
    return kd(n, 512, 96, 256), f"; @launch kernel={n} grid=(256,1,1) block=(256,1,1) lds={KB_LDS}"


def build(force_slow=False, extra=0, force_fence=False):
    a = Asm()
    parts = [gen_k1(a), gen_kb(a, force_slow, force_fence)]
    launches = [p[1] for p in parts]
    kds = [p[0] for p in parts]
    if extra:
        header(a, "nop_kernel")
        a("s_endpgm")
        kds.append(kd("nop_kernel", 8, 16, 8))
        launches += ["; @launch kernel=nop_kernel grid=(256,1,1) block=(64,1,1) lds=0"] * extra
    out = "\n".join(launches) + "\n"
    out += '.amdgcn_target "amdgcn-amd-amdhsa--gfx950"\n.text\n'
    out += a.text()
    out += '.section .rodata,"a"\n' + "".join(kds)
    return out

if __name__ == "__main__":
    import argparse
    ap = argparse.ArgumentParser()
    ap.add_argument("-o", default="v2.s")
    ap.add_argument("--slow", action="store_true")
    ap.add_argument("--fence", action="store_true")
    ap.add_argument("--opt", default="")
    ap.add_argument("--extra", type=int, default=0)
    ap.add_argument("--stamps", default="", help="up to six stamp names for the fused kernel")
    args = ap.parse_args()
    for kv in args.opt.split(","):
        if kv:
            k_, _, v_ = kv.partition("=")
            OPT[k_] = int(v_) if v_ else 1
    STAMPS = bool(args.stamps)
    STAMP_SET = args.stamps.split(",")
    txt = build(args.slow, args.extra, args.fence)
    open(args.o, "w").write(txt)
    import hazard
    print("hazards:", hazard.check(txt), "waits:", 0 if STAMPS else hazard.waitcheck(txt))
```

```python
import math, struct, sys

NAME = "sequential_preLN__grouped_kv_mqa__dense_activation_mish__prompt"

QF   = 0x000000
KV   = 0x200000
KMAX = 0x240000
SYNC = 0x248000
WOF  = 0x250000
W1F  = 0x300000
W2F  = 0x500000
HN   = 0x700000
PART = 0xB00000
WS_SIZE = PART + 32*8*8*7168

X_BYTES = 2048*896
WQ_BYTES = 448*896
WK_BYTES = 448*56
W1_BYTES = 448*3584
W2_BYTES = 1792*896

def f2u(f): return struct.unpack("<I", struct.pack("<f", f))[0]
def hexf(f): return "0x%08x" % f2u(f)
LOG2E = math.log2(math.e)
QSCALE = LOG2E / math.sqrt(28.0)
ONES_BF = "0x3f803f80"

class Asm:
    def __init__(self):
        self.L = []
    def __call__(self, s):
        for ln in s.split("\n"):
            ln = ln.strip()
            if ln: self.L.append("    " + ln)
    def label(self, s): self.L.append(s + ":")
    def c(self, s): self.L.append("    ; " + s)
    def text(self): return "\n".join(self.L) + "\n"

def vr(b, n=1): return f"v{b}" if n == 1 else f"v[{b}:{b+n-1}]"
def ar(b, n=1): return f"a{b}" if n == 1 else f"a[{b}:{b+n-1}]"
def sr(b, n=1): return f"s{b}" if n == 1 else f"s[{b}:{b+n-1}]"

def srd(a, d, lo, hi, nbytes):
    a(f"s_mov_b32 s{d}, s{lo}")
    a(f"s_mov_b32 s{d+1}, s{hi}")
    a(f"s_mov_b32 s{d+2}, {nbytes if isinstance(nbytes, str) else hex(nbytes)}")
    a(f"s_mov_b32 s{d+3}, 0x20000")

def header(a, name):
    a.L.append(f".globl {name}")
    a.L.append(".p2align 8")
    a.L.append(f".type {name},@function")
    a.label(name)

def kd(name, vgpr, sgpr, accum):
    return f""".p2align 6
.amdhsa_kernel {name}
  .amdhsa_next_free_vgpr {vgpr}
  .amdhsa_next_free_sgpr {96 if STAMPS else sgpr}
  .amdhsa_accum_offset {accum}
  .amdhsa_group_segment_fixed_size 0
  .amdhsa_kernarg_size 96
  .amdhsa_user_sgpr_count 2
  .amdhsa_user_sgpr_kernarg_segment_ptr 1
  .amdhsa_system_sgpr_workgroup_id_x 1
.end_amdhsa_kernel
"""

STAMPS = False
STAMP_BASE = 0x8000000
def stamp(a, i):
    if STAMPS: a(f"s_memrealtime s[{72+2*i}:{73+2*i}]")
STAMP_SET = []
OPT = {}
def SM(k):
    return {0: '', 1: ' sc1', 2: ' sc0 sc1', 3: ' nt', 4: ' sc1 nt', 5: ' sc0 sc1 nt'}[int(OPT.get(k, 0))]
def nstamp(a, name):
    if STAMPS and name in STAMP_SET:
        i = 1 + STAMP_SET.index(name)
        a(f"{'s_memtime' if OPT.get('cyc') else 's_memrealtime'} s[{72+2*i}:{73+2*i}]")
def stamp_init(a):
    if STAMPS:
        for i in range(8): a(f"s_mov_b32 s{72+2*i}, 0")
        stamp(a, 0)
        if OPT.get("dbg"): a("s_load_dwordx2 s[92:93], s[0:1], 80")
def fin(a, kidx, wslo):
    if STAMPS and OPT.get("dbg"):
        stamp(a, 7)
        a("s_mov_b64 exec, 0xff")
        a("s_waitcnt lgkmcnt(0)")
        a("s_not_b32 s72, s72")
        a("v_mbcnt_lo_u32_b32 v1, -1, 0")
        for i in range(8):
            a(f"v_mov_b32 v2, s{72+2*i}")
            a(f"v_cmp_eq_u32 vcc, {i}, v1")
            a("v_cndmask_b32 v0, v0, v2, vcc")
        a("v_lshlrev_b32 v1, 2, v1")
        a(f"s_add_u32 s92, s92, {32 if kidx else 512}")
        a("s_addc_u32 s93, s93, 0")
        a("s_and_b32 s90, s2, 31")
        a("s_lshl_b32 s91, s3, 5")
        a("s_or_b32 s90, s90, s91")
        a("s_cmp_eq_u32 s90, 5")
        a("s_cselect_b64 exec, exec, 0")
        a("global_atomic_umax v1, v0, s[92:93]")
    elif STAMPS:
        stamp(a, 7)
        a("s_mov_b64 exec, 1")
        a("s_waitcnt lgkmcnt(0)")
        for i in range(8): a(f"v_mov_b32 v{i}, s{72+2*i}")
        srd(a, 68, wslo, wslo+1, 0x10000000)
        a("s_lshl_b32 s90, s2, 3")
        a("s_add_u32 s90, s90, s3")
        a(f"s_add_u32 s90, s90, {kidx*4096}")
        a("s_lshl_b32 s90, s90, 5")
        a(f"s_add_u32 s90, s90, {STAMP_BASE}")
        a("v_mov_b32 v8, 0")
        a("buffer_store_dwordx4 v[0:3], v8, s[68:71], s90 offen")
        a("buffer_store_dwordx4 v[4:7], v8, s[68:71], s90 offen offset:16")
        if kidx == 1 and "pa" in OPT:
            lab = f"PRB{len(a.L)}"
            a("s_lshl_b32 s91, s3, 8")
            a("s_or_b32 s91, s91, s2")
            a("s_cmp_lg_u32 s91, 5")
            a(f"s_cbranch_scc1 {lab}_e")
            a(f"s_add_u32 s68, s68, {STAMP_BASE + 5*8*32}")
            a("s_addc_u32 s69, s69, 0")
            a("s_load_dwordx8 s[40:47], s[68:69], 0")
            a("s_waitcnt lgkmcnt(0)")
            reg = lambda i: f"s{40+i}" if i < 8 else f"s{72+2*(i-8)}"
            a(f"s_sub_u32 s91, {reg(int(OPT['pb']))}, {reg(int(OPT['pa']))}")
            a("s_lshl_b32 s91, s91, 3")
            a("s_min_u32 s91, s91, 40000")
            a("s_add_u32 s91, s91, s86")
            a.label(lab)
            a("s_memrealtime s[48:49]")
            a("s_waitcnt lgkmcnt(0)")
            a("s_sub_u32 s50, s48, s91")
            a("s_cmp_lt_i32 s50, 0")
            a(f"s_cbranch_scc1 {lab}")
            a.label(lab + "_e")
    a("s_endpgm")

def mfma32(d, A, B, C): return f"v_mfma_f32_32x32x16_bf16 {d}, {A}, {B}, {C}"
def mfma16(d, A, B, C): return f"v_mfma_f32_16x16x32_bf16 {d}, {A}, {B}, {C}"

def half_sum(a, x, t, op="v_add_f32"):
    a(f"v_mov_b32 v{t}, v{x}")
    a("s_nop 1")
    a(f"v_permlane32_swap_b32 v{t}, v{x}")
    a("s_nop 1")
    a(f"{op} v{x}, v{x}, v{t}")

K1_X, K1_W0, K1_W4, K1_ST, K1_CS = 0, 57344, 114688, 143360, 143872
K1_LDS = 144640

def gen_k1(a):
    n = "k1_kernel"
    header(a, n)
    a("s_cmp_ge_u32 s2, 256")
    a("s_cbranch_scc1 K1_end")
    stamp_init(a)
    a("s_load_dwordx4 s[24:27], s[0:1], 0")
    a("s_load_dwordx4 s[28:31], s[0:1], 16")
    a("s_load_dwordx2 s[32:33], s[0:1], 32")
    a("s_load_dwordx2 s[34:35], s[0:1], 48")
    a("s_load_dwordx2 s[36:37], s[0:1], 64")
    a("s_load_dwordx2 s[38:39], s[0:1], 88")
    a("v_lshrrev_b32 v1, 6, v0")
    a("v_and_b32 v0, 63, v0")
    a("v_readfirstlane_b32 s3, v1")
    a("s_and_b32 s4, s2, 7")
    a("s_lshl_b32 s4, s4, 2")
    a("s_bfe_u32 s6, s2, 0x20003")
    a("s_add_u32 s4, s4, s6")
    a("s_lshr_b32 s5, s2, 5")
    a("v_lshrrev_b32 v2, 5, v0")
    a("v_bfe_u32 v3, v0, 4, 1")
    a("v_bfe_u32 v4, v0, 2, 2")
    a("v_and_b32 v5, 3, v0")
    a("v_lshrrev_b32 v6, 2, v0")
    a("v_lshlrev_b32 v7, 4, v5")
    a("s_cmp_eq_u32 s3, 4")
    a("s_cbranch_scc1 K1_w4")
    a("v_lshrrev_b32 v8, 3, v0")
    a("v_and_b32 v9, 7, v0")
    a("v_lshrrev_b32 v10, 1, v8")
    a("v_xor_b32 v9, v9, v10")
    a("s_and_b32 s6, s3, 1")
    a("s_lshl_b32 s7, s6, 2")
    a("v_xor_b32 v9, s7, v9")
    a("v_mul_u32_u24 v8, 896, v8")
    a("v_lshl_add_u32 v8, v9, 4, v8")
    a("v_mul_u32_u24 v9, 896, v6")
    a("v_add_u32 v9, v9, v7")
    a("s_lshl_b32 s40, s4, 6")
    a("s_lshl_b32 s41, s3, 4")
    a("s_add_u32 s40, s40, s41")
    a("s_mul_i32 s40, s40, 896")
    a("s_mul_i32 s41, s3, 14336")
    a("s_lshl_b32 s42, s5, 1")
    a("s_add_u32 s42, s42, s6")
    a("s_mul_i32 s43, s42, 56")
    a("s_lshr_b32 s44, s3, 1")
    a("s_mul_i32 s45, s44, 224*896")
    a("s_add_u32 s43, s43, s45")
    a("s_mul_i32 s45, s6, 28672")
    a("s_mul_i32 s46, s44, 14336")
    a("s_add_u32 s45, s45, s46")
    a(f"s_add_u32 s45, s45, {K1_W0}")
    a("s_waitcnt lgkmcnt(0)")
    srd(a, 8, 24, 25, X_BYTES)
    srd(a, 12, 26, 27, WQ_BYTES)
    srd(a, 16, 38, 39, WS_SIZE)
    a("s_cmp_ge_u32 s2, 3")
    a("s_cbranch_scc1 K1_noclr")
    for i in range(4): a(f"v_mov_b32 v{12+i}, 0")
    a("s_lshl_b32 s46, s2, 2")
    a("s_add_u32 s46, s46, s3")
    a("s_lshl_b32 s46, s46, 10")
    a(f"s_add_u32 s46, s46, {SYNC}")
    a("v_lshlrev_b32 v11, 4, v0")
    a("buffer_store_dwordx4 v[12:15], v11, s[16:19], s46 offen")
    a.label("K1_noclr")
    for j in range(14):
        a("s_mov_b32 m0, s41")
        a("s_add_u32 s41, s41, 1024")
        a("buffer_load_dwordx4 v8, s[8:11], s40 offen lds")
        a(f"s_add_u32 s40, s40, {128 if j != 6 else 8*896 - 6*128}")
        a("s_mov_b32 m0, s45")
        a("s_add_u32 s45, s45, 1024")
        a("buffer_load_dwordx4 v9, s[12:15], s43 offen lds")
        a(f"s_add_u32 s43, s43, {16*896}")
    a("v_lshlrev_b32 v10, 3, v2")
    a("v_add_u32 v10, v10, v4")
    a("v_lshlrev_b32 v10, 6, v10")
    a("v_lshl_add_u32 v10, v3, 5, v10")
    a("v_lshl_add_u32 v10, v5, 3, v10")
    a("s_mul_i32 s46, s6, 28672")
    a(f"s_add_u32 s46, s46, {K1_W0}")
    a("v_add_u32 v10, s46, v10")
    a("s_mov_b32 s47, 0")
    a("s_mul_i32 s46, s3, 14336")
    a("v_mul_u32_u24 v11, 7168, v2")
    a("v_and_b32 v12, 7, v6")
    a("v_lshl_add_u32 v11, v12, 7, v11")
    a("v_lshl_add_u32 v11, v5, 5, v11")
    a("v_add_u32 v11, s46, v11")
    stamp(a, 1)
    a("s_waitcnt vmcnt(0)")
    stamp(a, 2)
    a("s_barrier")
    stamp(a, 3)
    for kg in range(7):
        a(f"ds_read_b128 {vr(32+8*kg,4)}, v11 offset:{kg*1024}")
        a(f"ds_read_b128 {vr(36+8*kg,4)}, v11 offset:{kg*1024+16}")
    for i in range(4): a(f"v_mov_b32 v{20+i}, 0")
    a(f"s_mov_b32 s48, {ONES_BF}")
    for q in range(14):
        a(f"s_waitcnt lgkmcnt({13-q})")
        for i in range(4):
            r = 32 + 4*q + i
            a(f"v_dot2c_f32_bf16 v{20+(i&1)}, s48, v{r}")
            a(f"v_dot2c_f32_bf16 v{22+(i&1)}, v{r}, v{r}")
    a("s_nop 2")
    a("v_add_f32 v20, v20, v21")
    a("v_add_f32 v22, v22, v23")
    a("s_nop 1")
    a("v_add_f32_dpp v20, v20, v20 quad_perm:[1,0,3,2] row_mask:0xf bank_mask:0xf")
    a("v_add_f32_dpp v22, v22, v22 quad_perm:[1,0,3,2] row_mask:0xf bank_mask:0xf")
    a("s_nop 1")
    a("v_add_f32_dpp v20, v20, v20 quad_perm:[2,3,0,1] row_mask:0xf bank_mask:0xf")
    a("v_add_f32_dpp v22, v22, v22 quad_perm:[2,3,0,1] row_mask:0xf bank_mask:0xf")
    a(f"v_mul_f32 v20, {hexf(1.0/448)}, v20")
    a(f"v_mul_f32 v22, {hexf(1.0/448)}, v22")
    a("v_fma_f32 v22, -v20, v20, v22")
    a("v_max_f32 v22, 0, v22")
    a(f"v_add_f32 v22, {hexf(1e-5)}, v22")
    a("v_rsq_f32 v22, v22")
    a("s_lshl_b32 s46, s3, 6")
    a(f"s_add_u32 s46, s46, {K1_ST}")
    a("v_mul_f32 v20, -v20, v22")
    a("v_lshl_add_u32 v12, v6, 2, s46")
    a("ds_write_b32 v12, v22")
    a("ds_write_b32 v12, v20 offset:256")
    a("s_branch K1_proj")

    a.label("K1_w4")
    a("s_waitcnt lgkmcnt(0)")
    srd(a, 16, 38, 39, WS_SIZE)
    a("s_cmp_ge_u32 s5, 4")
    a("s_cbranch_scc1 K1_prep")
    a("s_lshr_b32 s47, s5, 1")
    a("s_cmp_eq_u32 s47, 0")
    a("s_cselect_b32 s12, s28, s30")
    a("s_cselect_b32 s13, s29, s31")
    a(f"s_mov_b32 s14, {WK_BYTES}")
    a("s_mov_b32 s15, 0x20000")
    a("s_add_u32 s47, s47, 1")
    a("s_and_b32 s44, s5, 1")
    a("v_mul_u32_u24 v9, 56, v6")
    a("v_add_u32 v9, v9, v7")
    a("s_mov_b32 s43, 0")
    a(f"s_mov_b32 s45, {K1_W4}")
    for j in range(28):
        a("s_mov_b32 m0, s45")
        a("s_add_u32 s45, s45, 1024")
        a("buffer_load_dwordx4 v9, s[12:15], s43 offen lds")
        a(f"s_add_u32 s43, s43, {16*56}")
    a("v_lshlrev_b32 v10, 3, v2")
    a("v_add_u32 v10, v10, v4")
    a("v_lshlrev_b32 v10, 6, v10")
    a("v_lshl_add_u32 v10, v3, 5, v10")
    a("v_lshl_add_u32 v10, v5, 3, v10")
    a(f"v_add_u32 v10, {K1_W4}, v10")
    stamp(a, 1)
    a("s_waitcnt vmcnt(0)")
    stamp(a, 2)
    a("s_barrier")
    stamp(a, 3)

    a.label("K1_proj")
    stamp(a, 4)
    a("v_and_b32 v13, 31, v0")
    a("v_bfe_u32 v14, v13, 1, 2")
    a("v_lshrrev_b32 v15, 2, v13")
    a("v_and_b32 v15, 4, v15")
    a("v_or_b32 v14, v14, v15")
    a("v_xor_b32 v14, v14, v2")
    a("v_lshrrev_b32 v15, 3, v13")
    a("v_mul_u32_u24 v15, 7168, v15")
    a("v_and_b32 v16, 7, v13")
    a("v_lshl_add_u32 v15, v16, 7, v15")
    a("s_mul_i32 s46, s44, 28672")
    a("v_add_u32 v15, s46, v15")
    for j in range(4):
        a(f"v_xor_b32 v16, {2*j}, v14")
        a(f"v_lshl_add_u32 v{24+j}, v16, 4, v15")
    a(f"s_mov_b32 s48, {ONES_BF}")
    a("v_mov_b32 v28, 0")
    a("v_mov_b32 v29, 0")
    a("s_cmp_eq_u32 s47, 2")
    a("s_cbranch_scc1 K1_projv")
    RING = 4
    def rd(ks):
        b = 32 + 8*(ks % RING)
        a(f"ds_read_b64_tr_b16 {vr(b,2)}, v10 offset:{ks*1024}")
        a(f"ds_read_b64_tr_b16 {vr(b+2,2)}, v10 offset:{ks*1024+256}")
        a(f"ds_read_b128 {vr(b+4,4)}, v{24+(ks&3)} offset:{(ks>>2)*1024}")
    def loop(swap):
        for ks in range(RING-1): rd(ks)
        for ks in range(28):
            if ks + RING - 1 < 28: rd(ks + RING - 1)
            out = min(RING - 1, 27 - ks) * 3
            a(f"s_waitcnt lgkmcnt({out})")
            b = 32 + 8*(ks % RING)
            W, X = vr(b,4), vr(b+4,4)
            C = "0" if ks == 0 else vr(64,16)
            a(mfma32(vr(64,16), X, W, C) if swap else mfma32(vr(64,16), W, X, C))
            for i in range(4): a(f"v_dot2c_f32_bf16 v{28+(i&1)}, s48, v{b+i}")
    loop(False)
    stamp(a, 5)
    a("s_nop 2")
    a("v_add_f32 v28, v28, v29")
    half_sum(a, 28, 29)
    a("s_lshl_b32 s46, s3, 7")
    a(f"s_add_u32 s46, s46, {K1_CS}")
    a("v_lshl_add_u32 v16, v13, 2, s46")
    a("ds_write_b32 v16, v28")
    a("v_lshl_add_u32 v16, v2, 4, s46")
    a("s_waitcnt lgkmcnt(0)")
    for i in range(4): a(f"ds_read_b128 {vr(32+4*i,4)}, v16 offset:{32*i}")
    a("s_barrier")
    a("s_lshl_b32 s46, s44, 7")
    a(f"s_add_u32 s46, s46, {K1_ST}")
    a("v_lshl_add_u32 v16, v13, 2, s46")
    a("ds_read_b32 v20, v16")
    a("ds_read_b32 v21, v16 offset:256")
    a("s_cmp_eq_u32 s47, 0")
    a(f"s_cselect_b32 s49, {hexf(QSCALE)}, 1.0")
    a("s_cselect_b32 s50, 0, 0x3f80")
    a("s_waitcnt lgkmcnt(0)")
    a("v_mul_f32 v20, s49, v20")
    a("v_mul_f32 v21, s49, v21")
    for i in range(16):
        a(f"v_mul_f32 v{64+i}, v{64+i}, v20")
        a(f"v_fmac_f32 v{64+i}, v{32+i}, v21")
    for i in range(8): a(f"v_cvt_pk_bf16_f32 v{48+i}, v{64+2*i}, v{65+2*i}")
    a("v_cmp_ne_u32 s[52:53], 0, v2")
    a("s_nop 1")
    a("v_cndmask_b32 v54, v54, 0, s[52:53]")
    a("v_cndmask_b32 v55, v55, 0, s[52:53]")
    a("s_cmp_eq_u32 s47, 0")
    a("s_cbranch_scc0 K1_epk")
    a("v_lshrrev_b32 v16, 3, v13")
    a("v_lshlrev_b32 v16, 13, v16")
    a("v_lshl_add_u32 v16, v2, 9, v16")
    a("v_and_b32 v17, 7, v13")
    a("v_lshl_add_u32 v16, v17, 4, v16")
    a("s_lshl_b32 s46, s4, 3")
    a("s_lshl_b32 s49, s44, 2")
    a("s_add_u32 s46, s46, s49")
    a("s_lshl_b32 s46, s46, 13")
    a("s_lshr_b32 s49, s42, 2")
    a("s_lshl_b32 s49, s49, 11")
    a("s_add_u32 s46, s46, s49")
    a("s_and_b32 s49, s42, 3")
    a("s_lshl_b32 s49, s49, 7")
    a("s_add_u32 s46, s46, s49")
    if QF: a(f"s_add_u32 s46, s46, {QF}")
    a(f"buffer_store_dwordx4 v[48:51], v16, s[16:19], s46 offen{SM('k1m')}")
    a(f"buffer_store_dwordx4 v[52:55], v16, s[16:19], s46 offen offset:1024{SM('k1m')}")
    fin(a, 0, 38)
    a.label("K1_epk")
    a("v_mov_b32 v20, 0")
    for i in range(8): a(f"v_dot2c_f32_bf16 v20, v{48+i}, v{48+i}")
    a("v_mov_b32 v22, s50")
    a("v_cndmask_b32 v54, v54, v22, s[52:53]")
    a("s_nop 1")
    half_sum(a, 20, 21)
    a("s_nop 1")
    for m in ("quad_perm:[1,0,3,2]", "quad_perm:[2,3,0,1]", "row_half_mirror", "row_mirror"):
        a(f"v_max_f32_dpp v20, v20, v20 {m} row_mask:0xf bank_mask:0xf")
        a("s_nop 1")
    a("v_mov_b32 v21, v20")
    a("s_nop 1")
    a("v_permlane16_swap_b32 v21, v20")
    a("s_nop 1")
    a("v_max_f32 v20, v20, v21")
    a("s_lshl_b32 s46, s4, 1")
    a("s_add_u32 s46, s46, s44")
    a("s_lshl_b32 s49, s46, 2")
    a(f"s_add_u32 s49, s49, {KMAX}")
    a("s_lshl_b32 s46, s46, 12")
    a(f"s_add_u32 s46, s46, {KV}")
    a("v_lshlrev_b32 v16, 4, v0")
    a("v_mov_b32 v17, 0")
    a(f"buffer_store_dwordx4 v[48:51], v16, s[16:19], s46 offen{SM('k1m')}")
    a(f"buffer_store_dwordx4 v[52:55], v16, s[16:19], s46 offen offset:1024{SM('k1m')}")
    a("s_mov_b64 exec, 1")
    a("buffer_store_dword v20, v17, s[16:19], s49 offen")
    fin(a, 0, 38)
    a.label("K1_projv")
    loop(True)
    stamp(a, 5)
    a("s_nop 2")
    a("v_add_f32 v28, v28, v29")
    half_sum(a, 28, 29)
    a("s_barrier")
    a("s_lshl_b32 s46, s44, 7")
    a(f"s_add_u32 s46, s46, {K1_ST}")
    a("v_lshl_add_u32 v16, v2, 4, s46")
    for i in range(4): a(f"ds_read_b128 {vr(32+4*i,4)}, v16 offset:{32*i}")
    for i in range(4): a(f"ds_read_b128 {vr(48+4*i,4)}, v16 offset:{256+32*i}")
    a("s_waitcnt lgkmcnt(0)")
    for i in range(16):
        a(f"v_mul_f32 v{64+i}, v{64+i}, v{32+i}")
        a(f"v_fmac_f32 v{64+i}, v{48+i}, v28")
    for i in range(8): a(f"v_cvt_pk_bf16_f32 v{48+i}, v{64+2*i}, v{65+2*i}")
    a("v_cmp_eq_u32 s[52:53], 28, v13")
    a(f"v_mov_b32 v21, {ONES_BF}")
    a("s_nop 0")
    a("v_cndmask_b32 v21, 0, v21, s[52:53]")
    a("v_cmp_lt_u32 s[52:53], 27, v13")
    a("s_nop 1")
    for i in range(8): a(f"v_cndmask_b32 v{48+i}, v{48+i}, v21, s[52:53]")
    a("s_lshl_b32 s46, s4, 1")
    a("s_add_u32 s46, s46, s44")
    a("s_lshl_b32 s46, s46, 12")
    a(f"s_add_u32 s46, s46, {KV}")
    a("v_lshlrev_b32 v16, 4, v0")
    a(f"buffer_store_dwordx4 v[48:51], v16, s[16:19], s46 offen offset:2048{SM('k1m')}")
    a(f"buffer_store_dwordx4 v[52:55], v16, s[16:19], s46 offen offset:3072{SM('k1m')}")
    fin(a, 0, 38)

    a.label("K1_prep")
    a("s_lshl_b32 s40, s4, 2")
    a("s_add_u32 s40, s40, s5")
    a("s_sub_u32 s40, s40, 4")
    a("s_cmp_ge_u32 s40, 126")
    a("s_cbranch_scc1 K1_end")
    a("v_lshlrev_b32 v10, 2, v2")
    a("v_add_u32 v10, v10, v4")
    a("v_lshlrev_b32 v10, 6, v10")
    a("v_lshl_add_u32 v10, v3, 5, v10")
    a("v_lshl_add_u32 v10, v5, 3, v10")
    a("s_mov_b32 s50, 512")
    a("s_mov_b32 s51, 1024")
    a("s_mov_b32 s52, 2048")
    a("s_mov_b32 s53, 1024")
    a("s_cmp_ge_u32 s40, 56")
    a("s_cbranch_scc1 K1_prep2")
    srd(a, 12, 34, 35, W1_BYTES)
    a("s_mov_b32 s41, 3584")
    a("s_lshl_b32 s43, s40, 6")
    a("s_mul_i32 s46, s40, 28672")
    a(f"s_add_u32 s46, s46, {W1F}")
    a("s_branch K1_prep4")
    a.label("K1_prep2")
    a("s_cmp_ge_u32 s40, 112")
    a("s_cbranch_scc1 K1_prep3")
    srd(a, 12, 36, 37, W2_BYTES)
    a("s_mov_b32 s41, 896")
    a("s_sub_u32 s40, s40, 56")
    a("s_lshr_b32 s6, s40, 2")
    a("s_and_b32 s7, s40, 3")
    a("s_mul_i32 s43, s7, 448*896")
    a("s_lshl_b32 s44, s6, 6")
    a("s_add_u32 s43, s43, s44")
    a("s_mul_i32 s46, s40, 28672")
    a(f"s_add_u32 s46, s46, {W2F}")
    a("s_branch K1_prep4")
    a.label("K1_prep3")
    srd(a, 12, 32, 33, WQ_BYTES)
    a("s_mov_b32 s41, 896")
    a("s_sub_u32 s40, s40, 112")
    a("s_lshl_b32 s43, s40, 6")
    a("s_lshl_b32 s6, s40, 1")
    for r in (46, 53):
        a("s_mul_i32 s7, s6, 37")
        a("s_lshr_b32 s7, s7, 8")
        a(f"s_mul_i32 s{r}, s7, {100352 - 7*1024}")
        a("s_lshl_b32 s7, s6, 10")
        a(f"s_add_u32 s{r}, s{r}, s7")
        a("s_add_u32 s6, s6, 1")
    a("s_sub_u32 s53, s53, s46")
    a(f"s_add_u32 s46, s46, {WOF}")
    a("v_lshrrev_b32 v10, 4, v0")
    a("v_lshlrev_b32 v10, 3, v10")
    a("v_add_u32 v10, v10, v4")
    a("v_lshlrev_b32 v10, 6, v10")
    a("v_lshl_add_u32 v10, v5, 3, v10")
    a("s_mov_b32 s50, 256")
    a("s_mov_b32 s51, 32")
    a("s_mov_b32 s52, 7168")
    a.label("K1_prep4")
    a("v_mul_lo_u32 v9, v6, s41")
    a("v_add_u32 v9, v9, v7")
    a("s_lshl_b32 s41, s41, 4")
    a(f"s_mov_b32 s45, {K1_W4}")
    for j in range(28):
        a("s_mov_b32 m0, s45")
        a("s_add_u32 s45, s45, 1024")
        a("buffer_load_dwordx4 v9, s[12:15], s43 offen lds")
        a("s_add_u32 s43, s43, s41")
    a(f"v_add_u32 v10, {K1_W4}, v10")
    a("v_add_u32 v11, s50, v10")
    a("v_add_u32 v12, s51, v10")
    a("v_add_u32 v13, s51, v11")
    a("v_lshlrev_b32 v16, 4, v0")
    a("s_add_u32 s47, s46, s53")
    stamp(a, 1)
    a("s_waitcnt vmcnt(0)")
    stamp(a, 2)
    a("s_barrier")
    stamp(a, 3)
    def prd(p):
        b = 32 + 8*(p % 4)
        a(f"ds_read_b64_tr_b16 {vr(b,2)}, v10 offset:{p*2048}")
        a(f"ds_read_b64_tr_b16 {vr(b+2,2)}, v11 offset:{p*2048}")
        a(f"ds_read_b64_tr_b16 {vr(b+4,2)}, v12 offset:{p*2048}")
        a(f"ds_read_b64_tr_b16 {vr(b+6,2)}, v13 offset:{p*2048}")
    prd(0); prd(1)
    for p in range(14):
        if p + 2 < 14: prd(p + 2)
        a(f"s_waitcnt lgkmcnt({4*min(2, 13-p)})")
        b = 32 + 8*(p % 4)
        a(f"buffer_store_dwordx4 {vr(b,4)}, v16, s[16:19], s46 offen{SM('k1m')}")
        a(f"buffer_store_dwordx4 {vr(b+4,4)}, v16, s[16:19], s47 offen{SM('k1m')}")
        a("s_add_u32 s46, s46, s52")
        a("s_add_u32 s47, s47, s52")
    a("s_barrier")
    fin(a, 0, 38)
    a.label("K1_end")
    a("s_endpgm")
    return kd(n, 96, 64, 96), f"; @launch kernel={n} grid=(256,1,1) block=(320,1,1) lds={K1_LDS}"

L_RED, L_OB, L_WO, L_ST, L_DUMMY, L_BIAS, L_HT = 0, 49152, 57344, 147456, 148480, 149504, 150528
L_HN, L_ACT = 0, 57344
KB_LDS = 158720
OB_STRIDE = 912
SHIFT_LIMIT = 40.0
SPIN_LIMIT = 1 << 17
LN2F = math.log(2.0)

class Cnt:
    def __init__(self, name, cap): self.q = []; self.name = name; self.cap = cap
    def issue(self, tag):
        self.q.append(tag)
        assert self.name != "vmcnt" or len(self.q) <= self.cap, (self.name, tag, len(self.q))
    def wait(self, tag):
        if tag not in self.q: return None
        k = len(self.q) - 1 - self.q[::-1].index(tag)
        n = min(len(self.q) - 1 - k, self.cap)
        self.q = self.q[len(self.q)-n:] if n else []
        return f"s_waitcnt {self.name}({n})"
    def clear(self): self.q = []

def cost(t):
    mn = t.split()[0]
    if mn.startswith(("v_exp", "v_rcp", "v_rsq", "v_sqrt")): return 8
    if mn.startswith(("ds_write_b128", "global_store")): return 20
    if mn.startswith(("ds_", "global_", "buffer_")): return 12
    if mn.startswith(("v_cvt_pk", "v_fma_")): return 5
    return 4.3

def gen_kb(a, force_slow=False, force_fence=False):
    n = "kb_kernel"
    header(a, n)
    vm = Cnt("vmcnt", 63); lg = Cnt("lgkmcnt", 15)
    def V(text, tag="-"): a(text); vm.issue(tag)
    def D(text, tag="-"): a(text); lg.issue(tag)
    def WV(tag):
        w = vm.wait(tag)
        if w: a(w)
    def WL(tag):
        w = lg.wait(tag)
        if w: a(w)
    def add64(d, s, off):
        a(f"s_add_u32 s{d}, s{s}, {off}")
        a(f"s_addc_u32 s{d+1}, s{s+1}, 0")
    XR, Q, KVR, S, P, WOV = 16, 32, 64, 96, 128, 144
    NPRE = OPT.get('npre', 0)
    a("s_cmp_ge_u32 s2, 256")
    a("s_cbranch_scc1 KB_end")
    stamp_init(a)
    a("s_load_dwordx2 s[8:9], s[0:1], 88")
    a("s_load_dwordx2 s[10:11], s[0:1], 0")
    a("s_load_dwordx2 s[12:13], s[0:1], 72")
    a("s_load_dwordx2 s[14:15], s[0:1], 56")
    a("v_lshrrev_b32 v1, 6, v0")
    a("v_and_b32 v0, 63, v0")
    a("v_readfirstlane_b32 s3, v1")
    a("s_lshr_b32 s7, s2, 3")
    a("s_and_b32 s4, s2, 7")
    a("s_lshl_b32 s4, s4, 2")
    a("s_lshr_b32 s5, s7, 3")
    a("s_add_u32 s4, s4, s5")
    a("s_and_b32 s5, s7, 7")
    a("s_lshl_b32 s6, s4, 3")
    a("s_add_u32 s6, s6, s5")
    a("v_lshlrev_b32 v1, 4, v0")
    a("v_lshrrev_b32 v2, 5, v0")
    a("v_lshlrev_b32 v3, 2, v0")
    a("s_lshl_b32 s52, s3, 16")
    a(f"s_add_u32 s52, s52, {KV + 4096}")
    a("s_lshl_b32 s53, s5, 13")
    a("s_add_u32 s53, s53, s52")
    a("s_lshl_b32 s54, s6, 13")
    if QF: a(f"s_add_u32 s54, s54, {QF}")
    a(f"s_mov_b32 s55, {KMAX}")
    for t in range(4):
        a(f"s_add_u32 s{56+t}, s3, {t+1}")
        a(f"s_and_b32 s{56+t}, s{56+t}, 3")
        a(f"s_lshl_b32 s{56+t}, s{56+t}, 11")
        a(f"s_add_u32 s{56+t}, s{56+t}, s54")
    a("s_waitcnt lgkmcnt(0)")
    srd(a, 16, 8, 9, WS_SIZE)
    add64(32, 8, "s53")
    V("buffer_load_dword v4, v3, s[16:19], s55 offen", "kmax")
    for t in range(4):
        V(f"buffer_load_dwordx4 {vr(Q+8*t,4)}, v1, s[16:19], s{56+t} offen", f"q{t}")
        V(f"buffer_load_dwordx4 {vr(Q+8*t+4,4)}, v1, s[16:19], s{56+t} offen offset:1024", f"q{t}")
    def kvld(i, part):
        b = 32 + 2*(i >> 1)
        return f"global_load_dwordx4 {vr(KVR+16*(i&1)+4*part,4)}, v1, s[{b}:{b+1}] offset:{4096*(i&1) - 4096 + 1024*part}"
    for i, part in ((0,0), (0,1), (0,2), (0,3), (1,0), (1,1), (1,2), (1,3)):
        V(kvld(i, part), f"{'KV'[part>>1]}{i}")
    srd(a, 20, 10, 11, X_BYTES)
    srd(a, 24, 12, 13, X_BYTES)
    srd(a, 28, 14, 15, 3584)
    a(f"s_mov_b32 m0, {L_BIAS}")
    a("s_lshl_b32 s53, s5, 9")
    V("buffer_load_dwordx4 v1, s[28:31], s53 offen lds", "bias")
    a("v_lshlrev_b32 v10, 7, v0")
    a("s_lshl_b32 s53, s7, 2")
    a("s_add_u32 s53, s53, s3")
    a("s_cmp_lt_u32 s53, 49")
    a("s_cbranch_scc0 KB_wcode")
    a("s_lshl_b32 s54, s53, 13")
    a(f"s_add_u32 s54, s54, {WOF}")
    add64(50, 8, "s54")
    a("global_load_dword v31, v10, s[50:51]")
    a("s_branch KB_wdone")
    a.label("KB_wcode")
    a("s_getpc_b64 s[50:51]")
    a.label("KB_pc")
    a("s_sub_u32 s54, s53, 49")
    a("s_lshl_b32 s54, s54, 13")
    a("v_add_u32 v11, s54, v10")
    a("v_min_u32 v11, KB_code_end-KB_pc-4, v11")
    a("global_load_dword v31, v11, s[50:51]")
    a.label("KB_wdone")
    vm.issue("warm")
    a("s_getreg_b32 s69, hwreg(HW_REG_XCC_ID, 0, 4)")
    a("s_add_u32 s69, s69, 1")
    a("s_lshl_b32 s53, s4, 8")
    a(f"s_add_u32 s53, s53, {SYNC}")
    add64(66, 8, "s53")
    a("s_lshl_b32 s53, s4, 7")
    a(f"s_add_u32 s53, s53, {SYNC + 0x2000}")
    add64(62, 8, "s53")
    a("v_mov_b32 v11, s69")
    a("s_lshl_b32 s53, s5, 2")
    a("v_mov_b32 v12, s53")
    a("s_mov_b64 exec, 1")
    V("global_store_dword v12, v11, s[62:63] sc0 sc1", "xccpub")
    a("s_mov_b64 exec, -1")
    a("s_load_dword s70, s[66:67], 0")
    a("s_load_dword s71, s[66:67], 128")
    a("s_mul_i32 s53, s3, 100352")
    a(f"s_add_u32 s53, s53, {WOF + 4096}")
    add64(48, 8, "s53")
    def woreg(f):
        if f < 48: return ar(64+4*f, 4)
        if f < 76: return vr(WOV+4*(f-48), 4)
        if f < 92: return vr(32+4*(f-76), 4)
        return vr(WOV+4*(f-92), 4)
    VOFF = (1, 7, 9, 8)
    def wo_items(f0, f1):
        it = []
        for f in range(f0, f1):
            if f < 76:
                if f and f % 32 == 0:
                    it += [("s", "s_add_u32 s48, s48, 32768"), ("s", "s_addc_u32 s49, s49, 0")]
                it.append(("v", f"global_load_dwordx4 {woreg(f)}, v{VOFF[(f%32)//8]}, s[48:49] offset:{1024*(f%8) - 4096}", f"wo{f}"))
            else:
                g = (f - 76) // 4
                if f % 4 == 0: it.append(("s", f"s_add_u32 m0, s60, {L_WO + 1024*(f-76)}"))
                b = 50 if g & 1 else 48
                it.append(("v", f"global_load_lds_dwordx4 v{VOFF[1 + g//2]}, s[{b}:{b+1}] offset:{1024*(f%4)}", f"wo{f}"))
        return it
    def emit_item(it):
        if it[0] == "s": a(it[1])
        elif it[0] == "v": V(it[1], it[2])
        elif it[0] == "d": D(it[1], it[2])
        elif it[0] == "wv": WV(it[1])
        elif it[0] == "wl": WL(it[1])
    add64(50, 48, 65536 + 4096)
    assert NPRE <= 8
    for it in wo_items(0, NPRE): emit_item(it)
    a("v_and_b32 v5, 7, v0")
    a("v_lshrrev_b32 v6, 4, v0")
    a("v_mul_u32_u24 v7, 896, v5")
    a("v_lshl_add_u32 v7, v6, 3, v7")
    a("s_mul_i32 s53, s6, 8*896")
    a("s_mul_i32 s54, s3, 224")
    a("s_add_u32 s53, s53, s54")
    for i in range(7): V(f"buffer_load_dwordx2 {vr(XR+2*i,2)}, v7, s[20:23], s53 offen offset:{32*i}", "xr")
    a("v_add_u32 v7, 8192, v1")
    a("v_add_u32 v9, 16384, v1")
    for p in range(1, 8):
        a(f"s_add_u32 s53, s5, {p}")
        a("s_and_b32 s53, s53, 7")
        a("s_lshl_b32 s53, s53, 13")
        a("s_add_u32 s53, s53, s52")
        add64(32+2*p, 8, "s53")
    a("s_mul_i32 s60, s3, 22528")
    for t in range(3):
        a(f"s_add_u32 s53, s3, {t+1}")
        a("s_and_b32 s53, s53, 3")
        a("s_mul_i32 s53, s53, 12288")
        a(f"s_add_u32 s53, s53, {L_RED + 4096*t}")
        a(f"v_add_u32 v{13+t}, s53, v1")
    a("s_lshl_b32 s53, s7, 2")
    a("s_add_u32 s53, s53, s3")
    a("s_mul_i32 s53, s53, 12544")
    a(f"s_add_u32 s53, s53, {W1F + 4096}")
    add64(56, 8, "s53")
    add64(58, 56, W2F - W1F)
    a("s_lshr_b32 s53, s6, 2")
    a("s_mul_i32 s53, s53, 28672")
    a("s_and_b32 s54, s5, 3")
    a("s_lshl_b32 s54, s54, 7")
    a("s_add_u32 s53, s53, s54")
    a("s_mul_i32 s54, s3, 7168")
    a("s_add_u32 s53, s53, s54")
    a(f"s_add_u32 s53, s53, {HN}")
    add64(54, 8, "s53")
    a("v_lshrrev_b32 v10, 2, v0")
    a("v_lshlrev_b32 v10, 7, v10")
    a("v_and_b32 v11, 12, v3")
    a("v_add_u32 v10, v10, v11")
    a("v_add_u32 v11, 8192, v10")
    a("v_min_u32 v12, 13, v0")
    a("v_lshlrev_b32 v12, 9, v12")
    a("v_and_b32 v30, 7, v0")
    a("v_lshlrev_b32 v30, 2, v30")
    late = [("v", "global_load_dword v30, v30, s[62:63] sc1", "xcc"),
            ("v", "global_load_dword v4, v12, s[54:55] sc1", "late")]
    warm = [("v", f"global_load_dword v4, v{10 + (k >> 2)}, s[{b}:{b+1}] offset:{2048*(k & 3) - 4096}", "warm")
            for b in (56, 58) for k in range(7)][:OPT.get('nwarm', 7)]
    nstamp(a, "pro")
    WV("kmax")
    for m_ in ("quad_perm:[1,0,3,2]", "quad_perm:[2,3,0,1]", "row_half_mirror", "row_mirror"):
        a(f"v_max_f32_dpp v4, v4, v4 {m_} row_mask:0xf bank_mask:0xf")
        a("s_nop 1")
    a("v_mov_b32 v8, v4")
    a("s_nop 1")
    a("v_permlane16_swap_b32 v8, v4")
    a("s_nop 1")
    a("v_max_f32 v4, v4, v8")
    half_sum(a, 4, 8, "v_max_f32")
    a(f"v_mul_f32 v4, {hexf(1.02)}, v4")
    a("v_cmp_ne_u32 s[64:65], 0, v2")
    B0 = S + 16
    for t in range(4): a(f"v_mov_b32 v{B0+t}, 0")
    for t in range(4):
        WV(f"q{t}")
        for i in range(8): a(f"v_dot2c_f32_bf16 v{B0+t}, v{Q+8*t+i}, v{Q+8*t+i}")
    a("s_nop 2")
    for t in range(4): a(f"v_mov_b32 v{B0+4+t}, v{B0+t}")
    a("s_nop 0")
    for t in range(4): a(f"v_permlane32_swap_b32 v{B0+4+t}, v{B0+t}")
    a("s_nop 0")
    for t in range(4): a(f"v_add_f32 v{B0+t}, v{B0+t}, v{B0+4+t}")
    for t in range(4): a(f"v_mul_f32 v{B0+t}, v{B0+t}, v4")
    for t in range(4): a(f"v_sqrt_f32 v{B0+t}, v{B0+t}")
    a("s_nop 0")
    a(f"v_max3_f32 v8, v{B0}, v{B0+1}, v{B0+2}")
    a(f"v_max_f32 v8, v8, v{B0+3}")
    lim = -1.0 if force_slow else SHIFT_LIMIT
    a(f"v_cmp_nge_f32 vcc, {hexf(lim)}, v8")
    a("v_add_u32 v8, 24576, v1")
    a("s_cbranch_vccnz KB_slow")
    vm_at_slow = list(vm.q)
    for t in range(4): a(f"v_cvt_pk_bf16_f32 v{B0+t}, -v{B0+t}, 0")
    for t in range(4): a(f"v_cndmask_b32 v{Q+8*t+6}, v{Q+8*t+6}, v{B0+t}, s[64:65]")
    WV("K0")
    a(mfma32(vr(S,16), vr(KVR,4), vr(Q,4), "0"))
    a(mfma32(vr(S,16), vr(KVR+4,4), vr(Q+4,4), vr(S,16)))
    a("s_nop 7")
    a("s_nop 3")
    nstamp(a, "loop")
    slots = {}
    for i in range(16):
        if i <= 13:
            slots[(4*i+2, 0)] = [("v", kvld(i+2, 0), f"K{i+2}")]
            slots[(4*i+2, 1)] = [("v", kvld(i+2, 1), f"K{i+2}")]
        if i <= 14: slots[(4*i+2, 3)] = [("wv", f"K{i+1}")]
        if 1 <= i <= 14:
            slots[(4*i, 2)] = [("v", kvld(i+1, 2), f"V{i+1}")]
            slots[(4*i, 3)] = [("v", kvld(i+1, 3), f"V{i+1}")]
        slots[(4*i+1, 1)] = [("wv", f"V{i}")]
    for q, it in enumerate(warm): slots[(4*(1 + q*14//len(warm)), 1)] = [it]
    free = [(u, k) for u in range(OPT.get('wo0', 1), 56) for k in range(4) if (u, k) not in slots]
    side = wo_items(NPRE, 98)
    assert len(side) <= len(free), (len(side), len(free))
    for q, it in enumerate(side): slots[free[q*len(free)//len(side)]] = [it]
    lf = [(u, k) for u in range(57, 62) for k in range(4) if (u, k) not in slots]
    for q, it in enumerate(late): slots[lf[2*q]] = [it]
    def redw(t, q): return ("d", f"ds_write_b128 v{13+t}, {ar(16*t+4*q,4)} offset:{1024*q}", "red")
    for q, sl in enumerate([(62,1), (62,2), (62,3), (63,2)]): slots.setdefault(sl, []).append(redw(0, q))
    tail63 = [redw(1, q) for q in range(4)]
    slots.setdefault((63,3), []).append(tail63[0])
    for u in range(64):
        sb, pb = S + 16*(u & 1), P + 8*(u & 1)
        sn, pp = S + 16*((u+1) & 1), P + 8*((u-1) & 1)
        un, up = u + 1, u - 1
        kslot = KVR + 16*((un >> 2) & 1); qn = Q + 8*(un & 3)
        vslot = KVR + 16*((up >> 2) & 1) + 8; oa = ar(16*(up & 3), 16)
        M = [mfma32(vr(sn,16), vr(kslot,4), vr(qn,4), "0"),
             mfma32(vr(sn,16), vr(kslot+4,4), vr(qn+4,4), vr(sn,16)),
             mfma32(oa, vr(vslot,4), vr(pp,4), "0" if up < 4 else oa),
             mfma32(oa, vr(vslot+4,4), vr(pp+4,4), oa)]
        e = lambda k: f"v_exp_f32 v{sb+k}, v{sb+k}"
        c = lambda k: f"v_cvt_pk_bf16_f32 v{pb+k}, v{sb+2*k}, v{sb+2*k+1}"
        groups = [[e(0), e(1), e(2), e(3), c(0)], [e(4), c(1), e(5), e(6), e(7), c(2)],
                  [e(8), c(3), e(9), e(10), e(11), c(4)], [e(12), c(5), e(13), e(14), e(15), c(6), c(7)]]
        nstamp(a, f"u{u}")
        for k in range(4):
            if not ((u == 63 and k < 2) or (u == 0 and k >= 2)): a(M[k])
            for it in slots.get((u, k), []): emit_item(it)
            for x in groups[k]: a(x)
    emit_item(tail63[1])
    a(mfma32(ar(48,16), vr(KVR+24,4), vr(P+8,4), ar(48,16)))
    emit_item(tail63[2])
    a(mfma32(ar(48,16), vr(KVR+28,4), vr(P+12,4), ar(48,16)))
    emit_item(tail63[3])
    for q in range(4): emit_item(redw(2, q))
    a.label("KB_red")
    nstamp(a, "red")
    a("s_mul_i32 s53, s3, 12288")
    a("v_add_u32 v8, s53, v1")
    a("v_bfe_u32 v9, v0, 3, 2")
    a("s_lshl_b32 s53, s3, 2")
    a("v_add_u32 v9, s53, v9")
    a("v_mul_u32_u24 v9, 56, v9")
    a(f"v_mul_u32_u24 v10, {OB_STRIDE}, v5")
    a("v_add_u32 v9, v9, v10")
    a("v_lshl_add_u32 v9, v2, 3, v9")
    a(f"v_add_u32 v9, {L_OB}, v9")
    a(f"v_mov_b32 v11, {L_DUMMY}")
    a("v_add_u32 v12, 48, v9")
    a("v_cndmask_b32 v11, v12, v11, s[64:65]")
    a("v_lshl_add_u32 v10, v6, 4, v10")
    a(f"v_add_u32 v10, {L_OB}, v10")
    for i in range(16): a(f"v_accvgpr_read_b32 v{32+i}, a{48+i}")
    a("s_waitcnt lgkmcnt(0)"); lg.clear()
    a("s_barrier")
    for j in range(12): D(f"ds_read_b128 {vr(48+4*j,4)}, v8 offset:{L_RED+1024*j}", f"r{j//4}")
    ACC = 96
    WV("xr")
    for i in range(14):
        a(f"v_lshlrev_b32 v{ACC+2*i}, 16, v{XR+i}")
        a(f"v_and_b32 v{ACC+2*i+1}, 0xffff0000, v{XR+i}")
    for j in range(3):
        WL(f"r{j}")
        for i in range(16): a(f"v_add_f32 v{32+i}, v{32+i}, v{48+16*j+i}")
    a("v_mov_b32 v12, v44")
    a("v_mov_b32 v13, v44")
    a("s_nop 1")
    a("v_permlane32_swap_b32 v12, v13")
    a("s_nop 1")
    a("v_rcp_f32 v13, v13")
    a("s_nop 0")
    for i in range(16): a(f"v_mul_f32 v{32+i}, v{32+i}, v13")
    for i in range(8): a(f"v_cvt_pk_bf16_f32 v{48+i}, v{32+2*i}, v{33+2*i}")
    for i in range(3): D(f"ds_write_b64 v9, {vr(48+2*i,2)} offset:{16*i}")
    D("ds_write_b64 v11, v[54:55]")
    a("s_lshl_b32 s53, s5, 3")
    a("s_add_u32 s53, s53, s3")
    a("s_mul_i32 s53, s53, 28672")
    a(f"s_add_u32 s53, s53, {W1F + 4096}")
    add64(50, 8, "s53")
    a(f"s_add_u32 s53, s60, {L_WO}")
    a("v_add_u32 v8, s53, v1")
    a("s_waitcnt lgkmcnt(0)"); lg.clear()
    a("s_barrier")
    nstamp(a, "wo")
    def w1reg(i):
        return ar(64+4*i, 4) if i < 48 else ar(4*(i-48), 4)
    def w1_items(i):
        it = []
        ks = i % 28
        if i == 28: it += [("s", f"s_add_u32 s50, s50, {4*28672 - 3*8192}"), ("s", "s_addc_u32 s51, s51, 0")]
        elif ks and ks % 8 == 0: it += [("s", "s_add_u32 s50, s50, 8192"), ("s", "s_addc_u32 s51, s51, 0")]
        it.append(("v", f"global_load_dwordx4 {w1reg(i)}, v1, s[50:51] offset:{1024*(ks%8) - 4096}", f"w1_{i}"))
        return it
    for ks in range(14): D(f"ds_read_b128 {ar(4*ks,4)}, v10 offset:{64*ks}", f"o{ks}")
    WV("wo97")
    NW1 = 24
    post = {f: [] for f in range(98)}
    for i in range(NW1):
        it = w1_items(i)
        for q, x in enumerate(it): post[4*i + 3 - (len(it) - 1 - q)].append(x)
    for q in range(16): post[20 + 2*q].append(("d", f"ds_read_b128 {woreg(76+q)}, v8 offset:{1024*q}", f"wl{76+q}"))
    for q in range(6): post[56 + 2*q].append(("d", f"ds_read_b128 {woreg(92+q)}, v8 offset:{1024*(16+q)}", f"wl{92+q}"))
    for f in range(98):
        ks, tile = divmod(f, 7)
        if tile == 0: WL(f"o{ks}")
        if f >= 76: WL(f"wl{f}")
        a(mfma16(vr(ACC+4*tile,4), woreg(f), ar(4*ks,4), vr(ACC+4*tile,4)))
        for it in post[f]: emit_item(it)
    nstamp(a, "woend")
    H = 32
    a("v_and_b32 v14, 15, v0")
    a("v_lshlrev_b32 v14, 3, v14")
    a(f"v_add_u32 v14, {L_ST}, v14")
    a("s_lshl_b32 s53, s3, 7")
    a("v_add_u32 v15, s53, v14")
    a("s_mul_i32 s53, s3, 1792")
    a(f"s_add_u32 s53, s53, {L_HT}")
    a("v_and_b32 v8, 1, v6")
    a("v_lshlrev_b32 v8, 7, v8")
    a("v_lshl_add_u32 v8, v5, 4, v8")
    a("v_lshl_add_u32 v8, v2, 3, v8")
    a("v_add_u32 v8, s53, v8")
    a("v_add_u32 v9, s53, v1")
    for i in range(14): a(f"v_cvt_pk_bf16_f32 v{H+i}, v{ACC+2*i}, v{ACC+2*i+1}")
    a(f"s_mov_b32 s53, {ONES_BF}")
    a("v_mov_b32 v12, 0")
    a("v_mov_b32 v13, 0")
    for i in range(14):
        a(f"v_dot2c_f32_bf16 v12, s53, v{H+i}")
        a(f"v_dot2c_f32_bf16 v13, v{H+i}, v{H+i}")
    for i in range(7): D(f"ds_write_b64 v8, {vr(H+2*i,2)} offset:{256*i}")
    a("v_mov_b32 v10, v12")
    a("v_mov_b32 v11, v13")
    a("s_nop 0")
    a("v_permlane16_swap_b32 v10, v12")
    a("v_permlane16_swap_b32 v11, v13")
    a("s_nop 0")
    a("v_add_f32 v12, v12, v10")
    a("v_add_f32 v13, v13, v11")
    a("v_mov_b32 v10, v12")
    a("v_mov_b32 v11, v13")
    a("s_nop 0")
    a("v_permlane32_swap_b32 v10, v12")
    a("v_permlane32_swap_b32 v11, v13")
    a("s_nop 0")
    a("v_add_f32 v12, v12, v10")
    a("v_add_f32 v13, v13, v11")
    D("ds_write_b64 v15, v[12:13]")
    H8 = 16
    D(f"ds_read_b128 {vr(H8,4)}, v9", "h8")
    D(f"ds_read_b128 {vr(H8+4,4)}, v9 offset:1024", "h8")
    WV("xcc")
    a("s_mov_b32 s68, 1")
    a("v_cmp_ne_u32 vcc, s69, v30")
    if force_fence: a("s_branch KB_xcc")
    else: a("s_cbranch_vccnz KB_xcc")
    a.label("KB_xcc_done")
    a("v_bfe_u32 v7, v0, 3, 1")
    a("v_lshlrev_b32 v8, 10, v6")
    a("v_lshl_add_u32 v8, v7, 9, v8")
    a("v_lshl_add_u32 v8, v5, 4, v8")
    a("v_add_u32 v9, 4096, v8")
    a("s_waitcnt lgkmcnt(0)"); lg.clear()
    a("s_barrier")
    for w in range(4): D(f"ds_read_b64 {vr(48+2*w,2)}, v14 offset:{128*w}", "st")
    for i in range(8):
        a(f"v_lshlrev_b32 v{ACC+2*i}, 16, v{H8+i}")
        a(f"v_and_b32 v{ACC+2*i+1}, 0xffff0000, v{H8+i}")
    WL("st")
    a("v_add_f32 v48, v48, v50")
    a("v_add_f32 v49, v49, v51")
    a("v_add_f32 v52, v52, v54")
    a("v_add_f32 v53, v53, v55")
    a("v_add_f32 v48, v48, v52")
    a("v_add_f32 v49, v49, v53")
    a(f"v_mul_f32 v48, {hexf(1.0/448)}, v48")
    a(f"v_mul_f32 v49, {hexf(1.0/448)}, v49")
    a("v_fma_f32 v49, -v48, v48, v49")
    a("v_max_f32 v49, 0, v49")
    a(f"v_add_f32 v49, {hexf(1e-5)}, v49")
    a("v_rsq_f32 v49, v49")
    a("s_nop 0")
    a(f"v_mul_f32 v49, {hexf(LOG2E)}, v49")
    a("v_mul_f32 v48, -v48, v49")
    for i in range(16): a(f"v_fma_f32 v{ACC+i}, v{ACC+i}, v49, v48")
    for i in range(8): a(f"v_cvt_pk_bf16_f32 v{32+i}, v{ACC+2*i}, v{ACC+2*i+1}")
    nstamp(a, "hnst")
    V(f"global_store_dwordx4 v8, v[32:35], s[54:55]{SM('hnm')}", "hnst")
    a("s_mov_b32 exec_hi, 0xffff")
    V(f"global_store_dwordx4 v9, v[36:39], s[54:55]{SM('hnm')}", "hnst")
    a("s_mov_b32 exec_hi, -1")
    a("v_mov_b32 v10, 0")
    a("v_mov_b32 v11, 1")
    a("s_lshl_b32 s53, s3, 6")
    a(f"s_add_u32 s53, s53, {L_BIAS}")
    a("v_lshl_add_u32 v12, v2, 3, s53")
    for q in range(8): D(f"ds_read_b64 {vr(48+2*q,2)}, v12 offset:{16*(q&3) + 256*(q>>2)}", "bias")
    def signal(off, lab):
        a("s_waitcnt vmcnt(0)"); vm.clear()
        a("s_cmp_eq_u32 s68, 0")
        a(f"s_cbranch_scc1 {lab}_fence")
        a("s_mov_b64 exec, 1")
        V(f"global_atomic_add v10, v11, s[66:67] offset:{off}", "sig")
        a("s_mov_b64 exec, -1")
        a.label(f"{lab}_done")
    def poll(off, target, lab):
        a("s_cmp_eq_u32 s68, 0")
        a(f"s_cbranch_scc1 {lab}_fence")
        a("s_mov_b32 s52, 0")
        a.label(f"{lab}_loop")
        a(f"s_load_dword s53, s[66:67], {off} glc")
        a("s_add_u32 s52, s52, 1")
        a("s_waitcnt lgkmcnt(0)"); lg.clear()
        a(f"s_cmp_ge_u32 s53, {target}")
        a(f"s_cbranch_scc1 {lab}_done")
        a(f"s_cmp_lt_u32 s52, {SPIN_LIMIT}")
        a(f"s_cbranch_scc1 {lab}_loop")
        a.label(f"{lab}_done")
    signal(0, "KB_sg1")
    nstamp(a, "sig1")
    a("s_cmp_eq_u32 s5, 7")
    a("s_cbranch_scc1 KB_fin")
    T0, A2, A1, HOLD = 24, 48, 80, 144
    NW1B = 40
    for i in range(NW1, NW1B):
        for it in w1_items(i): emit_item(it)
    WL("bias")
    a(f"s_mov_b32 s53, {hexf(LOG2E)}")
    accs = {("A",0): A1, ("B",0): A1+16, ("B",1): A1+32, ("A",1): A1+48}
    for X, r0 in (("A", 48), ("B", 56)):
        d = accs[(X,0)]
        for i in range(8):
            a(f"v_lshlrev_b32 v{d+2*i}, 16, v{r0+i}")
            a(f"v_and_b32 v{d+2*i+1}, 0xffff0000, v{r0+i}")
        for i in range(16): a(f"v_mul_f32 v{d+i}, s53, v{d+i}")
        for i in range(16): a(f"v_mov_b32 v{accs[(X,1)]+i}, v{d+i}")
    a("s_mul_i32 s53, s4, 57344")
    a("s_lshl_b32 s52, s3, 10")
    a("s_add_u32 s53, s53, s52")
    a(f"s_add_u32 s53, s53, {HN}")
    add64(56, 8, "s53")
    a("s_mul_i32 s53, s3, 3*112*1024")
    a("s_lshl_b32 s61, s5, 14")
    a("s_add_u32 s53, s53, s61")
    a(f"s_add_u32 s53, s53, {W2F + 4096}")
    add64(58, 8, "s53")
    a("s_lshr_b32 s53, s3, 1")
    a("s_add_u32 s53, s53, 12")
    a("s_mul_i32 s53, s53, 112*1024")
    a("s_add_u32 s53, s53, s61")
    a(f"s_add_u32 s53, s53, {W2F + 4096}")
    add64(32, 8, "s53")
    a("s_mul_i32 s53, s4, 458752")
    a("s_mul_i32 s61, s5, 7168")
    a("s_add_u32 s53, s53, s61")
    a(f"s_add_u32 s53, s53, {PART}")
    add64(34, 8, "s53")
    a("s_mul_i32 s61, s3, 1536")
    add64(36, 34, "s61")
    add64(38, 36, 229376)
    a("s_and_b32 s61, s3, 1")
    a("s_mul_i32 s61, s61, 229376")
    a("s_lshr_b32 s53, s3, 1")
    a("s_lshl_b32 s53, s53, 9")
    a("s_add_u32 s61, s61, s53")
    a("s_add_u32 s61, s61, 6144")
    add64(40, 34, "s61")
    a("s_mul_i32 s61, s3, 114688")
    add64(34, 34, "s61")
    a("v_bfe_u32 v12, v0, 3, 2")
    a("v_mul_u32_u24 v12, 57344, v12")
    a("v_lshl_add_u32 v12, v2, 7, v12")
    a("v_lshl_add_u32 v12, v5, 4, v12")
    a("v_lshrrev_b32 v13, 2, v0")
    a("v_min_u32 v13, 13, v13")
    a("v_lshlrev_b32 v13, 7, v13")
    a("v_add_u32 v13, 3584, v13")
    a("v_add_u32 v14, 57344, v13")
    a("s_lshl_b32 s53, s3, 11")
    a(f"s_add_u32 s53, s53, {L_ACT}")
    a("v_add_u32 v8, s53, v1")
    a(f"v_add_u32 v9, {L_ACT}, v1")
    a("s_and_b32 s53, s3, 1")
    a("s_lshl_b32 s53, s53, 14")
    a("v_add_u32 v15, s53, v9")
    poll(0, 32, "KB_pl1")
    nstamp(a, "poll1")
    def dma_items(q):
        it = [("s", f"s_add_u32 m0, s52, {L_HN + 4096*q}")]
        if q: it = [("s", "s_add_u32 s56, s56, 4096"), ("s", "s_addc_u32 s57, s57, 0")] + it
        return it + [("s", "s_nop 0"), ("v", "global_load_lds_dwordx4 v1, s[56:57] sc1", f"hn{q}")]
    a("s_lshl_b32 s52, s3, 10")
    for q in range(7):
        for it in dma_items(q): emit_item(it)
    def w2reg(q):
        if q < 8: return ar(32+4*q, 4)
        if q < 36: return w1reg(28 + q - 8)
        return w1reg(q - 36)
    def w2_items(q):
        u, ks = divmod(q, 16)
        b = 58 if u < 3 else 32
        it = []
        if ks == 8: it += [("s", f"s_add_u32 s{b}, s{b}, 8192"), ("s", f"s_addc_u32 s{b+1}, s{b+1}, 0")]
        elif ks == 0 and 0 < u < 3: it += [("s", f"s_add_u32 s{b}, s{b}, {112*1024 - 8192}"), ("s", f"s_addc_u32 s{b+1}, s{b+1}, 0")]
        it.append(("v", f"global_load_dwordx4 {w2reg(q)}, v1, s[{b}:{b+1}] offset:{1024*(ks%8) - 4096}", f"w2_{q}"))
        return it
    NM = 224
    pre = {i: [] for i in range(NM + 1)}
    post = {i: [] for i in range(NM)}
    mf = []
    hold = lambda ks: vr(HOLD+4*ks, 4)
    for X, tt in (("A",0), ("B",0), ("B",1), ("A",1)):
        d = vr(accs[(X,tt)], 16)
        for ks in range(28): mf.append(mfma32(d, w1reg(ks + (28 if X == "B" else 0)), hold(ks), d))
    act0 = lambda ks: vr(HOLD+4*ks, 4)
    act1 = lambda ks: vr(HOLD+64+4*ks, 4) if ks < 12 else vr(A1+4*(ks-12), 4)
    ring = lambda ks: vr(A1+16+4*(ks & 7), 4)
    units = [(0, act0, 36, 0), (1, act0, 36, 1), (2, act0, 36, 2), (3, ring, 40, 0), (0, act1, 38, 0), (1, act1, 38, 1), (2, act1, 38, 2)]
    for ui, (u, breg, sb_, no) in enumerate(units):
        d = vr(A2+16*(ui & 1), 16)
        for ks in range(16): mf.append(mfma32(d, w2reg(16*u+ks), breg(ks), "0" if ks == 0 else d))
    AHEAD = 4
    rd0 = lambda ks: ("d", f"ds_read_b128 {hold(ks)}, v1 offset:{L_HN + 1024*ks}", f"h0_{ks}")
    rd1 = lambda ks: ("d", f"ds_read_b128 {hold(ks)}, v1 offset:{L_HN + 28672 + 1024*ks}", f"h1_{ks}")
    pre[0] += [("wv", "hn2"), ("s", "s_barrier")] + [rd0(ks) for ks in range(AHEAD)]
    for ks in range(28):
        if ks + AHEAD == 12: post[ks] += [("wv", "hn6"), ("s", "s_barrier")]
        if ks + AHEAD < 28: post[ks].append(rd0(ks + AHEAD))
        pre[ks].append(("wl", f"h0_{ks}"))
    for q in range(7, 14): post[2*(q-7)] += dma_items(q)
    pre[0].append(("wv", "w1_27"))
    for i in range(NW1B, 56): post[14 + 2*(i - NW1B)] += w1_items(i)
    pre[28] += [("wv", "hn13"), ("s", "s_barrier")]
    for ks in range(28):
        pre[28+ks].append(("wv", f"w1_{28+ks}"))
        post[28+ks].append(rd1(ks))
    for q in range(8): post[46 + q] += w2_items(q)
    if OPT.get('touch', 1):
        t0_, dt_ = OPT.get('t0', 47), OPT.get('dt', 6)
        for k in range(8):
            post[t0_ + dt_*k].append(("v", f"global_load_dword v4, v{13 + (k >> 2)}, s[34:35] offset:{1792*(k & 3) - 3584} sc1", "touch"))
    for ks in range(0, 28, 4): pre[56+ks].append(("wl", f"h1_{min(ks+3, 27)}"))
    for q in range(8, 64): post[56 + 2*(q-8)] += w2_items(q)
    for q in range(64): pre[112+q].append(("wv", f"w2_{q}"))
    fill = []
    def mish_items(X, tt, start, idx):
        x0 = accs[(X,tt)]; pk = x0
        L = []
        for g in range(4):
            t = T0 + 4*(g & 1); x = x0 + 4*g
            L += [f"v_exp_f32 v{t+i}, v{x+i}" for i in range(4)]
            L += [f"v_add_f32 v{t+i}, 1.0, v{t+i}" for i in range(4)]
            L += [f"v_fma_f32 v{t+i}, v{t+i}, v{t+i}, 1.0" for i in range(4)]
            L += [f"v_rcp_f32 v{t+i}, v{t+i}" for i in range(4)]
            L += [f"v_mul_f32 v{t+i}, v{t+i}, v{x+i}" for i in range(4)]
            L += [f"v_fmac_f32 v{x+i}, -2.0, v{t+i}" for i in range(4)]
            L += [f"v_cvt_pk_bf16_f32 v{pk+2*g+i}, v{x+2*i}, v{x+2*i+1}" for i in range(2)]
        it = [("s", x, start) for x in L]
        off = tt*16384 + (8192 if X == "B" else 0)
        it += [("d", f"ds_write_b128 v8, {vr(pk+4*hf,4)} offset:{off + 1024*hf}", start) for hf in range(2)]
        return it
    fill += mish_items("A", 0, 31, 0) + mish_items("B", 0, 59, 1)
    fill += [("bar", "b1", 0)]
    fill += mish_items("B", 1, 87, 2) + mish_items("A", 1, 115, 3)
    fill += [("bar", "b2", 0)]
    rda = lambda reg, addr, tt, ks, tag: ("d", f"ds_read_b128 {reg}, {addr} offset:{16384*tt + 1024*ks}", tag)
    need_bar = {}
    for ks in range(16):
        post[101 + ks].append(rda(act0(ks), "v9", 0, ks, f"a0_{ks}"))
        pre[112+ks].append(("wl", f"a0_{ks}"))
    need_bar[101] = "b1"
    for ks in range(16):
        post[155 + ks].append(rda(ring(ks), "v15", 0, ks, f"am_{ks}"))
        pre[160+ks].append(("wl", f"am_{ks}"))
        post[161 + ks].append(rda(act1(ks), "v9", 1, ks, f"a1_{ks}"))
        pre[176+ks].append(("wl", f"a1_{ks}"))
    need_bar[155] = "b2"
    outq = []
    for ui, (u, breg, sb_, no) in enumerate(units):
        d = A2 + 16*(ui & 1); pk = d
        L = []
        for hf in range(2):
            p4 = pk + 4*hf
            L += [("s", f"v_cvt_pk_bf16_f32 v{p4+i}, v{d+8*hf+2*i}, v{d+8*hf+2*i+1}") for i in range(4)]
            L += [("v", f"global_store_dwordx4 v12, {vr(p4,4)}, s[{sb_}:{sb_+1}] offset:{512*no + 256*hf}{SM('pm')}", "pst")]
        outq.append((112 + 16*ui + 18, L))
    done_bar = set()
    fq = list(fill); cur = [0]
    def emit_fill(it):
        if it[0] == "bar":
            a("s_waitcnt lgkmcnt(0)"); lg.clear()
            a("s_barrier"); done_bar.add(it[1]); print("note: barrier", it[1], "after MFMA", cur[0])
            return 8
        if it[0] == "d": D(it[1])
        else: a(it[1])
        return cost(it[1])
    credit = 0.0
    for i in range(NM):
        cur[0] = i
        assert not outq or i < outq[0][0] + 12, i
        for it in pre[i]: emit_item(it)
        a(mf[i])
        nstamp(a, f"m{i}")
        credit = max(min(credit, 0), -8) + 24
        if i in need_bar:
            c0 = credit
            while need_bar[i] not in done_bar: credit -= emit_fill(fq.pop(0))
            if c0 != credit: print(f"note: {c0 - credit:.0f} cycles of activation work flushed before MFMA {i}")
        for k, it in enumerate(post[i]):
            emit_item(it)
            credit -= (4 if it[0] in "vd" else 0) if k == 0 else (10 if it[0] in "vd" else 4)
        while outq and outq[0][0] <= i and credit > 0:
            L = outq[0][1]
            it = L.pop(0); emit_item(it); credit -= cost(it[1])
            if not L: outq.pop(0)
        while fq and credit > 0 and (fq[0][0] == "bar" or fq[0][2] <= i):
            credit -= emit_fill(fq.pop(0))
    assert not fq, len(fq)
    a("s_nop 7")
    a("s_nop 3")
    for _, L in outq:
        for it in L: emit_item(it)
    nstamp(a, "g2end")
    signal(128, "KB_sg2")
    nstamp(a, "sig2")
    a.label("KB_fin")
    R, SUM, HF = 144, 80, 96
    a("s_mul_i32 s53, s4, 458752")
    a("s_mul_i32 s52, s5, 57344")
    a("s_add_u32 s53, s53, s52")
    a("s_mul_i32 s52, s3, 1792")
    a("s_add_u32 s53, s53, s52")
    a(f"s_add_u32 s53, s53, {PART}")
    add64(56, 8, "s53")
    for i in range(16): a(f"v_mov_b32 v{SUM+i}, 0")
    for i in range(8):
        a(f"v_lshlrev_b32 v{HF+2*i}, 16, v{H8+i}")
        a(f"v_and_b32 v{HF+2*i+1}, 0xffff0000, v{H8+i}")
    a("v_mul_u32_u24 v12, 896, v5")
    a("v_lshl_add_u32 v12, v6, 5, v12")
    a("v_lshl_add_u32 v12, v7, 4, v12")
    a("s_mul_i32 s60, s6, 8*896")
    a("s_mul_i32 s61, s3, 224")
    a("s_add_u32 s60, s60, s61")
    a("s_mov_b32 s62, 0x00003f80")
    a("s_mov_b32 s63, 0x3f800000")
    a(f"s_mov_b32 s61, {hexf(LN2F)}")
    poll(128, 28, "KB_pl2")
    nstamp(a, "poll2")
    vm.clear(); vm.issue("older")
    for p in range(7):
        if p: add64(56, 56, 7168)
        V(f"global_load_dwordx4 {vr(R+8*p,4)}, v1, s[56:57] sc1", f"p{p}")
        V(f"global_load_dwordx4 {vr(R+8*p+4,4)}, v1, s[56:57] offset:1024 sc1", f"p{p}")
    for p in range(7):
        WV(f"p{p}")
        for i in range(8):
            a(f"v_dot2c_f32_bf16 v{SUM+2*i}, s62, v{R+8*p+i}")
            a(f"v_dot2c_f32_bf16 v{SUM+2*i+1}, s63, v{R+8*p+i}")
    a("s_nop 2")
    for i in range(16): a(f"v_fmac_f32 v{HF+i}, s61, v{SUM+i}")
    for i in range(8): a(f"v_cvt_pk_bf16_f32 v{32+i}, v{HF+2*i}, v{HF+2*i+1}")
    for b in (32, 36):
        a(f"v_mov_b32 v40, v{b+2}")
        a(f"v_mov_b32 v41, v{b+3}")
        a("s_nop 0")
        a(f"v_mov_b32_dpp v{b+2}, v{b} row_ror:8 row_mask:0xf bank_mask:0x3")
        a(f"v_mov_b32_dpp v{b+3}, v{b+1} row_ror:8 row_mask:0xf bank_mask:0x3")
        a(f"v_mov_b32_dpp v{b}, v40 row_ror:8 row_mask:0xf bank_mask:0xc")
        a(f"v_mov_b32_dpp v{b+1}, v41 row_ror:8 row_mask:0xf bank_mask:0xc")
    a(f"buffer_store_dwordx4 v[32:35], v12, s[24:27], s60 offen{SM('om')}")
    a("s_mov_b32 exec_hi, 0xffff")
    a(f"buffer_store_dwordx4 v[36:39], v12, s[24:27], s60 offen offset:128{SM('om')}")
    fin(a, 1, 8)
    a.label("KB_end")
    a("s_endpgm")

    a.label("KB_xcc")
    a("s_mov_b32 s52, 0")
    a("v_and_b32 v10, 7, v0")
    a("v_lshlrev_b32 v10, 2, v10")
    a.label("KB_xcc_loop")
    a("v_cmp_eq_u32 vcc, 0, v30")
    a("s_cbranch_vccz KB_xcc_known")
    a("global_load_dword v30, v10, s[62:63] sc1")
    a("s_add_u32 s52, s52, 1")
    a("s_waitcnt vmcnt(0)")
    a(f"s_cmp_lt_u32 s52, {SPIN_LIMIT}")
    a("s_cbranch_scc1 KB_xcc_loop")
    a.label("KB_xcc_known")
    a("v_cmp_ne_u32 vcc, s69, v30")
    if not force_fence: a("s_cbranch_vccz KB_xcc_done")
    a("s_mov_b32 s68, 0")
    a("s_branch KB_xcc_done")
    for lab, off in (("KB_sg1", 0), ("KB_sg2", 128)):
        a.label(f"{lab}_fence")
        a("buffer_wbl2 sc1")
        a("s_waitcnt vmcnt(0)")
        a("s_mov_b64 exec, 1")
        a(f"global_atomic_add v10, v11, s[66:67] offset:{off} sc1")
        a("s_mov_b64 exec, -1")
        a(f"s_branch {lab}_done")
    for lab, off, target in (("KB_pl1", 0, 32), ("KB_pl2", 128, 28)):
        a.label(f"{lab}_fence")
        a("s_mov_b32 s52, 0")
        a.label(f"{lab}_floop")
        a(f"global_load_dword v31, v10, s[66:67] offset:{off} sc1")
        a("s_add_u32 s52, s52, 1")
        a("s_waitcnt vmcnt(0)")
        a("v_readfirstlane_b32 s53, v31")
        a("s_nop 0")
        a(f"s_cmp_ge_u32 s53, {target}")
        a(f"s_cbranch_scc1 {lab}_fdone")
        a(f"s_cmp_lt_u32 s52, {SPIN_LIMIT}")
        a(f"s_cbranch_scc1 {lab}_floop")
        a.label(f"{lab}_fdone")
        a("buffer_inv sc1")
        a("s_waitcnt vmcnt(0) lgkmcnt(0)")
        a(f"s_branch {lab}_done")

    a.label("KB_slow")
    vm.q = list(vm_at_slow)
    a("s_waitcnt vmcnt(0)"); vm.clear()
    for k, it in enumerate(wo_items(NPRE, 98) + late):
        emit_item(it)
        if it[0] == "s" and "m0" in it[1]: a("s_nop 0")
        if len(vm.q) >= 32: a("s_waitcnt vmcnt(0)"); vm.clear()
    MX = P + 8
    for t in range(4): a(f"v_mov_b32 v{MX+t}, 0xff800000")
    for i in range(64): a(f"v_accvgpr_write_b32 a{i}, 0")
    a("s_sub_u32 s52, s52, 4096")
    a("s_mov_b32 s61, 0")
    a.label("KB_s1")
    a("s_add_u32 s53, s52, s61")
    for i in range(2): a(f"buffer_load_dwordx4 {vr(KVR+4*i,4)}, v1, s[16:19], s53 offen offset:{1024*i}")
    a("s_waitcnt vmcnt(0)")
    for t in range(4):
        a(mfma32(vr(S,16), vr(KVR,4), vr(Q+8*t,4), "0"))
        a(mfma32(vr(S,16), vr(KVR+4,4), vr(Q+8*t+4,4), vr(S,16)))
        a("s_nop 7")
        a("s_nop 3")
        for i in range(8): a(f"v_max3_f32 v{MX+t}, v{S+2*i}, v{S+2*i+1}, v{MX+t}")
    a("s_add_u32 s61, s61, 4096")
    a("s_cmp_lt_u32 s61, 0x10000")
    a("s_cbranch_scc1 KB_s1")
    for t in range(4):
        half_sum(a, MX+t, 12, "v_max_f32")
        a(f"s_add_u32 s53, s3, {t+1}")
        a("s_and_b32 s53, s53, 3")
        a("s_lshl_b32 s53, s53, 10")
        a("s_lshl_b32 s61, s3, 8")
        a("s_add_u32 s53, s53, s61")
        a("v_add_u32 v12, s53, v3")
        a(f"ds_write_b32 v12, v{MX+t}")
    a("s_waitcnt lgkmcnt(0)")
    a("s_barrier")
    for t in range(4):
        a(f"s_add_u32 s53, s3, {t+1}")
        a("s_and_b32 s53, s53, 3")
        a("s_lshl_b32 s53, s53, 10")
        a("v_add_u32 v12, s53, v3")
        for w in range(4): a(f"ds_read_b32 v{S+w}, v12 offset:{256*w}")
        a("s_waitcnt lgkmcnt(0)")
        a(f"v_max3_f32 v{MX+t}, v{S}, v{S+1}, v{S+2}")
        a(f"v_max_f32 v{MX+t}, v{MX+t}, v{S+3}")
    a("s_barrier")
    a("s_mov_b32 s61, 0")
    a.label("KB_s2")
    a("s_add_u32 s53, s52, s61")
    for i in range(4): a(f"buffer_load_dwordx4 {vr(KVR+4*i,4)}, v1, s[16:19], s53 offen offset:{1024*i}")
    a("s_waitcnt vmcnt(0)")
    for t in range(4):
        a(mfma32(vr(S,16), vr(KVR,4), vr(Q+8*t,4), "0"))
        a(mfma32(vr(S,16), vr(KVR+4,4), vr(Q+8*t+4,4), vr(S,16)))
        a("s_nop 7")
        a("s_nop 3")
        for i in range(16): a(f"v_sub_f32 v{S+i}, v{S+i}, v{MX+t}")
        for i in range(16): a(f"v_exp_f32 v{S+i}, v{S+i}")
        a("s_nop 0")
        for i in range(8): a(f"v_cvt_pk_bf16_f32 v{P+i}, v{S+2*i}, v{S+2*i+1}")
        a("s_nop 1")
        a(mfma32(ar(16*t,16), vr(KVR+8,4), vr(P,4), ar(16*t,16)))
        a(mfma32(ar(16*t,16), vr(KVR+12,4), vr(P+4,4), ar(16*t,16)))
    a("s_add_u32 s61, s61, 4096")
    a("s_cmp_lt_u32 s61, 0x10000")
    a("s_cbranch_scc1 KB_s2")
    a("s_nop 7")
    a("s_nop 3")
    for t in range(3):
        for q in range(4): a(redw(t, q)[1])
    a("s_branch KB_red")
    a.label("KB_code_end")
    return kd(n, 512, 96, 256), f"; @launch kernel={n} grid=(256,1,1) block=(256,1,1) lds={KB_LDS}"


def build(force_slow=False, extra=0, force_fence=False):
    a = Asm()
    parts = [gen_k1(a), gen_kb(a, force_slow, force_fence)]
    launches = [p[1] for p in parts]
    kds = [p[0] for p in parts]
    if extra:
        header(a, "nop_kernel")
        a("s_endpgm")
        kds.append(kd("nop_kernel", 8, 16, 8))
        launches += ["; @launch kernel=nop_kernel grid=(256,1,1) block=(64,1,1) lds=0"] * extra
    out = "\n".join(launches) + "\n"
    out += '.amdgcn_target "amdgcn-amd-amdhsa--gfx950"\n.text\n'
    out += a.text()
    out += '.section .rodata,"a"\n' + "".join(kds)
    return out

if __name__ == "__main__":
    import argparse
    ap = argparse.ArgumentParser()
    ap.add_argument("-o", default="v2.s")
    ap.add_argument("--slow", action="store_true")
    ap.add_argument("--fence", action="store_true")
    ap.add_argument("--opt", default="")
    ap.add_argument("--extra", type=int, default=0)
    ap.add_argument("--stamps", default="", help="up to six stamp names for the fused kernel")
    args = ap.parse_args()
    for kv in args.opt.split(","):
        if kv:
            k_, _, v_ = kv.partition("=")
            OPT[k_] = int(v_) if v_ else 1
    STAMPS = bool(args.stamps)
    STAMP_SET = args.stamps.split(",")
    txt = build(args.slow, args.extra, args.fence)
    open(args.o, "w").write(txt)
    import hazard
    print("hazards:", hazard.check(txt), "waits:", 0 if STAMPS else hazard.waitcheck(txt))
```

```python
import math, struct, sys

NAME = "sequential_preLN__grouped_kv_mqa__dense_activation_mish__prompt"

QF   = 0x000000
KV   = 0x200000
KMAX = 0x240000
SYNC = 0x248000
WOF  = 0x250000
W1F  = 0x300000
W2F  = 0x500000
HN   = 0x700000
PART = 0xB00000
WS_SIZE = PART + 32*8*8*7168

X_BYTES = 2048*896
WQ_BYTES = 448*896
WK_BYTES = 448*56
W1_BYTES = 448*3584
W2_BYTES = 1792*896

def f2u(f): return struct.unpack("<I", struct.pack("<f", f))[0]
def hexf(f): return "0x%08x" % f2u(f)
LOG2E = math.log2(math.e)
QSCALE = LOG2E / math.sqrt(28.0)
ONES_BF = "0x3f803f80"

class Asm:
    def __init__(self):
        self.L = []
    def __call__(self, s):
        for ln in s.split("\n"):
            ln = ln.strip()
            if ln: self.L.append("    " + ln)
    def label(self, s): self.L.append(s + ":")
    def c(self, s): self.L.append("    ; " + s)
    def text(self): return "\n".join(self.L) + "\n"

def vr(b, n=1): return f"v{b}" if n == 1 else f"v[{b}:{b+n-1}]"
def ar(b, n=1): return f"a{b}" if n == 1 else f"a[{b}:{b+n-1}]"
def sr(b, n=1): return f"s{b}" if n == 1 else f"s[{b}:{b+n-1}]"

def srd(a, d, lo, hi, nbytes):
    a(f"s_mov_b32 s{d}, s{lo}")
    a(f"s_mov_b32 s{d+1}, s{hi}")
    a(f"s_mov_b32 s{d+2}, {nbytes if isinstance(nbytes, str) else hex(nbytes)}")
    a(f"s_mov_b32 s{d+3}, 0x20000")

def header(a, name):
    a.L.append(f".globl {name}")
    a.L.append(".p2align 8")
    a.L.append(f".type {name},@function")
    a.label(name)

def kd(name, vgpr, sgpr, accum):
    return f""".p2align 6
.amdhsa_kernel {name}
  .amdhsa_next_free_vgpr {vgpr}
  .amdhsa_next_free_sgpr {96 if STAMPS else sgpr}
  .amdhsa_accum_offset {accum}
  .amdhsa_group_segment_fixed_size 0
  .amdhsa_kernarg_size 96
  .amdhsa_user_sgpr_count 2
  .amdhsa_user_sgpr_kernarg_segment_ptr 1
  .amdhsa_system_sgpr_workgroup_id_x 1
.end_amdhsa_kernel
"""

STAMPS = False
STAMP_BASE = 0x8000000
def stamp(a, i):
    if STAMPS: a(f"s_memrealtime s[{72+2*i}:{73+2*i}]")
STAMP_SET = []
OPT = {}
def SM(k):
    return {0: '', 1: ' sc1', 2: ' sc0 sc1', 3: ' nt', 4: ' sc1 nt', 5: ' sc0 sc1 nt'}[int(OPT.get(k, {'pm': 1, 'k1m': 1}.get(k, 0)))]
def nstamp(a, name):
    if STAMPS and name in STAMP_SET:
        i = 1 + STAMP_SET.index(name)
        a(f"{'s_memtime' if OPT.get('cyc') else 's_memrealtime'} s[{72+2*i}:{73+2*i}]")
def stamp_init(a):
    if STAMPS:
        for i in range(8): a(f"s_mov_b32 s{72+2*i}, 0")
        stamp(a, 0)
        if OPT.get("dbg"): a("s_load_dwordx2 s[92:93], s[0:1], 80")
def fin(a, kidx, wslo):
    if STAMPS and OPT.get("dbg"):
        stamp(a, 7)
        a("s_mov_b64 exec, 0xff")
        a("s_waitcnt lgkmcnt(0)")
        a("s_not_b32 s72, s72")
        a("v_mbcnt_lo_u32_b32 v1, -1, 0")
        for i in range(8):
            a(f"v_mov_b32 v2, s{72+2*i}")
            a(f"v_cmp_eq_u32 vcc, {i}, v1")
            a("v_cndmask_b32 v0, v0, v2, vcc")
        a("v_lshlrev_b32 v1, 2, v1")
        a(f"s_add_u32 s92, s92, {32 if kidx else 512}")
        a("s_addc_u32 s93, s93, 0")
        a("s_and_b32 s90, s2, 31")
        a("s_lshl_b32 s91, s3, 5")
        a("s_or_b32 s90, s90, s91")
        a("s_cmp_eq_u32 s90, 5")
        a("s_cselect_b64 exec, exec, 0")
        a("global_atomic_umax v1, v0, s[92:93]")
    elif STAMPS:
        stamp(a, 7)
        a("s_mov_b64 exec, 1")
        a("s_waitcnt lgkmcnt(0)")
        for i in range(8): a(f"v_mov_b32 v{i}, s{72+2*i}")
        srd(a, 68, wslo, wslo+1, 0x10000000)
        a("s_lshl_b32 s90, s2, 3")
        a("s_add_u32 s90, s90, s3")
        a(f"s_add_u32 s90, s90, {kidx*4096}")
        a("s_lshl_b32 s90, s90, 5")
        a(f"s_add_u32 s90, s90, {STAMP_BASE}")
        a("v_mov_b32 v8, 0")
        a("buffer_store_dwordx4 v[0:3], v8, s[68:71], s90 offen")
        a("buffer_store_dwordx4 v[4:7], v8, s[68:71], s90 offen offset:16")
        if kidx == 1 and "pa" in OPT:
            lab = f"PRB{len(a.L)}"
            a("s_lshl_b32 s91, s3, 8")
            a("s_or_b32 s91, s91, s2")
            a("s_cmp_lg_u32 s91, 5")
            a(f"s_cbranch_scc1 {lab}_e")
            a(f"s_add_u32 s68, s68, {STAMP_BASE + 5*8*32}")
            a("s_addc_u32 s69, s69, 0")
            a("s_load_dwordx8 s[40:47], s[68:69], 0")
            a("s_waitcnt lgkmcnt(0)")
            reg = lambda i: f"s{40+i}" if i < 8 else f"s{72+2*(i-8)}"
            a(f"s_sub_u32 s91, {reg(int(OPT['pb']))}, {reg(int(OPT['pa']))}")
            a("s_lshl_b32 s91, s91, 3")
            a("s_min_u32 s91, s91, 40000")
            a("s_add_u32 s91, s91, s86")
            a.label(lab)
            a("s_memrealtime s[48:49]")
            a("s_waitcnt lgkmcnt(0)")
            a("s_sub_u32 s50, s48, s91")
            a("s_cmp_lt_i32 s50, 0")
            a(f"s_cbranch_scc1 {lab}")
            a.label(lab + "_e")
    a("s_endpgm")

def mfma32(d, A, B, C): return f"v_mfma_f32_32x32x16_bf16 {d}, {A}, {B}, {C}"
def mfma16(d, A, B, C): return f"v_mfma_f32_16x16x32_bf16 {d}, {A}, {B}, {C}"

def half_sum(a, x, t, op="v_add_f32"):
    a(f"v_mov_b32 v{t}, v{x}")
    a("s_nop 1")
    a(f"v_permlane32_swap_b32 v{t}, v{x}")
    a("s_nop 1")
    a(f"{op} v{x}, v{x}, v{t}")

K1_X, K1_W0, K1_W4, K1_ST, K1_CS = 0, 57344, 114688, 143360, 143872
K1_LDS = 144640

def gen_k1(a):
    n = "k1_kernel"
    header(a, n)
    a("s_cmp_ge_u32 s2, 256")
    a("s_cbranch_scc1 K1_end")
    stamp_init(a)
    a("s_load_dwordx4 s[24:27], s[0:1], 0")
    a("s_load_dwordx4 s[28:31], s[0:1], 16")
    a("s_load_dwordx2 s[32:33], s[0:1], 32")
    a("s_load_dwordx2 s[34:35], s[0:1], 48")
    a("s_load_dwordx2 s[36:37], s[0:1], 64")
    a("s_load_dwordx2 s[38:39], s[0:1], 88")
    a("v_lshrrev_b32 v1, 6, v0")
    a("v_and_b32 v0, 63, v0")
    a("v_readfirstlane_b32 s3, v1")
    a("s_and_b32 s4, s2, 7")
    a("s_lshl_b32 s4, s4, 2")
    a("s_bfe_u32 s6, s2, 0x20003")
    a("s_add_u32 s4, s4, s6")
    a("s_lshr_b32 s5, s2, 5")
    a("v_lshrrev_b32 v2, 5, v0")
    a("v_bfe_u32 v3, v0, 4, 1")
    a("v_bfe_u32 v4, v0, 2, 2")
    a("v_and_b32 v5, 3, v0")
    a("v_lshrrev_b32 v6, 2, v0")
    a("v_lshlrev_b32 v7, 4, v5")
    a("s_cmp_eq_u32 s3, 4")
    a("s_cbranch_scc1 K1_w4")
    a("v_lshrrev_b32 v8, 3, v0")
    a("v_and_b32 v9, 7, v0")
    a("v_lshrrev_b32 v10, 1, v8")
    a("v_xor_b32 v9, v9, v10")
    a("s_and_b32 s6, s3, 1")
    a("s_lshl_b32 s7, s6, 2")
    a("v_xor_b32 v9, s7, v9")
    a("v_mul_u32_u24 v8, 896, v8")
    a("v_lshl_add_u32 v8, v9, 4, v8")
    a("v_mul_u32_u24 v9, 896, v6")
    a("v_add_u32 v9, v9, v7")
    a("s_lshl_b32 s40, s4, 6")
    a("s_lshl_b32 s41, s3, 4")
    a("s_add_u32 s40, s40, s41")
    a("s_mul_i32 s40, s40, 896")
    a("s_mul_i32 s41, s3, 14336")
    a("s_lshl_b32 s42, s5, 1")
    a("s_add_u32 s42, s42, s6")
    a("s_mul_i32 s43, s42, 56")
    a("s_lshr_b32 s44, s3, 1")
    a("s_mul_i32 s45, s44, 224*896")
    a("s_add_u32 s43, s43, s45")
    a("s_mul_i32 s45, s6, 28672")
    a("s_mul_i32 s46, s44, 14336")
    a("s_add_u32 s45, s45, s46")
    a(f"s_add_u32 s45, s45, {K1_W0}")
    a("s_waitcnt lgkmcnt(0)")
    srd(a, 8, 24, 25, X_BYTES)
    srd(a, 12, 26, 27, WQ_BYTES)
    srd(a, 16, 38, 39, WS_SIZE)
    a("s_cmp_ge_u32 s2, 3")
    a("s_cbranch_scc1 K1_noclr")
    for i in range(4): a(f"v_mov_b32 v{12+i}, 0")
    a("s_lshl_b32 s46, s2, 2")
    a("s_add_u32 s46, s46, s3")
    a("s_lshl_b32 s46, s46, 10")
    a(f"s_add_u32 s46, s46, {SYNC}")
    a("v_lshlrev_b32 v11, 4, v0")
    a("buffer_store_dwordx4 v[12:15], v11, s[16:19], s46 offen")
    a.label("K1_noclr")
    for j in range(14):
        a("s_mov_b32 m0, s41")
        a("s_add_u32 s41, s41, 1024")
        a("buffer_load_dwordx4 v8, s[8:11], s40 offen lds")
        a(f"s_add_u32 s40, s40, {128 if j != 6 else 8*896 - 6*128}")
        a("s_mov_b32 m0, s45")
        a("s_add_u32 s45, s45, 1024")
        a("buffer_load_dwordx4 v9, s[12:15], s43 offen lds")
        a(f"s_add_u32 s43, s43, {16*896}")
    a("v_lshlrev_b32 v10, 3, v2")
    a("v_add_u32 v10, v10, v4")
    a("v_lshlrev_b32 v10, 6, v10")
    a("v_lshl_add_u32 v10, v3, 5, v10")
    a("v_lshl_add_u32 v10, v5, 3, v10")
    a("s_mul_i32 s46, s6, 28672")
    a(f"s_add_u32 s46, s46, {K1_W0}")
    a("v_add_u32 v10, s46, v10")
    a("s_mov_b32 s47, 0")
    a("s_mul_i32 s46, s3, 14336")
    a("v_mul_u32_u24 v11, 7168, v2")
    a("v_and_b32 v12, 7, v6")
    a("v_lshl_add_u32 v11, v12, 7, v11")
    a("v_lshl_add_u32 v11, v5, 5, v11")
    a("v_add_u32 v11, s46, v11")
    stamp(a, 1)
    a("s_waitcnt vmcnt(0)")
    stamp(a, 2)
    a("s_barrier")
    stamp(a, 3)
    for kg in range(7):
        a(f"ds_read_b128 {vr(32+8*kg,4)}, v11 offset:{kg*1024}")
        a(f"ds_read_b128 {vr(36+8*kg,4)}, v11 offset:{kg*1024+16}")
    for i in range(4): a(f"v_mov_b32 v{20+i}, 0")
    a(f"s_mov_b32 s48, {ONES_BF}")
    for q in range(14):
        a(f"s_waitcnt lgkmcnt({13-q})")
        for i in range(4):
            r = 32 + 4*q + i
            a(f"v_dot2c_f32_bf16 v{20+(i&1)}, s48, v{r}")
            a(f"v_dot2c_f32_bf16 v{22+(i&1)}, v{r}, v{r}")
    a("s_nop 2")
    a("v_add_f32 v20, v20, v21")
    a("v_add_f32 v22, v22, v23")
    a("s_nop 1")
    a("v_add_f32_dpp v20, v20, v20 quad_perm:[1,0,3,2] row_mask:0xf bank_mask:0xf")
    a("v_add_f32_dpp v22, v22, v22 quad_perm:[1,0,3,2] row_mask:0xf bank_mask:0xf")
    a("s_nop 1")
    a("v_add_f32_dpp v20, v20, v20 quad_perm:[2,3,0,1] row_mask:0xf bank_mask:0xf")
    a("v_add_f32_dpp v22, v22, v22 quad_perm:[2,3,0,1] row_mask:0xf bank_mask:0xf")
    a(f"v_mul_f32 v20, {hexf(1.0/448)}, v20")
    a(f"v_mul_f32 v22, {hexf(1.0/448)}, v22")
    a("v_fma_f32 v22, -v20, v20, v22")
    a("v_max_f32 v22, 0, v22")
    a(f"v_add_f32 v22, {hexf(1e-5)}, v22")
    a("v_rsq_f32 v22, v22")
    a("s_lshl_b32 s46, s3, 6")
    a(f"s_add_u32 s46, s46, {K1_ST}")
    a("v_mul_f32 v20, -v20, v22")
    a("v_lshl_add_u32 v12, v6, 2, s46")
    a("ds_write_b32 v12, v22")
    a("ds_write_b32 v12, v20 offset:256")
    a("s_branch K1_proj")

    a.label("K1_w4")
    a("s_waitcnt lgkmcnt(0)")
    srd(a, 16, 38, 39, WS_SIZE)
    a("s_cmp_ge_u32 s5, 4")
    a("s_cbranch_scc1 K1_prep")
    a("s_lshr_b32 s47, s5, 1")
    a("s_cmp_eq_u32 s47, 0")
    a("s_cselect_b32 s12, s28, s30")
    a("s_cselect_b32 s13, s29, s31")
    a(f"s_mov_b32 s14, {WK_BYTES}")
    a("s_mov_b32 s15, 0x20000")
    a("s_add_u32 s47, s47, 1")
    a("s_and_b32 s44, s5, 1")
    a("v_mul_u32_u24 v9, 56, v6")
    a("v_add_u32 v9, v9, v7")
    a("s_mov_b32 s43, 0")
    a(f"s_mov_b32 s45, {K1_W4}")
    for j in range(28):
        a("s_mov_b32 m0, s45")
        a("s_add_u32 s45, s45, 1024")
        a("buffer_load_dwordx4 v9, s[12:15], s43 offen lds")
        a(f"s_add_u32 s43, s43, {16*56}")
    a("v_lshlrev_b32 v10, 3, v2")
    a("v_add_u32 v10, v10, v4")
    a("v_lshlrev_b32 v10, 6, v10")
    a("v_lshl_add_u32 v10, v3, 5, v10")
    a("v_lshl_add_u32 v10, v5, 3, v10")
    a(f"v_add_u32 v10, {K1_W4}, v10")
    stamp(a, 1)
    a("s_waitcnt vmcnt(0)")
    stamp(a, 2)
    a("s_barrier")
    stamp(a, 3)

    a.label("K1_proj")
    stamp(a, 4)
    a("v_and_b32 v13, 31, v0")
    a("v_bfe_u32 v14, v13, 1, 2")
    a("v_lshrrev_b32 v15, 2, v13")
    a("v_and_b32 v15, 4, v15")
    a("v_or_b32 v14, v14, v15")
    a("v_xor_b32 v14, v14, v2")
    a("v_lshrrev_b32 v15, 3, v13")
    a("v_mul_u32_u24 v15, 7168, v15")
    a("v_and_b32 v16, 7, v13")
    a("v_lshl_add_u32 v15, v16, 7, v15")
    a("s_mul_i32 s46, s44, 28672")
    a("v_add_u32 v15, s46, v15")
    for j in range(4):
        a(f"v_xor_b32 v16, {2*j}, v14")
        a(f"v_lshl_add_u32 v{24+j}, v16, 4, v15")
    a(f"s_mov_b32 s48, {ONES_BF}")
    a("v_mov_b32 v28, 0")
    a("v_mov_b32 v29, 0")
    a("s_cmp_eq_u32 s47, 2")
    a("s_cbranch_scc1 K1_projv")
    RING = 4
    def rd(ks):
        b = 32 + 8*(ks % RING)
        a(f"ds_read_b64_tr_b16 {vr(b,2)}, v10 offset:{ks*1024}")
        a(f"ds_read_b64_tr_b16 {vr(b+2,2)}, v10 offset:{ks*1024+256}")
        a(f"ds_read_b128 {vr(b+4,4)}, v{24+(ks&3)} offset:{(ks>>2)*1024}")
    def loop(swap):
        for ks in range(RING-1): rd(ks)
        for ks in range(28):
            if ks + RING - 1 < 28: rd(ks + RING - 1)
            out = min(RING - 1, 27 - ks) * 3
            a(f"s_waitcnt lgkmcnt({out})")
            b = 32 + 8*(ks % RING)
            W, X = vr(b,4), vr(b+4,4)
            C = "0" if ks == 0 else vr(64,16)
            a(mfma32(vr(64,16), X, W, C) if swap else mfma32(vr(64,16), W, X, C))
            for i in range(4): a(f"v_dot2c_f32_bf16 v{28+(i&1)}, s48, v{b+i}")
    loop(False)
    stamp(a, 5)
    a("s_nop 2")
    a("v_add_f32 v28, v28, v29")
    half_sum(a, 28, 29)
    a("s_lshl_b32 s46, s3, 7")
    a(f"s_add_u32 s46, s46, {K1_CS}")
    a("v_lshl_add_u32 v16, v13, 2, s46")
    a("ds_write_b32 v16, v28")
    a("v_lshl_add_u32 v16, v2, 4, s46")
    a("s_waitcnt lgkmcnt(0)")
    for i in range(4): a(f"ds_read_b128 {vr(32+4*i,4)}, v16 offset:{32*i}")
    a("s_barrier")
    a("s_lshl_b32 s46, s44, 7")
    a(f"s_add_u32 s46, s46, {K1_ST}")
    a("v_lshl_add_u32 v16, v13, 2, s46")
    a("ds_read_b32 v20, v16")
    a("ds_read_b32 v21, v16 offset:256")
    a("s_cmp_eq_u32 s47, 0")
    a(f"s_cselect_b32 s49, {hexf(QSCALE)}, 1.0")
    a("s_cselect_b32 s50, 0, 0x3f80")
    a("s_waitcnt lgkmcnt(0)")
    a("v_mul_f32 v20, s49, v20")
    a("v_mul_f32 v21, s49, v21")
    for i in range(16):
        a(f"v_mul_f32 v{64+i}, v{64+i}, v20")
        a(f"v_fmac_f32 v{64+i}, v{32+i}, v21")
    for i in range(8): a(f"v_cvt_pk_bf16_f32 v{48+i}, v{64+2*i}, v{65+2*i}")
    a("v_cmp_ne_u32 s[52:53], 0, v2")
    a("s_nop 1")
    a("v_cndmask_b32 v54, v54, 0, s[52:53]")
    a("v_cndmask_b32 v55, v55, 0, s[52:53]")
    a("s_cmp_eq_u32 s47, 0")
    a("s_cbranch_scc0 K1_epk")
    a("v_lshrrev_b32 v16, 3, v13")
    a("v_lshlrev_b32 v16, 13, v16")
    a("v_lshl_add_u32 v16, v2, 9, v16")
    a("v_and_b32 v17, 7, v13")
    a("v_lshl_add_u32 v16, v17, 4, v16")
    a("s_lshl_b32 s46, s4, 3")
    a("s_lshl_b32 s49, s44, 2")
    a("s_add_u32 s46, s46, s49")
    a("s_lshl_b32 s46, s46, 13")
    a("s_lshr_b32 s49, s42, 2")
    a("s_lshl_b32 s49, s49, 11")
    a("s_add_u32 s46, s46, s49")
    a("s_and_b32 s49, s42, 3")
    a("s_lshl_b32 s49, s49, 7")
    a("s_add_u32 s46, s46, s49")
    if QF: a(f"s_add_u32 s46, s46, {QF}")
    a(f"buffer_store_dwordx4 v[48:51], v16, s[16:19], s46 offen{SM('k1m')}")
    a(f"buffer_store_dwordx4 v[52:55], v16, s[16:19], s46 offen offset:1024{SM('k1m')}")
    fin(a, 0, 38)
    a.label("K1_epk")
    a("v_mov_b32 v20, 0")
    for i in range(8): a(f"v_dot2c_f32_bf16 v20, v{48+i}, v{48+i}")
    a("v_mov_b32 v22, s50")
    a("v_cndmask_b32 v54, v54, v22, s[52:53]")
    a("s_nop 1")
    half_sum(a, 20, 21)
    a("s_nop 1")
    for m in ("quad_perm:[1,0,3,2]", "quad_perm:[2,3,0,1]", "row_half_mirror", "row_mirror"):
        a(f"v_max_f32_dpp v20, v20, v20 {m} row_mask:0xf bank_mask:0xf")
        a("s_nop 1")
    a("v_mov_b32 v21, v20")
    a("s_nop 1")
    a("v_permlane16_swap_b32 v21, v20")
    a("s_nop 1")
    a("v_max_f32 v20, v20, v21")
    a("s_lshl_b32 s46, s4, 1")
    a("s_add_u32 s46, s46, s44")
    a("s_lshl_b32 s49, s46, 2")
    a(f"s_add_u32 s49, s49, {KMAX}")
    a("s_lshl_b32 s46, s46, 12")
    a(f"s_add_u32 s46, s46, {KV}")
    a("v_lshlrev_b32 v16, 4, v0")
    a("v_mov_b32 v17, 0")
    a(f"buffer_store_dwordx4 v[48:51], v16, s[16:19], s46 offen{SM('k1m')}")
    a(f"buffer_store_dwordx4 v[52:55], v16, s[16:19], s46 offen offset:1024{SM('k1m')}")
    a("s_mov_b64 exec, 1")
    a("buffer_store_dword v20, v17, s[16:19], s49 offen")
    fin(a, 0, 38)
    a.label("K1_projv")
    loop(True)
    stamp(a, 5)
    a("s_nop 2")
    a("v_add_f32 v28, v28, v29")
    half_sum(a, 28, 29)
    a("s_barrier")
    a("s_lshl_b32 s46, s44, 7")
    a(f"s_add_u32 s46, s46, {K1_ST}")
    a("v_lshl_add_u32 v16, v2, 4, s46")
    for i in range(4): a(f"ds_read_b128 {vr(32+4*i,4)}, v16 offset:{32*i}")
    for i in range(4): a(f"ds_read_b128 {vr(48+4*i,4)}, v16 offset:{256+32*i}")
    a("s_waitcnt lgkmcnt(0)")
    for i in range(16):
        a(f"v_mul_f32 v{64+i}, v{64+i}, v{32+i}")
        a(f"v_fmac_f32 v{64+i}, v{48+i}, v28")
    for i in range(8): a(f"v_cvt_pk_bf16_f32 v{48+i}, v{64+2*i}, v{65+2*i}")
    a("v_cmp_eq_u32 s[52:53], 28, v13")
    a(f"v_mov_b32 v21, {ONES_BF}")
    a("s_nop 0")
    a("v_cndmask_b32 v21, 0, v21, s[52:53]")
    a("v_cmp_lt_u32 s[52:53], 27, v13")
    a("s_nop 1")
    for i in range(8): a(f"v_cndmask_b32 v{48+i}, v{48+i}, v21, s[52:53]")
    a("s_lshl_b32 s46, s4, 1")
    a("s_add_u32 s46, s46, s44")
    a("s_lshl_b32 s46, s46, 12")
    a(f"s_add_u32 s46, s46, {KV}")
    a("v_lshlrev_b32 v16, 4, v0")
    a(f"buffer_store_dwordx4 v[48:51], v16, s[16:19], s46 offen offset:2048{SM('k1m')}")
    a(f"buffer_store_dwordx4 v[52:55], v16, s[16:19], s46 offen offset:3072{SM('k1m')}")
    fin(a, 0, 38)

    a.label("K1_prep")
    a("s_lshl_b32 s40, s4, 2")
    a("s_add_u32 s40, s40, s5")
    a("s_sub_u32 s40, s40, 4")
    a("s_cmp_ge_u32 s40, 126")
    a("s_cbranch_scc1 K1_end")
    a("v_lshlrev_b32 v10, 2, v2")
    a("v_add_u32 v10, v10, v4")
    a("v_lshlrev_b32 v10, 6, v10")
    a("v_lshl_add_u32 v10, v3, 5, v10")
    a("v_lshl_add_u32 v10, v5, 3, v10")
    a("s_mov_b32 s50, 512")
    a("s_mov_b32 s51, 1024")
    a("s_mov_b32 s52, 2048")
    a("s_mov_b32 s53, 1024")
    a("s_cmp_ge_u32 s40, 56")
    a("s_cbranch_scc1 K1_prep2")
    srd(a, 12, 34, 35, W1_BYTES)
    a("s_mov_b32 s41, 3584")
    a("s_lshl_b32 s43, s40, 6")
    a("s_mul_i32 s46, s40, 28672")
    a(f"s_add_u32 s46, s46, {W1F}")
    a("s_branch K1_prep4")
    a.label("K1_prep2")
    a("s_cmp_ge_u32 s40, 112")
    a("s_cbranch_scc1 K1_prep3")
    srd(a, 12, 36, 37, W2_BYTES)
    a("s_mov_b32 s41, 896")
    a("s_sub_u32 s40, s40, 56")
    a("s_lshr_b32 s6, s40, 2")
    a("s_and_b32 s7, s40, 3")
    a("s_mul_i32 s43, s7, 448*896")
    a("s_lshl_b32 s44, s6, 6")
    a("s_add_u32 s43, s43, s44")
    a("s_mul_i32 s46, s40, 28672")
    a(f"s_add_u32 s46, s46, {W2F}")
    a("s_branch K1_prep4")
    a.label("K1_prep3")
    srd(a, 12, 32, 33, WQ_BYTES)
    a("s_mov_b32 s41, 896")
    a("s_sub_u32 s40, s40, 112")
    a("s_lshl_b32 s43, s40, 6")
    a("s_lshl_b32 s6, s40, 1")
    for r in (46, 53):
        a("s_mul_i32 s7, s6, 37")
        a("s_lshr_b32 s7, s7, 8")
        a(f"s_mul_i32 s{r}, s7, {100352 - 7*1024}")
        a("s_lshl_b32 s7, s6, 10")
        a(f"s_add_u32 s{r}, s{r}, s7")
        a("s_add_u32 s6, s6, 1")
    a("s_sub_u32 s53, s53, s46")
    a(f"s_add_u32 s46, s46, {WOF}")
    a("v_lshrrev_b32 v10, 4, v0")
    a("v_lshlrev_b32 v10, 3, v10")
    a("v_add_u32 v10, v10, v4")
    a("v_lshlrev_b32 v10, 6, v10")
    a("v_lshl_add_u32 v10, v5, 3, v10")
    a("s_mov_b32 s50, 256")
    a("s_mov_b32 s51, 32")
    a("s_mov_b32 s52, 7168")
    a.label("K1_prep4")
    a("v_mul_lo_u32 v9, v6, s41")
    a("v_add_u32 v9, v9, v7")
    a("s_lshl_b32 s41, s41, 4")
    a(f"s_mov_b32 s45, {K1_W4}")
    for j in range(28):
        a("s_mov_b32 m0, s45")
        a("s_add_u32 s45, s45, 1024")
        a("buffer_load_dwordx4 v9, s[12:15], s43 offen lds")
        a("s_add_u32 s43, s43, s41")
    a(f"v_add_u32 v10, {K1_W4}, v10")
    a("v_add_u32 v11, s50, v10")
    a("v_add_u32 v12, s51, v10")
    a("v_add_u32 v13, s51, v11")
    a("v_lshlrev_b32 v16, 4, v0")
    a("s_add_u32 s47, s46, s53")
    stamp(a, 1)
    a("s_waitcnt vmcnt(0)")
    stamp(a, 2)
    a("s_barrier")
    stamp(a, 3)
    def prd(p):
        b = 32 + 8*(p % 4)
        a(f"ds_read_b64_tr_b16 {vr(b,2)}, v10 offset:{p*2048}")
        a(f"ds_read_b64_tr_b16 {vr(b+2,2)}, v11 offset:{p*2048}")
        a(f"ds_read_b64_tr_b16 {vr(b+4,2)}, v12 offset:{p*2048}")
        a(f"ds_read_b64_tr_b16 {vr(b+6,2)}, v13 offset:{p*2048}")
    prd(0); prd(1)
    for p in range(14):
        if p + 2 < 14: prd(p + 2)
        a(f"s_waitcnt lgkmcnt({4*min(2, 13-p)})")
        b = 32 + 8*(p % 4)
        a(f"buffer_store_dwordx4 {vr(b,4)}, v16, s[16:19], s46 offen{SM('k1m')}")
        a(f"buffer_store_dwordx4 {vr(b+4,4)}, v16, s[16:19], s47 offen{SM('k1m')}")
        a("s_add_u32 s46, s46, s52")
        a("s_add_u32 s47, s47, s52")
    a("s_barrier")
    fin(a, 0, 38)
    a.label("K1_end")
    a("s_endpgm")
    return kd(n, 96, 64, 96), f"; @launch kernel={n} grid=(256,1,1) block=(320,1,1) lds={K1_LDS}"

L_RED, L_OB, L_WO, L_ST, L_DUMMY, L_BIAS, L_HT = 0, 49152, 57344, 147456, 148480, 149504, 150528
L_HN, L_ACT = 0, 57344
KB_LDS = 158720
OB_STRIDE = 912
SHIFT_LIMIT = 40.0
SPIN_LIMIT = 1 << 17
LN2F = math.log(2.0)

class Cnt:
    def __init__(self, name, cap): self.q = []; self.name = name; self.cap = cap
    def issue(self, tag):
        self.q.append(tag)
        assert self.name != "vmcnt" or len(self.q) <= self.cap, (self.name, tag, len(self.q))
    def wait(self, tag):
        if tag not in self.q: return None
        k = len(self.q) - 1 - self.q[::-1].index(tag)
        n = min(len(self.q) - 1 - k, self.cap)
        self.q = self.q[len(self.q)-n:] if n else []
        return f"s_waitcnt {self.name}({n})"
    def clear(self): self.q = []

def cost(t):
    mn = t.split()[0]
    if mn.startswith(("v_exp", "v_rcp", "v_rsq", "v_sqrt")): return 8
    if mn.startswith(("ds_write_b128", "global_store")): return 20
    if mn.startswith(("ds_", "global_", "buffer_")): return 12
    if mn.startswith(("v_cvt_pk", "v_fma_")): return 5
    return 4.3

def gen_kb(a, force_slow=False, force_fence=False):
    n = "kb_kernel"
    header(a, n)
    vm = Cnt("vmcnt", 63); lg = Cnt("lgkmcnt", 15)
    def V(text, tag="-"): a(text); vm.issue(tag)
    def D(text, tag="-"): a(text); lg.issue(tag)
    def WV(tag):
        w = vm.wait(tag)
        if w: a(w)
    def WL(tag):
        w = lg.wait(tag)
        if w: a(w)
    def add64(d, s, off):
        a(f"s_add_u32 s{d}, s{s}, {off}")
        a(f"s_addc_u32 s{d+1}, s{s+1}, 0")
    XR, Q, KVR, S, P, WOV = 16, 32, 64, 96, 128, 144
    NPRE = OPT.get('npre', 0)
    a("s_cmp_ge_u32 s2, 256")
    a("s_cbranch_scc1 KB_end")
    stamp_init(a)
    a("s_load_dwordx2 s[8:9], s[0:1], 88")
    a("s_load_dwordx2 s[10:11], s[0:1], 0")
    a("s_load_dwordx2 s[12:13], s[0:1], 72")
    a("s_load_dwordx2 s[14:15], s[0:1], 56")
    a("v_lshrrev_b32 v1, 6, v0")
    a("v_and_b32 v0, 63, v0")
    a("v_readfirstlane_b32 s3, v1")
    a("s_lshr_b32 s7, s2, 3")
    a("s_and_b32 s4, s2, 7")
    a("s_lshl_b32 s4, s4, 2")
    a("s_lshr_b32 s5, s7, 3")
    a("s_add_u32 s4, s4, s5")
    a("s_and_b32 s5, s7, 7")
    a("s_lshl_b32 s6, s4, 3")
    a("s_add_u32 s6, s6, s5")
    a("v_lshlrev_b32 v1, 4, v0")
    a("v_lshrrev_b32 v2, 5, v0")
    a("v_lshlrev_b32 v3, 2, v0")
    a("s_lshl_b32 s52, s3, 16")
    a(f"s_add_u32 s52, s52, {KV + 4096}")
    a("s_lshl_b32 s53, s5, 13")
    a("s_add_u32 s53, s53, s52")
    a("s_lshl_b32 s54, s6, 13")
    if QF: a(f"s_add_u32 s54, s54, {QF}")
    a(f"s_mov_b32 s55, {KMAX}")
    for t in range(4):
        a(f"s_add_u32 s{56+t}, s3, {t+1}")
        a(f"s_and_b32 s{56+t}, s{56+t}, 3")
        a(f"s_lshl_b32 s{56+t}, s{56+t}, 11")
        a(f"s_add_u32 s{56+t}, s{56+t}, s54")
    a("s_waitcnt lgkmcnt(0)")
    srd(a, 16, 8, 9, WS_SIZE)
    add64(32, 8, "s53")
    V("buffer_load_dword v4, v3, s[16:19], s55 offen", "kmax")
    for t in range(4):
        V(f"buffer_load_dwordx4 {vr(Q+8*t,4)}, v1, s[16:19], s{56+t} offen", f"q{t}")
        V(f"buffer_load_dwordx4 {vr(Q+8*t+4,4)}, v1, s[16:19], s{56+t} offen offset:1024", f"q{t}")
    def kvld(i, part):
        b = 32 + 2*(i >> 1)
        return f"global_load_dwordx4 {vr(KVR+16*(i&1)+4*part,4)}, v1, s[{b}:{b+1}] offset:{4096*(i&1) - 4096 + 1024*part}"
    for i, part in ((0,0), (0,1), (0,2), (0,3), (1,0), (1,1), (1,2), (1,3)):
        V(kvld(i, part), f"{'KV'[part>>1]}{i}")
    srd(a, 20, 10, 11, X_BYTES)
    srd(a, 24, 12, 13, X_BYTES)
    srd(a, 28, 14, 15, 3584)
    a(f"s_mov_b32 m0, {L_BIAS}")
    a("s_lshl_b32 s53, s5, 9")
    V("buffer_load_dwordx4 v1, s[28:31], s53 offen lds", "bias")
    a("v_lshlrev_b32 v10, 7, v0")
    a("s_lshl_b32 s53, s7, 2")
    a("s_add_u32 s53, s53, s3")
    a("s_cmp_lt_u32 s53, 49")
    a("s_cbranch_scc0 KB_wcode")
    a("s_lshl_b32 s54, s53, 13")
    a(f"s_add_u32 s54, s54, {WOF}")
    add64(50, 8, "s54")
    a("global_load_dword v31, v10, s[50:51]")
    a("s_branch KB_wdone")
    a.label("KB_wcode")
    a("s_getpc_b64 s[50:51]")
    a.label("KB_pc")
    a("s_sub_u32 s54, s53, 49")
    a("s_lshl_b32 s54, s54, 13")
    a("v_add_u32 v11, s54, v10")
    a("v_min_u32 v11, KB_code_end-KB_pc-4, v11")
    a("global_load_dword v31, v11, s[50:51]")
    a.label("KB_wdone")
    vm.issue("warm")
    a("s_getreg_b32 s69, hwreg(HW_REG_XCC_ID, 0, 4)")
    a("s_add_u32 s69, s69, 1")
    a("s_lshl_b32 s53, s4, 8")
    a(f"s_add_u32 s53, s53, {SYNC}")
    add64(66, 8, "s53")
    a("s_lshl_b32 s53, s4, 7")
    a(f"s_add_u32 s53, s53, {SYNC + 0x2000}")
    add64(62, 8, "s53")
    a("v_mov_b32 v11, s69")
    a("s_lshl_b32 s53, s5, 2")
    a("v_mov_b32 v12, s53")
    a("s_mov_b64 exec, 1")
    V("global_store_dword v12, v11, s[62:63] sc0 sc1", "xccpub")
    a("s_mov_b64 exec, -1")
    a("s_load_dword s70, s[66:67], 0")
    a("s_load_dword s71, s[66:67], 128")
    a("s_mul_i32 s53, s3, 100352")
    a(f"s_add_u32 s53, s53, {WOF + 4096}")
    add64(48, 8, "s53")
    def woreg(f):
        if f < 48: return ar(64+4*f, 4)
        if f < 76: return vr(WOV+4*(f-48), 4)
        if f < 92: return vr(32+4*(f-76), 4)
        return vr(WOV+4*(f-92), 4)
    VOFF = (1, 7, 9, 8)
    def wo_items(f0, f1):
        it = []
        for f in range(f0, f1):
            if f < 76:
                if f and f % 32 == 0:
                    it += [("s", "s_add_u32 s48, s48, 32768"), ("s", "s_addc_u32 s49, s49, 0")]
                it.append(("v", f"global_load_dwordx4 {woreg(f)}, v{VOFF[(f%32)//8]}, s[48:49] offset:{1024*(f%8) - 4096}", f"wo{f}"))
            else:
                g = (f - 76) // 4
                if f % 4 == 0: it.append(("s", f"s_add_u32 m0, s60, {L_WO + 1024*(f-76)}"))
                b = 50 if g & 1 else 48
                it.append(("v", f"global_load_lds_dwordx4 v{VOFF[1 + g//2]}, s[{b}:{b+1}] offset:{1024*(f%4)}", f"wo{f}"))
        return it
    def emit_item(it):
        if it[0] == "s": a(it[1])
        elif it[0] == "v": V(it[1], it[2])
        elif it[0] == "d": D(it[1], it[2])
        elif it[0] == "wv": WV(it[1])
        elif it[0] == "wl": WL(it[1])
    add64(50, 48, 65536 + 4096)
    assert NPRE <= 8
    for it in wo_items(0, NPRE): emit_item(it)
    a("v_and_b32 v5, 7, v0")
    a("v_lshrrev_b32 v6, 4, v0")
    a("v_mul_u32_u24 v7, 896, v5")
    a("v_lshl_add_u32 v7, v6, 3, v7")
    a("s_mul_i32 s53, s6, 8*896")
    a("s_mul_i32 s54, s3, 224")
    a("s_add_u32 s53, s53, s54")
    for i in range(7): V(f"buffer_load_dwordx2 {vr(XR+2*i,2)}, v7, s[20:23], s53 offen offset:{32*i}", "xr")
    a("v_add_u32 v7, 8192, v1")
    a("v_add_u32 v9, 16384, v1")
    for p in range(1, 8):
        a(f"s_add_u32 s53, s5, {p}")
        a("s_and_b32 s53, s53, 7")
        a("s_lshl_b32 s53, s53, 13")
        a("s_add_u32 s53, s53, s52")
        add64(32+2*p, 8, "s53")
    a("s_mul_i32 s60, s3, 22528")
    for t in range(3):
        a(f"s_add_u32 s53, s3, {t+1}")
        a("s_and_b32 s53, s53, 3")
        a("s_mul_i32 s53, s53, 12288")
        a(f"s_add_u32 s53, s53, {L_RED + 4096*t}")
        a(f"v_add_u32 v{13+t}, s53, v1")
    a("s_lshl_b32 s53, s7, 2")
    a("s_add_u32 s53, s53, s3")
    a("s_mul_i32 s53, s53, 12544")
    a(f"s_add_u32 s53, s53, {W1F + 4096}")
    add64(56, 8, "s53")
    add64(58, 56, W2F - W1F)
    a("s_lshr_b32 s53, s6, 2")
    a("s_mul_i32 s53, s53, 28672")
    a("s_and_b32 s54, s5, 3")
    a("s_lshl_b32 s54, s54, 7")
    a("s_add_u32 s53, s53, s54")
    a("s_mul_i32 s54, s3, 7168")
    a("s_add_u32 s53, s53, s54")
    a(f"s_add_u32 s53, s53, {HN}")
    add64(54, 8, "s53")
    a("v_lshrrev_b32 v10, 2, v0")
    a("v_lshlrev_b32 v10, 7, v10")
    a("v_and_b32 v11, 12, v3")
    a("v_add_u32 v10, v10, v11")
    a("v_add_u32 v11, 8192, v10")
    a("v_min_u32 v12, 13, v0")
    a("v_lshlrev_b32 v12, 9, v12")
    a("v_and_b32 v30, 7, v0")
    a("v_lshlrev_b32 v30, 2, v30")
    late = [("v", "global_load_dword v30, v30, s[62:63] sc1", "xcc"),
            ("v", "global_load_dword v4, v12, s[54:55] sc1", "late")]
    warm = [("v", f"global_load_dword v4, v{10 + (k >> 2)}, s[{b}:{b+1}] offset:{2048*(k & 3) - 4096}", "warm")
            for b in (56, 58) for k in range(7)][:OPT.get('nwarm', 7)]
    nstamp(a, "pro")
    WV("kmax")
    for m_ in ("quad_perm:[1,0,3,2]", "quad_perm:[2,3,0,1]", "row_half_mirror", "row_mirror"):
        a(f"v_max_f32_dpp v4, v4, v4 {m_} row_mask:0xf bank_mask:0xf")
        a("s_nop 1")
    a("v_mov_b32 v8, v4")
    a("s_nop 1")
    a("v_permlane16_swap_b32 v8, v4")
    a("s_nop 1")
    a("v_max_f32 v4, v4, v8")
    half_sum(a, 4, 8, "v_max_f32")
    a(f"v_mul_f32 v4, {hexf(1.02)}, v4")
    a("v_cmp_ne_u32 s[64:65], 0, v2")
    B0 = S + 16
    for t in range(4): a(f"v_mov_b32 v{B0+t}, 0")
    for t in range(4):
        WV(f"q{t}")
        for i in range(8): a(f"v_dot2c_f32_bf16 v{B0+t}, v{Q+8*t+i}, v{Q+8*t+i}")
    a("s_nop 2")
    for t in range(4): a(f"v_mov_b32 v{B0+4+t}, v{B0+t}")
    a("s_nop 0")
    for t in range(4): a(f"v_permlane32_swap_b32 v{B0+4+t}, v{B0+t}")
    a("s_nop 0")
    for t in range(4): a(f"v_add_f32 v{B0+t}, v{B0+t}, v{B0+4+t}")
    for t in range(4): a(f"v_mul_f32 v{B0+t}, v{B0+t}, v4")
    for t in range(4): a(f"v_sqrt_f32 v{B0+t}, v{B0+t}")
    a("s_nop 0")
    a(f"v_max3_f32 v8, v{B0}, v{B0+1}, v{B0+2}")
    a(f"v_max_f32 v8, v8, v{B0+3}")
    lim = -1.0 if force_slow else SHIFT_LIMIT
    a(f"v_cmp_nge_f32 vcc, {hexf(lim)}, v8")
    a("v_add_u32 v8, 24576, v1")
    a("s_cbranch_vccnz KB_slow")
    vm_at_slow = list(vm.q)
    for t in range(4): a(f"v_cvt_pk_bf16_f32 v{B0+t}, -v{B0+t}, 0")
    for t in range(4): a(f"v_cndmask_b32 v{Q+8*t+6}, v{Q+8*t+6}, v{B0+t}, s[64:65]")
    WV("K0")
    a(mfma32(vr(S,16), vr(KVR,4), vr(Q,4), "0"))
    a(mfma32(vr(S,16), vr(KVR+4,4), vr(Q+4,4), vr(S,16)))
    a("s_nop 7")
    a("s_nop 3")
    nstamp(a, "loop")
    slots = {}
    for i in range(16):
        if i <= 13:
            slots[(4*i+2, 0)] = [("v", kvld(i+2, 0), f"K{i+2}")]
            slots[(4*i+2, 1)] = [("v", kvld(i+2, 1), f"K{i+2}")]
        if i <= 14: slots[(4*i+2, 3)] = [("wv", f"K{i+1}")]
        if 1 <= i <= 14:
            slots[(4*i, 2)] = [("v", kvld(i+1, 2), f"V{i+1}")]
            slots[(4*i, 3)] = [("v", kvld(i+1, 3), f"V{i+1}")]
        slots[(4*i+1, 1)] = [("wv", f"V{i}")]
    for q, it in enumerate(warm): slots[(4*(1 + q*14//len(warm)), 1)] = [it]
    free = [(u, k) for u in range(OPT.get('wo0', 1), 56) for k in range(4) if (u, k) not in slots]
    side = wo_items(NPRE, 98)
    assert len(side) <= len(free), (len(side), len(free))
    for q, it in enumerate(side): slots[free[q*len(free)//len(side)]] = [it]
    lf = [(u, k) for u in range(57, 62) for k in range(4) if (u, k) not in slots]
    for q, it in enumerate(late): slots[lf[2*q]] = [it]
    if OPT.get("ftouch", 1):
        slots[lf[1]] = [("s", "s_load_dword s88, s[66:67], 0 glc"), ("s", "s_load_dword s89, s[66:67], 128 glc")]
    def redw(t, q): return ("d", f"ds_write_b128 v{13+t}, {ar(16*t+4*q,4)} offset:{1024*q}", "red")
    for q, sl in enumerate([(62,1), (62,2), (62,3), (63,2)]): slots.setdefault(sl, []).append(redw(0, q))
    tail63 = [redw(1, q) for q in range(4)]
    slots.setdefault((63,3), []).append(tail63[0])
    for u in range(64):
        sb, pb = S + 16*(u & 1), P + 8*(u & 1)
        sn, pp = S + 16*((u+1) & 1), P + 8*((u-1) & 1)
        un, up = u + 1, u - 1
        kslot = KVR + 16*((un >> 2) & 1); qn = Q + 8*(un & 3)
        vslot = KVR + 16*((up >> 2) & 1) + 8; oa = ar(16*(up & 3), 16)
        M = [mfma32(vr(sn,16), vr(kslot,4), vr(qn,4), "0"),
             mfma32(vr(sn,16), vr(kslot+4,4), vr(qn+4,4), vr(sn,16)),
             mfma32(oa, vr(vslot,4), vr(pp,4), "0" if up < 4 else oa),
             mfma32(oa, vr(vslot+4,4), vr(pp+4,4), oa)]
        e = lambda k: f"v_exp_f32 v{sb+k}, v{sb+k}"
        c = lambda k: f"v_cvt_pk_bf16_f32 v{pb+k}, v{sb+2*k}, v{sb+2*k+1}"
        groups = [[e(0), e(1), e(2), e(3), c(0)], [e(4), c(1), e(5), e(6), e(7), c(2)],
                  [e(8), c(3), e(9), e(10), e(11), c(4)], [e(12), c(5), e(13), e(14), e(15), c(6), c(7)]]
        nstamp(a, f"u{u}")
        for k in range(4):
            if not ((u == 63 and k < 2) or (u == 0 and k >= 2)): a(M[k])
            for it in slots.get((u, k), []): emit_item(it)
            for x in groups[k]: a(x)
    emit_item(tail63[1])
    a(mfma32(ar(48,16), vr(KVR+24,4), vr(P+8,4), ar(48,16)))
    emit_item(tail63[2])
    a(mfma32(ar(48,16), vr(KVR+28,4), vr(P+12,4), ar(48,16)))
    emit_item(tail63[3])
    for q in range(4): emit_item(redw(2, q))
    a.label("KB_red")
    nstamp(a, "red")
    a("s_mul_i32 s53, s3, 12288")
    a("v_add_u32 v8, s53, v1")
    a("v_bfe_u32 v9, v0, 3, 2")
    a("s_lshl_b32 s53, s3, 2")
    a("v_add_u32 v9, s53, v9")
    a("v_mul_u32_u24 v9, 56, v9")
    a(f"v_mul_u32_u24 v10, {OB_STRIDE}, v5")
    a("v_add_u32 v9, v9, v10")
    a("v_lshl_add_u32 v9, v2, 3, v9")
    a(f"v_add_u32 v9, {L_OB}, v9")
    a(f"v_mov_b32 v11, {L_DUMMY}")
    a("v_add_u32 v12, 48, v9")
    a("v_cndmask_b32 v11, v12, v11, s[64:65]")
    a("v_lshl_add_u32 v10, v6, 4, v10")
    a(f"v_add_u32 v10, {L_OB}, v10")
    for i in range(16): a(f"v_accvgpr_read_b32 v{32+i}, a{48+i}")
    a("s_waitcnt lgkmcnt(0)"); lg.clear()
    a("s_barrier")
    for j in range(12): D(f"ds_read_b128 {vr(48+4*j,4)}, v8 offset:{L_RED+1024*j}", f"r{j//4}")
    ACC = 96
    WV("xr")
    for i in range(14):
        a(f"v_lshlrev_b32 v{ACC+2*i}, 16, v{XR+i}")
        a(f"v_and_b32 v{ACC+2*i+1}, 0xffff0000, v{XR+i}")
    for j in range(3):
        WL(f"r{j}")
        for i in range(16): a(f"v_add_f32 v{32+i}, v{32+i}, v{48+16*j+i}")
    a("v_mov_b32 v12, v44")
    a("v_mov_b32 v13, v44")
    a("s_nop 1")
    a("v_permlane32_swap_b32 v12, v13")
    a("s_nop 1")
    a("v_rcp_f32 v13, v13")
    a("s_nop 0")
    for i in range(16): a(f"v_mul_f32 v{32+i}, v{32+i}, v13")
    for i in range(8): a(f"v_cvt_pk_bf16_f32 v{48+i}, v{32+2*i}, v{33+2*i}")
    for i in range(3): D(f"ds_write_b64 v9, {vr(48+2*i,2)} offset:{16*i}")
    D("ds_write_b64 v11, v[54:55]")
    a("s_lshl_b32 s53, s5, 3")
    a("s_add_u32 s53, s53, s3")
    a("s_mul_i32 s53, s53, 28672")
    a(f"s_add_u32 s53, s53, {W1F + 4096}")
    add64(50, 8, "s53")
    a(f"s_add_u32 s53, s60, {L_WO}")
    a("v_add_u32 v8, s53, v1")
    a("s_waitcnt lgkmcnt(0)"); lg.clear()
    a("s_barrier")
    nstamp(a, "wo")
    def w1reg(i):
        return ar(64+4*i, 4) if i < 48 else ar(4*(i-48), 4)
    def w1_items(i):
        it = []
        ks = i % 28
        if i == 28: it += [("s", f"s_add_u32 s50, s50, {4*28672 - 3*8192}"), ("s", "s_addc_u32 s51, s51, 0")]
        elif ks and ks % 8 == 0: it += [("s", "s_add_u32 s50, s50, 8192"), ("s", "s_addc_u32 s51, s51, 0")]
        it.append(("v", f"global_load_dwordx4 {w1reg(i)}, v1, s[50:51] offset:{1024*(ks%8) - 4096}", f"w1_{i}"))
        return it
    for ks in range(14): D(f"ds_read_b128 {ar(4*ks,4)}, v10 offset:{64*ks}", f"o{ks}")
    WV("wo97")
    NW1 = 24
    post = {f: [] for f in range(98)}
    for i in range(NW1):
        it = w1_items(i)
        for q, x in enumerate(it): post[4*i + 3 - (len(it) - 1 - q)].append(x)
    for q in range(16): post[20 + 2*q].append(("d", f"ds_read_b128 {woreg(76+q)}, v8 offset:{1024*q}", f"wl{76+q}"))
    for q in range(6): post[56 + 2*q].append(("d", f"ds_read_b128 {woreg(92+q)}, v8 offset:{1024*(16+q)}", f"wl{92+q}"))
    for f in range(98):
        ks, tile = divmod(f, 7)
        if tile == 0: WL(f"o{ks}")
        if f >= 76: WL(f"wl{f}")
        a(mfma16(vr(ACC+4*tile,4), woreg(f), ar(4*ks,4), vr(ACC+4*tile,4)))
        for it in post[f]: emit_item(it)
    nstamp(a, "woend")
    H = 32
    NW1B = 40
    w1q = [w1_items(i) for i in range(NW1, NW1B)]
    def w1n(n=1):
        for _ in range(n):
            if w1q:
                for it in w1q.pop(0): emit_item(it)
    a("v_and_b32 v14, 15, v0")
    a("v_lshlrev_b32 v14, 3, v14")
    a(f"v_add_u32 v14, {L_ST}, v14")
    a("s_lshl_b32 s53, s3, 7")
    a("v_add_u32 v15, s53, v14")
    a("s_mul_i32 s53, s3, 1792")
    a(f"s_add_u32 s53, s53, {L_HT}")
    a("v_and_b32 v8, 1, v6")
    a("v_lshlrev_b32 v8, 7, v8")
    a("v_lshl_add_u32 v8, v5, 4, v8")
    a("v_lshl_add_u32 v8, v2, 3, v8")
    a("v_add_u32 v8, s53, v8")
    a("v_add_u32 v9, s53, v1")
    for i in range(14):
        a(f"v_cvt_pk_bf16_f32 v{H+i}, v{ACC+2*i}, v{ACC+2*i+1}")
        if i % 4 == 3: w1n()
    a(f"s_mov_b32 s53, {ONES_BF}")
    a("v_mov_b32 v12, 0")
    a("v_mov_b32 v13, 0")
    for i in range(14):
        a(f"v_dot2c_f32_bf16 v12, s53, v{H+i}")
        a(f"v_dot2c_f32_bf16 v13, v{H+i}, v{H+i}")
        if i % 3 == 2: w1n()
    for i in range(7): D(f"ds_write_b64 v8, {vr(H+2*i,2)} offset:{256*i}")
    a("v_mov_b32 v10, v12")
    a("v_mov_b32 v11, v13")
    a("s_nop 0")
    a("v_permlane16_swap_b32 v10, v12")
    a("v_permlane16_swap_b32 v11, v13")
    a("s_nop 0")
    a("v_add_f32 v12, v12, v10")
    a("v_add_f32 v13, v13, v11")
    a("v_mov_b32 v10, v12")
    a("v_mov_b32 v11, v13")
    a("s_nop 0")
    a("v_permlane32_swap_b32 v10, v12")
    a("v_permlane32_swap_b32 v11, v13")
    a("s_nop 0")
    a("v_add_f32 v12, v12, v10")
    a("v_add_f32 v13, v13, v11")
    D("ds_write_b64 v15, v[12:13]")
    w1n(3)
    H8 = 16
    D(f"ds_read_b128 {vr(H8,4)}, v9", "h8")
    D(f"ds_read_b128 {vr(H8+4,4)}, v9 offset:1024", "h8")
    WV("xcc")
    a("s_mov_b32 s68, 1")
    a("v_cmp_ne_u32 vcc, s69, v30")
    if force_fence: a("s_branch KB_xcc")
    else: a("s_cbranch_vccnz KB_xcc")
    a.label("KB_xcc_done")
    a("v_bfe_u32 v7, v0, 3, 1")
    a("v_lshlrev_b32 v8, 10, v6")
    a("v_lshl_add_u32 v8, v7, 9, v8")
    a("v_lshl_add_u32 v8, v5, 4, v8")
    a("v_add_u32 v9, 4096, v8")
    w1n(3)
    a("s_waitcnt lgkmcnt(0)"); lg.clear()
    a("s_barrier")
    for w in range(4): D(f"ds_read_b64 {vr(48+2*w,2)}, v14 offset:{128*w}", "st")
    w1n(16)
    for i in range(8):
        a(f"v_lshlrev_b32 v{ACC+2*i}, 16, v{H8+i}")
        a(f"v_and_b32 v{ACC+2*i+1}, 0xffff0000, v{H8+i}")
    WL("st")
    a("v_add_f32 v48, v48, v50")
    a("v_add_f32 v49, v49, v51")
    a("v_add_f32 v52, v52, v54")
    a("v_add_f32 v53, v53, v55")
    a("v_add_f32 v48, v48, v52")
    a("v_add_f32 v49, v49, v53")
    a(f"v_mul_f32 v48, {hexf(1.0/448)}, v48")
    a(f"v_mul_f32 v49, {hexf(1.0/448)}, v49")
    a("v_fma_f32 v49, -v48, v48, v49")
    a("v_max_f32 v49, 0, v49")
    a(f"v_add_f32 v49, {hexf(1e-5)}, v49")
    a("v_rsq_f32 v49, v49")
    a("s_nop 0")
    a(f"v_mul_f32 v49, {hexf(LOG2E)}, v49")
    a("v_mul_f32 v48, -v48, v49")
    for i in range(16): a(f"v_fma_f32 v{ACC+i}, v{ACC+i}, v49, v48")
    for i in range(8): a(f"v_cvt_pk_bf16_f32 v{32+i}, v{ACC+2*i}, v{ACC+2*i+1}")
    nstamp(a, "hnst")
    V(f"global_store_dwordx4 v8, v[32:35], s[54:55]{SM('hnm')}", "hnst")
    a("s_mov_b32 exec_hi, 0xffff")
    V(f"global_store_dwordx4 v9, v[36:39], s[54:55]{SM('hnm')}", "hnst")
    a("s_mov_b32 exec_hi, -1")
    a("s_lshl_b32 s53, s5, 2")
    a("s_add_u32 s53, s53, s3")
    a("v_mov_b32 v10, s53")
    a("v_mov_b32 v11, 1")
    a("s_lshl_b32 s53, s3, 6")
    a(f"s_add_u32 s53, s53, {L_BIAS}")
    a("v_lshl_add_u32 v12, v2, 3, s53")
    for q in range(8): D(f"ds_read_b64 {vr(48+2*q,2)}, v12 offset:{16*(q&3) + 256*(q>>2)}", "bias")
    def signal(off, lab):
        a("s_waitcnt vmcnt(0)"); vm.clear()
        a("s_cmp_eq_u32 s68, 0")
        a(f"s_cbranch_scc1 {lab}_fence")
        a("s_mov_b64 exec, 1")
        V(f"global_store_byte v10, v11, s[66:67] offset:{off}", "sig")
        a("s_mov_b64 exec, -1")
        a.label(f"{lab}_done")
    def poll(off, nmem, lab):
        a("s_mov_b32 s52, 0")
        a("s_cmp_eq_u32 s68, 0")
        a(f"s_cbranch_scc1 {lab}_fence")
        a.label(f"{lab}_loop")
        a(f"global_load_dword v31, v30, s[66:67] offset:{off} sc1")
        a("s_add_u32 s52, s52, 1")
        a("s_waitcnt vmcnt(0)"); vm.clear()
        a("v_cmp_ne_u32 vcc, 0x01010101, v31")
        a(f"s_cbranch_vccz {lab}_done")
        a(f"s_cmp_lt_u32 s52, {SPIN_LIMIT}")
        a(f"s_cbranch_scc1 {lab}_loop")
        a.label(f"{lab}_done")
        if STAMPS and f"cnt{off}" in STAMP_SET: a(f"s_mov_b32 s{72 + 2*(1 + STAMP_SET.index(f'cnt{off}'))}, s52")
    T0, A2, A1, HOLD = 24, 48, 80, 144
    accs = {("A",0): A1, ("B",0): A1+16, ("B",1): A1+32, ("A",1): A1+48}
    a("s_mul_i32 s53, s4, 57344")
    a("s_lshl_b32 s52, s3, 10")
    a("s_add_u32 s53, s53, s52")
    a(f"s_add_u32 s53, s53, {HN}")
    add64(56, 8, "s53")
    a("v_lshlrev_b32 v30, 2, v5")
    signal(0, "KB_sg1")
    nstamp(a, "sig1")
    a("s_cmp_eq_u32 s5, 7")
    a("s_cbranch_scc1 KB_fin")
    nstamp(a, "pl1")
    poll(0, 8, "KB_pl1")
    nstamp(a, "poll1")
    def dma_items(q):
        it = [("s", f"s_add_u32 m0, s52, {L_HN + 4096*q}")]
        if q: it = [("s", "s_add_u32 s56, s56, 4096"), ("s", "s_addc_u32 s57, s57, 0")] + it
        return it + [("s", "s_nop 0"), ("v", "global_load_lds_dwordx4 v1, s[56:57] sc1", f"hn{q}")]
    a("s_lshl_b32 s52, s3, 10")
    for q in range(7):
        for it in dma_items(q): emit_item(it)
    a("s_mul_i32 s53, s3, 3*112*1024")
    a("s_lshl_b32 s61, s5, 14")
    a("s_add_u32 s53, s53, s61")
    a(f"s_add_u32 s53, s53, {W2F + 4096}")
    add64(58, 8, "s53")
    a("s_lshr_b32 s53, s3, 1")
    a("s_add_u32 s53, s53, 12")
    a("s_mul_i32 s53, s53, 112*1024")
    a("s_add_u32 s53, s53, s61")
    a(f"s_add_u32 s53, s53, {W2F + 4096}")
    add64(32, 8, "s53")
    a("s_mul_i32 s53, s4, 458752")
    a("s_mul_i32 s61, s5, 7168")
    a("s_add_u32 s53, s53, s61")
    a(f"s_add_u32 s53, s53, {PART}")
    add64(34, 8, "s53")
    a("s_mul_i32 s61, s3, 1536")
    add64(36, 34, "s61")
    add64(38, 36, 229376)
    a("s_and_b32 s61, s3, 1")
    a("s_mul_i32 s61, s61, 229376")
    a("s_lshr_b32 s53, s3, 1")
    a("s_lshl_b32 s53, s53, 9")
    a("s_add_u32 s61, s61, s53")
    a("s_add_u32 s61, s61, 6144")
    add64(48, 34, "s61")
    a("s_mul_i32 s61, s3, 114688")
    add64(34, 34, "s61")
    a("v_bfe_u32 v12, v0, 3, 2")
    a("v_mul_u32_u24 v12, 57344, v12")
    a("v_lshl_add_u32 v12, v2, 7, v12")
    a("v_lshl_add_u32 v12, v5, 4, v12")
    a("v_lshrrev_b32 v13, 2, v0")
    a("v_min_u32 v13, 13, v13")
    a("v_lshlrev_b32 v13, 7, v13")
    a("v_add_u32 v13, 3584, v13")
    a("v_add_u32 v14, 57344, v13")
    a("s_lshl_b32 s53, s3, 11")
    a(f"s_add_u32 s53, s53, {L_ACT}")
    a("v_add_u32 v8, s53, v1")
    a(f"v_add_u32 v9, {L_ACT}, v1")
    a("s_and_b32 s53, s3, 1")
    a("s_lshl_b32 s53, s53, 14")
    a("v_add_u32 v15, s53, v9")
    WL("bias")
    a(f"s_mov_b32 s53, {hexf(LOG2E)}")
    for X, r0 in (("A", 48), ("B", 56)):
        d = accs[(X,0)]
        for i in range(8):
            a(f"v_lshlrev_b32 v{d+2*i}, 16, v{r0+i}")
            a(f"v_and_b32 v{d+2*i+1}, 0xffff0000, v{r0+i}")
        for i in range(16): a(f"v_mul_f32 v{d+i}, s53, v{d+i}")
        for i in range(16): a(f"v_mov_b32 v{accs[(X,1)]+i}, v{d+i}")
    def w2reg(q):
        if q < 8: return ar(32+4*q, 4)
        if q < 36: return w1reg(28 + q - 8)
        return w1reg(q - 36)
    def w2_items(q):
        u, ks = divmod(q, 16)
        b = 58 if u < 3 else 32
        it = []
        if ks == 8: it += [("s", f"s_add_u32 s{b}, s{b}, 8192"), ("s", f"s_addc_u32 s{b+1}, s{b+1}, 0")]
        elif ks == 0 and 0 < u < 3: it += [("s", f"s_add_u32 s{b}, s{b}, {112*1024 - 8192}"), ("s", f"s_addc_u32 s{b+1}, s{b+1}, 0")]
        it.append(("v", f"global_load_dwordx4 {w2reg(q)}, v1, s[{b}:{b+1}] offset:{1024*(ks%8) - 4096}", f"w2_{q}"))
        return it
    NM = 224
    pre = {i: [] for i in range(NM + 1)}
    post = {i: [] for i in range(NM)}
    mf = []
    hold = lambda ks: vr(HOLD+4*ks, 4)
    for X, tt in (("A",0), ("B",0), ("B",1), ("A",1)):
        d = vr(accs[(X,tt)], 16)
        for ks in range(28): mf.append(mfma32(d, w1reg(ks + (28 if X == "B" else 0)), hold(ks), d))
    act0 = lambda ks: vr(HOLD+4*ks, 4)
    act1 = lambda ks: vr(HOLD+64+4*ks, 4) if ks < 12 else vr(A1+4*(ks-12), 4)
    ring = lambda ks: vr(A1+16+4*(ks & 7), 4)
    units = [(0, act0, 36, 0), (1, act0, 36, 1), (2, act0, 36, 2), (3, ring, 48, 0), (0, act1, 38, 0), (1, act1, 38, 1), (2, act1, 38, 2)]
    for ui, (u, breg, sb_, no) in enumerate(units):
        d = vr(A2+16*(ui & 1), 16)
        for ks in range(16): mf.append(mfma32(d, w2reg(16*u+ks), breg(ks), "0" if ks == 0 else d))
    AHEAD = 4
    rd0 = lambda ks: ("d", f"ds_read_b128 {hold(ks)}, v1 offset:{L_HN + 1024*ks}", f"h0_{ks}")
    rd1 = lambda ks: ("d", f"ds_read_b128 {hold(ks)}, v1 offset:{L_HN + 28672 + 1024*ks}", f"h1_{ks}")
    pre[0] += [("wv", "hn2"), ("s", "s_barrier")] + [rd0(ks) for ks in range(AHEAD)]
    for ks in range(28):
        if ks + AHEAD == 12: post[ks] += [("wv", "hn6"), ("s", "s_barrier")]
        if ks + AHEAD < 28: post[ks].append(rd0(ks + AHEAD))
        pre[ks].append(("wl", f"h0_{ks}"))
    for q in range(7, 14): post[2*(q-7)] += dma_items(q)
    pre[0].append(("wv", "w1_27"))
    for i in range(NW1B, 56): post[14 + 2*(i - NW1B)] += w1_items(i)
    pre[28] += [("wv", "hn13"), ("s", "s_barrier")]
    for ks in range(28):
        pre[28+ks].append(("wv", f"w1_{28+ks}"))
        post[28+ks].append(rd1(ks))
    for q in range(8): post[46 + q] += w2_items(q)
    if OPT.get('touch', 0):
        t0_, dt_ = OPT.get('t0', 47), OPT.get('dt', 6)
        for k in range(8):
            post[t0_ + dt_*k].append(("v", f"global_load_dword v4, v{13 + (k >> 2)}, s[34:35] offset:{1792*(k & 3) - 3584} sc1", "touch"))
    for ks in range(0, 28, 4): pre[56+ks].append(("wl", f"h1_{min(ks+3, 27)}"))
    for q in range(8, 64): post[56 + 2*(q-8)] += w2_items(q)
    for q in range(64): pre[112+q].append(("wv", f"w2_{q}"))
    fill = []
    def mish_items(X, tt, start, idx):
        x0 = accs[(X,tt)]; pk = x0
        L = []
        for g in range(4):
            t = T0 + 4*(g & 1); x = x0 + 4*g
            L += [f"v_exp_f32 v{t+i}, v{x+i}" for i in range(4)]
            L += [f"v_add_f32 v{t+i}, 1.0, v{t+i}" for i in range(4)]
            L += [f"v_fma_f32 v{t+i}, v{t+i}, v{t+i}, 1.0" for i in range(4)]
            L += [f"v_rcp_f32 v{t+i}, v{t+i}" for i in range(4)]
            L += [f"v_mul_f32 v{t+i}, v{t+i}, v{x+i}" for i in range(4)]
            L += [f"v_fmac_f32 v{x+i}, -2.0, v{t+i}" for i in range(4)]
            L += [f"v_cvt_pk_bf16_f32 v{pk+2*g+i}, v{x+2*i}, v{x+2*i+1}" for i in range(2)]
        it = [("s", x, start) for x in L]
        off = tt*16384 + (8192 if X == "B" else 0)
        it += [("d", f"ds_write_b128 v8, {vr(pk+4*hf,4)} offset:{off + 1024*hf}", start) for hf in range(2)]
        return it
    fill += mish_items("A", 0, 31, 0) + mish_items("B", 0, 59, 1)
    fill += [("bar", "b1", 0)]
    fill += mish_items("B", 1, 87, 2) + mish_items("A", 1, 115, 3)
    fill += [("bar", "b2", 0)]
    rda = lambda reg, addr, tt, ks, tag: ("d", f"ds_read_b128 {reg}, {addr} offset:{16384*tt + 1024*ks}", tag)
    need_bar = {}
    for ks in range(16):
        post[101 + ks].append(rda(act0(ks), "v9", 0, ks, f"a0_{ks}"))
        pre[112+ks].append(("wl", f"a0_{ks}"))
    need_bar[101] = "b1"
    for ks in range(16):
        post[155 + ks].append(rda(ring(ks), "v15", 0, ks, f"am_{ks}"))
        pre[160+ks].append(("wl", f"am_{ks}"))
        post[161 + ks].append(rda(act1(ks), "v9", 1, ks, f"a1_{ks}"))
        pre[176+ks].append(("wl", f"a1_{ks}"))
    need_bar[155] = "b2"
    outq = []
    for ui, (u, breg, sb_, no) in enumerate(units):
        d = A2 + 16*(ui & 1); pk = d
        L = []
        for hf in range(2):
            p4 = pk + 4*hf
            L += [("s", f"v_cvt_pk_bf16_f32 v{p4+i}, v{d+8*hf+2*i}, v{d+8*hf+2*i+1}") for i in range(4)]
            L += [("v", f"global_store_dwordx4 v12, {vr(p4,4)}, s[{sb_}:{sb_+1}] offset:{512*no + 256*hf}{SM('pm')}", "pst")]
        outq.append((112 + 16*ui + 18, L))
    done_bar = set()
    fq = list(fill); cur = [0]
    def emit_fill(it):
        if it[0] == "bar":
            a("s_waitcnt lgkmcnt(0)"); lg.clear()
            a("s_barrier"); done_bar.add(it[1]); print("note: barrier", it[1], "after MFMA", cur[0])
            return 8
        if it[0] == "d": D(it[1])
        else: a(it[1])
        return cost(it[1])
    credit = 0.0
    for i in range(NM):
        cur[0] = i
        assert not outq or i < outq[0][0] + 12, i
        for it in pre[i]: emit_item(it)
        a(mf[i])
        nstamp(a, f"m{i}")
        credit = max(min(credit, 0), -8) + 24
        if i in need_bar:
            c0 = credit
            while need_bar[i] not in done_bar: credit -= emit_fill(fq.pop(0))
            if c0 != credit: print(f"note: {c0 - credit:.0f} cycles of activation work flushed before MFMA {i}")
        for k, it in enumerate(post[i]):
            emit_item(it)
            credit -= (4 if it[0] in "vd" else 0) if k == 0 else (10 if it[0] in "vd" else 4)
        while outq and outq[0][0] <= i and credit > 0:
            L = outq[0][1]
            it = L.pop(0); emit_item(it); credit -= cost(it[1])
            if not L: outq.pop(0)
        while fq and credit > 0 and (fq[0][0] == "bar" or fq[0][2] <= i):
            credit -= emit_fill(fq.pop(0))
    assert not fq, len(fq)
    a("s_nop 7")
    a("s_nop 3")
    for _, L in outq:
        for it in L: emit_item(it)
    nstamp(a, "g2end")
    signal(128, "KB_sg2")
    nstamp(a, "sig2")
    a.label("KB_fin")
    R, SUM, HF = 144, 80, 96
    a("s_mul_i32 s53, s4, 458752")
    a("s_mul_i32 s52, s5, 57344")
    a("s_add_u32 s53, s53, s52")
    a("s_mul_i32 s52, s3, 1792")
    a("s_add_u32 s53, s53, s52")
    a(f"s_add_u32 s53, s53, {PART}")
    add64(56, 8, "s53")
    for i in range(16): a(f"v_mov_b32 v{SUM+i}, 0")
    for i in range(8):
        a(f"v_lshlrev_b32 v{HF+2*i}, 16, v{H8+i}")
        a(f"v_and_b32 v{HF+2*i+1}, 0xffff0000, v{H8+i}")
    a("v_mul_u32_u24 v12, 896, v5")
    a("v_lshl_add_u32 v12, v6, 5, v12")
    a("v_lshl_add_u32 v12, v7, 4, v12")
    a("s_mul_i32 s60, s6, 8*896")
    a("s_mul_i32 s61, s3, 224")
    a("s_add_u32 s60, s60, s61")
    a("s_mov_b32 s62, 0x00003f80")
    a("s_mov_b32 s63, 0x3f800000")
    a(f"s_mov_b32 s61, {hexf(LN2F)}")
    a("v_min_u32 v30, 6, v5")
    a("v_lshlrev_b32 v30, 2, v30")
    nstamp(a, "pl2")
    poll(128, 7, "KB_pl2")
    nstamp(a, "poll2")
    vm.clear(); vm.issue("older")
    for p in range(7):
        if p: add64(56, 56, 7168)
        V(f"global_load_dwordx4 {vr(R+8*p,4)}, v1, s[56:57] sc1", f"p{p}")
        V(f"global_load_dwordx4 {vr(R+8*p+4,4)}, v1, s[56:57] offset:1024 sc1", f"p{p}")
    for p in range(7):
        WV(f"p{p}")
        for i in range(8):
            a(f"v_dot2c_f32_bf16 v{SUM+2*i}, s62, v{R+8*p+i}")
            a(f"v_dot2c_f32_bf16 v{SUM+2*i+1}, s63, v{R+8*p+i}")
    a("s_nop 2")
    for i in range(16): a(f"v_fmac_f32 v{HF+i}, s61, v{SUM+i}")
    for i in range(8): a(f"v_cvt_pk_bf16_f32 v{32+i}, v{HF+2*i}, v{HF+2*i+1}")
    for b in (32, 36):
        a(f"v_mov_b32 v40, v{b+2}")
        a(f"v_mov_b32 v41, v{b+3}")
        a("s_nop 0")
        a(f"v_mov_b32_dpp v{b+2}, v{b} row_ror:8 row_mask:0xf bank_mask:0x3")
        a(f"v_mov_b32_dpp v{b+3}, v{b+1} row_ror:8 row_mask:0xf bank_mask:0x3")
        a(f"v_mov_b32_dpp v{b}, v40 row_ror:8 row_mask:0xf bank_mask:0xc")
        a(f"v_mov_b32_dpp v{b+1}, v41 row_ror:8 row_mask:0xf bank_mask:0xc")
    a(f"buffer_store_dwordx4 v[32:35], v12, s[24:27], s60 offen{SM('om')}")
    a("s_mov_b32 exec_hi, 0xffff")
    a(f"buffer_store_dwordx4 v[36:39], v12, s[24:27], s60 offen offset:128{SM('om')}")
    fin(a, 1, 8)
    a.label("KB_end")
    a("s_endpgm")

    a.label("KB_xcc")
    a("s_mov_b32 s52, 0")
    a("v_and_b32 v10, 7, v0")
    a("v_lshlrev_b32 v10, 2, v10")
    a.label("KB_xcc_loop")
    a("v_cmp_eq_u32 vcc, 0, v30")
    a("s_cbranch_vccz KB_xcc_known")
    a("global_load_dword v30, v10, s[62:63] sc1")
    a("s_add_u32 s52, s52, 1")
    a("s_waitcnt vmcnt(0)")
    a(f"s_cmp_lt_u32 s52, {SPIN_LIMIT}")
    a("s_cbranch_scc1 KB_xcc_loop")
    a.label("KB_xcc_known")
    a("v_cmp_ne_u32 vcc, s69, v30")
    if not force_fence: a("s_cbranch_vccz KB_xcc_done")
    a("s_mov_b32 s68, 0")
    a("s_branch KB_xcc_done")
    for lab, off in (("KB_sg1", 0), ("KB_sg2", 128)):
        a.label(f"{lab}_fence")
        a("buffer_wbl2 sc1")
        a("s_waitcnt vmcnt(0)")
        a("s_mov_b64 exec, 1")
        a(f"global_store_byte v10, v11, s[66:67] offset:{off} sc0 sc1")
        a("s_mov_b64 exec, -1")
        a(f"s_branch {lab}_done")
    for lab, off in (("KB_pl1", 0), ("KB_pl2", 128)):
        a.label(f"{lab}_fence")
        a(f"global_load_dword v31, v30, s[66:67] offset:{off} sc0 sc1")
        a("s_add_u32 s52, s52, 1")
        a("s_waitcnt vmcnt(0)")
        a("v_cmp_ne_u32 vcc, 0x01010101, v31")
        a(f"s_cbranch_vccz {lab}_fdone")
        a(f"s_cmp_lt_u32 s52, {SPIN_LIMIT}")
        a(f"s_cbranch_scc1 {lab}_fence")
        a.label(f"{lab}_fdone")
        a("buffer_inv sc1")
        a("s_waitcnt vmcnt(0) lgkmcnt(0)")
        a(f"s_branch {lab}_done")

    a.label("KB_slow")
    vm.q = list(vm_at_slow)
    a("s_waitcnt vmcnt(0)"); vm.clear()
    for k, it in enumerate(wo_items(NPRE, 98) + late):
        emit_item(it)
        if it[0] == "s" and "m0" in it[1]: a("s_nop 0")
        if len(vm.q) >= 32: a("s_waitcnt vmcnt(0)"); vm.clear()
    MX = P + 8
    for t in range(4): a(f"v_mov_b32 v{MX+t}, 0xff800000")
    for i in range(64): a(f"v_accvgpr_write_b32 a{i}, 0")
    a("s_sub_u32 s52, s52, 4096")
    a("s_mov_b32 s61, 0")
    a.label("KB_s1")
    a("s_add_u32 s53, s52, s61")
    for i in range(2): a(f"buffer_load_dwordx4 {vr(KVR+4*i,4)}, v1, s[16:19], s53 offen offset:{1024*i}")
    a("s_waitcnt vmcnt(0)")
    for t in range(4):
        a(mfma32(vr(S,16), vr(KVR,4), vr(Q+8*t,4), "0"))
        a(mfma32(vr(S,16), vr(KVR+4,4), vr(Q+8*t+4,4), vr(S,16)))
        a("s_nop 7")
        a("s_nop 3")
        for i in range(8): a(f"v_max3_f32 v{MX+t}, v{S+2*i}, v{S+2*i+1}, v{MX+t}")
    a("s_add_u32 s61, s61, 4096")
    a("s_cmp_lt_u32 s61, 0x10000")
    a("s_cbranch_scc1 KB_s1")
    for t in range(4):
        half_sum(a, MX+t, 12, "v_max_f32")
        a(f"s_add_u32 s53, s3, {t+1}")
        a("s_and_b32 s53, s53, 3")
        a("s_lshl_b32 s53, s53, 10")
        a("s_lshl_b32 s61, s3, 8")
        a("s_add_u32 s53, s53, s61")
        a("v_add_u32 v12, s53, v3")
        a(f"ds_write_b32 v12, v{MX+t}")
    a("s_waitcnt lgkmcnt(0)")
    a("s_barrier")
    for t in range(4):
        a(f"s_add_u32 s53, s3, {t+1}")
        a("s_and_b32 s53, s53, 3")
        a("s_lshl_b32 s53, s53, 10")
        a("v_add_u32 v12, s53, v3")
        for w in range(4): a(f"ds_read_b32 v{S+w}, v12 offset:{256*w}")
        a("s_waitcnt lgkmcnt(0)")
        a(f"v_max3_f32 v{MX+t}, v{S}, v{S+1}, v{S+2}")
        a(f"v_max_f32 v{MX+t}, v{MX+t}, v{S+3}")
    a("s_barrier")
    a("s_mov_b32 s61, 0")
    a.label("KB_s2")
    a("s_add_u32 s53, s52, s61")
    for i in range(4): a(f"buffer_load_dwordx4 {vr(KVR+4*i,4)}, v1, s[16:19], s53 offen offset:{1024*i}")
    a("s_waitcnt vmcnt(0)")
    for t in range(4):
        a(mfma32(vr(S,16), vr(KVR,4), vr(Q+8*t,4), "0"))
        a(mfma32(vr(S,16), vr(KVR+4,4), vr(Q+8*t+4,4), vr(S,16)))
        a("s_nop 7")
        a("s_nop 3")
        for i in range(16): a(f"v_sub_f32 v{S+i}, v{S+i}, v{MX+t}")
        for i in range(16): a(f"v_exp_f32 v{S+i}, v{S+i}")
        a("s_nop 0")
        for i in range(8): a(f"v_cvt_pk_bf16_f32 v{P+i}, v{S+2*i}, v{S+2*i+1}")
        a("s_nop 1")
        a(mfma32(ar(16*t,16), vr(KVR+8,4), vr(P,4), ar(16*t,16)))
        a(mfma32(ar(16*t,16), vr(KVR+12,4), vr(P+4,4), ar(16*t,16)))
    a("s_add_u32 s61, s61, 4096")
    a("s_cmp_lt_u32 s61, 0x10000")
    a("s_cbranch_scc1 KB_s2")
    a("s_nop 7")
    a("s_nop 3")
    for t in range(3):
        for q in range(4): a(redw(t, q)[1])
    a("s_branch KB_red")
    a.label("KB_code_end")
    return kd(n, 512, 96, 256), f"; @launch kernel={n} grid=(256,1,1) block=(256,1,1) lds={KB_LDS}"


def build(force_slow=False, extra=0, force_fence=False):
    a = Asm()
    parts = [gen_k1(a), gen_kb(a, force_slow, force_fence)]
    launches = [p[1] for p in parts]
    kds = [p[0] for p in parts]
    if extra:
        header(a, "nop_kernel")
        a("s_endpgm")
        kds.append(kd("nop_kernel", 8, 16, 8))
        launches += ["; @launch kernel=nop_kernel grid=(256,1,1) block=(64,1,1) lds=0"] * extra
    out = "\n".join(launches) + "\n"
    out += '.amdgcn_target "amdgcn-amd-amdhsa--gfx950"\n.text\n'
    out += a.text()
    out += '.section .rodata,"a"\n' + "".join(kds)
    return out

if __name__ == "__main__":
    import argparse
    ap = argparse.ArgumentParser()
    ap.add_argument("-o", default="v2.s")
    ap.add_argument("--slow", action="store_true")
    ap.add_argument("--fence", action="store_true")
    ap.add_argument("--opt", default="")
    ap.add_argument("--extra", type=int, default=0)
    ap.add_argument("--stamps", default="", help="up to six stamp names for the fused kernel")
    args = ap.parse_args()
    for kv in args.opt.split(","):
        if kv:
            k_, _, v_ = kv.partition("=")
            OPT[k_] = int(v_) if v_ else 1
    STAMPS = bool(args.stamps)
    STAMP_SET = args.stamps.split(",")
    txt = build(args.slow, args.extra, args.fence)
    open(args.o, "w").write(txt)
    import hazard
    print("hazards:", hazard.check(txt), "waits:", 0 if STAMPS else hazard.waitcheck(txt))
```

```python
import math, struct, sys

NAME = "sequential_preLN__grouped_kv_mqa__dense_activation_mish__prompt"

QF   = 0x000000
KV   = 0x200000
KMAX = 0x240000
SYNC = 0x248000
WOF  = 0x250000
W1F  = 0x300000
W2F  = 0x500000
HN   = 0x700000
PART = 0xB00000
WS_SIZE = PART + 32*8*8*7168

X_BYTES = 2048*896
WQ_BYTES = 448*896
WK_BYTES = 448*56
W1_BYTES = 448*3584
W2_BYTES = 1792*896

def f2u(f): return struct.unpack("<I", struct.pack("<f", f))[0]
def hexf(f): return "0x%08x" % f2u(f)
LOG2E = math.log2(math.e)
QSCALE = LOG2E / math.sqrt(28.0)
ONES_BF = "0x3f803f80"

class Asm:
    def __init__(self):
        self.L = []
    def __call__(self, s):
        for ln in s.split("\n"):
            ln = ln.strip()
            if ln: self.L.append("    " + ln)
    def label(self, s): self.L.append(s + ":")
    def c(self, s): self.L.append("    ; " + s)
    def text(self): return "\n".join(self.L) + "\n"

def vr(b, n=1): return f"v{b}" if n == 1 else f"v[{b}:{b+n-1}]"
def ar(b, n=1): return f"a{b}" if n == 1 else f"a[{b}:{b+n-1}]"
def sr(b, n=1): return f"s{b}" if n == 1 else f"s[{b}:{b+n-1}]"

def srd(a, d, lo, hi, nbytes):
    a(f"s_mov_b32 s{d}, s{lo}")
    a(f"s_mov_b32 s{d+1}, s{hi}")
    a(f"s_mov_b32 s{d+2}, {nbytes if isinstance(nbytes, str) else hex(nbytes)}")
    a(f"s_mov_b32 s{d+3}, 0x20000")

def header(a, name):
    a.L.append(f".globl {name}")
    a.L.append(".p2align 12")
    a.L.append(".p2align 8")
    a.L.append(f".type {name},@function")
    a.label(name)

def kd(name, vgpr, sgpr, accum):
    return f""".p2align 6
.amdhsa_kernel {name}
  .amdhsa_next_free_vgpr {vgpr}
  .amdhsa_next_free_sgpr {max(96, sgpr) if STAMPS else sgpr}
  .amdhsa_accum_offset {accum}
  .amdhsa_group_segment_fixed_size 0
  .amdhsa_kernarg_size 96
  .amdhsa_user_sgpr_count 2
  .amdhsa_user_sgpr_kernarg_segment_ptr 1
  .amdhsa_system_sgpr_workgroup_id_x 1
.end_amdhsa_kernel
"""

STAMPS = False
STAMP_BASE = 0x8000000
def stamp(a, i):
    if STAMPS: a(f"s_memrealtime s[{72+2*i}:{73+2*i}]")
STAMP_SET = []
OPT = {}
def SM(k):
    return {0: '', 1: ' sc1', 2: ' sc0 sc1', 3: ' nt', 4: ' sc1 nt', 5: ' sc0 sc1 nt'}[int(OPT.get(k, {'pm': 1, 'k1m': 1}.get(k, 0)))]
def nstamp(a, name):
    if STAMPS and name in STAMP_SET:
        i = 1 + STAMP_SET.index(name)
        a(f"{'s_memtime' if OPT.get('cyc') else 's_memrealtime'} s[{72+2*i}:{73+2*i}]")
def stamp_init(a):
    if STAMPS:
        for i in range(8): a(f"s_mov_b32 s{72+2*i}, 0")
        stamp(a, 0)
        if OPT.get("dbg"): a("s_load_dwordx2 s[92:93], s[0:1], 80")
def fin(a, kidx, wslo):
    if STAMPS and OPT.get("dbg"):
        stamp(a, 7)
        a("s_mov_b64 exec, 0xff")
        a("s_waitcnt lgkmcnt(0)")
        a("s_not_b32 s72, s72")
        a("v_mbcnt_lo_u32_b32 v1, -1, 0")
        for i in range(8):
            a(f"v_mov_b32 v2, s{72+2*i}")
            a(f"v_cmp_eq_u32 vcc, {i}, v1")
            a("v_cndmask_b32 v0, v0, v2, vcc")
        a("v_lshlrev_b32 v1, 2, v1")
        a(f"s_add_u32 s92, s92, {32 if kidx else 512}")
        a("s_addc_u32 s93, s93, 0")
        a("s_and_b32 s90, s2, 31")
        a("s_lshl_b32 s91, s3, 5")
        a("s_or_b32 s90, s90, s91")
        a("s_cmp_eq_u32 s90, 5")
        a("s_cselect_b64 exec, exec, 0")
        a("global_atomic_umax v1, v0, s[92:93]")
    elif STAMPS:
        stamp(a, 7)
        a("s_mov_b64 exec, 1")
        a("s_waitcnt lgkmcnt(0)")
        for i in range(8): a(f"v_mov_b32 v{i}, s{72+2*i}")
        srd(a, 68, wslo, wslo+1, 0x10000000)
        a("s_lshl_b32 s90, s2, 3")
        a("s_add_u32 s90, s90, s3")
        a(f"s_add_u32 s90, s90, {kidx*4096}")
        a("s_lshl_b32 s90, s90, 5")
        a(f"s_add_u32 s90, s90, {STAMP_BASE}")
        a("v_mov_b32 v8, 0")
        a("buffer_store_dwordx4 v[0:3], v8, s[68:71], s90 offen")
        a("buffer_store_dwordx4 v[4:7], v8, s[68:71], s90 offen offset:16")
        if kidx == 1 and "pa" in OPT:
            lab = f"PRB{len(a.L)}"
            a("s_lshl_b32 s91, s3, 8")
            a("s_or_b32 s91, s91, s2")
            a("s_cmp_lg_u32 s91, 5")
            a(f"s_cbranch_scc1 {lab}_e")
            a(f"s_add_u32 s68, s68, {STAMP_BASE + 5*8*32}")
            a("s_addc_u32 s69, s69, 0")
            a("s_load_dwordx8 s[40:47], s[68:69], 0")
            a("s_waitcnt lgkmcnt(0)")
            reg = lambda i: f"s{40+i}" if i < 8 else f"s{72+2*(i-8)}"
            a(f"s_sub_u32 s91, {reg(int(OPT['pb']))}, {reg(int(OPT['pa']))}")
            a("s_lshl_b32 s91, s91, 3")
            a("s_min_u32 s91, s91, 40000")
            a("s_add_u32 s91, s91, s86")
            a.label(lab)
            a("s_memrealtime s[48:49]")
            a("s_waitcnt lgkmcnt(0)")
            a("s_sub_u32 s50, s48, s91")
            a("s_cmp_lt_i32 s50, 0")
            a(f"s_cbranch_scc1 {lab}")
            a.label(lab + "_e")
    a("s_endpgm")

def mfma32(d, A, B, C): return f"v_mfma_f32_32x32x16_bf16 {d}, {A}, {B}, {C}"
def mfma16(d, A, B, C): return f"v_mfma_f32_16x16x32_bf16 {d}, {A}, {B}, {C}"

def half_sum(a, x, t, op="v_add_f32"):
    a(f"v_mov_b32 v{t}, v{x}")
    a("s_nop 1")
    a(f"v_permlane32_swap_b32 v{t}, v{x}")
    a("s_nop 1")
    a(f"{op} v{x}, v{x}, v{t}")

K1_X, K1_W0, K1_W4, K1_ST, K1_CS = 0, 57344, 114688, 143360, 143872
K1_LDS = 144640

def gen_k1(a):
    n = "k1_kernel"
    header(a, n)
    a("s_cmp_ge_u32 s2, 256")
    a("s_cbranch_scc1 K1_end")
    stamp_init(a)
    a("s_load_dwordx4 s[24:27], s[0:1], 0")
    a("s_load_dwordx4 s[28:31], s[0:1], 16")
    a("s_load_dwordx2 s[32:33], s[0:1], 32")
    a("s_load_dwordx2 s[34:35], s[0:1], 48")
    a("s_load_dwordx2 s[36:37], s[0:1], 64")
    a("s_load_dwordx2 s[38:39], s[0:1], 88")
    a("v_lshrrev_b32 v1, 6, v0")
    a("v_and_b32 v0, 63, v0")
    a("v_readfirstlane_b32 s3, v1")
    a("s_and_b32 s4, s2, 7")
    a("s_lshl_b32 s4, s4, 2")
    a("s_bfe_u32 s6, s2, 0x20003")
    a("s_add_u32 s4, s4, s6")
    a("s_lshr_b32 s5, s2, 5")
    a("v_lshrrev_b32 v2, 5, v0")
    a("v_bfe_u32 v3, v0, 4, 1")
    a("v_bfe_u32 v4, v0, 2, 2")
    a("v_and_b32 v5, 3, v0")
    a("v_lshrrev_b32 v6, 2, v0")
    a("v_lshlrev_b32 v7, 4, v5")
    a("s_cmp_eq_u32 s3, 4")
    a("s_cbranch_scc1 K1_w4")
    a("v_lshrrev_b32 v8, 3, v0")
    a("v_and_b32 v9, 7, v0")
    a("v_lshrrev_b32 v10, 1, v8")
    a("v_xor_b32 v9, v9, v10")
    a("s_and_b32 s6, s3, 1")
    a("s_lshl_b32 s7, s6, 2")
    a("v_xor_b32 v9, s7, v9")
    a("v_mul_u32_u24 v8, 896, v8")
    a("v_lshl_add_u32 v8, v9, 4, v8")
    a("v_mul_u32_u24 v9, 896, v6")
    a("v_add_u32 v9, v9, v7")
    a("s_lshl_b32 s40, s4, 6")
    a("s_lshl_b32 s41, s3, 4")
    a("s_add_u32 s40, s40, s41")
    a("s_mul_i32 s40, s40, 896")
    a("s_mul_i32 s41, s3, 14336")
    a("s_lshl_b32 s42, s5, 1")
    a("s_add_u32 s42, s42, s6")
    a("s_mul_i32 s43, s42, 56")
    a("s_lshr_b32 s44, s3, 1")
    a("s_mul_i32 s45, s44, 224*896")
    a("s_add_u32 s43, s43, s45")
    a("s_mul_i32 s45, s6, 28672")
    a("s_mul_i32 s46, s44, 14336")
    a("s_add_u32 s45, s45, s46")
    a(f"s_add_u32 s45, s45, {K1_W0}")
    a("s_waitcnt lgkmcnt(0)")
    srd(a, 8, 24, 25, X_BYTES)
    srd(a, 12, 26, 27, WQ_BYTES)
    srd(a, 16, 38, 39, WS_SIZE)
    a("s_cmp_ge_u32 s2, 3")
    a("s_cbranch_scc1 K1_noclr")
    for i in range(4): a(f"v_mov_b32 v{12+i}, 0")
    a("s_lshl_b32 s46, s2, 2")
    a("s_add_u32 s46, s46, s3")
    a("s_lshl_b32 s46, s46, 10")
    a(f"s_add_u32 s46, s46, {SYNC}")
    a("v_lshlrev_b32 v11, 4, v0")
    a("buffer_store_dwordx4 v[12:15], v11, s[16:19], s46 offen")
    a.label("K1_noclr")
    for j in range(14):
        a("s_mov_b32 m0, s41")
        a("s_add_u32 s41, s41, 1024")
        a("buffer_load_dwordx4 v8, s[8:11], s40 offen lds")
        a(f"s_add_u32 s40, s40, {128 if j != 6 else 8*896 - 6*128}")
        a("s_mov_b32 m0, s45")
        a("s_add_u32 s45, s45, 1024")
        a("buffer_load_dwordx4 v9, s[12:15], s43 offen lds")
        a(f"s_add_u32 s43, s43, {16*896}")
    a("v_lshlrev_b32 v10, 3, v2")
    a("v_add_u32 v10, v10, v4")
    a("v_lshlrev_b32 v10, 6, v10")
    a("v_lshl_add_u32 v10, v3, 5, v10")
    a("v_lshl_add_u32 v10, v5, 3, v10")
    a("s_mul_i32 s46, s6, 28672")
    a(f"s_add_u32 s46, s46, {K1_W0}")
    a("v_add_u32 v10, s46, v10")
    a("s_mov_b32 s47, 0")
    a("s_mul_i32 s46, s3, 14336")
    a("v_mul_u32_u24 v11, 7168, v2")
    a("v_and_b32 v12, 7, v6")
    a("v_lshl_add_u32 v11, v12, 7, v11")
    a("v_lshl_add_u32 v11, v5, 5, v11")
    a("v_add_u32 v11, s46, v11")
    stamp(a, 1)
    a("s_waitcnt vmcnt(0)")
    stamp(a, 2)
    a("s_barrier")
    stamp(a, 3)
    for kg in range(7):
        a(f"ds_read_b128 {vr(32+8*kg,4)}, v11 offset:{kg*1024}")
        a(f"ds_read_b128 {vr(36+8*kg,4)}, v11 offset:{kg*1024+16}")
    for i in range(4): a(f"v_mov_b32 v{20+i}, 0")
    a(f"s_mov_b32 s48, {ONES_BF}")
    for q in range(14):
        a(f"s_waitcnt lgkmcnt({13-q})")
        for i in range(4):
            r = 32 + 4*q + i
            a(f"v_dot2c_f32_bf16 v{20+(i&1)}, s48, v{r}")
            a(f"v_dot2c_f32_bf16 v{22+(i&1)}, v{r}, v{r}")
    a("s_nop 2")
    a("v_add_f32 v20, v20, v21")
    a("v_add_f32 v22, v22, v23")
    a("s_nop 1")
    a("v_add_f32_dpp v20, v20, v20 quad_perm:[1,0,3,2] row_mask:0xf bank_mask:0xf")
    a("v_add_f32_dpp v22, v22, v22 quad_perm:[1,0,3,2] row_mask:0xf bank_mask:0xf")
    a("s_nop 1")
    a("v_add_f32_dpp v20, v20, v20 quad_perm:[2,3,0,1] row_mask:0xf bank_mask:0xf")
    a("v_add_f32_dpp v22, v22, v22 quad_perm:[2,3,0,1] row_mask:0xf bank_mask:0xf")
    a(f"v_mul_f32 v20, {hexf(1.0/448)}, v20")
    a(f"v_mul_f32 v22, {hexf(1.0/448)}, v22")
    a("v_fma_f32 v22, -v20, v20, v22")
    a("v_max_f32 v22, 0, v22")
    a(f"v_add_f32 v22, {hexf(1e-5)}, v22")
    a("v_rsq_f32 v22, v22")
    a("s_lshl_b32 s46, s3, 6")
    a(f"s_add_u32 s46, s46, {K1_ST}")
    a("v_mul_f32 v20, -v20, v22")
    a("v_lshl_add_u32 v12, v6, 2, s46")
    a("ds_write_b32 v12, v22")
    a("ds_write_b32 v12, v20 offset:256")
    a("s_branch K1_proj")

    a.label("K1_w4")
    a("s_waitcnt lgkmcnt(0)")
    srd(a, 16, 38, 39, WS_SIZE)
    a("s_cmp_ge_u32 s5, 4")
    a("s_cbranch_scc1 K1_prep")
    a("s_lshr_b32 s47, s5, 1")
    a("s_cmp_eq_u32 s47, 0")
    a("s_cselect_b32 s12, s28, s30")
    a("s_cselect_b32 s13, s29, s31")
    a(f"s_mov_b32 s14, {WK_BYTES}")
    a("s_mov_b32 s15, 0x20000")
    a("s_add_u32 s47, s47, 1")
    a("s_and_b32 s44, s5, 1")
    a("v_mul_u32_u24 v9, 56, v6")
    a("v_add_u32 v9, v9, v7")
    a("s_mov_b32 s43, 0")
    a(f"s_mov_b32 s45, {K1_W4}")
    for j in range(28):
        a("s_mov_b32 m0, s45")
        a("s_add_u32 s45, s45, 1024")
        a("buffer_load_dwordx4 v9, s[12:15], s43 offen lds")
        a(f"s_add_u32 s43, s43, {16*56}")
    a("v_lshlrev_b32 v10, 3, v2")
    a("v_add_u32 v10, v10, v4")
    a("v_lshlrev_b32 v10, 6, v10")
    a("v_lshl_add_u32 v10, v3, 5, v10")
    a("v_lshl_add_u32 v10, v5, 3, v10")
    a(f"v_add_u32 v10, {K1_W4}, v10")
    stamp(a, 1)
    a("s_waitcnt vmcnt(0)")
    stamp(a, 2)
    a("s_barrier")
    stamp(a, 3)

    a.label("K1_proj")
    stamp(a, 4)
    a("v_and_b32 v13, 31, v0")
    a("v_bfe_u32 v14, v13, 1, 2")
    a("v_lshrrev_b32 v15, 2, v13")
    a("v_and_b32 v15, 4, v15")
    a("v_or_b32 v14, v14, v15")
    a("v_xor_b32 v14, v14, v2")
    a("v_lshrrev_b32 v15, 3, v13")
    a("v_mul_u32_u24 v15, 7168, v15")
    a("v_and_b32 v16, 7, v13")
    a("v_lshl_add_u32 v15, v16, 7, v15")
    a("s_mul_i32 s46, s44, 28672")
    a("v_add_u32 v15, s46, v15")
    for j in range(4):
        a(f"v_xor_b32 v16, {2*j}, v14")
        a(f"v_lshl_add_u32 v{24+j}, v16, 4, v15")
    a(f"s_mov_b32 s48, {ONES_BF}")
    a("v_mov_b32 v28, 0")
    a("v_mov_b32 v29, 0")
    a("s_cmp_eq_u32 s47, 2")
    a("s_cbranch_scc1 K1_projv")
    RING = 4
    def rd(ks):
        b = 32 + 8*(ks % RING)
        a(f"ds_read_b64_tr_b16 {vr(b,2)}, v10 offset:{ks*1024}")
        a(f"ds_read_b64_tr_b16 {vr(b+2,2)}, v10 offset:{ks*1024+256}")
        a(f"ds_read_b128 {vr(b+4,4)}, v{24+(ks&3)} offset:{(ks>>2)*1024}")
    def loop(swap):
        for ks in range(RING-1): rd(ks)
        for ks in range(28):
            if ks + RING - 1 < 28: rd(ks + RING - 1)
            out = min(RING - 1, 27 - ks) * 3
            a(f"s_waitcnt lgkmcnt({out})")
            b = 32 + 8*(ks % RING)
            W, X = vr(b,4), vr(b+4,4)
            C = "0" if ks == 0 else vr(64,16)
            a(mfma32(vr(64,16), X, W, C) if swap else mfma32(vr(64,16), W, X, C))
            for i in range(4): a(f"v_dot2c_f32_bf16 v{28+(i&1)}, s48, v{b+i}")
    loop(False)
    stamp(a, 5)
    a("s_nop 2")
    a("v_add_f32 v28, v28, v29")
    half_sum(a, 28, 29)
    a("s_lshl_b32 s46, s3, 7")
    a(f"s_add_u32 s46, s46, {K1_CS}")
    a("v_lshl_add_u32 v16, v13, 2, s46")
    a("ds_write_b32 v16, v28")
    a("v_lshl_add_u32 v16, v2, 4, s46")
    a("s_waitcnt lgkmcnt(0)")
    for i in range(4): a(f"ds_read_b128 {vr(32+4*i,4)}, v16 offset:{32*i}")
    a("s_barrier")
    a("s_lshl_b32 s46, s44, 7")
    a(f"s_add_u32 s46, s46, {K1_ST}")
    a("v_lshl_add_u32 v16, v13, 2, s46")
    a("ds_read_b32 v20, v16")
    a("ds_read_b32 v21, v16 offset:256")
    a("s_cmp_eq_u32 s47, 0")
    a(f"s_cselect_b32 s49, {hexf(QSCALE)}, 1.0")
    a("s_cselect_b32 s50, 0, 0x3f80")
    a("s_waitcnt lgkmcnt(0)")
    a("v_mul_f32 v20, s49, v20")
    a("v_mul_f32 v21, s49, v21")
    for i in range(16):
        a(f"v_mul_f32 v{64+i}, v{64+i}, v20")
        a(f"v_fmac_f32 v{64+i}, v{32+i}, v21")
    for i in range(8): a(f"v_cvt_pk_bf16_f32 v{48+i}, v{64+2*i}, v{65+2*i}")
    a("v_cmp_ne_u32 s[52:53], 0, v2")
    a("s_nop 1")
    a("v_cndmask_b32 v54, v54, 0, s[52:53]")
    a("v_cndmask_b32 v55, v55, 0, s[52:53]")
    a("s_cmp_eq_u32 s47, 0")
    a("s_cbranch_scc0 K1_epk")
    a("v_lshrrev_b32 v16, 3, v13")
    a("v_lshlrev_b32 v16, 13, v16")
    a("v_lshl_add_u32 v16, v2, 9, v16")
    a("v_and_b32 v17, 7, v13")
    a("v_lshl_add_u32 v16, v17, 4, v16")
    a("s_lshl_b32 s46, s4, 3")
    a("s_lshl_b32 s49, s44, 2")
    a("s_add_u32 s46, s46, s49")
    a("s_lshl_b32 s46, s46, 13")
    a("s_lshr_b32 s49, s42, 2")
    a("s_lshl_b32 s49, s49, 11")
    a("s_add_u32 s46, s46, s49")
    a("s_and_b32 s49, s42, 3")
    a("s_lshl_b32 s49, s49, 7")
    a("s_add_u32 s46, s46, s49")
    if QF: a(f"s_add_u32 s46, s46, {QF}")
    a(f"buffer_store_dwordx4 v[48:51], v16, s[16:19], s46 offen{SM('k1m')}")
    a(f"buffer_store_dwordx4 v[52:55], v16, s[16:19], s46 offen offset:1024{SM('k1m')}")
    fin(a, 0, 38)
    a.label("K1_epk")
    a("v_mov_b32 v20, 0")
    for i in range(8): a(f"v_dot2c_f32_bf16 v20, v{48+i}, v{48+i}")
    a("v_mov_b32 v22, s50")
    a("v_cndmask_b32 v54, v54, v22, s[52:53]")
    a("s_nop 1")
    half_sum(a, 20, 21)
    a("s_nop 1")
    for m in ("quad_perm:[1,0,3,2]", "quad_perm:[2,3,0,1]", "row_half_mirror", "row_mirror"):
        a(f"v_max_f32_dpp v20, v20, v20 {m} row_mask:0xf bank_mask:0xf")
        a("s_nop 1")
    a("v_mov_b32 v21, v20")
    a("s_nop 1")
    a("v_permlane16_swap_b32 v21, v20")
    a("s_nop 1")
    a("v_max_f32 v20, v20, v21")
    a("s_lshl_b32 s46, s4, 1")
    a("s_add_u32 s46, s46, s44")
    a("s_lshl_b32 s49, s46, 2")
    a(f"s_add_u32 s49, s49, {KMAX}")
    a("s_lshl_b32 s46, s46, 12")
    a(f"s_add_u32 s46, s46, {KV}")
    a("v_lshlrev_b32 v16, 4, v0")
    a("v_mov_b32 v17, 0")
    a(f"buffer_store_dwordx4 v[48:51], v16, s[16:19], s46 offen{SM('k1m')}")
    a(f"buffer_store_dwordx4 v[52:55], v16, s[16:19], s46 offen offset:1024{SM('k1m')}")
    a("s_mov_b64 exec, 1")
    a("buffer_store_dword v20, v17, s[16:19], s49 offen")
    fin(a, 0, 38)
    a.label("K1_projv")
    loop(True)
    stamp(a, 5)
    a("s_nop 2")
    a("v_add_f32 v28, v28, v29")
    half_sum(a, 28, 29)
    a("s_barrier")
    a("s_lshl_b32 s46, s44, 7")
    a(f"s_add_u32 s46, s46, {K1_ST}")
    a("v_lshl_add_u32 v16, v2, 4, s46")
    for i in range(4): a(f"ds_read_b128 {vr(32+4*i,4)}, v16 offset:{32*i}")
    for i in range(4): a(f"ds_read_b128 {vr(48+4*i,4)}, v16 offset:{256+32*i}")
    a("s_waitcnt lgkmcnt(0)")
    for i in range(16):
        a(f"v_mul_f32 v{64+i}, v{64+i}, v{32+i}")
        a(f"v_fmac_f32 v{64+i}, v{48+i}, v28")
    for i in range(8): a(f"v_cvt_pk_bf16_f32 v{48+i}, v{64+2*i}, v{65+2*i}")
    a("v_cmp_eq_u32 s[52:53], 28, v13")
    a(f"v_mov_b32 v21, {ONES_BF}")
    a("s_nop 0")
    a("v_cndmask_b32 v21, 0, v21, s[52:53]")
    a("v_cmp_lt_u32 s[52:53], 27, v13")
    a("s_nop 1")
    for i in range(8): a(f"v_cndmask_b32 v{48+i}, v{48+i}, v21, s[52:53]")
    a("s_lshl_b32 s46, s4, 1")
    a("s_add_u32 s46, s46, s44")
    a("s_lshl_b32 s46, s46, 12")
    a(f"s_add_u32 s46, s46, {KV}")
    a("v_lshlrev_b32 v16, 4, v0")
    a(f"buffer_store_dwordx4 v[48:51], v16, s[16:19], s46 offen offset:2048{SM('k1m')}")
    a(f"buffer_store_dwordx4 v[52:55], v16, s[16:19], s46 offen offset:3072{SM('k1m')}")
    fin(a, 0, 38)

    a.label("K1_prep")
    a("s_lshl_b32 s40, s4, 2")
    a("s_add_u32 s40, s40, s5")
    a("s_sub_u32 s40, s40, 4")
    a("s_cmp_ge_u32 s40, 126")
    a("s_cbranch_scc1 K1_end")
    a("v_lshlrev_b32 v10, 2, v2")
    a("v_add_u32 v10, v10, v4")
    a("v_lshlrev_b32 v10, 6, v10")
    a("v_lshl_add_u32 v10, v3, 5, v10")
    a("v_lshl_add_u32 v10, v5, 3, v10")
    a("s_mov_b32 s50, 512")
    a("s_mov_b32 s51, 1024")
    a("s_mov_b32 s52, 2048")
    a("s_mov_b32 s53, 1024")
    a("s_cmp_ge_u32 s40, 56")
    a("s_cbranch_scc1 K1_prep2")
    srd(a, 12, 34, 35, W1_BYTES)
    a("s_mov_b32 s41, 3584")
    a("s_lshl_b32 s43, s40, 6")
    a("s_mul_i32 s46, s40, 28672")
    a(f"s_add_u32 s46, s46, {W1F}")
    a("s_branch K1_prep4")
    a.label("K1_prep2")
    a("s_cmp_ge_u32 s40, 112")
    a("s_cbranch_scc1 K1_prep3")
    srd(a, 12, 36, 37, W2_BYTES)
    a("s_mov_b32 s41, 896")
    a("s_sub_u32 s40, s40, 56")
    a("s_lshr_b32 s6, s40, 2")
    a("s_and_b32 s7, s40, 3")
    a("s_mul_i32 s43, s7, 448*896")
    a("s_lshl_b32 s44, s6, 6")
    a("s_add_u32 s43, s43, s44")
    a("s_mul_i32 s46, s40, 28672")
    a(f"s_add_u32 s46, s46, {W2F}")
    a("s_branch K1_prep4")
    a.label("K1_prep3")
    srd(a, 12, 32, 33, WQ_BYTES)
    a("s_mov_b32 s41, 896")
    a("s_sub_u32 s40, s40, 112")
    a("s_lshl_b32 s43, s40, 6")
    a("s_lshl_b32 s6, s40, 1")
    for r in (46, 53):
        a("s_mul_i32 s7, s6, 37")
        a("s_lshr_b32 s7, s7, 8")
        a(f"s_mul_i32 s{r}, s7, {100352 - 7*1024}")
        a("s_lshl_b32 s7, s6, 10")
        a(f"s_add_u32 s{r}, s{r}, s7")
        a("s_add_u32 s6, s6, 1")
    a("s_sub_u32 s53, s53, s46")
    a(f"s_add_u32 s46, s46, {WOF}")
    a("v_lshrrev_b32 v10, 4, v0")
    a("v_lshlrev_b32 v10, 3, v10")
    a("v_add_u32 v10, v10, v4")
    a("v_lshlrev_b32 v10, 6, v10")
    a("v_lshl_add_u32 v10, v5, 3, v10")
    a("s_mov_b32 s50, 256")
    a("s_mov_b32 s51, 32")
    a("s_mov_b32 s52, 7168")
    a.label("K1_prep4")
    a("v_mul_lo_u32 v9, v6, s41")
    a("v_add_u32 v9, v9, v7")
    a("s_lshl_b32 s41, s41, 4")
    a(f"s_mov_b32 s45, {K1_W4}")
    for j in range(28):
        a("s_mov_b32 m0, s45")
        a("s_add_u32 s45, s45, 1024")
        a("buffer_load_dwordx4 v9, s[12:15], s43 offen lds")
        a("s_add_u32 s43, s43, s41")
    a(f"v_add_u32 v10, {K1_W4}, v10")
    a("v_add_u32 v11, s50, v10")
    a("v_add_u32 v12, s51, v10")
    a("v_add_u32 v13, s51, v11")
    a("v_lshlrev_b32 v16, 4, v0")
    a("s_add_u32 s47, s46, s53")
    stamp(a, 1)
    a("s_waitcnt vmcnt(0)")
    stamp(a, 2)
    a("s_barrier")
    stamp(a, 3)
    def prd(p):
        b = 32 + 8*(p % 4)
        a(f"ds_read_b64_tr_b16 {vr(b,2)}, v10 offset:{p*2048}")
        a(f"ds_read_b64_tr_b16 {vr(b+2,2)}, v11 offset:{p*2048}")
        a(f"ds_read_b64_tr_b16 {vr(b+4,2)}, v12 offset:{p*2048}")
        a(f"ds_read_b64_tr_b16 {vr(b+6,2)}, v13 offset:{p*2048}")
    prd(0); prd(1)
    for p in range(14):
        if p + 2 < 14: prd(p + 2)
        a(f"s_waitcnt lgkmcnt({4*min(2, 13-p)})")
        b = 32 + 8*(p % 4)
        a(f"buffer_store_dwordx4 {vr(b,4)}, v16, s[16:19], s46 offen{SM('k1m')}")
        a(f"buffer_store_dwordx4 {vr(b+4,4)}, v16, s[16:19], s47 offen{SM('k1m')}")
        a("s_add_u32 s46, s46, s52")
        a("s_add_u32 s47, s47, s52")
    a("s_barrier")
    fin(a, 0, 38)
    a.label("K1_end")
    a("s_endpgm")
    return kd(n, 96, 64, 96), f"; @launch kernel={n} grid=(256,1,1) block=(320,1,1) lds={K1_LDS}"

L_RED, L_OB, L_WO, L_ST, L_DUMMY, L_BIAS, L_HT = 0, 49152, 57344, 147456, 148480, 149504, 150528
L_HN, L_ACT = 0, 57344
KB_LDS = 158720
OB_STRIDE = 912
SHIFT_LIMIT = 40.0
SPIN_LIMIT = 1 << 17
LN2F = math.log(2.0)

class Cnt:
    def __init__(self, name, cap): self.q = []; self.name = name; self.cap = cap
    def issue(self, tag):
        self.q.append(tag)
        assert self.name != "vmcnt" or len(self.q) <= self.cap, (self.name, tag, len(self.q))
    def wait(self, tag):
        if tag not in self.q: return None
        k = len(self.q) - 1 - self.q[::-1].index(tag)
        n = min(len(self.q) - 1 - k, self.cap)
        self.q = self.q[len(self.q)-n:] if n else []
        return f"s_waitcnt {self.name}({n})"
    def clear(self): self.q = []

def cost(t):
    mn = t.split()[0]
    if mn.startswith(("v_exp", "v_rcp", "v_rsq", "v_sqrt")): return 8
    if mn.startswith(("ds_write_b128", "global_store")): return 20
    if mn.startswith(("ds_", "global_", "buffer_")): return 12
    if mn.startswith(("v_cvt_pk", "v_fma_")): return 5
    return 4.3

def gen_kb(a, force_slow=False, force_fence=False):
    n = "kb_kernel"
    header(a, n)
    vm = Cnt("vmcnt", 63); lg = Cnt("lgkmcnt", 15)
    def V(text, tag="-"):
        if len(vm.q) >= 63:
            a("s_waitcnt vmcnt(48)"); vm.q = vm.q[-48:]
        a(text); vm.issue(tag)
    def D(text, tag="-"): a(text); lg.issue(tag)
    def WV(tag):
        w = vm.wait(tag)
        if w: a(w)
    def WL(tag):
        w = lg.wait(tag)
        if w: a(w)
    def add64(d, s, off):
        a(f"s_add_u32 s{d}, s{s}, {off}")
        a(f"s_addc_u32 s{d+1}, s{s+1}, 0")
    XR, Q, KVR, S, P, WOV = 16, 32, 64, 96, 128, 144
    NPRE = OPT.get('npre', 0)
    a("s_cmp_ge_u32 s2, 256")
    a("s_cbranch_scc1 KB_end")
    stamp_init(a)
    a("s_load_dwordx2 s[8:9], s[0:1], 88")
    a("s_load_dwordx2 s[10:11], s[0:1], 0")
    a("s_load_dwordx2 s[12:13], s[0:1], 72")
    a("s_load_dwordx2 s[14:15], s[0:1], 56")
    a("v_lshrrev_b32 v1, 6, v0")
    a("v_and_b32 v0, 63, v0")
    a("v_readfirstlane_b32 s3, v1")
    a("s_lshr_b32 s7, s2, 3")
    a("s_and_b32 s4, s2, 7")
    a("s_lshl_b32 s4, s4, 2")
    a("s_lshr_b32 s5, s7, 3")
    a("s_add_u32 s4, s4, s5")
    a("s_and_b32 s5, s7, 7")
    a("s_lshl_b32 s6, s4, 3")
    a("s_add_u32 s6, s6, s5")
    a("v_lshlrev_b32 v1, 4, v0")
    a("v_lshrrev_b32 v2, 5, v0")
    a("v_lshlrev_b32 v3, 2, v0")
    a("s_lshl_b32 s52, s3, 16")
    a(f"s_add_u32 s52, s52, {KV + 4096}")
    a("s_lshl_b32 s53, s5, 13")
    a("s_add_u32 s53, s53, s52")
    a("s_lshl_b32 s54, s6, 13")
    if QF: a(f"s_add_u32 s54, s54, {QF}")
    a(f"s_mov_b32 s55, {KMAX}")
    for t in range(4):
        a(f"s_add_u32 s{56+t}, s3, {t+1}")
        a(f"s_and_b32 s{56+t}, s{56+t}, 3")
        a(f"s_lshl_b32 s{56+t}, s{56+t}, 11")
        a(f"s_add_u32 s{56+t}, s{56+t}, s54")
    a("s_waitcnt lgkmcnt(0)")
    srd(a, 16, 8, 9, WS_SIZE)
    add64(32, 8, "s53")
    V("buffer_load_dword v4, v3, s[16:19], s55 offen", "kmax")
    for t in range(4):
        V(f"buffer_load_dwordx4 {vr(Q+8*t,4)}, v1, s[16:19], s{56+t} offen", f"q{t}")
        V(f"buffer_load_dwordx4 {vr(Q+8*t+4,4)}, v1, s[16:19], s{56+t} offen offset:1024", f"q{t}")
    NKP = OPT.get('nkp', 3)
    S0, S1, S8 = KVR, KVR + 16, WOV + 96
    kvs = [S0, S1, S8] + [WOV + 16*j for j in range(NKP - 3)]
    kvs += [(S0, S1, S8)[(i - NKP) % 3] for i in range(NKP, 16)]
    def kvld(i, part):
        b = 32 + 2*(i >> 1)
        return f"global_load_dwordx4 {vr(kvs[i]+4*part,4)}, v1, s[{b}:{b+1}] offset:{4096*(i&1) - 4096 + 1024*part}"
    def kvbase(p):
        a(f"s_add_u32 s53, s5, {p}")
        a("s_and_b32 s53, s53, 7")
        a("s_lshl_b32 s53, s53, 13")
        a("s_add_u32 s53, s53, s52")
        add64(32+2*p, 8, "s53")
    NPRO = OPT.get('npro', 2)
    for i in range(NPRO):
        if i and i % 2 == 0: kvbase(i // 2)
        for part in range(4): V(kvld(i, part), f"{'KV'[part>>1]}{i}")
    srd(a, 20, 10, 11, X_BYTES)
    srd(a, 24, 12, 13, X_BYTES)
    srd(a, 28, 14, 15, 3584)
    a(f"s_mov_b32 m0, {L_BIAS}")
    a("s_lshl_b32 s53, s5, 9")
    V("buffer_load_dwordx4 v1, s[28:31], s53 offen lds", "bias")
    a("v_lshlrev_b32 v10, 7, v0")
    a("s_lshl_b32 s53, s7, 2")
    a("s_add_u32 s53, s53, s3")
    a("s_cmp_lt_u32 s53, 49")
    a("s_cbranch_scc0 KB_wcode")
    a("s_lshl_b32 s54, s53, 13")
    a(f"s_add_u32 s54, s54, {WOF}")
    add64(50, 8, "s54")
    a("global_load_dword v31, v10, s[50:51]")
    a("s_branch KB_wdone")
    a.label("KB_wcode")
    a("s_getpc_b64 s[50:51]")
    a.label("KB_pc")
    a("s_sub_u32 s54, s53, 49")
    a("s_lshl_b32 s54, s54, 13")
    a("v_add_u32 v11, s54, v10")
    a("v_min_u32 v11, KB_code_end-KB_pc-4, v11")
    a("global_load_dword v31, v11, s[50:51]")
    a.label("KB_wdone")
    vm.issue("warm")
    a("s_getreg_b32 s69, hwreg(HW_REG_XCC_ID, 0, 4)")
    a("s_add_u32 s69, s69, 1")
    a("s_lshl_b32 s53, s4, 8")
    a(f"s_add_u32 s53, s53, {SYNC}")
    add64(66, 8, "s53")
    a("s_lshl_b32 s53, s4, 7")
    a(f"s_add_u32 s53, s53, {SYNC + 0x2000}")
    add64(62, 8, "s53")
    a("v_mov_b32 v11, s69")
    a("s_lshl_b32 s53, s5, 2")
    a("v_mov_b32 v12, s53")
    a("s_mov_b64 exec, 1")
    V("global_store_dword v12, v11, s[62:63] sc0 sc1", "xccpub")
    a("s_mov_b64 exec, -1")
    a("s_load_dword s70, s[66:67], 0")
    a("s_load_dword s71, s[66:67], 128")
    a("s_mul_i32 s53, s3, 100352")
    a(f"s_add_u32 s53, s53, {WOF + 4096}")
    add64(48, 8, "s53")
    def woreg(f):
        if f < 48: return ar(64+4*f, 4)
        if f < 76: return vr(WOV+4*(f-48), 4)
        if f < 92: return vr(32+4*(f-76), 4)
        return vr(WOV+4*(f-92), 4)
    VOFF = (1, 7, 9, 8)
    def wo_item(f):
        if f < 76:
            b = (48, 96, 98)[f // 32]
            return [("v", f"global_load_dwordx4 {woreg(f)}, v{VOFF[(f%32)//8]}, s[{b}:{b+1}] offset:{1024*(f%8) - 4096}", f"wo{f}")]
        g = (f - 76) // 4
        b = 50 if g & 1 else 98
        it = [("s", f"s_add_u32 m0, s60, {L_WO + 1024*(f-76)}")] if f % 4 == 0 else []
        return it + [("v", f"global_load_lds_dwordx4 v{VOFF[1 + g//2]}, s[{b}:{b+1}] offset:{1024*(f%4)}", f"wo{f}")]
    def emit_item(it):
        if it[0] == "s": a(it[1])
        elif it[0] == "v": V(it[1], it[2])
        elif it[0] == "d": D(it[1], it[2])
        elif it[0] == "wv": WV(it[1])
        elif it[0] == "wl": WL(it[1])
    add64(50, 48, 65536 + 4096)
    add64(96, 48, 32768)
    add64(98, 48, 65536)
    a("v_and_b32 v5, 7, v0")
    a("v_lshrrev_b32 v6, 4, v0")
    a("v_mul_u32_u24 v3, 896, v5")
    a("v_lshl_add_u32 v3, v6, 3, v3")
    a("s_mul_i32 s53, s6, 8*896")
    a("s_mul_i32 s54, s3, 224")
    a("s_add_u32 s53, s53, s54")
    add64(100, 10, "s53")
    xr = [("v", f"global_load_dwordx2 {vr(XR+2*i,2)}, v3, s[100:101] offset:{32*i}", "xr") for i in range(7)]
    a("v_add_u32 v7, 8192, v1")
    a("v_add_u32 v9, 16384, v1")
    for p in range((NPRO + 1) // 2, 8): kvbase(p)
    a("s_mul_i32 s60, s3, 22528")
    for t in range(3):
        a(f"s_add_u32 s53, s3, {t+1}")
        a("s_and_b32 s53, s53, 3")
        a("s_mul_i32 s53, s53, 12288")
        a(f"s_add_u32 s53, s53, {L_RED + 4096*t}")
        a(f"v_add_u32 v{13+t}, s53, v1")
    a("s_lshl_b32 s53, s7, 2")
    a("s_add_u32 s53, s53, s3")
    a("s_mul_i32 s53, s53, 12544")
    a(f"s_add_u32 s53, s53, {W1F + 4096}")
    add64(56, 8, "s53")
    add64(58, 56, W2F - W1F)
    a("s_lshr_b32 s53, s6, 2")
    a("s_mul_i32 s53, s53, 28672")
    a("s_and_b32 s54, s5, 3")
    a("s_lshl_b32 s54, s54, 7")
    a("s_add_u32 s53, s53, s54")
    a("s_mul_i32 s54, s3, 7168")
    a("s_add_u32 s53, s53, s54")
    a(f"s_add_u32 s53, s53, {HN}")
    add64(54, 8, "s53")
    a("v_lshrrev_b32 v10, 2, v0")
    a("v_lshlrev_b32 v10, 7, v10")
    a("v_and_b32 v11, 3, v0")
    a("v_lshlrev_b32 v11, 2, v11")
    a("v_add_u32 v10, v10, v11")
    a("v_add_u32 v11, 8192, v10")
    a("v_min_u32 v12, 13, v0")
    a("v_lshlrev_b32 v12, 9, v12")
    a("v_and_b32 v30, 7, v0")
    a("v_lshlrev_b32 v30, 2, v30")
    late = [("v", "global_load_dword v30, v30, s[62:63] sc1", "xcc"),
            ("v", "global_load_dword v4, v12, s[54:55] sc1", "late")]
    warm = [("v", f"global_load_dword v4, v{10 + (k >> 2)}, s[{b}:{b+1}] offset:{2048*(k & 3) - 4096}", "warm")
            for b in (56, 58) for k in range(7)][:OPT.get('nwarm', 7)]
    if OPT.get("it", 1):
        for w in range(3):
            a(f"s_cmp_eq_u32 s3, {w}")
            a(f"s_cbranch_scc1 KB_CHAIN{w}")
        a("s_branch KB_CHAIN3")
        a.label("KB_tret")
    nstamp(a, "pro")
    WV("kmax")
    for m_ in ("quad_perm:[1,0,3,2]", "quad_perm:[2,3,0,1]", "row_half_mirror", "row_mirror"):
        a(f"v_max_f32_dpp v4, v4, v4 {m_} row_mask:0xf bank_mask:0xf")
        a("s_nop 1")
    a("v_mov_b32 v8, v4")
    a("s_nop 1")
    a("v_permlane16_swap_b32 v8, v4")
    a("s_nop 1")
    a("v_max_f32 v4, v4, v8")
    half_sum(a, 4, 8, "v_max_f32")
    a(f"v_mul_f32 v4, {hexf(1.02)}, v4")
    a("v_cmp_ne_u32 s[64:65], 0, v2")
    B0 = S + 16
    for t in range(4): a(f"v_mov_b32 v{B0+t}, 0")
    for t in range(4):
        WV(f"q{t}")
        for i in range(8): a(f"v_dot2c_f32_bf16 v{B0+t}, v{Q+8*t+i}, v{Q+8*t+i}")
    a("s_nop 2")
    for t in range(4): a(f"v_mov_b32 v{B0+4+t}, v{B0+t}")
    a("s_nop 0")
    for t in range(4): a(f"v_permlane32_swap_b32 v{B0+4+t}, v{B0+t}")
    a("s_nop 0")
    for t in range(4): a(f"v_add_f32 v{B0+t}, v{B0+t}, v{B0+4+t}")
    for t in range(4): a(f"v_mul_f32 v{B0+t}, v{B0+t}, v4")
    for t in range(4): a(f"v_sqrt_f32 v{B0+t}, v{B0+t}")
    a("s_nop 0")
    a(f"v_max3_f32 v8, v{B0}, v{B0+1}, v{B0+2}")
    a(f"v_max_f32 v8, v8, v{B0+3}")
    lim = -1.0 if force_slow else SHIFT_LIMIT
    a(f"v_cmp_nge_f32 vcc, {hexf(lim)}, v8")
    a("v_add_u32 v8, 24576, v1")
    a("s_cbranch_vccnz KB_slow")
    vm_at_slow = list(vm.q)
    for t in range(4): a(f"v_cvt_pk_bf16_f32 v{B0+t}, -v{B0+t}, 0")
    for t in range(4): a(f"v_cndmask_b32 v{Q+8*t+6}, v{Q+8*t+6}, v{B0+t}, s[64:65]")
    WV("K0")
    a(mfma32(vr(S,16), vr(KVR,4), vr(Q,4), "0"))
    a(mfma32(vr(S,16), vr(KVR+4,4), vr(Q+4,4), vr(S,16)))
    a("s_nop 7")
    a("s_nop 3")
    nstamp(a, "loop")
    slots = {}
    def put(u, k, it):
        while (u, k) in slots: u, k = (u, k + 1) if k < 3 else (u + 1, 0)
        slots[(u, k)] = it if isinstance(it, list) else [it]
        return u, k
    for i in range(16):
        if i <= 14: slots[(4*i+2, 3)] = [("wv", f"K{i+1}")]
        slots[(4*i+1, 1)] = [("wv", f"V{i}")]
    for i in range(NKP, 16):
        prev = max(j for j in range(i) if kvs[j] == kvs[i])
        uk, uv = max(4*prev + 2, 4*(i - 6)), max(4*prev + 4, 4*(i - 6) + 2)
        put(uk, 0, ("v", kvld(i, 0), f"K{i}")); put(uk, 1, ("v", kvld(i, 1), f"K{i}"))
        put(uv, 2, ("v", kvld(i, 2), f"V{i}")); put(uv, 3, ("v", kvld(i, 3), f"V{i}"))
    pos = (0, 0)
    for i in range(NPRO, NKP):
        for part in range(4):
            pos = put(pos[0], pos[1], ("v", kvld(i, part), f"{'KV'[part>>1]}{i}"))
            if OPT.get('kr', 3) == 3 and pos[1] == 2: pos = (pos[0] + 1, 0)
    for q, it in enumerate(xr): put(OPT.get('x0', 58), 0, it)
    for q, it in enumerate(warm): put(OPT.get('e0', 4) + q*OPT.get('de', 8), 2, it)
    def wo_ready(f):
        if not 48 <= f < 76: return 0
        r = WOV + 16*((f - 48) // 4)
        return max([4*j + 5 for j in range(16) if kvs[j] == r] + [0])
    for f in range(72, 76): put(wo_ready(f), 0, wo_item(f))
    order = []
    lo, hi = list(range(48)), list(range(76, 98))
    side = [x for f in lo[:16] for x in [wo_item(f)]]
    free = [(u, k) for u in range(OPT.get('wo0', 1), 57) for k in range(4) if (u, k) not in slots]
    nitem = 72 + 22 + 6
    pend = lo + list(range(48, 72)); dma = [x for f in hi for x in wo_item(f)]
    for q in range(nitem):
        u, k = free[q*len(free)//nitem]
        ok = [f for f in pend if wo_ready(f) <= u]
        mid = [f for f in ok if f >= 48]
        if mid: f = mid[0]
        elif dma and (q % 3 == 2 or not ok): slots[(u, k)] = [dma.pop(0)]; continue
        else: f = ok[0]
        pend.remove(f); slots[(u, k)] = wo_item(f)
    assert not pend and not dma, (pend, dma)
    if OPT.get("nowo"):
        keep = OPT["nowo"]
        for k_, v_ in list(slots.items()):
            if v_[0][0] == "v" and v_[0][2].startswith("wo") and int(v_[0][2][2:]) % 100 >= keep: del slots[k_]
    lf = [(u, k) for u in range(57, 62) for k in range(4) if (u, k) not in slots]
    for q, it in enumerate(late): slots[lf[2*q]] = [it]
    if OPT.get("ftouch", 1):
        slots[lf[1]] = [("s", "s_load_dword s88, s[66:67], 0 glc"), ("s", "s_load_dword s89, s[66:67], 128 glc")]
    def redw(t, q): return ("d", f"ds_write_b128 v{13+t}, {ar(16*t+4*q,4)} offset:{1024*q}", "red")
    for q, sl in enumerate([(62,1), (62,2), (62,3), (63,2)]): slots.setdefault(sl, []).append(redw(0, q))
    tail63 = [redw(1, q) for q in range(4)]
    slots.setdefault((63,3), []).append(tail63[0])
    for u in range(64):
        sb, pb = S + 16*(u & 1), P + 8*(u & 1)
        sn, pp = S + 16*((u+1) & 1), P + 8*((u-1) & 1)
        un, up = u + 1, u - 1
        kslot = kvs[min(un >> 2, 15)]; qn = Q + 8*(un & 3)
        vslot = kvs[max(up >> 2, 0)] + 8; oa = ar(16*(up & 3), 16)
        M = [mfma32(vr(sn,16), vr(kslot,4), vr(qn,4), "0"),
             mfma32(vr(sn,16), vr(kslot+4,4), vr(qn+4,4), vr(sn,16)),
             mfma32(oa, vr(vslot,4), vr(pp,4), "0" if up < 4 else oa),
             mfma32(oa, vr(vslot+4,4), vr(pp+4,4), oa)]
        e = lambda k: f"v_exp_f32 v{sb+k}, v{sb+k}"
        c = lambda k: f"v_cvt_pk_bf16_f32 v{pb+k}, v{sb+2*k}, v{sb+2*k+1}"
        groups = [[e(0), e(1), e(2), e(3), c(0)], [e(4), c(1), e(5), e(6), e(7), c(2)],
                  [e(8), c(3), e(9), e(10), e(11), c(4)], [e(12), c(5), e(13), e(14), e(15), c(6), c(7)]]
        nstamp(a, f"u{u}")
        for k in range(4):
            if not ((u == 63 and k < 2) or (u == 0 and k >= 2)): a(M[k])
            for it in slots.get((u, k), []): emit_item(it)
            for x in groups[k]: a(x)
    emit_item(tail63[1])
    a(mfma32(ar(48,16), vr(kvs[15]+8,4), vr(P+8,4), ar(48,16)))
    emit_item(tail63[2])
    a(mfma32(ar(48,16), vr(kvs[15]+12,4), vr(P+12,4), ar(48,16)))
    emit_item(tail63[3])
    for q in range(4): emit_item(redw(2, q))
    a.label("KB_red")
    nstamp(a, "red")
    a("s_mul_i32 s53, s3, 12288")
    a("v_add_u32 v8, s53, v1")
    a("v_bfe_u32 v9, v0, 3, 2")
    a("s_lshl_b32 s53, s3, 2")
    a("v_add_u32 v9, s53, v9")
    a("v_mul_u32_u24 v9, 56, v9")
    a(f"v_mul_u32_u24 v10, {OB_STRIDE}, v5")
    a("v_add_u32 v9, v9, v10")
    a("v_lshl_add_u32 v9, v2, 3, v9")
    a(f"v_add_u32 v9, {L_OB}, v9")
    a(f"v_mov_b32 v11, {L_DUMMY}")
    a("v_add_u32 v12, 48, v9")
    a("v_cndmask_b32 v11, v12, v11, s[64:65]")
    a("v_lshl_add_u32 v10, v6, 4, v10")
    a(f"v_add_u32 v10, {L_OB}, v10")
    for i in range(16): a(f"v_accvgpr_read_b32 v{32+i}, a{48+i}")
    a("s_waitcnt lgkmcnt(0)"); lg.clear()
    a("s_barrier")
    for j in range(12): D(f"ds_read_b128 {vr(48+4*j,4)}, v8 offset:{L_RED+1024*j}", f"r{j//4}")
    ACC = 96
    WV("xr")
    for i in range(14):
        a(f"v_lshlrev_b32 v{ACC+2*i}, 16, v{XR+i}")
        a(f"v_and_b32 v{ACC+2*i+1}, 0xffff0000, v{XR+i}")
    for j in range(3):
        WL(f"r{j}")
        for i in range(16): a(f"v_add_f32 v{32+i}, v{32+i}, v{48+16*j+i}")
    a("v_mov_b32 v12, v44")
    a("v_mov_b32 v13, v44")
    a("s_nop 1")
    a("v_permlane32_swap_b32 v12, v13")
    a("s_nop 1")
    a("v_rcp_f32 v13, v13")
    a("s_nop 0")
    for i in range(16): a(f"v_mul_f32 v{32+i}, v{32+i}, v13")
    for i in range(8): a(f"v_cvt_pk_bf16_f32 v{48+i}, v{32+2*i}, v{33+2*i}")
    for i in range(3): D(f"ds_write_b64 v9, {vr(48+2*i,2)} offset:{16*i}")
    D("ds_write_b64 v11, v[54:55]")
    a("s_lshl_b32 s53, s5, 3")
    a("s_add_u32 s53, s53, s3")
    a("s_mul_i32 s53, s53, 28672")
    a(f"s_add_u32 s53, s53, {W1F + 4096}")
    add64(50, 8, "s53")
    a(f"s_add_u32 s53, s60, {L_WO}")
    a("v_add_u32 v8, s53, v1")
    a("s_waitcnt lgkmcnt(0)"); lg.clear()
    a("s_barrier")
    nstamp(a, "wo")
    def w1reg(i):
        return ar(64+4*i, 4) if i < 48 else ar(4*(i-48), 4)
    def w1_items(i):
        it = []
        ks = i % 28
        if i == 28: it += [("s", f"s_add_u32 s50, s50, {4*28672 - 3*8192}"), ("s", "s_addc_u32 s51, s51, 0")]
        elif ks and ks % 8 == 0: it += [("s", "s_add_u32 s50, s50, 8192"), ("s", "s_addc_u32 s51, s51, 0")]
        it.append(("v", f"global_load_dwordx4 {w1reg(i)}, v1, s[50:51] offset:{1024*(ks%8) - 4096}", f"w1_{i}"))
        return it
    for ks in range(14): D(f"ds_read_b128 {ar(4*ks,4)}, v10 offset:{64*ks}", f"o{ks}")
    WV(([t for t in vm.q if t.startswith("wo")] or ["-"])[-1])
    NW1 = 24
    post = {f: [] for f in range(98)}
    for i in range(NW1):
        it = w1_items(i)
        for q, x in enumerate(it): post[4*i + 3 - (len(it) - 1 - q)].append(x)
    for q in range(16): post[20 + 2*q].append(("d", f"ds_read_b128 {woreg(76+q)}, v8 offset:{1024*q}", f"wl{76+q}"))
    for q in range(6): post[56 + 2*q].append(("d", f"ds_read_b128 {woreg(92+q)}, v8 offset:{1024*(16+q)}", f"wl{92+q}"))
    for f in range(98):
        ks, tile = divmod(f, 7)
        if tile == 0: WL(f"o{ks}")
        if f >= 76: WL(f"wl{f}")
        a(mfma16(vr(ACC+4*tile,4), woreg(f), ar(4*ks,4), vr(ACC+4*tile,4)))
        for it in post[f]: emit_item(it)
    nstamp(a, "woend")
    H = 32
    NW1B = 40
    w1q = [w1_items(i) for i in range(NW1, NW1B)]
    def w1n(n=1):
        for _ in range(n):
            if w1q:
                for it in w1q.pop(0): emit_item(it)
    a("v_and_b32 v14, 15, v0")
    a("v_lshlrev_b32 v14, 3, v14")
    a(f"v_add_u32 v14, {L_ST}, v14")
    a("s_lshl_b32 s53, s3, 7")
    a("v_add_u32 v15, s53, v14")
    a("s_mul_i32 s53, s3, 1792")
    a(f"s_add_u32 s53, s53, {L_HT}")
    a("v_and_b32 v8, 1, v6")
    a("v_lshlrev_b32 v8, 7, v8")
    a("v_lshl_add_u32 v8, v5, 4, v8")
    a("v_lshl_add_u32 v8, v2, 3, v8")
    a("v_add_u32 v8, s53, v8")
    a("v_add_u32 v9, s53, v1")
    for i in range(14):
        a(f"v_cvt_pk_bf16_f32 v{H+i}, v{ACC+2*i}, v{ACC+2*i+1}")
        if i % 4 == 3: w1n()
    a(f"s_mov_b32 s53, {ONES_BF}")
    a("v_mov_b32 v12, 0")
    a("v_mov_b32 v13, 0")
    for i in range(14):
        a(f"v_dot2c_f32_bf16 v12, s53, v{H+i}")
        a(f"v_dot2c_f32_bf16 v13, v{H+i}, v{H+i}")
        if i % 3 == 2: w1n()
    for i in range(7): D(f"ds_write_b64 v8, {vr(H+2*i,2)} offset:{256*i}")
    a("v_mov_b32 v10, v12")
    a("v_mov_b32 v11, v13")
    a("s_nop 0")
    a("v_permlane16_swap_b32 v10, v12")
    a("v_permlane16_swap_b32 v11, v13")
    a("s_nop 0")
    a("v_add_f32 v12, v12, v10")
    a("v_add_f32 v13, v13, v11")
    a("v_mov_b32 v10, v12")
    a("v_mov_b32 v11, v13")
    a("s_nop 0")
    a("v_permlane32_swap_b32 v10, v12")
    a("v_permlane32_swap_b32 v11, v13")
    a("s_nop 0")
    a("v_add_f32 v12, v12, v10")
    a("v_add_f32 v13, v13, v11")
    D("ds_write_b64 v15, v[12:13]")
    w1n(3)
    H8 = 16
    D(f"ds_read_b128 {vr(H8,4)}, v9", "h8")
    D(f"ds_read_b128 {vr(H8+4,4)}, v9 offset:1024", "h8")
    WV("xcc")
    a("s_mov_b32 s68, 1")
    a("v_cmp_ne_u32 vcc, s69, v30")
    if force_fence: a("s_branch KB_xcc")
    else: a("s_cbranch_vccnz KB_xcc")
    a.label("KB_xcc_done")
    a("v_bfe_u32 v7, v0, 3, 1")
    a("v_lshlrev_b32 v8, 10, v6")
    a("v_lshl_add_u32 v8, v7, 9, v8")
    a("v_lshl_add_u32 v8, v5, 4, v8")
    a("v_add_u32 v9, 4096, v8")
    w1n(3)
    a("s_waitcnt lgkmcnt(0)"); lg.clear()
    a("s_barrier")
    for w in range(4): D(f"ds_read_b64 {vr(48+2*w,2)}, v14 offset:{128*w}", "st")
    w1n(16)
    for i in range(8):
        a(f"v_lshlrev_b32 v{ACC+2*i}, 16, v{H8+i}")
        a(f"v_and_b32 v{ACC+2*i+1}, 0xffff0000, v{H8+i}")
    WL("st")
    a("v_add_f32 v48, v48, v50")
    a("v_add_f32 v49, v49, v51")
    a("v_add_f32 v52, v52, v54")
    a("v_add_f32 v53, v53, v55")
    a("v_add_f32 v48, v48, v52")
    a("v_add_f32 v49, v49, v53")
    a(f"v_mul_f32 v48, {hexf(1.0/448)}, v48")
    a(f"v_mul_f32 v49, {hexf(1.0/448)}, v49")
    a("v_fma_f32 v49, -v48, v48, v49")
    a("v_max_f32 v49, 0, v49")
    a(f"v_add_f32 v49, {hexf(1e-5)}, v49")
    a("v_rsq_f32 v49, v49")
    a("s_nop 0")
    a(f"v_mul_f32 v49, {hexf(LOG2E)}, v49")
    a("v_mul_f32 v48, -v48, v49")
    for i in range(16): a(f"v_fma_f32 v{ACC+i}, v{ACC+i}, v49, v48")
    for i in range(8): a(f"v_cvt_pk_bf16_f32 v{32+i}, v{ACC+2*i}, v{ACC+2*i+1}")
    nstamp(a, "hnst")
    V(f"global_store_dwordx4 v8, v[32:35], s[54:55]{SM('hnm')}", "hnst")
    a("s_mov_b32 exec_hi, 0xffff")
    V(f"global_store_dwordx4 v9, v[36:39], s[54:55]{SM('hnm')}", "hnst")
    a("s_mov_b32 exec_hi, -1")
    a("s_lshl_b32 s53, s5, 2")
    a("s_add_u32 s53, s53, s3")
    a("v_mov_b32 v10, s53")
    a("v_mov_b32 v11, 1")
    a("s_lshl_b32 s53, s3, 6")
    a(f"s_add_u32 s53, s53, {L_BIAS}")
    a("v_lshl_add_u32 v12, v2, 3, s53")
    for q in range(8): D(f"ds_read_b64 {vr(48+2*q,2)}, v12 offset:{16*(q&3) + 256*(q>>2)}", "bias")
    def signal(off, lab):
        a("s_waitcnt vmcnt(0)"); vm.clear()
        a("s_cmp_eq_u32 s68, 0")
        a(f"s_cbranch_scc1 {lab}_fence")
        a("s_mov_b64 exec, 1")
        V(f"global_store_byte v10, v11, s[66:67] offset:{off}", "sig")
        a("s_mov_b64 exec, -1")
        a.label(f"{lab}_done")
    def poll(off, nmem, lab):
        a("s_mov_b32 s52, 0")
        a("s_cmp_eq_u32 s68, 0")
        a(f"s_cbranch_scc1 {lab}_fence")
        a.label(f"{lab}_loop")
        a(f"global_load_dword v31, v30, s[66:67] offset:{off} sc1")
        a("s_add_u32 s52, s52, 1")
        a("s_waitcnt vmcnt(0)"); vm.clear()
        a("v_cmp_ne_u32 vcc, 0x01010101, v31")
        a(f"s_cbranch_vccz {lab}_done")
        a(f"s_cmp_lt_u32 s52, {SPIN_LIMIT}")
        a(f"s_cbranch_scc1 {lab}_loop")
        a.label(f"{lab}_done")
        if STAMPS and f"cnt{off}" in STAMP_SET: a(f"s_mov_b32 s{72 + 2*(1 + STAMP_SET.index(f'cnt{off}'))}, s52")
    T0, A2, A1, HOLD = 24, 48, 80, 144
    accs = {("A",0): A1, ("B",0): A1+16, ("B",1): A1+32, ("A",1): A1+48}
    a("s_mul_i32 s53, s4, 57344")
    a("s_lshl_b32 s52, s3, 10")
    a("s_add_u32 s53, s53, s52")
    a(f"s_add_u32 s53, s53, {HN}")
    add64(56, 8, "s53")
    a("v_lshlrev_b32 v30, 2, v5")
    signal(0, "KB_sg1")
    nstamp(a, "sig1")
    a("s_cmp_eq_u32 s5, 7")
    a("s_cbranch_scc1 KB_fin")
    nstamp(a, "pl1")
    poll(0, 8, "KB_pl1")
    nstamp(a, "poll1")
    def dma_items(q):
        it = [("s", f"s_add_u32 m0, s52, {L_HN + 4096*q}")]
        if q: it = [("s", "s_add_u32 s56, s56, 4096"), ("s", "s_addc_u32 s57, s57, 0")] + it
        return it + [("s", "s_nop 0"), ("v", "global_load_lds_dwordx4 v1, s[56:57] sc1", f"hn{q}")]
    a("s_lshl_b32 s52, s3, 10")
    for q in range(7):
        for it in dma_items(q): emit_item(it)
    a("s_mul_i32 s53, s3, 3*112*1024")
    a("s_lshl_b32 s61, s5, 14")
    a("s_add_u32 s53, s53, s61")
    a(f"s_add_u32 s53, s53, {W2F + 4096}")
    add64(58, 8, "s53")
    a("s_lshr_b32 s53, s3, 1")
    a("s_add_u32 s53, s53, 12")
    a("s_mul_i32 s53, s53, 112*1024")
    a("s_add_u32 s53, s53, s61")
    a(f"s_add_u32 s53, s53, {W2F + 4096}")
    add64(32, 8, "s53")
    a("s_mul_i32 s53, s4, 458752")
    a("s_mul_i32 s61, s5, 7168")
    a("s_add_u32 s53, s53, s61")
    a(f"s_add_u32 s53, s53, {PART}")
    add64(34, 8, "s53")
    a("s_mul_i32 s61, s3, 1536")
    add64(36, 34, "s61")
    add64(38, 36, 229376)
    a("s_and_b32 s61, s3, 1")
    a("s_mul_i32 s61, s61, 229376")
    a("s_lshr_b32 s53, s3, 1")
    a("s_lshl_b32 s53, s53, 9")
    a("s_add_u32 s61, s61, s53")
    a("s_add_u32 s61, s61, 6144")
    add64(48, 34, "s61")
    a("s_mul_i32 s61, s3, 114688")
    add64(34, 34, "s61")
    a("v_bfe_u32 v12, v0, 3, 2")
    a("v_mul_u32_u24 v12, 57344, v12")
    a("v_lshl_add_u32 v12, v2, 7, v12")
    a("v_lshl_add_u32 v12, v5, 4, v12")
    a("v_lshrrev_b32 v13, 2, v0")
    a("v_min_u32 v13, 13, v13")
    a("v_lshlrev_b32 v13, 7, v13")
    a("v_add_u32 v13, 3584, v13")
    a("v_add_u32 v14, 57344, v13")
    a("s_lshl_b32 s53, s3, 11")
    a(f"s_add_u32 s53, s53, {L_ACT}")
    a("v_add_u32 v8, s53, v1")
    a(f"v_add_u32 v9, {L_ACT}, v1")
    a("s_and_b32 s53, s3, 1")
    a("s_lshl_b32 s53, s53, 14")
    a("v_add_u32 v15, s53, v9")
    WL("bias")
    a(f"s_mov_b32 s53, {hexf(LOG2E)}")
    for X, r0 in (("A", 48), ("B", 56)):
        d = accs[(X,0)]
        for i in range(8):
            a(f"v_lshlrev_b32 v{d+2*i}, 16, v{r0+i}")
            a(f"v_and_b32 v{d+2*i+1}, 0xffff0000, v{r0+i}")
        for i in range(16): a(f"v_mul_f32 v{d+i}, s53, v{d+i}")
        for i in range(16): a(f"v_mov_b32 v{accs[(X,1)]+i}, v{d+i}")
    def w2reg(q):
        if q < 8: return ar(32+4*q, 4)
        if q < 36: return w1reg(28 + q - 8)
        return w1reg(q - 36)
    def w2_items(q):
        u, ks = divmod(q, 16)
        b = 58 if u < 3 else 32
        it = []
        if ks == 8: it += [("s", f"s_add_u32 s{b}, s{b}, 8192"), ("s", f"s_addc_u32 s{b+1}, s{b+1}, 0")]
        elif ks == 0 and 0 < u < 3: it += [("s", f"s_add_u32 s{b}, s{b}, {112*1024 - 8192}"), ("s", f"s_addc_u32 s{b+1}, s{b+1}, 0")]
        it.append(("v", f"global_load_dwordx4 {w2reg(q)}, v1, s[{b}:{b+1}] offset:{1024*(ks%8) - 4096}", f"w2_{q}"))
        return it
    NM = 224
    pre = {i: [] for i in range(NM + 1)}
    post = {i: [] for i in range(NM)}
    mf = []
    hold = lambda ks: vr(HOLD+4*ks, 4)
    for X, tt in (("A",0), ("B",0), ("B",1), ("A",1)):
        d = vr(accs[(X,tt)], 16)
        for ks in range(28): mf.append(mfma32(d, w1reg(ks + (28 if X == "B" else 0)), hold(ks), d))
    act0 = lambda ks: vr(HOLD+4*ks, 4)
    act1 = lambda ks: vr(HOLD+64+4*ks, 4) if ks < 12 else vr(A1+4*(ks-12), 4)
    ring = lambda ks: vr(A1+16+4*(ks & 7), 4)
    units = [(0, act0, 36, 0), (1, act0, 36, 1), (2, act0, 36, 2), (3, ring, 48, 0), (0, act1, 38, 0), (1, act1, 38, 1), (2, act1, 38, 2)]
    for ui, (u, breg, sb_, no) in enumerate(units):
        d = vr(A2+16*(ui & 1), 16)
        for ks in range(16): mf.append(mfma32(d, w2reg(16*u+ks), breg(ks), "0" if ks == 0 else d))
    AHEAD = 4
    rd0 = lambda ks: ("d", f"ds_read_b128 {hold(ks)}, v1 offset:{L_HN + 1024*ks}", f"h0_{ks}")
    rd1 = lambda ks: ("d", f"ds_read_b128 {hold(ks)}, v1 offset:{L_HN + 28672 + 1024*ks}", f"h1_{ks}")
    pre[0] += [("wv", "hn2"), ("s", "s_barrier")] + [rd0(ks) for ks in range(AHEAD)]
    for ks in range(28):
        if ks + AHEAD == 12: post[ks] += [("wv", "hn6"), ("s", "s_barrier")]
        if ks + AHEAD < 28: post[ks].append(rd0(ks + AHEAD))
        pre[ks].append(("wl", f"h0_{ks}"))
    for q in range(7, 14): post[2*(q-7)] += dma_items(q)
    pre[0].append(("wv", "w1_27"))
    for i in range(NW1B, 56): post[14 + 2*(i - NW1B)] += w1_items(i)
    pre[28] += [("wv", "hn13"), ("s", "s_barrier")]
    for ks in range(28):
        pre[28+ks].append(("wv", f"w1_{28+ks}"))
        post[28+ks].append(rd1(ks))
    for q in range(8): post[46 + q] += w2_items(q)
    if OPT.get('touch', 0):
        t0_, dt_ = OPT.get('t0', 47), OPT.get('dt', 6)
        for k in range(8):
            post[t0_ + dt_*k].append(("v", f"global_load_dword v4, v{13 + (k >> 2)}, s[34:35] offset:{1792*(k & 3) - 3584} sc1", "touch"))
    for ks in range(0, 28, 4): pre[56+ks].append(("wl", f"h1_{min(ks+3, 27)}"))
    for q in range(8, 64): post[56 + 2*(q-8)] += w2_items(q)
    for q in range(64): pre[112+q].append(("wv", f"w2_{q}"))
    fill = []
    def mish_items(X, tt, start, idx):
        x0 = accs[(X,tt)]; pk = x0
        L = []
        for g in range(4):
            t = T0 + 4*(g & 1); x = x0 + 4*g
            L += [f"v_exp_f32 v{t+i}, v{x+i}" for i in range(4)]
            L += [f"v_add_f32 v{t+i}, 1.0, v{t+i}" for i in range(4)]
            L += [f"v_fma_f32 v{t+i}, v{t+i}, v{t+i}, 1.0" for i in range(4)]
            L += [f"v_rcp_f32 v{t+i}, v{t+i}" for i in range(4)]
            L += [f"v_mul_f32 v{t+i}, v{t+i}, v{x+i}" for i in range(4)]
            L += [f"v_fmac_f32 v{x+i}, -2.0, v{t+i}" for i in range(4)]
            L += [f"v_cvt_pk_bf16_f32 v{pk+2*g+i}, v{x+2*i}, v{x+2*i+1}" for i in range(2)]
        it = [("s", x, start) for x in L]
        off = tt*16384 + (8192 if X == "B" else 0)
        it += [("d", f"ds_write_b128 v8, {vr(pk+4*hf,4)} offset:{off + 1024*hf}", start) for hf in range(2)]
        return it
    fill += mish_items("A", 0, 31, 0) + mish_items("B", 0, 59, 1)
    fill += [("bar", "b1", 0)]
    fill += mish_items("B", 1, 87, 2) + mish_items("A", 1, 115, 3)
    fill += [("bar", "b2", 0)]
    rda = lambda reg, addr, tt, ks, tag: ("d", f"ds_read_b128 {reg}, {addr} offset:{16384*tt + 1024*ks}", tag)
    need_bar = {}
    for ks in range(16):
        post[101 + ks].append(rda(act0(ks), "v9", 0, ks, f"a0_{ks}"))
        pre[112+ks].append(("wl", f"a0_{ks}"))
    need_bar[101] = "b1"
    for ks in range(16):
        post[155 + ks].append(rda(ring(ks), "v15", 0, ks, f"am_{ks}"))
        pre[160+ks].append(("wl", f"am_{ks}"))
        post[161 + ks].append(rda(act1(ks), "v9", 1, ks, f"a1_{ks}"))
        pre[176+ks].append(("wl", f"a1_{ks}"))
    need_bar[155] = "b2"
    outq = []
    for ui, (u, breg, sb_, no) in enumerate(units):
        d = A2 + 16*(ui & 1); pk = d
        L = []
        for hf in range(2):
            p4 = pk + 4*hf
            L += [("s", f"v_cvt_pk_bf16_f32 v{p4+i}, v{d+8*hf+2*i}, v{d+8*hf+2*i+1}") for i in range(4)]
            L += [("v", f"global_store_dwordx4 v12, {vr(p4,4)}, s[{sb_}:{sb_+1}] offset:{512*no + 256*hf}{SM('pm')}", "pst")]
        outq.append((112 + 16*ui + 18, L))
    done_bar = set()
    fq = list(fill); cur = [0]
    def emit_fill(it):
        if it[0] == "bar":
            a("s_waitcnt lgkmcnt(0)"); lg.clear()
            a("s_barrier"); done_bar.add(it[1]); print("note: barrier", it[1], "after MFMA", cur[0])
            return 8
        if it[0] == "d": D(it[1])
        else: a(it[1])
        return cost(it[1])
    credit = 0.0
    for i in range(NM):
        cur[0] = i
        assert not outq or i < outq[0][0] + 12, i
        for it in pre[i]: emit_item(it)
        a(mf[i])
        nstamp(a, f"m{i}")
        credit = max(min(credit, 0), -8) + 24
        if i in need_bar:
            c0 = credit
            while need_bar[i] not in done_bar: credit -= emit_fill(fq.pop(0))
            if c0 != credit: print(f"note: {c0 - credit:.0f} cycles of activation work flushed before MFMA {i}")
        for k, it in enumerate(post[i]):
            emit_item(it)
            credit -= (4 if it[0] in "vd" else 0) if k == 0 else (10 if it[0] in "vd" else 4)
        while outq and outq[0][0] <= i and credit > 0:
            L = outq[0][1]
            it = L.pop(0); emit_item(it); credit -= cost(it[1])
            if not L: outq.pop(0)
        while fq and credit > 0 and (fq[0][0] == "bar" or fq[0][2] <= i):
            credit -= emit_fill(fq.pop(0))
    assert not fq, len(fq)
    a("s_nop 7")
    a("s_nop 3")
    for _, L in outq:
        for it in L: emit_item(it)
    nstamp(a, "g2end")
    signal(128, "KB_sg2")
    nstamp(a, "sig2")
    a.label("KB_fin")
    R, SUM, HF = 144, 80, 96
    a("s_mul_i32 s53, s4, 458752")
    a("s_mul_i32 s52, s5, 57344")
    a("s_add_u32 s53, s53, s52")
    a("s_mul_i32 s52, s3, 1792")
    a("s_add_u32 s53, s53, s52")
    a(f"s_add_u32 s53, s53, {PART}")
    add64(56, 8, "s53")
    for i in range(16): a(f"v_mov_b32 v{SUM+i}, 0")
    for i in range(8):
        a(f"v_lshlrev_b32 v{HF+2*i}, 16, v{H8+i}")
        a(f"v_and_b32 v{HF+2*i+1}, 0xffff0000, v{H8+i}")
    a("v_mul_u32_u24 v12, 896, v5")
    a("v_lshl_add_u32 v12, v6, 5, v12")
    a("v_lshl_add_u32 v12, v7, 4, v12")
    a("s_mul_i32 s60, s6, 8*896")
    a("s_mul_i32 s61, s3, 224")
    a("s_add_u32 s60, s60, s61")
    a("s_mov_b32 s62, 0x00003f80")
    a("s_mov_b32 s63, 0x3f800000")
    a(f"s_mov_b32 s61, {hexf(LN2F)}")
    a("v_min_u32 v30, 6, v5")
    a("v_lshlrev_b32 v30, 2, v30")
    nstamp(a, "pl2")
    poll(128, 7, "KB_pl2")
    nstamp(a, "poll2")
    vm.clear(); vm.issue("older")
    for p in range(7):
        if p: add64(56, 56, 7168)
        V(f"global_load_dwordx4 {vr(R+8*p,4)}, v1, s[56:57] sc1", f"p{p}")
        V(f"global_load_dwordx4 {vr(R+8*p+4,4)}, v1, s[56:57] offset:1024 sc1", f"p{p}")
    for p in range(7):
        WV(f"p{p}")
        for i in range(8):
            a(f"v_dot2c_f32_bf16 v{SUM+2*i}, s62, v{R+8*p+i}")
            a(f"v_dot2c_f32_bf16 v{SUM+2*i+1}, s63, v{R+8*p+i}")
    a("s_nop 2")
    for i in range(16): a(f"v_fmac_f32 v{HF+i}, s61, v{SUM+i}")
    for i in range(8): a(f"v_cvt_pk_bf16_f32 v{32+i}, v{HF+2*i}, v{HF+2*i+1}")
    for b in (32, 36):
        a(f"v_mov_b32 v40, v{b+2}")
        a(f"v_mov_b32 v41, v{b+3}")
        a("s_nop 0")
        a(f"v_mov_b32_dpp v{b+2}, v{b} row_ror:8 row_mask:0xf bank_mask:0x3")
        a(f"v_mov_b32_dpp v{b+3}, v{b+1} row_ror:8 row_mask:0xf bank_mask:0x3")
        a(f"v_mov_b32_dpp v{b}, v40 row_ror:8 row_mask:0xf bank_mask:0xc")
        a(f"v_mov_b32_dpp v{b+1}, v41 row_ror:8 row_mask:0xf bank_mask:0xc")
    a(f"buffer_store_dwordx4 v[32:35], v12, s[24:27], s60 offen{SM('om')}")
    a("s_mov_b32 exec_hi, 0xffff")
    a(f"buffer_store_dwordx4 v[36:39], v12, s[24:27], s60 offen offset:128{SM('om')}")
    fin(a, 1, 8)
    a.label("KB_end")
    a("s_endpgm")

    a.label("KB_xcc")
    a("s_mov_b32 s52, 0")
    a("v_and_b32 v10, 7, v0")
    a("v_lshlrev_b32 v10, 2, v10")
    a.label("KB_xcc_loop")
    a("v_cmp_eq_u32 vcc, 0, v30")
    a("s_cbranch_vccz KB_xcc_known")
    a("global_load_dword v30, v10, s[62:63] sc1")
    a("s_add_u32 s52, s52, 1")
    a("s_waitcnt vmcnt(0)")
    a(f"s_cmp_lt_u32 s52, {SPIN_LIMIT}")
    a("s_cbranch_scc1 KB_xcc_loop")
    a.label("KB_xcc_known")
    a("v_cmp_ne_u32 vcc, s69, v30")
    if not force_fence: a("s_cbranch_vccz KB_xcc_done")
    a("s_mov_b32 s68, 0")
    a("s_branch KB_xcc_done")
    for lab, off in (("KB_sg1", 0), ("KB_sg2", 128)):
        a.label(f"{lab}_fence")
        a("buffer_wbl2 sc1")
        a("s_waitcnt vmcnt(0)")
        a("s_mov_b64 exec, 1")
        a(f"global_store_byte v10, v11, s[66:67] offset:{off} sc0 sc1")
        a("s_mov_b64 exec, -1")
        a(f"s_branch {lab}_done")
    for lab, off in (("KB_pl1", 0), ("KB_pl2", 128)):
        a.label(f"{lab}_fence")
        a(f"global_load_dword v31, v30, s[66:67] offset:{off} sc0 sc1")
        a("s_add_u32 s52, s52, 1")
        a("s_waitcnt vmcnt(0)")
        a("v_cmp_ne_u32 vcc, 0x01010101, v31")
        a(f"s_cbranch_vccz {lab}_fdone")
        a(f"s_cmp_lt_u32 s52, {SPIN_LIMIT}")
        a(f"s_cbranch_scc1 {lab}_fence")
        a.label(f"{lab}_fdone")
        a("buffer_inv sc1")
        a("s_waitcnt vmcnt(0) lgkmcnt(0)")
        a(f"s_branch {lab}_done")

    a.label("KB_slow")
    vm.q = list(vm_at_slow)
    a("s_waitcnt vmcnt(0)"); vm.clear()
    for k, it in enumerate([x for f in range(98) for x in wo_item(f)] + xr + late):
        emit_item(it)
        if it[0] == "s" and "m0" in it[1]: a("s_nop 0")
        if len(vm.q) >= 32: a("s_waitcnt vmcnt(0)"); vm.clear()
    MX = P + 8
    for t in range(4): a(f"v_mov_b32 v{MX+t}, 0xff800000")
    for i in range(64): a(f"v_accvgpr_write_b32 a{i}, 0")
    a("v_lshlrev_b32 v3, 2, v0")
    a("s_sub_u32 s52, s52, 4096")
    a("s_mov_b32 s61, 0")
    a.label("KB_s1")
    a("s_add_u32 s53, s52, s61")
    for i in range(2): a(f"buffer_load_dwordx4 {vr(KVR+4*i,4)}, v1, s[16:19], s53 offen offset:{1024*i}")
    a("s_waitcnt vmcnt(0)")
    for t in range(4):
        a(mfma32(vr(S,16), vr(KVR,4), vr(Q+8*t,4), "0"))
        a(mfma32(vr(S,16), vr(KVR+4,4), vr(Q+8*t+4,4), vr(S,16)))
        a("s_nop 7")
        a("s_nop 3")
        for i in range(8): a(f"v_max3_f32 v{MX+t}, v{S+2*i}, v{S+2*i+1}, v{MX+t}")
    a("s_add_u32 s61, s61, 4096")
    a("s_cmp_lt_u32 s61, 0x10000")
    a("s_cbranch_scc1 KB_s1")
    for t in range(4):
        half_sum(a, MX+t, 12, "v_max_f32")
        a(f"s_add_u32 s53, s3, {t+1}")
        a("s_and_b32 s53, s53, 3")
        a("s_lshl_b32 s53, s53, 10")
        a("s_lshl_b32 s61, s3, 8")
        a("s_add_u32 s53, s53, s61")
        a("v_add_u32 v12, s53, v3")
        a(f"ds_write_b32 v12, v{MX+t}")
    a("s_waitcnt lgkmcnt(0)")
    a("s_barrier")
    for t in range(4):
        a(f"s_add_u32 s53, s3, {t+1}")
        a("s_and_b32 s53, s53, 3")
        a("s_lshl_b32 s53, s53, 10")
        a("v_add_u32 v12, s53, v3")
        for w in range(4): a(f"ds_read_b32 v{S+w}, v12 offset:{256*w}")
        a("s_waitcnt lgkmcnt(0)")
        a(f"v_max3_f32 v{MX+t}, v{S}, v{S+1}, v{S+2}")
        a(f"v_max_f32 v{MX+t}, v{MX+t}, v{S+3}")
    a("s_barrier")
    a("s_mov_b32 s61, 0")
    a.label("KB_s2")
    a("s_add_u32 s53, s52, s61")
    for i in range(4): a(f"buffer_load_dwordx4 {vr(KVR+4*i,4)}, v1, s[16:19], s53 offen offset:{1024*i}")
    a("s_waitcnt vmcnt(0)")
    for t in range(4):
        a(mfma32(vr(S,16), vr(KVR,4), vr(Q+8*t,4), "0"))
        a(mfma32(vr(S,16), vr(KVR+4,4), vr(Q+8*t+4,4), vr(S,16)))
        a("s_nop 7")
        a("s_nop 3")
        for i in range(16): a(f"v_sub_f32 v{S+i}, v{S+i}, v{MX+t}")
        for i in range(16): a(f"v_exp_f32 v{S+i}, v{S+i}")
        a("s_nop 0")
        for i in range(8): a(f"v_cvt_pk_bf16_f32 v{P+i}, v{S+2*i}, v{S+2*i+1}")
        a("s_nop 1")
        a(mfma32(ar(16*t,16), vr(KVR+8,4), vr(P,4), ar(16*t,16)))
        a(mfma32(ar(16*t,16), vr(KVR+12,4), vr(P+4,4), ar(16*t,16)))
    a("s_add_u32 s61, s61, 4096")
    a("s_cmp_lt_u32 s61, 0x10000")
    a("s_cbranch_scc1 KB_s2")
    a("s_nop 7")
    a("s_nop 3")
    for t in range(3):
        for q in range(4): a(redw(t, q)[1])
    a("s_branch KB_red")
    a.label("KB_code_end")
    return kd(n, 512, 102, 256), f"; @launch kernel={n} grid=(256,1,1) block=(256,1,1) lds={KB_LDS}"


def build(force_slow=False, extra=0, force_fence=False):
    a = Asm()
    parts = [gen_k1(a), gen_kb(a, force_slow, force_fence)]
    launches = [p[1] for p in parts]
    kds = [p[0] for p in parts]
    if extra:
        header(a, "nop_kernel")
        a("s_endpgm")
        kds.append(kd("nop_kernel", 8, 16, 8))
        launches += ["; @launch kernel=nop_kernel grid=(256,1,1) block=(64,1,1) lds=0"] * extra
    out = "\n".join(launches) + "\n"
    out += '.amdgcn_target "amdgcn-amd-amdhsa--gfx950"\n.text\n'
    out += a.text()
    out += '.section .rodata,"a"\n' + "".join(kds)
    return out

if __name__ == "__main__":
    import argparse
    ap = argparse.ArgumentParser()
    ap.add_argument("-o", default="v2.s")
    ap.add_argument("--slow", action="store_true")
    ap.add_argument("--fence", action="store_true")
    ap.add_argument("--opt", default="")
    ap.add_argument("--extra", type=int, default=0)
    ap.add_argument("--stamps", default="", help="up to six stamp names for the fused kernel")
    args = ap.parse_args()
    for kv in args.opt.split(","):
        if kv:
            k_, _, v_ = kv.partition("=")
            OPT[k_] = int(v_) if v_ else 1
    STAMPS = bool(args.stamps)
    STAMP_SET = args.stamps.split(",")
    txt = build(args.slow, args.extra, args.fence)
    import hazard, itouch, re
    plain = re.sub(r"KB_CHAIN\d", "KB_tret", txt)
    print("hazards:", hazard.check(plain), "waits:", 0 if STAMPS else hazard.waitcheck(plain))
    if OPT.get("it", 1):
        txt = re.sub(r"KB_CHAIN(\d)", r"KB_tret ;chain\1", txt)
        txt, nb = itouch.insert(txt, "KB", "kb_kernel", "KB_end", lambda n: [list(range(1 + w, n + 1, 4)) for w in range(4)], "KB_tret")
        ch = [list(range(1 + w, nb + 1, 4)) for w in range(4)]
        txt = re.sub(r"KB_tret ;chain(\d)", lambda m: f"KB_t{ch[int(m.group(1))][0]}" if ch[int(m.group(1))] else "KB_tret", txt)
        print("code blocks touched:", nb)
    open(args.o, "w").write(txt)
```

```python
import math, struct, sys

NAME = "sequential_preLN__grouped_kv_mqa__dense_activation_mish__prompt"

QF   = 0x000000
KV   = 0x200000
KMAX = 0x240000
SYNC = 0x248000
WOF  = 0x250000
W1F  = 0x300000
W2F  = 0x500000
OF   = 0x700000
HF   = 0x900000
PART = 0xB00000
WS_SIZE = PART + 32*8*8*7168
W1S = 29*1024

X_BYTES = 2048*896
WQ_BYTES = 448*896
WK_BYTES = 448*56
W1_BYTES = 448*3584
W2_BYTES = 1792*896

def f2u(f): return struct.unpack("<I", struct.pack("<f", f))[0]
def hexf(f): return "0x%08x" % f2u(f)
LOG2E = math.log2(math.e)
QSCALE = LOG2E / math.sqrt(28.0)
ONES_BF = "0x3f803f80"

class Asm:
    def __init__(self):
        self.L = []
    def __call__(self, s):
        for ln in s.split("\n"):
            ln = ln.strip()
            if ln: self.L.append("    " + ln)
    def label(self, s): self.L.append(s + ":")
    def c(self, s): self.L.append("    ; " + s)
    def text(self): return "\n".join(self.L) + "\n"

def vr(b, n=1): return f"v{b}" if n == 1 else f"v[{b}:{b+n-1}]"
def ar(b, n=1): return f"a{b}" if n == 1 else f"a[{b}:{b+n-1}]"
def sr(b, n=1): return f"s{b}" if n == 1 else f"s[{b}:{b+n-1}]"

def srd(a, d, lo, hi, nbytes):
    a(f"s_mov_b32 s{d}, s{lo}")
    a(f"s_mov_b32 s{d+1}, s{hi}")
    a(f"s_mov_b32 s{d+2}, {nbytes if isinstance(nbytes, str) else hex(nbytes)}")
    a(f"s_mov_b32 s{d+3}, 0x20000")

def header(a, name):
    a.L.append(f".globl {name}")
    a.L.append(".p2align 12")
    a.L.append(".p2align 8")
    a.L.append(f".type {name},@function")
    a.label(name)

def kd(name, vgpr, sgpr, accum):
    return f""".p2align 6
.amdhsa_kernel {name}
  .amdhsa_next_free_vgpr {vgpr}
  .amdhsa_next_free_sgpr {max(96, sgpr) if STAMPS else sgpr}
  .amdhsa_accum_offset {accum}
  .amdhsa_group_segment_fixed_size 0
  .amdhsa_kernarg_size 96
  .amdhsa_user_sgpr_count 2
  .amdhsa_user_sgpr_kernarg_segment_ptr 1
  .amdhsa_system_sgpr_workgroup_id_x 1
.end_amdhsa_kernel
"""

STAMPS = False
STAMP_BASE = 0x8000000
def stamp(a, i):
    if STAMPS: a(f"{'s_memtime' if OPT.get('cyc') and 0 < i < 7 else 's_memrealtime'} s[{72+2*i}:{73+2*i}]")
STAMP_SET = []
OPT = {}
def SM(k):
    return {0: '', 1: ' sc1', 2: ' sc0 sc1', 3: ' nt', 4: ' sc1 nt', 5: ' sc0 sc1 nt'}[int(OPT.get(k, {'pm': 1, 'k1m': 1, 'qm': 1}.get(k, 0)))]
def nstamp(a, name):
    if STAMPS and name in STAMP_SET:
        i = 1 + STAMP_SET.index(name)
        a(f"{'s_memtime' if OPT.get('cyc') else 's_memrealtime'} s[{72+2*i}:{73+2*i}]")
def stamp_init(a):
    if STAMPS:
        for i in range(8): a(f"s_mov_b32 s{72+2*i}, 0")
        stamp(a, 0)
        if OPT.get("dbg"): a("s_load_dwordx2 s[92:93], s[0:1], 80")
def fin(a, kidx, wslo):
    if STAMPS and OPT.get("dbg"):
        stamp(a, 7)
        a("s_mov_b64 exec, 0xff")
        a("s_waitcnt lgkmcnt(0)")
        a("s_not_b32 s72, s72")
        a("v_mbcnt_lo_u32_b32 v1, -1, 0")
        for i in range(8):
            a(f"v_mov_b32 v2, s{72+2*i}")
            a(f"v_cmp_eq_u32 vcc, {i}, v1")
            a("v_cndmask_b32 v0, v0, v2, vcc")
        a("v_lshlrev_b32 v1, 2, v1")
        a(f"s_add_u32 s92, s92, {32 if kidx else 512}")
        a("s_addc_u32 s93, s93, 0")
        a("s_and_b32 s90, s2, 31")
        a("s_lshl_b32 s91, s3, 5")
        a("s_or_b32 s90, s90, s91")
        a("s_cmp_eq_u32 s90, 5")
        a("s_cselect_b64 exec, exec, 0")
        a("global_atomic_umax v1, v0, s[92:93]")
    elif STAMPS:
        stamp(a, 7)
        a("s_mov_b64 exec, 1")
        a("s_waitcnt lgkmcnt(0)")
        for i in range(8): a(f"v_mov_b32 v{i}, s{72+2*i}")
        srd(a, 68, wslo, wslo+1, 0x10000000)
        a("s_lshl_b32 s90, s2, 3")
        a("s_add_u32 s90, s90, s3")
        a(f"s_add_u32 s90, s90, {kidx*4096}")
        a("s_lshl_b32 s90, s90, 5")
        a(f"s_add_u32 s90, s90, {STAMP_BASE}")
        a("v_mov_b32 v8, 0")
        a("buffer_store_dwordx4 v[0:3], v8, s[68:71], s90 offen")
        a("buffer_store_dwordx4 v[4:7], v8, s[68:71], s90 offen offset:16")
        if kidx == 1 and "pa" in OPT:
            lab = f"PRB{len(a.L)}"
            a("s_lshl_b32 s91, s3, 8")
            a("s_or_b32 s91, s91, s2")
            a("s_cmp_lg_u32 s91, 5")
            a(f"s_cbranch_scc1 {lab}_e")
            a(f"s_add_u32 s68, s68, {STAMP_BASE + 5*8*32}")
            a("s_addc_u32 s69, s69, 0")
            a("s_load_dwordx8 s[40:47], s[68:69], 0")
            a("s_waitcnt lgkmcnt(0)")
            reg = lambda i: f"s{40+i}" if i < 8 else f"s{72+2*(i-8)}"
            a(f"s_sub_u32 s91, {reg(int(OPT['pb']))}, {reg(int(OPT['pa']))}")
            a("s_lshl_b32 s91, s91, 3")
            a("s_min_u32 s91, s91, 40000")
            a("s_add_u32 s91, s91, s86")
            a.label(lab)
            a("s_memrealtime s[48:49]")
            a("s_waitcnt lgkmcnt(0)")
            a("s_sub_u32 s50, s48, s91")
            a("s_cmp_lt_i32 s50, 0")
            a(f"s_cbranch_scc1 {lab}")
            a.label(lab + "_e")
    a("s_endpgm")

def mfma32(d, A, B, C): return f"v_mfma_f32_32x32x16_bf16 {d}, {A}, {B}, {C}"
def mfma16(d, A, B, C): return f"v_mfma_f32_16x16x32_bf16 {d}, {A}, {B}, {C}"

def half_sum(a, x, t, op="v_add_f32"):
    a(f"v_mov_b32 v{t}, v{x}")
    a("s_nop 1")
    a(f"v_permlane32_swap_b32 v{t}, v{x}")
    a("s_nop 1")
    a(f"{op} v{x}, v{x}, v{t}")

K1_X, K1_W, K1_RL, K1_ST, K1_CS = 0, 57344, 114688, 130048, 130560
K1_LDS = 131072

def gen_k1(a):
    n = "k1_kernel"
    header(a, n)
    a("s_cmp_ge_u32 s2, 256")
    a("s_cbranch_scc1 K1_end")
    stamp_init(a)
    a("s_load_dwordx4 s[24:27], s[0:1], 0")
    a("s_load_dwordx4 s[28:31], s[0:1], 16")
    a("s_load_dwordx2 s[32:33], s[0:1], 32")
    a("s_load_dwordx4 s[36:39], s[0:1], 48")
    a("s_load_dwordx2 s[40:41], s[0:1], 64")
    a("s_load_dwordx2 s[42:43], s[0:1], 88")
    a("v_lshrrev_b32 v1, 6, v0")
    a("v_and_b32 v0, 63, v0")
    a("v_readfirstlane_b32 s3, v1")
    a("s_and_b32 s4, s2, 7")
    a("s_lshl_b32 s4, s4, 2")
    a("s_bfe_u32 s6, s2, 0x20003")
    a("s_add_u32 s4, s4, s6")
    a("s_lshr_b32 s5, s2, 5")
    a("v_lshrrev_b32 v2, 5, v0")
    a("v_bfe_u32 v3, v0, 4, 1")
    a("v_bfe_u32 v4, v0, 2, 2")
    a("v_and_b32 v5, 3, v0")
    a("v_lshrrev_b32 v6, 3, v0")
    a("v_and_b32 v7, 7, v0")
    a("s_movk_i32 s60, 896")
    a("s_cmp_lt_u32 s2, 112")
    a("s_cselect_b32 s60, 3584, s60")
    a("s_cselect_b32 s61, 0, 112")
    a("s_cselect_b32 s62, 2, 4")
    a("s_cmp_lt_u32 s2, 224")
    a("s_cselect_b32 s61, s61, 224")
    a("s_cselect_b32 s62, s62, 2")
    a("s_sub_u32 s59, s2, s61")
    a("s_lshr_b32 s58, s59, s62")
    a("s_lshl_b32 s61, s58, s62")
    a("s_sub_u32 s59, s59, s61")
    a("s_cmp_eq_u32 s3, 4")
    a("s_cbranch_scc1 K1_rl")
    a("s_and_b32 s6, s3, 1")
    a("s_lshr_b32 s7, s3, 1")
    a("v_lshrrev_b32 v10, 1, v6")
    a("v_and_b32 v11, 1, v10")
    a("v_lshlrev_b32 v11, 2, v11")
    a("v_xor_b32 v11, v7, v11")
    a("v_lshlrev_b32 v11, 4, v11")
    a("v_mad_u32_u24 v12, v6, s60, v11")
    a("s_mul_i32 s61, s59, 14")
    a("s_add_u32 s61, s61, s3")
    a("s_lshl_b32 s60, s60, 3")
    a("s_mul_i32 s61, s61, s60")
    a("s_lshl_b32 s62, s58, 7")
    a("s_add_u32 s61, s61, s62")
    a("s_lshl_b32 s60, s60, 2")
    a("s_lshl_b32 s62, s3, 10")
    a(f"s_add_u32 m0, s62, {K1_RL}")
    a("v_xor_b32 v9, v7, v10")
    a("s_lshl_b32 s44, s6, 2")
    a("v_xor_b32 v9, s44, v9")
    a("v_mul_u32_u24 v8, 896, v6")
    a("v_lshl_add_u32 v9, v9, 4, v8")
    a("s_lshl_b32 s44, s4, 6")
    a("s_lshl_b32 s45, s3, 4")
    a("s_add_u32 s44, s44, s45")
    a("s_mul_i32 s44, s44, 896")
    a("s_mul_i32 s45, s3, 14336")
    a(f"s_mov_b32 s22, {W1_BYTES}")
    a("s_mov_b32 s23, 0x20000")
    a("s_cmp_lt_u32 s2, 112")
    a("s_waitcnt lgkmcnt(0)")
    a("s_cselect_b32 s20, s36, s40")
    a("s_cselect_b32 s21, s37, s41")
    a("s_cmp_lt_u32 s2, 224")
    a("s_cselect_b32 s20, s20, s32")
    a("s_cselect_b32 s21, s21, s33")
    a(f"s_cselect_b32 s22, s22, {WQ_BYTES}")
    if not OPT.get("norl"):
        a("s_cmp_ge_u32 s2, 252")
        a("s_cbranch_scc1 K1_rlq")
        for j in range(4):
            a("buffer_load_dwordx4 v12, s[20:23], s61 offen lds")
            if j == 3: break
            a("s_add_u32 m0, m0, 4096")
            a("s_add_u32 s61, s61, s60")
            if j == 2:
                a("s_cmp_ge_u32 s3, 2")
                a("s_cbranch_scc1 K1_rlq")
        a.label("K1_rlq")
    srd(a, 8, 24, 25, X_BYTES)
    a("s_cmp_eq_u32 s5, 7")
    a("s_cbranch_scc0 K1_q")
    a("s_cmp_eq_u32 s6, 0")
    a("s_cbranch_scc1 K1_k")
    a("s_branch K1_v")

    ACC, CS, SS, SQ, SEL, ONE, BUF, SB = 96, 112, 116, 120, 124, 128, 32, 16
    def proj(kind):
        P = "K1" + kind
        if kind == "q":
            a("v_add_u32 v8, v8, v11")
            a("s_mul_i32 s46, s3, 16*896")
            a("s_lshl_b32 s47, s5, 7")
            a("s_add_u32 s46, s46, s47")
            a("s_lshl_b32 s47, s3, 11")
            a(f"s_add_u32 s47, s47, {K1_W}")
            a("s_and_b32 s48, s4, 3")
            a(f"s_mul_i32 s48, s48, {OPT.get('rotm', 2)}")
            a("s_add_u32 s48, s48, s5")
            a("s_cmp_ge_u32 s48, 7")
            a("s_cselect_b32 s49, 7, 0")
            a("s_sub_u32 s48, s48, s49")
            if not OPT.get("rot", 1): a("s_mov_b32 s48, 0")
        else:
            a("v_lshlrev_b32 v8, 4, v0")
            a("s_lshl_b32 s46, s7, 10")
            a("s_mul_i32 s47, s6, 28672")
            a("s_add_u32 s47, s47, s46")
            a(f"s_add_u32 s47, s47, {K1_W}")
        if kind == "q": srd(a, 12, 26, 27, WQ_BYTES)
        else: srd(a, 12, 28 if kind == "k" else 30, 29 if kind == "k" else 31, WK_BYTES)
        def chunk_items(i):
            it = []
            if kind == "q":
                it.append(["s_lshl_b32 s49, s48, 7", "s_add_u32 s49, s49, s44", f"s_add_u32 m0, s45, {1024*i}", "s_mul_i32 s50, s48, 64*896", "buffer_load_dwordx4 v9, s[8:11], s49 offen lds"])
                it.append(["s_add_u32 s49, s49, 8*896", f"s_add_u32 m0, s45, {1024*i + 7168}", "s_add_u32 s50, s50, s46", "buffer_load_dwordx4 v9, s[8:11], s49 offen lds"])
                it.append([f"s_add_u32 m0, s47, {8192*i}", "s_add_u32 s48, s48, 1", "buffer_load_dwordx4 v8, s[12:15], s50 offen lds"])
                it.append(["s_add_u32 s50, s50, 8*896", f"s_add_u32 m0, s47, {8192*i + 1024}", "s_cmp_eq_u32 s48, 7", "s_cselect_b32 s48, 0, s48", "buffer_load_dwordx4 v8, s[12:15], s50 offen lds"])
            else:
                it.append([f"s_add_u32 m0, s45, {1024*i}", f"s_add_u32 s49, s44, {128*i}", "buffer_load_dwordx4 v9, s[8:11], s49 offen lds"])
                it.append([f"s_add_u32 m0, s45, {1024*i + 7168}", f"s_add_u32 s49, s44, {128*i + 7168}", "buffer_load_dwordx4 v9, s[8:11], s49 offen lds"])
                it.append([f"s_add_u32 m0, s47, {4096*i}", f"s_add_u32 s50, s46, {4096*i}", "buffer_load_dwordx4 v8, s[12:15], s50 offen lds"])
                it.append([f"s_add_u32 m0, s47, {4096*i + 2048}", f"s_add_u32 s50, s46, {4096*i + 2048}", "buffer_load_dwordx4 v8, s[12:15], s50 offen lds"])
            return it
        NA = OPT.get("k1a", 3)
        for i in range(NA):
            for it in chunk_items(i):
                for x in it: a(x)
        stamp(a, 1)
        srd(a, 16, 42, 43, WS_SIZE)
        a("v_lshlrev_b32 v10, 3, v2")
        a("v_add_u32 v10, v10, v4")
        if kind == "q":
            a("v_lshrrev_b32 v11, 1, v4")
            a("v_xor_b32 v11, s6, v11")
            a("v_lshlrev_b32 v10, 7, v10")
            a("v_lshl_add_u32 v10, v11, 6, v10")
            a(f"v_add_u32 v10, {K1_W}, v10")
        else:
            a("v_mul_u32_u24 v10, 56, v10")
            a(f"v_add_u32 v10, {K1_W + (28672 if kind == 'v' else 0)}, v10")
        a("v_lshl_add_u32 v10, v3, 5, v10")
        a("v_lshl_add_u32 v10, v5, 3, v10")
        a("v_and_b32 v13, 31, v0")
        a("v_bfe_u32 v14, v13, 1, 2")
        a("v_lshrrev_b32 v15, 2, v13")
        a("v_and_b32 v15, 4, v15")
        a("v_or_b32 v14, v14, v15")
        a("v_xor_b32 v14, v14, v2")
        a("v_lshrrev_b32 v15, 3, v13")
        a("v_mul_u32_u24 v15, 7168, v15")
        a("v_lshl_add_u32 v15, v7, 7, v15")
        a("s_mul_i32 s51, s7, 28672")
        a("v_add_u32 v15, s51, v15")
        for j in range(4):
            a(f"v_xor_b32 v11, {2*j}, v14")
            a(f"v_lshl_add_u32 v{24+j}, v11, 4, v15")
        a("v_bfe_u32 v11, v0, 3, 1")
        a("v_mul_u32_u24 v11, 7168, v11")
        a("v_lshl_add_u32 v11, v7, 7, v11")
        a("v_lshrrev_b32 v12, 4, v0")
        a("v_lshrrev_b32 v28, 1, v7")
        a("v_xor_b32 v12, v12, v28")
        a("v_lshl_add_u32 v11, v12, 4, v11")
        a("v_add_u32 v28, s45, v11")
        a("v_xor_b32 v29, 64, v28")
        a("v_xor_b32 v11, v0, v3")
        a("v_and_b32 v11, 1, v11")
        a(f"v_mov_b32 v12, {ONES_BF}")
        a("v_cmp_eq_u32 vcc, 0, v11")
        for i in range(4): a(f"v_mov_b32 v{ONE+i}, v12")
        for i in range(4): a(f"v_cndmask_b32 v{SEL+i}, 0, v12, vcc")
        if kind == "q":
            a("s_lshl_b32 s51, s5, 4")
            a("s_lshl_b32 s52, s6, 3")
            a("s_add_u32 s51, s51, s52")
            a("v_add_u32 v11, s51, v2")
            a("v_lshrrev_b32 v12, 3, v13")
            a("v_lshlrev_b32 v12, 13, v12")
            a("v_lshl_add_u32 v12, v7, 4, v12")
            for q in range(4):
                d = 132 + q
                a("v_mul_u32_u24 v30, 147, v11")
                a("v_lshrrev_b32 v30, 10, v30")
                a("v_mul_u32_u24 v31, 7, v30")
                a("v_sub_u32 v31, v11, v31")
                a(f"v_lshrrev_b32 v{d}, 2, v30")
                a(f"v_lshl_add_u32 v{d}, v{d}, 11, v12")
                a("v_and_b32 v30, 3, v30")
                a(f"v_lshl_add_u32 v{d}, v30, 7, v{d}")
                a("v_lshrrev_b32 v30, 2, v31")
                a(f"v_lshl_add_u32 v{d}, v30, 10, v{d}")
                a("v_and_b32 v30, 1, v31")
                a(f"v_lshl_add_u32 v{d}, v30, 9, v{d}")
                a("v_bfe_u32 v30, v31, 1, 1")
                a(f"v_lshl_add_u32 v{d}, v30, 3, v{d}")
                if q < 3: a("v_add_u32 v11, 2, v11")
        def reads(i):
            b = BUF + 32*(i & 1); L = []
            for k in range(4):
                wo = 8192*i + 2048*k if kind == "q" else 896*(4*i + k)
                L += [f"ds_read_b64_tr_b16 {vr(b+8*k,2)}, v10 offset:{wo}",
                      f"ds_read_b64_tr_b16 {vr(b+8*k+2,2)}, v10 offset:{wo + (512 if kind == 'q' else 224)}",
                      f"ds_read_b128 {vr(b+8*k+4,4)}, v{24+k} offset:{1024*i}"]
            L += [f"ds_read_b128 {vr(SB+4*hf,4)}, v{28+hf} offset:{1024*i}" for hf in range(2)]
            return L
        def mfmas(i):
            b = BUF + 32*(i & 1); L = []
            z = lambda r, n_, first: "0" if first else vr(r, n_)
            for k in range(4):
                W, X = vr(b+8*k,4), vr(b+8*k+4,4)
                f = i == 0 and k == 0
                if kind == "v":
                    L += [mfma32(vr(ACC,16), X, W, z(ACC,16,f)), mfma16(vr(CS,4), vr(SEL,4), W, z(CS,4,f))]
                else:
                    L += [mfma32(vr(ACC,16), W, X, z(ACC,16,f)), mfma16(vr(CS,4), W, vr(SEL,4), z(CS,4,f))]
            return L
        def smfmas(i):
            L = []
            for hf in range(2):
                f = i == 0 and hf == 0
                X = vr(SB+4*hf,4)
                L += [mfma16(vr(SS,4), X, vr(ONE,4), "0" if f else vr(SS,4)), mfma16(vr(SQ,4), X, X, "0" if f else vr(SQ,4))]
            return L
        for i in range(8):
            fillers = []
            if i < 7:
                if i == 0 and STAMPS:
                    a(f"s_waitcnt vmcnt({4*NA})")
                    stamp(a, 5)
                    a(f"s_waitcnt vmcnt({4*NA - 4})")
                    stamp(a, 6)
                a(f"s_waitcnt vmcnt({4*(min(i + NA, 7) - i - 1)})")
                a("s_barrier")
                if i == 0: stamp(a, 2)
                fillers = [[x] for x in reads(i)]
            ld = chunk_items(i + NA) if i + NA < 7 else []
            if i == 0:
                for it in fillers + ld:
                    for x in it: a(x)
                continue
            a("s_waitcnt lgkmcnt(0)")
            M = smfmas(i - 1) + mfmas(i - 1)
            rest = fillers[:12] + ld
            late = fillers[12:]
            for k, m in enumerate(M):
                a(m)
                if k >= 4 and late and k in (6, 8):
                    for x in late.pop(0): a(x)
                take = -(-len(rest) // (len(M) - k))
                for _ in range(take):
                    for x in rest.pop(0): a(x)
            assert not rest and not late
        stamp(a, 3)
        a("v_cmp_eq_u32 vcc, 1, v5")
        a("v_cmp_eq_u32 s[52:53], 2, v5")
        a("v_cmp_eq_u32 s[54:55], 3, v5")
        a("v_lshrrev_b32 v11, 4, v0")
        a("v_cmp_eq_u32 s[56:57], v11, v4")
        for r in (SS, SQ):
            a(f"v_cndmask_b32 v{r}, v{r}, v{r+1}, vcc")
            a(f"v_cndmask_b32 v{r}, v{r}, v{r+2}, s[52:53]")
            a(f"v_cndmask_b32 v{r}, v{r}, v{r+3}, s[54:55]")
        a(f"v_mul_f32 v20, {hexf(1.0/448)}, v{SS}")
        a(f"v_mul_f32 v22, {hexf(1.0/448)}, v{SQ}")
        a("v_fma_f32 v22, -v20, v20, v22")
        a("v_max_f32 v22, 0, v22")
        a(f"v_add_f32 v22, {hexf(1e-5)}, v22")
        a("v_rsq_f32 v22, v22")
        a("s_lshl_b32 s51, s3, 7")
        a(f"s_add_u32 s51, s51, {K1_ST}")
        a("v_and_b32 v11, 15, v0")
        a("v_lshl_add_u32 v11, v11, 3, s51")
        a("v_mul_f32 v23, -v20, v22")
        a("s_mov_b64 exec, s[56:57]")
        a("ds_write_b64 v11, v[22:23]")
        a("s_mov_b64 exec, -1")
        if kind != "v":
            a("s_lshl_b32 s51, s3, 7")
            a(f"s_add_u32 s51, s51, {K1_CS}")
            a("v_lshrrev_b32 v11, 4, v0")
            a("v_lshlrev_b32 v11, 4, v11")
            a("v_and_b32 v14, 15, v0")
            a("v_lshl_add_u32 v11, v14, 6, v11")
            a("v_add_u32 v11, s51, v11")
            a("v_lshl_add_u32 v14, v2, 4, s51")
            a("s_mov_b32 exec_lo, 0x00030003")
            a("s_mov_b32 exec_hi, 0x00030003")
            a(f"ds_write_b128 v11, {vr(CS,4)}")
            a("s_mov_b64 exec, -1")
            for i in range(4): a(f"ds_read_b128 {vr(32+4*i,4)}, v14 offset:{32*i}")
        else:
            a("v_cmp_ne_u32 vcc, 0, v3")
            a("s_nop 1")
            a(f"v_cndmask_b32 v{CS}, v{CS}, v{CS+1}, vcc")
        a("s_lshl_b32 s51, s7, 8")
        a(f"s_add_u32 s51, s51, {K1_ST}")
        a("s_waitcnt lgkmcnt(0)")
        a("s_barrier")
        stamp(a, 4)
        if kind != "v":
            a("v_lshl_add_u32 v11, v13, 3, s51")
            a("ds_read_b64 v[20:21], v11")
            a("v_cmp_ne_u32 s[52:53], 0, v2")
            if kind == "q":
                a("s_lshl_b32 s51, s4, 3")
                a("s_lshl_b32 s54, s7, 2")
                a("s_add_u32 s51, s51, s54")
                a("s_lshl_b32 s51, s51, 13")
                if QF: a(f"s_add_u32 s51, s51, {QF}")
            a("s_waitcnt lgkmcnt(0)")
            if kind == "q":
                a(f"v_mul_f32 v20, {hexf(QSCALE)}, v20")
                a(f"v_mul_f32 v21, {hexf(QSCALE)}, v21")
            for q in range(4):
                for i in range(4*q, 4*q + 4):
                    a(f"v_mul_f32 v{ACC+i}, v{ACC+i}, v20")
                    a(f"v_fmac_f32 v{ACC+i}, v{32+i}, v21")
                for i in range(2): a(f"v_cvt_pk_bf16_f32 v{48+2*q+i}, v{ACC+4*q+2*i}, v{ACC+4*q+2*i+1}")
                if kind == "q": a(f"buffer_store_dwordx2 {vr(48+2*q,2)}, v{132+q}, s[16:19], s51 offen{SM('qm')}")
            if kind == "q":
                fin(a, 0, 42)
                return
            a("v_cndmask_b32 v54, v54, 0, s[52:53]")
            a("v_cndmask_b32 v55, v55, 0, s[52:53]")
            a("v_mov_b32 v20, 0")
            a("v_mov_b32 v22, 0x3f80")
            for i in range(8): a(f"v_dot2c_f32_bf16 v20, v{48+i}, v{48+i}")
            a("v_cndmask_b32 v54, v54, v22, s[52:53]")
            a("s_lshl_b32 s51, s4, 1")
            a("s_add_u32 s51, s51, s7")
            a("s_lshl_b32 s54, s51, 2")
            a(f"s_add_u32 s54, s54, {KMAX}")
            a("s_lshl_b32 s51, s51, 12")
            a(f"s_add_u32 s51, s51, {KV}")
            a("v_lshlrev_b32 v16, 4, v0")
            a(f"buffer_store_dwordx4 v[48:51], v16, s[16:19], s51 offen{SM('k1m')}")
            a(f"buffer_store_dwordx4 v[52:55], v16, s[16:19], s51 offen offset:1024{SM('k1m')}")
            half_sum(a, 20, 21)
            a("s_nop 1")
            for m in ("quad_perm:[1,0,3,2]", "quad_perm:[2,3,0,1]", "row_half_mirror", "row_mirror"):
                a(f"v_max_f32_dpp v20, v20, v20 {m} row_mask:0xf bank_mask:0xf")
                a("s_nop 1")
            a("v_mov_b32 v21, v20")
            a("s_nop 1")
            a("v_permlane16_swap_b32 v21, v20")
            a("s_nop 1")
            a("v_max_f32 v20, v20, v21")
            a("v_mov_b32 v17, 0")
            a("s_mov_b64 exec, 1")
            a(f"buffer_store_dword v20, v17, s[16:19], s54 offen{SM('k1m')}")
            fin(a, 0, 42)
            return
        a("v_lshl_add_u32 v11, v2, 5, s51")
        for i in range(8): a(f"ds_read_b128 {vr(32+4*i,4)}, v11 offset:{64*(i>>1) + 16*(i&1)}")
        a("v_cmp_eq_u32 s[52:53], 28, v13")
        a(f"v_mov_b32 v21, {ONES_BF}")
        a("v_cmp_lt_u32 s[54:55], 27, v13")
        a("v_cndmask_b32 v21, 0, v21, s[52:53]")
        a("s_lshl_b32 s51, s4, 1")
        a("s_add_u32 s51, s51, s7")
        a("s_lshl_b32 s51, s51, 12")
        a(f"s_add_u32 s51, s51, {KV}")
        a("v_lshlrev_b32 v16, 4, v0")
        a("s_waitcnt lgkmcnt(0)")
        for i in range(16):
            a(f"v_mul_f32 v{ACC+i}, v{ACC+i}, v{32+2*i}")
            a(f"v_fmac_f32 v{ACC+i}, v{33+2*i}, v{CS}")
        for i in range(8): a(f"v_cvt_pk_bf16_f32 v{64+i}, v{ACC+2*i}, v{ACC+2*i+1}")
        for i in range(8): a(f"v_cndmask_b32 v{64+i}, v{64+i}, v21, s[54:55]")
        a(f"buffer_store_dwordx4 v[64:67], v16, s[16:19], s51 offen offset:2048{SM('k1m')}")
        a(f"buffer_store_dwordx4 v[68:71], v16, s[16:19], s51 offen offset:3072{SM('k1m')}")
        fin(a, 0, 42)
    a.label("K1_q")
    proj("q")
    a.label("K1_end")
    a("s_endpgm")
    a.L.append(".p2align 12")
    a.label("K1_k")
    proj("k")
    a.L.append(".p2align 12")
    a.label("K1_v")
    proj("v")

    a.L.append(".p2align 12")
    a.label("K1_rl")
    if OPT.get("norl"): a("s_endpgm")
    a("s_cmp_ge_u32 s2, 252")
    a("s_cbranch_scc1 K1_rl_end")
    a("s_mov_b32 s6, s58")
    a("s_mov_b32 s7, s59")
    a("s_mov_b32 s47, 0")
    a(f"s_mov_b32 s49, {W1S}")
    a("s_mov_b32 s48, 7168")
    a(f"s_mov_b32 s46, {W1F}")
    a("s_cmp_lt_u32 s2, 112")
    a("s_cselect_b32 s47, s47, 1")
    a("s_cselect_b32 s49, s49, 112*1024")
    a(f"s_cselect_b32 s46, s46, {W2F}")
    a("s_cmp_lt_u32 s2, 224")
    a("s_cselect_b32 s47, s47, 2")
    a("s_cselect_b32 s49, s49, 32768")
    a(f"s_cselect_b32 s46, s46, {WOF}")
    a("s_cselect_b32 s48, s48, 8192")
    a("s_mul_i32 s48, s48, s7")
    a("s_add_u32 s46, s46, s48")
    a("s_mul_i32 s48, s49, s6")
    a("s_lshl_b32 s48, s48, 1")
    a("s_add_u32 s46, s46, s48")
    a("s_lshl_b32 s48, s6, 7")
    a("v_lshlrev_b32 v16, 1, v0")
    a("s_waitcnt lgkmcnt(0)")
    srd(a, 16, 42, 43, WS_SIZE)
    srd(a, 20, 38, 39, 3584)
    a("buffer_load_ushort v30, v16, s[20:23], s48 offen")
    stamp(a, 1)
    a("v_lshlrev_b32 v10, 2, v2")
    a("v_add_u32 v10, v10, v4")
    a("v_lshlrev_b32 v10, 7, v10")
    a("v_lshrrev_b32 v11, 1, v4")
    a("v_lshl_add_u32 v10, v11, 6, v10")
    a("v_lshl_add_u32 v10, v3, 5, v10")
    a("v_lshl_add_u32 v10, v5, 3, v10")
    a(f"v_add_u32 v10, {K1_RL}, v10")
    a("v_xor_b32 v11, 64, v10")
    a("v_lshlrev_b32 v16, 4, v0")
    a("s_add_u32 s48, s46, s49")
    a(f"s_mov_b32 s50, {ONES_BF}")
    a("v_cmp_ne_u32 s[52:53], 0, v2")
    for i in range(4): a(f"v_mov_b32 v{20+i}, 0")
    a("s_barrier")
    stamp(a, 2)
    a("s_cmp_eq_u32 s47, 2")
    a("s_cbranch_scc1 K1_rlo")
    def rl(rows, wo):
        def rd(p):
            b = 32 + 8*(p % 4)
            for t in range(2):
                a(f"ds_read_b64_tr_b16 {vr(b+4*t,2)}, v{10+t} offset:{rows[p]*128}")
                a(f"ds_read_b64_tr_b16 {vr(b+4*t+2,2)}, v{10+t} offset:{rows[p]*128 + 1024}")
        N = len(rows)
        rd(0); rd(1)
        for p in range(N):
            if p + 2 < N: rd(p + 2)
            a(f"s_waitcnt lgkmcnt({4*min(2, N-1-p)})")
            b = 32 + 8*(p % 4)
            if wo and p & 1:
                for r in (b+2, b+3, b+6, b+7): a(f"v_cndmask_b32 v{r}, v{r}, 0, s[52:53]")
            off = f" offset:{1024*(p&3)}" if p & 3 else ""
            a(f"buffer_store_dwordx4 {vr(b,4)}, v16, s[16:19], s46 offen{off}{SM('k1m')}")
            a(f"buffer_store_dwordx4 {vr(b+4,4)}, v16, s[16:19], s48 offen{off}{SM('k1m')}")
            if not wo:
                for i in range(8): a(f"v_dot2c_f32_bf16 v{20 + 2*(i>>2) + (i&1)}, s50, v{b+i}")
            if p == 3:
                a("s_add_u32 s46, s46, 4096")
                a("s_add_u32 s48, s48, 4096")
            if p < 6: a("s_barrier")
    rl([16*k for k in range(7)], False)
    a("s_cmp_eq_u32 s47, 0")
    a("s_cbranch_scc0 K1_rl_fin")
    a("v_add_f32 v20, v20, v21")
    a("v_add_f32 v22, v22, v23")
    half_sum(a, 20, 21)
    half_sum(a, 22, 23)
    a("v_cndmask_b32 v20, v20, v22, s[52:53]")
    a("v_cvt_pk_bf16_f32 v21, v20, v20")
    a("v_lshlrev_b32 v22, 16, v21")
    a("v_sub_f32 v22, v20, v22")
    a("v_cvt_pk_bf16_f32 v22, v22, v22")
    a("v_and_b32 v13, 31, v0")
    a(f"v_mul_u32_u24 v16, {W1S}, v2")
    a("v_lshl_add_u32 v16, v13, 4, v16")
    a(f"s_mul_i32 s46, s6, {2*W1S}")
    a("s_lshr_b32 s48, s7, 1")
    a("s_lshl_b32 s48, s48, 9")
    a("s_add_u32 s46, s46, s48")
    a(f"s_add_u32 s46, s46, {W1F + 28*1024}")
    a("s_and_b32 s48, s7, 1")
    a("s_mul_i32 s49, s48, 6")
    a("s_add_u32 s49, s49, s46")
    a(f"buffer_store_short v21, v16, s[16:19], s49 offen{SM('k1m')}")
    a(f"buffer_store_short v21, v16, s[16:19], s49 offen offset:2{SM('k1m')}")
    a(f"buffer_store_short v22, v16, s[16:19], s49 offen offset:4{SM('k1m')}")
    a("s_cmp_eq_u32 s48, 0")
    a("s_cbranch_scc0 K1_rl_fin")
    a("s_waitcnt vmcnt(17)")
    a("v_lshl_or_b32 v30, v30, 16, v30")
    a("s_cmp_eq_u32 s7, 0")
    a("s_cselect_b32 s49, -1, 0")
    a("v_and_b32 v30, s49, v30")
    a(f"buffer_store_dword v30, v16, s[16:19], s46 offen offset:12{SM('k1m')}")
    a.label("K1_rl_fin")
    fin(a, 0, 42)
    a.label("K1_rlo")
    rl([28*(k >> 1) + 16*(k & 1) for k in range(8)], True)
    fin(a, 0, 42)
    a.label("K1_rl_end")
    for i in range(4): a(f"v_mov_b32 v{12+i}, 0")
    a("s_sub_u32 s51, s2, 252")
    a("s_mul_i32 s51, s51, 5120")
    a(f"s_add_u32 s51, s51, {SYNC}")
    a("v_lshlrev_b32 v11, 4, v0")
    a("s_waitcnt lgkmcnt(0)")
    srd(a, 16, 42, 43, WS_SIZE)
    for i in range(4): a(f"buffer_store_dwordx4 v[12:15], v11, s[16:19], s51 offen offset:{1024*i} sc1")
    a("s_add_u32 s51, s51, 4096")
    a("buffer_store_dwordx4 v[12:15], v11, s[16:19], s51 offen sc1")
    a("s_endpgm")
    return kd(n, 136, 64, 136), f"; @launch kernel={n} grid=(256,1,1) block=(320,1,1) lds={K1_LDS}"

L_RED, L_XC, L_HN, L_ACT, L_W2 = 0, 49152, 0, 65536, 98304
KB_LDS = 163840
H_ST, H_T1 = 28672, 36864
F_O, F_H, F_P0, F_P1 = 0, 128, 256, 384
SHIFT_LIMIT = 40.0
SPIN_LIMIT = 1 << 17
LN2F = math.log(2.0)

class Cnt:
    def __init__(self, name, cap): self.q = []; self.name = name; self.cap = cap
    def issue(self, tag):
        self.q.append(tag)
        assert self.name != "vmcnt" or len(self.q) <= self.cap, (self.name, tag, len(self.q))
    def wait(self, tag):
        if tag not in self.q: return None
        k = len(self.q) - 1 - self.q[::-1].index(tag)
        n = min(len(self.q) - 1 - k, self.cap)
        self.q = self.q[len(self.q)-n:] if n else []
        return f"s_waitcnt {self.name}({n})"
    def clear(self): self.q = []

def cost(t):
    mn = t.split()[0]
    if mn.startswith(("v_exp", "v_rcp", "v_rsq", "v_sqrt")): return 8
    if mn.startswith(("ds_write_b128", "global_store")): return 20
    if mn.startswith(("ds_", "global_", "buffer_")): return 12
    if mn.startswith(("v_cvt_pk", "v_fma_")): return 5
    return 4.3

def gen_kb(a, force_slow=False, force_fence=False):
    n = "kb_kernel"
    header(a, n)
    vm = Cnt("vmcnt", 63); lg = Cnt("lgkmcnt", 15)
    def V(text, tag="-"):
        if len(vm.q) >= 63:
            a("s_waitcnt vmcnt(48)"); vm.q = vm.q[-48:]
        a(text); vm.issue(tag)
    def D(text, tag="-"): a(text); lg.issue(tag)
    def WV(tag):
        w = vm.wait(tag)
        if w: a(w)
    def WL(tag):
        w = lg.wait(tag)
        if w: a(w)
    def add64(d, s, off):
        a(f"s_add_u32 s{d}, s{s}, {off}")
        a(f"s_addc_u32 s{d+1}, s{s+1}, 0")
    def emit_item(it):
        if it[0] == "s": a(it[1])
        elif it[0] == "v": V(it[1], it[2])
        elif it[0] == "d": D(it[1], it[2])
        elif it[0] == "wv": WV(it[1])
        elif it[0] == "wl": WL(it[1])
    XR, Q, KVR, S, P, WOV = 16, 32, 64, 96, 128, 144
    a("s_cmp_ge_u32 s2, 256")
    a("s_cbranch_scc1 KB_end")
    stamp_init(a)
    a("s_load_dwordx2 s[8:9], s[0:1], 88")
    a("s_load_dwordx2 s[10:11], s[0:1], 0")
    a("s_load_dwordx2 s[12:13], s[0:1], 72")
    a("v_lshrrev_b32 v1, 6, v0")
    a("v_and_b32 v0, 63, v0")
    a("v_readfirstlane_b32 s3, v1")
    a("s_lshr_b32 s7, s2, 3")
    a("s_and_b32 s4, s2, 7")
    a("s_lshl_b32 s4, s4, 2")
    a("s_lshr_b32 s5, s7, 3")
    a("s_add_u32 s4, s4, s5")
    a("s_and_b32 s5, s7, 7")
    a("s_lshl_b32 s6, s4, 3")
    a("s_add_u32 s6, s6, s5")
    a("v_lshlrev_b32 v1, 4, v0")
    a("v_lshrrev_b32 v2, 5, v0")
    a("v_lshlrev_b32 v3, 2, v0")
    a("s_lshl_b32 s52, s3, 16")
    a(f"s_add_u32 s52, s52, {KV + 4096}")
    a("s_lshl_b32 s53, s5, 13")
    a("s_add_u32 s53, s53, s52")
    a("s_lshl_b32 s54, s6, 13")
    if QF: a(f"s_add_u32 s54, s54, {QF}")
    a(f"s_mov_b32 s55, {KMAX}")
    for t in range(4):
        a(f"s_add_u32 s{56+t}, s3, {t+1}")
        a(f"s_and_b32 s{56+t}, s{56+t}, 3")
        a(f"s_lshl_b32 s{56+t}, s{56+t}, 11")
        a(f"s_add_u32 s{56+t}, s{56+t}, s54")
    a("s_waitcnt lgkmcnt(0)")
    srd(a, 16, 8, 9, WS_SIZE)
    add64(32, 8, "s53")
    V("buffer_load_dword v4, v3, s[16:19], s55 offen", "kmax")
    for t in range(4):
        V(f"buffer_load_dwordx4 {vr(Q+8*t,4)}, v1, s[16:19], s{56+t} offen", f"q{t}")
        V(f"buffer_load_dwordx4 {vr(Q+8*t+4,4)}, v1, s[16:19], s{56+t} offen offset:1024", f"q{t}")
    NKP = 3
    S0, S1, S8 = KVR, KVR + 16, WOV + 96
    kvs = [(S0, S1, S8)[i % 3] for i in range(16)]
    def kvld(i, part):
        b = 32 + 2*(i >> 1)
        return f"global_load_dwordx4 {vr(kvs[i]+4*part,4)}, v1, s[{b}:{b+1}] offset:{4096*(i&1) - 4096 + 1024*part}"
    def kvbase(p):
        a(f"s_add_u32 s53, s5, {p}")
        a("s_and_b32 s53, s53, 7")
        a("s_lshl_b32 s53, s53, 13")
        a("s_add_u32 s53, s53, s52")
        add64(32+2*p, 8, "s53")
    NPRO = OPT.get('npro', 2)
    for i in range(NPRO):
        if i and i % 2 == 0: kvbase(i // 2)
        for part in range(4): V(kvld(i, part), f"{'KV'[part>>1]}{i}")
    srd(a, 24, 12, 13, X_BYTES)
    a("v_lshlrev_b32 v10, 7, v0")
    a("s_lshl_b32 s53, s7, 2")
    a("s_add_u32 s53, s53, s3")
    a("s_cmp_lt_u32 s53, 56")
    a("s_cbranch_scc0 KB_wcode")
    a("s_lshl_b32 s54, s53, 13")
    a(f"s_add_u32 s54, s54, {WOF}")
    add64(50, 8, "s54")
    a("global_load_dword v31, v10, s[50:51]")
    a("s_branch KB_wdone")
    a.label("KB_wcode")
    a("s_getpc_b64 s[50:51]")
    a.label("KB_pc")
    a("s_sub_u32 s54, s53, 56")
    a("s_lshl_b32 s54, s54, 13")
    a("v_add_u32 v11, s54, v10")
    a("v_min_u32 v11, KB_code_end-KB_pc-4, v11")
    a("global_load_dword v31, v11, s[50:51]")
    a.label("KB_wdone")
    vm.issue("warm")
    a("s_getreg_b32 s69, hwreg(HW_REG_XCC_ID, 0, 4)")
    a("s_add_u32 s69, s69, 1")
    a("s_lshl_b32 s53, s4, 9")
    a(f"s_add_u32 s53, s53, {SYNC}")
    add64(66, 8, "s53")
    a("s_lshl_b32 s53, s4, 7")
    a(f"s_add_u32 s53, s53, {SYNC + 0x4000}")
    add64(62, 8, "s53")
    a("v_mov_b32 v11, s69")
    a("s_lshl_b32 s53, s5, 2")
    a("v_mov_b32 v12, s53")
    a("s_mov_b64 exec, 1")
    V("global_store_dword v12, v11, s[62:63] sc0 sc1", "xccpub")
    a("s_mov_b64 exec, -1")
    a("s_and_b32 s14, s3, 1")
    a("s_lshr_b32 s15, s3, 1")
    a("s_min_u32 s28, s5, 6")
    a("s_lshl_b32 s53, s28, 16")
    a("s_lshl_b32 s54, s14, 14")
    a("s_add_u32 s53, s53, s54")
    a(f"s_add_u32 s53, s53, {WOF + 4096}")
    a("s_lshl_b32 s54, s14, 15")
    a("s_add_u32 s55, s53, s54")
    add64(50, 8, "s55")
    a("s_xor_b32 s54, s54, 0x8000")
    a("s_add_u32 s55, s53, s54")
    add64(48, 8, "s55")
    a("s_lshl_b32 s53, s28, 3")
    a("s_add_u32 s53, s53, s3")
    a(f"s_mul_i32 s53, s53, {W1S}")
    a(f"s_add_u32 s53, s53, {W1F + 4096}")
    add64(96, 8, "s53")
    add64(98, 96, 4*W1S)
    VOFF = (1, 7, 9, 8)
    def woreg(f):
        return vr(WOV+4*f, 4) if f < 24 else ar(224+4*(f-24), 4)
    def wo_item(f):
        b = 48 if f < 16 else 50
        return [("v", f"global_load_dwordx4 {woreg(f)}, v{VOFF[(f%16)//8]}, s[{b}:{b+1}] offset:{1024*(f%8) - 4096}", f"wo{f}")]
    def w1reg(i):
        return ar(64+4*i, 4) if i < 40 else ar(4*(i-40), 4)
    def w1_item(i):
        b, ks = (96, i) if i < 28 else (98, i - 28)
        return [("v", f"global_load_dwordx4 {w1reg(i)}, v{VOFF[ks//8]}, s[{b}:{b+1}] offset:{1024*(ks%8) - 4096}", f"w1_{i}")]
    a("v_and_b32 v5, 31, v0")
    a("v_lshrrev_b32 v6, 2, v5")
    a("v_mul_u32_u24 v3, 7168, v6")
    a("v_and_b32 v6, 3, v0")
    a("v_mul_u32_u24 v11, 896, v6")
    a("v_add_u32 v3, v3, v11")
    a("v_lshl_add_u32 v3, v2, 4, v3")
    a("s_lshl_b32 s53, s4, 4")
    a("s_add_u32 s53, s53, s15")
    a("s_mul_i32 s53, s53, 3584")
    a("s_lshl_b32 s54, s28, 7")
    a("s_add_u32 s53, s53, s54")
    a("s_lshl_b32 s54, s14, 6")
    a("s_add_u32 s53, s53, s54")
    add64(100, 10, "s53")
    xr = [("v", f"global_load_dwordx4 {vr(XR+4*i,4)}, v3, s[100:101] offset:{32*i}", "xr") for i in range(2)]
    a("v_add_u32 v7, 8192, v1")
    a("v_add_u32 v9, 16384, v1")
    for p in range((NPRO + 1) // 2, 8): kvbase(p)
    for t in range(3):
        a(f"s_add_u32 s53, s3, {t+1}")
        a("s_and_b32 s53, s53, 3")
        a("s_mul_i32 s53, s53, 12288")
        a(f"s_add_u32 s53, s53, {L_RED + 4096*t}")
        a(f"v_add_u32 v{13+t}, s53, v1")
    a("v_lshrrev_b32 v11, 3, v5")
    a("v_lshlrev_b32 v24, 11, v11")
    a("v_bfe_u32 v11, v5, 2, 1")
    a("v_lshl_add_u32 v24, v11, 15, v24")
    a("v_lshl_add_u32 v24, v2, 9, v24")
    a("v_lshl_add_u32 v24, v6, 4, v24")
    a("v_and_b32 v11, 1, v0")
    a("v_lshl_add_u32 v25, v11, 10, v24")
    a("s_lshl_b32 s29, s4, 16")
    a("s_lshl_b32 s53, s3, 13")
    a("s_lshl_b32 s54, s5, 6")
    a("s_add_u32 s53, s53, s54")
    a("s_add_u32 s53, s53, s29")
    a(f"s_add_u32 s53, s53, {OF}")
    add64(20, 8, "s53")
    a("s_lshl_b32 s53, s15, 15")
    a("s_lshl_b32 s54, s14, 14")
    a("s_add_u32 s53, s53, s54")
    a("s_add_u32 s53, s53, s29")
    a(f"s_add_u32 s53, s53, {OF + 4096}")
    add64(22, 8, "s53")
    a(f"s_add_u32 s53, s29, {HF}")
    add64(54, 8, "s53")
    a("s_lshl_b32 s53, s28, 1")
    a("s_add_u32 s53, s53, s14")
    a(f"s_mul_i32 s30, s15, {H_T1}")
    a("s_lshl_b32 s31, s53, 11")
    a("s_add_u32 s30, s30, s31")
    a("s_lshl_b32 s31, s15, 12")
    a("s_lshl_b32 s53, s53, 8")
    a("s_add_u32 s31, s31, s53")
    a(f"s_add_u32 s31, s31, {H_ST}")
    a("v_add_u32 v26, s30, v1")
    a("v_lshl_add_u32 v27, v5, 3, s31")
    a("v_and_b32 v11, 15, v0")
    a("v_lshl_add_u32 v12, v11, 7, s30")
    a("v_and_b32 v11, 1, v0")
    a("v_lshl_add_u32 v11, v11, 7, s31")
    a("v_cmp_gt_u32 vcc, 16, v0")
    a("s_lshl_b32 s53, s7, 2")
    a("s_add_u32 s53, s53, s3")
    a("v_cndmask_b32 v12, v11, v12, vcc")
    a("s_mul_i32 s53, s53, 13056")
    a(f"s_add_u32 s53, s53, {W1F + 4096}")
    add64(56, 8, "s53")
    a("v_lshrrev_b32 v10, 2, v0")
    a("v_lshlrev_b32 v10, 7, v10")
    a("v_lshl_add_u32 v10, v6, 2, v10")
    a("v_add_u32 v11, 8192, v10")
    a("v_and_b32 v30, 7, v0")
    a("v_lshlrev_b32 v30, 2, v30")
    late = [("v", "global_load_dword v29, v30, s[62:63] sc1", "xcc"),
            ("v", "global_load_dword v4, v25, s[20:21] sc1", "late"),
            ("v", "global_load_dword v4, v12, s[54:55] sc1", "late")]
    warm = [("v", f"global_load_dword v4, v{10 + (k >> 2)}, s[56:57] offset:{2048*(k & 3) - 4096}", "warm")
            for k in range(7)][:OPT.get('nwarm', 7)]
    nstamp(a, "pro")
    WV("kmax")
    for m_ in ("quad_perm:[1,0,3,2]", "quad_perm:[2,3,0,1]", "row_half_mirror", "row_mirror"):
        a(f"v_max_f32_dpp v4, v4, v4 {m_} row_mask:0xf bank_mask:0xf")
        a("s_nop 1")
    a("v_mov_b32 v8, v4")
    a("s_nop 1")
    a("v_permlane16_swap_b32 v8, v4")
    a("s_nop 1")
    a("v_max_f32 v4, v4, v8")
    half_sum(a, 4, 8, "v_max_f32")
    a(f"v_mul_f32 v4, {hexf(1.02)}, v4")
    a("v_cmp_ne_u32 s[64:65], 0, v2")
    B0 = S + 16
    for t in range(4): a(f"v_mov_b32 v{B0+t}, 0")
    for t in range(4):
        WV(f"q{t}")
        for i in (6, 7): a(f"v_cndmask_b32 v{Q+8*t+i}, v{Q+8*t+i}, 0, s[64:65]")
        for i in range(8): a(f"v_dot2c_f32_bf16 v{B0+t}, v{Q+8*t+i}, v{Q+8*t+i}")
    a("s_nop 2")
    for t in range(4): a(f"v_mov_b32 v{B0+4+t}, v{B0+t}")
    a("s_nop 0")
    for t in range(4): a(f"v_permlane32_swap_b32 v{B0+4+t}, v{B0+t}")
    a("s_nop 0")
    for t in range(4): a(f"v_add_f32 v{B0+t}, v{B0+t}, v{B0+4+t}")
    for t in range(4): a(f"v_mul_f32 v{B0+t}, v{B0+t}, v4")
    for t in range(4): a(f"v_sqrt_f32 v{B0+t}, v{B0+t}")
    a("s_nop 0")
    a(f"v_max3_f32 v8, v{B0}, v{B0+1}, v{B0+2}")
    a(f"v_max_f32 v8, v8, v{B0+3}")
    lim = -1.0 if force_slow else SHIFT_LIMIT
    a(f"v_cmp_nge_f32 vcc, {hexf(lim)}, v8")
    a("v_add_u32 v8, 24576, v1")
    a("s_cbranch_vccnz KB_slow")
    vm_at_slow = list(vm.q)
    for t in range(4): a(f"v_cvt_pk_bf16_f32 v{B0+t}, -v{B0+t}, 0")
    for t in range(4): a(f"v_cndmask_b32 v{Q+8*t+6}, v{Q+8*t+6}, v{B0+t}, s[64:65]")
    WV("K0")
    a(mfma32(vr(S,16), vr(KVR,4), vr(Q,4), "0"))
    a(mfma32(vr(S,16), vr(KVR+4,4), vr(Q+4,4), vr(S,16)))
    a("s_nop 7")
    a("s_nop 3")
    nstamp(a, "loop")
    slots = {}
    def put(u, k, it):
        while (u, k) in slots: u, k = (u, k + 1) if k < 3 else (u + 1, 0)
        slots[(u, k)] = it if isinstance(it, list) else [it]
        return u, k
    for i in range(16):
        if i <= 14: slots[(4*i+2, 3)] = [("wv", f"K{i+1}")]
        slots[(4*i+1, 1)] = [("wv", f"V{i}")]
    for i in range(NKP, 16):
        prev = max(j for j in range(i) if kvs[j] == kvs[i])
        uk, uv = max(4*prev + 2, 4*(i - 6)), max(4*prev + 4, 4*(i - 6) + 2)
        put(uk, 0, ("v", kvld(i, 0), f"K{i}")); put(uk, 1, ("v", kvld(i, 1), f"K{i}"))
        put(uv, 2, ("v", kvld(i, 2), f"V{i}")); put(uv, 3, ("v", kvld(i, 3), f"V{i}"))
    pos = (0, 0)
    for i in range(NPRO, NKP):
        for part in range(4):
            pos = put(pos[0], pos[1], ("v", kvld(i, part), f"{'KV'[part>>1]}{i}"))
            if pos[1] == 2: pos = (pos[0] + 1, 0)
    for q, it in enumerate(xr): put(OPT.get('x0', 58), 0, it)
    for q, it in enumerate(warm): put(OPT.get('e0', 2) + q*OPT.get('de', 3), 2, it)
    NW1A = OPT.get('nw1a', 32)
    pref = [wo_item(f) for f in range(32)] + [w1_item(i) for i in range(NW1A)]
    free = [(u, k) for u in range(OPT.get('wo0', 3), 57) for k in range(4) if (u, k) not in slots]
    for q, it in enumerate(pref): slots[free[q*len(free)//len(pref)]] = it
    lf = [(u, k) for u in range(57, 62) for k in range(4) if (u, k) not in slots]
    for q, it in enumerate(late): slots[lf[2*q]] = [it]
    slots[lf[1]] = [("s", f"s_load_dword s{88+i}, s[66:67], {128*i} glc") for i in range(4)]
    def redw(t, q): return ("d", f"ds_write_b128 v{13+t}, {ar(16*t+4*q,4)} offset:{1024*q}", "red")
    for q, sl in enumerate([(62,1), (62,2), (62,3), (63,2)]): slots.setdefault(sl, []).append(redw(0, q))
    tail63 = [redw(1, q) for q in range(4)]
    slots.setdefault((63,3), []).append(tail63[0])
    for u in range(64):
        sb, pb = S + 16*(u & 1), P + 8*(u & 1)
        sn, pp = S + 16*((u+1) & 1), P + 8*((u-1) & 1)
        un, up = u + 1, u - 1
        kslot = kvs[min(un >> 2, 15)]; qn = Q + 8*(un & 3)
        vslot = kvs[max(up >> 2, 0)] + 8; oa = ar(16*(up & 3), 16)
        M = [mfma32(vr(sn,16), vr(kslot,4), vr(qn,4), "0"),
             mfma32(vr(sn,16), vr(kslot+4,4), vr(qn+4,4), vr(sn,16)),
             mfma32(oa, vr(vslot,4), vr(pp,4), "0" if up < 4 else oa),
             mfma32(oa, vr(vslot+4,4), vr(pp+4,4), oa)]
        e = lambda k: f"v_exp_f32 v{sb+k}, v{sb+k}"
        c = lambda k: f"v_cvt_pk_bf16_f32 v{pb+k}, v{sb+2*k}, v{sb+2*k+1}"
        groups = [[e(0), e(1), e(2), e(3), c(0)], [e(4), c(1), e(5), e(6), e(7), c(2)],
                  [e(8), c(3), e(9), e(10), e(11), c(4)], [e(12), c(5), e(13), e(14), e(15), c(6), c(7)]]
        nstamp(a, f"u{u}")
        for k in range(4):
            if not ((u == 63 and k < 2) or (u == 0 and k >= 2)): a(M[k])
            for it in slots.get((u, k), []): emit_item(it)
            for x in groups[k]: a(x)
    emit_item(tail63[1])
    a(mfma32(ar(48,16), vr(kvs[15]+8,4), vr(P+8,4), ar(48,16)))
    emit_item(tail63[2])
    a(mfma32(ar(48,16), vr(kvs[15]+12,4), vr(P+12,4), ar(48,16)))
    emit_item(tail63[3])
    for q in range(4): emit_item(redw(2, q))
    a.label("KB_red")
    nstamp(a, "red")
    AUG, BAUG, RS = 32, 40, 16
    def w2base(u): return 32 + 2*u
    NST = OPT.get('nst', 16)
    def w2reg(q):
        if q < 8: return ar(224+4*q, 4)
        if q < 8 + NST: return w1reg(28 - NST + q - 8)
        j = q - 8 - NST
        return w1reg(28 + j) if j < 28 else w1reg(j - 28)
    def w2_item(q):
        u, ks = divmod(q, 16)
        b = w2base(u)
        return [("v", f"global_load_dwordx4 {w2reg(q)}, v{VOFF[ks//8]}, s[{b}:{b+1}] offset:{1024*(ks%8) - 4096}", f"w2_{q}")]
    def st_item(i):
        it = [("s", f"s_add_u32 m0, s60, {4096*(i//4)}")]
        d = {4: 4096, 8: 112*1024 - 12288, 12: 4096}.get(i)
        if d: it += [("s", f"s_add_u32 s70, s70, {d}"), ("s", "s_addc_u32 s71, s71, 0")]
        else: it += [("s", "s_nop 0")]
        return it + [("v", f"global_load_lds_dwordx4 v1, s[70:71] offset:{1024*(i%4)}", f"st{i}")]
    aug_items = [[("v", f"global_load_dwordx4 {vr(AUG+4*k,4)}, v8, s[{96+2*k}:{97+2*k}]", f"aug{k}")] for k in range(2)]
    early = [w1_item(i) for i in range(NW1A, 56)] + [st_item(i) for i in range(NST)]
    after = aug_items + [w2_item(q) for q in range(8)]
    def bulk(n, allow_after=False):
        out = []
        for _ in range(n):
            src = after if allow_after and after and not any(x[-1][2].startswith("w1_") for x in early) else early
            if not src: src = after if allow_after else []
            if src: out += src.pop(0)
        return out
    def nve(items): return sum(1 for x in items if x[0] == "v")
    fences = []
    def signal(off, lab, items):
        for it in items: emit_item(it)
        k = nve(items)
        a(f"s_waitcnt vmcnt({k})"); vm.q = vm.q[len(vm.q)-k:] if k else []
        a("s_cmp_eq_u32 s68, 0")
        a(f"s_cbranch_scc1 {lab}_fence")
        a("s_mov_b64 exec, 1")
        V(f"global_store_byte v10, v11, s[66:67] offset:{off}", "sig")
        a("s_mov_b64 exec, -1")
        a.label(f"{lab}_done")
        fences.append(("sig", off, lab, []))
    def poll(off, lab, items):
        a("s_mov_b32 s52, 0")
        a("s_cmp_eq_u32 s68, 0")
        a(f"s_cbranch_scc1 {lab}_fence")
        if items:
            V(f"global_load_dword v31, v30, s[66:67] offset:{off} sc1", "poll")
            for it in items: emit_item(it)
            WV("poll")
            a("v_cmp_ne_u32 vcc, 0x01010101, v31")
            a(f"s_cbranch_vccz {lab}_done")
        else: vm.clear()
        a.label(f"{lab}_loop")
        a(f"global_load_dword v31, v30, s[66:67] offset:{off} sc1")
        a("s_add_u32 s52, s52, 1")
        a("s_waitcnt vmcnt(0)")
        a("v_cmp_ne_u32 vcc, 0x01010101, v31")
        a(f"s_cbranch_vccz {lab}_done")
        a(f"s_cmp_lt_u32 s52, {SPIN_LIMIT}")
        a(f"s_cbranch_scc1 {lab}_loop")
        a.label(f"{lab}_done")
        fences.append(("poll", off, lab, items))
        if STAMPS and f"cnt{off}" in STAMP_SET: a(f"s_mov_b32 s{72 + 2*(1 + STAMP_SET.index(f'cnt{off}'))}, s52")
    a("s_mul_i32 s53, s3, 12288")
    a("v_add_u32 v10, s53, v1")
    a("s_mul_i32 s53, s3, 3*112*1024")
    a("s_lshl_b32 s61, s28, 14")
    a("s_add_u32 s53, s53, s61")
    a(f"s_add_u32 s53, s53, {W2F + 4096}")
    add64(32, 8, "s53")
    add64(34, 32, 112*1024)
    add64(36, 34, 112*1024)
    a("s_add_u32 s53, s15, 12")
    a("s_mul_i32 s53, s53, 112*1024")
    a("s_add_u32 s53, s53, s61")
    a(f"s_add_u32 s53, s53, {W2F + 4096}")
    add64(38, 8, "s53")
    add64(70, 32, 4096)
    a("s_lshl_b32 s60, s3, 14")
    a(f"s_add_u32 s60, s60, {L_W2}")
    for i in range(16): a(f"v_accvgpr_read_b32 v{32+i}, a{48+i}")
    a("s_waitcnt lgkmcnt(0)"); lg.clear()
    a("s_barrier")
    for j in range(12): D(f"ds_read_b128 {vr(48+4*j,4)}, v10 offset:{L_RED+1024*j}", f"r{j//4}")
    for it in bulk(OPT.get('wa', 5)): emit_item(it)
    WV("xcc")
    a("s_mov_b32 s68, 1")
    a("v_cmp_ne_u32 vcc, s69, v29")
    if force_fence: a("s_branch KB_xcc")
    else: a("s_cbranch_vccnz KB_xcc")
    a.label("KB_xcc_done")
    a("s_lshl_b32 s53, s5, 2")
    a("s_add_u32 s53, s53, s3")
    a("v_mov_b32 v10, s53")
    a("v_mov_b32 v11, 1")
    for j in range(3):
        WL(f"r{j}")
        for i in range(16): a(f"v_add_f32 v{32+i}, v{32+i}, v{48+16*j+i}")
    a("v_mov_b32 v12, v44")
    a("v_mov_b32 v13, v44")
    a("s_nop 1")
    a("v_permlane32_swap_b32 v12, v13")
    a("s_nop 1")
    a("v_rcp_f32 v13, v13")
    a("s_nop 0")
    for i in range(16): a(f"v_mul_f32 v{32+i}, v{32+i}, v13")
    a("s_cmp_eq_u32 s68, 0")
    for i in range(8): a(f"v_cvt_pk_bf16_f32 v{48+i}, v{32+2*i}, v{33+2*i}")
    a("s_cbranch_scc1 KB_ost_fence")
    for hf in range(2): V(f"global_store_dwordx4 v24, {vr(48+4*hf,4)}, s[20:21] offset:{1024*hf}{SM('osm')}", "ost")
    a.label("KB_ost_done")
    nstamp(a, "ost")
    KA, GA = 96, 112
    WV("xr")
    for u in range(2):
        for i in range(2): a(f"v_permlane32_swap_b32 v{XR+4*u+i}, v{XR+4*u+2+i}")
    a("s_mul_i32 s53, s3, 4096")
    a(f"s_add_u32 s53, s53, {L_XC}")
    a("v_add_u32 v14, s53, v1")
    a("v_xor_b32 v15, 4096, v14")
    for i in range(8):
        a(f"v_lshlrev_b32 v{KA+2*i}, 16, v{XR+i}")
        a(f"v_and_b32 v{KA+2*i+1}, 0xffff0000, v{XR+i}")
    signal(F_O, "KB_sg0", bulk(OPT.get('wb', 6)))
    nstamp(a, "sig0")
    a("s_cmp_eq_u32 s5, 7")
    a("s_cbranch_scc1 KB_m7")
    q_m7 = list(vm.q)
    poll(F_O, "KB_pl0", bulk(OPT.get('wc', 5)))
    nstamp(a, "poll0")
    OB = 32
    for i in range(16): V(f"global_load_dwordx4 {vr(OB+4*i,4)}, v{VOFF[i//8]}, s[22:23] offset:{1024*(i%8) - 4096} sc1", f"ob{i}")
    wd = bulk(OPT.get('wd', 7))
    wdv = []
    while wd:
        k = next(j for j, x in enumerate(wd) if x[0] == "v") + 1
        wdv.append(wd[:k]); wd = wd[k:]
    a("v_min_u32 v30, 24, v30")
    a(f"s_mov_b32 s53, {ONES_BF}")
    a("v_mov_b32 v12, 0")
    a("v_mov_b32 v13, 0")
    NDEF = OPT.get('ndef', 7)
    WV("wo31")
    for k in range(16):
        WV(f"ob{k}")
        a(mfma32(vr(GA,16), woreg(k), vr(OB+4*k,4), "0" if k == 0 else vr(GA,16)))
        if wdv:
            for it in wdv.pop(0): emit_item(it)
        if k < 16 - NDEF: a(mfma32(vr(KA,16), woreg(16+k), vr(OB+4*k,4), vr(KA,16)))
    for it in wdv:
        for x in it: emit_item(x)
    nstamp(a, "wog")
    for j, k in enumerate(range(16 - NDEF, 16)):
        a(mfma32(vr(KA,16), woreg(16+k), vr(OB+4*k,4), vr(KA,16)))
        if j in (1, 2):
            for q in range(2): D(f"ds_write_b128 v14, {vr(GA+8*(j-1)+4*q,4)} offset:{2048*(j-1) + 1024*q}", "xw")
        if j == min(4, NDEF - 1):
            a("s_waitcnt lgkmcnt(0)"); lg.clear()
            a("s_barrier")
            for q in range(4): D(f"ds_read_b128 {vr(32+4*q,4)}, v15 offset:{1024*q}", f"xr{q}")
    a("s_nop 7")
    a("s_nop 2")
    H = 48
    for hf in range(2):
        for q in (2*hf, 2*hf+1):
            WL(f"xr{q}")
            for i in range(4): a(f"v_add_f32 v{KA+4*q+i}, v{KA+4*q+i}, v{32+4*q+i}")
        for i in range(4): a(f"v_cvt_pk_bf16_f32 v{H+4*hf+i}, v{KA+8*hf+2*i}, v{KA+8*hf+2*i+1}")
        V(f"global_store_dwordx4 v26, {vr(H+4*hf,4)}, s[54:55] offset:{1024*hf}{SM('hnm')}", "hst")
    nstamp(a, "hst")
    for i in range(8):
        a(f"v_dot2c_f32_bf16 v12, s53, v{H+i}")
        a(f"v_dot2c_f32_bf16 v13, v{H+i}, v{H+i}")
    a("s_nop 2")
    a("v_mov_b32 v14, v12")
    a("v_mov_b32 v15, v13")
    a("s_nop 0")
    a("v_permlane32_swap_b32 v14, v12")
    a("v_permlane32_swap_b32 v15, v13")
    a("s_mov_b32 exec_hi, 0")
    a("v_add_f32 v12, v12, v14")
    a("v_add_f32 v13, v13, v15")
    V(f"global_store_dwordx2 v27, v[12:13], s[54:55]{SM('hnm')}", "hst")
    a("s_mov_b32 exec_hi, -1")
    signal(F_H, "KB_sg1", bulk(OPT.get('we', 6), True))
    nstamp(a, "sig1")
    T0, A2, A1, HOLD = 24, 48, 80, 144
    accs = {("A",0): A1, ("B",0): A1+16, ("B",1): A1+32, ("A",1): A1+48}
    a("s_lshl_b32 s61, s3, 10")
    add64(56, 54, "s61")
    a("s_mul_i32 s53, s4, 458752")
    a("s_mul_i32 s58, s5, 3584")
    a("s_add_u32 s53, s53, s58")
    a(f"s_add_u32 s53, s53, {PART}")
    add64(40, 8, "s53")
    a("s_mul_i32 s58, s14, 28672")
    a("s_lshl_b32 s53, s15, 8")
    a("s_add_u32 s58, s58, s53")
    a("s_add_u32 s58, s58, 3072")
    add64(44, 40, "s58")
    a("s_mul_i32 s58, s3, 768")
    add64(40, 40, "s58")
    add64(42, 40, 28672)
    a("v_lshrrev_b32 v12, 2, v5")
    a("v_mul_u32_u24 v12, 57344, v12")
    a("v_lshl_add_u32 v12, v2, 6, v12")
    a("v_lshl_add_u32 v12, v6, 4, v12")
    a("s_lshl_b32 s53, s3, 11")
    a(f"s_add_u32 s53, s53, {L_ACT}")
    a("v_add_u32 v13, s53, v1")
    a(f"v_add_u32 v14, {L_ACT}, v1")
    a("s_lshl_b32 s53, s14, 14")
    a("v_add_u32 v15, s53, v14")
    a("v_add_u32 v18, s60, v1")
    a("v_mul_u32_u24 v19, 1792, v2")
    a("v_lshl_add_u32 v19, v5, 3, v19")
    nstamp(a, "pl1")
    poll(F_H, "KB_pl1", bulk(OPT.get('wf', 5), True))
    nstamp(a, "poll1")
    src = [H_ST] + [4096*q for q in range(7)] + [H_ST + 4096] + [H_T1 + 4096*q for q in range(7)]
    def dma_items(q):
        it = [("s", f"s_add_u32 m0, s61, {L_HN + src[q]}")]
        d = src[q] - (src[q-1] if q else 0)
        it += [("s", f"s_add_u32 s56, s56, {d}"), ("s", "s_addc_u32 s57, s57, 0")] if d >= 0 else \
              [("s", f"s_sub_u32 s56, s56, {-d}"), ("s", "s_subb_u32 s57, s57, 0")]
        return it + [("v", "global_load_lds_dwordx4 v1, s[56:57] sc1", f"hn{q}")]
    NDM = OPT.get('ndm', 9)
    for q in range(NDM):
        for it in dma_items(q): emit_item(it)
    G0 = 116
    NM = G0 + 112
    pre = {i: [] for i in range(NM + 1)}
    post = {i: [] for i in range(NM)}
    mf = []
    hold = lambda ks: vr(HOLD+4*ks, 4)
    for X, tt in (("A",0), ("B",0), ("B",1), ("A",1)):
        d = vr(accs[(X,tt)], 16)
        for ks in range(28): mf.append(mfma32(d, w1reg(ks + (28 if X == "B" else 0)), hold(ks), "0" if ks == 0 else d))
        mf.append(mfma32(d, vr(AUG + (4 if X == "B" else 0), 4), vr(BAUG + 4*tt, 4), d))
    act0 = lambda ks: vr(HOLD+4*ks, 4)
    act1 = lambda ks: vr(HOLD+64+4*ks, 4) if ks < 12 else vr(A1+4*(ks-12), 4)
    ring = lambda ks: vr(A1+16+4*(ks & 7), 4)
    units = [(0, act0, 40, 0), (1, act0, 40, 1), (2, act0, 40, 2), (3, ring, 44, 0), (0, act1, 42, 0), (1, act1, 42, 1), (2, act1, 42, 2)]
    for ui, (u, breg, sb_, no) in enumerate(units):
        d = vr(A2+16*(ui & 1), 16)
        for ks in range(16): mf.append(mfma32(d, w2reg(16*u+ks), breg(ks), "0" if ks == 0 else d))
    AHEAD = 4
    rd0 = lambda ks: ("d", f"ds_read_b128 {hold(ks)}, v1 offset:{L_HN + 1024*ks}", f"h0_{ks}")
    rd1 = lambda ks: ("d", f"ds_read_b128 {hold(ks)}, v1 offset:{L_HN + H_T1 + 1024*ks}", f"h1_{ks}")
    ST = A2
    rds = lambda tt, i: ("d", f"ds_read_b64 {vr(ST+16*tt+2*i,2)}, v19 offset:{L_HN + H_ST + 4096*tt + 256*i}", f"s{tt}")
    pre[0] += [("wv", "hn3"), ("s", "s_barrier")] + [rd0(ks) for ks in range(AHEAD)] + [rds(0, i) for i in range(7)]
    for ks in range(28):
        if ks + AHEAD == 12: post[ks] += [("wv", "hn5"), ("s", "s_barrier")]
        if ks + AHEAD == 20: post[ks] += [("wv", "hn8"), ("s", "s_barrier")]
        if ks + AHEAD < 28: post[ks].append(rd0(ks + AHEAD))
        pre[ks].append(("wl", f"h0_{ks}"))
        pre[ks].append(("wv", f"w1_{ks}"))
    for i in range(7): post[17 + i].append(rds(1, i))
    for q in range(NDM, 16): post[2*(q-NDM)] += dma_items(q)
    k = 2*(16 - NDM)
    while early or after:
        post[k] += bulk(1, True); k += 2
    assert k < 58, k
    pre[28].append(("wv", "aug0"))
    pre[57].append(("wv", "aug1"))
    pre[29] += [("wv", "hn15"), ("s", "s_barrier")]
    for ks in range(28):
        pre[29+ks].append(("wv", f"w1_{28+ks}"))
        post[29+ks].append(rd1(ks))
    for ks in range(0, 28, 4): pre[58+ks].append(("wl", f"h1_{min(ks+3, 27)}"))
    nd = 56 - NST
    for j in range(nd): post[58 + j*OPT.get('w2n', 5)//2] += w2_item(8 + NST + j)
    for i in range(NST):
        k = 87 + 28 - NST + i + 2
        post[k] += [("wv", f"st{i}"), ("d", f"ds_read_b128 {w2reg(8+i)}, v18 offset:{1024*i}", f"sr{i}")]
        pre[G0+8+i].append(("wl", f"sr{i}"))
    for q in range(64): pre[G0+q].append(("wv", f"w2_{q}"))
    def stat_items(tt, start):
        b = ST + 16*tt; o = BAUG + 4*tt
        L = [("wl", f"s{tt}", start)]
        X = []
        for d_, s_ in ((0, 1), (2, 3), (4, 5), (0, 2), (4, 6), (0, 4)):
            X += [f"v_add_f32 v{b+2*d_+e}, v{b+2*d_+e}, v{b+2*s_+e}" for e in range(2)]
        X += [f"v_mov_b32 v{b+2}, v{b}", f"v_mov_b32 v{b+3}, v{b+1}", "s_nop 0",
              f"v_permlane32_swap_b32 v{b+2}, v{b}", f"v_permlane32_swap_b32 v{b+3}, v{b+1}", "s_nop 0",
              f"v_add_f32 v{b}, v{b}, v{b+2}", f"v_add_f32 v{b+1}, v{b+1}, v{b+3}",
              f"v_mul_f32 v{b}, {hexf(-1.0/448)}, v{b}", f"v_mul_f32 v{b+1}, {hexf(1.0/448)}, v{b+1}",
              f"v_fma_f32 v{b+1}, -v{b}, v{b}, v{b+1}", f"v_cvt_pk_bf16_f32 v{o+1}, v{b}, v{b}",
              f"v_max_f32 v{b+1}, 0, v{b+1}", f"v_lshlrev_b32 v{b+2}, 16, v{o+1}",
              f"v_add_f32 v{b+1}, {hexf(1e-5)}, v{b+1}", f"v_sub_f32 v{b+3}, v{b}, v{b+2}",
              f"v_rsq_f32 v{RS+tt}, v{b+1}", f"v_cvt_pk_bf16_f32 v{o}, v{b+2}, v{b+3}",
              f"v_cvt_pk_bf16_f32 v{o+2}, v{b+3}, v{b+2}", f"v_mul_f32 v{b+1}, v{b+1}, v{RS+tt}",
              f"v_mul_f32 v{RS+tt}, {hexf(LOG2E)}, v{RS+tt}", f"v_cvt_pk_bf16_f32 v{b+2}, v{b+1}, v{b+1}",
              f"v_lshlrev_b32 v{b+2}, 16, v{b+2}", f"v_sub_f32 v{b+3}, v{b+1}, v{b+2}",
              f"v_cvt_pk_bf16_f32 v{o+3}, v{b+2}, v{b+3}", f"v_cndmask_b32 v{o+3}, v{o+3}, 0, s[64:65]", "s_nop 1"]
        return L + [("s", x, start) for x in X] + [("mark", f"st{tt}", 0)]
    def mish_items(X, tt, start):
        x0 = accs[(X,tt)]; pk = x0
        L = []
        for g in range(4):
            t = T0 + 4*(g & 1); x = x0 + 4*g
            L += [f"v_mul_f32 v{x+i}, v{x+i}, v{RS+tt}" for i in range(4)]
            L += [f"v_exp_f32 v{t+i}, v{x+i}" for i in range(4)]
            L += [f"v_add_f32 v{t+i}, 1.0, v{t+i}" for i in range(4)]
            L += [f"v_fma_f32 v{t+i}, v{t+i}, v{t+i}, 1.0" for i in range(4)]
            L += [f"v_rcp_f32 v{t+i}, v{t+i}" for i in range(4)]
            L += [f"v_mul_f32 v{t+i}, v{t+i}, v{x+i}" for i in range(4)]
            L += [f"v_fmac_f32 v{x+i}, -2.0, v{t+i}" for i in range(4)]
            L += [f"v_cvt_pk_bf16_f32 v{pk+2*g+i}, v{x+2*i}, v{x+2*i+1}" for i in range(2)]
        it = [("s", x, start) for x in L]
        off = tt*16384 + (8192 if X == "B" else 0)
        it += [("d", f"ds_write_b128 v13, {vr(pk+4*hf,4)} offset:{off + 1024*hf}", start) for hf in range(2)]
        return it
    fill = stat_items(0, 3) + stat_items(1, 25) + mish_items("A", 0, 31) + mish_items("B", 0, 60)
    fill += [("bar", "b1", 0)]
    fill += mish_items("B", 1, 89) + mish_items("A", 1, 118)
    fill += [("bar", "b2", 0)]
    rda = lambda reg, addr, tt, ks, tag: ("d", f"ds_read_b128 {reg}, {addr} offset:{16384*tt + 1024*ks}", tag)
    need_pre = {28: "st0", 86: "st1"}
    need_post = {G0 - 11: "b1", G0 + 43: "b2"}
    for ks in range(16):
        post[G0 - 11 + ks].append(rda(act0(ks), "v14", 0, ks, f"a0_{ks}"))
        pre[G0+ks].append(("wl", f"a0_{ks}"))
        post[G0 + 43 + ks].append(rda(ring(ks), "v15", 0, ks, f"am_{ks}"))
        pre[G0+48+ks].append(("wl", f"am_{ks}"))
        post[G0 + 49 + ks].append(rda(act1(ks), "v14", 1, ks, f"a1_{ks}"))
        pre[G0+64+ks].append(("wl", f"a1_{ks}"))
    outq = []
    for ui, (u, breg, sb_, no) in enumerate(units):
        d = A2 + 16*(ui & 1); pk = d
        L = []
        for hf in range(2):
            p4 = pk + 4*hf
            L += [("s", f"v_cvt_pk_bf16_f32 v{p4+i}, v{d+8*hf+2*i}, v{d+8*hf+2*i+1}") for i in range(4)]
            L += [("v", f"global_store_dwordx4 v12, {vr(p4,4)}, s[{sb_}:{sb_+1}] offset:{256*no + 128*hf}{SM('pm')}", "pst")]
        outq.append((G0 + 16*ui + 18, L))
    done = set()
    fq = list(fill); cur = [0]
    def emit_fill(it):
        if it[0] == "bar":
            a("s_waitcnt lgkmcnt(0)"); lg.clear()
            a("s_barrier"); done.add(it[1]); print("note: barrier", it[1], "after MFMA", cur[0])
            return 8
        if it[0] == "mark":
            done.add(it[1]); print("note:", it[1], "complete after MFMA", cur[0])
            return 0
        if it[0] == "wl":
            WL(it[1]); return 0
        if it[0] == "d": D(it[1])
        else: a(it[1])
        return cost(it[1])
    credit = 0.0
    def flush(tag, i):
        c = 0
        while tag not in done: c += emit_fill(fq.pop(0))
        if c: print(f"note: {c:.0f} cycles of vector work flushed at MFMA {i}")
        return c
    for i in range(NM):
        cur[0] = i
        assert not outq or i < outq[0][0] + 12, i
        if i in need_pre: credit -= flush(need_pre[i], i)
        for it in pre[i]: emit_item(it)
        a(mf[i])
        nstamp(a, f"m{i}")
        credit = max(min(credit, 0), -8) + 24
        if i in need_post: credit -= flush(need_post[i], i)
        for k, it in enumerate(post[i]):
            emit_item(it)
            credit -= (4 if it[0] in "vd" else 0) if k == 0 else (10 if it[0] in "vd" else 4)
        while outq and outq[0][0] <= i and credit > 0:
            L = outq[0][1]
            it = L.pop(0); emit_item(it); credit -= cost(it[1])
            if not L: outq.pop(0)
        while fq and credit > 0 and (fq[0][0] in ("bar", "mark") or fq[0][2] <= i):
            credit -= emit_fill(fq.pop(0))
    assert not fq, len(fq)
    a("s_nop 7")
    a("s_nop 3")
    for _, L in outq:
        for it in L: emit_item(it)
    nstamp(a, "g2end")
    signal(F_P1, "KB_sg2", [])
    nstamp(a, "sig2")
    a.label("KB_fin")
    R, SUM, HR, HF32 = 144, 80, 200, 96
    a("s_mul_i32 s53, s4, 458752")
    a("s_mul_i32 s52, s5, 57344")
    a("s_add_u32 s53, s53, s52")
    a("s_lshl_b32 s52, s3, 10")
    a("s_add_u32 s53, s53, s52")
    a(f"s_add_u32 s53, s53, {PART + 3584}")
    add64(32, 8, "s53")
    for k in range(1, 5): add64(32 + 2*k, 30 + 2*k, 3*3584)
    a("s_lshl_b32 s53, s3, 13")
    a("s_lshl_b32 s52, s5, 6")
    a("s_add_u32 s53, s53, s52")
    add64(42, 54, "s53")
    add64(44, 42, H_T1)
    for i in range(16): a(f"v_mov_b32 v{SUM+i}, 0")
    a("v_lshrrev_b32 v13, 3, v0")
    a("v_bfe_u32 v14, v0, 2, 1")
    a("v_lshlrev_b32 v15, 10, v13")
    a("v_lshl_add_u32 v15, v14, 9, v15")
    a("v_lshl_add_u32 v15, v6, 4, v15")
    a("v_mul_u32_u24 v12, 896, v6")
    a("v_lshl_add_u32 v12, v13, 5, v12")
    a("v_lshl_add_u32 v12, v14, 4, v12")
    a("s_mul_i32 s60, s6, 8*896")
    a("s_lshl_b32 s61, s3, 8")
    a("s_add_u32 s60, s60, s61")
    a("s_mov_b32 s62, 0x00003f80")
    a("s_mov_b32 s63, 0x3f800000")
    a(f"s_mov_b32 s61, {hexf(LN2F)}")
    a("s_cmp_eq_u32 s3, 3")
    a("s_cselect_b32 s59, 0, -1")
    a("v_and_b32 v30, 7, v0")
    a("v_min_u32 v30, 6, v30")
    a("v_lshlrev_b32 v30, 2, v30")
    nstamp(a, "pl2")
    poll(F_P1, "KB_pl2", [])
    nstamp(a, "poll2")
    vm.clear(); vm.issue("older")
    for tt in range(2):
        V(f"global_load_dwordx4 {vr(HR+4*tt,4)}, v15, s[{42+2*tt}:{43+2*tt}] sc1", f"hr{tt}")
        for p in range(7):
            k, r = divmod(8*tt + p, 3)
            V(f"global_load_dwordx4 {vr(R+28*tt+4*p,4)}, v1, s[{32+2*k}:{33+2*k}] offset:{3584*(r-1)} sc1", f"p{tt}{p}")
    for tt in range(2):
        WV(f"hr{tt}")
        for i in range(4):
            a(f"v_lshlrev_b32 v{HF32+8*tt+2*i}, 16, v{HR+4*tt+i}")
            a(f"v_and_b32 v{HF32+8*tt+2*i+1}, 0xffff0000, v{HR+4*tt+i}")
        for p in range(7):
            WV(f"p{tt}{p}")
            for i in range(4):
                a(f"v_dot2c_f32_bf16 v{SUM+8*tt+2*i}, s62, v{R+28*tt+4*p+i}")
                a(f"v_dot2c_f32_bf16 v{SUM+8*tt+2*i+1}, s63, v{R+28*tt+4*p+i}")
        a("s_nop 2")
        b = 32 + 4*tt
        for i in range(8): a(f"v_fmac_f32 v{HF32+8*tt+i}, s61, v{SUM+8*tt+i}")
        for i in range(4): a(f"v_cvt_pk_bf16_f32 v{b+i}, v{HF32+8*tt+2*i}, v{HF32+8*tt+2*i+1}")
        a(f"v_mov_b32 v40, v{b+2}")
        a(f"v_mov_b32 v41, v{b+3}")
        a("s_nop 0")
        a(f"v_mov_b32_dpp v{b+2}, v{b} row_shl:4 row_mask:0xf bank_mask:0x5")
        a(f"v_mov_b32_dpp v{b+3}, v{b+1} row_shl:4 row_mask:0xf bank_mask:0x5")
        a(f"v_mov_b32_dpp v{b}, v40 row_shr:4 row_mask:0xf bank_mask:0xa")
        a(f"v_mov_b32_dpp v{b+1}, v41 row_shr:4 row_mask:0xf bank_mask:0xa")
        a("s_mov_b32 exec_hi, s59")
        a(f"buffer_store_dwordx4 {vr(b,4)}, v12, s[24:27], s60 offen offset:{3584*tt}{SM('om')}")
        if tt == 0: a("s_mov_b32 exec_hi, -1")
    fin(a, 1, 8)
    a.label("KB_end")
    a("s_endpgm")

    a.label("KB_m7")
    a("s_and_b32 s53, s4, 3")
    a("s_lshl_b32 s53, s53, 2")
    a("s_add_u32 s53, s53, s3")
    a("s_mul_i32 s53, s53, 100352")
    a(f"s_add_u32 s53, s53, {W2F}")
    add64(56, 8, "s53")
    a("v_lshlrev_b32 v12, 7, v0")
    for k in range(13 if OPT.get('m7w', 1) else 0):
        a("global_load_dword v4, v12, s[56:57]")
        add64(56, 56, 8192)
    a("s_branch KB_fin")

    a.label("KB_xcc")
    a("s_mov_b32 s52, 0")
    a.label("KB_xcc_loop")
    a("v_cmp_eq_u32 vcc, 0, v29")
    a("s_cbranch_vccz KB_xcc_known")
    a("global_load_dword v29, v30, s[62:63] sc1")
    a("s_add_u32 s52, s52, 1")
    a("s_waitcnt vmcnt(0)")
    a(f"s_cmp_lt_u32 s52, {SPIN_LIMIT}")
    a("s_cbranch_scc1 KB_xcc_loop")
    a.label("KB_xcc_known")
    a("v_cmp_ne_u32 vcc, s69, v29")
    if not force_fence: a("s_cbranch_vccz KB_xcc_done")
    a("s_mov_b32 s68, 0")
    a("s_branch KB_xcc_done")
    a.label("KB_ost_fence")
    for hf in range(2): a(f"global_store_dwordx4 v24, {vr(48+4*hf,4)}, s[20:21] offset:{1024*hf} sc0 sc1")
    a("s_branch KB_ost_done")
    for kind, off, lab, items in fences:
        a.label(f"{lab}_fence")
        if kind == "sig":
            a("buffer_wbl2 sc1")
            a("s_waitcnt vmcnt(0)")
            a("s_mov_b64 exec, 1")
            a(f"global_store_byte v10, v11, s[66:67] offset:{off} sc0 sc1")
            a("s_mov_b64 exec, -1")
            a(f"s_branch {lab}_done")
            continue
        for it in items: a(it[1])
        a.label(f"{lab}_floop")
        a(f"global_load_dword v31, v30, s[66:67] offset:{off} sc0 sc1")
        a("s_add_u32 s52, s52, 1")
        a("s_waitcnt vmcnt(0)")
        a("v_cmp_ne_u32 vcc, 0x01010101, v31")
        a(f"s_cbranch_vccz {lab}_fdone")
        a(f"s_cmp_lt_u32 s52, {SPIN_LIMIT}")
        a(f"s_cbranch_scc1 {lab}_floop")
        a.label(f"{lab}_fdone")
        a("buffer_inv sc1")
        a("s_waitcnt vmcnt(0) lgkmcnt(0)")
        a(f"s_branch {lab}_done")

    a.label("KB_slow")
    vm.q = list(vm_at_slow)
    a("s_waitcnt vmcnt(0)"); vm.clear()
    for k, it in enumerate([x for f in pref for x in f] + xr + late):
        emit_item(it)
        if len(vm.q) >= 32: a("s_waitcnt vmcnt(0)"); vm.clear()
    MX = P + 8
    for t in range(4): a(f"v_mov_b32 v{MX+t}, 0xff800000")
    for i in range(64): a(f"v_accvgpr_write_b32 a{i}, 0")
    a("v_lshlrev_b32 v3, 2, v0")
    a("s_sub_u32 s52, s52, 4096")
    a("s_mov_b32 s61, 0")
    a.label("KB_s1")
    a("s_add_u32 s53, s52, s61")
    for i in range(2): a(f"buffer_load_dwordx4 {vr(KVR+4*i,4)}, v1, s[16:19], s53 offen offset:{1024*i}")
    a("s_waitcnt vmcnt(0)")
    for t in range(4):
        a(mfma32(vr(S,16), vr(KVR,4), vr(Q+8*t,4), "0"))
        a(mfma32(vr(S,16), vr(KVR+4,4), vr(Q+8*t+4,4), vr(S,16)))
        a("s_nop 7")
        a("s_nop 3")
        for i in range(8): a(f"v_max3_f32 v{MX+t}, v{S+2*i}, v{S+2*i+1}, v{MX+t}")
    a("s_add_u32 s61, s61, 4096")
    a("s_cmp_lt_u32 s61, 0x10000")
    a("s_cbranch_scc1 KB_s1")
    for t in range(4):
        half_sum(a, MX+t, 12, "v_max_f32")
        a(f"s_add_u32 s53, s3, {t+1}")
        a("s_and_b32 s53, s53, 3")
        a("s_lshl_b32 s53, s53, 10")
        a("s_lshl_b32 s61, s3, 8")
        a("s_add_u32 s53, s53, s61")
        a("v_add_u32 v12, s53, v3")
        a(f"ds_write_b32 v12, v{MX+t}")
    a("s_waitcnt lgkmcnt(0)")
    a("s_barrier")
    for t in range(4):
        a(f"s_add_u32 s53, s3, {t+1}")
        a("s_and_b32 s53, s53, 3")
        a("s_lshl_b32 s53, s53, 10")
        a("v_add_u32 v12, s53, v3")
        for w in range(4): a(f"ds_read_b32 v{S+w}, v12 offset:{256*w}")
        a("s_waitcnt lgkmcnt(0)")
        a(f"v_max3_f32 v{MX+t}, v{S}, v{S+1}, v{S+2}")
        a(f"v_max_f32 v{MX+t}, v{MX+t}, v{S+3}")
    a("s_barrier")
    a("s_mov_b32 s61, 0")
    a.label("KB_s2")
    a("s_add_u32 s53, s52, s61")
    for i in range(4): a(f"buffer_load_dwordx4 {vr(KVR+4*i,4)}, v1, s[16:19], s53 offen offset:{1024*i}")
    a("s_waitcnt vmcnt(0)")
    for t in range(4):
        a(mfma32(vr(S,16), vr(KVR,4), vr(Q+8*t,4), "0"))
        a(mfma32(vr(S,16), vr(KVR+4,4), vr(Q+8*t+4,4), vr(S,16)))
        a("s_nop 7")
        a("s_nop 3")
        for i in range(16): a(f"v_sub_f32 v{S+i}, v{S+i}, v{MX+t}")
        for i in range(16): a(f"v_exp_f32 v{S+i}, v{S+i}")
        a("s_nop 0")
        for i in range(8): a(f"v_cvt_pk_bf16_f32 v{P+i}, v{S+2*i}, v{S+2*i+1}")
        a("s_nop 1")
        a(mfma32(ar(16*t,16), vr(KVR+8,4), vr(P,4), ar(16*t,16)))
        a(mfma32(ar(16*t,16), vr(KVR+12,4), vr(P+4,4), ar(16*t,16)))
    a("s_add_u32 s61, s61, 4096")
    a("s_cmp_lt_u32 s61, 0x10000")
    a("s_cbranch_scc1 KB_s2")
    a("s_nop 7")
    a("s_nop 3")
    for t in range(3):
        for q in range(4): a(redw(t, q)[1])
    a("s_branch KB_red")
    a.label("KB_code_end")
    return kd(n, 512, 102, 256), f"; @launch kernel={n} grid=(256,1,1) block=(256,1,1) lds={KB_LDS}"


def build(force_slow=False, extra=0, force_fence=False):
    a = Asm()
    parts = [gen_k1(a)] if OPT.get("k1only") else [gen_k1(a), gen_kb(a, force_slow, force_fence)]
    launches = [p[1] for p in parts]
    kds = [p[0] for p in parts]
    if extra:
        header(a, "nop_kernel")
        a("s_endpgm")
        kds.append(kd("nop_kernel", 8, 16, 8))
        launches += ["; @launch kernel=nop_kernel grid=(256,1,1) block=(64,1,1) lds=0"] * extra
    out = "\n".join(launches) + "\n"
    out += '.amdgcn_target "amdgcn-amd-amdhsa--gfx950"\n.text\n'
    out += a.text()
    out += '.section .rodata,"a"\n' + "".join(kds)
    return out

if __name__ == "__main__":
    import argparse
    ap = argparse.ArgumentParser()
    ap.add_argument("-o", default="v2.s")
    ap.add_argument("--slow", action="store_true")
    ap.add_argument("--fence", action="store_true")
    ap.add_argument("--opt", default="")
    ap.add_argument("--extra", type=int, default=0)
    ap.add_argument("--stamps", default="", help="up to six stamp names for the fused kernel")
    args = ap.parse_args()
    for kv in args.opt.split(","):
        if kv:
            k_, _, v_ = kv.partition("=")
            OPT[k_] = int(v_) if v_ else 1
    STAMPS = bool(args.stamps)
    STAMP_SET = args.stamps.split(",")
    txt = build(args.slow, args.extra, args.fence)
    import hazard, itouch, re
    plain = re.sub(r"KB_CHAIN\d", "KB_tret", txt)
    print("hazards:", hazard.check(plain), "waits:", 0 if STAMPS else hazard.waitcheck(plain))
    if OPT.get("it", 0):
        txt = re.sub(r"KB_CHAIN(\d)", r"KB_tret ;chain\1", txt)
        txt, nb = itouch.insert(txt, "KB", "kb_kernel", "KB_end", lambda n: [list(range(1 + w, n + 1, 4)) for w in range(4)], "KB_tret")
        ch = [list(range(1 + w, nb + 1, 4)) for w in range(4)]
        txt = re.sub(r"KB_tret ;chain(\d)", lambda m: f"KB_t{ch[int(m.group(1))][0]}" if ch[int(m.group(1))] else "KB_tret", txt)
        print("code blocks touched:", nb)
    open(args.o, "w").write(txt)
```

```python
import math, struct, sys

NAME = "sequential_preLN__grouped_kv_mqa__dense_activation_mish__prompt"

QF   = 0x000000
KV   = 0x200000
SYNC = 0x240000
WOF  = 0x260000
W1F  = 0x300000
W2F  = 0x500000
OF   = 0x700000
HF   = 0x900000
PART = 0xB00000
WS_SIZE = PART + 32*8*8*7168
W1S = 29*1024

X_BYTES = 2048*896
WQ_BYTES = 448*896
WK_BYTES = 448*56
W1_BYTES = 448*3584
W2_BYTES = 1792*896

def f2u(f): return struct.unpack("<I", struct.pack("<f", f))[0]
def hexf(f): return "0x%08x" % f2u(f)
LOG2E = math.log2(math.e)
QSCALE = LOG2E / math.sqrt(28.0)
ONES_BF = "0x3f803f80"

class Asm:
    def __init__(self):
        self.L = []
    def __call__(self, s):
        for ln in s.split("\n"):
            ln = ln.strip()
            if ln: self.L.append("    " + ln)
    def label(self, s): self.L.append(s + ":")
    def c(self, s): self.L.append("    ; " + s)
    def text(self): return "\n".join(self.L) + "\n"

def vr(b, n=1): return f"v{b}" if n == 1 else f"v[{b}:{b+n-1}]"
def ar(b, n=1): return f"a{b}" if n == 1 else f"a[{b}:{b+n-1}]"
def sr(b, n=1): return f"s{b}" if n == 1 else f"s[{b}:{b+n-1}]"

def srd(a, d, lo, hi, nbytes):
    a(f"s_mov_b32 s{d}, s{lo}")
    a(f"s_mov_b32 s{d+1}, s{hi}")
    a(f"s_mov_b32 s{d+2}, {nbytes if isinstance(nbytes, str) else hex(nbytes)}")
    a(f"s_mov_b32 s{d+3}, 0x20000")

def header(a, name):
    a.L.append(f".globl {name}")
    a.L.append(".p2align 12")
    if OPT.get("pad", 1): a.L.append(".fill 832, 4, 0xbf800000")
    a.L.append(".p2align 8")
    a.L.append(f".type {name},@function")
    a.label(name)

def kd(name, vgpr, sgpr, accum):
    return f""".p2align 6
.amdhsa_kernel {name}
  .amdhsa_next_free_vgpr {vgpr}
  .amdhsa_next_free_sgpr {max(96, sgpr) if STAMPS else sgpr}
  .amdhsa_accum_offset {accum}
  .amdhsa_group_segment_fixed_size 0
  .amdhsa_kernarg_size 96
  .amdhsa_user_sgpr_count 2
  .amdhsa_user_sgpr_kernarg_segment_ptr 1
  .amdhsa_system_sgpr_workgroup_id_x 1
.end_amdhsa_kernel
"""

STAMPS = False
STAMP_BASE = 0x8000000
def stamp(a, i):
    if STAMPS: a(f"{'s_memtime' if OPT.get('cyc') and 0 < i < 7 else 's_memrealtime'} s[{72+2*i}:{73+2*i}]")
STAMP_SET = []
OPT = {}
def SM(k):
    return {0: '', 1: ' sc1', 2: ' sc0 sc1', 3: ' nt', 4: ' sc1 nt', 5: ' sc0 sc1 nt'}[int(OPT.get(k, {'pm': 1, 'k1m': 1, 'qm': 1}.get(k, 0)))]
def nstamp(a, name):
    if STAMPS and name in STAMP_SET:
        i = 1 + STAMP_SET.index(name)
        a(f"{'s_memtime' if OPT.get('cyc') else 's_memrealtime'} s[{72+2*i}:{73+2*i}]")
def stamp_init(a):
    if STAMPS:
        for i in range(8): a(f"s_mov_b32 s{72+2*i}, 0")
        stamp(a, 0)
        if OPT.get("dbg"): a("s_load_dwordx2 s[92:93], s[0:1], 80")
def fin(a, kidx, wslo):
    if STAMPS and OPT.get("dbg"):
        stamp(a, 7)
        a("s_mov_b64 exec, 0xff")
        a("s_waitcnt lgkmcnt(0)")
        a("s_not_b32 s72, s72")
        a("v_mbcnt_lo_u32_b32 v1, -1, 0")
        for i in range(8):
            a(f"v_mov_b32 v2, s{72+2*i}")
            a(f"v_cmp_eq_u32 vcc, {i}, v1")
            a("v_cndmask_b32 v0, v0, v2, vcc")
        a("v_lshlrev_b32 v1, 2, v1")
        a(f"s_add_u32 s92, s92, {32 if kidx else 512}")
        a("s_addc_u32 s93, s93, 0")
        a("s_and_b32 s90, s2, 31")
        a("s_lshl_b32 s91, s3, 5")
        a("s_or_b32 s90, s90, s91")
        a("s_cmp_eq_u32 s90, 5")
        a("s_cselect_b64 exec, exec, 0")
        a("global_atomic_umax v1, v0, s[92:93]")
    elif STAMPS:
        stamp(a, 7)
        a("s_mov_b64 exec, 1")
        a("s_waitcnt lgkmcnt(0)")
        for i in range(8): a(f"v_mov_b32 v{i}, s{72+2*i}")
        srd(a, 68, wslo, wslo+1, 0x10000000)
        a("s_lshl_b32 s90, s2, 3")
        a("s_add_u32 s90, s90, s3")
        a(f"s_add_u32 s90, s90, {kidx*4096}")
        a("s_lshl_b32 s90, s90, 5")
        a(f"s_add_u32 s90, s90, {STAMP_BASE}")
        a("v_mov_b32 v8, 0")
        a("buffer_store_dwordx4 v[0:3], v8, s[68:71], s90 offen")
        a("buffer_store_dwordx4 v[4:7], v8, s[68:71], s90 offen offset:16")
        if kidx == 1 and "pa" in OPT:
            lab = f"PRB{len(a.L)}"
            a("s_lshl_b32 s91, s3, 8")
            a("s_or_b32 s91, s91, s2")
            a(f"s_cmp_lg_u32 s91, {OPT.get('pw', 5)}")
            a(f"s_cbranch_scc1 {lab}_e")
            a(f"s_add_u32 s68, s68, {STAMP_BASE + 5*8*32}")
            a("s_addc_u32 s69, s69, 0")
            a("s_load_dwordx8 s[40:47], s[68:69], 0")
            a("s_waitcnt lgkmcnt(0)")
            reg = lambda i: f"s{40+i}" if i < 8 else f"s{72+2*(i-8)}"
            a(f"s_sub_u32 s91, {reg(int(OPT['pb']))}, {reg(int(OPT['pa']))}")
            a("s_lshl_b32 s91, s91, 3")
            a("s_min_u32 s91, s91, 40000")
            a("s_add_u32 s91, s91, s86")
            a.label(lab)
            a("s_memrealtime s[48:49]")
            a("s_waitcnt lgkmcnt(0)")
            a("s_sub_u32 s50, s48, s91")
            a("s_cmp_lt_i32 s50, 0")
            a(f"s_cbranch_scc1 {lab}")
            a.label(lab + "_e")
    a("s_endpgm")

def mfma32(d, A, B, C): return f"v_mfma_f32_32x32x16_bf16 {d}, {A}, {B}, {C}"
def mfma16(d, A, B, C): return f"v_mfma_f32_16x16x32_bf16 {d}, {A}, {B}, {C}"

def split16(m, ph):
    import re
    g = re.match(r"v_mfma_f32_32x32x16_bf16 ([va])\[(\d+):\d+\], (\S+), (\S+), (\S+)", m)
    t, d, A, B, C = g.group(1), int(g.group(2)), g.group(3), g.group(4), g.group(5)
    out = []
    for j in range(2):
        r = f"{t}[{d + 8*ph[0] + 4*j}:{d + 8*ph[0] + 4*j + 3}]"
        out.append(f"v_mfma_f32_16x16x32_bf16 {r}, {A}, {B}, {'0' if ph[1] else r}")
    return out

def half_sum(a, x, t, op="v_add_f32"):
    a(f"v_mov_b32 v{t}, v{x}")
    a("s_nop 1")
    a(f"v_permlane32_swap_b32 v{t}, v{x}")
    a("s_nop 1")
    a(f"{op} v{x}, v{x}, v{t}")

K1_X, K1_W, K1_RL, K1_ST, K1_CS, K1_RP = 0, 57344, 114688, 131072, 131584, 132096
F_W, F_O, F_H, F_P1, F_M, F_R = 0, 128, 256, 384, 1024, 2048
D_CLR = 0
NA = 3

def chunk_items(kind, i):
    it = []
    if kind == "q":
        it.append(["s_lshl_b32 s49, s48, 7", "s_add_u32 s49, s49, s44", f"s_add_u32 m0, s45, {1024*i}", "s_mul_i32 s50, s48, 64*896", "buffer_load_dwordx4 v9, s[8:11], s49 offen lds"])
        it.append(["s_add_u32 s49, s49, 8*896", f"s_add_u32 m0, s45, {1024*i + 7168}", "s_add_u32 s50, s50, s46", "buffer_load_dwordx4 v9, s[8:11], s49 offen lds"])
        it.append([f"s_add_u32 m0, s47, {8192*i}", "s_add_u32 s48, s48, 1", "buffer_load_dwordx4 v8, s[12:15], s50 offen lds"])
        it.append(["s_add_u32 s50, s50, 8*896", f"s_add_u32 m0, s47, {8192*i + 1024}", "s_cmp_eq_u32 s48, 7", "s_cselect_b32 s48, 0, s48", "buffer_load_dwordx4 v8, s[12:15], s50 offen lds"])
    else:
        it.append([f"s_add_u32 m0, s45, {1024*i}", f"s_add_u32 s49, s44, {128*i}", "buffer_load_dwordx4 v9, s[8:11], s49 offen lds"])
        it.append([f"s_add_u32 m0, s45, {1024*i + 7168}", f"s_add_u32 s49, s44, {128*i + 7168}", "buffer_load_dwordx4 v9, s[8:11], s49 offen lds"])
        it.append([f"s_add_u32 m0, s47, {4096*i}", f"s_add_u32 s50, s46, {4096*i}", "buffer_load_dwordx4 v8, s[12:15], s50 offen lds"])
        it.append([f"s_add_u32 m0, s47, {4096*i + 2048}", f"s_add_u32 s50, s46, {4096*i + 2048}", "buffer_load_dwordx4 v8, s[12:15], s50 offen lds"])
    return it

ACC, CS, SS, SQ, SEL, ONE, BUF, SB = 96, 112, 116, 120, 124, 128, 32, 16
RLV, ACK, BIA, RT0, RT1, LN16, CLO = 136, 137, 138, 139, 140, 141, 142

def tlbw(a):
    if not OPT.get("tw"): return
    for d, b, o in ((96, 36, 0), (97, 40, 0), (98, 32, 0), (99, 38, 0), (100, 94, 0), (101, 94, 0x200000), (88, 94, 0x400000), (89, 94, 0x600000)):
        if o: a(f"s_mov_b32 s90, {o}")
        a(f"s_load_dword s{d}, s[{b}:{b+1}], {'s90' if o else 0}")

def p1_head(a):
    a("s_cmp_ge_u32 s2, 256")
    a("s_cbranch_scc1 KB_end")
    stamp_init(a)
    a("s_load_dwordx4 s[24:27], s[0:1], 0")
    a("s_load_dwordx4 s[28:31], s[0:1], 16")
    a("s_load_dwordx4 s[92:95], s[0:1], 80")
    a("s_load_dwordx2 s[32:33], s[0:1], 32")
    a("s_load_dwordx4 s[36:39], s[0:1], 48")
    a("s_load_dwordx4 s[40:43], s[0:1], 64")
    a("v_lshrrev_b32 v1, 6, v0")
    a("v_and_b32 v0, 63, v0")
    a("v_readfirstlane_b32 s3, v1")
    a("s_and_b32 s4, s2, 7")
    a("s_lshl_b32 s4, s4, 2")
    a("s_bfe_u32 s5, s2, 0x20003")
    a("s_add_u32 s4, s4, s5")
    a("s_lshr_b32 s5, s2, 5")
    a("v_lshrrev_b32 v6, 3, v0")
    a("v_and_b32 v7, 7, v0")
    a("s_and_b32 s6, s3, 1")
    a("s_lshr_b32 s7, s3, 1")
    a("v_lshrrev_b32 v10, 1, v6")
    a("v_xor_b32 v9, v7, v10")
    a("s_lshl_b32 s44, s6, 2")
    a("v_xor_b32 v9, s44, v9")
    a("v_mul_u32_u24 v8, 896, v6")
    a("v_lshl_add_u32 v9, v9, 4, v8")
    a("v_and_b32 v11, 1, v10")
    a("v_lshlrev_b32 v11, 2, v11")
    a("v_xor_b32 v11, v7, v11")
    a("v_lshlrev_b32 v11, 4, v11")
    a("s_lshl_b32 s44, s4, 6")
    a("s_lshl_b32 s45, s3, 4")
    a("s_add_u32 s44, s44, s45")
    a("s_mul_i32 s44, s44, 896")
    a("s_mul_i32 s45, s3, 14336")
    a(f"s_mov_b32 s10, {X_BYTES}")
    a("s_mov_b32 s11, 0x20000")
    a("s_mov_b32 s15, 0x20000")
    a(f"v_lshlrev_b32 v{LN16}, 4, v0")
    a("s_lshl_b32 s63, s4, 12")
    a(f"s_add_u32 s63, s63, {SYNC}")
    a("s_cmp_eq_u32 s5, 0")
    a("s_cbranch_scc1 P1_kv")
    a("s_sub_u32 s68, s5, 1")
    a("v_add_u32 v8, v8, v11")
    a("s_mul_i32 s46, s3, 16*896")
    a("s_lshl_b32 s47, s68, 7")
    a("s_add_u32 s46, s46, s47")
    a("s_lshl_b32 s47, s3, 11")
    a(f"s_add_u32 s47, s47, {K1_W}")
    a("s_and_b32 s48, s4, 3")
    a(f"s_mul_i32 s48, s48, {OPT.get('rotm', 2)}")
    a("s_add_u32 s48, s48, s68")
    a("s_cmp_ge_u32 s48, 7")
    a("s_cselect_b32 s49, 7, 0")
    a("s_sub_u32 s48, s48, s49")
    a(f"s_mov_b32 s14, {WQ_BYTES}")
    a("s_waitcnt lgkmcnt(0)")
    a("s_mov_b32 s8, s24")
    a("s_mov_b32 s9, s25")
    a("s_mov_b32 s12, s26")
    a("s_mov_b32 s13, s27")
    tlbw(a)
    for i in range(OPT.get("naq", NA)):
        for it in chunk_items("q", i):
            for x in it: a(x)
    nstamp(a, "p1ld")
    a("v_lshrrev_b32 v2, 5, v0")
    a("v_and_b32 v13, 31, v0")
    a("s_lshl_b32 s51, s68, 4")
    a("s_lshl_b32 s52, s6, 3")
    a("s_add_u32 s51, s51, s52")
    a("v_add_u32 v14, s51, v2")
    a("v_lshrrev_b32 v12, 3, v13")
    a("v_lshlrev_b32 v12, 13, v12")
    a("v_lshl_add_u32 v12, v7, 4, v12")
    for q in range(4):
        d = 132 + q
        a("v_mul_u32_u24 v30, 147, v14")
        a("v_lshrrev_b32 v30, 10, v30")
        a("v_mul_u32_u24 v31, 7, v30")
        a("v_sub_u32 v31, v14, v31")
        a(f"v_lshrrev_b32 v{d}, 2, v30")
        a(f"v_lshl_add_u32 v{d}, v{d}, 11, v12")
        a("v_and_b32 v30, 3, v30")
        a(f"v_lshl_add_u32 v{d}, v30, 7, v{d}")
        a("v_lshrrev_b32 v30, 2, v31")
        a(f"v_lshl_add_u32 v{d}, v30, 10, v{d}")
        a("v_and_b32 v30, 1, v31")
        a(f"v_lshl_add_u32 v{d}, v30, 9, v{d}")
        a("v_bfe_u32 v30, v31, 1, 1")
        a(f"v_lshl_add_u32 v{d}, v30, 3, v{d}")
        if q < 3: a("v_add_u32 v14, 2, v14")
    a("v_bfe_u32 v4, v0, 2, 2")
    a("v_lshlrev_b32 v10, 3, v2")
    a("v_add_u32 v10, v10, v4")
    a("v_lshrrev_b32 v12, 1, v4")
    a("v_xor_b32 v12, s6, v12")
    a("v_lshlrev_b32 v10, 7, v10")
    a("v_lshl_add_u32 v10, v12, 6, v10")
    a(f"v_add_u32 v10, {K1_W}, v10")
    a("s_branch P1_s2")
    a.label("P1_kv")
    a("s_lshl_b32 s46, s7, 10")
    a("s_mul_i32 s47, s6, 28672")
    a("s_add_u32 s47, s47, s46")
    a(f"s_add_u32 s47, s47, {K1_W}")
    a(f"v_mov_b32 v8, v{LN16}")
    for i in range(4): a(f"v_mov_b32 v{20+i}, 0")
    a(f"s_mov_b32 s14, {WK_BYTES}")
    a("s_lshl_b32 s50, s2, 2")
    a("s_add_u32 s50, s50, s3")
    a("s_lshl_b32 s50, s50, 12")
    a(f"s_add_u32 s50, s50, {SYNC}")
    a("s_cmp_lt_u32 s2, 8")
    a("s_cselect_b64 s[52:53], -1, 0")
    a("s_cmp_eq_u32 s6, 0")
    a("s_waitcnt lgkmcnt(0)")
    a("s_cselect_b32 s12, s28, s30")
    a("s_cselect_b32 s13, s29, s31")
    a("s_mov_b32 s8, s24")
    a("s_mov_b32 s9, s25")
    a("s_add_u32 s66, s94, s50")
    a("s_addc_u32 s67, s95, 0")
    a("s_mov_b64 exec, s[52:53]")
    a(f"global_store_dwordx4 v{LN16}, v[20:23], s[66:67] sc0 sc1")
    a(f"global_store_dwordx4 v{LN16}, v[20:23], s[66:67] offset:1024 sc0 sc1")
    a(f"global_store_dwordx4 v{LN16}, v[20:23], s[66:67] offset:2048 sc0 sc1")
    a("s_mov_b64 exec, -1")
    for i in range(OPT.get("nakv", NA)):
        for it in chunk_items("k", i):
            for x in it: a(x)
    nstamp(a, "p1ld")
    a("v_lshrrev_b32 v2, 5, v0")
    a("v_and_b32 v13, 31, v0")
    a("v_bfe_u32 v4, v0, 2, 2")
    a("v_lshlrev_b32 v10, 3, v2")
    a("v_add_u32 v10, v10, v4")
    a("v_mul_u32_u24 v10, 56, v10")
    a("s_mul_i32 s51, s6, 28672")
    a(f"s_add_u32 s51, s51, {K1_W}")
    a("v_add_u32 v10, s51, v10")
    for q in range(4): a(f"v_mov_b32 v{132+q}, 0")
    a.label("P1_s2")
    a("v_bfe_u32 v3, v0, 4, 1")
    a("v_and_b32 v5, 3, v0")
    srd(a, 16, 94, 95, WS_SIZE)
    a("s_add_u32 s66, s94, s63")
    a("s_addc_u32 s67, s95, 0")
    a("s_getpc_b64 s[50:51]")
    a.label("KB_pc")
    a("s_lshr_b32 s52, s2, 3")
    a("s_lshl_b32 s52, s52, 2")
    a("s_add_u32 s52, s52, s3")
    a("s_lshl_b32 s52, s52, 13")
    a("v_lshlrev_b32 v12, 7, v0")
    a("v_add_u32 v12, s52, v12")
    a("v_min_u32 v12, KB_code_end-KB_pc-4, v12")
    a("global_load_dword v165, v12, s[50:51]")
    a("s_getreg_b32 s69, hwreg(HW_REG_XCC_ID, 0, 4)")
    a("s_or_b32 s69, s69, 16")
    a("v_lshl_add_u32 v10, v3, 5, v10")
    a("v_lshl_add_u32 v10, v5, 3, v10")
    a("v_bfe_u32 v14, v13, 1, 2")
    a("v_lshrrev_b32 v15, 2, v13")
    a("v_and_b32 v15, 4, v15")
    a("v_or_b32 v14, v14, v15")
    a("v_xor_b32 v14, v14, v2")
    a("v_lshrrev_b32 v15, 3, v13")
    a("v_mul_u32_u24 v15, 7168, v15")
    a("v_lshl_add_u32 v15, v7, 7, v15")
    a("s_mul_i32 s51, s7, 28672")
    a("v_add_u32 v15, s51, v15")
    for j in range(4):
        a(f"v_xor_b32 v12, {2*j}, v14")
        a(f"v_lshl_add_u32 v{24+j}, v12, 4, v15")
    a("v_bfe_u32 v14, v0, 3, 1")
    a("v_mul_u32_u24 v14, 7168, v14")
    a("v_lshl_add_u32 v14, v7, 7, v14")
    a("v_lshrrev_b32 v12, 4, v0")
    a("v_lshrrev_b32 v28, 1, v7")
    a("v_xor_b32 v12, v12, v28")
    a("v_lshl_add_u32 v14, v12, 4, v14")
    a("v_add_u32 v28, s45, v14")
    a("v_xor_b32 v29, 64, v28")
    a("v_xor_b32 v14, v0, v3")
    a("v_and_b32 v14, 1, v14")
    a(f"v_mov_b32 v12, {ONES_BF}")
    a("v_cmp_eq_u32 vcc, 0, v14")
    for i in range(4): a(f"v_mov_b32 v{ONE+i}, v12")
    for i in range(4): a(f"v_cndmask_b32 v{SEL+i}, 0, v12, vcc")
    a("s_movk_i32 s60, 896")
    a(f"s_mov_b32 s22, {W1_BYTES}")
    a("s_mov_b32 s23, 0x20000")
    a(f"s_mov_b32 s34, {W1S}")
    a(f"s_mov_b32 s35, {W1F}")
    a("s_movk_i32 s61, 256")
    a("s_movk_i32 s62, 2341")
    a("s_cmp_lt_u32 s2, 130")
    a("s_cselect_b32 s60, 3584, s60")
    a("s_cselect_b32 s61, s61, 256 + 784")
    a("s_cselect_b32 s62, s62, 586")
    a("s_cselect_b32 s53, 28, 112")
    a("s_cselect_b32 s57, 0, 1")
    a("s_cselect_b32 s20, s36, s40")
    a("s_cselect_b32 s21, s37, s41")
    a("s_cselect_b32 s34, s34, 112*1024")
    a(f"s_cselect_b32 s35, s35, {W2F}")
    a("s_cmp_lt_u32 s2, 228")
    a("s_cselect_b32 s61, s61, 256 + 1568")
    a("s_cselect_b32 s62, s62, 2048")
    a("s_cselect_b32 s53, s53, 32")
    a("s_cselect_b32 s57, s57, 2")
    a("s_cselect_b32 s20, s20, s32")
    a("s_cselect_b32 s21, s21, s33")
    a(f"s_cselect_b32 s22, s22, {WQ_BYTES}")
    a("s_cselect_b32 s34, s34, 32768")
    a(f"s_cselect_b32 s35, s35, {WOF}")
    a("s_cselect_b32 s51, 16, 14")
    a("s_lshl_b32 s59, s2, 2")
    a("s_add_u32 s59, s59, s3")
    a("s_lshl_b32 s59, s59, 1")
    a("s_sub_u32 s59, s59, s61")
    a("s_mul_i32 s58, s59, s62")
    a("s_lshr_b32 s58, s58, 16")
    a("s_mul_i32 s53, s53, s58")
    a("s_sub_u32 s59, s59, s53")
    a("s_mul_i32 s61, s59, s51")
    a("s_mul_i32 s61, s61, s60")
    a("s_lshl_b32 s64, s58, 7")
    a("s_add_u32 s61, s61, s64")
    a(f"v_mad_u32_u24 v{RLV}, v6, s60, v11")
    a("s_lshl_b32 s60, s60, 3")
    a("s_lshl_b32 s53, s59, 10")
    a("s_add_u32 s35, s35, s53")
    a("s_mul_i32 s53, s34, s58")
    a("s_lshl_b32 s53, s53, 1")
    a("s_add_u32 s35, s35, s53")
    a("s_lshl_b32 s65, s3, 12")
    a(f"s_add_u32 s65, s65, {K1_RL}")
    a("s_mov_b32 s36, s38")
    a("s_mov_b32 s37, s39")
    a("s_movk_i32 s38, 3584")
    a("s_mov_b32 s39, 0x20000")
    a(f"v_lshlrev_b32 v{RT0}, 2, v2")
    a(f"v_add_u32 v{RT0}, v{RT0}, v4")
    a(f"v_lshlrev_b32 v{RT0}, 7, v{RT0}")
    a("v_lshrrev_b32 v12, 1, v4")
    a(f"v_lshl_add_u32 v{RT0}, v12, 6, v{RT0}")
    a(f"v_lshl_add_u32 v{RT0}, v3, 5, v{RT0}")
    a(f"v_lshl_add_u32 v{RT0}, v5, 3, v{RT0}")
    a(f"v_add_u32 v{RT0}, s65, v{RT0}")
    a(f"v_xor_b32 v{RT1}, 64, v{RT0}")
    a(f"v_lshlrev_b32 v{BIA}, 1, v0")
    if OPT.get("tw2"):
        a("s_lshl_b32 s51, s3, 15")
        a(f"s_add_u32 s51, s51, {SYNC + 3072}")
        a("v_lshl_add_u32 v166, v7, 12, s51")
        a("s_add_u32 s51, s63, 3072")
        a("v_mov_b32 v12, s51")
        a("v_cmp_ne_u32 vcc, 0, v2")
        a("s_nop 1")
        a("v_cndmask_b32 v166, v166, v12, vcc")
    a(f"v_and_b32 v{CLO}, 1, v0")
    a(f"v_lshlrev_b32 v{CLO}, 7, v{CLO}")
    if OPT.get("it1", 1):
        for w in range(3):
            a(f"s_cmp_eq_u32 s3, {w}")
            a(f"s_cbranch_scc1 KA_CHAIN{w}")
        a("s_branch KA_CHAIN3")
        a.label("KA_tret")
    a("s_cmp_eq_u32 s5, 0")
    a("s_cbranch_scc0 P1_q")
    a("s_cmp_eq_u32 s6, 0")
    a("s_cbranch_scc1 P1_k")
    a("s_branch P1_v")

def p1_body(a, kind):
    a.L.append(".p2align 12")
    a.label("P1_" + kind)
    def reads(i):
        b = BUF + 32*(i & 1); L = []
        for k in range(4):
            wo = 8192*i + 2048*k if kind == "q" else 896*(4*i + k)
            L += [f"ds_read_b64_tr_b16 {vr(b+8*k,2)}, v10 offset:{wo}",
                  f"ds_read_b64_tr_b16 {vr(b+8*k+2,2)}, v10 offset:{wo + (512 if kind == 'q' else 224)}",
                  f"ds_read_b128 {vr(b+8*k+4,4)}, v{24+k} offset:{1024*i}"]
        L += [f"ds_read_b128 {vr(SB+4*hf,4)}, v{28+hf} offset:{1024*i}" for hf in range(2)]
        return L
    def mfmas(i):
        b = BUF + 32*(i & 1); L = []
        z = lambda r, n_, first: "0" if first else vr(r, n_)
        for k in range(4):
            W, X = vr(b+8*k,4), vr(b+8*k+4,4)
            f = i == 0 and k == 0
            if kind == "v":
                L += [mfma32(vr(ACC,16), X, W, z(ACC,16,f)), mfma16(vr(CS,4), vr(SEL,4), W, z(CS,4,f))]
            else:
                L += [mfma32(vr(ACC,16), W, X, z(ACC,16,f)), mfma16(vr(CS,4), W, vr(SEL,4), z(CS,4,f))]
        return L
    def smfmas(i):
        L = []
        for hf in range(2):
            f = i == 0 and hf == 0
            X = vr(SB+4*hf,4)
            L += [mfma16(vr(SS,4), X, vr(ONE,4), "0" if f else vr(SS,4)), mfma16(vr(SQ,4), X, X, "0" if f else vr(SQ,4))]
        return L
    rl = [[f"s_add_u32 m0, s65, {1024*j}", "s_add_u32 s61, s61, s60" if j else "s_nop 0", f"buffer_load_dwordx4 v{RLV}, s[20:23], s61 offen lds"] for j in range(4)]
    rl += [[f"buffer_load_ushort v{BIA}, v{BIA}, s[36:39], s64 offen"]]
    if kind != "q": rl = []
    RLI = OPT.get("rli", 3)
    NA = OPT.get("naq", 3) if kind == "q" else OPT.get("nakv", 3)
    ACI, ACL = OPT.get("aci", 0), OPT.get("acl", 6)
    vq = [f"c{i}" for i in range(NA) for _ in range(4)] + ["warm"]
    ack = []
    if kind == "k":
        a("s_and_b32 s51, s2, 1")
        a("s_lshl_b32 s51, s51, 7")
        a("s_lshr_b32 s52, s2, 1")
        a("s_add_u32 s51, s51, s52")
        a("v_mov_b32 v132, s51")
        a("v_mov_b32 v133, 1")
        a("s_lshl_b32 s51, s3, 3")
        a("s_or_b32 s51, s51, s2")
        a("s_cmp_lt_u32 s51, 8")
        a("s_cselect_b64 s[52:53], 1, 0")
        ack = [["s_mov_b64 exec, s[52:53]", f"global_store_byte v132, v133, s[92:93] offset:{D_CLR} sc0 sc1", "s_mov_b64 exec, -1"]]
    ackl = [[f"global_load_dword v{ACK}, v{CLO}, s[92:93] offset:{D_CLR} sc1"]]
    for i in range(8):
        fillers = []
        if i < 7:
            k = len(vq) - 1 - vq[::-1].index(f"c{i}")
            a(f"s_waitcnt vmcnt({len(vq) - 1 - k})")
            a("s_barrier")
            if i == 0: nstamp(a, "p1b0")
            nstamp(a, f"it{i}")
            fillers = [[x] for x in reads(i)]
        ld = chunk_items(kind, i + NA) if i + NA < 7 else []
        vq += [f"c{i + NA}"] * len(ld)
        if i == RLI:
            ld = ld + rl; vq += ["rl"] * len(rl)
        if i == ACL:
            ld = ld + ackl; vq += ["ack"]
            if OPT.get("tw2"):
                ld = ld + [["global_load_dword v167, v166, s[94:95] sc1"]]; vq += ["ack"]
        if i == ACI:
            ld = ld + ack
        if i == 0:
            for it in fillers + ld:
                for x in it: a(x)
            continue
        a("s_waitcnt lgkmcnt(0)")
        M = smfmas(i - 1) + mfmas(i - 1)
        rest = fillers[:12] + ld
        late = fillers[12:]
        for k, m in enumerate(M):
            a(m)
            if k >= 4 and late and k in (6, 8):
                for x in late.pop(0): a(x)
            take = -(-len(rest) // (len(M) - k))
            for _ in range(take):
                for x in rest.pop(0): a(x)
        assert not rest and not late
    nstamp(a, "p1lp")
    def done(nst):
        nstamp(a, "p1st")
        if kind != "q": a("s_branch P1_join")
    a("v_cmp_eq_u32 vcc, 1, v5")
    a("v_cmp_eq_u32 s[52:53], 2, v5")
    a("v_cmp_eq_u32 s[44:45], 3, v5")
    a("v_lshrrev_b32 v11, 4, v0")
    a("v_cmp_eq_u32 s[46:47], v11, v4")
    for r in (SS, SQ):
        a(f"v_cndmask_b32 v{r}, v{r}, v{r+1}, vcc")
        a(f"v_cndmask_b32 v{r}, v{r}, v{r+2}, s[52:53]")
        a(f"v_cndmask_b32 v{r}, v{r}, v{r+3}, s[44:45]")
    a(f"v_mul_f32 v20, {hexf(1.0/448)}, v{SS}")
    a(f"v_mul_f32 v22, {hexf(1.0/448)}, v{SQ}")
    a("v_fma_f32 v22, -v20, v20, v22")
    a("v_max_f32 v22, 0, v22")
    a(f"v_add_f32 v22, {hexf(1e-5)}, v22")
    a("v_rsq_f32 v22, v22")
    a("s_lshl_b32 s51, s3, 7")
    a(f"s_add_u32 s51, s51, {K1_ST}")
    a("v_and_b32 v11, 15, v0")
    a("v_lshl_add_u32 v11, v11, 3, s51")
    a("v_mul_f32 v23, -v20, v22")
    a("s_mov_b64 exec, s[46:47]")
    a("ds_write_b64 v11, v[22:23]")
    a("s_mov_b64 exec, -1")
    if kind != "v":
        a("s_lshl_b32 s51, s3, 7")
        a(f"s_add_u32 s51, s51, {K1_CS}")
        a("v_lshrrev_b32 v11, 4, v0")
        a("v_lshlrev_b32 v11, 4, v11")
        a("v_and_b32 v14, 15, v0")
        a("v_lshl_add_u32 v11, v14, 6, v11")
        a("v_add_u32 v11, s51, v11")
        a("v_lshl_add_u32 v14, v2, 4, s51")
        a("s_mov_b32 exec_lo, 0x00030003")
        a("s_mov_b32 exec_hi, 0x00030003")
        a(f"ds_write_b128 v11, {vr(CS,4)}")
        a("s_mov_b64 exec, -1")
        for i in range(4): a(f"ds_read_b128 {vr(32+4*i,4)}, v14 offset:{32*i}")
    else:
        a("v_cmp_ne_u32 vcc, 0, v3")
        a("s_nop 1")
        a(f"v_cndmask_b32 v{CS}, v{CS}, v{CS+1}, vcc")
    a("s_lshl_b32 s51, s7, 8")
    a(f"s_add_u32 s51, s51, {K1_ST}")
    a("s_waitcnt lgkmcnt(0)")
    a("s_barrier")
    nstamp(a, "p1e")
    if kind != "v":
        a("v_lshl_add_u32 v11, v13, 3, s51")
        a("ds_read_b64 v[20:21], v11")
        a("v_cmp_ne_u32 s[52:53], 0, v2")
        if kind == "q":
            a("s_lshl_b32 s51, s4, 3")
            a("s_lshl_b32 s50, s7, 2")
            a("s_add_u32 s51, s51, s50")
            a("s_lshl_b32 s51, s51, 13")
            if QF: a(f"s_add_u32 s51, s51, {QF}")
        a("s_waitcnt lgkmcnt(0)")
        if kind == "q":
            a(f"v_mul_f32 v20, {hexf(QSCALE)}, v20")
            a(f"v_mul_f32 v21, {hexf(QSCALE)}, v21")
        for q in range(4):
            for i in range(4*q, 4*q + 4):
                a(f"v_mul_f32 v{ACC+i}, v{ACC+i}, v20")
                a(f"v_fmac_f32 v{ACC+i}, v{32+i}, v21")
            for i in range(2): a(f"v_cvt_pk_bf16_f32 v{48+2*q+i}, v{ACC+4*q+2*i}, v{ACC+4*q+2*i+1}")
            if kind == "q": a(f"buffer_store_dwordx2 {vr(48+2*q,2)}, v{132+q}, s[16:19], s51 offen{SM('qm')}")
        if kind == "q":
            done(4)
            return
        a("v_cndmask_b32 v54, v54, 0, s[52:53]")
        a("v_cndmask_b32 v55, v55, 0, s[52:53]")
        a("v_mov_b32 v20, 0")
        a("v_mov_b32 v22, 0x3f80")
        for i in range(8): a(f"v_dot2c_f32_bf16 v20, v{48+i}, v{48+i}")
        a("v_cndmask_b32 v54, v54, v22, s[52:53]")
        a("s_lshl_b32 s51, s4, 1")
        a("s_add_u32 s51, s51, s7")
        a("s_lshl_b32 s50, s7, 2")
        a(f"s_add_u32 s50, s50, {K1_RP + 1088}")
        a("s_lshl_b32 s51, s51, 12")
        a(f"s_add_u32 s51, s51, {KV}")
        a(f"buffer_store_dwordx4 v[48:51], v{LN16}, s[16:19], s51 offen{SM('k1m')}")
        a(f"buffer_store_dwordx4 v[52:55], v{LN16}, s[16:19], s51 offen offset:1024{SM('k1m')}")
        half_sum(a, 20, 21)
        a("s_nop 1")
        for m in ("quad_perm:[1,0,3,2]", "quad_perm:[2,3,0,1]", "row_half_mirror", "row_mirror"):
            a(f"v_max_f32_dpp v20, v20, v20 {m} row_mask:0xf bank_mask:0xf")
            a("s_nop 1")
        a("v_mov_b32 v21, v20")
        a("s_nop 1")
        a("v_permlane16_swap_b32 v21, v20")
        a("s_nop 1")
        a("v_max_f32 v20, v20, v21")
        a("v_mov_b32 v17, s50")
        a("ds_write_b32 v17, v20")
        done(3)
        return
    a("v_lshl_add_u32 v11, v2, 5, s51")
    for i in range(8): a(f"ds_read_b128 {vr(32+4*i,4)}, v11 offset:{64*(i>>1) + 16*(i&1)}")
    a("v_cmp_eq_u32 s[52:53], 28, v13")
    a(f"v_mov_b32 v21, {ONES_BF}")
    a("v_cmp_lt_u32 s[44:45], 27, v13")
    a("v_cndmask_b32 v21, 0, v21, s[52:53]")
    a("s_lshl_b32 s51, s4, 1")
    a("s_add_u32 s51, s51, s7")
    a("s_lshl_b32 s51, s51, 12")
    a(f"s_add_u32 s51, s51, {KV}")
    a("s_waitcnt lgkmcnt(0)")
    for i in range(16):
        a(f"v_mul_f32 v{ACC+i}, v{ACC+i}, v{32+2*i}")
        a(f"v_fmac_f32 v{ACC+i}, v{33+2*i}, v{CS}")
    for i in range(8): a(f"v_cvt_pk_bf16_f32 v{64+i}, v{ACC+2*i}, v{ACC+2*i+1}")
    for i in range(8): a(f"v_cndmask_b32 v{64+i}, v{64+i}, v21, s[44:45]")
    a(f"buffer_store_dwordx4 v[64:67], v{LN16}, s[16:19], s51 offen offset:2048{SM('k1m')}")
    a(f"buffer_store_dwordx4 v[68:71], v{LN16}, s[16:19], s51 offen offset:3072{SM('k1m')}")
    done(2)

L_RED, L_XC, L_HN, L_ACT, L_W2 = 0, 49152, 0, 65536, 98304
KB_LDS = 163840
H_ST, H_T1 = 28672, 36864
SHIFT_LIMIT = 40.0
SPIN_LIMIT = 1 << 17
LN2F = math.log(2.0)

class Cnt:
    def __init__(self, name, cap): self.q = []; self.name = name; self.cap = cap
    def issue(self, tag):
        self.q.append(tag)
        assert self.name != "vmcnt" or len(self.q) <= self.cap, (self.name, tag, len(self.q))
    def wait(self, tag):
        if tag not in self.q: return None
        k = len(self.q) - 1 - self.q[::-1].index(tag)
        n = min(len(self.q) - 1 - k, self.cap)
        self.q = self.q[len(self.q)-n:] if n else []
        return f"s_waitcnt {self.name}({n})"
    def clear(self): self.q = []

def cost(t):
    mn = t.split()[0]
    if mn.startswith(("v_exp", "v_rcp", "v_rsq", "v_sqrt")): return 8
    if mn.startswith(("ds_write_b128", "global_store")): return 20
    if mn.startswith(("ds_", "global_", "buffer_")): return 12
    if mn.startswith(("v_cvt_pk", "v_fma_")): return 5
    return 4.3

def gen_kb(a, force_slow=False, force_fence=False):
    n = NAME + "_kernel"
    header(a, n)
    vm = Cnt("vmcnt", 63); lg = Cnt("lgkmcnt", 15)
    def V(text, tag="-"):
        if len(vm.q) >= 63:
            a("s_waitcnt vmcnt(48)"); vm.q = vm.q[-48:]
        a(text); vm.issue(tag)
    def D(text, tag="-"): a(text); lg.issue(tag)
    def WV(tag):
        w = vm.wait(tag)
        if w: a(w)
    def WL(tag):
        w = lg.wait(tag)
        if w: a(w)
    def add64(d, s, off):
        a(f"s_add_u32 s{d}, s{s}, {off}")
        a(f"s_addc_u32 s{d+1}, s{s+1}, 0")
    m0now = [None, False]
    def emit_item(it):
        if it[0] == "s" and " m0," in it[1]:
            m0now[1] = it[1] == m0now[0]
            if m0now[1]: return
            m0now[0] = it[1]
        elif it[0] == "s" and it[1] == "s_nop 0" and m0now[1]:
            m0now[1] = False
            return
        if it[0] == "s": a(it[1])
        elif it[0] == "v": V(it[1], it[2])
        elif it[0] == "d": D(it[1], it[2])
        elif it[0] == "wv": WV(it[1])
        elif it[0] == "wl": WL(it[1])
        elif it[0] == "l": a.label(it[1])
    XR, Q, KVR, S, P, WOV = 16, 32, 64, 96, 128, 144
    WS = " sc1" if OPT.get("wsc", 0) else ""
    p1_head(a)
    p1_body(a, "q")
    a.label("P1_join")
    nstamp(a, "p1j")
    a("v_cmp_ne_u32 s[64:65], 0, v2")
    for d_, s_ in ((8, 94), (9, 95), (10, 24), (11, 25), (12, 42), (13, 43)): a(f"s_mov_b32 s{d_}, s{s_}")
    a("s_mov_b32 s88, s35")
    a("s_add_u32 s89, s35, s34")
    a("s_cmp_eq_u32 s57, 2")
    a("s_cselect_b64 s[52:53], s[64:65], 0")
    a("v_lshlrev_b32 v8, 2, v0")
    a("v_cndmask_b32 v143, -1, 0, s[52:53]")
    a("s_add_u32 s62, s59, 2")
    a("s_lshr_b32 s62, s62, 3")
    a(f"s_mul_i32 s71, s58, {2*W1S}")
    a("s_lshr_b32 s54, s62, 1")
    a("s_lshl_b32 s54, s54, 9")
    a("s_add_u32 s71, s71, s54")
    a(f"s_add_u32 s71, s71, {W1F + 28*1024}")
    a("s_lshl_b32 s54, s3, 5")
    a("s_add_u32 s54, s54, s59")
    a("s_cmp_eq_u32 s54, 32 + 26")
    a("s_cselect_b32 s91, 0, -1")
    a("s_cmp_eq_u32 s54, 96 + 2")
    a("s_cselect_b32 s90, 0, -1")
    a("s_cselect_b32 s54, 1, s3")
    a("s_lshl_b32 s53, s57, 2")
    a("s_or_b32 s54, s54, s53")
    a("s_cmp_eq_u32 s54, 1")
    a("s_cselect_b32 s62, s62, 4")
    a("s_cmp_eq_u32 s5, 0")
    a("s_cselect_b32 s62, 4, s62")
    a(f"s_cselect_b32 s26, 0, {WS_SIZE}")
    a("s_mov_b32 s24, s94")
    a("s_mov_b32 s25, s95")
    a("s_mov_b32 s27, 0x20000")
    a("s_mov_b32 s70, s57")
    a("s_lshl_b32 s54, s5, 7")
    a("s_cmp_eq_u32 s5, 0")
    a(f"s_cselect_b32 s54, {F_R - F_M}, s54")
    a("s_cselect_b32 s46, 0xff, 1")
    a("s_mov_b32 s47, 0")
    a("v_lshl_add_u32 v16, v0, 7, s54")
    a("v_mov_b32 v17, s69")
    a("s_mul_i32 s69, s69, 0x01010101")
    a("v_mov_b32 v20, 1")
    a(f"v_mov_b32 v19, {K1_RP + 1088}")
    a("s_cmp_eq_u32 s3, 0")
    a("s_cselect_b32 s46, s46, 0")
    a("s_lshl_b32 s54, s3, 15")
    a("s_and_b32 s53, s2, 7")
    a("s_lshl_b32 s53, s53, 7")
    a("s_add_u32 s54, s54, s53")
    a(f"s_add_u32 s54, s54, {SYNC + F_R}")
    a("v_lshl_add_u32 v31, v7, 12, s54")
    a(f"s_add_u32 s54, s63, {F_M}")
    a("v_max_u32 v28, 1, v7")
    a("v_lshl_add_u32 v28, v28, 7, s54")
    a("v_cndmask_b32 v31, v31, v28, s[64:65]")
    a("s_waitcnt lgkmcnt(0)")
    a("s_barrier")
    a("ds_read_b64 v[18:19], v19")
    a("s_lshr_b32 s7, s2, 3")
    a("s_lshl_b32 s6, s4, 3")
    a("s_add_u32 s6, s6, s5")
    a("v_lshlrev_b32 v1, 4, v0")
    a("s_lshl_b32 s52, s3, 16")
    a(f"s_add_u32 s52, s52, {KV + 4096}")
    NKP = 3
    S0, S1, S8 = KVR, KVR + 16, WOV + 96
    kvs = [(S0, S1, S8)[i % 3] for i in range(16)]
    def kvld(i, part):
        b = 32 + 2*(i >> 1)
        return f"global_load_dwordx4 {vr(kvs[i]+4*part,4)}, v1, s[{b}:{b+1}] offset:{4096*(i&1) - 4096 + 1024*part}{' sc1' if OPT.get('ksc', 0) or i < 2 else ''}"
    def kvbase(p):
        a(f"s_add_u32 s53, s5, {p}")
        a("s_and_b32 s53, s53, 7")
        a("s_lshl_b32 s53, s53, 13")
        a("s_add_u32 s53, s53, s52")
        add64(32+2*p, 8, "s53")
    NPRO = OPT.get('npro', 2)
    for p in range(7): kvbase(p)
    a("s_and_b32 s14, s3, 1")
    a("s_lshr_b32 s15, s3, 1")
    a("s_min_u32 s28, s5, 6")
    a("s_lshl_b32 s53, s28, 16")
    a("s_lshl_b32 s54, s14, 14")
    a("s_add_u32 s53, s53, s54")
    a(f"s_add_u32 s53, s53, {WOF + 4096}")
    a("s_lshl_b32 s54, s14, 15")
    a("s_add_u32 s55, s53, s54")
    add64(50, 8, "s55")
    a("s_xor_b32 s54, s54, 0x8000")
    a("s_add_u32 s55, s53, s54")
    add64(48, 8, "s55")
    a("s_lshl_b32 s53, s28, 3")
    a("s_add_u32 s53, s53, s3")
    a(f"s_mul_i32 s53, s53, {W1S}")
    a(f"s_add_u32 s53, s53, {W1F + 4096}")
    add64(96, 8, "s53")
    add64(98, 96, 4*W1S)
    VOFF = (1, 7, 9, 8)
    def woreg(f):
        return vr(WOV+4*f, 4) if f < 24 else ar(224+4*(f-24), 4)
    def wo_item(f):
        b = 48 if f < 16 else 50
        return [("v", f"global_load_dwordx4 {woreg(f)}, v{VOFF[(f%16)//8]}, s[{b}:{b+1}] offset:{1024*(f%8) - 4096}{WS}", f"wo{f}")]
    def w1reg(i):
        return ar(64+4*i, 4) if i < 40 else ar(4*(i-40), 4)
    def w1_item(i):
        b, ks = (96, i) if i < 28 else (98, i - 28)
        return [("v", f"global_load_dwordx4 {w1reg(i)}, v{VOFF[ks//8]}, s[{b}:{b+1}] offset:{1024*(ks%8) - 4096}{WS}", f"w1_{i}")]
    a("v_and_b32 v5, 31, v0")
    a("v_and_b32 v30, 7, v0")
    a("v_lshlrev_b32 v30, 2, v30")
    nstamp(a, "p1w")
    a("s_waitcnt vmcnt(0) lgkmcnt(0)")
    a(f"v_cmp_ne_u32 vcc, 0x01010101, v{ACK}")
    a("s_cbranch_vccnz P1_ack")
    a.label("P1_ack_done")
    a("s_barrier")
    a("s_mov_b64 exec, s[46:47]")
    a(f"global_store_dwordx3 v16, v[18:20], s[66:67] offset:{F_M} sc0 sc1")
    a("s_mov_b64 exec, -1")
    nstamp(a, "p1fl")
    RB, CP = WOV, WOV + 16
    WSL = OPT.get("wsl", 1)
    def wblock():
        skip = "P1_wb_done" if WSL else "P1_aug_done"
        ST = (lambda t: V(t, "wst")) if WSL else a
        for p in range(2):
            for t in range(2):
                b = RB + 8*p + 4*t
                a(f"ds_read_b64_tr_b16 {vr(b,2)}, v{RT0+t} offset:{2048*p}")
                a(f"ds_read_b64_tr_b16 {vr(b+2,2)}, v{RT0+t} offset:{2048*p + 1024}")
        a(f"s_mov_b32 s63, {ONES_BF}")
        for i in range(4): a(f"v_mov_b32 v{CP+i}, 0")
        a("s_lshl_b32 s53, s3, 8")
        a(f"s_add_u32 s53, s53, {K1_RP}")
        a("v_add_u32 v29, s53, v8")
        a("s_waitcnt lgkmcnt(4)")
        ST(f"buffer_store_dwordx4 {vr(RB,4)}, v1, s[24:27], s88 offen sc1")
        ST(f"buffer_store_dwordx4 {vr(RB+4,4)}, v1, s[24:27], s89 offen sc1")
        for i in range(8): a(f"v_dot2c_f32_bf16 v{CP + 2*(i>>2) + (i&1)}, s63, v{RB+i}")
        a("s_waitcnt lgkmcnt(0)")
        for r in (10, 11, 14, 15): a(f"v_and_b32 v{RB+r}, v143, v{RB+r}")
        ST(f"buffer_store_dwordx4 {vr(RB+8,4)}, v1, s[24:27], s88 offen offset:1024 sc1")
        ST(f"buffer_store_dwordx4 {vr(RB+12,4)}, v1, s[24:27], s89 offen offset:1024 sc1")
        srd(a, 24, 12, 13, X_BYTES)
        a("s_cmp_eq_u32 s70, 0")
        a(f"s_cbranch_scc0 {skip}")
        for i in range(8): a(f"v_dot2c_f32_bf16 v{CP + 2*(i>>2) + (i&1)}, s63, v{RB+8+i}")
        a("s_nop 2")
        a(f"v_add_f32 v{CP}, v{CP}, v{CP+1}")
        a(f"v_add_f32 v{CP+2}, v{CP+2}, v{CP+3}")
        a(f"v_mov_b32 v{CP+1}, v{CP}")
        a(f"v_mov_b32 v{CP+3}, v{CP+2}")
        a("s_nop 0")
        a(f"v_permlane32_swap_b32 v{CP+1}, v{CP}")
        a(f"v_permlane32_swap_b32 v{CP+3}, v{CP+2}")
        a("s_nop 0")
        a(f"v_add_f32 v{CP}, v{CP}, v{CP+1}")
        a(f"v_add_f32 v{CP+2}, v{CP+2}, v{CP+3}")
        a(f"v_cndmask_b32 v{CP}, v{CP}, v{CP+2}, s[64:65]")
        a(f"ds_write_b32 v29, v{CP}")
        if WSL:
            a.label("P1_wb_done")
            return
        a("s_waitcnt lgkmcnt(0)")
        a("s_barrier")
        a("s_cmp_lt_u32 s62, 4")
        a("s_cbranch_scc1 P1_aug")
        a.label("P1_aug_done")
    if not WSL: wblock()
    nstamp(a, "p1ws")
    wflag = [("s", "s_mov_b64 exec, 1"), ("v", f"global_store_byte v16, v17, s[66:67] offset:{F_W} sc0 sc1", "wfl"), ("s", "s_mov_b64 exec, -1")]
    PL, PA, PB, PF = S, S + 4, S + 8, S + 12
    PFM = OPT.get("pf", 0)
    pollA = f"global_load_dwordx3 {vr(PA,3)}, v31, s[8:9] sc1"
    pollB = f"global_load_dwordx3 {vr(PB,3)}, v31, s[8:9] sc1"
    pref0 = f"global_load_dword v{PF}, v23, s[8:9] sc1"
    a(pollA)
    kvbase(7)
    a("s_lshl_b32 s54, s6, 13")
    if QF: a(f"s_add_u32 s54, s54, {QF}")
    a("s_lshl_b32 s53, s3, 11")
    a("s_add_u32 s53, s53, s54")
    a("s_sub_u32 s53, s53, 48*128")
    a("v_cmp_gt_u32 vcc, 48, v0")
    a("v_mov_b32 v22, s53")
    a("s_lshl_b32 s53, s5, 13")
    a("s_add_u32 s53, s53, s52")
    a("s_sub_u32 s53, s53, 4096")
    a("v_mov_b32 v23, s53")
    a("v_cndmask_b32 v23, v22, v23, vcc")
    a("v_lshl_add_u32 v23, v0, 7, v23")
    for t in range(4):
        a(f"s_add_u32 s{58+t}, s3, {t+1}")
        a(f"s_and_b32 s{58+t}, s{58+t}, 3")
        a(f"s_lshl_b32 s{58+t}, s{58+t}, 11")
        a(f"s_add_u32 s{58+t}, s{58+t}, s54")
    a("v_lshrrev_b32 v6, 2, v5")
    a("v_mul_u32_u24 v3, 7168, v6")
    a("v_and_b32 v6, 3, v0")
    a("v_mul_u32_u24 v11, 896, v6")
    a("v_add_u32 v3, v3, v11")
    a("v_lshl_add_u32 v3, v2, 4, v3")
    a("s_lshl_b32 s53, s4, 4")
    a("s_add_u32 s53, s53, s15")
    a("s_mul_i32 s53, s53, 3584")
    a("s_lshl_b32 s54, s28, 7")
    a("s_add_u32 s53, s53, s54")
    a("s_lshl_b32 s54, s14, 6")
    a("s_add_u32 s53, s53, s54")
    add64(100, 10, "s53")
    xr = [("v", f"global_load_dwordx4 {vr(XR+4*i,4)}, v3, s[100:101] offset:{32*i}", "xr") for i in range(2)]
    a("v_add_u32 v7, 8192, v1")
    a("v_add_u32 v9, 16384, v1")
    for t in range(3):
        a(f"s_add_u32 s53, s3, {t+1}")
        a("s_and_b32 s53, s53, 3")
        a("s_mul_i32 s53, s53, 12288")
        a(f"s_add_u32 s53, s53, {L_RED + 4096*t}")
        a(f"v_add_u32 v{13+t}, s53, v1")
    a("v_lshrrev_b32 v11, 3, v5")
    a("v_lshlrev_b32 v24, 11, v11")
    a("v_bfe_u32 v11, v5, 2, 1")
    a("v_lshl_add_u32 v24, v11, 15, v24")
    a("v_lshl_add_u32 v24, v2, 9, v24")
    a("v_lshl_add_u32 v24, v6, 4, v24")
    a("v_and_b32 v11, 1, v0")
    a("v_lshl_add_u32 v25, v11, 10, v24")
    a("s_lshl_b32 s29, s4, 16")
    a("s_lshl_b32 s53, s3, 13")
    a("s_lshl_b32 s54, s5, 6")
    a("s_add_u32 s53, s53, s54")
    a("s_add_u32 s53, s53, s29")
    a(f"s_add_u32 s53, s53, {OF}")
    add64(20, 8, "s53")
    a("s_lshl_b32 s53, s15, 15")
    a("s_lshl_b32 s54, s14, 14")
    a("s_add_u32 s53, s53, s54")
    a("s_add_u32 s53, s53, s29")
    a(f"s_add_u32 s53, s53, {OF + 4096}")
    add64(22, 8, "s53")
    a(f"s_add_u32 s53, s29, {HF}")
    add64(54, 8, "s53")
    a("s_lshl_b32 s53, s28, 1")
    a("s_add_u32 s53, s53, s14")
    a(f"s_mul_i32 s30, s15, {H_T1}")
    a("s_lshl_b32 s31, s53, 11")
    a("s_add_u32 s30, s30, s31")
    a("s_lshl_b32 s31, s15, 12")
    a("s_lshl_b32 s53, s53, 8")
    a("s_add_u32 s31, s31, s53")
    a(f"s_add_u32 s31, s31, {H_ST}")
    a("v_add_u32 v26, s30, v1")
    a("v_lshl_add_u32 v27, v5, 3, s31")
    a("v_and_b32 v11, 15, v0")
    a("v_lshl_add_u32 v12, v11, 7, s30")
    a("v_and_b32 v11, 1, v0")
    a("v_lshl_add_u32 v11, v11, 7, s31")
    a("v_cmp_gt_u32 vcc, 16, v0")
    a("s_lshl_b32 s53, s7, 2")
    a("s_add_u32 s53, s53, s3")
    a("v_cndmask_b32 v12, v11, v12, vcc")
    a("s_min_u32 s63, s53, 55")
    a("s_lshl_b32 s63, s63, 13")
    a(f"s_add_u32 s63, s63, {WOF}")
    a("v_lshl_add_u32 v21, v0, 7, s63")
    a("s_mul_i32 s53, s53, 13056")
    a(f"s_add_u32 s53, s53, {W1F + 4096}")
    add64(56, 8, "s53")
    a("v_lshrrev_b32 v10, 2, v0")
    a("v_lshlrev_b32 v10, 7, v10")
    a(f"v_lshl_add_u32 v10, v6, {OPT.get('w1s', 2)}, v10")
    a("v_add_u32 v11, 8192, v10")
    a("v_lshrrev_b32 v20, 1, v0")
    a("v_lshlrev_b32 v20, 12, v20")
    a("v_and_b32 v22, 16, v1")
    a("v_add_u32 v20, v22, v20")
    a(f"v_add_u32 v20, {SYNC + F_W}, v20")
    a("s_lshl_b32 s53, s5, 2")
    a("s_add_u32 s53, s53, s3")
    a("v_mov_b32 v16, s53")
    a("s_lshl_b32 s53, s3, 2")
    a(f"s_add_u32 s53, s53, {K1_RP + 1024}")
    a("v_lshl_add_u32 v28, v2, 4, s53")
    a(f"v_mov_b32 v19, {K1_RP + 1024}")
    a("s_mov_b32 s68, 0")
    a.label("P1_poll")
    a(pollB)
    if PFM: a(pref0)
    a("s_add_u32 s68, s68, 1")
    a(f"s_waitcnt vmcnt({1 + PFM})")
    nstamp(a, "p1p1")
    a(f"v_cmp_ne_u32 vcc, 1, v{PA+2}")
    a(f"v_max_f32 v4, v{PA}, v{PA+1}")
    a("s_cbranch_vccz P1_poll_done")
    a(pollA)
    a(f"s_waitcnt vmcnt({1 + PFM})")
    a(f"v_cmp_ne_u32 vcc, 1, v{PB+2}")
    a(f"v_max_f32 v4, v{PB}, v{PB+1}")
    a("s_cbranch_vccz P1_poll_done")
    a(f"s_cmp_lt_u32 s68, {SPIN_LIMIT}")
    a("s_cbranch_scc1 P1_poll")
    a.label("P1_poll_done")
    nstamp(a, "p1pl")
    if STAMPS and "cntp" in STAMP_SET: a(f"s_mov_b32 s{72 + 2*(1 + STAMP_SET.index('cntp'))}, s68")
    for t in range(4):
        V(f"buffer_load_dwordx4 {vr(Q+8*t,4)}, v1, s[16:19], s{58+t} offen sc1", f"q{t}")
        V(f"buffer_load_dwordx4 {vr(Q+8*t+4,4)}, v1, s[16:19], s{58+t} offen offset:1024 sc1", f"q{t}")
    for i in range(NPRO):
        for part in range(4): V(kvld(i, part), f"{'KV'[part>>1]}{i}")
    if not WSL:
        for it in wflag: emit_item(it)
    for m_ in ("quad_perm:[1,0,3,2]", "quad_perm:[2,3,0,1]", "row_half_mirror"):
        a("s_nop 1")
        a(f"v_max_f32_dpp v4, v4, v4 {m_} row_mask:0xf bank_mask:0xf")
    a("ds_write_b32 v28, v4")
    if WSL: wblock()
    a("s_waitcnt lgkmcnt(0)")
    a("s_barrier")
    a(f"ds_read_b128 {vr(PL,4)}, v19")
    if WSL:
        a("s_cmp_lt_u32 s62, 4")
        a("s_cbranch_scc1 P1_aug")
        a.label("P1_aug_done")
    late = [("v", f"global_load_dword v29, v30, s[66:67] offset:{F_W} sc1", "xcc"),
            ("v", "global_load_dword v4, v25, s[20:21] sc1", "late"),
            ("v", "global_load_dword v4, v12, s[54:55] sc1", "late")]
    warm = [("v", f"global_load_dword v31, v21, s[8:9]{WS}", "warm")]
    warm += [("v", f"global_load_dword v4, v{10 + (k >> 2)}, s[56:57] offset:{2048*(k & 3) - 4096}{WS}", "warm")
             for k in range(7)][:OPT.get('nwarm', 7)]
    wpoll = "global_load_dwordx4 v[16:19], v20, s[8:9] sc1"
    wtest = ["v_and_b32 v16, v16, v17", "v_and_b32 v18, v18, v19", "v_and_b32 v16, v16, v18", "v_and_b32 v16, 0x10101010, v16", "v_cmp_ne_u32 vcc, 0x10101010, v16"]
    nstamp(a, "pro")
    a("s_waitcnt lgkmcnt(0)")
    a(f"v_max3_f32 v4, v{PL}, v{PL+1}, v{PL+2}")
    a(f"v_max_f32 v4, v4, v{PL+3}")
    a(f"v_mul_f32 v4, {hexf(1.02)}, v4")
    B0 = S + 16
    for t in range(4): a(f"v_mov_b32 v{B0+t}, 0")
    for t in range(4):
        WV(f"q{t}")
        for i in (6, 7): a(f"v_cndmask_b32 v{Q+8*t+i}, v{Q+8*t+i}, 0, s[64:65]")
        for i in range(8): a(f"v_dot2c_f32_bf16 v{B0+t}, v{Q+8*t+i}, v{Q+8*t+i}")
    a("s_nop 2")
    for t in range(4): a(f"v_mov_b32 v{B0+4+t}, v{B0+t}")
    a("s_nop 0")
    for t in range(4): a(f"v_permlane32_swap_b32 v{B0+4+t}, v{B0+t}")
    a("s_nop 0")
    for t in range(4): a(f"v_add_f32 v{B0+t}, v{B0+t}, v{B0+4+t}")
    for t in range(4): a(f"v_mul_f32 v{B0+t}, v{B0+t}, v4")
    for t in range(4): a(f"v_sqrt_f32 v{B0+t}, v{B0+t}")
    a("s_nop 0")
    a(f"v_max3_f32 v8, v{B0}, v{B0+1}, v{B0+2}")
    a(f"v_max_f32 v8, v8, v{B0+3}")
    lim = -1.0 if force_slow else SHIFT_LIMIT
    a(f"v_cmp_nge_f32 vcc, {hexf(lim)}, v8")
    a("v_add_u32 v8, 24576, v1")
    a("s_cbranch_vccnz KB_slow")
    vm_at_slow = list(vm.q)
    for t in range(4): a(f"v_cvt_pk_bf16_f32 v{B0+t}, -v{B0+t}, 0")
    for t in range(4): a(f"v_cndmask_b32 v{Q+8*t+6}, v{Q+8*t+6}, v{B0+t}, s[64:65]")
    WV("K0")
    a(mfma32(vr(S,16), vr(KVR,4), vr(Q,4), "0"))
    a(mfma32(vr(S,16), vr(KVR+4,4), vr(Q+4,4), vr(S,16)))
    a("s_nop 7")
    a("s_nop 3")
    nstamp(a, "loop")
    slots = {}
    def put(u, k, it):
        while (u, k) in slots: u, k = (u, k + 1) if k < 3 else (u + 1, 0)
        slots[(u, k)] = it if isinstance(it, list) else [it]
        return u, k
    for i in range(16):
        if i <= 14: slots[(4*i+2, 3)] = [("wv", f"K{i+1}")]
        slots[(4*i+1, 1)] = [("wv", f"V{i}")]
    for i in range(NKP, 16):
        prev = max(j for j in range(i) if kvs[j] == kvs[i])
        uk, uv = max(4*prev + 2, 4*(i - 6)), max(4*prev + 4, 4*(i - 6) + 2)
        put(uk, 0, ("v", kvld(i, 0), f"K{i}")); put(uk, 1, ("v", kvld(i, 1), f"K{i}"))
        put(uv, 2, ("v", kvld(i, 2), f"V{i}")); put(uv, 3, ("v", kvld(i, 3), f"V{i}"))
    pos = (0, 0)
    for i in range(NPRO, NKP):
        for part in range(4):
            pos = put(pos[0], pos[1], ("v", kvld(i, part), f"{'KV'[part>>1]}{i}"))
            if pos[1] == 2: pos = (pos[0] + 1, 0)
    for q, it in enumerate(xr): put(OPT.get('x0', 58), 0, it)
    WP0, WP1 = OPT.get('wp0', 19 if WSL else 9), OPT.get('wp1', 22 if WSL else 12)
    if WSL: put(7, 0, wflag)
    put(WP0, 0, ("v", wpoll, "wp"))
    pos = put(WP1, 0, [("wv", "wp")] + [("s", x) for x in wtest] + [("s", "s_cbranch_vccnz KB_wspin"), ("l", "KB_wspin_done")])
    assert pos[0] == WP1
    for q, it in enumerate(warm): put(OPT.get('e0', WP1 + 1) + q*OPT.get('de', 3), 2, it)
    NW1A = OPT.get('nw1a', 32)
    pref = [wo_item(f) for f in range(32)] + [w1_item(i) for i in range(NW1A)]
    free = [(u, k) for u in range(OPT.get('wo0', WP1 + 2), 57) for k in range(4) if (u, k) not in slots]
    for q, it in enumerate(pref): slots[free[q*len(free)//len(pref)]] = it
    lf = [(u, k) for u in range(57, 62) for k in range(4) if (u, k) not in slots]
    for q, it in enumerate(late): slots[lf[2*q]] = [it]
    slots[lf[1]] = [("s", f"s_load_dword s{88+i}, s[66:67], {o} glc") for i, o in enumerate((F_O, F_H, F_P1))]
    def redw(t, q): return ("d", f"ds_write_b128 v{13+t}, {ar(16*t+4*q,4)} offset:{1024*q}", "red")
    for q, sl in enumerate([(62,1), (62,2), (62,3), (63,2)]): slots.setdefault(sl, []).append(redw(0, q))
    tail63 = [redw(1, q) for q in range(4)]
    slots.setdefault((63,3), []).append(tail63[0])
    for u in range(64):
        sb, pb = S + 16*(u & 1), P + 8*(u & 1)
        sn, pp = S + 16*((u+1) & 1), P + 8*((u-1) & 1)
        un, up = u + 1, u - 1
        kslot = kvs[min(un >> 2, 15)]; qn = Q + 8*(un & 3)
        vslot = kvs[max(up >> 2, 0)] + 8; oa = ar(16*(up & 3), 16)
        M = [mfma32(vr(sn,16), vr(kslot,4), vr(qn,4), "0"),
             mfma32(vr(sn,16), vr(kslot+4,4), vr(qn+4,4), vr(sn,16)),
             mfma32(oa, vr(vslot,4), vr(pp,4), "0" if up < 4 else oa),
             mfma32(oa, vr(vslot+4,4), vr(pp+4,4), oa)]
        e = lambda k: f"v_exp_f32 v{sb+k}, v{sb+k}"
        c = lambda k: f"v_cvt_pk_bf16_f32 v{pb+k}, v{sb+2*k}, v{sb+2*k+1}"
        groups = [[e(0), e(1), e(2), e(3), c(0)], [e(4), c(1), e(5), e(6), e(7), c(2)],
                  [e(8), c(3), e(9), e(10), e(11), c(4)], [e(12), c(5), e(13), e(14), e(15), c(6), c(7)]]
        nstamp(a, f"u{u}")
        for k in range(4):
            on = not ((u == 63 and k < 2) or (u == 0 and k >= 2))
            if OPT.get("m16a"):
                h = split16(M[k], (k & 1, k < 2 or up < 4))
                if on: a(h[0])
                for it in slots.get((u, k), []): emit_item(it)
                for x in groups[k][:2]: a(x)
                if on: a(h[1])
                for x in groups[k][2:]: a(x)
                continue
            if on: a(M[k])
            for it in slots.get((u, k), []): emit_item(it)
            for x in groups[k]: a(x)
    emit_item(tail63[1])
    a(mfma32(ar(48,16), vr(kvs[15]+8,4), vr(P+8,4), ar(48,16)))
    emit_item(tail63[2])
    a(mfma32(ar(48,16), vr(kvs[15]+12,4), vr(P+12,4), ar(48,16)))
    emit_item(tail63[3])
    for q in range(4): emit_item(redw(2, q))
    a.label("KB_red")
    nstamp(a, "red")
    AUG, BAUG, RS = 32, 40, 16
    def w2base(u): return 32 + 2*u
    NST = OPT.get('nst', 16)
    def w2reg(q):
        if q < 8: return ar(224+4*q, 4)
        if q < 8 + NST: return w1reg(28 - NST + q - 8)
        j = q - 8 - NST
        return w1reg(28 + j) if j < 28 else w1reg(j - 28)
    def w2_item(q):
        u, ks = divmod(q, 16)
        b = w2base(u)
        return [("v", f"global_load_dwordx4 {w2reg(q)}, v{VOFF[ks//8]}, s[{b}:{b+1}] offset:{1024*(ks%8) - 4096}{WS}", f"w2_{q}")]
    def st_item(i):
        it = [("s", f"s_add_u32 m0, s60, {4096*(i//4)}")]
        d = {4: 4096, 8: 112*1024 - 12288, 12: 4096}.get(i)
        if d: it += [("s", f"s_add_u32 s70, s70, {d}"), ("s", "s_addc_u32 s71, s71, 0")]
        else: it += [("s", "s_nop 0")]
        return it + [("v", f"global_load_lds_dwordx4 v1, s[70:71] offset:{1024*(i%4)}{WS}", f"st{i}")]
    aug_items = [[("v", f"global_load_dwordx4 {vr(AUG+4*k,4)}, v8, s[{96+2*k}:{97+2*k}] sc1", f"aug{k}")] for k in range(2)]
    early = [w1_item(i) for i in range(NW1A, 56)] + [st_item(i) for i in range(NST)]
    after = aug_items + [w2_item(q) for q in range(8)]
    def bulk(n, allow_after=False):
        out = []
        for _ in range(n):
            src = after if allow_after and after and not any(x[-1][2].startswith("w1_") for x in early) else early
            if not src: src = after if allow_after else []
            if src: out += src.pop(0)
        return out
    def nve(items): return sum(1 for x in items if x[0] == "v")
    fences = []
    def signal(off, lab, items):
        m0now[0] = None
        for it in items: emit_item(it)
        k = nve(items)
        a(f"s_waitcnt vmcnt({k})"); vm.q = vm.q[len(vm.q)-k:] if k else []
        a("s_cmp_eq_u32 s68, 0")
        a(f"s_cbranch_scc1 {lab}_fence")
        a("s_mov_b64 exec, 1")
        V(f"global_store_byte v10, v11, s[66:67] offset:{off}", "sig")
        a("s_mov_b64 exec, -1")
        a.label(f"{lab}_done")
        fences.append(("sig", off, lab, []))
    def poll(off, lab, items):
        a("s_mov_b32 s52, 0")
        a("s_cmp_eq_u32 s68, 0")
        a(f"s_cbranch_scc1 {lab}_fence")
        m0now[0] = None
        if items:
            V(f"global_load_dword v31, v30, s[66:67] offset:{off} sc1", "poll")
            for it in items: emit_item(it)
            if off == F_O and OPT.get("it", 1):
                for w in range(3):
                    a(f"s_cmp_eq_u32 s3, {w}")
                    a(f"s_cbranch_scc1 KB_CHAIN{w}")
                a("s_branch KB_CHAIN3")
                a.label("KB_tret")
            WV("poll")
            a("v_cmp_ne_u32 vcc, 0x01010101, v31")
            a(f"s_cbranch_vccz {lab}_done")
        else: vm.clear()
        a.label(f"{lab}_loop")
        a(f"global_load_dword v31, v30, s[66:67] offset:{off} sc1")
        a("s_add_u32 s52, s52, 1")
        a("s_waitcnt vmcnt(0)")
        a("v_cmp_ne_u32 vcc, 0x01010101, v31")
        a(f"s_cbranch_vccz {lab}_done")
        a(f"s_cmp_lt_u32 s52, {SPIN_LIMIT}")
        a(f"s_cbranch_scc1 {lab}_loop")
        a.label(f"{lab}_done")
        fences.append(("poll", off, lab, items))
        m0now[0] = None
        if STAMPS and f"cnt{off}" in STAMP_SET: a(f"s_mov_b32 s{72 + 2*(1 + STAMP_SET.index(f'cnt{off}'))}, s52")
    a("s_mul_i32 s53, s3, 12288")
    a("v_add_u32 v10, s53, v1")
    a("s_mul_i32 s53, s3, 3*112*1024")
    a("s_lshl_b32 s61, s28, 14")
    a("s_add_u32 s53, s53, s61")
    a(f"s_add_u32 s53, s53, {W2F + 4096}")
    add64(32, 8, "s53")
    add64(34, 32, 112*1024)
    add64(36, 34, 112*1024)
    a("s_add_u32 s53, s15, 12")
    a("s_mul_i32 s53, s53, 112*1024")
    a("s_add_u32 s53, s53, s61")
    a(f"s_add_u32 s53, s53, {W2F + 4096}")
    add64(38, 8, "s53")
    add64(70, 32, 4096)
    a("s_lshl_b32 s60, s3, 14")
    a(f"s_add_u32 s60, s60, {L_W2}")
    for i in range(16): a(f"v_accvgpr_read_b32 v{32+i}, a{48+i}")
    a("s_waitcnt lgkmcnt(0)"); lg.clear()
    a("s_barrier")
    for j in range(12): D(f"ds_read_b128 {vr(48+4*j,4)}, v10 offset:{L_RED+1024*j}", f"r{j//4}")
    for it in bulk(OPT.get('wa', 5)): emit_item(it)
    WV("xcc")
    a("s_mov_b32 s68, 1")
    a("v_cmp_ne_u32 vcc, s69, v29")
    if force_fence: a("s_branch KB_xcc")
    else: a("s_cbranch_vccnz KB_xcc")
    a.label("KB_xcc_done")
    a("s_lshl_b32 s53, s5, 2")
    a("s_add_u32 s53, s53, s3")
    a("v_mov_b32 v10, s53")
    a("v_mov_b32 v11, 1")
    for j in range(3):
        WL(f"r{j}")
        for i in range(16): a(f"v_add_f32 v{32+i}, v{32+i}, v{48+16*j+i}")
    a("v_mov_b32 v12, v44")
    a("v_mov_b32 v13, v44")
    a("s_nop 1")
    a("v_permlane32_swap_b32 v12, v13")
    a("s_nop 1")
    a("v_rcp_f32 v13, v13")
    a("s_nop 0")
    for i in range(16): a(f"v_mul_f32 v{32+i}, v{32+i}, v13")
    a("s_cmp_eq_u32 s68, 0")
    for i in range(8): a(f"v_cvt_pk_bf16_f32 v{48+i}, v{32+2*i}, v{33+2*i}")
    a("s_cbranch_scc1 KB_ost_fence")
    for hf in range(2): V(f"global_store_dwordx4 v24, {vr(48+4*hf,4)}, s[20:21] offset:{1024*hf}{SM('osm')}", "ost")
    a.label("KB_ost_done")
    nstamp(a, "ost")
    KA, GA = 96, 112
    WV("xr")
    for u in range(2):
        for i in range(2): a(f"v_permlane32_swap_b32 v{XR+4*u+i}, v{XR+4*u+2+i}")
    a("s_mul_i32 s53, s3, 4096")
    a(f"s_add_u32 s53, s53, {L_XC}")
    a("v_add_u32 v14, s53, v1")
    a("v_xor_b32 v15, 4096, v14")
    for i in range(8):
        a(f"v_lshlrev_b32 v{KA+2*i}, 16, v{XR+i}")
        a(f"v_and_b32 v{KA+2*i+1}, 0xffff0000, v{XR+i}")
    signal(F_O, "KB_sg0", bulk(OPT.get('wb', 6)))
    nstamp(a, "sig0")
    a("s_cmp_eq_u32 s5, 7")
    a("s_cbranch_scc1 KB_m7")
    q_m7 = list(vm.q)
    poll(F_O, "KB_pl0", bulk(OPT.get('wc', 5)))
    nstamp(a, "poll0")
    OB = 32
    for i in range(16): V(f"global_load_dwordx4 {vr(OB+4*i,4)}, v{VOFF[i//8]}, s[22:23] offset:{1024*(i%8) - 4096} sc1", f"ob{i}")
    wd = bulk(OPT.get('wd', 7))
    wdv = []
    while wd:
        k = next(j for j, x in enumerate(wd) if x[0] == "v") + 1
        wdv.append(wd[:k]); wd = wd[k:]
    a("v_min_u32 v30, 24, v30")
    a(f"s_mov_b32 s53, {ONES_BF}")
    a("v_mov_b32 v12, 0")
    a("v_mov_b32 v13, 0")
    NDEF = OPT.get('ndef', 7)
    WV("wo31")
    for k in range(16):
        WV(f"ob{k}")
        a(mfma32(vr(GA,16), woreg(k), vr(OB+4*k,4), "0" if k == 0 else vr(GA,16)))
        if wdv:
            for it in wdv.pop(0): emit_item(it)
        if k < 16 - NDEF: a(mfma32(vr(KA,16), woreg(16+k), vr(OB+4*k,4), vr(KA,16)))
    for it in wdv:
        for x in it: emit_item(x)
    nstamp(a, "wog")
    for j, k in enumerate(range(16 - NDEF, 16)):
        a(mfma32(vr(KA,16), woreg(16+k), vr(OB+4*k,4), vr(KA,16)))
        if j in (1, 2):
            for q in range(2): D(f"ds_write_b128 v14, {vr(GA+8*(j-1)+4*q,4)} offset:{2048*(j-1) + 1024*q}", "xw")
        if j == min(4, NDEF - 1):
            a("s_waitcnt lgkmcnt(0)"); lg.clear()
            a("s_barrier")
            for q in range(4): D(f"ds_read_b128 {vr(32+4*q,4)}, v15 offset:{1024*q}", f"xr{q}")
    a("s_nop 7")
    a("s_nop 2")
    H = 48
    for hf in range(2):
        for q in (2*hf, 2*hf+1):
            WL(f"xr{q}")
            for i in range(4): a(f"v_add_f32 v{KA+4*q+i}, v{KA+4*q+i}, v{32+4*q+i}")
        for i in range(4): a(f"v_cvt_pk_bf16_f32 v{H+4*hf+i}, v{KA+8*hf+2*i}, v{KA+8*hf+2*i+1}")
        V(f"global_store_dwordx4 v26, {vr(H+4*hf,4)}, s[54:55] offset:{1024*hf}{SM('hnm')}", "hst")
    nstamp(a, "hst")
    for i in range(8):
        a(f"v_dot2c_f32_bf16 v12, s53, v{H+i}")
        a(f"v_dot2c_f32_bf16 v13, v{H+i}, v{H+i}")
    a("s_nop 2")
    a("v_mov_b32 v14, v12")
    a("v_mov_b32 v15, v13")
    a("s_nop 0")
    a("v_permlane32_swap_b32 v14, v12")
    a("v_permlane32_swap_b32 v15, v13")
    a("s_mov_b32 exec_hi, 0")
    a("v_add_f32 v12, v12, v14")
    a("v_add_f32 v13, v13, v15")
    V(f"global_store_dwordx2 v27, v[12:13], s[54:55]{SM('hnm')}", "hst")
    a("s_mov_b32 exec_hi, -1")
    signal(F_H, "KB_sg1", bulk(OPT.get('we', 6), True))
    nstamp(a, "sig1")
    T0, A2, A1, HOLD = 24, 48, 80, 144
    accs = {("A",0): A1, ("B",0): A1+16, ("B",1): A1+32, ("A",1): A1+48}
    a("s_lshl_b32 s61, s3, 12")
    a("s_add_u32 s29, s61, 12288")
    a(f"s_add_u32 s30, s61, {H_T1 - 4096}")
    a(f"s_add_u32 s31, s61, {H_T1 + 12288}")
    a("s_cmp_eq_u32 s3, 3")
    a(f"s_cselect_b32 s59, {H_ST}, s61")
    a(f"s_cselect_b32 s29, {H_ST + 4096}, s29")
    a("s_cmp_eq_u32 s3, 0")
    a("s_cselect_b32 s30, 24576, s30")
    add64(48, 54, "s59")
    add64(50, 54, "s29")
    add64(56, 54, "s30")
    add64(62, 54, "s31")
    a("s_mul_i32 s53, s4, 458752")
    a("s_mul_i32 s58, s5, 3584")
    a("s_add_u32 s53, s53, s58")
    a(f"s_add_u32 s53, s53, {PART}")
    add64(40, 8, "s53")
    a("s_mul_i32 s58, s14, 28672")
    a("s_lshl_b32 s53, s15, 8")
    a("s_add_u32 s58, s58, s53")
    a("s_add_u32 s58, s58, 3072")
    add64(44, 40, "s58")
    a("s_mul_i32 s58, s3, 768")
    add64(40, 40, "s58")
    add64(42, 40, 28672)
    a("v_lshrrev_b32 v12, 2, v5")
    a("v_mul_u32_u24 v12, 57344, v12")
    a("v_lshl_add_u32 v12, v2, 6, v12")
    a("v_lshl_add_u32 v12, v6, 4, v12")
    a("s_lshl_b32 s53, s3, 11")
    a(f"s_add_u32 s53, s53, {L_ACT}")
    a("v_add_u32 v13, s53, v1")
    a(f"v_add_u32 v14, {L_ACT}, v1")
    a("s_lshl_b32 s53, s14, 14")
    a("v_add_u32 v15, s53, v14")
    a("v_add_u32 v18, s60, v1")
    a("v_mul_u32_u24 v19, 1792, v2")
    a("v_lshl_add_u32 v19, v5, 3, v19")
    a(f"v_lshlrev_b32 v20, 2, v5")
    a(f"v_add_u32 v20, {H_ST + 3584}, v20")
    a("s_lshl_b32 s53, s5, 2")
    a("s_or_b32 s53, s53, s3")
    a("s_cmp_eq_u32 s53, 0")
    a("s_cselect_b32 s46, -1, 0")
    a("s_mov_b32 s47, 0")
    a(f"s_mov_b32 s58, {hexf(math.sqrt(0.5))}")
    nstamp(a, "pl1")
    poll(F_H, "KB_pl1", bulk(OPT.get('wf', 5), True))
    nstamp(a, "poll1")
    def dma_items(q):
        g = q // 4
        m = f"s_mov_b32 m0, s{(59, 29, 30, 31)[g]}"
        b = (48, 50, 56, 62)[g]
        return [("s", m), ("s", "s_nop 0"), ("v", f"global_load_lds_dwordx4 v1, s[{b}:{b+1}] offset:{1024*(q%4)} sc1", f"hn{q}")]
    NDM = OPT.get('ndm', 8)
    for q in range(NDM):
        for it in dma_items(q): emit_item(it)
    G0 = 116
    NM = G0 + 112
    pre = {i: [] for i in range(NM + 1)}
    post = {i: [] for i in range(NM)}
    mf = []
    hold = lambda ks: vr(HOLD+4*ks, 4)
    for X, tt in (("A",0), ("B",0), ("B",1), ("A",1)):
        d = vr(accs[(X,tt)], 16)
        for ks in range(28): mf.append(mfma32(d, w1reg(ks + (28 if X == "B" else 0)), hold(ks), "0" if ks == 0 else d))
        mf.append(mfma32(d, vr(AUG + (4 if X == "B" else 0), 4), vr(BAUG + 4*tt, 4), d))
    act0 = lambda ks: vr(HOLD+4*ks, 4)
    act1 = lambda ks: vr(HOLD+64+4*ks, 4) if ks < 12 else vr(A1+4*(ks-12), 4)
    ring = lambda ks: vr(A1+16+4*(ks & 7), 4)
    acc2 = lambda ui: (A2, A2 + 16, AUG)[ui % 3]
    units = [(0, act0, 40, 0), (1, act0, 40, 1), (2, act0, 40, 2), (3, ring, 44, 0), (0, act1, 42, 0), (1, act1, 42, 1), (2, act1, 42, 2)]
    for ui, (u, breg, sb_, no) in enumerate(units):
        d = vr(acc2(ui), 16)
        for ks in range(16): mf.append(mfma32(d, w2reg(16*u+ks), breg(ks), "0" if ks == 0 else d))
    AHEAD = 4
    rd0 = lambda ks: ("d", f"ds_read_b128 {hold(ks)}, v1 offset:{L_HN + 1024*ks}", f"h0_{ks}")
    rd1 = lambda ks: ("d", f"ds_read_b128 {hold(ks)}, v1 offset:{L_HN + H_T1 + 1024*ks}", f"h1_{ks}")
    ST = A2
    rds = lambda tt, i: ("d", f"ds_read_b64 {vr(ST+16*tt+2*i,2)}, v19 offset:{L_HN + H_ST + 4096*tt + 256*i}", f"s{tt}")
    pre[0] += [("wv", "hn3"), ("s", "s_barrier")] + [rd0(ks) for ks in range(AHEAD)] + [rds(0, i) for i in range(7)]
    for ks in range(28):
        if ks + AHEAD == 12: post[ks] += [("wv", "hn7"), ("s", "s_barrier")]
        if ks + AHEAD == 24: post[ks] += [("wv", "hn11"), ("s", "s_barrier")]
        if ks + AHEAD < 28: post[ks].append(rd0(ks + AHEAD))
        if ks < 2 or ks % 2 == 0: pre[ks].append(("wl", f"h0_{ks if ks < 2 else ks + 1}"))
        pre[ks].append(("wv", f"w1_{ks}"))
    for q in range(NDM, 16): post[1 + (q-NDM)] += dma_items(q)
    k = 2 + (16 - NDM)
    while early or after:
        post[k] += bulk(1, True); k += 2
    assert k < 58, k
    pre[28].append(("wv", "aug0"))
    pre[57].append(("wv", "aug1"))
    post[40] += [("wv", "hn15"), ("s", "s_barrier")]
    for ks in range(28):
        pre[29+ks].append(("wv", f"w1_{28+ks}"))
        post[29+ks].append(rd1(ks))
    for i in range(7): post[9 + i].append(rds(1, i))
    for ks in range(0, 28, 4): pre[58+ks].append(("wl", f"h1_{min(ks+3, 27)}"))
    nd = 56 - NST
    for j in range(nd):
        if j >= OPT.get('skipw2', 0): post[OPT.get('w20', 58) + j*OPT.get('w2n', 5)//2] += w2_item(8 + NST + j)
    for i in range(NST):
        k = 87 + 28 - NST + i + 2
        post[k] += [("wv", f"st{min(i | 3, NST - 1)}"), ("d", f"ds_read_b128 {w2reg(8+i)}, v18 offset:{1024*i}", f"sr{i}")]
        if i % 4 == 0: pre[G0+8+i].append(("wl", f"sr{min(i + 3, NST - 1)}"))
    for q in range(0, 64, 2): pre[G0+q].append(("wv", f"w2_{q+1}"))
    def stat_items(tt, start):
        b = ST + 16*tt; o = BAUG + 4*tt
        L = [("wl", f"s{tt}", start)]
        X = []
        for d_, s_ in ((0, 1), (2, 3), (4, 5), (0, 2), (4, 6), (0, 4)):
            X += [f"v_add_f32 v{b+2*d_+e}, v{b+2*d_+e}, v{b+2*s_+e}" for e in range(2)]
        X += [f"v_mov_b32 v{b+2}, v{b}", f"v_mov_b32 v{b+3}, v{b+1}", "s_nop 0",
              f"v_permlane32_swap_b32 v{b+2}, v{b}", f"v_permlane32_swap_b32 v{b+3}, v{b+1}", "s_nop 0",
              f"v_add_f32 v{b}, v{b}, v{b+2}", f"v_add_f32 v{b+1}, v{b+1}, v{b+3}",
              f"v_mul_f32 v{b}, {hexf(-1.0/448)}, v{b}", f"v_mul_f32 v{b+1}, {hexf(1.0/448)}, v{b+1}",
              f"v_fma_f32 v{b+1}, -v{b}, v{b}, v{b+1}", f"v_cvt_pk_bf16_f32 v{o+1}, v{b}, v{b}",
              f"v_max_f32 v{b+1}, 0, v{b+1}", f"v_lshlrev_b32 v{b+2}, 16, v{o+1}",
              f"v_add_f32 v{b+1}, {hexf(1e-5)}, v{b+1}", f"v_sub_f32 v{b+3}, v{b}, v{b+2}",
              f"v_rsq_f32 v{RS+tt}, v{b+1}", f"v_cvt_pk_bf16_f32 v{o}, v{b+2}, v{b+3}",
              f"v_cvt_pk_bf16_f32 v{o+2}, v{b+3}, v{b+2}", f"v_mul_f32 v{b+1}, v{b+1}, v{RS+tt}",
              f"v_mul_f32 v{RS+tt}, {hexf(LOG2E)}, v{RS+tt}", f"v_cvt_pk_bf16_f32 v{b+2}, v{b+1}, v{b+1}",
              f"v_lshlrev_b32 v{b+2}, 16, v{b+2}", f"v_sub_f32 v{b+3}, v{b+1}, v{b+2}",
              f"v_cvt_pk_bf16_f32 v{o+3}, v{b+2}, v{b+3}", f"v_cndmask_b32 v{o+3}, v{o+3}, 0, s[64:65]", "s_nop 1"]
        pub = [("s", "s_mov_b64 exec, s[46:47]", start), ("v", f"global_store_dword v20, v{RS+tt}, s[54:55] offset:{128*tt}", start), ("s", "s_mov_b64 exec, -1", start)]
        return L + [("s", x, start) for x in X] + [("mark", f"st{tt}", 0)] + [("grp", pub, start)]
    def mish_items(X, tt, start):
        x0 = accs[(X,tt)]; pk = x0
        L = []
        for g in range(4):
            t = T0 + 4*(g & 1); x = x0 + 4*g
            L += [f"v_fma_f32 v{t+i}, v{x+i}, v{RS+tt}, -0.5" for i in range(4)]
            L += [f"v_exp_f32 v{t+i}, v{t+i}" for i in range(4)]
            L += [f"v_add_f32 v{t+i}, s58, v{t+i}" for i in range(4)]
            L += [f"v_fma_f32 v{t+i}, -v{t+i}, v{t+i}, -0.5" for i in range(4)]
            L += [f"v_rcp_f32 v{t+i}, v{t+i}" for i in range(4)]
            L += [f"v_fmac_f32 v{x+i}, v{x+i}, v{t+i}" for i in range(4)]
            L += [f"v_cvt_pk_bf16_f32 v{pk+2*g+i}, v{x+2*i}, v{x+2*i+1}" for i in range(2)]
        it = [("s", x, start) for x in L]
        off = tt*16384 + (8192 if X == "B" else 0)
        it += [("d", f"ds_write_b128 v13, {vr(pk+4*hf,4)} offset:{off + 1024*hf}", start) for hf in range(2)]
        return it
    fill = stat_items(0, 3) + stat_items(1, 18) + mish_items("A", 0, 31) + mish_items("B", 0, 60)
    fill += [("bar", "b1", 0)]
    fill += mish_items("B", 1, 89) + mish_items("A", 1, 118)
    fill += [("bar", "b2", 0)]
    rda = lambda reg, addr, tt, ks, tag: ("d", f"ds_read_b128 {reg}, {addr} offset:{16384*tt + 1024*ks}", tag)
    need_pre = {28: "st0", 86: "st1"}
    need_post = {G0 - 11: "b1", G0 + 43: "b2"}
    for ks in range(16):
        post[G0 - 11 + ks].append(rda(act0(ks), "v14", 0, ks, f"a0_{ks}"))
        post[G0 + 43 + ks].append(rda(ring(ks), "v15", 0, ks, f"am_{ks}"))
        post[G0 + 49 + ks].append(rda(act1(ks), "v14", 1, ks, f"a1_{ks}"))
        if ks % 2 == 0:
            pre[G0+ks].append(("wl", f"a0_{ks+1}"))
            pre[G0+48+ks].append(("wl", f"am_{ks+1}"))
            pre[G0+64+ks].append(("wl", f"a1_{ks+1}"))
    outq = []
    for ui, (u, breg, sb_, no) in enumerate(units):
        d = acc2(ui); pk = d
        L = []
        for hf in range(2):
            p4 = pk + 4*hf
            L += [("s", f"v_cvt_pk_bf16_f32 v{p4+i}, v{d+8*hf+2*i}, v{d+8*hf+2*i+1}") for i in range(4)]
            L += [("v", f"global_store_dwordx4 v12, {vr(p4,4)}, s[{sb_}:{sb_+1}] offset:{256*no + 128*hf}{SM('pm')}", "pst")]
        outq.append((max(G0 + 16*ui + 18, G0 + (OPT.get('o0', 36), 46)[ui] if ui < 2 else 0), L, G0 + 16*ui + 46))
    done = set()
    fq = list(fill); cur = [0]
    def emit_fill(it):
        if it[0] == "bar":
            a("s_waitcnt lgkmcnt(0)"); lg.clear()
            a("s_barrier"); done.add(it[1]); print("note: barrier", it[1], "after MFMA", cur[0])
            return 8
        if it[0] == "mark":
            done.add(it[1]); print("note:", it[1], "complete after MFMA", cur[0])
            return 0
        if it[0] == "wl":
            WL(it[1]); return 0
        if it[0] == "grp":
            for x in it[1]:
                if x[0] == "v": V(x[1], "pub")
                else: a(x[1])
            return 16
        if it[0] == "d": D(it[1])
        else: a(it[1])
        return cost(it[1])
    credit = 0.0
    lastw = [-9]
    def flush(tag, i):
        c = 0
        while tag not in done: c += emit_fill(fq.pop(0))
        if c: print(f"note: {c:.0f} cycles of vector work flushed at MFMA {i}")
        return c
    for i in range(NM):
        cur[0] = i
        assert not outq or i < outq[0][2], i
        if i in need_pre: credit -= flush(need_pre[i], i)
        n0 = len(a.L)
        for it in pre[i]: emit_item(it)
        if OPT.get("m16f"):
            kk = i % 29 if i < G0 else (i - G0) % 16
            hh = split16(mf[i], (kk & 1, kk < 2))
            a(hh[0]); n1 = len(a.L)
        else: a(mf[i])
        if i in need_post: credit -= flush(need_post[i], i); n0 = len(a.L) - 1
        for it in post[i]: emit_item(it)
        nmem = 0
        credit = max(min(credit, 0), -12) + OPT.get('cr', 32)
        for ln in a.L[n0:]:
            if ln.split()[0].startswith(("ds_", "global_")):
                credit -= 10 if nmem else 4; nmem += 1
            else: credit -= 4
        nstamp(a, f"m{i}")
        while outq and outq[0][0] <= i and credit > 0:
            L = outq[0][1]
            it = L.pop(0); emit_item(it); credit -= cost(it[1])
            if not L: outq.pop(0)
        while fq and credit > 0:
            k = 0
            if fq[0][0] == "bar" and i < lastw[0] + OPT.get('bd', 3):
                k = 1
                if len(fq) < 2: break
            if not (fq[k][0] in ("bar", "mark") or fq[k][2] <= i): break
            if fq[k][0] == "d": lastw[0] = i
            credit -= emit_fill(fq.pop(k))
        if OPT.get("m16f"):
            tail = a.L[n1:]
            k = 0; c = 0
            while k < len(tail) and c < 10 and not tail[k].strip().startswith(("s_barrier", "s_mov_b64")):
                c += cost(tail[k].strip()); k += 1
            a.L.insert(n1 + k, "    " + hh[1])
    assert not fq, len(fq)
    a("s_nop 7")
    a("s_nop 3")
    for _, L, _ in outq:
        for it in L: emit_item(it)
    nstamp(a, "g2end")
    signal(F_P1, "KB_sg2", [])
    nstamp(a, "sig2")
    a.label("KB_fin")
    R, SUM, HR, HF32 = 144, 80, 200, 96
    a("s_mul_i32 s53, s4, 458752")
    a("s_mul_i32 s52, s5, 57344")
    a("s_add_u32 s53, s53, s52")
    a("s_lshl_b32 s52, s3, 10")
    a("s_add_u32 s53, s53, s52")
    a(f"s_add_u32 s53, s53, {PART + 3584}")
    add64(32, 8, "s53")
    for k in range(1, 5): add64(32 + 2*k, 30 + 2*k, 3*3584)
    a("s_lshl_b32 s53, s3, 13")
    a("s_lshl_b32 s52, s5, 6")
    a("s_add_u32 s53, s53, s52")
    add64(42, 54, "s53")
    add64(44, 42, H_T1)
    for i in range(16): a(f"v_mov_b32 v{SUM+i}, 0")
    a("v_lshrrev_b32 v13, 3, v0")
    a("v_bfe_u32 v14, v0, 2, 1")
    a("v_lshlrev_b32 v15, 10, v13")
    a("v_lshl_add_u32 v15, v14, 9, v15")
    a("v_lshl_add_u32 v15, v6, 4, v15")
    a("v_mul_u32_u24 v12, 896, v6")
    a("v_lshl_add_u32 v12, v13, 5, v12")
    a("v_lshl_add_u32 v12, v14, 4, v12")
    a("s_mul_i32 s60, s6, 8*896")
    a("s_lshl_b32 s61, s3, 8")
    a("s_add_u32 s60, s60, s61")
    a("s_mov_b32 s62, 0x00003f80")
    a("s_mov_b32 s63, 0x3f800000")
    a("s_lshl_b32 s61, s5, 4")
    a(f"s_add_u32 s61, s61, {H_ST + 3584}")
    a("v_lshl_add_u32 v16, v6, 2, s61")
    a("s_cmp_eq_u32 s3, 3")
    a("s_cselect_b32 s59, 0, -1")
    a("v_and_b32 v30, 7, v0")
    a("v_min_u32 v30, 6, v30")
    a("v_lshlrev_b32 v30, 2, v30")
    nstamp(a, "pl2")
    poll(F_P1, "KB_pl2", [])
    nstamp(a, "poll2")
    vm.clear(); vm.issue("older")
    for tt in range(2):
        V(f"global_load_dword v{18+tt}, v16, s[54:55] offset:{128*tt} sc1", f"hr{tt}")
        V(f"global_load_dwordx4 {vr(HR+4*tt,4)}, v15, s[{42+2*tt}:{43+2*tt}] sc1", f"hr{tt}")
        for p in range(7):
            k, r = divmod(8*tt + p, 3)
            V(f"global_load_dwordx4 {vr(R+28*tt+4*p,4)}, v1, s[{32+2*k}:{33+2*k}] offset:{3584*(r-1)} sc1", f"p{tt}{p}")
    for tt in range(2):
        WV(f"hr{tt}")
        a(f"v_mul_f32 v{18+tt}, {hexf(LN2F)}, v{18+tt}")
        for i in range(4):
            a(f"v_lshlrev_b32 v{HF32+8*tt+2*i}, 16, v{HR+4*tt+i}")
            a(f"v_and_b32 v{HF32+8*tt+2*i+1}, 0xffff0000, v{HR+4*tt+i}")
        for p in range(7):
            WV(f"p{tt}{p}")
            for i in range(4):
                a(f"v_dot2c_f32_bf16 v{SUM+8*tt+2*i}, s62, v{R+28*tt+4*p+i}")
                a(f"v_dot2c_f32_bf16 v{SUM+8*tt+2*i+1}, s63, v{R+28*tt+4*p+i}")
        a("s_nop 2")
        b = 32 + 4*tt
        for i in range(8): a(f"v_fmac_f32 v{HF32+8*tt+i}, v{18+tt}, v{SUM+8*tt+i}")
        for i in range(4): a(f"v_cvt_pk_bf16_f32 v{b+i}, v{HF32+8*tt+2*i}, v{HF32+8*tt+2*i+1}")
        a(f"v_mov_b32 v40, v{b+2}")
        a(f"v_mov_b32 v41, v{b+3}")
        a("s_nop 0")
        a(f"v_mov_b32_dpp v{b+2}, v{b} row_shl:4 row_mask:0xf bank_mask:0x5")
        a(f"v_mov_b32_dpp v{b+3}, v{b+1} row_shl:4 row_mask:0xf bank_mask:0x5")
        a(f"v_mov_b32_dpp v{b}, v40 row_shr:4 row_mask:0xf bank_mask:0xa")
        a(f"v_mov_b32_dpp v{b+1}, v41 row_shr:4 row_mask:0xf bank_mask:0xa")
        a("s_mov_b32 exec_hi, s59")
        a(f"buffer_store_dwordx4 {vr(b,4)}, v12, s[24:27], s60 offen offset:{3584*tt}{SM('om')}")
        if tt == 0: a("s_mov_b32 exec_hi, -1")
    fin(a, 1, 8)
    a.label("KB_end")
    a("s_endpgm")

    a.label("KB_m7")
    a("v_lshlrev_b32 v12, 7, v0")
    a("v_mov_b32 v13, 0")
    a("s_cmp_eq_u32 s4, 0")
    a("s_cselect_b64 exec, 3, 0")
    a("global_store_dword v12, v13, s[92:93] sc0 sc1")
    a("s_mov_b64 exec, -1")
    a("s_and_b32 s53, s4, 3")
    a("s_lshl_b32 s53, s53, 2")
    a("s_add_u32 s53, s53, s3")
    a("s_mul_i32 s53, s53, 100352")
    a(f"s_add_u32 s53, s53, {W2F}")
    add64(56, 8, "s53")
    sh = OPT.get('m7s', 7)
    a(f"v_lshlrev_b32 v12, {sh}, v0")
    for k in range(13 << (7 - sh) if OPT.get('m7w', 1) else 0):
        a(f"global_load_dword v4, v12, s[56:57]{WS}")
        add64(56, 56, 64 << sh)
    if OPT.get('m7t', 0):
        a("s_mul_i32 s53, s4, 458752")
        a("s_mul_i32 s52, s3, 114688")
        a("s_add_u32 s53, s53, s52")
        a(f"s_add_u32 s53, s53, {PART}")
        add64(56, 8, "s53")
        for k in range(14):
            a("global_load_dword v4, v12, s[56:57] sc1")
            add64(56, 56, 8192)
    a("s_branch KB_fin")

    a.label("KB_xcc")
    a("s_mov_b32 s68, 0")
    a("s_branch KB_xcc_done")
    a.label("KB_ost_fence")
    for hf in range(2): a(f"global_store_dwordx4 v24, {vr(48+4*hf,4)}, s[20:21] offset:{1024*hf} sc0 sc1")
    a("s_branch KB_ost_done")
    for kind, off, lab, items in fences:
        a.label(f"{lab}_fence")
        if kind == "sig":
            a("buffer_wbl2 sc1")
            a("s_waitcnt vmcnt(0)")
            a("s_mov_b64 exec, 1")
            a(f"global_store_byte v10, v11, s[66:67] offset:{off} sc0 sc1")
            a("s_mov_b64 exec, -1")
            a(f"s_branch {lab}_done")
            continue
        for it in items: a(it[1])
        a.label(f"{lab}_floop")
        a(f"global_load_dword v31, v30, s[66:67] offset:{off} sc0 sc1")
        a("s_add_u32 s52, s52, 1")
        a("s_waitcnt vmcnt(0)")
        a("v_cmp_ne_u32 vcc, 0x01010101, v31")
        a(f"s_cbranch_vccz {lab}_fdone")
        a(f"s_cmp_lt_u32 s52, {SPIN_LIMIT}")
        a(f"s_cbranch_scc1 {lab}_floop")
        a.label(f"{lab}_fdone")
        a("buffer_inv sc1")
        a("s_waitcnt vmcnt(0) lgkmcnt(0)")
        a(f"s_branch {lab}_done")

    a.label("KB_wspin")
    a("s_mov_b32 s68, 0")
    a.label("KB_wspin_loop")
    a(wpoll)
    a("s_add_u32 s68, s68, 1")
    a("s_waitcnt vmcnt(0)")
    for x in wtest: a(x)
    a("s_cbranch_vccz KB_wspin_done")
    a(f"s_cmp_lt_u32 s68, {SPIN_LIMIT}")
    a("s_cbranch_scc1 KB_wspin_loop")
    a("s_branch KB_wspin_done")
    a.label("P1_ack")
    a("s_mov_b32 s68, 0")
    a.label("P1_ack_loop")
    a(f"global_load_dword v{ACK}, v{CLO}, s[92:93] offset:{D_CLR} sc1")
    a("s_add_u32 s68, s68, 1")
    a("s_waitcnt vmcnt(0)")
    a(f"v_cmp_ne_u32 vcc, 0x01010101, v{ACK}")
    a("s_cbranch_vccz P1_ack_done")
    a(f"s_cmp_lt_u32 s68, {SPIN_LIMIT}")
    a("s_cbranch_scc1 P1_ack_loop")
    a("s_branch P1_ack_done")
    a.label("P1_aug")
    a(f"v_add_u32 v28, {K1_RP}, v8")
    for w in range(4): a(f"ds_read_b32 v{CP+w}, v28 offset:{256*w}")
    a(f"v_mul_u32_u24 v29, {W1S}, v2")
    a("v_lshl_add_u32 v29, v5, 4, v29")
    a("s_and_b32 s63, s62, 1")
    a("s_mul_i32 s53, s63, 6")
    a("s_add_u32 s53, s53, s71")
    a(f"v_lshl_or_b32 v{BIA}, v{BIA}, 16, v{BIA}")
    a("s_cmp_eq_u32 s62, 0")
    a("s_cselect_b32 s70, -1, 0")
    a(f"v_and_b32 v{BIA}, s70, v{BIA}")
    a("s_waitcnt lgkmcnt(0)")
    a(f"v_add_f32 v{CP}, v{CP}, v{CP+1}")
    a(f"v_add_f32 v{CP+2}, v{CP+2}, v{CP+3}")
    a(f"v_and_b32 v{CP}, s90, v{CP}")
    a(f"v_and_b32 v{CP+2}, s91, v{CP+2}")
    a(f"v_add_f32 v{CP}, v{CP}, v{CP+2}")
    a(f"v_cvt_pk_bf16_f32 v{CP+1}, v{CP}, v{CP}")
    a(f"v_lshlrev_b32 v{CP+2}, 16, v{CP+1}")
    a(f"v_sub_f32 v{CP+2}, v{CP}, v{CP+2}")
    a(f"v_cvt_pk_bf16_f32 v{CP+2}, v{CP+2}, v{CP+2}")
    a(f"buffer_store_short v{CP+1}, v29, s[16:19], s53 offen sc1")
    a(f"buffer_store_short v{CP+1}, v29, s[16:19], s53 offen offset:2 sc1")
    a(f"buffer_store_short v{CP+2}, v29, s[16:19], s53 offen offset:4 sc1")
    a("s_cmp_eq_u32 s63, 0")
    a("s_cbranch_scc0 P1_aug_done")
    a(f"buffer_store_dword v{BIA}, v29, s[16:19], s71 offen offset:12 sc1")
    a("s_branch P1_aug_done")
    a.label("KB_slow")
    vm.q = list(vm_at_slow)
    if WSL:
        a("s_waitcnt vmcnt(0)")
        for it in wflag: a(it[1])
    a("s_mov_b32 s68, 0")
    a.label("KB_slow_w")
    a(wpoll)
    a("s_add_u32 s68, s68, 1")
    a("s_waitcnt vmcnt(0)"); vm.clear()
    for x in wtest: a(x)
    a("s_cbranch_vccz KB_slow_wd")
    a(f"s_cmp_lt_u32 s68, {SPIN_LIMIT}")
    a("s_cbranch_scc1 KB_slow_w")
    a.label("KB_slow_wd")
    for k, it in enumerate([x for f in pref for x in f] + xr + late):
        emit_item(it)
        if len(vm.q) >= 32: a("s_waitcnt vmcnt(0)"); vm.clear()
    MX = P + 8
    for t in range(4): a(f"v_mov_b32 v{MX+t}, 0xff800000")
    for i in range(64): a(f"v_accvgpr_write_b32 a{i}, 0")
    a("v_lshlrev_b32 v3, 2, v0")
    a("s_sub_u32 s52, s52, 4096")
    a("s_mov_b32 s61, 0")
    a.label("KB_s1")
    a("s_add_u32 s53, s52, s61")
    for i in range(2): a(f"buffer_load_dwordx4 {vr(KVR+4*i,4)}, v1, s[16:19], s53 offen offset:{1024*i} sc1")
    a("s_waitcnt vmcnt(0)")
    for t in range(4):
        a(mfma32(vr(S,16), vr(KVR,4), vr(Q+8*t,4), "0"))
        a(mfma32(vr(S,16), vr(KVR+4,4), vr(Q+8*t+4,4), vr(S,16)))
        a("s_nop 7")
        a("s_nop 3")
        for i in range(8): a(f"v_max3_f32 v{MX+t}, v{S+2*i}, v{S+2*i+1}, v{MX+t}")
    a("s_add_u32 s61, s61, 4096")
    a("s_cmp_lt_u32 s61, 0x10000")
    a("s_cbranch_scc1 KB_s1")
    for t in range(4):
        half_sum(a, MX+t, 12, "v_max_f32")
        a(f"s_add_u32 s53, s3, {t+1}")
        a("s_and_b32 s53, s53, 3")
        a("s_lshl_b32 s53, s53, 10")
        a("s_lshl_b32 s61, s3, 8")
        a("s_add_u32 s53, s53, s61")
        a("v_add_u32 v12, s53, v3")
        a(f"ds_write_b32 v12, v{MX+t}")
    a("s_waitcnt lgkmcnt(0)")
    a("s_barrier")
    for t in range(4):
        a(f"s_add_u32 s53, s3, {t+1}")
        a("s_and_b32 s53, s53, 3")
        a("s_lshl_b32 s53, s53, 10")
        a("v_add_u32 v12, s53, v3")
        for w in range(4): a(f"ds_read_b32 v{S+w}, v12 offset:{256*w}")
        a("s_waitcnt lgkmcnt(0)")
        a(f"v_max3_f32 v{MX+t}, v{S}, v{S+1}, v{S+2}")
        a(f"v_max_f32 v{MX+t}, v{MX+t}, v{S+3}")
    a("s_barrier")
    a("s_mov_b32 s61, 0")
    a.label("KB_s2")
    a("s_add_u32 s53, s52, s61")
    for i in range(4): a(f"buffer_load_dwordx4 {vr(KVR+4*i,4)}, v1, s[16:19], s53 offen offset:{1024*i} sc1")
    a("s_waitcnt vmcnt(0)")
    for t in range(4):
        a(mfma32(vr(S,16), vr(KVR,4), vr(Q+8*t,4), "0"))
        a(mfma32(vr(S,16), vr(KVR+4,4), vr(Q+8*t+4,4), vr(S,16)))
        a("s_nop 7")
        a("s_nop 3")
        for i in range(16): a(f"v_sub_f32 v{S+i}, v{S+i}, v{MX+t}")
        for i in range(16): a(f"v_exp_f32 v{S+i}, v{S+i}")
        a("s_nop 0")
        for i in range(8): a(f"v_cvt_pk_bf16_f32 v{P+i}, v{S+2*i}, v{S+2*i+1}")
        a("s_nop 1")
        a(mfma32(ar(16*t,16), vr(KVR+8,4), vr(P,4), ar(16*t,16)))
        a(mfma32(ar(16*t,16), vr(KVR+12,4), vr(P+4,4), ar(16*t,16)))
    a("s_add_u32 s61, s61, 4096")
    a("s_cmp_lt_u32 s61, 0x10000")
    a("s_cbranch_scc1 KB_s2")
    a("s_nop 7")
    a("s_nop 3")
    for t in range(3):
        for q in range(4): a(redw(t, q)[1])
    a("s_branch KB_red")
    p1_body(a, "k")
    p1_body(a, "v")
    a.label("KB_code_end")
    return kd(n, 512, 102, 256), f"; @launch grid=(256,1,1) block=(256,1,1) lds={KB_LDS}"


def build(force_slow=False, extra=0, force_fence=False):
    a = Asm()
    parts = [gen_kb(a, force_slow, force_fence)]
    launches = [p[1] for p in parts]
    kds = [p[0] for p in parts]
    if extra:
        header(a, "nop_kernel")
        a("s_endpgm")
        kds.append(kd("nop_kernel", 8, 16, 8))
        launches += ["; @launch kernel=nop_kernel grid=(256,1,1) block=(64,1,1) lds=0"] * extra
    out = "\n".join(launches) + "\n"
    out += '.amdgcn_target "amdgcn-amd-amdhsa--gfx950"\n.text\n'
    out += a.text()
    out += '.section .rodata,"a"\n' + "".join(kds)
    return out

if __name__ == "__main__":
    import argparse
    ap = argparse.ArgumentParser()
    ap.add_argument("-o", default="v2.s")
    ap.add_argument("--slow", action="store_true")
    ap.add_argument("--fence", action="store_true")
    ap.add_argument("--opt", default="")
    ap.add_argument("--extra", type=int, default=0)
    ap.add_argument("--stamps", default="", help="up to six stamp names for the fused kernel")
    args = ap.parse_args()
    for kv in args.opt.split(","):
        if kv:
            k_, _, v_ = kv.partition("=")
            OPT[k_] = int(v_) if v_ else 1
    STAMPS = bool(args.stamps)
    STAMP_SET = args.stamps.split(",")
    txt = build(args.slow, args.extra, args.fence)
    import hazard, itouch, re
    plain = re.sub(r"(K[AB])_CHAIN\d", r"\1_tret", txt)
    print("hazards:", hazard.check(plain), "waits:", 0 if STAMPS else hazard.waitcheck(plain))
    txt = re.sub(r"(K[AB])_CHAIN(\d)", r"\1_tret ;chain\1\2", txt)
    for pre, end in (("KA", "KB_red"), ("KB", "KB_end")):
        if f"{pre}_tret:" not in txt: continue
        txt, nb = itouch.insert(txt, pre, f"{pre}_tret", end, lambda n: [list(range(1 + w, n + 1, 4)) for w in range(4)], f"{pre}_tret")
        ch = [list(range(1 + w, nb + 1, 4)) for w in range(4)]
        txt = re.sub(rf"{pre}_tret ;chain{pre}(\d)", lambda m: f"{pre}_t{ch[int(m.group(1))][0]}" if ch[int(m.group(1))] else f"{pre}_tret", txt)
        print("code blocks touched:", nb)
    open(args.o, "w").write(txt)
```

```python
import math, struct, sys

NAME = "sequential_preLN__grouped_kv_mqa__dense_activation_mish__prompt"

QF   = 0x000000
KV   = 0x200000
SYNC = 0x240000
WOF  = 0x260000
W1F  = 0x300000
W2F  = 0x500000
OF   = 0x700000
HF   = 0x900000
PART = 0xB00000
QF2  = PART + 32*8*8*7168
WS_SIZE = QF2 + 0x200000
W1S = 29*1024

X_BYTES = 2048*896
WQ_BYTES = 448*896
WK_BYTES = 448*56
W1_BYTES = 448*3584
W2_BYTES = 1792*896

def f2u(f): return struct.unpack("<I", struct.pack("<f", f))[0]
def hexf(f): return "0x%08x" % f2u(f)
LOG2E = math.log2(math.e)
QSCALE = LOG2E / math.sqrt(28.0)
ONES_BF = "0x3f803f80"

class Asm:
    def __init__(self):
        self.L = []
    def __call__(self, s):
        for ln in s.split("\n"):
            ln = ln.strip()
            if ln: self.L.append("    " + ln)
    def label(self, s): self.L.append(s + ":")
    def c(self, s): self.L.append("    ; " + s)
    def text(self): return "\n".join(self.L) + "\n"

def vr(b, n=1): return f"v{b}" if n == 1 else f"v[{b}:{b+n-1}]"
def ar(b, n=1): return f"a{b}" if n == 1 else f"a[{b}:{b+n-1}]"
def sr(b, n=1): return f"s{b}" if n == 1 else f"s[{b}:{b+n-1}]"

def srd(a, d, lo, hi, nbytes):
    a(f"s_mov_b32 s{d}, s{lo}")
    a(f"s_mov_b32 s{d+1}, s{hi}")
    a(f"s_mov_b32 s{d+2}, {nbytes if isinstance(nbytes, str) else hex(nbytes)}")
    a(f"s_mov_b32 s{d+3}, 0x20000")

def header(a, name):
    a.L.append(f".globl {name}")
    a.L.append(".p2align 12")
    if OPT.get("pad", 1): a.L.append(".fill 832, 4, 0xbf800000")
    a.L.append(".p2align 8")
    a.L.append(f".type {name},@function")
    a.label(name)

def kd(name, vgpr, sgpr, accum):
    return f""".p2align 6
.amdhsa_kernel {name}
  .amdhsa_next_free_vgpr {vgpr}
  .amdhsa_next_free_sgpr {max(96, sgpr) if STAMPS else sgpr}
  .amdhsa_accum_offset {accum}
  .amdhsa_group_segment_fixed_size 0
  .amdhsa_kernarg_size 96
  .amdhsa_user_sgpr_count 2
  .amdhsa_user_sgpr_kernarg_segment_ptr 1
  .amdhsa_system_sgpr_workgroup_id_x 1
.end_amdhsa_kernel
"""

STAMPS = False
STAMP_BASE = 0x8000000
def stamp(a, i):
    if STAMPS: a(f"{'s_memtime' if OPT.get('cyc') and 0 < i < 7 else 's_memrealtime'} s[{72+2*i}:{73+2*i}]")
STAMP_SET = []
PAD1 = [0]
OPT = {}
def SM(k):
    return {0: '', 1: ' sc1', 2: ' sc0 sc1', 3: ' nt', 4: ' sc1 nt', 5: ' sc0 sc1 nt'}[int(OPT.get(k, {'pm': 1, 'k1m': 1, 'qm': 0}.get(k, 0)))]
def nstamp(a, name):
    if STAMPS and name in STAMP_SET:
        i = 1 + STAMP_SET.index(name)
        a(f"{'s_memtime' if OPT.get('cyc') else 's_memrealtime'} s[{72+2*i}:{73+2*i}]")
def stamp_init(a):
    if STAMPS:
        for i in range(8): a(f"s_mov_b32 s{72+2*i}, 0")
        stamp(a, 0)
        if OPT.get("dbg"): a("s_load_dwordx2 s[92:93], s[0:1], 80")
def fin(a, kidx, wslo):
    if STAMPS and OPT.get("dbg"):
        stamp(a, 7)
        a("s_mov_b64 exec, 0xff")
        a("s_waitcnt lgkmcnt(0)")
        a("s_not_b32 s72, s72")
        a("v_mbcnt_lo_u32_b32 v1, -1, 0")
        for i in range(8):
            a(f"v_mov_b32 v2, s{72+2*i}")
            a(f"v_cmp_eq_u32 vcc, {i}, v1")
            a("v_cndmask_b32 v0, v0, v2, vcc")
        a("v_lshlrev_b32 v1, 2, v1")
        a(f"s_add_u32 s92, s92, {32 if kidx else 512}")
        a("s_addc_u32 s93, s93, 0")
        a("s_and_b32 s90, s2, 31")
        a("s_lshl_b32 s91, s3, 5")
        a("s_or_b32 s90, s90, s91")
        a("s_cmp_eq_u32 s90, 5")
        a("s_cselect_b64 exec, exec, 0")
        a("global_atomic_umax v1, v0, s[92:93]")
    elif STAMPS:
        stamp(a, 7)
        a("s_mov_b64 exec, 1")
        a("s_waitcnt lgkmcnt(0)")
        for i in range(8): a(f"v_mov_b32 v{i}, s{72+2*i}")
        srd(a, 68, wslo, wslo+1, 0x10000000)
        a("s_lshl_b32 s90, s2, 3")
        a("s_add_u32 s90, s90, s3")
        a(f"s_add_u32 s90, s90, {kidx*4096}")
        a("s_lshl_b32 s90, s90, 5")
        a(f"s_add_u32 s90, s90, {STAMP_BASE}")
        a("v_mov_b32 v8, 0")
        a("buffer_store_dwordx4 v[0:3], v8, s[68:71], s90 offen")
        a("buffer_store_dwordx4 v[4:7], v8, s[68:71], s90 offen offset:16")
        if kidx == 1 and "pa" in OPT:
            lab = f"PRB{len(a.L)}"
            a("s_lshl_b32 s91, s3, 8")
            a("s_or_b32 s91, s91, s2")
            a(f"s_cmp_lg_u32 s91, {OPT.get('pw', 5)}")
            a(f"s_cbranch_scc1 {lab}_e")
            a(f"s_add_u32 s68, s68, {STAMP_BASE + 5*8*32}")
            a("s_addc_u32 s69, s69, 0")
            a("s_load_dwordx8 s[40:47], s[68:69], 0")
            a("s_waitcnt lgkmcnt(0)")
            reg = lambda i: f"s{40+i}" if i < 8 else f"s{72+2*(i-8)}"
            a(f"s_sub_u32 s91, {reg(int(OPT['pb']))}, {reg(int(OPT['pa']))}")
            a("s_lshl_b32 s91, s91, 3")
            a("s_min_u32 s91, s91, 40000")
            a("s_add_u32 s91, s91, s86")
            a.label(lab)
            a("s_memrealtime s[48:49]")
            a("s_waitcnt lgkmcnt(0)")
            a("s_sub_u32 s50, s48, s91")
            a("s_cmp_lt_i32 s50, 0")
            a(f"s_cbranch_scc1 {lab}")
            a.label(lab + "_e")
    a("s_endpgm")

def mfma32(d, A, B, C): return f"v_mfma_f32_32x32x16_bf16 {d}, {A}, {B}, {C}"
def mfma16(d, A, B, C): return f"v_mfma_f32_16x16x32_bf16 {d}, {A}, {B}, {C}"

def split16(m, ph):
    import re
    g = re.match(r"v_mfma_f32_32x32x16_bf16 ([va])\[(\d+):\d+\], (\S+), (\S+), (\S+)", m)
    t, d, A, B, C = g.group(1), int(g.group(2)), g.group(3), g.group(4), g.group(5)
    out = []
    for j in range(2):
        r = f"{t}[{d + 8*ph[0] + 4*j}:{d + 8*ph[0] + 4*j + 3}]"
        out.append(f"v_mfma_f32_16x16x32_bf16 {r}, {A}, {B}, {'0' if ph[1] else r}")
    return out

def half_sum(a, x, t, op="v_add_f32"):
    a(f"v_mov_b32 v{t}, v{x}")
    a("s_nop 1")
    a(f"v_permlane32_swap_b32 v{t}, v{x}")
    a("s_nop 1")
    a(f"{op} v{x}, v{x}, v{t}")

K1_X, K1_W, K1_RL, K1_ST, K1_CS, K1_RP = 0, 57344, 114688, 131072, 131584, 132096
F_W, F_O, F_H, F_P1, F_L, F_M, F_R = 0, 128, 256, 384, 512, 640, 1024
D_CLR = 0
NA = 3

def chunk_items(kind, i):
    it = []
    if kind == "q":
        it.append(["s_lshl_b32 s49, s48, 7", "s_add_u32 s49, s49, s44", f"s_add_u32 m0, s45, {1024*i}", "s_mul_i32 s50, s48, 64*896", "buffer_load_dwordx4 v9, s[8:11], s49 offen lds"])
        it.append(["s_add_u32 s49, s49, 8*896", f"s_add_u32 m0, s45, {1024*i + 7168}", "s_add_u32 s50, s50, s46", "buffer_load_dwordx4 v9, s[8:11], s49 offen lds"])
        it.append([f"s_add_u32 m0, s47, {8192*i}", "s_add_u32 s48, s48, 1", "buffer_load_dwordx4 v8, s[12:15], s50 offen lds"])
        it.append(["s_add_u32 s50, s50, 8*896", f"s_add_u32 m0, s47, {8192*i + 1024}", "s_cmp_eq_u32 s48, 7", "s_cselect_b32 s48, 0, s48", "buffer_load_dwordx4 v8, s[12:15], s50 offen lds"])
    else:
        it.append([f"s_add_u32 m0, s45, {1024*i}", f"s_add_u32 s49, s44, {128*i}", "buffer_load_dwordx4 v9, s[8:11], s49 offen lds"])
        it.append([f"s_add_u32 m0, s45, {1024*i + 7168}", f"s_add_u32 s49, s44, {128*i + 7168}", "buffer_load_dwordx4 v9, s[8:11], s49 offen lds"])
        it.append([f"s_add_u32 m0, s47, {4096*i}", f"s_add_u32 s50, s46, {4096*i}", "buffer_load_dwordx4 v8, s[12:15], s50 offen lds"])
        it.append([f"s_add_u32 m0, s47, {4096*i + 2048}", f"s_add_u32 s50, s46, {4096*i + 2048}", "buffer_load_dwordx4 v8, s[12:15], s50 offen lds"])
    return it

ACC, CS, SS, SQ, SEL, ONE, BUF, SB = 96, 112, 116, 120, 124, 128, 32, 16
RLV, ACK, BIA, RT0, RT1, LN16, CLO = 136, 137, 138, 139, 140, 141, 142

def p1_urgent(kind):
    L = ["v_lshrrev_b32 v2, 5, v0",
         "v_bfe_u32 v4, v0, 2, 2",
         "v_bfe_u32 v3, v0, 4, 1",
         "v_and_b32 v5, 3, v0",
         "v_and_b32 v13, 31, v0",
         "v_lshl_add_u32 v10, v2, 3, v4"]
    if kind == "q":
        L += ["v_lshrrev_b32 v12, 1, v4", "v_xor_b32 v12, s6, v12", "v_lshlrev_b32 v10, 7, v10", "v_lshl_add_u32 v10, v12, 6, v10", f"v_add_u32 v10, {K1_W}, v10"]
    else:
        L += ["s_sub_u32 s51, s47, s46", "v_mul_u32_u24 v10, 56, v10", "v_add_u32 v10, s51, v10"]
    L += ["v_lshl_add_u32 v10, v3, 5, v10", "v_lshl_add_u32 v10, v5, 3, v10",
          "v_bfe_u32 v14, v13, 1, 2", "v_lshrrev_b32 v15, 2, v13", "v_and_b32 v15, 4, v15", "v_or_b32 v14, v14, v15",
          "v_xor_b32 v14, v14, v2",
          "v_lshrrev_b32 v15, 3, v13", "v_mul_u32_u24 v15, 7168, v15", "v_lshl_add_u32 v15, v7, 7, v15", "s_mul_i32 s51, s7, 28672", "v_add_u32 v15, s51, v15",
          "v_lshl_add_u32 v24, v14, 4, v15"]
    L += [f"v_xor_b32 v{24+j}, {32*j}, v24" for j in range(1, 4)]
    L += ["v_bfe_u32 v14, v0, 3, 1", "v_mul_u32_u24 v14, 7168, v14", "v_lshl_add_u32 v14, v7, 7, v14", "v_lshrrev_b32 v12, 4, v0", "v_lshrrev_b32 v28, 1, v7",
          "v_xor_b32 v12, v12, v28", "v_lshl_add_u32 v14, v12, 4, v14", "v_add_u32 v28, s45, v14", "v_xor_b32 v29, 64, v28"]
    return L

def p1_consts():
    L = [["v_xor_b32 v14, v0, v3", "v_and_b32 v14, 1, v14", f"v_mov_b32 v{ONE}, {ONES_BF}", "v_cmp_eq_u32 vcc, 0, v14"],
         [f"v_mov_b32 v{ONE+i}, v{ONE}" for i in range(1, 4)], [f"v_cndmask_b32 v{SEL+i}, 0, v{ONE}, vcc" for i in range(4)]]
    return L

def p1_later(kind):
    rest = [[f"s_mov_b32 s16, s94", "s_mov_b32 s17, s95", f"s_mov_b32 s18, {hex(WS_SIZE)}", "s_mov_b32 s19, 0x20000"],
            ["s_lshl_b32 s51, s4, 12", f"s_add_u32 s51, s51, {SYNC}", "s_add_u32 s66, s94, s51", "s_addc_u32 s67, s95, 0"],
            ["s_lshl_b32 s51, s4, 5", "s_lshl_b32 s52, s5, 2", "s_add_u32 s51, s51, s52", "s_add_u32 s51, s51, s3", "s_lshl_b32 s51, s51, 11",
             "v_and_b32 v168, 15, v0", "v_lshl_add_u32 v168, v168, 7, s51"],
            [f"v_and_b32 v{CLO}, 1, v0", f"v_lshlrev_b32 v{CLO}, 7, v{CLO}", "s_getreg_b32 s69, hwreg(HW_REG_XCC_ID, 0, 4)", "s_or_b32 s69, s69, 16"]]
    if kind != "q":
        return [], rest + [[f"v_mov_b32 v{132+q}, 0" for q in range(4)], [f"v_mov_b32 v{RT0}, 0", f"v_mov_b32 v{RT1}, 0"]]
    job = [["s_movk_i32 s60, 896", f"s_mov_b32 s22, {W1_BYTES}", "s_mov_b32 s23, 0x20000", f"s_mov_b32 s34, {W1S}", f"s_mov_b32 s35, {W1F}"],
           ["s_movk_i32 s61, 256", "s_movk_i32 s62, 2341", "s_lshl_b32 s59, s2, 2", "s_add_u32 s59, s59, s3", "s_lshl_b32 s59, s59, 1"],
           ["s_cmp_lt_u32 s2, 130", "s_cselect_b32 s60, 3584, s60", "s_cselect_b32 s61, s61, 256 + 784", "s_cselect_b32 s62, s62, 586", "s_cselect_b32 s53, 28, 112"],
           ["s_cmp_lt_u32 s2, 130", "s_cselect_b32 s57, 0, 1", "s_cselect_b32 s20, s36, s40", "s_cselect_b32 s21, s37, s41", "s_cselect_b32 s34, s34, 112*1024", f"s_cselect_b32 s35, s35, {W2F}"],
           ["s_cmp_lt_u32 s2, 228", "s_cselect_b32 s61, s61, 256 + 1568", "s_cselect_b32 s62, s62, 2048", "s_cselect_b32 s53, s53, 32", "s_cselect_b32 s57, s57, 2", "s_cselect_b32 s51, 16, 14"],
           ["s_cmp_lt_u32 s2, 228", "s_cselect_b32 s20, s20, s32", "s_cselect_b32 s21, s21, s33", f"s_cselect_b32 s22, s22, {WQ_BYTES}", "s_cselect_b32 s34, s34, 32768", f"s_cselect_b32 s35, s35, {WOF}"],
           ["s_sub_u32 s59, s59, s61", "s_mul_i32 s58, s59, s62", "s_lshr_b32 s58, s58, 16", "s_mul_i32 s53, s53, s58", "s_sub_u32 s59, s59, s53"],
           ["s_mul_i32 s61, s59, s51", "s_mul_i32 s61, s61, s60", "s_lshl_b32 s64, s58, 7", "s_add_u32 s61, s61, s64",
            f"v_mad_u32_u24 v{RLV}, v6, s60, v11", "s_lshl_b32 s60, s60, 3"],
           ["s_lshl_b32 s65, s3, 12", f"s_add_u32 s65, s65, {K1_RL}",
            "s_mov_b32 s36, s38", "s_mov_b32 s37, s39", "s_movk_i32 s38, 3584", "s_mov_b32 s39, 0x20000"],
           [f"v_lshlrev_b32 v{BIA}, 1, v0"]]
    rest += [["s_lshl_b32 s53, s59, 10", "s_add_u32 s35, s35, s53", "s_mul_i32 s53, s34, s58", "s_lshl_b32 s53, s53, 1", "s_add_u32 s35, s35, s53"],
             [f"v_lshl_add_u32 v{RT0}, v2, 2, v4", f"v_lshlrev_b32 v{RT0}, 7, v{RT0}", "v_lshrrev_b32 v12, 1, v4", f"v_lshl_add_u32 v{RT0}, v12, 6, v{RT0}"],
             [f"v_lshl_add_u32 v{RT0}, v3, 5, v{RT0}", f"v_lshl_add_u32 v{RT0}, v5, 3, v{RT0}", f"v_add_u32 v{RT0}, s65, v{RT0}", f"v_xor_b32 v{RT1}, 64, v{RT0}"]]
    rest += [["s_lshl_b32 s51, s68, 4", "s_lshl_b32 s52, s6, 3", "s_add_u32 s51, s51, s52", "v_add_u32 v14, s51, v2"],
             ["v_lshrrev_b32 v12, 3, v13", "v_lshlrev_b32 v12, 13, v12", "v_lshl_add_u32 v12, v7, 4, v12"]]
    for q in range(4):
        d = 132 + q
        rest += [["v_mul_u32_u24 v30, 147, v14", "v_lshrrev_b32 v30, 10, v30", "v_mul_u32_u24 v31, 7, v30", "v_sub_u32 v31, v14, v31"],
                 [f"v_lshrrev_b32 v{d}, 2, v30", f"v_lshl_add_u32 v{d}, v{d}, 11, v12", "v_and_b32 v30, 3, v30", f"v_lshl_add_u32 v{d}, v30, 7, v{d}"],
                 ["v_lshrrev_b32 v30, 2, v31", f"v_lshl_add_u32 v{d}, v30, 10, v{d}", "v_and_b32 v30, 1, v31", f"v_lshl_add_u32 v{d}, v30, 9, v{d}"],
                 ["v_bfe_u32 v30, v31, 1, 1", f"v_lshl_add_u32 v{d}, v30, 3, v{d}"] + (["v_add_u32 v14, 2, v14"] if q < 3 else [])]
    rest += [["v_mov_b32 v170, v171"]*4 for _ in range(OPT.get("dum1", 0)//4)]
    return job, rest

def p1_requests(a, kind, NA):
    for it in chunk_items(kind, 0):
        for x in it: a(x)
    nstamp(a, "p1ld")
    U = p1_urgent(kind)
    D_ = [it for i in range(1, NA) for it in chunk_items(kind, i)]
    k = 0
    for j, x in enumerate(U):
        a(x)
        while k < len(D_) and (j + 1) * (len(D_) + 1) >= (k + 1) * len(U):
            for y in D_[k]: a(y)
            k += 1
    assert k == len(D_)
    nstamp(a, "p1s1")

def p1_head(a):
    a("s_cmp_ge_u32 s2, 256")
    a("s_cbranch_scc1 KB_end")
    stamp_init(a)
    a("s_load_dwordx4 s[24:27], s[0:1], 0")
    a("s_load_dwordx4 s[28:31], s[0:1], 16")
    a("s_load_dwordx4 s[92:95], s[0:1], 80")
    a("s_load_dwordx2 s[32:33], s[0:1], 32")
    a("s_load_dwordx4 s[36:39], s[0:1], 48")
    a("s_load_dwordx4 s[40:43], s[0:1], 64")
    a("s_getpc_b64 s[50:51]")
    a.label("KB_pc")
    a("s_lshr_b32 s52, s2, 3")
    a("s_lshl_b32 s52, s52, 15")
    a("v_lshl_add_u32 v12, v0, 7, s52")
    a("v_lshrrev_b32 v1, 6, v0")
    a("v_min_u32 v12, KB_code_end-KB_pc-4, v12")
    a("v_and_b32 v0, 63, v0")
    a("global_load_dword v165, v12, s[50:51]")
    a("v_readfirstlane_b32 s3, v1")
    a("s_and_b32 s4, s2, 7")
    a("s_lshl_b32 s4, s4, 2")
    a("s_bfe_u32 s5, s2, 0x20003")
    a("s_add_u32 s4, s4, s5")
    a("s_lshr_b32 s5, s2, 5")
    a("v_lshrrev_b32 v6, 3, v0")
    a("v_and_b32 v7, 7, v0")
    a("s_and_b32 s6, s3, 1")
    a("s_lshr_b32 s7, s3, 1")
    a("v_lshrrev_b32 v10, 1, v6")
    a("v_xor_b32 v9, v7, v10")
    a("s_lshl_b32 s44, s6, 2")
    a("v_xor_b32 v9, s44, v9")
    a("v_mul_u32_u24 v8, 896, v6")
    a("v_lshl_add_u32 v9, v9, 4, v8")
    a("s_lshl_b32 s44, s4, 6")
    a("s_lshl_b32 s45, s3, 4")
    a("s_add_u32 s44, s44, s45")
    a("s_mul_i32 s44, s44, 896")
    a("s_mul_i32 s45, s3, 14336")
    a(f"s_mov_b32 s10, {X_BYTES}")
    a("s_mov_b32 s11, 0x20000")
    a("s_mov_b32 s15, 0x20000")
    a(f"v_lshlrev_b32 v{LN16}, 4, v0")
    a("s_cmp_eq_u32 s5, 0")
    a("s_cbranch_scc1 P1_kv")
    a("s_sub_u32 s68, s5, 1")
    a("v_and_b32 v11, 1, v10")
    a("v_lshlrev_b32 v11, 2, v11")
    a("v_xor_b32 v11, v7, v11")
    a("v_lshlrev_b32 v11, 4, v11")
    a("v_add_u32 v8, v8, v11")
    a("s_mul_i32 s46, s3, 16*896")
    a("s_lshl_b32 s47, s68, 7")
    a("s_add_u32 s46, s46, s47")
    a("s_lshl_b32 s47, s3, 11")
    a(f"s_add_u32 s47, s47, {K1_W}")
    a("s_and_b32 s48, s4, 3")
    a(f"s_mul_i32 s48, s48, {OPT.get('rotm', 2)}")
    a("s_add_u32 s48, s48, s68")
    a("s_cmp_ge_u32 s48, 7")
    a("s_cselect_b32 s49, 7, 0")
    a("s_sub_u32 s48, s48, s49")
    a(f"s_mov_b32 s14, {WQ_BYTES}")
    a("s_mov_b64 s[54:55], 0")
    a("v_mov_b32 v166, 0")
    a("s_sub_u32 s50, s2, 224")
    a("s_cmp_lt_u32 s50, 8")
    a("s_waitcnt lgkmcnt(0)")
    a("s_mov_b32 s8, s24")
    a("s_mov_b32 s9, s25")
    a("s_mov_b32 s12, s26")
    a("s_mov_b32 s13, s27")
    a("s_cbranch_scc1 P1_clr")
    a.label("P1_clr_done")
    p1_requests(a, "q", OPT.get("naq", NA))
    a("s_branch P1_q")
    a.label("P1_clr")
    for i in range(4): a(f"v_mov_b32 v{20+i}, 0")
    a("s_lshl_b32 s51, s50, 2")
    a("s_add_u32 s51, s51, s3")
    a("s_lshl_b32 s51, s51, 12")
    a(f"s_add_u32 s51, s51, {SYNC}")
    a("s_add_u32 s66, s94, s51")
    a("s_addc_u32 s67, s95, 0")
    a(f"global_store_dwordx4 v{LN16}, v[20:23], s[66:67] sc0 sc1")
    a(f"global_store_dwordx4 v{LN16}, v[20:23], s[66:67] offset:1024 sc0 sc1")
    a("s_and_b32 s51, s50, 1")
    a("s_lshl_b32 s51, s51, 7")
    a("s_lshr_b32 s50, s50, 1")
    a("s_add_u32 s51, s51, s50")
    a("v_mov_b32 v166, s51")
    a("v_mov_b32 v167, 1")
    a("s_cmp_eq_u32 s3, 0")
    a("s_cselect_b32 s54, 1, 0")
    a("s_branch P1_clr_done")
    a.label("P1_kv")
    a("s_lshl_b32 s46, s7, 10")
    a("s_mul_i32 s47, s6, 28672")
    a("s_add_u32 s47, s47, s46")
    a(f"s_add_u32 s47, s47, {K1_W}")
    a(f"v_mov_b32 v8, v{LN16}")
    a(f"s_mov_b32 s14, {WK_BYTES}")
    a("s_cmp_eq_u32 s6, 0")
    a("s_waitcnt lgkmcnt(0)")
    a("s_cselect_b32 s12, s28, s30")
    a("s_cselect_b32 s13, s29, s31")
    a("s_mov_b32 s8, s24")
    a("s_mov_b32 s9, s25")
    p1_requests(a, "k", OPT.get("nakv", NA))
    a("s_cmp_eq_u32 s6, 0")
    a("s_cbranch_scc1 P1_k")
    a("s_branch P1_v")

def p1_body(a, kind):
    a.L.append(".p2align 12")
    a.label("P1_" + kind)
    def reads(i):
        b = BUF + 32*(i & 1); L = []
        for k in range(4):
            wo = 8192*i + 2048*k if kind == "q" else 896*(4*i + k)
            L += [f"ds_read_b64_tr_b16 {vr(b+8*k,2)}, v10 offset:{wo}",
                  f"ds_read_b64_tr_b16 {vr(b+8*k+2,2)}, v10 offset:{wo + (512 if kind == 'q' else 224)}",
                  f"ds_read_b128 {vr(b+8*k+4,4)}, v{24+k} offset:{1024*i}"]
        L += [f"ds_read_b128 {vr(SB+4*hf,4)}, v{28+hf} offset:{1024*i}" for hf in range(2)]
        return L
    def mfmas(i):
        b = BUF + 32*(i & 1); L = []
        z = lambda r, n_, first: "0" if first else vr(r, n_)
        for k in range(4):
            W, X = vr(b+8*k,4), vr(b+8*k+4,4)
            f = i == 0 and k == 0
            if kind == "v":
                L += [mfma32(vr(ACC,16), X, W, z(ACC,16,f)), mfma16(vr(CS,4), vr(SEL,4), W, z(CS,4,f))]
            else:
                L += [mfma32(vr(ACC,16), W, X, z(ACC,16,f)), mfma16(vr(CS,4), W, vr(SEL,4), z(CS,4,f))]
        return L
    def smfmas(i):
        L = []
        for hf in range(2):
            f = i == 0 and hf == 0
            X = vr(SB+4*hf,4)
            L += [mfma16(vr(SS,4), X, vr(ONE,4), "0" if f else vr(SS,4)), mfma16(vr(SQ,4), X, X, "0" if f else vr(SQ,4))]
        return L
    rl = [[f"s_add_u32 m0, s65, {1024*j}", "s_add_u32 s61, s61, s60" if j else "s_nop 0", f"buffer_load_dwordx4 v{RLV}, s[20:23], s61 offen lds"] for j in range(4)]
    rl += [[f"buffer_load_ushort v{BIA}, v{BIA}, s[36:39], s64 offen"]]
    if kind != "q": rl = []
    RLI = OPT.get("rli", 4)
    NA = OPT.get("naq", 3) if kind == "q" else OPT.get("nakv", 3)
    ACI, ACL = OPT.get("aci", 0), OPT.get("acl", 6)
    vq = [f"c{i}" for i in range(NA) for _ in range(4)]
    ack = []
    if kind == "q": ack = [["s_mov_b64 exec, s[54:55]", f"global_store_byte v166, v167, s[92:93] offset:{D_CLR} sc0 sc1", "s_mov_b64 exec, -1"]]
    job, rest_ = p1_later(kind)
    extra = {i: [] for i in range(8)}
    J0 = OPT.get("j0", 4)
    extra[0] = p1_consts() + job[:J0]
    assert RLI >= 3 and OPT.get("qt", 5) >= 4 and ACL >= 5
    for q, g in enumerate(job[J0:]): extra[1 + q*2//max(len(job) - J0, 1)].append(g)
    extra[3 if kind == "q" else 1] += rest_[:3]
    for q, g in enumerate(rest_[3:]): extra[4 + q*4//len(rest_[3:])].append(g)
    ackl = [[f"global_load_dword v{ACK}, v{CLO}, s[92:93] offset:{D_CLR} sc1"]]
    for i in range(8):
        fillers = []
        if i < 7:
            k = len(vq) - 1 - vq[::-1].index(f"c{i}")
            if i == 0: nstamp(a, "p1s3")
            a(f"s_waitcnt vmcnt({len(vq) - 1 - k})")
            if i == 0: nstamp(a, "p1s4")
            a("s_barrier")
            if i == 0: nstamp(a, "p1b0")
            nstamp(a, f"it{i}")
            fillers = [[x] for x in reads(i)]
        ld = chunk_items(kind, i + NA) if i + NA < 7 else []
        vq += [f"c{i + NA}"] * len(ld)
        if i == RLI:
            ld = ld + rl; vq += ["rl"] * len(rl)
        if i == ACL:
            ld = ld + ackl; vq += ["ack"]
        if i == OPT.get("qt", 5) > 0:
            ld = ld + [[f"global_load_dword v169, v168, s[94:95] offset:{QF} sc1"]]; vq += ["qt"]
        if i == ACI:
            ld = ld + ack
        if i == 0:
            for it in fillers + ld + extra[0]:
                for x in it: a(x)
            continue
        ex = list(extra[i]); mix = []
        while ld or ex:
            if ld: mix.append(ld.pop(0))
            if ex: mix.append(ex.pop(0))
        ld = mix
        a("s_waitcnt lgkmcnt(0)")
        M = smfmas(i - 1) + mfmas(i - 1)
        rest = fillers[:12] + ld
        late = fillers[12:]
        for k, m in enumerate(M):
            a(m)
            if k >= 4 and late and k in (6, 8):
                for x in late.pop(0): a(x)
            take = -(-len(rest) // (len(M) - k))
            for _ in range(take):
                for x in rest.pop(0): a(x)
        assert not rest and not late
    nstamp(a, "p1lp")
    def done(nst):
        nstamp(a, "p1st")
        if kind != "q": a("s_branch P1_join")
    a("v_cmp_eq_u32 vcc, 1, v5")
    a("v_cmp_eq_u32 s[52:53], 2, v5")
    a("v_cmp_eq_u32 s[44:45], 3, v5")
    a("v_lshrrev_b32 v11, 4, v0")
    a("v_cmp_eq_u32 s[46:47], v11, v4")
    for r in (SS, SQ):
        a(f"v_cndmask_b32 v{r}, v{r}, v{r+1}, vcc")
        a(f"v_cndmask_b32 v{r}, v{r}, v{r+2}, s[52:53]")
        a(f"v_cndmask_b32 v{r}, v{r}, v{r+3}, s[44:45]")
    a(f"v_mul_f32 v20, {hexf(1.0/448)}, v{SS}")
    a(f"v_mul_f32 v22, {hexf(1.0/448)}, v{SQ}")
    a("v_fma_f32 v22, -v20, v20, v22")
    a("v_max_f32 v22, 0, v22")
    a(f"v_add_f32 v22, {hexf(1e-5)}, v22")
    a("v_rsq_f32 v22, v22")
    a("s_lshl_b32 s51, s3, 7")
    a(f"s_add_u32 s51, s51, {K1_ST}")
    a("v_and_b32 v11, 15, v0")
    a("v_lshl_add_u32 v11, v11, 3, s51")
    a("v_mul_f32 v23, -v20, v22")
    a("s_mov_b64 exec, s[46:47]")
    a("ds_write_b64 v11, v[22:23]")
    a("s_mov_b64 exec, -1")
    if kind != "v":
        a("s_lshl_b32 s51, s3, 7")
        a(f"s_add_u32 s51, s51, {K1_CS}")
        a("v_lshrrev_b32 v11, 4, v0")
        a("v_lshlrev_b32 v11, 4, v11")
        a("v_and_b32 v14, 15, v0")
        a("v_lshl_add_u32 v11, v14, 6, v11")
        a("v_add_u32 v11, s51, v11")
        a("v_lshl_add_u32 v14, v2, 4, s51")
        a("s_mov_b32 exec_lo, 0x00030003")
        a("s_mov_b32 exec_hi, 0x00030003")
        a(f"ds_write_b128 v11, {vr(CS,4)}")
        a("s_mov_b64 exec, -1")
        for i in range(4): a(f"ds_read_b128 {vr(32+4*i,4)}, v14 offset:{32*i}")
    else:
        a("v_cmp_ne_u32 vcc, 0, v3")
        a("s_nop 1")
        a(f"v_cndmask_b32 v{CS}, v{CS}, v{CS+1}, vcc")
    a("s_lshl_b32 s51, s7, 8")
    a(f"s_add_u32 s51, s51, {K1_ST}")
    a("s_waitcnt lgkmcnt(0)")
    a("s_barrier")
    nstamp(a, "p1e")
    if kind != "v":
        a("v_lshl_add_u32 v11, v13, 3, s51")
        a("ds_read_b64 v[20:21], v11")
        a("v_cmp_ne_u32 s[52:53], 0, v2")
        if kind == "q":
            a("s_lshl_b32 s51, s4, 3")
            a("s_lshl_b32 s50, s7, 2")
            a("s_add_u32 s51, s51, s50")
            a("s_lshl_b32 s51, s51, 13")
            if QF: a(f"s_add_u32 s51, s51, {QF}")
        a("s_waitcnt lgkmcnt(0)")
        if kind == "q":
            a(f"v_mul_f32 v20, {hexf(QSCALE)}, v20")
            a(f"v_mul_f32 v21, {hexf(QSCALE)}, v21")
        for q in range(4):
            for i in range(4*q, 4*q + 4):
                a(f"v_mul_f32 v{ACC+i}, v{ACC+i}, v20")
                a(f"v_fmac_f32 v{ACC+i}, v{32+i}, v21")
            for i in range(2): a(f"v_cvt_pk_bf16_f32 v{48+2*q+i}, v{ACC+4*q+2*i}, v{ACC+4*q+2*i+1}")
            if kind == "q": a(f"buffer_store_dwordx2 {vr(48+2*q,2)}, v{132+q}, s[16:19], s51 offen{SM('qm')}")
        if kind == "q":
            done(4)
            return
        a("v_cndmask_b32 v54, v54, 0, s[52:53]")
        a("v_cndmask_b32 v55, v55, 0, s[52:53]")
        a("v_mov_b32 v20, 0")
        a("v_mov_b32 v22, 0x3f80")
        for i in range(8): a(f"v_dot2c_f32_bf16 v20, v{48+i}, v{48+i}")
        a("v_cndmask_b32 v54, v54, v22, s[52:53]")
        a("s_lshl_b32 s51, s4, 1")
        a("s_add_u32 s51, s51, s7")
        a("s_lshl_b32 s50, s7, 2")
        a(f"s_add_u32 s50, s50, {K1_RP + 1088}")
        a("s_lshl_b32 s51, s51, 12")
        a(f"s_add_u32 s51, s51, {KV}")
        a(f"buffer_store_dwordx4 v[48:51], v{LN16}, s[16:19], s51 offen{SM('k1m')}")
        a(f"buffer_store_dwordx4 v[52:55], v{LN16}, s[16:19], s51 offen offset:1024{SM('k1m')}")
        half_sum(a, 20, 21)
        a("s_nop 1")
        for m in ("quad_perm:[1,0,3,2]", "quad_perm:[2,3,0,1]", "row_half_mirror", "row_mirror"):
            a(f"v_max_f32_dpp v20, v20, v20 {m} row_mask:0xf bank_mask:0xf")
            a("s_nop 1")
        a("v_mov_b32 v21, v20")
        a("s_nop 1")
        a("v_permlane16_swap_b32 v21, v20")
        a("s_nop 1")
        a("v_max_f32 v20, v20, v21")
        a("v_mov_b32 v17, s50")
        a("ds_write_b32 v17, v20")
        done(3)
        return
    a("v_lshl_add_u32 v11, v2, 5, s51")
    for i in range(8): a(f"ds_read_b128 {vr(32+4*i,4)}, v11 offset:{64*(i>>1) + 16*(i&1)}")
    a("v_cmp_eq_u32 s[52:53], 28, v13")
    a(f"v_mov_b32 v21, {ONES_BF}")
    a("v_cmp_lt_u32 s[44:45], 27, v13")
    a("v_cndmask_b32 v21, 0, v21, s[52:53]")
    a("s_lshl_b32 s51, s4, 1")
    a("s_add_u32 s51, s51, s7")
    a("s_lshl_b32 s51, s51, 12")
    a(f"s_add_u32 s51, s51, {KV}")
    a("s_waitcnt lgkmcnt(0)")
    for i in range(16):
        a(f"v_mul_f32 v{ACC+i}, v{ACC+i}, v{32+2*i}")
        a(f"v_fmac_f32 v{ACC+i}, v{33+2*i}, v{CS}")
    for i in range(8): a(f"v_cvt_pk_bf16_f32 v{64+i}, v{ACC+2*i}, v{ACC+2*i+1}")
    for i in range(8): a(f"v_cndmask_b32 v{64+i}, v{64+i}, v21, s[44:45]")
    a(f"buffer_store_dwordx4 v[64:67], v{LN16}, s[16:19], s51 offen offset:2048{SM('k1m')}")
    a(f"buffer_store_dwordx4 v[68:71], v{LN16}, s[16:19], s51 offen offset:3072{SM('k1m')}")
    done(2)

L_RED, L_XC, L_HN, L_ACT, L_W2 = 0, 49152, 0, 65536, 98304
KB_LDS = 163840
H_ST, H_T1 = 28672, 36864
SHIFT_LIMIT = 40.0
SPIN_LIMIT = 1 << 17
LN2F = math.log(2.0)

class Cnt:
    def __init__(self, name, cap): self.q = []; self.name = name; self.cap = cap
    def issue(self, tag):
        self.q.append(tag)
        assert self.name != "vmcnt" or len(self.q) <= self.cap, (self.name, tag, len(self.q))
    def wait(self, tag):
        if tag not in self.q: return None
        k = len(self.q) - 1 - self.q[::-1].index(tag)
        n = min(len(self.q) - 1 - k, self.cap)
        self.q = self.q[len(self.q)-n:] if n else []
        return f"s_waitcnt {self.name}({n})"
    def clear(self): self.q = []

def cost(t):
    mn = t.split()[0]
    if mn.startswith(("v_exp", "v_rcp", "v_rsq", "v_sqrt")): return 8
    if mn.startswith(("ds_write_b128", "global_store")): return 20
    if mn.startswith(("ds_", "global_", "buffer_")): return 12
    if mn.startswith(("v_cvt_pk", "v_fma_")): return 5
    return 4.3

def gen_kb(a, force_slow=False, force_fence=False):
    n = NAME + "_kernel"
    header(a, n)
    vm = Cnt("vmcnt", 63); lg = Cnt("lgkmcnt", 15)
    def V(text, tag="-"):
        if len(vm.q) >= 63:
            a("s_waitcnt vmcnt(48)"); vm.q = vm.q[-48:]
        a(text); vm.issue(tag)
    def D(text, tag="-"): a(text); lg.issue(tag)
    def WV(tag):
        w = vm.wait(tag)
        if w: a(w)
    def WL(tag):
        w = lg.wait(tag)
        if w: a(w)
    def add64(d, s, off):
        a(f"s_add_u32 s{d}, s{s}, {off}")
        a(f"s_addc_u32 s{d+1}, s{s+1}, 0")
    m0now = [None, False]
    def emit_item(it):
        if it[0] == "s" and " m0," in it[1]:
            m0now[1] = it[1] == m0now[0]
            if m0now[1]: return
            m0now[0] = it[1]
        elif it[0] == "s" and it[1] == "s_nop 0" and m0now[1]:
            m0now[1] = False
            return
        if it[0] == "s": a(it[1])
        elif it[0] == "v": V(it[1], it[2])
        elif it[0] == "d": D(it[1], it[2])
        elif it[0] == "wv": WV(it[1])
        elif it[0] == "wl": WL(it[1])
        elif it[0] == "l": a.label(it[1])
    XR, Q, KVR, S, P, WOV = 16, 32, 64, 96, 128, 144
    WS = " sc1" if OPT.get("wsc", 0) else ""
    p1_head(a)
    p1_body(a, "q")
    a.label("P1_join")
    nstamp(a, "p1j")
    a("v_cmp_ne_u32 s[64:65], 0, v2")
    for d_, s_ in ((8, 94), (9, 95), (10, 24), (11, 25), (12, 42), (13, 43)): a(f"s_mov_b32 s{d_}, s{s_}")
    a("s_lshl_b32 s53, s5, 2")
    a("s_add_u32 s53, s53, s3")
    a("v_mov_b32 v16, s53")
    a("v_mov_b32 v17, s69")
    a("s_mul_i32 s69, s69, 0x01010101")
    a("v_and_b32 v30, 7, v0")
    a("v_lshlrev_b32 v30, 2, v30")
    a("s_mov_b32 s88, s35")
    a("s_add_u32 s89, s35, s34")
    a("s_cmp_eq_u32 s57, 2")
    a("s_cselect_b64 s[52:53], s[64:65], 0")
    a("v_lshlrev_b32 v8, 2, v0")
    a("v_cndmask_b32 v143, -1, 0, s[52:53]")
    a("s_add_u32 s62, s59, 2")
    a("s_lshr_b32 s62, s62, 3")
    a(f"s_mul_i32 s71, s58, {2*W1S}")
    a("s_lshr_b32 s54, s62, 1")
    a("s_lshl_b32 s54, s54, 9")
    a("s_add_u32 s71, s71, s54")
    a(f"s_add_u32 s71, s71, {W1F + 28*1024}")
    a("s_lshl_b32 s54, s3, 5")
    a("s_add_u32 s54, s54, s59")
    a("s_cmp_eq_u32 s54, 32 + 26")
    a("s_cselect_b32 s91, 0, -1")
    a("s_cmp_eq_u32 s54, 96 + 2")
    a("s_cselect_b32 s90, 0, -1")
    a("s_cselect_b32 s54, 1, s3")
    a("s_lshl_b32 s53, s57, 2")
    a("s_or_b32 s54, s54, s53")
    a("s_cmp_eq_u32 s54, 1")
    a("s_cselect_b32 s62, s62, 4")
    a("s_cmp_eq_u32 s5, 0")
    a("s_cselect_b32 s62, 4, s62")
    a(f"s_cselect_b32 s26, 0, {WS_SIZE}")
    a("s_mov_b32 s24, s94")
    a("s_mov_b32 s25, s95")
    a("s_mov_b32 s27, 0x20000")
    a("s_mov_b32 s70, s57")
    a("s_cbranch_scc0 P1_qf")
    a(f"v_mov_b32 v19, {K1_RP + 1088}")
    a("v_lshlrev_b32 v21, 7, v0")
    a("v_mov_b32 v20, 1")
    a("s_cmp_eq_u32 s3, 0")
    a("s_cselect_b32 s46, 0xff, 0")
    a("s_mov_b32 s47, 0")
    a("s_waitcnt lgkmcnt(0)")
    a("s_barrier")
    a("ds_read_b64 v[18:19], v19")
    a("s_mov_b32 s68, 0")
    a("s_waitcnt vmcnt(2)")
    a.label("P1_kvf_ack")
    a(f"v_cmp_ne_u32 vcc, 0x01010101, v{ACK}")
    a("s_cbranch_vccz P1_kvf_go")
    a(f"global_load_dword v{ACK}, v{CLO}, s[92:93] offset:{D_CLR} sc1")
    a("s_add_u32 s68, s68, 1")
    a(f"s_cmp_lt_u32 s68, {SPIN_LIMIT}")
    a("s_waitcnt vmcnt(0)")
    a("s_cbranch_scc1 P1_kvf_ack")
    a.label("P1_kvf_go")
    a("s_mov_b64 exec, 1")
    a(f"global_store_byte v16, v17, s[66:67] offset:{F_L}")
    a("s_mov_b64 exec, -1")
    nstamp(a, "p1w")
    a("s_waitcnt vmcnt(0) lgkmcnt(0)")
    a("s_barrier")
    a("s_mov_b64 exec, s[46:47]")
    a(f"global_store_dwordx3 v21, v[18:20], s[66:67] offset:{F_R} sc0 sc1")
    a("s_mov_b64 exec, -1")
    a("s_branch P1_lf_done")
    a.label("P1_qf")
    nstamp(a, "p1w")
    if STAMPS and "p1w4" in STAMP_SET:
        a("s_waitcnt vmcnt(6)"); nstamp(a, "p1w6")
        a("s_waitcnt vmcnt(5)"); nstamp(a, "p1w5")
        a("s_waitcnt vmcnt(4)"); nstamp(a, "p1w4")
    a("s_waitcnt vmcnt(0)")
    a(f"v_cmp_ne_u32 vcc, 0x01010101, v{ACK}")
    a("s_cbranch_vccnz P1_ack")
    a.label("P1_ack_done")
    a("s_mov_b64 exec, 1")
    a(f"global_store_byte v16, v17, s[66:67] offset:{F_L}")
    a("s_mov_b64 exec, -1")
    a.label("P1_lf_done")
    nstamp(a, "p1fl")
    pollL = f"global_load_dword v29, v30, s[66:67] offset:{F_L} sc1"
    a(pollL)
    a("s_lshr_b32 s7, s2, 3")
    a("s_lshl_b32 s6, s4, 3")
    a("s_add_u32 s6, s6, s5")
    a("v_lshlrev_b32 v1, 4, v0")
    a("s_lshl_b32 s54, s6, 13")
    if QF: a(f"s_add_u32 s54, s54, {QF}")
    for t in range(4):
        a(f"s_add_u32 s{58+t}, s3, {t+1}")
        a(f"s_and_b32 s{58+t}, s{58+t}, 3")
        a(f"s_lshl_b32 s{58+t}, s{58+t}, 11")
        a(f"s_add_u32 s{58+t}, s{58+t}, s54")
    a("s_lshl_b32 s54, s3, 15")
    a("s_and_b32 s53, s2, 7")
    a("s_lshl_b32 s53, s53, 7")
    a("s_add_u32 s54, s54, s53")
    a(f"s_add_u32 s54, s54, {SYNC + F_R}")
    a("v_lshl_add_u32 v31, v7, 12, s54")
    a("s_lshl_b32 s52, s3, 16")
    a(f"s_add_u32 s52, s52, {KV + 4096}")
    NKP = 3
    S0, S1, S8 = KVR, KVR + 16, WOV + 96
    KVA = OPT.get('kva', 26)
    kvs = [S0, S1, S8] + [256 + 64 + 16*k for k in range(10)] + [S0, S1, S8]
    kvr = lambda i, part: vr(kvs[i] + 4*part, 4) if kvs[i] < 256 else ar(kvs[i] - 256 + 4*part, 4)
    def kvld(i, part):
        b = 32 + 2*(i >> 1)
        return f"global_load_dwordx4 {kvr(i, part)}, v1, s[{b}:{b+1}] offset:{4096*(i&1) - 4096 + 1024*part}{' sc1' if i < 2 else ''}"
    def kvbase(p):
        a(f"s_add_u32 s53, s5, {p}")
        a("s_and_b32 s53, s53, 7")
        a("s_lshl_b32 s53, s53, 13")
        a("s_add_u32 s53, s53, s52")
        add64(32+2*p, 8, "s53")
    NPRO = OPT.get('npro', 2)
    VOFF = (1, 7, 9, 8)
    def woreg(f):
        return vr(WOV+4*f, 4) if f < 24 else ar(224+4*(f-24), 4)
    def wo_item(f):
        b = 48 if f < 16 else 50
        return [("v", f"global_load_dwordx4 {woreg(f)}, v{VOFF[(f%16)//8]}, s[{b}:{b+1}] offset:{1024*(f%8) - 4096}{WS}", f"wo{f}")]
    def w1reg(i):
        return ar(64+4*i, 4) if i < 40 else ar(4*(i-40), 4)
    def w1_item(i):
        b, ks = (96, i) if i < 28 else (98, i - 28)
        return [("v", f"global_load_dwordx4 {w1reg(i)}, v{VOFF[ks//8]}, s[{b}:{b+1}] offset:{1024*(ks%8) - 4096}{WS}", f"w1_{i}")]
    def setup_b():
        for p in range(8): kvbase(p)
        a("s_and_b32 s14, s3, 1")
        a("s_lshr_b32 s15, s3, 1")
        a("s_min_u32 s28, s5, 6")
        a("s_lshl_b32 s53, s28, 16")
        a("s_lshl_b32 s54, s14, 14")
        a("s_add_u32 s53, s53, s54")
        a(f"s_add_u32 s53, s53, {WOF + 4096}")
        a("s_lshl_b32 s54, s14, 15")
        a("s_add_u32 s55, s53, s54")
        add64(50, 8, "s55")
        a("s_xor_b32 s54, s54, 0x8000")
        a("s_add_u32 s55, s53, s54")
        add64(48, 8, "s55")
        a("s_lshl_b32 s53, s28, 3")
        a("s_add_u32 s53, s53, s3")
        a(f"s_mul_i32 s53, s53, {W1S}")
        a(f"s_add_u32 s53, s53, {W1F + 4096}")
        add64(96, 8, "s53")
        add64(98, 96, 4*W1S)
        a("v_and_b32 v5, 31, v0")
        for _ in range(OPT.get("dum2", 0)): a("s_mov_b32 s0, s1")
    RB, CP = WOV, WOV + 16
    WSL = 1
    wflag = [("s", "s_mov_b64 exec, 1"), ("v", f"global_store_byte v16, v17, s[66:67] offset:{F_W} sc0 sc1", "wfl"), ("s", "s_mov_b64 exec, -1")]
    PL, PA, PB = S, S + 4, S + 8
    pollA = f"global_load_dwordx3 {vr(PA,3)}, v31, s[8:9] sc1"
    pollB = f"global_load_dwordx3 {vr(PB,3)}, v31, s[8:9] sc1"
    xr = [("v", f"global_load_dwordx4 {vr(XR+4*i,4)}, v3, s[100:101] offset:{32*i}", "xr") for i in range(2)]
    def setup_c():
        a("v_lshrrev_b32 v6, 2, v5")
        a("v_mul_u32_u24 v3, 7168, v6")
        a("v_and_b32 v6, 3, v0")
        a("v_mul_u32_u24 v11, 896, v6")
        a("v_add_u32 v3, v3, v11")
        a("v_lshl_add_u32 v3, v2, 4, v3")
        a("s_lshl_b32 s53, s4, 4")
        a("s_add_u32 s53, s53, s15")
        a("s_mul_i32 s53, s53, 3584")
        a("s_lshl_b32 s54, s28, 7")
        a("s_add_u32 s53, s53, s54")
        a("s_lshl_b32 s54, s14, 6")
        a("s_add_u32 s53, s53, s54")
        add64(100, 10, "s53")
        a("v_add_u32 v7, 8192, v1")
        a("v_add_u32 v9, 16384, v1")
        for t in range(3):
            a(f"s_add_u32 s53, s3, {t+1}")
            a("s_and_b32 s53, s53, 3")
            a("s_mul_i32 s53, s53, 12288")
            a(f"s_add_u32 s53, s53, {L_RED + 4096*t}")
            a(f"v_add_u32 v{13+t}, s53, v1")
        a("v_lshrrev_b32 v11, 3, v5")
        a("v_lshlrev_b32 v24, 11, v11")
        a("v_bfe_u32 v11, v5, 2, 1")
        a("v_lshl_add_u32 v24, v11, 15, v24")
        a("v_lshl_add_u32 v24, v2, 9, v24")
        a("v_lshl_add_u32 v24, v6, 4, v24")
        a("v_and_b32 v11, 1, v0")
        a("v_lshl_add_u32 v25, v11, 10, v24")
        a("s_lshl_b32 s29, s4, 16")
        a("s_lshl_b32 s53, s3, 13")
        a("s_lshl_b32 s54, s5, 6")
        a("s_add_u32 s53, s53, s54")
        a("s_add_u32 s53, s53, s29")
        a(f"s_add_u32 s53, s53, {OF}")
        add64(20, 8, "s53")
        a("s_lshl_b32 s53, s15, 15")
        a("s_lshl_b32 s54, s14, 14")
        a("s_add_u32 s53, s53, s54")
        a("s_add_u32 s53, s53, s29")
        a(f"s_add_u32 s53, s53, {OF + 4096}")
        add64(22, 8, "s53")
        a(f"s_add_u32 s53, s29, {HF}")
        add64(54, 8, "s53")
        a("s_lshl_b32 s53, s28, 1")
        a("s_add_u32 s53, s53, s14")
        a(f"s_mul_i32 s30, s15, {H_T1}")
        a("s_lshl_b32 s31, s53, 11")
        a("s_add_u32 s30, s30, s31")
        a("s_lshl_b32 s31, s15, 12")
        a("s_lshl_b32 s53, s53, 8")
        a("s_add_u32 s31, s31, s53")
        a(f"s_add_u32 s31, s31, {H_ST}")
        a("v_add_u32 v26, s30, v1")
        a("v_lshl_add_u32 v27, v5, 3, s31")
        a("v_and_b32 v11, 15, v0")
        a("v_lshl_add_u32 v12, v11, 7, s30")
        a("v_and_b32 v11, 1, v0")
        a("v_lshl_add_u32 v11, v11, 7, s31")
        a("v_cmp_gt_u32 vcc, 16, v0")
        a("s_lshl_b32 s53, s7, 2")
        a("s_add_u32 s53, s53, s3")
        a("v_cndmask_b32 v12, v11, v12, vcc")
        a("s_min_u32 s63, s53, 55")
        a("s_lshl_b32 s63, s63, 13")
        a(f"s_add_u32 s63, s63, {WOF}")
        a("v_lshl_add_u32 v21, v0, 7, s63")
        a("s_mul_i32 s53, s53, 13056")
        a(f"s_add_u32 s53, s53, {W1F + 4096}")
        add64(56, 8, "s53")
        a("v_lshrrev_b32 v10, 2, v0")
        a("v_lshlrev_b32 v10, 7, v10")
        a(f"v_lshl_add_u32 v10, v6, {OPT.get('w1s', 2)}, v10")
        a("v_add_u32 v11, 8192, v10")
        a("v_lshrrev_b32 v20, 1, v0")
        a("v_lshlrev_b32 v20, 12, v20")
        a("v_and_b32 v22, 16, v1")
        a("v_add_u32 v20, v22, v20")
        a(f"v_add_u32 v20, {SYNC + F_W}, v20")
        a(f"v_mov_b32 v19, {K1_RP + 1024}")
        for _ in range(OPT.get("dum3", 0)): a("s_mov_b32 s0, s1")
    setup_b()
    if OPT.get("it1", 1):
        for w in range(3):
            a(f"s_cmp_eq_u32 s3, {w}")
            a(f"s_cbranch_scc1 KA_CHAIN{w}")
        a("s_branch KA_CHAIN3")
        if PAD1[0]: a.L.append(f".fill {PAD1[0]}, 4, 0xbf800000")
        a.label("KA_tret")
    a("s_mov_b32 s68, 0")
    if force_fence: a("s_branch P1_far")
    a.label("P1_l")
    a("s_waitcnt vmcnt(0)")
    nstamp(a, "p1l1")
    a("v_cmp_ne_u32 vcc, s69, v29")
    a("s_cbranch_vccz P1_l_done")
    a(pollL)
    a("s_add_u32 s68, s68, 1")
    a(f"s_cmp_lt_u32 s68, {OPT.get('lrounds', 48)}")
    a("s_cbranch_scc1 P1_l")
    a("s_branch P1_far")
    a.label("P1_l_done")
    nstamp(a, "p1ll")
    if STAMPS and "cntl" in STAMP_SET: a(f"s_mov_b32 s{72 + 2*(1 + STAMP_SET.index('cntl'))}, s68")
    for t in range(4):
        V(f"buffer_load_dwordx4 {vr(Q+8*t,4)}, v1, s[16:19], s{58+t} offen sc1", f"q{t}")
        V(f"buffer_load_dwordx4 {vr(Q+8*t+4,4)}, v1, s[16:19], s{58+t} offen offset:1024 sc1", f"q{t}")
    body, a.L = a.L, []
    for p in range(2):
        for t in range(2):
            b = RB + 8*p + 4*t
            a(f"ds_read_b64_tr_b16 {vr(b,2)}, v{RT0+t} offset:{2048*p}")
            a(f"ds_read_b64_tr_b16 {vr(b+2,2)}, v{RT0+t} offset:{2048*p + 1024}")
    a("s_lshl_b32 s53, s3, 2")
    a(f"s_add_u32 s53, s53, {K1_RP + 1024}")
    a("v_mov_b32 v28, s53")
    setup_c()
    fillc, a.L = a.L, body
    NC0 = OPT.get('nc0', 60)
    a.L += fillc[:NC0]
    nstamp(a, "p1pa")
    V(pollA, "pa")
    a.L += fillc[NC0:]
    a("s_waitcnt lgkmcnt(0)")
    for r in (10, 11, 14, 15): a(f"v_and_b32 v{RB+r}, v143, v{RB+r}")
    a("s_cmp_eq_u32 s70, 0")
    a("s_cbranch_scc0 P1_wb_done")
    a(f"s_mov_b32 s63, {ONES_BF}")
    for i in range(4): a(f"v_mov_b32 v{CP+i}, 0")
    a("s_lshl_b32 s53, s3, 8")
    a(f"s_add_u32 s53, s53, {K1_RP}")
    a("v_add_u32 v29, s53, v8")
    for hf in range(2):
        for i in (0, 4, 1, 5, 2, 6, 3, 7): a(f"v_dot2c_f32_bf16 v{CP + 2*(i>>2) + (i&1)}, s63, v{RB+8*hf+i}")
    a("s_nop 2")
    a(f"v_add_f32 v{CP}, v{CP}, v{CP+1}")
    a(f"v_add_f32 v{CP+2}, v{CP+2}, v{CP+3}")
    a(f"v_mov_b32 v{CP+1}, v{CP}")
    a(f"v_mov_b32 v{CP+3}, v{CP+2}")
    a("s_nop 0")
    a(f"v_permlane32_swap_b32 v{CP+1}, v{CP}")
    a(f"v_permlane32_swap_b32 v{CP+3}, v{CP+2}")
    a("s_nop 0")
    a(f"v_add_f32 v{CP}, v{CP}, v{CP+1}")
    a(f"v_add_f32 v{CP+2}, v{CP+2}, v{CP+3}")
    a(f"v_cndmask_b32 v{CP}, v{CP}, v{CP+2}, s[64:65]")
    a(f"ds_write_b32 v29, v{CP}")
    a.label("P1_wb_done")
    nstamp(a, "p1ws")
    B0 = S + 16
    for t in range(4): a(f"v_mov_b32 v{B0+t}, 0")
    WV("q3")
    if OPT.get('pb0', 1): a(pollB)
    for t in range(4):
        for i in (6, 7): a(f"v_cndmask_b32 v{Q+8*t+i}, v{Q+8*t+i}, 0, s[64:65]")
    for i in range(8):
        for t in range(4): a(f"v_dot2c_f32_bf16 v{B0+t}, v{Q+8*t+i}, v{Q+8*t+i}")
    a("s_mov_b32 s68, 0")
    a("s_nop 1")
    for t in range(4): a(f"v_mov_b32 v{B0+4+t}, v{B0+t}")
    a("s_nop 0")
    for t in range(4): a(f"v_permlane32_swap_b32 v{B0+4+t}, v{B0+t}")
    a("s_nop 0")
    for t in range(4): a(f"v_add_f32 v{B0+t}, v{B0+t}, v{B0+4+t}")
    nstamp(a, "p1qn")
    if OPT.get('pb0', 1): a("s_branch P1_poll1")
    a.label("P1_poll")
    a(pollB)
    a.label("P1_poll1")
    a("s_add_u32 s68, s68, 1")
    a("s_waitcnt vmcnt(1)")
    nstamp(a, "p1p1")
    a(f"v_cmp_ne_u32 vcc, 1, v{PA+2}")
    a(f"v_max_f32 v4, v{PA}, v{PA+1}")
    a("s_cbranch_vccz P1_poll_done")
    a(pollA)
    a("s_waitcnt vmcnt(1)")
    a(f"v_cmp_ne_u32 vcc, 1, v{PB+2}")
    a(f"v_max_f32 v4, v{PB}, v{PB+1}")
    a("s_cbranch_vccz P1_poll_done")
    a(f"s_cmp_lt_u32 s68, {SPIN_LIMIT}")
    a("s_cbranch_scc1 P1_poll")
    a.label("P1_poll_done")
    vm.clear(); vm.issue("older")
    nstamp(a, "p1pl")
    if STAMPS and "cntp" in STAMP_SET: a(f"s_mov_b32 s{72 + 2*(1 + STAMP_SET.index('cntp'))}, s68")
    for i in range(NPRO):
        for part in range(4): V(kvld(i, part), f"{'KV'[part>>1]}{i}")
    for m_ in ("quad_perm:[1,0,3,2]", "quad_perm:[2,3,0,1]", "row_half_mirror"):
        a("s_nop 1")
        a(f"v_max_f32_dpp v4, v4, v4 {m_} row_mask:0xf bank_mask:0xf")
    a("ds_write_b32 v28, v4")
    V(f"buffer_store_dwordx4 {vr(RB,4)}, v1, s[24:27], s88 offen sc1", "wst")
    V(f"buffer_store_dwordx4 {vr(RB+4,4)}, v1, s[24:27], s89 offen sc1", "wst")
    V(f"buffer_store_dwordx4 {vr(RB+8,4)}, v1, s[24:27], s88 offen offset:1024 sc1", "wst")
    V(f"buffer_store_dwordx4 {vr(RB+12,4)}, v1, s[24:27], s89 offen offset:1024 sc1", "wst")
    srd(a, 24, 12, 13, X_BYTES)
    a("s_waitcnt lgkmcnt(0)")
    a("s_barrier")
    a(f"ds_read_b128 {vr(PL,4)}, v19")
    a("s_cmp_lt_u32 s62, 4")
    a("s_cbranch_scc1 P1_aug")
    a.label("P1_aug_done")
    late = [("v", f"global_load_dword v29, v30, s[66:67] offset:{F_W} sc1", "xcc"),
            ("v", "global_load_dword v4, v25, s[20:21] sc1", "late"),
            ("v", "global_load_dword v4, v12, s[54:55] sc1", "late")]
    warm = [("v", f"global_load_dword v31, v21, s[8:9]{WS}", "warm")]
    warm += [("v", f"global_load_dword v4, v{10 + (k >> 2)}, s[56:57] offset:{2048*(k & 3) - 4096}{WS}", "warm")
             for k in range(7)][:OPT.get('nwarm', 7)]
    wpoll = "global_load_dwordx4 v[16:19], v20, s[8:9] sc1"
    wtest = ["v_and_b32 v16, v16, v17", "v_and_b32 v18, v18, v19", "v_and_b32 v16, v16, v18", "v_and_b32 v16, 0x10101010, v16", "v_cmp_ne_u32 vcc, 0x10101010, v16"]
    nstamp(a, "pro")
    a("s_waitcnt lgkmcnt(0)")
    a(f"v_max3_f32 v4, v{PL}, v{PL+1}, v{PL+2}")
    a(f"v_max_f32 v4, v4, v{PL+3}")
    a(f"v_mul_f32 v4, {hexf(1.02)}, v4")
    for t in range(4): a(f"v_mul_f32 v{B0+t}, v{B0+t}, v4")
    for t in range(4): a(f"v_sqrt_f32 v{B0+t}, v{B0+t}")
    a("s_nop 0")
    a(f"v_max3_f32 v8, v{B0}, v{B0+1}, v{B0+2}")
    a(f"v_max_f32 v8, v8, v{B0+3}")
    lim = -1.0 if force_slow else SHIFT_LIMIT
    a(f"v_cmp_nge_f32 vcc, {hexf(lim)}, v8")
    a("v_add_u32 v8, 24576, v1")
    a("s_cbranch_vccnz KB_slow")
    vm_at_slow = list(vm.q)
    for t in range(4): a(f"v_cvt_pk_bf16_f32 v{B0+t}, -v{B0+t}, 0")
    for t in range(4): a(f"v_cndmask_b32 v{Q+8*t+6}, v{Q+8*t+6}, v{B0+t}, s[64:65]")
    WV("K0")
    a(mfma32(vr(S,16), vr(KVR,4), vr(Q,4), "0"))
    a(mfma32(vr(S,16), vr(KVR+4,4), vr(Q+4,4), vr(S,16)))
    a("s_nop 7")
    a("s_nop 3")
    nstamp(a, "loop")
    slots = {}
    def put(u, k, it):
        while (u, k) in slots: u, k = (u, k + 1) if k < 3 else (u + 1, 0)
        slots[(u, k)] = it if isinstance(it, list) else [it]
        return u, k
    for i in range(16):
        if i <= 14: slots[(4*i+2, 3)] = [("wv", f"K{i+1}")]
        slots[(4*i+1, 1)] = [("wv", f"V{i}")]
    pos = (0, 0)
    for i in range(NPRO, NKP):
        for part in range(4):
            pos = put(pos[0], pos[1], ("v", kvld(i, part), f"{'KV'[part>>1]}{i}"))
            if pos[1] == 2: pos = (pos[0] + 1, 0)
    if KVA:
        if WSL: slots[(OPT.get('wfu', 7), 0)] = [("wv", "K2")] + wflag
        fr = [(u, k) for u in range(2, KVA) for k in range(4) if (u, k) not in slots]
        its = [("v", kvld(i, part), f"{'KV'[part>>1]}{i}") for i in range(NKP, 16) for part in range(4)]
        for q, it in enumerate(its):
            sl = fr[q*len(fr)//len(its)]
            assert sl[0] < 4*(NKP + q//4) - 6 or q < 4, (q, sl)
            slots[sl] = [it]
    for q, it in enumerate(xr): put(OPT.get('x0', 58), 0, it)
    WP0, WP1 = OPT.get('wp0', 23 if WSL else 9), OPT.get('wp1', 26 if WSL else 12)
    if WSL and not KVA: put(7, 0, wflag)
    put(WP0, 0, ("v", wpoll, "wp"))
    pos = put(WP1, 0, [("wv", "wp")] + [("s", x) for x in wtest] + [("s", "s_cbranch_vccnz KB_wspin"), ("l", "KB_wspin_done")])
    assert pos[0] == WP1
    for q, it in enumerate(warm): put(OPT.get('e0', WP1 + 1) + q*OPT.get('de', 3), 2, it)
    if OPT.get('pta', 0):
        for q in range(3 - OPT.get('npl', 0), 3):
            put(OPT['pta'] + q*OPT.get('ptd', 3), 1, [("s", "s_mov_b64 exec, 0xffff"), ("v", f"global_load_dword v4, v23, s[8:9] offset:{256*q} sc1", "late"), ("s", "s_mov_b64 exec, -1")])
    NW1A = OPT.get('nw1a', 28)
    pref = [wo_item(f) for f in range(32)] + [w1_item(i) for i in range(NW1A)]
    free = [(u, k) for u in range(OPT.get('wo0', WP1 + 2), 57) for k in range(4) if (u, k) not in slots]
    for q, it in enumerate(pref):
        sl = free[q*len(free)//len(pref)]
        assert not KVA or q < 32 or sl[0] >= 4*(3 + (q - 32)//4) + 5, (q, sl)
        slots[sl] = it
    lf = [(u, k) for u in range(57, 62) for k in range(4) if (u, k) not in slots]
    for q, it in enumerate(late): slots[lf[2*q]] = [it]
    slots[lf[1]] = [("s", f"s_load_dword s{88+i}, s[66:67], {o} glc") for i, o in enumerate((F_O, F_H, F_P1))]
    def redw(t, q): return ("d", f"ds_write_b128 v{13+t}, {ar(16*t+4*q,4)} offset:{1024*q}", "red")
    for q, sl in enumerate([(62,1), (62,2), (62,3), (63,2)]): slots.setdefault(sl, []).append(redw(0, q))
    tail63 = [redw(1, q) for q in range(4)]
    slots.setdefault((63,3), []).append(tail63[0])
    for u in range(64):
        sb, pb = S + 16*(u & 1), P + 8*(u & 1)
        sn, pp = S + 16*((u+1) & 1), P + 8*((u-1) & 1)
        un, up = u + 1, u - 1
        kt = min(un >> 2, 15); qn = Q + 8*(un & 3)
        vt = max(up >> 2, 0); oa = ar(16*(up & 3), 16)
        M = [mfma32(vr(sn,16), kvr(kt, 0), vr(qn,4), "0"),
             mfma32(vr(sn,16), kvr(kt, 1), vr(qn+4,4), vr(sn,16)),
             mfma32(oa, kvr(vt, 2), vr(pp,4), "0" if up < 4 else oa),
             mfma32(oa, kvr(vt, 3), vr(pp+4,4), oa)]
        e = lambda k: f"v_exp_f32 v{sb+k}, v{sb+k}"
        c = lambda k: f"v_cvt_pk_bf16_f32 v{pb+k}, v{sb+2*k}, v{sb+2*k+1}"
        groups = [[e(0), e(1), e(2), e(3), c(0)], [e(4), c(1), e(5), e(6), e(7), c(2)],
                  [e(8), c(3), e(9), e(10), e(11), c(4)], [e(12), c(5), e(13), e(14), e(15), c(6), c(7)]]
        nstamp(a, f"u{u}")
        for k in range(4):
            on = not ((u == 63 and k < 2) or (u == 0 and k >= 2))
            if OPT.get("m16a"):
                h = split16(M[k], (k & 1, k < 2 or up < 4))
                if on: a(h[0])
                for it in slots.get((u, k), []): emit_item(it)
                for x in groups[k][:2]: a(x)
                if on: a(h[1])
                for x in groups[k][2:]: a(x)
                continue
            if on: a(M[k])
            for it in slots.get((u, k), []): emit_item(it)
            for x in groups[k]: a(x)
    emit_item(tail63[1])
    a(mfma32(ar(48,16), vr(kvs[15]+8,4), vr(P+8,4), ar(48,16)))
    emit_item(tail63[2])
    a(mfma32(ar(48,16), vr(kvs[15]+12,4), vr(P+12,4), ar(48,16)))
    emit_item(tail63[3])
    for q in range(4): emit_item(redw(2, q))
    a.label("KB_red")
    nstamp(a, "red")
    AUG, BAUG, RS = 32, 40, 16
    def w2base(u): return 32 + 2*u
    NST = OPT.get('nst', 16)
    def w2reg(q):
        if q < 8: return ar(224+4*q, 4)
        if q < 8 + NST: return w1reg(28 - NST + q - 8)
        j = q - 8 - NST
        return w1reg(28 + j) if j < 28 else w1reg(j - 28)
    def w2_item(q):
        u, ks = divmod(q, 16)
        b = w2base(u)
        return [("v", f"global_load_dwordx4 {w2reg(q)}, v{VOFF[ks//8]}, s[{b}:{b+1}] offset:{1024*(ks%8) - 4096}{WS}", f"w2_{q}")]
    def st_item(i):
        it = [("s", f"s_add_u32 m0, s60, {4096*(i//4)}")]
        d = {4: 4096, 8: 112*1024 - 12288, 12: 4096}.get(i)
        if d: it += [("s", f"s_add_u32 s70, s70, {d}"), ("s", "s_addc_u32 s71, s71, 0")]
        else: it += [("s", "s_nop 0")]
        return it + [("v", f"global_load_lds_dwordx4 v1, s[70:71] offset:{1024*(i%4)}{WS}", f"st{i}")]
    aug_items = [[("v", f"global_load_dwordx4 {vr(AUG+4*k,4)}, v8, s[{96+2*k}:{97+2*k}] sc1", f"aug{k}")] for k in range(2)]
    early = [w1_item(i) for i in range(NW1A, 56)] + [st_item(i) for i in range(NST)]
    after = aug_items + [w2_item(q) for q in range(8)]
    def bulk(n, allow_after=False):
        out = []
        for _ in range(n):
            src = after if allow_after and after and not any(x[-1][2].startswith("w1_") for x in early) else early
            if not src: src = after if allow_after else []
            if src: out += src.pop(0)
        return out
    def nve(items): return sum(1 for x in items if x[0] == "v")
    fences = []
    def signal(off, lab, items):
        m0now[0] = None
        for it in items: emit_item(it)
        k = nve(items)
        a(f"s_waitcnt vmcnt({k})"); vm.q = vm.q[len(vm.q)-k:] if k else []
        a("s_cmp_eq_u32 s68, 0")
        a(f"s_cbranch_scc1 {lab}_fence")
        a("s_mov_b64 exec, 1")
        V(f"global_store_byte v10, v11, s[66:67] offset:{off}", "sig")
        a("s_mov_b64 exec, -1")
        a.label(f"{lab}_done")
        fences.append(("sig", off, lab, []))
    def poll(off, lab, items):
        a("s_mov_b32 s52, 0")
        a("s_cmp_eq_u32 s68, 0")
        a(f"s_cbranch_scc1 {lab}_fence")
        m0now[0] = None
        if items:
            V(f"global_load_dword v31, v30, s[66:67] offset:{off} sc1", "poll")
            for it in items: emit_item(it)
            if off == F_O and OPT.get("it", 1):
                for w in range(3):
                    a(f"s_cmp_eq_u32 s3, {w}")
                    a(f"s_cbranch_scc1 KB_CHAIN{w}")
                a("s_branch KB_CHAIN3")
                a.label("KB_tret")
            WV("poll")
            a("v_cmp_ne_u32 vcc, 0x01010101, v31")
            a(f"s_cbranch_vccz {lab}_done")
        else: vm.clear()
        a.label(f"{lab}_loop")
        a(f"global_load_dword v31, v30, s[66:67] offset:{off} sc1")
        a("s_add_u32 s52, s52, 1")
        a("s_waitcnt vmcnt(0)")
        a("v_cmp_ne_u32 vcc, 0x01010101, v31")
        a(f"s_cbranch_vccz {lab}_done")
        a(f"s_cmp_lt_u32 s52, {SPIN_LIMIT}")
        a(f"s_cbranch_scc1 {lab}_loop")
        a.label(f"{lab}_done")
        fences.append(("poll", off, lab, items))
        m0now[0] = None
        if STAMPS and f"cnt{off}" in STAMP_SET: a(f"s_mov_b32 s{72 + 2*(1 + STAMP_SET.index(f'cnt{off}'))}, s52")
    a("s_mul_i32 s53, s3, 12288")
    a("v_add_u32 v10, s53, v1")
    a("s_mul_i32 s53, s3, 3*112*1024")
    a("s_lshl_b32 s61, s28, 14")
    a("s_add_u32 s53, s53, s61")
    a(f"s_add_u32 s53, s53, {W2F + 4096}")
    add64(32, 8, "s53")
    add64(34, 32, 112*1024)
    add64(36, 34, 112*1024)
    a("s_add_u32 s53, s15, 12")
    a("s_mul_i32 s53, s53, 112*1024")
    a("s_add_u32 s53, s53, s61")
    a(f"s_add_u32 s53, s53, {W2F + 4096}")
    add64(38, 8, "s53")
    add64(70, 32, 4096)
    a("s_lshl_b32 s60, s3, 14")
    a(f"s_add_u32 s60, s60, {L_W2}")
    for i in range(16): a(f"v_accvgpr_read_b32 v{32+i}, a{48+i}")
    a("s_waitcnt lgkmcnt(0)"); lg.clear()
    a("s_barrier")
    for j in range(12): D(f"ds_read_b128 {vr(48+4*j,4)}, v10 offset:{L_RED+1024*j}", f"r{j//4}")
    for it in bulk(OPT.get('wa', 5)): emit_item(it)
    WV("xcc")
    a("s_mov_b32 s68, 1")
    a("v_cmp_ne_u32 vcc, s69, v29")
    if force_fence: a("s_branch KB_xcc")
    else: a("s_cbranch_vccnz KB_xcc")
    a.label("KB_xcc_done")
    a("s_lshl_b32 s53, s5, 2")
    a("s_add_u32 s53, s53, s3")
    a("v_mov_b32 v10, s53")
    a("v_mov_b32 v11, 1")
    for j in range(3):
        WL(f"r{j}")
        for i in range(16): a(f"v_add_f32 v{32+i}, v{32+i}, v{48+16*j+i}")
    a("v_mov_b32 v12, v44")
    a("v_mov_b32 v13, v44")
    a("s_nop 1")
    a("v_permlane32_swap_b32 v12, v13")
    a("s_nop 1")
    a("v_rcp_f32 v13, v13")
    a("s_nop 0")
    for i in range(16): a(f"v_mul_f32 v{32+i}, v{32+i}, v13")
    a("s_cmp_eq_u32 s68, 0")
    for i in range(8): a(f"v_cvt_pk_bf16_f32 v{48+i}, v{32+2*i}, v{33+2*i}")
    a("s_cbranch_scc1 KB_ost_fence")
    for hf in range(2): V(f"global_store_dwordx4 v24, {vr(48+4*hf,4)}, s[20:21] offset:{1024*hf}{SM('osm')}", "ost")
    a.label("KB_ost_done")
    nstamp(a, "ost")
    KA, GA = 96, 112
    WV("xr")
    for u in range(2):
        for i in range(2): a(f"v_permlane32_swap_b32 v{XR+4*u+i}, v{XR+4*u+2+i}")
    a("s_mul_i32 s53, s3, 4096")
    a(f"s_add_u32 s53, s53, {L_XC}")
    a("v_add_u32 v14, s53, v1")
    a("v_xor_b32 v15, 4096, v14")
    for i in range(8):
        a(f"v_lshlrev_b32 v{KA+2*i}, 16, v{XR+i}")
        a(f"v_and_b32 v{KA+2*i+1}, 0xffff0000, v{XR+i}")
    signal(F_O, "KB_sg0", bulk(OPT.get('wb', 6)))
    nstamp(a, "sig0")
    a("s_cmp_eq_u32 s5, 7")
    a("s_cbranch_scc1 KB_m7")
    q_m7 = list(vm.q)
    poll(F_O, "KB_pl0", bulk(OPT.get('wc', 5)))
    nstamp(a, "poll0")
    OB = 32
    for i in range(16): V(f"global_load_dwordx4 {vr(OB+4*i,4)}, v{VOFF[i//8]}, s[22:23] offset:{1024*(i%8) - 4096} sc1", f"ob{i}")
    wd = bulk(OPT.get('wd', 7))
    wdv = []
    while wd:
        k = next(j for j, x in enumerate(wd) if x[0] == "v") + 1
        wdv.append(wd[:k]); wd = wd[k:]
    a("v_min_u32 v30, 24, v30")
    a(f"s_mov_b32 s53, {ONES_BF}")
    a("v_mov_b32 v12, 0")
    a("v_mov_b32 v13, 0")
    NDEF = OPT.get('ndef', 7)
    WV("wo31")
    for k in range(16):
        WV(f"ob{k}")
        a(mfma32(vr(GA,16), woreg(k), vr(OB+4*k,4), "0" if k == 0 else vr(GA,16)))
        if wdv:
            for it in wdv.pop(0): emit_item(it)
        if k < 16 - NDEF: a(mfma32(vr(KA,16), woreg(16+k), vr(OB+4*k,4), vr(KA,16)))
    for it in wdv:
        for x in it: emit_item(x)
    nstamp(a, "wog")
    for j, k in enumerate(range(16 - NDEF, 16)):
        a(mfma32(vr(KA,16), woreg(16+k), vr(OB+4*k,4), vr(KA,16)))
        if j in (1, 2):
            for q in range(2): D(f"ds_write_b128 v14, {vr(GA+8*(j-1)+4*q,4)} offset:{2048*(j-1) + 1024*q}", "xw")
        if j == min(4, NDEF - 1):
            a("s_waitcnt lgkmcnt(0)"); lg.clear()
            a("s_barrier")
            for q in range(4): D(f"ds_read_b128 {vr(32+4*q,4)}, v15 offset:{1024*q}", f"xr{q}")
    a("s_nop 7")
    a("s_nop 2")
    H = 48
    for hf in range(2):
        for q in (2*hf, 2*hf+1):
            WL(f"xr{q}")
            for i in range(4): a(f"v_add_f32 v{KA+4*q+i}, v{KA+4*q+i}, v{32+4*q+i}")
        for i in range(4): a(f"v_cvt_pk_bf16_f32 v{H+4*hf+i}, v{KA+8*hf+2*i}, v{KA+8*hf+2*i+1}")
        V(f"global_store_dwordx4 v26, {vr(H+4*hf,4)}, s[54:55] offset:{1024*hf}{SM('hnm')}", "hst")
    nstamp(a, "hst")
    for i in range(8):
        a(f"v_dot2c_f32_bf16 v12, s53, v{H+i}")
        a(f"v_dot2c_f32_bf16 v13, v{H+i}, v{H+i}")
    a("s_nop 2")
    a("v_mov_b32 v14, v12")
    a("v_mov_b32 v15, v13")
    a("s_nop 0")
    a("v_permlane32_swap_b32 v14, v12")
    a("v_permlane32_swap_b32 v15, v13")
    a("s_mov_b32 exec_hi, 0")
    a("v_add_f32 v12, v12, v14")
    a("v_add_f32 v13, v13, v15")
    V(f"global_store_dwordx2 v27, v[12:13], s[54:55]{SM('hnm')}", "hst")
    a("s_mov_b32 exec_hi, -1")
    signal(F_H, "KB_sg1", bulk(OPT.get('we', 6), True))
    nstamp(a, "sig1")
    T0, A2, A1, HOLD = 24, 48, 80, 144
    accs = {("A",0): A1, ("B",0): A1+16, ("B",1): A1+32, ("A",1): A1+48}
    a("s_lshl_b32 s61, s3, 12")
    a("s_add_u32 s29, s61, 12288")
    a(f"s_add_u32 s30, s61, {H_T1 - 4096}")
    a(f"s_add_u32 s31, s61, {H_T1 + 12288}")
    a("s_cmp_eq_u32 s3, 3")
    a(f"s_cselect_b32 s59, {H_ST}, s61")
    a(f"s_cselect_b32 s29, {H_ST + 4096}, s29")
    a("s_cmp_eq_u32 s3, 0")
    a("s_cselect_b32 s30, 24576, s30")
    add64(48, 54, "s59")
    add64(50, 54, "s29")
    add64(56, 54, "s30")
    add64(62, 54, "s31")
    a("s_mul_i32 s53, s4, 458752")
    a("s_mul_i32 s58, s5, 3584")
    a("s_add_u32 s53, s53, s58")
    a(f"s_add_u32 s53, s53, {PART}")
    add64(40, 8, "s53")
    a("s_mul_i32 s58, s14, 28672")
    a("s_lshl_b32 s53, s15, 8")
    a("s_add_u32 s58, s58, s53")
    a("s_add_u32 s58, s58, 3072")
    add64(44, 40, "s58")
    a("s_mul_i32 s58, s3, 768")
    add64(40, 40, "s58")
    add64(42, 40, 28672)
    a("v_lshrrev_b32 v12, 2, v5")
    a("v_mul_u32_u24 v12, 57344, v12")
    a("v_lshl_add_u32 v12, v2, 6, v12")
    a("v_lshl_add_u32 v12, v6, 4, v12")
    if OPT.get('tch', 0) or OPT.get('npl', 0):
        a("v_and_b32 v22, 7, v0")
        a("v_mul_u32_u24 v22, 57344, v22")
        a("v_lshrrev_b32 v21, 3, v0")
        a("v_lshl_add_u32 v22, v21, 7, v22")
    a("s_lshl_b32 s53, s3, 11")
    a(f"s_add_u32 s53, s53, {L_ACT}")
    a("v_add_u32 v13, s53, v1")
    a(f"v_add_u32 v14, {L_ACT}, v1")
    a("s_lshl_b32 s53, s14, 14")
    a("v_add_u32 v15, s53, v14")
    a("v_add_u32 v18, s60, v1")
    a("v_mul_u32_u24 v19, 1792, v2")
    a("v_lshl_add_u32 v19, v5, 3, v19")
    a(f"v_lshlrev_b32 v20, 2, v5")
    a(f"v_add_u32 v20, {H_ST + 3584}, v20")
    a("s_lshl_b32 s53, s5, 2")
    a("s_or_b32 s53, s53, s3")
    a("s_cmp_eq_u32 s53, 0")
    a("s_cselect_b32 s46, -1, 0")
    a("s_mov_b32 s47, 0")
    a(f"s_mov_b32 s58, {hexf(math.sqrt(0.5))}")
    nstamp(a, "pl1")
    poll(F_H, "KB_pl1", bulk(OPT.get('wf', 5), True))
    nstamp(a, "poll1")
    def dma_items(q):
        g = q // 4
        m = f"s_mov_b32 m0, s{(59, 29, 30, 31)[g]}"
        b = (48, 50, 56, 62)[g]
        return [("s", m), ("s", "s_nop 0"), ("v", f"global_load_lds_dwordx4 v1, s[{b}:{b+1}] offset:{1024*(q%4)} sc1", f"hn{q}")]
    NDM = OPT.get('ndm', 8)
    for q in range(NDM):
        for it in dma_items(q): emit_item(it)
    G0 = 116
    NM = G0 + 112
    pre = {i: [] for i in range(NM + 1)}
    post = {i: [] for i in range(NM)}
    mf = []
    hold = lambda ks: vr(HOLD+4*ks, 4)
    for X, tt in (("A",0), ("B",0), ("B",1), ("A",1)):
        d = vr(accs[(X,tt)], 16)
        for ks in range(28): mf.append(mfma32(d, w1reg(ks + (28 if X == "B" else 0)), hold(ks), "0" if ks == 0 else d))
        mf.append(mfma32(d, vr(AUG + (4 if X == "B" else 0), 4), vr(BAUG + 4*tt, 4), d))
    act0 = lambda ks: vr(HOLD+4*ks, 4)
    act1 = lambda ks: vr(HOLD+64+4*ks, 4) if ks < 12 else vr(A1+4*(ks-12), 4)
    ring = lambda ks: vr(A1+16+4*(ks & 7), 4)
    acc2 = lambda ui: (A2, A2 + 16, AUG)[ui % 3]
    units = [(0, act0, 40, 0), (1, act0, 40, 1), (2, act0, 40, 2), (3, ring, 44, 0), (0, act1, 42, 0), (1, act1, 42, 1), (2, act1, 42, 2)]
    for ui, (u, breg, sb_, no) in enumerate(units):
        d = vr(acc2(ui), 16)
        for ks in range(16): mf.append(mfma32(d, w2reg(16*u+ks), breg(ks), "0" if ks == 0 else d))
    AHEAD = 4
    rd0 = lambda ks: ("d", f"ds_read_b128 {hold(ks)}, v1 offset:{L_HN + 1024*ks}", f"h0_{ks}")
    rd1 = lambda ks: ("d", f"ds_read_b128 {hold(ks)}, v1 offset:{L_HN + H_T1 + 1024*ks}", f"h1_{ks}")
    ST = A2
    rds = lambda tt, i: ("d", f"ds_read_b64 {vr(ST+16*tt+2*i,2)}, v19 offset:{L_HN + H_ST + 4096*tt + 256*i}", f"s{tt}")
    pre[0] += [("wv", "hn3"), ("s", "s_barrier")] + [rd0(ks) for ks in range(AHEAD)] + [rds(0, i) for i in range(7)]
    for ks in range(28):
        if ks + AHEAD == 12: post[ks] += [("wv", "hn7"), ("s", "s_barrier")]
        if ks + AHEAD == 24: post[ks] += [("wv", "hn11"), ("s", "s_barrier")]
        if ks + AHEAD < 28: post[ks].append(rd0(ks + AHEAD))
        if ks < 2 or ks % 2 == 0: pre[ks].append(("wl", f"h0_{ks if ks < 2 else ks + 1}"))
        pre[ks].append(("wv", f"w1_{ks}"))
    for q in range(NDM, 16): post[1 + (q-NDM)] += dma_items(q)
    k = 2 + (16 - NDM)
    while early or after:
        post[k] += bulk(1, True); k += 2
    assert k < 58, k
    pre[28].append(("wv", "aug0"))
    pre[57].append(("wv", "aug1"))
    post[40] += [("wv", "hn15"), ("s", "s_barrier")]
    for ks in range(28):
        pre[29+ks].append(("wv", f"w1_{28+ks}"))
        post[29+ks].append(rd1(ks))
    for i in range(7): post[9 + i].append(rds(1, i))
    for ks in range(0, 28, 4): pre[58+ks].append(("wl", f"h1_{min(ks+3, 27)}"))
    nd = 56 - NST
    for j in range(nd):
        if j >= OPT.get('skipw2', 0): post[OPT.get('w20', 58) + j*OPT.get('w2n', 5)//2] += w2_item(8 + NST + j)
    for i in range(NST):
        k = 87 + 28 - NST + i + 2
        post[k] += [("wv", f"st{min(i | 3, NST - 1)}"), ("d", f"ds_read_b128 {w2reg(8+i)}, v18 offset:{1024*i}", f"sr{i}")]
        if i % 4 == 0: pre[G0+8+i].append(("wl", f"sr{min(i + 3, NST - 1)}"))
    for q in range(0, 64, 2): pre[G0+q].append(("wv", f"w2_{q+1}"))
    def stat_items(tt, start):
        b = ST + 16*tt; o = BAUG + 4*tt
        L = [("wl", f"s{tt}", start)]
        X = []
        for d_, s_ in ((0, 1), (2, 3), (4, 5), (0, 2), (4, 6), (0, 4)):
            X += [f"v_add_f32 v{b+2*d_+e}, v{b+2*d_+e}, v{b+2*s_+e}" for e in range(2)]
        X += [f"v_mov_b32 v{b+2}, v{b}", f"v_mov_b32 v{b+3}, v{b+1}", "s_nop 0",
              f"v_permlane32_swap_b32 v{b+2}, v{b}", f"v_permlane32_swap_b32 v{b+3}, v{b+1}", "s_nop 0",
              f"v_add_f32 v{b}, v{b}, v{b+2}", f"v_add_f32 v{b+1}, v{b+1}, v{b+3}",
              f"v_mul_f32 v{b}, {hexf(-1.0/448)}, v{b}", f"v_mul_f32 v{b+1}, {hexf(1.0/448)}, v{b+1}",
              f"v_fma_f32 v{b+1}, -v{b}, v{b}, v{b+1}", f"v_cvt_pk_bf16_f32 v{o+1}, v{b}, v{b}",
              f"v_max_f32 v{b+1}, 0, v{b+1}", f"v_lshlrev_b32 v{b+2}, 16, v{o+1}",
              f"v_add_f32 v{b+1}, {hexf(1e-5)}, v{b+1}", f"v_sub_f32 v{b+3}, v{b}, v{b+2}",
              f"v_rsq_f32 v{RS+tt}, v{b+1}", f"v_cvt_pk_bf16_f32 v{o}, v{b+2}, v{b+3}",
              f"v_cvt_pk_bf16_f32 v{o+2}, v{b+3}, v{b+2}", f"v_mul_f32 v{b+1}, v{b+1}, v{RS+tt}",
              f"v_mul_f32 v{RS+tt}, {hexf(LOG2E)}, v{RS+tt}", f"v_cvt_pk_bf16_f32 v{b+2}, v{b+1}, v{b+1}",
              f"v_lshlrev_b32 v{b+2}, 16, v{b+2}", f"v_sub_f32 v{b+3}, v{b+1}, v{b+2}",
              f"v_cvt_pk_bf16_f32 v{o+3}, v{b+2}, v{b+3}", f"v_cndmask_b32 v{o+3}, v{o+3}, 0, s[64:65]", "s_nop 1"]
        pub = [("s", "s_mov_b64 exec, s[46:47]", start), ("v", f"global_store_dword v20, v{RS+tt}, s[54:55] offset:{128*tt}", start), ("s", "s_mov_b64 exec, -1", start)]
        return L + [("s", x, start) for x in X] + [("mark", f"st{tt}", 0)] + [("grp", pub, start)]
    def mish_items(X, tt, start):
        x0 = accs[(X,tt)]; pk = x0
        L = []
        for g in range(4):
            t = T0 + 4*(g & 1); x = x0 + 4*g
            L += [f"v_fma_f32 v{t+i}, v{x+i}, v{RS+tt}, -0.5" for i in range(4)]
            L += [f"v_exp_f32 v{t+i}, v{t+i}" for i in range(4)]
            L += [f"v_add_f32 v{t+i}, s58, v{t+i}" for i in range(4)]
            L += [f"v_fma_f32 v{t+i}, -v{t+i}, v{t+i}, -0.5" for i in range(4)]
            L += [f"v_rcp_f32 v{t+i}, v{t+i}" for i in range(4)]
            L += [f"v_fmac_f32 v{x+i}, v{x+i}, v{t+i}" for i in range(4)]
            L += [f"v_cvt_pk_bf16_f32 v{pk+2*g+i}, v{x+2*i}, v{x+2*i+1}" for i in range(2)]
        it = [("s", x, start) for x in L]
        off = tt*16384 + (8192 if X == "B" else 0)
        it += [("d", f"ds_write_b128 v13, {vr(pk+4*hf,4)} offset:{off + 1024*hf}", start) for hf in range(2)]
        return it
    fill = stat_items(0, 3) + stat_items(1, 18) + mish_items("A", 0, 31) + mish_items("B", 0, 60)
    fill += [("bar", "b1", 0)]
    fill += mish_items("B", 1, 89) + mish_items("A", 1, 118)
    fill += [("bar", "b2", 0)]
    rda = lambda reg, addr, tt, ks, tag: ("d", f"ds_read_b128 {reg}, {addr} offset:{16384*tt + 1024*ks}", tag)
    need_pre = {28: "st0", 86: "st1"}
    need_post = {G0 - 11: "b1", G0 + 43: "b2"}
    for ks in range(16):
        post[G0 - 11 + ks].append(rda(act0(ks), "v14", 0, ks, f"a0_{ks}"))
        post[G0 + 43 + ks].append(rda(ring(ks), "v15", 0, ks, f"am_{ks}"))
        post[G0 + 49 + ks].append(rda(act1(ks), "v14", 1, ks, f"a1_{ks}"))
        if ks % 2 == 0:
            pre[G0+ks].append(("wl", f"a0_{ks+1}"))
            pre[G0+48+ks].append(("wl", f"am_{ks+1}"))
            pre[G0+64+ks].append(("wl", f"a1_{ks+1}"))
    outq = []
    for ui, (u, breg, sb_, no) in enumerate(units):
        d = acc2(ui); pk = d
        L = []
        for hf in range(2):
            p4 = pk + 4*hf
            L += [("s", f"v_cvt_pk_bf16_f32 v{p4+i}, v{d+8*hf+2*i}, v{d+8*hf+2*i+1}") for i in range(4)]
            L += [("v", f"global_store_dwordx4 v12, {vr(p4,4)}, s[{sb_}:{sb_+1}] offset:{256*no + 128*hf}{SM('pm') if ui < 7 - OPT.get('npl', 0) else ''}", "pst")]
        outq.append((max(G0 + 16*ui + 18, G0 + (OPT.get('o0', 36), 46)[ui] if ui < 2 else 0), L, G0 + 16*ui + 46))
    for ui in range(OPT.get('tch', 0)):
        u, breg, sb_, no = units[ui]
        i = G0 + [OPT.get('t0', 64), OPT.get('t1', 72), OPT.get('t2', 80), OPT.get('t3', 92), OPT.get('t4', 104), OPT.get('t5', 111)][ui]
        post[i] += [("s", "s_mov_b64 exec, 0xffff"), ("v", f"global_load_dword v21, v22, s[{sb_}:{sb_+1}] offset:{256*no} sc1", "tch"), ("s", "s_mov_b64 exec, -1")]
    NPL = OPT.get('npl', 0)
    if NPL and not OPT.get('pta', 0):
        n1 = min(NPL, 3)
        post[OPT.get('pt0', 20)] += [("s", f"s_bfm_b64 exec, {16*n1}, 0"), ("v", f"global_load_dword v21, v22, s[42:43] offset:{256*(3 - n1)} sc1", "tch"), ("s", "s_mov_b64 exec, -1")]
        if NPL > 3: post[OPT.get('pt0', 20) + 6] += [("s", "s_mov_b64 exec, 0xffff"), ("v", "global_load_dword v21, v22, s[44:45] sc1", "tch"), ("s", "s_mov_b64 exec, -1")]
        if NPL > 4:
            n1 = NPL - 4
            post[OPT.get('pt0', 20) + 12] += [("s", f"s_bfm_b64 exec, {16*n1}, 0"), ("v", f"global_load_dword v21, v22, s[40:41] offset:{256*(3 - n1)} sc1", "tch"), ("s", "s_mov_b64 exec, -1")]
    done = set()
    fq = list(fill); cur = [0]
    def emit_fill(it):
        if it[0] == "bar":
            a("s_waitcnt lgkmcnt(0)"); lg.clear()
            a("s_barrier"); done.add(it[1]); print("note: barrier", it[1], "after MFMA", cur[0])
            return 8
        if it[0] == "mark":
            done.add(it[1]); print("note:", it[1], "complete after MFMA", cur[0])
            return 0
        if it[0] == "wl":
            WL(it[1]); return 0
        if it[0] == "grp":
            for x in it[1]:
                if x[0] == "v": V(x[1], "pub")
                else: a(x[1])
            return 16
        if it[0] == "d": D(it[1])
        else: a(it[1])
        return cost(it[1])
    credit = 0.0
    lastw = [-9]
    def flush(tag, i):
        c = 0
        while tag not in done: c += emit_fill(fq.pop(0))
        if c: print(f"note: {c:.0f} cycles of vector work flushed at MFMA {i}")
        return c
    for i in range(NM):
        cur[0] = i
        assert not outq or i < outq[0][2], i
        if i in need_pre: credit -= flush(need_pre[i], i)
        n0 = len(a.L)
        for it in pre[i]: emit_item(it)
        if OPT.get("m16f"):
            kk = i % 29 if i < G0 else (i - G0) % 16
            hh = split16(mf[i], (kk & 1, kk < 2))
            a(hh[0]); n1 = len(a.L)
        else: a(mf[i])
        if i in need_post: credit -= flush(need_post[i], i); n0 = len(a.L) - 1
        for it in post[i]: emit_item(it)
        nmem = 0
        credit = max(min(credit, 0), -12) + OPT.get('cr', 31)
        for ln in a.L[n0:]:
            if ln.split()[0].startswith(("ds_", "global_")):
                credit -= 10 if nmem else 4; nmem += 1
            else: credit -= 4
        nstamp(a, f"m{i}")
        while outq and outq[0][0] <= i and credit > 0:
            L = outq[0][1]
            it = L.pop(0); emit_item(it); credit -= cost(it[1])
            if not L: outq.pop(0)
        while fq and credit > 0:
            k = 0
            if fq[0][0] == "bar" and i < lastw[0] + OPT.get('bd', 3):
                k = 1
                if len(fq) < 2: break
            if not (fq[k][0] in ("bar", "mark") or fq[k][2] <= i): break
            if fq[k][0] == "d": lastw[0] = i
            credit -= emit_fill(fq.pop(k))
        if OPT.get("m16f"):
            tail = a.L[n1:]
            k = 0; c = 0
            while k < len(tail) and c < 10 and not tail[k].strip().startswith(("s_barrier", "s_mov_b64")):
                c += cost(tail[k].strip()); k += 1
            a.L.insert(n1 + k, "    " + hh[1])
    assert not fq, len(fq)
    a("s_nop 7")
    a("s_nop 3")
    for _, L, _ in outq:
        for it in L: emit_item(it)
    nstamp(a, "g2end")
    signal(F_P1, "KB_sg2", [])
    nstamp(a, "sig2")
    a.label("KB_fin")
    R, SUM, HR, HF32 = 144, 80, 200, 96
    a("s_mul_i32 s53, s4, 458752")
    a("s_mul_i32 s52, s5, 57344")
    a("s_add_u32 s53, s53, s52")
    a("s_lshl_b32 s52, s3, 10")
    a("s_add_u32 s53, s53, s52")
    a(f"s_add_u32 s53, s53, {PART + 3584}")
    add64(32, 8, "s53")
    for k in range(1, 5): add64(32 + 2*k, 30 + 2*k, 3*3584)
    a("s_lshl_b32 s53, s3, 13")
    a("s_lshl_b32 s52, s5, 6")
    a("s_add_u32 s53, s53, s52")
    add64(42, 54, "s53")
    add64(44, 42, H_T1)
    for i in range(16): a(f"v_mov_b32 v{SUM+i}, 0")
    a("v_lshrrev_b32 v13, 3, v0")
    a("v_bfe_u32 v14, v0, 2, 1")
    a("v_lshlrev_b32 v15, 10, v13")
    a("v_lshl_add_u32 v15, v14, 9, v15")
    a("v_lshl_add_u32 v15, v6, 4, v15")
    a("v_mul_u32_u24 v12, 896, v6")
    a("v_lshl_add_u32 v12, v13, 5, v12")
    a("v_lshl_add_u32 v12, v14, 4, v12")
    a("s_mul_i32 s60, s6, 8*896")
    a("s_lshl_b32 s61, s3, 8")
    a("s_add_u32 s60, s60, s61")
    a("s_mov_b32 s62, 0x00003f80")
    a("s_mov_b32 s63, 0x3f800000")
    a("s_lshl_b32 s61, s5, 4")
    a(f"s_add_u32 s61, s61, {H_ST + 3584}")
    a("v_lshl_add_u32 v16, v6, 2, s61")
    a("s_cmp_eq_u32 s3, 3")
    a("s_cselect_b32 s59, 0, -1")
    a("v_and_b32 v30, 7, v0")
    a("v_min_u32 v30, 6, v30")
    a("v_lshlrev_b32 v30, 2, v30")
    nstamp(a, "pl2")
    poll(F_P1, "KB_pl2", [])
    nstamp(a, "poll2")
    vm.clear(); vm.issue("older")
    if OPT.get('m3', 0): a("s_mov_b32 exec_hi, s59")
    for tt in range(2):
        V(f"global_load_dword v{18+tt}, v16, s[54:55] offset:{128*tt} sc1", f"hr{tt}")
        V(f"global_load_dwordx4 {vr(HR+4*tt,4)}, v15, s[{42+2*tt}:{43+2*tt}] sc1", f"hr{tt}")
        for p in range(7):
            k, r = divmod(8*tt + p, 3)
            V(f"global_load_dwordx4 {vr(R+28*tt+4*p,4)}, v1, s[{32+2*k}:{33+2*k}] offset:{3584*(r-1)} sc1", f"p{tt}{p}")
    for tt in range(2):
        WV(f"hr{tt}")
        nstamp(a, f"fh{tt}")
        a(f"v_mul_f32 v{18+tt}, {hexf(LN2F)}, v{18+tt}")
        for i in range(4):
            a(f"v_lshlrev_b32 v{HF32+8*tt+2*i}, 16, v{HR+4*tt+i}")
            a(f"v_and_b32 v{HF32+8*tt+2*i+1}, 0xffff0000, v{HR+4*tt+i}")
        for p in range(7):
            WV(f"p{tt}{p}")
            nstamp(a, f"fp{tt}{p}")
            for i in range(4):
                a(f"v_dot2c_f32_bf16 v{SUM+8*tt+2*i}, s62, v{R+28*tt+4*p+i}")
                a(f"v_dot2c_f32_bf16 v{SUM+8*tt+2*i+1}, s63, v{R+28*tt+4*p+i}")
        a("s_nop 2")
        b = 32 + 4*tt
        for i in range(8): a(f"v_fmac_f32 v{HF32+8*tt+i}, v{18+tt}, v{SUM+8*tt+i}")
        for i in range(4): a(f"v_cvt_pk_bf16_f32 v{b+i}, v{HF32+8*tt+2*i}, v{HF32+8*tt+2*i+1}")
        a(f"v_mov_b32 v40, v{b+2}")
        a(f"v_mov_b32 v41, v{b+3}")
        a("s_nop 0")
        a(f"v_mov_b32_dpp v{b+2}, v{b} row_shl:4 row_mask:0xf bank_mask:0x5")
        a(f"v_mov_b32_dpp v{b+3}, v{b+1} row_shl:4 row_mask:0xf bank_mask:0x5")
        a(f"v_mov_b32_dpp v{b}, v40 row_shr:4 row_mask:0xf bank_mask:0xa")
        a(f"v_mov_b32_dpp v{b+1}, v41 row_shr:4 row_mask:0xf bank_mask:0xa")
        if not OPT.get('m3', 0): a("s_mov_b32 exec_hi, s59")
        a(f"buffer_store_dwordx4 {vr(b,4)}, v12, s[24:27], s60 offen offset:{3584*tt}{SM('om')}")
        if tt == 0 and not OPT.get('m3', 0): a("s_mov_b32 exec_hi, -1")
    fin(a, 1, 8)
    a.label("KB_end")
    a("s_endpgm")

    a.label("KB_m7")
    a("v_lshlrev_b32 v12, 7, v0")
    a("v_mov_b32 v13, 0")
    a("s_cmp_eq_u32 s4, 0")
    a("s_cselect_b64 exec, 3, 0")
    a("global_store_dword v12, v13, s[92:93] sc0 sc1")
    a("s_mov_b64 exec, -1")
    a("s_and_b32 s53, s4, 3")
    a("s_lshl_b32 s53, s53, 2")
    a("s_add_u32 s53, s53, s3")
    a("s_mul_i32 s53, s53, 100352")
    a(f"s_add_u32 s53, s53, {W2F}")
    add64(56, 8, "s53")
    sh = OPT.get('m7s', 7)
    a(f"v_lshlrev_b32 v12, {sh}, v0")
    for k in range(13 << (7 - sh) if OPT.get('m7w', 1) else 0):
        a(f"global_load_dword v4, v12, s[56:57]{WS}")
        add64(56, 56, 64 << sh)
    if OPT.get('m7t', 0):
        a("s_mul_i32 s53, s4, 458752")
        a("s_mul_i32 s52, s3, 114688")
        a("s_add_u32 s53, s53, s52")
        a(f"s_add_u32 s53, s53, {PART}")
        add64(56, 8, "s53")
        for k in range(14):
            a("global_load_dword v4, v12, s[56:57] sc1")
            add64(56, 56, 8192)
    if OPT.get('m7wb', 0):
        a("s_cmp_eq_u32 s3, 0")
        a("s_cbranch_scc0 KB_fin")
        a("v_min_u32 v30, 24, v30")
        a("s_mov_b32 s52, 0")
        a.label("KB_m7p")
        a(f"global_load_dword v31, v30, s[66:67] offset:{F_H} sc1")
        a("s_add_u32 s52, s52, 1")
        a("s_waitcnt vmcnt(0)")
        a("v_cmp_ne_u32 vcc, 0x01010101, v31")
        a("s_cbranch_vccz KB_m7q")
        a(f"s_cmp_lt_u32 s52, {SPIN_LIMIT}")
        a("s_cbranch_scc1 KB_m7p")
        a.label("KB_m7q")
        a("buffer_wbl2 sc1")
        a("s_waitcnt vmcnt(0)")
    a("s_branch KB_fin")

    a.label("KB_xcc")
    a("s_mov_b32 s68, 0")
    a("s_branch KB_xcc_done")
    a.label("KB_ost_fence")
    for hf in range(2): a(f"global_store_dwordx4 v24, {vr(48+4*hf,4)}, s[20:21] offset:{1024*hf} sc0 sc1")
    a("s_branch KB_ost_done")
    for kind, off, lab, items in fences:
        a.label(f"{lab}_fence")
        if kind == "sig":
            a("buffer_wbl2 sc1")
            a("s_waitcnt vmcnt(0)")
            a("s_mov_b64 exec, 1")
            a(f"global_store_byte v10, v11, s[66:67] offset:{off} sc0 sc1")
            a("s_mov_b64 exec, -1")
            a(f"s_branch {lab}_done")
            continue
        for it in items: a(it[1])
        a.label(f"{lab}_floop")
        a(f"global_load_dword v31, v30, s[66:67] offset:{off} sc0 sc1")
        a("s_add_u32 s52, s52, 1")
        a("s_waitcnt vmcnt(0)")
        a("v_cmp_ne_u32 vcc, 0x01010101, v31")
        a(f"s_cbranch_vccz {lab}_fdone")
        a(f"s_cmp_lt_u32 s52, {SPIN_LIMIT}")
        a(f"s_cbranch_scc1 {lab}_floop")
        a.label(f"{lab}_fdone")
        a("buffer_inv sc1")
        a("s_waitcnt vmcnt(0) lgkmcnt(0)")
        a(f"s_branch {lab}_done")

    a.label("KB_wspin")
    a("s_mov_b32 s68, 0")
    a.label("KB_wspin_loop")
    a(wpoll)
    a("s_add_u32 s68, s68, 1")
    a("s_waitcnt vmcnt(0)")
    for x in wtest: a(x)
    a("s_cbranch_vccz KB_wspin_done")
    a(f"s_cmp_lt_u32 s68, {SPIN_LIMIT}")
    a("s_cbranch_scc1 KB_wspin_loop")
    a("s_branch KB_wspin_done")
    a.label("P1_ack")
    a("s_mov_b32 s68, 0")
    a.label("P1_ack_loop")
    a(f"global_load_dword v{ACK}, v{CLO}, s[92:93] offset:{D_CLR} sc1")
    a("s_add_u32 s68, s68, 1")
    a("s_waitcnt vmcnt(0)")
    a(f"v_cmp_ne_u32 vcc, 0x01010101, v{ACK}")
    a("s_cbranch_vccz P1_ack_done")
    a(f"s_cmp_lt_u32 s68, {SPIN_LIMIT}")
    a("s_cbranch_scc1 P1_ack_loop")
    a("s_branch P1_ack_done")
    a.label("P1_far")
    a("s_lshl_b32 s53, s4, 3")
    a("s_and_b32 s68, s3, 2")
    a("s_lshl_b32 s68, s68, 1")
    a("s_add_u32 s53, s53, s68")
    a("s_lshl_b32 s53, s53, 13")
    a(f"s_add_u32 s53, s53, {QF2}")
    a("s_cmp_eq_u32 s5, 0")
    a("s_cbranch_scc1 P1_far_f")
    for q in range(4): a(f"buffer_store_dwordx2 {vr(48+2*q,2)}, v{132+q}, s[16:19], s53 offen sc0 sc1")
    a.label("P1_far_f")
    a("v_mov_b32 v18, 1")
    a("s_waitcnt vmcnt(0)")
    a("s_mov_b64 exec, 1")
    a(f"global_store_byte v16, v18, s[66:67] offset:{F_M} sc0 sc1")
    a("s_mov_b64 exec, -1")
    a("s_mov_b32 s68, 0")
    a.label("P1_far_l")
    a(pollL)
    a(f"global_load_dword v18, v30, s[66:67] offset:{F_M} sc0 sc1")
    a("s_add_u32 s68, s68, 1")
    a("s_waitcnt vmcnt(0)")
    if not force_fence:
        a("v_cmp_ne_u32 vcc, s69, v29")
        a("s_cbranch_vccz P1_l_done")
    a("v_cmp_ne_u32 vcc, 0x01010101, v18")
    a("s_cbranch_vccz P1_far_d")
    a(f"s_cmp_lt_u32 s68, {SPIN_LIMIT}")
    a("s_cbranch_scc1 P1_far_l")
    a.label("P1_far_d")
    for t in range(4): a(f"s_add_u32 s{58+t}, s{58+t}, {QF2 - QF}")
    a("s_branch P1_l_done")
    a.label("P1_aug")
    a(f"v_add_u32 v28, {K1_RP}, v8")
    for w in range(4): a(f"ds_read_b32 v{CP+w}, v28 offset:{256*w}")
    a(f"v_mul_u32_u24 v29, {W1S}, v2")
    a("v_lshl_add_u32 v29, v5, 4, v29")
    a("s_and_b32 s63, s62, 1")
    a("s_mul_i32 s53, s63, 6")
    a("s_add_u32 s53, s53, s71")
    a(f"v_lshl_or_b32 v{BIA}, v{BIA}, 16, v{BIA}")
    a("s_cmp_eq_u32 s62, 0")
    a("s_cselect_b32 s70, -1, 0")
    a(f"v_and_b32 v{BIA}, s70, v{BIA}")
    a("s_waitcnt lgkmcnt(0)")
    a(f"v_add_f32 v{CP}, v{CP}, v{CP+1}")
    a(f"v_add_f32 v{CP+2}, v{CP+2}, v{CP+3}")
    a(f"v_and_b32 v{CP}, s90, v{CP}")
    a(f"v_and_b32 v{CP+2}, s91, v{CP+2}")
    a(f"v_add_f32 v{CP}, v{CP}, v{CP+2}")
    a(f"v_cvt_pk_bf16_f32 v{CP+1}, v{CP}, v{CP}")
    a(f"v_lshlrev_b32 v{CP+2}, 16, v{CP+1}")
    a(f"v_sub_f32 v{CP+2}, v{CP}, v{CP+2}")
    a(f"v_cvt_pk_bf16_f32 v{CP+2}, v{CP+2}, v{CP+2}")
    a(f"buffer_store_short v{CP+1}, v29, s[16:19], s53 offen sc1")
    a(f"buffer_store_short v{CP+1}, v29, s[16:19], s53 offen offset:2 sc1")
    a(f"buffer_store_short v{CP+2}, v29, s[16:19], s53 offen offset:4 sc1")
    a("s_cmp_eq_u32 s63, 0")
    a("s_cbranch_scc0 P1_aug_done")
    a(f"buffer_store_dword v{BIA}, v29, s[16:19], s71 offen offset:12 sc1")
    a("s_branch P1_aug_done")
    a.label("KB_slow")
    vm.q = list(vm_at_slow)
    if WSL:
        a("s_waitcnt vmcnt(0)")
        for it in wflag: a(it[1])
    a("s_mov_b32 s68, 0")
    a.label("KB_slow_w")
    a(wpoll)
    a("s_add_u32 s68, s68, 1")
    a("s_waitcnt vmcnt(0)"); vm.clear()
    for x in wtest: a(x)
    a("s_cbranch_vccz KB_slow_wd")
    a(f"s_cmp_lt_u32 s68, {SPIN_LIMIT}")
    a("s_cbranch_scc1 KB_slow_w")
    a.label("KB_slow_wd")
    for k, it in enumerate([x for f in pref for x in f] + xr + late):
        emit_item(it)
        if len(vm.q) >= 32: a("s_waitcnt vmcnt(0)"); vm.clear()
    MX = P + 8
    for t in range(4): a(f"v_mov_b32 v{MX+t}, 0xff800000")
    for i in range(64): a(f"v_accvgpr_write_b32 a{i}, 0")
    a("v_lshlrev_b32 v3, 2, v0")
    a("s_sub_u32 s52, s52, 4096")
    a("s_mov_b32 s61, 0")
    a.label("KB_s1")
    a("s_add_u32 s53, s52, s61")
    for i in range(2): a(f"buffer_load_dwordx4 {vr(KVR+4*i,4)}, v1, s[16:19], s53 offen offset:{1024*i} sc1")
    a("s_waitcnt vmcnt(0)")
    for t in range(4):
        a(mfma32(vr(S,16), vr(KVR,4), vr(Q+8*t,4), "0"))
        a(mfma32(vr(S,16), vr(KVR+4,4), vr(Q+8*t+4,4), vr(S,16)))
        a("s_nop 7")
        a("s_nop 3")
        for i in range(8): a(f"v_max3_f32 v{MX+t}, v{S+2*i}, v{S+2*i+1}, v{MX+t}")
    a("s_add_u32 s61, s61, 4096")
    a("s_cmp_lt_u32 s61, 0x10000")
    a("s_cbranch_scc1 KB_s1")
    for t in range(4):
        half_sum(a, MX+t, 12, "v_max_f32")
        a(f"s_add_u32 s53, s3, {t+1}")
        a("s_and_b32 s53, s53, 3")
        a("s_lshl_b32 s53, s53, 10")
        a("s_lshl_b32 s61, s3, 8")
        a("s_add_u32 s53, s53, s61")
        a("v_add_u32 v12, s53, v3")
        a(f"ds_write_b32 v12, v{MX+t}")
    a("s_waitcnt lgkmcnt(0)")
    a("s_barrier")
    for t in range(4):
        a(f"s_add_u32 s53, s3, {t+1}")
        a("s_and_b32 s53, s53, 3")
        a("s_lshl_b32 s53, s53, 10")
        a("v_add_u32 v12, s53, v3")
        for w in range(4): a(f"ds_read_b32 v{S+w}, v12 offset:{256*w}")
        a("s_waitcnt lgkmcnt(0)")
        a(f"v_max3_f32 v{MX+t}, v{S}, v{S+1}, v{S+2}")
        a(f"v_max_f32 v{MX+t}, v{MX+t}, v{S+3}")
    a("s_barrier")
    a("s_mov_b32 s61, 0")
    a.label("KB_s2")
    a("s_add_u32 s53, s52, s61")
    for i in range(4): a(f"buffer_load_dwordx4 {vr(KVR+4*i,4)}, v1, s[16:19], s53 offen offset:{1024*i} sc1")
    a("s_waitcnt vmcnt(0)")
    for t in range(4):
        a(mfma32(vr(S,16), vr(KVR,4), vr(Q+8*t,4), "0"))
        a(mfma32(vr(S,16), vr(KVR+4,4), vr(Q+8*t+4,4), vr(S,16)))
        a("s_nop 7")
        a("s_nop 3")
        for i in range(16): a(f"v_sub_f32 v{S+i}, v{S+i}, v{MX+t}")
        for i in range(16): a(f"v_exp_f32 v{S+i}, v{S+i}")
        a("s_nop 0")
        for i in range(8): a(f"v_cvt_pk_bf16_f32 v{P+i}, v{S+2*i}, v{S+2*i+1}")
        a("s_nop 1")
        a(mfma32(ar(16*t,16), vr(KVR+8,4), vr(P,4), ar(16*t,16)))
        a(mfma32(ar(16*t,16), vr(KVR+12,4), vr(P+4,4), ar(16*t,16)))
    a("s_add_u32 s61, s61, 4096")
    a("s_cmp_lt_u32 s61, 0x10000")
    a("s_cbranch_scc1 KB_s2")
    a("s_nop 7")
    a("s_nop 3")
    for t in range(3):
        for q in range(4): a(redw(t, q)[1])
    a("s_branch KB_red")
    p1_body(a, "k")
    p1_body(a, "v")
    a.label("KB_code_end")
    return kd(n, 512, 102, 256), f"; @launch grid=(256,1,1) block=(256,1,1) lds={KB_LDS}"


def build(force_slow=False, extra=0, force_fence=False):
    a = Asm()
    parts = [gen_kb(a, force_slow, force_fence)]
    launches = [p[1] for p in parts]
    kds = [p[0] for p in parts]
    if extra:
        header(a, "nop_kernel")
        a("s_endpgm")
        kds.append(kd("nop_kernel", 8, 16, 8))
        launches += ["; @launch kernel=nop_kernel grid=(256,1,1) block=(64,1,1) lds=0"] * extra
    out = "\n".join(launches) + "\n"
    out += '.amdgcn_target "amdgcn-amd-amdhsa--gfx950"\n.text\n'
    out += a.text()
    out += '.section .rodata,"a"\n' + "".join(kds)
    return out

if __name__ == "__main__":
    import argparse
    ap = argparse.ArgumentParser()
    ap.add_argument("-o", default="v2.s")
    ap.add_argument("--slow", action="store_true")
    ap.add_argument("--fence", action="store_true")
    ap.add_argument("--opt", default="")
    ap.add_argument("--extra", type=int, default=0)
    ap.add_argument("--stamps", default="", help="up to six stamp names for the fused kernel")
    args = ap.parse_args()
    for kv in args.opt.split(","):
        if kv:
            k_, _, v_ = kv.partition("=")
            OPT[k_] = int(v_) if v_ else 1
    STAMPS = bool(args.stamps)
    STAMP_SET = args.stamps.split(",")
    import hazard, itouch, re, io, contextlib
    def make():
        txt = build(args.slow, args.extra, args.fence)
        plain = re.sub(r"(K[AB])_CHAIN\d", r"\1_tret", txt)
        txt = re.sub(r"(K[AB])_CHAIN(\d)", r"\1_tret ;chain\1\2", txt)
        for pre, end in (("KA", "KB_tret"), ("KB", "KB_end")):
            if f"{pre}_tret:" not in txt: continue
            txt, nb = itouch.insert(txt, pre, f"{pre}_tret", end, lambda n: [list(range(1 + w, n + 1, 4)) for w in range(4)], f"{pre}_tret")
            ch = [list(range(1 + w, nb + 1, 4)) for w in range(4)]
            txt = re.sub(rf"{pre}_tret ;chain{pre}(\d)", lambda m: f"{pre}_t{ch[int(m.group(1))][0]}" if ch[int(m.group(1))] else f"{pre}_tret", txt)
            print("code blocks touched:", nb)
        L = txt.split("\n"); off = itouch.offsets(txt); k = L.index("KB_red:")
        return plain, txt, off[min(i for i in off if i > k)]
    PAD1[0] = OPT.get("pad1", 0)
    for it in range(4):
        buf = io.StringIO()
        with contextlib.redirect_stdout(buf): plain, txt, red = make()
        d = (OPT["kbo"] - red) % 4096 if "kbo" in OPT else 0
        if d == 0: break
        PAD1[0] = (PAD1[0] + d // 4) % 1024
    print(buf.getvalue(), end="")
    print("hazards:", hazard.check(plain), "waits:", 0 if STAMPS else hazard.waitcheck(plain), "KB_red at", hex(red), "pad", PAD1[0])
    open(args.o, "w").write(txt)
```

```python
import math, struct, sys

NAME = "sequential_preLN__grouped_kv_mqa__dense_activation_mish__prompt"

QF   = 0x000000
KV   = 0x200000
SYNC = 0x240000
WOF  = 0x260000
W1F  = 0x300000
W2F  = 0x500000
OF   = 0x700000
HF   = 0x900000
PART = 0xB00000
QF2  = PART + 32*8*8*7168
WS_SIZE = QF2 + 0x200000
W1S = 29*1024

X_BYTES = 2048*896
WQ_BYTES = 448*896
WK_BYTES = 448*56
W1_BYTES = 448*3584
W2_BYTES = 1792*896

def f2u(f): return struct.unpack("<I", struct.pack("<f", f))[0]
def hexf(f): return "0x%08x" % f2u(f)
LOG2E = math.log2(math.e)
QSCALE = LOG2E / math.sqrt(28.0)
ONES_BF = "0x3f803f80"

class Asm:
    def __init__(self):
        self.L = []
    def __call__(self, s):
        for ln in s.split("\n"):
            ln = ln.strip()
            if ln: self.L.append("    " + ln)
    def label(self, s): self.L.append(s + ":")
    def c(self, s): self.L.append("    ; " + s)
    def text(self): return "\n".join(self.L) + "\n"

def vr(b, n=1): return f"v{b}" if n == 1 else f"v[{b}:{b+n-1}]"
def ar(b, n=1): return f"a{b}" if n == 1 else f"a[{b}:{b+n-1}]"
def sr(b, n=1): return f"s{b}" if n == 1 else f"s[{b}:{b+n-1}]"

def srd(a, d, lo, hi, nbytes):
    a(f"s_mov_b32 s{d}, s{lo}")
    a(f"s_mov_b32 s{d+1}, s{hi}")
    a(f"s_mov_b32 s{d+2}, {nbytes if isinstance(nbytes, str) else hex(nbytes)}")
    a(f"s_mov_b32 s{d+3}, 0x20000")

def header(a, name):
    a.L.append(f".globl {name}")
    a.L.append(".p2align 12")
    if OPT.get("pad", 1): a.L.append(".fill 832, 4, 0xbf800000")
    a.L.append(".p2align 8")
    a.L.append(f".type {name},@function")
    a.label(name)

def kd(name, vgpr, sgpr, accum):
    return f""".p2align 6
.amdhsa_kernel {name}
  .amdhsa_next_free_vgpr {vgpr}
  .amdhsa_next_free_sgpr {max(96, sgpr) if STAMPS else sgpr}
  .amdhsa_accum_offset {accum}
  .amdhsa_group_segment_fixed_size 0
  .amdhsa_kernarg_size 96
  .amdhsa_user_sgpr_count 2
  .amdhsa_user_sgpr_kernarg_segment_ptr 1
  .amdhsa_system_sgpr_workgroup_id_x 1
.end_amdhsa_kernel
"""

STAMPS = False
STAMP_BASE = 0x8000000
def stamp(a, i):
    if STAMPS: a(f"{'s_memtime' if OPT.get('cyc') and 0 < i < 7 else 's_memrealtime'} s[{72+2*i}:{73+2*i}]")
STAMP_SET = []
OPT = {}
def SM(k):
    return {0: '', 1: ' sc1', 2: ' sc0 sc1', 3: ' nt', 4: ' sc1 nt', 5: ' sc0 sc1 nt'}[int(OPT.get(k, {'pm': 1, 'k1m': 1, 'qm': 0}.get(k, 0)))]
def nstamp(a, name):
    if STAMPS and name in STAMP_SET:
        i = 1 + STAMP_SET.index(name)
        a(f"{'s_memtime' if OPT.get('cyc') else 's_memrealtime'} s[{72+2*i}:{73+2*i}]")
def stamp_init(a):
    if STAMPS:
        for i in range(8): a(f"s_mov_b32 s{72+2*i}, 0")
        stamp(a, 0)
        if OPT.get("dbg"): a("s_load_dwordx2 s[92:93], s[0:1], 80")
def fin(a, kidx, wslo):
    if STAMPS and OPT.get("dbg"):
        stamp(a, 7)
        a("s_mov_b64 exec, 0xff")
        a("s_waitcnt lgkmcnt(0)")
        a("s_not_b32 s72, s72")
        a("v_mbcnt_lo_u32_b32 v1, -1, 0")
        for i in range(8):
            a(f"v_mov_b32 v2, s{72+2*i}")
            a(f"v_cmp_eq_u32 vcc, {i}, v1")
            a("v_cndmask_b32 v0, v0, v2, vcc")
        a("v_lshlrev_b32 v1, 2, v1")
        a(f"s_add_u32 s92, s92, {32 if kidx else 512}")
        a("s_addc_u32 s93, s93, 0")
        a("s_and_b32 s90, s2, 31")
        a("s_lshl_b32 s91, s3, 5")
        a("s_or_b32 s90, s90, s91")
        a("s_cmp_eq_u32 s90, 5")
        a("s_cselect_b64 exec, exec, 0")
        a("global_atomic_umax v1, v0, s[92:93]")
    elif STAMPS:
        stamp(a, 7)
        a("s_mov_b64 exec, 1")
        a("s_waitcnt lgkmcnt(0)")
        for i in range(8): a(f"v_mov_b32 v{i}, s{72+2*i}")
        srd(a, 68, wslo, wslo+1, 0x10000000)
        a("s_lshl_b32 s90, s2, 3")
        a("s_add_u32 s90, s90, s3")
        a(f"s_add_u32 s90, s90, {kidx*4096}")
        a("s_lshl_b32 s90, s90, 5")
        a(f"s_add_u32 s90, s90, {STAMP_BASE}")
        a("v_mov_b32 v8, 0")
        a("buffer_store_dwordx4 v[0:3], v8, s[68:71], s90 offen")
        a("buffer_store_dwordx4 v[4:7], v8, s[68:71], s90 offen offset:16")
        if kidx == 1 and "pa" in OPT:
            lab = f"PRB{len(a.L)}"
            a("s_lshl_b32 s91, s3, 8")
            a("s_or_b32 s91, s91, s2")
            a(f"s_cmp_lg_u32 s91, {OPT.get('pw', 5)}")
            a(f"s_cbranch_scc1 {lab}_e")
            a(f"s_add_u32 s68, s68, {STAMP_BASE + 5*8*32}")
            a("s_addc_u32 s69, s69, 0")
            a("s_load_dwordx8 s[40:47], s[68:69], 0")
            a("s_waitcnt lgkmcnt(0)")
            reg = lambda i: f"s{40+i}" if i < 8 else f"s{72+2*(i-8)}"
            a(f"s_sub_u32 s91, {reg(int(OPT['pb']))}, {reg(int(OPT['pa']))}")
            a("s_lshl_b32 s91, s91, 3")
            a("s_min_u32 s91, s91, 40000")
            a("s_add_u32 s91, s91, s86")
            a.label(lab)
            a("s_memrealtime s[48:49]")
            a("s_waitcnt lgkmcnt(0)")
            a("s_sub_u32 s50, s48, s91")
            a("s_cmp_lt_i32 s50, 0")
            a(f"s_cbranch_scc1 {lab}")
            a.label(lab + "_e")
    a("s_endpgm")

def mfma32(d, A, B, C): return f"v_mfma_f32_32x32x16_bf16 {d}, {A}, {B}, {C}"
def mfma16(d, A, B, C): return f"v_mfma_f32_16x16x32_bf16 {d}, {A}, {B}, {C}"

def split16(m, ph):
    import re
    g = re.match(r"v_mfma_f32_32x32x16_bf16 ([va])\[(\d+):\d+\], (\S+), (\S+), (\S+)", m)
    t, d, A, B, C = g.group(1), int(g.group(2)), g.group(3), g.group(4), g.group(5)
    out = []
    for j in range(2):
        r = f"{t}[{d + 8*ph[0] + 4*j}:{d + 8*ph[0] + 4*j + 3}]"
        out.append(f"v_mfma_f32_16x16x32_bf16 {r}, {A}, {B}, {'0' if ph[1] else r}")
    return out

def half_sum(a, x, t, op="v_add_f32"):
    a(f"v_mov_b32 v{t}, v{x}")
    a("s_nop 1")
    a(f"v_permlane32_swap_b32 v{t}, v{x}")
    a("s_nop 1")
    a(f"{op} v{x}, v{x}, v{t}")

K1_X, K1_W, K1_RL, K1_ST, K1_CS, K1_RP = 0, 57344, 114688, 131072, 131584, 132096
F_W, F_O, F_H, F_P1, F_L, F_M, F_R = 0, 128, 256, 384, 512, 640, 1024
D_CLR = 0
NA = 3

def chunk_items(kind, i):
    it = []
    if kind == "q":
        it.append(["s_lshl_b32 s49, s48, 7", "s_add_u32 s49, s49, s44", f"s_add_u32 m0, s45, {1024*i}", "s_mul_i32 s50, s48, 64*896", "buffer_load_dwordx4 v9, s[8:11], s49 offen lds"])
        it.append(["s_add_u32 s49, s49, 8*896", f"s_add_u32 m0, s45, {1024*i + 7168}", "s_add_u32 s50, s50, s46", "buffer_load_dwordx4 v9, s[8:11], s49 offen lds"])
        it.append([f"s_add_u32 m0, s47, {8192*i}", "s_add_u32 s48, s48, 1", "buffer_load_dwordx4 v8, s[12:15], s50 offen lds"])
        it.append(["s_add_u32 s50, s50, 8*896", f"s_add_u32 m0, s47, {8192*i + 1024}", "s_cmp_eq_u32 s48, 7", "s_cselect_b32 s48, 0, s48", "buffer_load_dwordx4 v8, s[12:15], s50 offen lds"])
    else:
        it.append([f"s_add_u32 m0, s45, {1024*i}", f"s_add_u32 s49, s44, {128*i}", "buffer_load_dwordx4 v9, s[8:11], s49 offen lds"])
        it.append([f"s_add_u32 m0, s45, {1024*i + 7168}", f"s_add_u32 s49, s44, {128*i + 7168}", "buffer_load_dwordx4 v9, s[8:11], s49 offen lds"])
        it.append([f"s_add_u32 m0, s47, {4096*i}", f"s_add_u32 s50, s46, {4096*i}", "buffer_load_dwordx4 v8, s[12:15], s50 offen lds"])
        it.append([f"s_add_u32 m0, s47, {4096*i + 2048}", f"s_add_u32 s50, s46, {4096*i + 2048}", "buffer_load_dwordx4 v8, s[12:15], s50 offen lds"])
    return it

ACC, CS, SS, SQ, SEL, ONE, BUF, SB = 96, 112, 116, 120, 124, 128, 32, 16
RLV, ACK, BIA, RT0, RT1, LN16, CLO = 136, 137, 138, 139, 140, 141, 142

def tlbw(a):
    if not OPT.get("tw"): return
    for d, b, o in ((96, 36, 0), (97, 40, 0), (98, 32, 0), (99, 38, 0), (100, 94, 0), (101, 94, 0x200000), (88, 94, 0x400000), (89, 94, 0x600000)):
        if o: a(f"s_mov_b32 s90, {o}")
        a(f"s_load_dword s{d}, s[{b}:{b+1}], {'s90' if o else 0}")

def p1_head(a):
    a("s_cmp_ge_u32 s2, 256")
    a("s_cbranch_scc1 KB_end")
    stamp_init(a)
    a("s_load_dwordx4 s[24:27], s[0:1], 0")
    a("s_load_dwordx4 s[28:31], s[0:1], 16")
    a("s_load_dwordx4 s[92:95], s[0:1], 80")
    a("s_load_dwordx2 s[32:33], s[0:1], 32")
    a("s_load_dwordx4 s[36:39], s[0:1], 48")
    a("s_load_dwordx4 s[40:43], s[0:1], 64")
    a("v_lshrrev_b32 v1, 6, v0")
    a("v_and_b32 v0, 63, v0")
    a("v_readfirstlane_b32 s3, v1")
    a("s_and_b32 s4, s2, 7")
    a("s_lshl_b32 s4, s4, 2")
    a("s_bfe_u32 s5, s2, 0x20003")
    a("s_add_u32 s4, s4, s5")
    a("s_lshr_b32 s5, s2, 5")
    a("v_lshrrev_b32 v6, 3, v0")
    a("v_and_b32 v7, 7, v0")
    a("s_and_b32 s6, s3, 1")
    a("s_lshr_b32 s7, s3, 1")
    a("v_lshrrev_b32 v10, 1, v6")
    a("v_xor_b32 v9, v7, v10")
    a("s_lshl_b32 s44, s6, 2")
    a("v_xor_b32 v9, s44, v9")
    a("v_mul_u32_u24 v8, 896, v6")
    a("v_lshl_add_u32 v9, v9, 4, v8")
    a("v_and_b32 v11, 1, v10")
    a("v_lshlrev_b32 v11, 2, v11")
    a("v_xor_b32 v11, v7, v11")
    a("v_lshlrev_b32 v11, 4, v11")
    a("s_lshl_b32 s44, s4, 6")
    a("s_lshl_b32 s45, s3, 4")
    a("s_add_u32 s44, s44, s45")
    a("s_mul_i32 s44, s44, 896")
    a("s_mul_i32 s45, s3, 14336")
    a(f"s_mov_b32 s10, {X_BYTES}")
    a("s_mov_b32 s11, 0x20000")
    a("s_mov_b32 s15, 0x20000")
    a(f"v_lshlrev_b32 v{LN16}, 4, v0")
    a("s_lshl_b32 s63, s4, 12")
    a(f"s_add_u32 s63, s63, {SYNC}")
    a("s_cmp_eq_u32 s5, 0")
    a("s_cbranch_scc1 P1_kv")
    a("s_sub_u32 s68, s5, 1")
    a("v_add_u32 v8, v8, v11")
    a("s_mul_i32 s46, s3, 16*896")
    a("s_lshl_b32 s47, s68, 7")
    a("s_add_u32 s46, s46, s47")
    a("s_lshl_b32 s47, s3, 11")
    a(f"s_add_u32 s47, s47, {K1_W}")
    a("s_and_b32 s48, s4, 3")
    a(f"s_mul_i32 s48, s48, {OPT.get('rotm', 2)}")
    a("s_add_u32 s48, s48, s68")
    a("s_cmp_ge_u32 s48, 7")
    a("s_cselect_b32 s49, 7, 0")
    a("s_sub_u32 s48, s48, s49")
    a(f"s_mov_b32 s14, {WQ_BYTES}")
    a("s_sub_u32 s50, s2, 224")
    a("s_cmp_lt_u32 s50, 8")
    a("s_waitcnt lgkmcnt(0)")
    a("s_mov_b32 s8, s24")
    a("s_mov_b32 s9, s25")
    a("s_mov_b32 s12, s26")
    a("s_mov_b32 s13, s27")
    a("s_cbranch_scc1 P1_clr")
    a.label("P1_clr_done")
    for i in range(OPT.get("naq", NA)):
        for it in chunk_items("q", i):
            for x in it: a(x)
    nstamp(a, "p1ld")
    a("v_lshrrev_b32 v2, 5, v0")
    a("v_and_b32 v13, 31, v0")
    a("s_lshl_b32 s51, s68, 4")
    a("s_lshl_b32 s52, s6, 3")
    a("s_add_u32 s51, s51, s52")
    a("v_add_u32 v14, s51, v2")
    a("v_lshrrev_b32 v12, 3, v13")
    a("v_lshlrev_b32 v12, 13, v12")
    a("v_lshl_add_u32 v12, v7, 4, v12")
    for q in range(4):
        d = 132 + q
        a("v_mul_u32_u24 v30, 147, v14")
        a("v_lshrrev_b32 v30, 10, v30")
        a("v_mul_u32_u24 v31, 7, v30")
        a("v_sub_u32 v31, v14, v31")
        a(f"v_lshrrev_b32 v{d}, 2, v30")
        a(f"v_lshl_add_u32 v{d}, v{d}, 11, v12")
        a("v_and_b32 v30, 3, v30")
        a(f"v_lshl_add_u32 v{d}, v30, 7, v{d}")
        a("v_lshrrev_b32 v30, 2, v31")
        a(f"v_lshl_add_u32 v{d}, v30, 10, v{d}")
        a("v_and_b32 v30, 1, v31")
        a(f"v_lshl_add_u32 v{d}, v30, 9, v{d}")
        a("v_bfe_u32 v30, v31, 1, 1")
        a(f"v_lshl_add_u32 v{d}, v30, 3, v{d}")
        if q < 3: a("v_add_u32 v14, 2, v14")
    a("v_bfe_u32 v4, v0, 2, 2")
    a("v_lshlrev_b32 v10, 3, v2")
    a("v_add_u32 v10, v10, v4")
    a("v_lshrrev_b32 v12, 1, v4")
    a("v_xor_b32 v12, s6, v12")
    a("v_lshlrev_b32 v10, 7, v10")
    a("v_lshl_add_u32 v10, v12, 6, v10")
    a(f"v_add_u32 v10, {K1_W}, v10")
    a("s_branch P1_s2")
    a.label("P1_clr")
    for i in range(4): a(f"v_mov_b32 v{20+i}, 0")
    a("s_lshl_b32 s50, s50, 2")
    a("s_add_u32 s50, s50, s3")
    a("s_lshl_b32 s50, s50, 12")
    a(f"s_add_u32 s50, s50, {SYNC}")
    a("s_add_u32 s66, s94, s50")
    a("s_addc_u32 s67, s95, 0")
    a(f"global_store_dwordx4 v{LN16}, v[20:23], s[66:67] sc0 sc1")
    a(f"global_store_dwordx4 v{LN16}, v[20:23], s[66:67] offset:1024 sc0 sc1")
    a("s_branch P1_clr_done")
    a.label("P1_kv")
    a("s_lshl_b32 s46, s7, 10")
    a("s_mul_i32 s47, s6, 28672")
    a("s_add_u32 s47, s47, s46")
    a(f"s_add_u32 s47, s47, {K1_W}")
    a(f"v_mov_b32 v8, v{LN16}")
    a(f"s_mov_b32 s14, {WK_BYTES}")
    a("s_cmp_eq_u32 s6, 0")
    a("s_waitcnt lgkmcnt(0)")
    a("s_cselect_b32 s12, s28, s30")
    a("s_cselect_b32 s13, s29, s31")
    a("s_mov_b32 s8, s24")
    a("s_mov_b32 s9, s25")
    for i in range(OPT.get("nakv", NA)):
        for it in chunk_items("k", i):
            for x in it: a(x)
    nstamp(a, "p1ld")
    a("v_lshrrev_b32 v2, 5, v0")
    a("v_and_b32 v13, 31, v0")
    a("v_bfe_u32 v4, v0, 2, 2")
    a("v_lshlrev_b32 v10, 3, v2")
    a("v_add_u32 v10, v10, v4")
    a("v_mul_u32_u24 v10, 56, v10")
    a("s_mul_i32 s51, s6, 28672")
    a(f"s_add_u32 s51, s51, {K1_W}")
    a("v_add_u32 v10, s51, v10")
    for q in range(4): a(f"v_mov_b32 v{132+q}, 0")
    a.label("P1_s2")
    a("v_bfe_u32 v3, v0, 4, 1")
    a("v_and_b32 v5, 3, v0")
    srd(a, 16, 94, 95, WS_SIZE)
    a("s_add_u32 s66, s94, s63")
    a("s_addc_u32 s67, s95, 0")
    a("s_getpc_b64 s[50:51]")
    a.label("KB_pc")
    a("s_lshr_b32 s52, s2, 3")
    a("s_lshl_b32 s52, s52, 2")
    a("s_add_u32 s52, s52, s3")
    a("s_lshl_b32 s52, s52, 13")
    a("v_lshlrev_b32 v12, 7, v0")
    a("v_add_u32 v12, s52, v12")
    a("v_min_u32 v12, KB_code_end-KB_pc-4, v12")
    a("global_load_dword v165, v12, s[50:51]")
    a("s_getreg_b32 s69, hwreg(HW_REG_XCC_ID, 0, 4)")
    a("s_or_b32 s69, s69, 16")
    a("v_lshl_add_u32 v10, v3, 5, v10")
    a("v_lshl_add_u32 v10, v5, 3, v10")
    a("v_bfe_u32 v14, v13, 1, 2")
    a("v_lshrrev_b32 v15, 2, v13")
    a("v_and_b32 v15, 4, v15")
    a("v_or_b32 v14, v14, v15")
    a("v_xor_b32 v14, v14, v2")
    a("v_lshrrev_b32 v15, 3, v13")
    a("v_mul_u32_u24 v15, 7168, v15")
    a("v_lshl_add_u32 v15, v7, 7, v15")
    a("s_mul_i32 s51, s7, 28672")
    a("v_add_u32 v15, s51, v15")
    for j in range(4):
        a(f"v_xor_b32 v12, {2*j}, v14")
        a(f"v_lshl_add_u32 v{24+j}, v12, 4, v15")
    a("v_bfe_u32 v14, v0, 3, 1")
    a("v_mul_u32_u24 v14, 7168, v14")
    a("v_lshl_add_u32 v14, v7, 7, v14")
    a("v_lshrrev_b32 v12, 4, v0")
    a("v_lshrrev_b32 v28, 1, v7")
    a("v_xor_b32 v12, v12, v28")
    a("v_lshl_add_u32 v14, v12, 4, v14")
    a("v_add_u32 v28, s45, v14")
    a("v_xor_b32 v29, 64, v28")
    a("v_xor_b32 v14, v0, v3")
    a("v_and_b32 v14, 1, v14")
    a(f"v_mov_b32 v12, {ONES_BF}")
    a("v_cmp_eq_u32 vcc, 0, v14")
    for i in range(4): a(f"v_mov_b32 v{ONE+i}, v12")
    for i in range(4): a(f"v_cndmask_b32 v{SEL+i}, 0, v12, vcc")
    a("s_movk_i32 s60, 896")
    a(f"s_mov_b32 s22, {W1_BYTES}")
    a("s_mov_b32 s23, 0x20000")
    a(f"s_mov_b32 s34, {W1S}")
    a(f"s_mov_b32 s35, {W1F}")
    a("s_movk_i32 s61, 256")
    a("s_movk_i32 s62, 2341")
    a("s_cmp_lt_u32 s2, 130")
    a("s_cselect_b32 s60, 3584, s60")
    a("s_cselect_b32 s61, s61, 256 + 784")
    a("s_cselect_b32 s62, s62, 586")
    a("s_cselect_b32 s53, 28, 112")
    a("s_cselect_b32 s57, 0, 1")
    a("s_cselect_b32 s20, s36, s40")
    a("s_cselect_b32 s21, s37, s41")
    a("s_cselect_b32 s34, s34, 112*1024")
    a(f"s_cselect_b32 s35, s35, {W2F}")
    a("s_cmp_lt_u32 s2, 228")
    a("s_cselect_b32 s61, s61, 256 + 1568")
    a("s_cselect_b32 s62, s62, 2048")
    a("s_cselect_b32 s53, s53, 32")
    a("s_cselect_b32 s57, s57, 2")
    a("s_cselect_b32 s20, s20, s32")
    a("s_cselect_b32 s21, s21, s33")
    a(f"s_cselect_b32 s22, s22, {WQ_BYTES}")
    a("s_cselect_b32 s34, s34, 32768")
    a(f"s_cselect_b32 s35, s35, {WOF}")
    a("s_cselect_b32 s51, 16, 14")
    a("s_lshl_b32 s59, s2, 2")
    a("s_add_u32 s59, s59, s3")
    a("s_lshl_b32 s59, s59, 1")
    a("s_sub_u32 s59, s59, s61")
    a("s_mul_i32 s58, s59, s62")
    a("s_lshr_b32 s58, s58, 16")
    a("s_mul_i32 s53, s53, s58")
    a("s_sub_u32 s59, s59, s53")
    a("s_mul_i32 s61, s59, s51")
    a("s_mul_i32 s61, s61, s60")
    a("s_lshl_b32 s64, s58, 7")
    a("s_add_u32 s61, s61, s64")
    a(f"v_mad_u32_u24 v{RLV}, v6, s60, v11")
    a("s_lshl_b32 s60, s60, 3")
    a("s_lshl_b32 s53, s59, 10")
    a("s_add_u32 s35, s35, s53")
    a("s_mul_i32 s53, s34, s58")
    a("s_lshl_b32 s53, s53, 1")
    a("s_add_u32 s35, s35, s53")
    a("s_lshl_b32 s65, s3, 12")
    a(f"s_add_u32 s65, s65, {K1_RL}")
    a("s_mov_b32 s36, s38")
    a("s_mov_b32 s37, s39")
    a("s_movk_i32 s38, 3584")
    a("s_mov_b32 s39, 0x20000")
    a(f"v_lshlrev_b32 v{RT0}, 2, v2")
    a(f"v_add_u32 v{RT0}, v{RT0}, v4")
    a(f"v_lshlrev_b32 v{RT0}, 7, v{RT0}")
    a("v_lshrrev_b32 v12, 1, v4")
    a(f"v_lshl_add_u32 v{RT0}, v12, 6, v{RT0}")
    a(f"v_lshl_add_u32 v{RT0}, v3, 5, v{RT0}")
    a(f"v_lshl_add_u32 v{RT0}, v5, 3, v{RT0}")
    a(f"v_add_u32 v{RT0}, s65, v{RT0}")
    a(f"v_xor_b32 v{RT1}, 64, v{RT0}")
    a(f"v_lshlrev_b32 v{BIA}, 1, v0")
    if OPT.get("tw2"):
        a("s_lshl_b32 s51, s3, 15")
        a(f"s_add_u32 s51, s51, {SYNC + 3072}")
        a("v_lshl_add_u32 v166, v7, 12, s51")
        a("s_add_u32 s51, s63, 3072")
        a("v_mov_b32 v12, s51")
        a("v_cmp_ne_u32 vcc, 0, v2")
        a("s_nop 1")
        a("v_cndmask_b32 v166, v166, v12, vcc")
    if OPT.get("qt", 0):
        a("s_lshl_b32 s51, s4, 5")
        a("s_lshl_b32 s52, s5, 2")
        a("s_add_u32 s51, s51, s52")
        a("s_add_u32 s51, s51, s3")
        a("s_lshl_b32 s51, s51, 11")
        a("v_and_b32 v168, 15, v0")
        a("v_lshl_add_u32 v168, v168, 7, s51")
    a(f"v_and_b32 v{CLO}, 1, v0")
    a(f"v_lshlrev_b32 v{CLO}, 7, v{CLO}")
    if OPT.get("it1", 1):
        for w in range(3):
            a(f"s_cmp_eq_u32 s3, {w}")
            a(f"s_cbranch_scc1 KA_CHAIN{w}")
        a("s_branch KA_CHAIN3")
        a.label("KA_tret")
    a("s_cmp_eq_u32 s5, 0")
    a("s_cbranch_scc0 P1_q")
    a("s_cmp_eq_u32 s6, 0")
    a("s_cbranch_scc1 P1_k")
    a("s_branch P1_v")

def p1_body(a, kind):
    a.L.append(".p2align 12")
    a.label("P1_" + kind)
    def reads(i):
        b = BUF + 32*(i & 1); L = []
        for k in range(4):
            wo = 8192*i + 2048*k if kind == "q" else 896*(4*i + k)
            L += [f"ds_read_b64_tr_b16 {vr(b+8*k,2)}, v10 offset:{wo}",
                  f"ds_read_b64_tr_b16 {vr(b+8*k+2,2)}, v10 offset:{wo + (512 if kind == 'q' else 224)}",
                  f"ds_read_b128 {vr(b+8*k+4,4)}, v{24+k} offset:{1024*i}"]
        L += [f"ds_read_b128 {vr(SB+4*hf,4)}, v{28+hf} offset:{1024*i}" for hf in range(2)]
        return L
    def mfmas(i):
        b = BUF + 32*(i & 1); L = []
        z = lambda r, n_, first: "0" if first else vr(r, n_)
        for k in range(4):
            W, X = vr(b+8*k,4), vr(b+8*k+4,4)
            f = i == 0 and k == 0
            if kind == "v":
                L += [mfma32(vr(ACC,16), X, W, z(ACC,16,f)), mfma16(vr(CS,4), vr(SEL,4), W, z(CS,4,f))]
            else:
                L += [mfma32(vr(ACC,16), W, X, z(ACC,16,f)), mfma16(vr(CS,4), W, vr(SEL,4), z(CS,4,f))]
        return L
    def smfmas(i):
        L = []
        for hf in range(2):
            f = i == 0 and hf == 0
            X = vr(SB+4*hf,4)
            L += [mfma16(vr(SS,4), X, vr(ONE,4), "0" if f else vr(SS,4)), mfma16(vr(SQ,4), X, X, "0" if f else vr(SQ,4))]
        return L
    rl = [[f"s_add_u32 m0, s65, {1024*j}", "s_add_u32 s61, s61, s60" if j else "s_nop 0", f"buffer_load_dwordx4 v{RLV}, s[20:23], s61 offen lds"] for j in range(4)]
    rl += [[f"buffer_load_ushort v{BIA}, v{BIA}, s[36:39], s64 offen"]]
    if kind != "q": rl = []
    RLI = OPT.get("rli", 3)
    NA = OPT.get("naq", 3) if kind == "q" else OPT.get("nakv", 3)
    ACI, ACL = OPT.get("aci", 0), OPT.get("acl", 6)
    vq = [f"c{i}" for i in range(NA) for _ in range(4)] + ["warm"]
    ack = []
    if kind == "q":
        a("s_and_b32 s51, s2, 1")
        a("s_lshl_b32 s51, s51, 7")
        a("s_bfe_u32 s52, s2, 0x20001")
        a("s_add_u32 s51, s51, s52")
        a("v_mov_b32 v166, s51")
        a("v_mov_b32 v167, 1")
        a("s_sub_u32 s51, s2, 224")
        a("s_lshl_b32 s52, s3, 3")
        a("s_or_b32 s51, s51, s52")
        a("s_cmp_lt_u32 s51, 8")
        a("s_cselect_b64 s[52:53], 1, 0")
        ack = [["s_mov_b64 exec, s[52:53]", f"global_store_byte v166, v167, s[92:93] offset:{D_CLR} sc0 sc1", "s_mov_b64 exec, -1"]]
    ackl = [[f"global_load_dword v{ACK}, v{CLO}, s[92:93] offset:{D_CLR} sc1"]]
    for i in range(8):
        fillers = []
        if i < 7:
            k = len(vq) - 1 - vq[::-1].index(f"c{i}")
            a(f"s_waitcnt vmcnt({len(vq) - 1 - k})")
            a("s_barrier")
            if i == 0: nstamp(a, "p1b0")
            nstamp(a, f"it{i}")
            fillers = [[x] for x in reads(i)]
        ld = chunk_items(kind, i + NA) if i + NA < 7 else []
        vq += [f"c{i + NA}"] * len(ld)
        if i == RLI:
            ld = ld + rl; vq += ["rl"] * len(rl)
        if i == ACL:
            ld = ld + ackl; vq += ["ack"]
            if OPT.get("tw2"):
                ld = ld + [["global_load_dword v167, v166, s[94:95] sc1"]]; vq += ["ack"]
        if i == OPT.get("qt", 0) > 0:
            ld = ld + [[f"global_load_dword v169, v168, s[94:95] offset:{QF} sc1"]]; vq += ["qt"]
        if i == ACI:
            ld = ld + ack
        if i == 0:
            for it in fillers + ld:
                for x in it: a(x)
            continue
        a("s_waitcnt lgkmcnt(0)")
        M = smfmas(i - 1) + mfmas(i - 1)
        rest = fillers[:12] + ld
        late = fillers[12:]
        for k, m in enumerate(M):
            a(m)
            if k >= 4 and late and k in (6, 8):
                for x in late.pop(0): a(x)
            take = -(-len(rest) // (len(M) - k))
            for _ in range(take):
                for x in rest.pop(0): a(x)
        assert not rest and not late
    nstamp(a, "p1lp")
    def done(nst):
        nstamp(a, "p1st")
        if kind != "q": a("s_branch P1_join")
    a("v_cmp_eq_u32 vcc, 1, v5")
    a("v_cmp_eq_u32 s[52:53], 2, v5")
    a("v_cmp_eq_u32 s[44:45], 3, v5")
    a("v_lshrrev_b32 v11, 4, v0")
    a("v_cmp_eq_u32 s[46:47], v11, v4")
    for r in (SS, SQ):
        a(f"v_cndmask_b32 v{r}, v{r}, v{r+1}, vcc")
        a(f"v_cndmask_b32 v{r}, v{r}, v{r+2}, s[52:53]")
        a(f"v_cndmask_b32 v{r}, v{r}, v{r+3}, s[44:45]")
    a(f"v_mul_f32 v20, {hexf(1.0/448)}, v{SS}")
    a(f"v_mul_f32 v22, {hexf(1.0/448)}, v{SQ}")
    a("v_fma_f32 v22, -v20, v20, v22")
    a("v_max_f32 v22, 0, v22")
    a(f"v_add_f32 v22, {hexf(1e-5)}, v22")
    a("v_rsq_f32 v22, v22")
    a("s_lshl_b32 s51, s3, 7")
    a(f"s_add_u32 s51, s51, {K1_ST}")
    a("v_and_b32 v11, 15, v0")
    a("v_lshl_add_u32 v11, v11, 3, s51")
    a("v_mul_f32 v23, -v20, v22")
    a("s_mov_b64 exec, s[46:47]")
    a("ds_write_b64 v11, v[22:23]")
    a("s_mov_b64 exec, -1")
    if kind != "v":
        a("s_lshl_b32 s51, s3, 7")
        a(f"s_add_u32 s51, s51, {K1_CS}")
        a("v_lshrrev_b32 v11, 4, v0")
        a("v_lshlrev_b32 v11, 4, v11")
        a("v_and_b32 v14, 15, v0")
        a("v_lshl_add_u32 v11, v14, 6, v11")
        a("v_add_u32 v11, s51, v11")
        a("v_lshl_add_u32 v14, v2, 4, s51")
        a("s_mov_b32 exec_lo, 0x00030003")
        a("s_mov_b32 exec_hi, 0x00030003")
        a(f"ds_write_b128 v11, {vr(CS,4)}")
        a("s_mov_b64 exec, -1")
        for i in range(4): a(f"ds_read_b128 {vr(32+4*i,4)}, v14 offset:{32*i}")
    else:
        a("v_cmp_ne_u32 vcc, 0, v3")
        a("s_nop 1")
        a(f"v_cndmask_b32 v{CS}, v{CS}, v{CS+1}, vcc")
    a("s_lshl_b32 s51, s7, 8")
    a(f"s_add_u32 s51, s51, {K1_ST}")
    a("s_waitcnt lgkmcnt(0)")
    a("s_barrier")
    nstamp(a, "p1e")
    if kind != "v":
        a("v_lshl_add_u32 v11, v13, 3, s51")
        a("ds_read_b64 v[20:21], v11")
        a("v_cmp_ne_u32 s[52:53], 0, v2")
        if kind == "q":
            a("s_lshl_b32 s51, s4, 3")
            a("s_lshl_b32 s50, s7, 2")
            a("s_add_u32 s51, s51, s50")
            a("s_lshl_b32 s51, s51, 13")
            if QF: a(f"s_add_u32 s51, s51, {QF}")
        a("s_waitcnt lgkmcnt(0)")
        if kind == "q":
            a(f"v_mul_f32 v20, {hexf(QSCALE)}, v20")
            a(f"v_mul_f32 v21, {hexf(QSCALE)}, v21")
        for q in range(4):
            for i in range(4*q, 4*q + 4):
                a(f"v_mul_f32 v{ACC+i}, v{ACC+i}, v20")
                a(f"v_fmac_f32 v{ACC+i}, v{32+i}, v21")
            for i in range(2): a(f"v_cvt_pk_bf16_f32 v{48+2*q+i}, v{ACC+4*q+2*i}, v{ACC+4*q+2*i+1}")
            if kind == "q": a(f"buffer_store_dwordx2 {vr(48+2*q,2)}, v{132+q}, s[16:19], s51 offen{SM('qm')}")
        if kind == "q":
            done(4)
            return
        a("v_cndmask_b32 v54, v54, 0, s[52:53]")
        a("v_cndmask_b32 v55, v55, 0, s[52:53]")
        a("v_mov_b32 v20, 0")
        a("v_mov_b32 v22, 0x3f80")
        for i in range(8): a(f"v_dot2c_f32_bf16 v20, v{48+i}, v{48+i}")
        a("v_cndmask_b32 v54, v54, v22, s[52:53]")
        a("s_lshl_b32 s51, s4, 1")
        a("s_add_u32 s51, s51, s7")
        a("s_lshl_b32 s50, s7, 2")
        a(f"s_add_u32 s50, s50, {K1_RP + 1088}")
        a("s_lshl_b32 s51, s51, 12")
        a(f"s_add_u32 s51, s51, {KV}")
        a(f"buffer_store_dwordx4 v[48:51], v{LN16}, s[16:19], s51 offen{SM('k1m')}")
        a(f"buffer_store_dwordx4 v[52:55], v{LN16}, s[16:19], s51 offen offset:1024{SM('k1m')}")
        half_sum(a, 20, 21)
        a("s_nop 1")
        for m in ("quad_perm:[1,0,3,2]", "quad_perm:[2,3,0,1]", "row_half_mirror", "row_mirror"):
            a(f"v_max_f32_dpp v20, v20, v20 {m} row_mask:0xf bank_mask:0xf")
            a("s_nop 1")
        a("v_mov_b32 v21, v20")
        a("s_nop 1")
        a("v_permlane16_swap_b32 v21, v20")
        a("s_nop 1")
        a("v_max_f32 v20, v20, v21")
        a("v_mov_b32 v17, s50")
        a("ds_write_b32 v17, v20")
        done(3)
        return
    a("v_lshl_add_u32 v11, v2, 5, s51")
    for i in range(8): a(f"ds_read_b128 {vr(32+4*i,4)}, v11 offset:{64*(i>>1) + 16*(i&1)}")
    a("v_cmp_eq_u32 s[52:53], 28, v13")
    a(f"v_mov_b32 v21, {ONES_BF}")
    a("v_cmp_lt_u32 s[44:45], 27, v13")
    a("v_cndmask_b32 v21, 0, v21, s[52:53]")
    a("s_lshl_b32 s51, s4, 1")
    a("s_add_u32 s51, s51, s7")
    a("s_lshl_b32 s51, s51, 12")
    a(f"s_add_u32 s51, s51, {KV}")
    a("s_waitcnt lgkmcnt(0)")
    for i in range(16):
        a(f"v_mul_f32 v{ACC+i}, v{ACC+i}, v{32+2*i}")
        a(f"v_fmac_f32 v{ACC+i}, v{33+2*i}, v{CS}")
    for i in range(8): a(f"v_cvt_pk_bf16_f32 v{64+i}, v{ACC+2*i}, v{ACC+2*i+1}")
    for i in range(8): a(f"v_cndmask_b32 v{64+i}, v{64+i}, v21, s[44:45]")
    a(f"buffer_store_dwordx4 v[64:67], v{LN16}, s[16:19], s51 offen offset:2048{SM('k1m')}")
    a(f"buffer_store_dwordx4 v[68:71], v{LN16}, s[16:19], s51 offen offset:3072{SM('k1m')}")
    done(2)

L_RED, L_XC, L_HN, L_ACT, L_W2 = 0, 49152, 0, 65536, 98304
KB_LDS = 163840
H_ST, H_T1 = 28672, 36864
SHIFT_LIMIT = 40.0
SPIN_LIMIT = 1 << 17
LN2F = math.log(2.0)

class Cnt:
    def __init__(self, name, cap): self.q = []; self.name = name; self.cap = cap
    def issue(self, tag):
        self.q.append(tag)
        assert self.name != "vmcnt" or len(self.q) <= self.cap, (self.name, tag, len(self.q))
    def wait(self, tag):
        if tag not in self.q: return None
        k = len(self.q) - 1 - self.q[::-1].index(tag)
        n = min(len(self.q) - 1 - k, self.cap)
        self.q = self.q[len(self.q)-n:] if n else []
        return f"s_waitcnt {self.name}({n})"
    def clear(self): self.q = []

def cost(t):
    mn = t.split()[0]
    if mn.startswith(("v_exp", "v_rcp", "v_rsq", "v_sqrt")): return 8
    if mn.startswith(("ds_write_b128", "global_store")): return 20
    if mn.startswith(("ds_", "global_", "buffer_")): return 12
    if mn.startswith(("v_cvt_pk", "v_fma_")): return 5
    return 4.3

def gen_kb(a, force_slow=False, force_fence=False):
    n = NAME + "_kernel"
    header(a, n)
    vm = Cnt("vmcnt", 63); lg = Cnt("lgkmcnt", 15)
    def V(text, tag="-"):
        if len(vm.q) >= 63:
            a("s_waitcnt vmcnt(48)"); vm.q = vm.q[-48:]
        a(text); vm.issue(tag)
    def D(text, tag="-"): a(text); lg.issue(tag)
    def WV(tag):
        w = vm.wait(tag)
        if w: a(w)
    def WL(tag):
        w = lg.wait(tag)
        if w: a(w)
    def add64(d, s, off):
        a(f"s_add_u32 s{d}, s{s}, {off}")
        a(f"s_addc_u32 s{d+1}, s{s+1}, 0")
    m0now = [None, False]
    def emit_item(it):
        if it[0] == "s" and " m0," in it[1]:
            m0now[1] = it[1] == m0now[0]
            if m0now[1]: return
            m0now[0] = it[1]
        elif it[0] == "s" and it[1] == "s_nop 0" and m0now[1]:
            m0now[1] = False
            return
        if it[0] == "s": a(it[1])
        elif it[0] == "v": V(it[1], it[2])
        elif it[0] == "d": D(it[1], it[2])
        elif it[0] == "wv": WV(it[1])
        elif it[0] == "wl": WL(it[1])
        elif it[0] == "l": a.label(it[1])
    XR, Q, KVR, S, P, WOV = 16, 32, 64, 96, 128, 144
    WS = " sc1" if OPT.get("wsc", 0) else ""
    p1_head(a)
    p1_body(a, "q")
    a.label("P1_join")
    nstamp(a, "p1j")
    a("v_cmp_ne_u32 s[64:65], 0, v2")
    for d_, s_ in ((8, 94), (9, 95), (10, 24), (11, 25), (12, 42), (13, 43)): a(f"s_mov_b32 s{d_}, s{s_}")
    a("s_lshl_b32 s53, s5, 2")
    a("s_add_u32 s53, s53, s3")
    a("v_mov_b32 v16, s53")
    a("v_mov_b32 v17, s69")
    a("s_mul_i32 s69, s69, 0x01010101")
    a("v_and_b32 v30, 7, v0")
    a("v_lshlrev_b32 v30, 2, v30")
    a("s_mov_b32 s88, s35")
    a("s_add_u32 s89, s35, s34")
    a("s_cmp_eq_u32 s57, 2")
    a("s_cselect_b64 s[52:53], s[64:65], 0")
    a("v_lshlrev_b32 v8, 2, v0")
    a("v_cndmask_b32 v143, -1, 0, s[52:53]")
    a("s_add_u32 s62, s59, 2")
    a("s_lshr_b32 s62, s62, 3")
    a(f"s_mul_i32 s71, s58, {2*W1S}")
    a("s_lshr_b32 s54, s62, 1")
    a("s_lshl_b32 s54, s54, 9")
    a("s_add_u32 s71, s71, s54")
    a(f"s_add_u32 s71, s71, {W1F + 28*1024}")
    a("s_lshl_b32 s54, s3, 5")
    a("s_add_u32 s54, s54, s59")
    a("s_cmp_eq_u32 s54, 32 + 26")
    a("s_cselect_b32 s91, 0, -1")
    a("s_cmp_eq_u32 s54, 96 + 2")
    a("s_cselect_b32 s90, 0, -1")
    a("s_cselect_b32 s54, 1, s3")
    a("s_lshl_b32 s53, s57, 2")
    a("s_or_b32 s54, s54, s53")
    a("s_cmp_eq_u32 s54, 1")
    a("s_cselect_b32 s62, s62, 4")
    a("s_cmp_eq_u32 s5, 0")
    a("s_cselect_b32 s62, 4, s62")
    a(f"s_cselect_b32 s26, 0, {WS_SIZE}")
    a("s_mov_b32 s24, s94")
    a("s_mov_b32 s25, s95")
    a("s_mov_b32 s27, 0x20000")
    a("s_mov_b32 s70, s57")
    a("s_cbranch_scc0 P1_qf")
    a(f"v_mov_b32 v19, {K1_RP + 1088}")
    a("v_lshlrev_b32 v21, 7, v0")
    a("v_mov_b32 v20, 1")
    a("s_cmp_eq_u32 s3, 0")
    a("s_cselect_b32 s46, 0xff, 0")
    a("s_mov_b32 s47, 0")
    a("s_waitcnt lgkmcnt(0)")
    a("s_barrier")
    a("ds_read_b64 v[18:19], v19")
    a("s_mov_b32 s68, 0")
    a("s_waitcnt vmcnt(2)")
    a.label("P1_kvf_ack")
    a(f"v_cmp_ne_u32 vcc, 0x01010101, v{ACK}")
    a("s_cbranch_vccz P1_kvf_go")
    a(f"global_load_dword v{ACK}, v{CLO}, s[92:93] offset:{D_CLR} sc1")
    a("s_add_u32 s68, s68, 1")
    a(f"s_cmp_lt_u32 s68, {SPIN_LIMIT}")
    a("s_waitcnt vmcnt(0)")
    a("s_cbranch_scc1 P1_kvf_ack")
    a.label("P1_kvf_go")
    a("s_mov_b64 exec, 1")
    a(f"global_store_byte v16, v17, s[66:67] offset:{F_L}")
    a("s_mov_b64 exec, -1")
    nstamp(a, "p1w")
    a("s_waitcnt vmcnt(0) lgkmcnt(0)")
    a("s_barrier")
    a("s_mov_b64 exec, s[46:47]")
    a(f"global_store_dwordx3 v21, v[18:20], s[66:67] offset:{F_R} sc0 sc1")
    a("s_mov_b64 exec, -1")
    a("s_branch P1_lf_done")
    a.label("P1_qf")
    nstamp(a, "p1w")
    a("s_waitcnt vmcnt(0)")
    a(f"v_cmp_ne_u32 vcc, 0x01010101, v{ACK}")
    a("s_cbranch_vccnz P1_ack")
    a.label("P1_ack_done")
    a("s_mov_b64 exec, 1")
    a(f"global_store_byte v16, v17, s[66:67] offset:{F_L}")
    a("s_mov_b64 exec, -1")
    a.label("P1_lf_done")
    nstamp(a, "p1fl")
    pollL = f"global_load_dword v29, v30, s[66:67] offset:{F_L} sc1"
    a(pollL)
    a("s_lshr_b32 s7, s2, 3")
    a("s_lshl_b32 s6, s4, 3")
    a("s_add_u32 s6, s6, s5")
    a("v_lshlrev_b32 v1, 4, v0")
    a("s_lshl_b32 s54, s6, 13")
    if QF: a(f"s_add_u32 s54, s54, {QF}")
    for t in range(4):
        a(f"s_add_u32 s{58+t}, s3, {t+1}")
        a(f"s_and_b32 s{58+t}, s{58+t}, 3")
        a(f"s_lshl_b32 s{58+t}, s{58+t}, 11")
        a(f"s_add_u32 s{58+t}, s{58+t}, s54")
    a("s_lshl_b32 s54, s3, 15")
    a("s_and_b32 s53, s2, 7")
    a("s_lshl_b32 s53, s53, 7")
    a("s_add_u32 s54, s54, s53")
    a(f"s_add_u32 s54, s54, {SYNC + F_R}")
    a("v_lshl_add_u32 v31, v7, 12, s54")
    a("s_lshl_b32 s52, s3, 16")
    a(f"s_add_u32 s52, s52, {KV + 4096}")
    NKP = 3
    S0, S1, S8 = KVR, KVR + 16, WOV + 96
    KVA = OPT.get('kva', 26)
    kvs = [S0, S1, S8] + [256 + 64 + 16*k for k in range(10)] + [S0, S1, S8]
    kvr = lambda i, part: vr(kvs[i] + 4*part, 4) if kvs[i] < 256 else ar(kvs[i] - 256 + 4*part, 4)
    def kvld(i, part):
        b = 32 + 2*(i >> 1)
        return f"global_load_dwordx4 {kvr(i, part)}, v1, s[{b}:{b+1}] offset:{4096*(i&1) - 4096 + 1024*part}{' sc1' if i < 2 else ''}"
    def kvbase(p):
        a(f"s_add_u32 s53, s5, {p}")
        a("s_and_b32 s53, s53, 7")
        a("s_lshl_b32 s53, s53, 13")
        a("s_add_u32 s53, s53, s52")
        add64(32+2*p, 8, "s53")
    NPRO = OPT.get('npro', 2)
    VOFF = (1, 7, 9, 8)
    def woreg(f):
        return vr(WOV+4*f, 4) if f < 24 else ar(224+4*(f-24), 4)
    def wo_item(f):
        b = 48 if f < 16 else 50
        return [("v", f"global_load_dwordx4 {woreg(f)}, v{VOFF[(f%16)//8]}, s[{b}:{b+1}] offset:{1024*(f%8) - 4096}{WS}", f"wo{f}")]
    def w1reg(i):
        return ar(64+4*i, 4) if i < 40 else ar(4*(i-40), 4)
    def w1_item(i):
        b, ks = (96, i) if i < 28 else (98, i - 28)
        return [("v", f"global_load_dwordx4 {w1reg(i)}, v{VOFF[ks//8]}, s[{b}:{b+1}] offset:{1024*(ks%8) - 4096}{WS}", f"w1_{i}")]
    def setup_b():
        for p in range(8): kvbase(p)
        a("s_and_b32 s14, s3, 1")
        a("s_lshr_b32 s15, s3, 1")
        a("s_min_u32 s28, s5, 6")
        a("s_lshl_b32 s53, s28, 16")
        a("s_lshl_b32 s54, s14, 14")
        a("s_add_u32 s53, s53, s54")
        a(f"s_add_u32 s53, s53, {WOF + 4096}")
        a("s_lshl_b32 s54, s14, 15")
        a("s_add_u32 s55, s53, s54")
        add64(50, 8, "s55")
        a("s_xor_b32 s54, s54, 0x8000")
        a("s_add_u32 s55, s53, s54")
        add64(48, 8, "s55")
        a("s_lshl_b32 s53, s28, 3")
        a("s_add_u32 s53, s53, s3")
        a(f"s_mul_i32 s53, s53, {W1S}")
        a(f"s_add_u32 s53, s53, {W1F + 4096}")
        add64(96, 8, "s53")
        add64(98, 96, 4*W1S)
        a("v_and_b32 v5, 31, v0")
    RB, CP = WOV, WOV + 16
    WSL = 1
    wflag = [("s", "s_mov_b64 exec, 1"), ("v", f"global_store_byte v16, v17, s[66:67] offset:{F_W} sc0 sc1", "wfl"), ("s", "s_mov_b64 exec, -1")]
    PL, PA, PB = S, S + 4, S + 8
    pollA = f"global_load_dwordx3 {vr(PA,3)}, v31, s[8:9] sc1"
    pollB = f"global_load_dwordx3 {vr(PB,3)}, v31, s[8:9] sc1"
    xr = [("v", f"global_load_dwordx4 {vr(XR+4*i,4)}, v3, s[100:101] offset:{32*i}", "xr") for i in range(2)]
    def setup_c():
        a("v_lshrrev_b32 v6, 2, v5")
        a("v_mul_u32_u24 v3, 7168, v6")
        a("v_and_b32 v6, 3, v0")
        a("v_mul_u32_u24 v11, 896, v6")
        a("v_add_u32 v3, v3, v11")
        a("v_lshl_add_u32 v3, v2, 4, v3")
        a("s_lshl_b32 s53, s4, 4")
        a("s_add_u32 s53, s53, s15")
        a("s_mul_i32 s53, s53, 3584")
        a("s_lshl_b32 s54, s28, 7")
        a("s_add_u32 s53, s53, s54")
        a("s_lshl_b32 s54, s14, 6")
        a("s_add_u32 s53, s53, s54")
        add64(100, 10, "s53")
        a("v_add_u32 v7, 8192, v1")
        a("v_add_u32 v9, 16384, v1")
        for t in range(3):
            a(f"s_add_u32 s53, s3, {t+1}")
            a("s_and_b32 s53, s53, 3")
            a("s_mul_i32 s53, s53, 12288")
            a(f"s_add_u32 s53, s53, {L_RED + 4096*t}")
            a(f"v_add_u32 v{13+t}, s53, v1")
        a("v_lshrrev_b32 v11, 3, v5")
        a("v_lshlrev_b32 v24, 11, v11")
        a("v_bfe_u32 v11, v5, 2, 1")
        a("v_lshl_add_u32 v24, v11, 15, v24")
        a("v_lshl_add_u32 v24, v2, 9, v24")
        a("v_lshl_add_u32 v24, v6, 4, v24")
        a("v_and_b32 v11, 1, v0")
        a("v_lshl_add_u32 v25, v11, 10, v24")
        a("s_lshl_b32 s29, s4, 16")
        a("s_lshl_b32 s53, s3, 13")
        a("s_lshl_b32 s54, s5, 6")
        a("s_add_u32 s53, s53, s54")
        a("s_add_u32 s53, s53, s29")
        a(f"s_add_u32 s53, s53, {OF}")
        add64(20, 8, "s53")
        a("s_lshl_b32 s53, s15, 15")
        a("s_lshl_b32 s54, s14, 14")
        a("s_add_u32 s53, s53, s54")
        a("s_add_u32 s53, s53, s29")
        a(f"s_add_u32 s53, s53, {OF + 4096}")
        add64(22, 8, "s53")
        a(f"s_add_u32 s53, s29, {HF}")
        add64(54, 8, "s53")
        a("s_lshl_b32 s53, s28, 1")
        a("s_add_u32 s53, s53, s14")
        a(f"s_mul_i32 s30, s15, {H_T1}")
        a("s_lshl_b32 s31, s53, 11")
        a("s_add_u32 s30, s30, s31")
        a("s_lshl_b32 s31, s15, 12")
        a("s_lshl_b32 s53, s53, 8")
        a("s_add_u32 s31, s31, s53")
        a(f"s_add_u32 s31, s31, {H_ST}")
        a("v_add_u32 v26, s30, v1")
        a("v_lshl_add_u32 v27, v5, 3, s31")
        a("v_and_b32 v11, 15, v0")
        a("v_lshl_add_u32 v12, v11, 7, s30")
        a("v_and_b32 v11, 1, v0")
        a("v_lshl_add_u32 v11, v11, 7, s31")
        a("v_cmp_gt_u32 vcc, 16, v0")
        a("s_lshl_b32 s53, s7, 2")
        a("s_add_u32 s53, s53, s3")
        a("v_cndmask_b32 v12, v11, v12, vcc")
        a("s_min_u32 s63, s53, 55")
        a("s_lshl_b32 s63, s63, 13")
        a(f"s_add_u32 s63, s63, {WOF}")
        a("v_lshl_add_u32 v21, v0, 7, s63")
        a("s_mul_i32 s53, s53, 13056")
        a(f"s_add_u32 s53, s53, {W1F + 4096}")
        add64(56, 8, "s53")
        a("v_lshrrev_b32 v10, 2, v0")
        a("v_lshlrev_b32 v10, 7, v10")
        a(f"v_lshl_add_u32 v10, v6, {OPT.get('w1s', 2)}, v10")
        a("v_add_u32 v11, 8192, v10")
        a("v_lshrrev_b32 v20, 1, v0")
        a("v_lshlrev_b32 v20, 12, v20")
        a("v_and_b32 v22, 16, v1")
        a("v_add_u32 v20, v22, v20")
        a(f"v_add_u32 v20, {SYNC + F_W}, v20")
        a(f"v_mov_b32 v19, {K1_RP + 1024}")
    setup_b()
    a("s_mov_b32 s68, 0")
    if force_fence: a("s_branch P1_far")
    a.label("P1_l")
    a("s_waitcnt vmcnt(0)")
    nstamp(a, "p1l1")
    a("v_cmp_ne_u32 vcc, s69, v29")
    a("s_cbranch_vccz P1_l_done")
    a(pollL)
    a("s_add_u32 s68, s68, 1")
    a(f"s_cmp_lt_u32 s68, {OPT.get('lrounds', 48)}")
    a("s_cbranch_scc1 P1_l")
    a("s_branch P1_far")
    a.label("P1_l_done")
    nstamp(a, "p1ll")
    if STAMPS and "cntl" in STAMP_SET: a(f"s_mov_b32 s{72 + 2*(1 + STAMP_SET.index('cntl'))}, s68")
    for t in range(4):
        V(f"buffer_load_dwordx4 {vr(Q+8*t,4)}, v1, s[16:19], s{58+t} offen sc1", f"q{t}")
        V(f"buffer_load_dwordx4 {vr(Q+8*t+4,4)}, v1, s[16:19], s{58+t} offen offset:1024 sc1", f"q{t}")
    body, a.L = a.L, []
    for p in range(2):
        for t in range(2):
            b = RB + 8*p + 4*t
            a(f"ds_read_b64_tr_b16 {vr(b,2)}, v{RT0+t} offset:{2048*p}")
            a(f"ds_read_b64_tr_b16 {vr(b+2,2)}, v{RT0+t} offset:{2048*p + 1024}")
    a("s_lshl_b32 s53, s3, 2")
    a(f"s_add_u32 s53, s53, {K1_RP + 1024}")
    a("v_mov_b32 v28, s53")
    setup_c()
    fillc, a.L = a.L, body
    NC0 = OPT.get('nc0', 60)
    a.L += fillc[:NC0]
    nstamp(a, "p1pa")
    V(pollA, "pa")
    a.L += fillc[NC0:]
    a("s_waitcnt lgkmcnt(0)")
    for r in (10, 11, 14, 15): a(f"v_and_b32 v{RB+r}, v143, v{RB+r}")
    a("s_cmp_eq_u32 s70, 0")
    a("s_cbranch_scc0 P1_wb_done")
    a(f"s_mov_b32 s63, {ONES_BF}")
    for i in range(4): a(f"v_mov_b32 v{CP+i}, 0")
    a("s_lshl_b32 s53, s3, 8")
    a(f"s_add_u32 s53, s53, {K1_RP}")
    a("v_add_u32 v29, s53, v8")
    for hf in range(2):
        for i in (0, 4, 1, 5, 2, 6, 3, 7): a(f"v_dot2c_f32_bf16 v{CP + 2*(i>>2) + (i&1)}, s63, v{RB+8*hf+i}")
    a("s_nop 2")
    a(f"v_add_f32 v{CP}, v{CP}, v{CP+1}")
    a(f"v_add_f32 v{CP+2}, v{CP+2}, v{CP+3}")
    a(f"v_mov_b32 v{CP+1}, v{CP}")
    a(f"v_mov_b32 v{CP+3}, v{CP+2}")
    a("s_nop 0")
    a(f"v_permlane32_swap_b32 v{CP+1}, v{CP}")
    a(f"v_permlane32_swap_b32 v{CP+3}, v{CP+2}")
    a("s_nop 0")
    a(f"v_add_f32 v{CP}, v{CP}, v{CP+1}")
    a(f"v_add_f32 v{CP+2}, v{CP+2}, v{CP+3}")
    a(f"v_cndmask_b32 v{CP}, v{CP}, v{CP+2}, s[64:65]")
    a(f"ds_write_b32 v29, v{CP}")
    a.label("P1_wb_done")
    nstamp(a, "p1ws")
    B0 = S + 16
    for t in range(4): a(f"v_mov_b32 v{B0+t}, 0")
    WV("q3")
    if OPT.get('pb0', 1): a(pollB)
    for t in range(4):
        for i in (6, 7): a(f"v_cndmask_b32 v{Q+8*t+i}, v{Q+8*t+i}, 0, s[64:65]")
    for i in range(8):
        for t in range(4): a(f"v_dot2c_f32_bf16 v{B0+t}, v{Q+8*t+i}, v{Q+8*t+i}")
    a("s_mov_b32 s68, 0")
    a("s_nop 1")
    for t in range(4): a(f"v_mov_b32 v{B0+4+t}, v{B0+t}")
    a("s_nop 0")
    for t in range(4): a(f"v_permlane32_swap_b32 v{B0+4+t}, v{B0+t}")
    a("s_nop 0")
    for t in range(4): a(f"v_add_f32 v{B0+t}, v{B0+t}, v{B0+4+t}")
    nstamp(a, "p1qn")
    if OPT.get('pb0', 1): a("s_branch P1_poll1")
    a.label("P1_poll")
    a(pollB)
    a.label("P1_poll1")
    a("s_add_u32 s68, s68, 1")
    a("s_waitcnt vmcnt(1)")
    nstamp(a, "p1p1")
    a(f"v_cmp_ne_u32 vcc, 1, v{PA+2}")
    a(f"v_max_f32 v4, v{PA}, v{PA+1}")
    a("s_cbranch_vccz P1_poll_done")
    a(pollA)
    a("s_waitcnt vmcnt(1)")
    a(f"v_cmp_ne_u32 vcc, 1, v{PB+2}")
    a(f"v_max_f32 v4, v{PB}, v{PB+1}")
    a("s_cbranch_vccz P1_poll_done")
    a(f"s_cmp_lt_u32 s68, {SPIN_LIMIT}")
    a("s_cbranch_scc1 P1_poll")
    a.label("P1_poll_done")
    vm.clear(); vm.issue("older")
    nstamp(a, "p1pl")
    if STAMPS and "cntp" in STAMP_SET: a(f"s_mov_b32 s{72 + 2*(1 + STAMP_SET.index('cntp'))}, s68")
    for i in range(NPRO):
        for part in range(4): V(kvld(i, part), f"{'KV'[part>>1]}{i}")
    for m_ in ("quad_perm:[1,0,3,2]", "quad_perm:[2,3,0,1]", "row_half_mirror"):
        a("s_nop 1")
        a(f"v_max_f32_dpp v4, v4, v4 {m_} row_mask:0xf bank_mask:0xf")
    a("ds_write_b32 v28, v4")
    V(f"buffer_store_dwordx4 {vr(RB,4)}, v1, s[24:27], s88 offen sc1", "wst")
    V(f"buffer_store_dwordx4 {vr(RB+4,4)}, v1, s[24:27], s89 offen sc1", "wst")
    V(f"buffer_store_dwordx4 {vr(RB+8,4)}, v1, s[24:27], s88 offen offset:1024 sc1", "wst")
    V(f"buffer_store_dwordx4 {vr(RB+12,4)}, v1, s[24:27], s89 offen offset:1024 sc1", "wst")
    srd(a, 24, 12, 13, X_BYTES)
    a("s_waitcnt lgkmcnt(0)")
    a("s_barrier")
    a(f"ds_read_b128 {vr(PL,4)}, v19")
    a("s_cmp_lt_u32 s62, 4")
    a("s_cbranch_scc1 P1_aug")
    a.label("P1_aug_done")
    late = [("v", f"global_load_dword v29, v30, s[66:67] offset:{F_W} sc1", "xcc"),
            ("v", "global_load_dword v4, v25, s[20:21] sc1", "late"),
            ("v", "global_load_dword v4, v12, s[54:55] sc1", "late")]
    warm = [("v", f"global_load_dword v31, v21, s[8:9]{WS}", "warm")]
    warm += [("v", f"global_load_dword v4, v{10 + (k >> 2)}, s[56:57] offset:{2048*(k & 3) - 4096}{WS}", "warm")
             for k in range(7)][:OPT.get('nwarm', 7)]
    wpoll = "global_load_dwordx4 v[16:19], v20, s[8:9] sc1"
    wtest = ["v_and_b32 v16, v16, v17", "v_and_b32 v18, v18, v19", "v_and_b32 v16, v16, v18", "v_and_b32 v16, 0x10101010, v16", "v_cmp_ne_u32 vcc, 0x10101010, v16"]
    nstamp(a, "pro")
    a("s_waitcnt lgkmcnt(0)")
    a(f"v_max3_f32 v4, v{PL}, v{PL+1}, v{PL+2}")
    a(f"v_max_f32 v4, v4, v{PL+3}")
    a(f"v_mul_f32 v4, {hexf(1.02)}, v4")
    for t in range(4): a(f"v_mul_f32 v{B0+t}, v{B0+t}, v4")
    for t in range(4): a(f"v_sqrt_f32 v{B0+t}, v{B0+t}")
    a("s_nop 0")
    a(f"v_max3_f32 v8, v{B0}, v{B0+1}, v{B0+2}")
    a(f"v_max_f32 v8, v8, v{B0+3}")
    lim = -1.0 if force_slow else SHIFT_LIMIT
    a(f"v_cmp_nge_f32 vcc, {hexf(lim)}, v8")
    a("v_add_u32 v8, 24576, v1")
    a("s_cbranch_vccnz KB_slow")
    vm_at_slow = list(vm.q)
    for t in range(4): a(f"v_cvt_pk_bf16_f32 v{B0+t}, -v{B0+t}, 0")
    for t in range(4): a(f"v_cndmask_b32 v{Q+8*t+6}, v{Q+8*t+6}, v{B0+t}, s[64:65]")
    WV("K0")
    a(mfma32(vr(S,16), vr(KVR,4), vr(Q,4), "0"))
    a(mfma32(vr(S,16), vr(KVR+4,4), vr(Q+4,4), vr(S,16)))
    a("s_nop 7")
    a("s_nop 3")
    nstamp(a, "loop")
    slots = {}
    def put(u, k, it):
        while (u, k) in slots: u, k = (u, k + 1) if k < 3 else (u + 1, 0)
        slots[(u, k)] = it if isinstance(it, list) else [it]
        return u, k
    for i in range(16):
        if i <= 14: slots[(4*i+2, 3)] = [("wv", f"K{i+1}")]
        slots[(4*i+1, 1)] = [("wv", f"V{i}")]
    pos = (0, 0)
    for i in range(NPRO, NKP):
        for part in range(4):
            pos = put(pos[0], pos[1], ("v", kvld(i, part), f"{'KV'[part>>1]}{i}"))
            if pos[1] == 2: pos = (pos[0] + 1, 0)
    if KVA:
        if WSL: slots[(OPT.get('wfu', 7), 0)] = [("wv", "K2")] + wflag
        fr = [(u, k) for u in range(2, KVA) for k in range(4) if (u, k) not in slots]
        its = [("v", kvld(i, part), f"{'KV'[part>>1]}{i}") for i in range(NKP, 16) for part in range(4)]
        for q, it in enumerate(its):
            sl = fr[q*len(fr)//len(its)]
            assert sl[0] < 4*(NKP + q//4) - 6 or q < 4, (q, sl)
            slots[sl] = [it]
    for q, it in enumerate(xr): put(OPT.get('x0', 58), 0, it)
    WP0, WP1 = OPT.get('wp0', 23 if WSL else 9), OPT.get('wp1', 26 if WSL else 12)
    if WSL and not KVA: put(7, 0, wflag)
    put(WP0, 0, ("v", wpoll, "wp"))
    pos = put(WP1, 0, [("wv", "wp")] + [("s", x) for x in wtest] + [("s", "s_cbranch_vccnz KB_wspin"), ("l", "KB_wspin_done")])
    assert pos[0] == WP1
    for q, it in enumerate(warm): put(OPT.get('e0', WP1 + 1) + q*OPT.get('de', 3), 2, it)
    if OPT.get('pta', 0):
        for q in range(3 - OPT.get('npl', 0), 3):
            put(OPT['pta'] + q*OPT.get('ptd', 3), 1, [("s", "s_mov_b64 exec, 0xffff"), ("v", f"global_load_dword v4, v23, s[8:9] offset:{256*q} sc1", "late"), ("s", "s_mov_b64 exec, -1")])
    NW1A = OPT.get('nw1a', 28)
    pref = [wo_item(f) for f in range(32)] + [w1_item(i) for i in range(NW1A)]
    free = [(u, k) for u in range(OPT.get('wo0', WP1 + 2), 57) for k in range(4) if (u, k) not in slots]
    for q, it in enumerate(pref):
        sl = free[q*len(free)//len(pref)]
        assert not KVA or q < 32 or sl[0] >= 4*(3 + (q - 32)//4) + 5, (q, sl)
        slots[sl] = it
    lf = [(u, k) for u in range(57, 62) for k in range(4) if (u, k) not in slots]
    for q, it in enumerate(late): slots[lf[2*q]] = [it]
    slots[lf[1]] = [("s", f"s_load_dword s{88+i}, s[66:67], {o} glc") for i, o in enumerate((F_O, F_H, F_P1))]
    def redw(t, q): return ("d", f"ds_write_b128 v{13+t}, {ar(16*t+4*q,4)} offset:{1024*q}", "red")
    for q, sl in enumerate([(62,1), (62,2), (62,3), (63,2)]): slots.setdefault(sl, []).append(redw(0, q))
    tail63 = [redw(1, q) for q in range(4)]
    slots.setdefault((63,3), []).append(tail63[0])
    for u in range(64):
        sb, pb = S + 16*(u & 1), P + 8*(u & 1)
        sn, pp = S + 16*((u+1) & 1), P + 8*((u-1) & 1)
        un, up = u + 1, u - 1
        kt = min(un >> 2, 15); qn = Q + 8*(un & 3)
        vt = max(up >> 2, 0); oa = ar(16*(up & 3), 16)
        M = [mfma32(vr(sn,16), kvr(kt, 0), vr(qn,4), "0"),
             mfma32(vr(sn,16), kvr(kt, 1), vr(qn+4,4), vr(sn,16)),
             mfma32(oa, kvr(vt, 2), vr(pp,4), "0" if up < 4 else oa),
             mfma32(oa, kvr(vt, 3), vr(pp+4,4), oa)]
        e = lambda k: f"v_exp_f32 v{sb+k}, v{sb+k}"
        c = lambda k: f"v_cvt_pk_bf16_f32 v{pb+k}, v{sb+2*k}, v{sb+2*k+1}"
        groups = [[e(0), e(1), e(2), e(3), c(0)], [e(4), c(1), e(5), e(6), e(7), c(2)],
                  [e(8), c(3), e(9), e(10), e(11), c(4)], [e(12), c(5), e(13), e(14), e(15), c(6), c(7)]]
        nstamp(a, f"u{u}")
        for k in range(4):
            on = not ((u == 63 and k < 2) or (u == 0 and k >= 2))
            if OPT.get("m16a"):
                h = split16(M[k], (k & 1, k < 2 or up < 4))
                if on: a(h[0])
                for it in slots.get((u, k), []): emit_item(it)
                for x in groups[k][:2]: a(x)
                if on: a(h[1])
                for x in groups[k][2:]: a(x)
                continue
            if on: a(M[k])
            for it in slots.get((u, k), []): emit_item(it)
            for x in groups[k]: a(x)
    emit_item(tail63[1])
    a(mfma32(ar(48,16), vr(kvs[15]+8,4), vr(P+8,4), ar(48,16)))
    emit_item(tail63[2])
    a(mfma32(ar(48,16), vr(kvs[15]+12,4), vr(P+12,4), ar(48,16)))
    emit_item(tail63[3])
    for q in range(4): emit_item(redw(2, q))
    a.label("KB_red")
    nstamp(a, "red")
    AUG, BAUG, RS = 32, 40, 16
    def w2base(u): return 32 + 2*u
    NST = OPT.get('nst', 16)
    def w2reg(q):
        if q < 8: return ar(224+4*q, 4)
        if q < 8 + NST: return w1reg(28 - NST + q - 8)
        j = q - 8 - NST
        return w1reg(28 + j) if j < 28 else w1reg(j - 28)
    def w2_item(q):
        u, ks = divmod(q, 16)
        b = w2base(u)
        return [("v", f"global_load_dwordx4 {w2reg(q)}, v{VOFF[ks//8]}, s[{b}:{b+1}] offset:{1024*(ks%8) - 4096}{WS}", f"w2_{q}")]
    def st_item(i):
        it = [("s", f"s_add_u32 m0, s60, {4096*(i//4)}")]
        d = {4: 4096, 8: 112*1024 - 12288, 12: 4096}.get(i)
        if d: it += [("s", f"s_add_u32 s70, s70, {d}"), ("s", "s_addc_u32 s71, s71, 0")]
        else: it += [("s", "s_nop 0")]
        return it + [("v", f"global_load_lds_dwordx4 v1, s[70:71] offset:{1024*(i%4)}{WS}", f"st{i}")]
    aug_items = [[("v", f"global_load_dwordx4 {vr(AUG+4*k,4)}, v8, s[{96+2*k}:{97+2*k}] sc1", f"aug{k}")] for k in range(2)]
    early = [w1_item(i) for i in range(NW1A, 56)] + [st_item(i) for i in range(NST)]
    after = aug_items + [w2_item(q) for q in range(8)]
    def bulk(n, allow_after=False):
        out = []
        for _ in range(n):
            src = after if allow_after and after and not any(x[-1][2].startswith("w1_") for x in early) else early
            if not src: src = after if allow_after else []
            if src: out += src.pop(0)
        return out
    def nve(items): return sum(1 for x in items if x[0] == "v")
    fences = []
    def signal(off, lab, items):
        m0now[0] = None
        for it in items: emit_item(it)
        k = nve(items)
        a(f"s_waitcnt vmcnt({k})"); vm.q = vm.q[len(vm.q)-k:] if k else []
        a("s_cmp_eq_u32 s68, 0")
        a(f"s_cbranch_scc1 {lab}_fence")
        a("s_mov_b64 exec, 1")
        V(f"global_store_byte v10, v11, s[66:67] offset:{off}", "sig")
        a("s_mov_b64 exec, -1")
        a.label(f"{lab}_done")
        fences.append(("sig", off, lab, []))
    def poll(off, lab, items):
        a("s_mov_b32 s52, 0")
        a("s_cmp_eq_u32 s68, 0")
        a(f"s_cbranch_scc1 {lab}_fence")
        m0now[0] = None
        if items:
            V(f"global_load_dword v31, v30, s[66:67] offset:{off} sc1", "poll")
            for it in items: emit_item(it)
            if off == F_O and OPT.get("it", 1):
                for w in range(3):
                    a(f"s_cmp_eq_u32 s3, {w}")
                    a(f"s_cbranch_scc1 KB_CHAIN{w}")
                a("s_branch KB_CHAIN3")
                a.label("KB_tret")
            WV("poll")
            a("v_cmp_ne_u32 vcc, 0x01010101, v31")
            a(f"s_cbranch_vccz {lab}_done")
        else: vm.clear()
        a.label(f"{lab}_loop")
        a(f"global_load_dword v31, v30, s[66:67] offset:{off} sc1")
        a("s_add_u32 s52, s52, 1")
        a("s_waitcnt vmcnt(0)")
        a("v_cmp_ne_u32 vcc, 0x01010101, v31")
        a(f"s_cbranch_vccz {lab}_done")
        a(f"s_cmp_lt_u32 s52, {SPIN_LIMIT}")
        a(f"s_cbranch_scc1 {lab}_loop")
        a.label(f"{lab}_done")
        fences.append(("poll", off, lab, items))
        m0now[0] = None
        if STAMPS and f"cnt{off}" in STAMP_SET: a(f"s_mov_b32 s{72 + 2*(1 + STAMP_SET.index(f'cnt{off}'))}, s52")
    a("s_mul_i32 s53, s3, 12288")
    a("v_add_u32 v10, s53, v1")
    a("s_mul_i32 s53, s3, 3*112*1024")
    a("s_lshl_b32 s61, s28, 14")
    a("s_add_u32 s53, s53, s61")
    a(f"s_add_u32 s53, s53, {W2F + 4096}")
    add64(32, 8, "s53")
    add64(34, 32, 112*1024)
    add64(36, 34, 112*1024)
    a("s_add_u32 s53, s15, 12")
    a("s_mul_i32 s53, s53, 112*1024")
    a("s_add_u32 s53, s53, s61")
    a(f"s_add_u32 s53, s53, {W2F + 4096}")
    add64(38, 8, "s53")
    add64(70, 32, 4096)
    a("s_lshl_b32 s60, s3, 14")
    a(f"s_add_u32 s60, s60, {L_W2}")
    for i in range(16): a(f"v_accvgpr_read_b32 v{32+i}, a{48+i}")
    a("s_waitcnt lgkmcnt(0)"); lg.clear()
    a("s_barrier")
    for j in range(12): D(f"ds_read_b128 {vr(48+4*j,4)}, v10 offset:{L_RED+1024*j}", f"r{j//4}")
    for it in bulk(OPT.get('wa', 5)): emit_item(it)
    WV("xcc")
    a("s_mov_b32 s68, 1")
    a("v_cmp_ne_u32 vcc, s69, v29")
    if force_fence: a("s_branch KB_xcc")
    else: a("s_cbranch_vccnz KB_xcc")
    a.label("KB_xcc_done")
    a("s_lshl_b32 s53, s5, 2")
    a("s_add_u32 s53, s53, s3")
    a("v_mov_b32 v10, s53")
    a("v_mov_b32 v11, 1")
    for j in range(3):
        WL(f"r{j}")
        for i in range(16): a(f"v_add_f32 v{32+i}, v{32+i}, v{48+16*j+i}")
    a("v_mov_b32 v12, v44")
    a("v_mov_b32 v13, v44")
    a("s_nop 1")
    a("v_permlane32_swap_b32 v12, v13")
    a("s_nop 1")
    a("v_rcp_f32 v13, v13")
    a("s_nop 0")
    for i in range(16): a(f"v_mul_f32 v{32+i}, v{32+i}, v13")
    a("s_cmp_eq_u32 s68, 0")
    for i in range(8): a(f"v_cvt_pk_bf16_f32 v{48+i}, v{32+2*i}, v{33+2*i}")
    a("s_cbranch_scc1 KB_ost_fence")
    for hf in range(2): V(f"global_store_dwordx4 v24, {vr(48+4*hf,4)}, s[20:21] offset:{1024*hf}{SM('osm')}", "ost")
    a.label("KB_ost_done")
    nstamp(a, "ost")
    KA, GA = 96, 112
    WV("xr")
    for u in range(2):
        for i in range(2): a(f"v_permlane32_swap_b32 v{XR+4*u+i}, v{XR+4*u+2+i}")
    a("s_mul_i32 s53, s3, 4096")
    a(f"s_add_u32 s53, s53, {L_XC}")
    a("v_add_u32 v14, s53, v1")
    a("v_xor_b32 v15, 4096, v14")
    for i in range(8):
        a(f"v_lshlrev_b32 v{KA+2*i}, 16, v{XR+i}")
        a(f"v_and_b32 v{KA+2*i+1}, 0xffff0000, v{XR+i}")
    signal(F_O, "KB_sg0", bulk(OPT.get('wb', 6)))
    nstamp(a, "sig0")
    a("s_cmp_eq_u32 s5, 7")
    a("s_cbranch_scc1 KB_m7")
    q_m7 = list(vm.q)
    poll(F_O, "KB_pl0", bulk(OPT.get('wc', 5)))
    nstamp(a, "poll0")
    OB = 32
    for i in range(16): V(f"global_load_dwordx4 {vr(OB+4*i,4)}, v{VOFF[i//8]}, s[22:23] offset:{1024*(i%8) - 4096} sc1", f"ob{i}")
    wd = bulk(OPT.get('wd', 7))
    wdv = []
    while wd:
        k = next(j for j, x in enumerate(wd) if x[0] == "v") + 1
        wdv.append(wd[:k]); wd = wd[k:]
    a("v_min_u32 v30, 24, v30")
    a(f"s_mov_b32 s53, {ONES_BF}")
    a("v_mov_b32 v12, 0")
    a("v_mov_b32 v13, 0")
    NDEF = OPT.get('ndef', 7)
    WV("wo31")
    for k in range(16):
        WV(f"ob{k}")
        a(mfma32(vr(GA,16), woreg(k), vr(OB+4*k,4), "0" if k == 0 else vr(GA,16)))
        if wdv:
            for it in wdv.pop(0): emit_item(it)
        if k < 16 - NDEF: a(mfma32(vr(KA,16), woreg(16+k), vr(OB+4*k,4), vr(KA,16)))
    for it in wdv:
        for x in it: emit_item(x)
    nstamp(a, "wog")
    for j, k in enumerate(range(16 - NDEF, 16)):
        a(mfma32(vr(KA,16), woreg(16+k), vr(OB+4*k,4), vr(KA,16)))
        if j in (1, 2):
            for q in range(2): D(f"ds_write_b128 v14, {vr(GA+8*(j-1)+4*q,4)} offset:{2048*(j-1) + 1024*q}", "xw")
        if j == min(4, NDEF - 1):
            a("s_waitcnt lgkmcnt(0)"); lg.clear()
            a("s_barrier")
            for q in range(4): D(f"ds_read_b128 {vr(32+4*q,4)}, v15 offset:{1024*q}", f"xr{q}")
    a("s_nop 7")
    a("s_nop 2")
    H = 48
    for hf in range(2):
        for q in (2*hf, 2*hf+1):
            WL(f"xr{q}")
            for i in range(4): a(f"v_add_f32 v{KA+4*q+i}, v{KA+4*q+i}, v{32+4*q+i}")
        for i in range(4): a(f"v_cvt_pk_bf16_f32 v{H+4*hf+i}, v{KA+8*hf+2*i}, v{KA+8*hf+2*i+1}")
        V(f"global_store_dwordx4 v26, {vr(H+4*hf,4)}, s[54:55] offset:{1024*hf}{SM('hnm')}", "hst")
    nstamp(a, "hst")
    for i in range(8):
        a(f"v_dot2c_f32_bf16 v12, s53, v{H+i}")
        a(f"v_dot2c_f32_bf16 v13, v{H+i}, v{H+i}")
    a("s_nop 2")
    a("v_mov_b32 v14, v12")
    a("v_mov_b32 v15, v13")
    a("s_nop 0")
    a("v_permlane32_swap_b32 v14, v12")
    a("v_permlane32_swap_b32 v15, v13")
    a("s_mov_b32 exec_hi, 0")
    a("v_add_f32 v12, v12, v14")
    a("v_add_f32 v13, v13, v15")
    V(f"global_store_dwordx2 v27, v[12:13], s[54:55]{SM('hnm')}", "hst")
    a("s_mov_b32 exec_hi, -1")
    signal(F_H, "KB_sg1", bulk(OPT.get('we', 6), True))
    nstamp(a, "sig1")
    T0, A2, A1, HOLD = 24, 48, 80, 144
    accs = {("A",0): A1, ("B",0): A1+16, ("B",1): A1+32, ("A",1): A1+48}
    a("s_lshl_b32 s61, s3, 12")
    a("s_add_u32 s29, s61, 12288")
    a(f"s_add_u32 s30, s61, {H_T1 - 4096}")
    a(f"s_add_u32 s31, s61, {H_T1 + 12288}")
    a("s_cmp_eq_u32 s3, 3")
    a(f"s_cselect_b32 s59, {H_ST}, s61")
    a(f"s_cselect_b32 s29, {H_ST + 4096}, s29")
    a("s_cmp_eq_u32 s3, 0")
    a("s_cselect_b32 s30, 24576, s30")
    add64(48, 54, "s59")
    add64(50, 54, "s29")
    add64(56, 54, "s30")
    add64(62, 54, "s31")
    a("s_mul_i32 s53, s4, 458752")
    a("s_mul_i32 s58, s5, 3584")
    a("s_add_u32 s53, s53, s58")
    a(f"s_add_u32 s53, s53, {PART}")
    add64(40, 8, "s53")
    a("s_mul_i32 s58, s14, 28672")
    a("s_lshl_b32 s53, s15, 8")
    a("s_add_u32 s58, s58, s53")
    a("s_add_u32 s58, s58, 3072")
    add64(44, 40, "s58")
    a("s_mul_i32 s58, s3, 768")
    add64(40, 40, "s58")
    add64(42, 40, 28672)
    a("v_lshrrev_b32 v12, 2, v5")
    a("v_mul_u32_u24 v12, 57344, v12")
    a("v_lshl_add_u32 v12, v2, 6, v12")
    a("v_lshl_add_u32 v12, v6, 4, v12")
    if OPT.get('tch', 0) or OPT.get('npl', 0):
        a("v_and_b32 v22, 7, v0")
        a("v_mul_u32_u24 v22, 57344, v22")
        a("v_lshrrev_b32 v21, 3, v0")
        a("v_lshl_add_u32 v22, v21, 7, v22")
    a("s_lshl_b32 s53, s3, 11")
    a(f"s_add_u32 s53, s53, {L_ACT}")
    a("v_add_u32 v13, s53, v1")
    a(f"v_add_u32 v14, {L_ACT}, v1")
    a("s_lshl_b32 s53, s14, 14")
    a("v_add_u32 v15, s53, v14")
    a("v_add_u32 v18, s60, v1")
    a("v_mul_u32_u24 v19, 1792, v2")
    a("v_lshl_add_u32 v19, v5, 3, v19")
    a(f"v_lshlrev_b32 v20, 2, v5")
    a(f"v_add_u32 v20, {H_ST + 3584}, v20")
    a("s_lshl_b32 s53, s5, 2")
    a("s_or_b32 s53, s53, s3")
    a("s_cmp_eq_u32 s53, 0")
    a("s_cselect_b32 s46, -1, 0")
    a("s_mov_b32 s47, 0")
    a(f"s_mov_b32 s58, {hexf(math.sqrt(0.5))}")
    nstamp(a, "pl1")
    poll(F_H, "KB_pl1", bulk(OPT.get('wf', 5), True))
    nstamp(a, "poll1")
    def dma_items(q):
        g = q // 4
        m = f"s_mov_b32 m0, s{(59, 29, 30, 31)[g]}"
        b = (48, 50, 56, 62)[g]
        return [("s", m), ("s", "s_nop 0"), ("v", f"global_load_lds_dwordx4 v1, s[{b}:{b+1}] offset:{1024*(q%4)} sc1", f"hn{q}")]
    NDM = OPT.get('ndm', 8)
    for q in range(NDM):
        for it in dma_items(q): emit_item(it)
    G0 = 116
    NM = G0 + 112
    pre = {i: [] for i in range(NM + 1)}
    post = {i: [] for i in range(NM)}
    mf = []
    hold = lambda ks: vr(HOLD+4*ks, 4)
    for X, tt in (("A",0), ("B",0), ("B",1), ("A",1)):
        d = vr(accs[(X,tt)], 16)
        for ks in range(28): mf.append(mfma32(d, w1reg(ks + (28 if X == "B" else 0)), hold(ks), "0" if ks == 0 else d))
        mf.append(mfma32(d, vr(AUG + (4 if X == "B" else 0), 4), vr(BAUG + 4*tt, 4), d))
    act0 = lambda ks: vr(HOLD+4*ks, 4)
    act1 = lambda ks: vr(HOLD+64+4*ks, 4) if ks < 12 else vr(A1+4*(ks-12), 4)
    ring = lambda ks: vr(A1+16+4*(ks & 7), 4)
    acc2 = lambda ui: (A2, A2 + 16, AUG)[ui % 3]
    units = [(0, act0, 40, 0), (1, act0, 40, 1), (2, act0, 40, 2), (3, ring, 44, 0), (0, act1, 42, 0), (1, act1, 42, 1), (2, act1, 42, 2)]
    for ui, (u, breg, sb_, no) in enumerate(units):
        d = vr(acc2(ui), 16)
        for ks in range(16): mf.append(mfma32(d, w2reg(16*u+ks), breg(ks), "0" if ks == 0 else d))
    AHEAD = 4
    rd0 = lambda ks: ("d", f"ds_read_b128 {hold(ks)}, v1 offset:{L_HN + 1024*ks}", f"h0_{ks}")
    rd1 = lambda ks: ("d", f"ds_read_b128 {hold(ks)}, v1 offset:{L_HN + H_T1 + 1024*ks}", f"h1_{ks}")
    ST = A2
    rds = lambda tt, i: ("d", f"ds_read_b64 {vr(ST+16*tt+2*i,2)}, v19 offset:{L_HN + H_ST + 4096*tt + 256*i}", f"s{tt}")
    pre[0] += [("wv", "hn3"), ("s", "s_barrier")] + [rd0(ks) for ks in range(AHEAD)] + [rds(0, i) for i in range(7)]
    for ks in range(28):
        if ks + AHEAD == 12: post[ks] += [("wv", "hn7"), ("s", "s_barrier")]
        if ks + AHEAD == 24: post[ks] += [("wv", "hn11"), ("s", "s_barrier")]
        if ks + AHEAD < 28: post[ks].append(rd0(ks + AHEAD))
        if ks < 2 or ks % 2 == 0: pre[ks].append(("wl", f"h0_{ks if ks < 2 else ks + 1}"))
        pre[ks].append(("wv", f"w1_{ks}"))
    for q in range(NDM, 16): post[1 + (q-NDM)] += dma_items(q)
    k = 2 + (16 - NDM)
    while early or after:
        post[k] += bulk(1, True); k += 2
    assert k < 58, k
    pre[28].append(("wv", "aug0"))
    pre[57].append(("wv", "aug1"))
    post[40] += [("wv", "hn15"), ("s", "s_barrier")]
    for ks in range(28):
        pre[29+ks].append(("wv", f"w1_{28+ks}"))
        post[29+ks].append(rd1(ks))
    for i in range(7): post[9 + i].append(rds(1, i))
    for ks in range(0, 28, 4): pre[58+ks].append(("wl", f"h1_{min(ks+3, 27)}"))
    nd = 56 - NST
    for j in range(nd):
        if j >= OPT.get('skipw2', 0): post[OPT.get('w20', 58) + j*OPT.get('w2n', 5)//2] += w2_item(8 + NST + j)
    for i in range(NST):
        k = 87 + 28 - NST + i + 2
        post[k] += [("wv", f"st{min(i | 3, NST - 1)}"), ("d", f"ds_read_b128 {w2reg(8+i)}, v18 offset:{1024*i}", f"sr{i}")]
        if i % 4 == 0: pre[G0+8+i].append(("wl", f"sr{min(i + 3, NST - 1)}"))
    for q in range(0, 64, 2): pre[G0+q].append(("wv", f"w2_{q+1}"))
    def stat_items(tt, start):
        b = ST + 16*tt; o = BAUG + 4*tt
        L = [("wl", f"s{tt}", start)]
        X = []
        for d_, s_ in ((0, 1), (2, 3), (4, 5), (0, 2), (4, 6), (0, 4)):
            X += [f"v_add_f32 v{b+2*d_+e}, v{b+2*d_+e}, v{b+2*s_+e}" for e in range(2)]
        X += [f"v_mov_b32 v{b+2}, v{b}", f"v_mov_b32 v{b+3}, v{b+1}", "s_nop 0",
              f"v_permlane32_swap_b32 v{b+2}, v{b}", f"v_permlane32_swap_b32 v{b+3}, v{b+1}", "s_nop 0",
              f"v_add_f32 v{b}, v{b}, v{b+2}", f"v_add_f32 v{b+1}, v{b+1}, v{b+3}",
              f"v_mul_f32 v{b}, {hexf(-1.0/448)}, v{b}", f"v_mul_f32 v{b+1}, {hexf(1.0/448)}, v{b+1}",
              f"v_fma_f32 v{b+1}, -v{b}, v{b}, v{b+1}", f"v_cvt_pk_bf16_f32 v{o+1}, v{b}, v{b}",
              f"v_max_f32 v{b+1}, 0, v{b+1}", f"v_lshlrev_b32 v{b+2}, 16, v{o+1}",
              f"v_add_f32 v{b+1}, {hexf(1e-5)}, v{b+1}", f"v_sub_f32 v{b+3}, v{b}, v{b+2}",
              f"v_rsq_f32 v{RS+tt}, v{b+1}", f"v_cvt_pk_bf16_f32 v{o}, v{b+2}, v{b+3}",
              f"v_cvt_pk_bf16_f32 v{o+2}, v{b+3}, v{b+2}", f"v_mul_f32 v{b+1}, v{b+1}, v{RS+tt}",
              f"v_mul_f32 v{RS+tt}, {hexf(LOG2E)}, v{RS+tt}", f"v_cvt_pk_bf16_f32 v{b+2}, v{b+1}, v{b+1}",
              f"v_lshlrev_b32 v{b+2}, 16, v{b+2}", f"v_sub_f32 v{b+3}, v{b+1}, v{b+2}",
              f"v_cvt_pk_bf16_f32 v{o+3}, v{b+2}, v{b+3}", f"v_cndmask_b32 v{o+3}, v{o+3}, 0, s[64:65]", "s_nop 1"]
        pub = [("s", "s_mov_b64 exec, s[46:47]", start), ("v", f"global_store_dword v20, v{RS+tt}, s[54:55] offset:{128*tt}", start), ("s", "s_mov_b64 exec, -1", start)]
        return L + [("s", x, start) for x in X] + [("mark", f"st{tt}", 0)] + [("grp", pub, start)]
    def mish_items(X, tt, start):
        x0 = accs[(X,tt)]; pk = x0
        L = []
        for g in range(4):
            t = T0 + 4*(g & 1); x = x0 + 4*g
            L += [f"v_fma_f32 v{t+i}, v{x+i}, v{RS+tt}, -0.5" for i in range(4)]
            L += [f"v_exp_f32 v{t+i}, v{t+i}" for i in range(4)]
            L += [f"v_add_f32 v{t+i}, s58, v{t+i}" for i in range(4)]
            L += [f"v_fma_f32 v{t+i}, -v{t+i}, v{t+i}, -0.5" for i in range(4)]
            L += [f"v_rcp_f32 v{t+i}, v{t+i}" for i in range(4)]
            L += [f"v_fmac_f32 v{x+i}, v{x+i}, v{t+i}" for i in range(4)]
            L += [f"v_cvt_pk_bf16_f32 v{pk+2*g+i}, v{x+2*i}, v{x+2*i+1}" for i in range(2)]
        it = [("s", x, start) for x in L]
        off = tt*16384 + (8192 if X == "B" else 0)
        it += [("d", f"ds_write_b128 v13, {vr(pk+4*hf,4)} offset:{off + 1024*hf}", start) for hf in range(2)]
        return it
    fill = stat_items(0, 3) + stat_items(1, 18) + mish_items("A", 0, 31) + mish_items("B", 0, 60)
    fill += [("bar", "b1", 0)]
    fill += mish_items("B", 1, 89) + mish_items("A", 1, 118)
    fill += [("bar", "b2", 0)]
    rda = lambda reg, addr, tt, ks, tag: ("d", f"ds_read_b128 {reg}, {addr} offset:{16384*tt + 1024*ks}", tag)
    need_pre = {28: "st0", 86: "st1"}
    need_post = {G0 - 11: "b1", G0 + 43: "b2"}
    for ks in range(16):
        post[G0 - 11 + ks].append(rda(act0(ks), "v14", 0, ks, f"a0_{ks}"))
        post[G0 + 43 + ks].append(rda(ring(ks), "v15", 0, ks, f"am_{ks}"))
        post[G0 + 49 + ks].append(rda(act1(ks), "v14", 1, ks, f"a1_{ks}"))
        if ks % 2 == 0:
            pre[G0+ks].append(("wl", f"a0_{ks+1}"))
            pre[G0+48+ks].append(("wl", f"am_{ks+1}"))
            pre[G0+64+ks].append(("wl", f"a1_{ks+1}"))
    outq = []
    for ui, (u, breg, sb_, no) in enumerate(units):
        d = acc2(ui); pk = d
        L = []
        for hf in range(2):
            p4 = pk + 4*hf
            L += [("s", f"v_cvt_pk_bf16_f32 v{p4+i}, v{d+8*hf+2*i}, v{d+8*hf+2*i+1}") for i in range(4)]
            L += [("v", f"global_store_dwordx4 v12, {vr(p4,4)}, s[{sb_}:{sb_+1}] offset:{256*no + 128*hf}{SM('pm') if ui < 7 - OPT.get('npl', 0) else ''}", "pst")]
        outq.append((max(G0 + 16*ui + 18, G0 + (OPT.get('o0', 36), 46)[ui] if ui < 2 else 0), L, G0 + 16*ui + 46))
    for ui in range(OPT.get('tch', 0)):
        u, breg, sb_, no = units[ui]
        i = G0 + [OPT.get('t0', 64), OPT.get('t1', 72), OPT.get('t2', 80), OPT.get('t3', 92), OPT.get('t4', 104), OPT.get('t5', 111)][ui]
        post[i] += [("s", "s_mov_b64 exec, 0xffff"), ("v", f"global_load_dword v21, v22, s[{sb_}:{sb_+1}] offset:{256*no} sc1", "tch"), ("s", "s_mov_b64 exec, -1")]
    NPL = OPT.get('npl', 0)
    if NPL and not OPT.get('pta', 0):
        n1 = min(NPL, 3)
        post[OPT.get('pt0', 20)] += [("s", f"s_bfm_b64 exec, {16*n1}, 0"), ("v", f"global_load_dword v21, v22, s[42:43] offset:{256*(3 - n1)} sc1", "tch"), ("s", "s_mov_b64 exec, -1")]
        if NPL > 3: post[OPT.get('pt0', 20) + 6] += [("s", "s_mov_b64 exec, 0xffff"), ("v", "global_load_dword v21, v22, s[44:45] sc1", "tch"), ("s", "s_mov_b64 exec, -1")]
        if NPL > 4:
            n1 = NPL - 4
            post[OPT.get('pt0', 20) + 12] += [("s", f"s_bfm_b64 exec, {16*n1}, 0"), ("v", f"global_load_dword v21, v22, s[40:41] offset:{256*(3 - n1)} sc1", "tch"), ("s", "s_mov_b64 exec, -1")]
    done = set()
    fq = list(fill); cur = [0]
    def emit_fill(it):
        if it[0] == "bar":
            a("s_waitcnt lgkmcnt(0)"); lg.clear()
            a("s_barrier"); done.add(it[1]); print("note: barrier", it[1], "after MFMA", cur[0])
            return 8
        if it[0] == "mark":
            done.add(it[1]); print("note:", it[1], "complete after MFMA", cur[0])
            return 0
        if it[0] == "wl":
            WL(it[1]); return 0
        if it[0] == "grp":
            for x in it[1]:
                if x[0] == "v": V(x[1], "pub")
                else: a(x[1])
            return 16
        if it[0] == "d": D(it[1])
        else: a(it[1])
        return cost(it[1])
    credit = 0.0
    lastw = [-9]
    def flush(tag, i):
        c = 0
        while tag not in done: c += emit_fill(fq.pop(0))
        if c: print(f"note: {c:.0f} cycles of vector work flushed at MFMA {i}")
        return c
    for i in range(NM):
        cur[0] = i
        assert not outq or i < outq[0][2], i
        if i in need_pre: credit -= flush(need_pre[i], i)
        n0 = len(a.L)
        for it in pre[i]: emit_item(it)
        if OPT.get("m16f"):
            kk = i % 29 if i < G0 else (i - G0) % 16
            hh = split16(mf[i], (kk & 1, kk < 2))
            a(hh[0]); n1 = len(a.L)
        else: a(mf[i])
        if i in need_post: credit -= flush(need_post[i], i); n0 = len(a.L) - 1
        for it in post[i]: emit_item(it)
        nmem = 0
        credit = max(min(credit, 0), -12) + OPT.get('cr', 31)
        for ln in a.L[n0:]:
            if ln.split()[0].startswith(("ds_", "global_")):
                credit -= 10 if nmem else 4; nmem += 1
            else: credit -= 4
        nstamp(a, f"m{i}")
        while outq and outq[0][0] <= i and credit > 0:
            L = outq[0][1]
            it = L.pop(0); emit_item(it); credit -= cost(it[1])
            if not L: outq.pop(0)
        while fq and credit > 0:
            k = 0
            if fq[0][0] == "bar" and i < lastw[0] + OPT.get('bd', 3):
                k = 1
                if len(fq) < 2: break
            if not (fq[k][0] in ("bar", "mark") or fq[k][2] <= i): break
            if fq[k][0] == "d": lastw[0] = i
            credit -= emit_fill(fq.pop(k))
        if OPT.get("m16f"):
            tail = a.L[n1:]
            k = 0; c = 0
            while k < len(tail) and c < 10 and not tail[k].strip().startswith(("s_barrier", "s_mov_b64")):
                c += cost(tail[k].strip()); k += 1
            a.L.insert(n1 + k, "    " + hh[1])
    assert not fq, len(fq)
    a("s_nop 7")
    a("s_nop 3")
    for _, L, _ in outq:
        for it in L: emit_item(it)
    nstamp(a, "g2end")
    signal(F_P1, "KB_sg2", [])
    nstamp(a, "sig2")
    a.label("KB_fin")
    R, SUM, HR, HF32 = 144, 80, 200, 96
    a("s_mul_i32 s53, s4, 458752")
    a("s_mul_i32 s52, s5, 57344")
    a("s_add_u32 s53, s53, s52")
    a("s_lshl_b32 s52, s3, 10")
    a("s_add_u32 s53, s53, s52")
    a(f"s_add_u32 s53, s53, {PART + 3584}")
    add64(32, 8, "s53")
    for k in range(1, 5): add64(32 + 2*k, 30 + 2*k, 3*3584)
    a("s_lshl_b32 s53, s3, 13")
    a("s_lshl_b32 s52, s5, 6")
    a("s_add_u32 s53, s53, s52")
    add64(42, 54, "s53")
    add64(44, 42, H_T1)
    for i in range(16): a(f"v_mov_b32 v{SUM+i}, 0")
    a("v_lshrrev_b32 v13, 3, v0")
    a("v_bfe_u32 v14, v0, 2, 1")
    a("v_lshlrev_b32 v15, 10, v13")
    a("v_lshl_add_u32 v15, v14, 9, v15")
    a("v_lshl_add_u32 v15, v6, 4, v15")
    a("v_mul_u32_u24 v12, 896, v6")
    a("v_lshl_add_u32 v12, v13, 5, v12")
    a("v_lshl_add_u32 v12, v14, 4, v12")
    a("s_mul_i32 s60, s6, 8*896")
    a("s_lshl_b32 s61, s3, 8")
    a("s_add_u32 s60, s60, s61")
    a("s_mov_b32 s62, 0x00003f80")
    a("s_mov_b32 s63, 0x3f800000")
    a("s_lshl_b32 s61, s5, 4")
    a(f"s_add_u32 s61, s61, {H_ST + 3584}")
    a("v_lshl_add_u32 v16, v6, 2, s61")
    a("s_cmp_eq_u32 s3, 3")
    a("s_cselect_b32 s59, 0, -1")
    a("v_and_b32 v30, 7, v0")
    a("v_min_u32 v30, 6, v30")
    a("v_lshlrev_b32 v30, 2, v30")
    nstamp(a, "pl2")
    poll(F_P1, "KB_pl2", [])
    nstamp(a, "poll2")
    vm.clear(); vm.issue("older")
    if OPT.get('m3', 0): a("s_mov_b32 exec_hi, s59")
    for tt in range(2):
        V(f"global_load_dword v{18+tt}, v16, s[54:55] offset:{128*tt} sc1", f"hr{tt}")
        V(f"global_load_dwordx4 {vr(HR+4*tt,4)}, v15, s[{42+2*tt}:{43+2*tt}] sc1", f"hr{tt}")
        for p in range(7):
            k, r = divmod(8*tt + p, 3)
            V(f"global_load_dwordx4 {vr(R+28*tt+4*p,4)}, v1, s[{32+2*k}:{33+2*k}] offset:{3584*(r-1)} sc1", f"p{tt}{p}")
    for tt in range(2):
        WV(f"hr{tt}")
        nstamp(a, f"fh{tt}")
        a(f"v_mul_f32 v{18+tt}, {hexf(LN2F)}, v{18+tt}")
        for i in range(4):
            a(f"v_lshlrev_b32 v{HF32+8*tt+2*i}, 16, v{HR+4*tt+i}")
            a(f"v_and_b32 v{HF32+8*tt+2*i+1}, 0xffff0000, v{HR+4*tt+i}")
        for p in range(7):
            WV(f"p{tt}{p}")
            nstamp(a, f"fp{tt}{p}")
            for i in range(4):
                a(f"v_dot2c_f32_bf16 v{SUM+8*tt+2*i}, s62, v{R+28*tt+4*p+i}")
                a(f"v_dot2c_f32_bf16 v{SUM+8*tt+2*i+1}, s63, v{R+28*tt+4*p+i}")
        a("s_nop 2")
        b = 32 + 4*tt
        for i in range(8): a(f"v_fmac_f32 v{HF32+8*tt+i}, v{18+tt}, v{SUM+8*tt+i}")
        for i in range(4): a(f"v_cvt_pk_bf16_f32 v{b+i}, v{HF32+8*tt+2*i}, v{HF32+8*tt+2*i+1}")
        a(f"v_mov_b32 v40, v{b+2}")
        a(f"v_mov_b32 v41, v{b+3}")
        a("s_nop 0")
        a(f"v_mov_b32_dpp v{b+2}, v{b} row_shl:4 row_mask:0xf bank_mask:0x5")
        a(f"v_mov_b32_dpp v{b+3}, v{b+1} row_shl:4 row_mask:0xf bank_mask:0x5")
        a(f"v_mov_b32_dpp v{b}, v40 row_shr:4 row_mask:0xf bank_mask:0xa")
        a(f"v_mov_b32_dpp v{b+1}, v41 row_shr:4 row_mask:0xf bank_mask:0xa")
        if not OPT.get('m3', 0): a("s_mov_b32 exec_hi, s59")
        a(f"buffer_store_dwordx4 {vr(b,4)}, v12, s[24:27], s60 offen offset:{3584*tt}{SM('om')}")
        if tt == 0 and not OPT.get('m3', 0): a("s_mov_b32 exec_hi, -1")
    fin(a, 1, 8)
    a.label("KB_end")
    a("s_endpgm")

    a.label("KB_m7")
    a("v_lshlrev_b32 v12, 7, v0")
    a("v_mov_b32 v13, 0")
    a("s_cmp_eq_u32 s4, 0")
    a("s_cselect_b64 exec, 3, 0")
    a("global_store_dword v12, v13, s[92:93] sc0 sc1")
    a("s_mov_b64 exec, -1")
    a("s_and_b32 s53, s4, 3")
    a("s_lshl_b32 s53, s53, 2")
    a("s_add_u32 s53, s53, s3")
    a("s_mul_i32 s53, s53, 100352")
    a(f"s_add_u32 s53, s53, {W2F}")
    add64(56, 8, "s53")
    sh = OPT.get('m7s', 7)
    a(f"v_lshlrev_b32 v12, {sh}, v0")
    for k in range(13 << (7 - sh) if OPT.get('m7w', 1) else 0):
        a(f"global_load_dword v4, v12, s[56:57]{WS}")
        add64(56, 56, 64 << sh)
    if OPT.get('m7t', 0):
        a("s_mul_i32 s53, s4, 458752")
        a("s_mul_i32 s52, s3, 114688")
        a("s_add_u32 s53, s53, s52")
        a(f"s_add_u32 s53, s53, {PART}")
        add64(56, 8, "s53")
        for k in range(14):
            a("global_load_dword v4, v12, s[56:57] sc1")
            add64(56, 56, 8192)
    if OPT.get('m7wb', 0):
        a("s_cmp_eq_u32 s3, 0")
        a("s_cbranch_scc0 KB_fin")
        a("v_min_u32 v30, 24, v30")
        a("s_mov_b32 s52, 0")
        a.label("KB_m7p")
        a(f"global_load_dword v31, v30, s[66:67] offset:{F_H} sc1")
        a("s_add_u32 s52, s52, 1")
        a("s_waitcnt vmcnt(0)")
        a("v_cmp_ne_u32 vcc, 0x01010101, v31")
        a("s_cbranch_vccz KB_m7q")
        a(f"s_cmp_lt_u32 s52, {SPIN_LIMIT}")
        a("s_cbranch_scc1 KB_m7p")
        a.label("KB_m7q")
        a("buffer_wbl2 sc1")
        a("s_waitcnt vmcnt(0)")
    a("s_branch KB_fin")

    a.label("KB_xcc")
    a("s_mov_b32 s68, 0")
    a("s_branch KB_xcc_done")
    a.label("KB_ost_fence")
    for hf in range(2): a(f"global_store_dwordx4 v24, {vr(48+4*hf,4)}, s[20:21] offset:{1024*hf} sc0 sc1")
    a("s_branch KB_ost_done")
    for kind, off, lab, items in fences:
        a.label(f"{lab}_fence")
        if kind == "sig":
            a("buffer_wbl2 sc1")
            a("s_waitcnt vmcnt(0)")
            a("s_mov_b64 exec, 1")
            a(f"global_store_byte v10, v11, s[66:67] offset:{off} sc0 sc1")
            a("s_mov_b64 exec, -1")
            a(f"s_branch {lab}_done")
            continue
        for it in items: a(it[1])
        a.label(f"{lab}_floop")
        a(f"global_load_dword v31, v30, s[66:67] offset:{off} sc0 sc1")
        a("s_add_u32 s52, s52, 1")
        a("s_waitcnt vmcnt(0)")
        a("v_cmp_ne_u32 vcc, 0x01010101, v31")
        a(f"s_cbranch_vccz {lab}_fdone")
        a(f"s_cmp_lt_u32 s52, {SPIN_LIMIT}")
        a(f"s_cbranch_scc1 {lab}_floop")
        a.label(f"{lab}_fdone")
        a("buffer_inv sc1")
        a("s_waitcnt vmcnt(0) lgkmcnt(0)")
        a(f"s_branch {lab}_done")

    a.label("KB_wspin")
    a("s_mov_b32 s68, 0")
    a.label("KB_wspin_loop")
    a(wpoll)
    a("s_add_u32 s68, s68, 1")
    a("s_waitcnt vmcnt(0)")
    for x in wtest: a(x)
    a("s_cbranch_vccz KB_wspin_done")
    a(f"s_cmp_lt_u32 s68, {SPIN_LIMIT}")
    a("s_cbranch_scc1 KB_wspin_loop")
    a("s_branch KB_wspin_done")
    a.label("P1_ack")
    a("s_mov_b32 s68, 0")
    a.label("P1_ack_loop")
    a(f"global_load_dword v{ACK}, v{CLO}, s[92:93] offset:{D_CLR} sc1")
    a("s_add_u32 s68, s68, 1")
    a("s_waitcnt vmcnt(0)")
    a(f"v_cmp_ne_u32 vcc, 0x01010101, v{ACK}")
    a("s_cbranch_vccz P1_ack_done")
    a(f"s_cmp_lt_u32 s68, {SPIN_LIMIT}")
    a("s_cbranch_scc1 P1_ack_loop")
    a("s_branch P1_ack_done")
    a.label("P1_far")
    a("s_lshl_b32 s53, s4, 3")
    a("s_and_b32 s68, s3, 2")
    a("s_lshl_b32 s68, s68, 1")
    a("s_add_u32 s53, s53, s68")
    a("s_lshl_b32 s53, s53, 13")
    a(f"s_add_u32 s53, s53, {QF2}")
    a("s_cmp_eq_u32 s5, 0")
    a("s_cbranch_scc1 P1_far_f")
    for q in range(4): a(f"buffer_store_dwordx2 {vr(48+2*q,2)}, v{132+q}, s[16:19], s53 offen sc0 sc1")
    a.label("P1_far_f")
    a("v_mov_b32 v18, 1")
    a("s_waitcnt vmcnt(0)")
    a("s_mov_b64 exec, 1")
    a(f"global_store_byte v16, v18, s[66:67] offset:{F_M} sc0 sc1")
    a("s_mov_b64 exec, -1")
    a("s_mov_b32 s68, 0")
    a.label("P1_far_l")
    a(pollL)
    a(f"global_load_dword v18, v30, s[66:67] offset:{F_M} sc0 sc1")
    a("s_add_u32 s68, s68, 1")
    a("s_waitcnt vmcnt(0)")
    if not force_fence:
        a("v_cmp_ne_u32 vcc, s69, v29")
        a("s_cbranch_vccz P1_l_done")
    a("v_cmp_ne_u32 vcc, 0x01010101, v18")
    a("s_cbranch_vccz P1_far_d")
    a(f"s_cmp_lt_u32 s68, {SPIN_LIMIT}")
    a("s_cbranch_scc1 P1_far_l")
    a.label("P1_far_d")
    for t in range(4): a(f"s_add_u32 s{58+t}, s{58+t}, {QF2 - QF}")
    a("s_branch P1_l_done")
    a.label("P1_aug")
    a(f"v_add_u32 v28, {K1_RP}, v8")
    for w in range(4): a(f"ds_read_b32 v{CP+w}, v28 offset:{256*w}")
    a(f"v_mul_u32_u24 v29, {W1S}, v2")
    a("v_lshl_add_u32 v29, v5, 4, v29")
    a("s_and_b32 s63, s62, 1")
    a("s_mul_i32 s53, s63, 6")
    a("s_add_u32 s53, s53, s71")
    a(f"v_lshl_or_b32 v{BIA}, v{BIA}, 16, v{BIA}")
    a("s_cmp_eq_u32 s62, 0")
    a("s_cselect_b32 s70, -1, 0")
    a(f"v_and_b32 v{BIA}, s70, v{BIA}")
    a("s_waitcnt lgkmcnt(0)")
    a(f"v_add_f32 v{CP}, v{CP}, v{CP+1}")
    a(f"v_add_f32 v{CP+2}, v{CP+2}, v{CP+3}")
    a(f"v_and_b32 v{CP}, s90, v{CP}")
    a(f"v_and_b32 v{CP+2}, s91, v{CP+2}")
    a(f"v_add_f32 v{CP}, v{CP}, v{CP+2}")
    a(f"v_cvt_pk_bf16_f32 v{CP+1}, v{CP}, v{CP}")
    a(f"v_lshlrev_b32 v{CP+2}, 16, v{CP+1}")
    a(f"v_sub_f32 v{CP+2}, v{CP}, v{CP+2}")
    a(f"v_cvt_pk_bf16_f32 v{CP+2}, v{CP+2}, v{CP+2}")
    a(f"buffer_store_short v{CP+1}, v29, s[16:19], s53 offen sc1")
    a(f"buffer_store_short v{CP+1}, v29, s[16:19], s53 offen offset:2 sc1")
    a(f"buffer_store_short v{CP+2}, v29, s[16:19], s53 offen offset:4 sc1")
    a("s_cmp_eq_u32 s63, 0")
    a("s_cbranch_scc0 P1_aug_done")
    a(f"buffer_store_dword v{BIA}, v29, s[16:19], s71 offen offset:12 sc1")
    a("s_branch P1_aug_done")
    a.label("KB_slow")
    vm.q = list(vm_at_slow)
    if WSL:
        a("s_waitcnt vmcnt(0)")
        for it in wflag: a(it[1])
    a("s_mov_b32 s68, 0")
    a.label("KB_slow_w")
    a(wpoll)
    a("s_add_u32 s68, s68, 1")
    a("s_waitcnt vmcnt(0)"); vm.clear()
    for x in wtest: a(x)
    a("s_cbranch_vccz KB_slow_wd")
    a(f"s_cmp_lt_u32 s68, {SPIN_LIMIT}")
    a("s_cbranch_scc1 KB_slow_w")
    a.label("KB_slow_wd")
    for k, it in enumerate([x for f in pref for x in f] + xr + late):
        emit_item(it)
        if len(vm.q) >= 32: a("s_waitcnt vmcnt(0)"); vm.clear()
    MX = P + 8
    for t in range(4): a(f"v_mov_b32 v{MX+t}, 0xff800000")
    for i in range(64): a(f"v_accvgpr_write_b32 a{i}, 0")
    a("v_lshlrev_b32 v3, 2, v0")
    a("s_sub_u32 s52, s52, 4096")
    a("s_mov_b32 s61, 0")
    a.label("KB_s1")
    a("s_add_u32 s53, s52, s61")
    for i in range(2): a(f"buffer_load_dwordx4 {vr(KVR+4*i,4)}, v1, s[16:19], s53 offen offset:{1024*i} sc1")
    a("s_waitcnt vmcnt(0)")
    for t in range(4):
        a(mfma32(vr(S,16), vr(KVR,4), vr(Q+8*t,4), "0"))
        a(mfma32(vr(S,16), vr(KVR+4,4), vr(Q+8*t+4,4), vr(S,16)))
        a("s_nop 7")
        a("s_nop 3")
        for i in range(8): a(f"v_max3_f32 v{MX+t}, v{S+2*i}, v{S+2*i+1}, v{MX+t}")
    a("s_add_u32 s61, s61, 4096")
    a("s_cmp_lt_u32 s61, 0x10000")
    a("s_cbranch_scc1 KB_s1")
    for t in range(4):
        half_sum(a, MX+t, 12, "v_max_f32")
        a(f"s_add_u32 s53, s3, {t+1}")
        a("s_and_b32 s53, s53, 3")
        a("s_lshl_b32 s53, s53, 10")
        a("s_lshl_b32 s61, s3, 8")
        a("s_add_u32 s53, s53, s61")
        a("v_add_u32 v12, s53, v3")
        a(f"ds_write_b32 v12, v{MX+t}")
    a("s_waitcnt lgkmcnt(0)")
    a("s_barrier")
    for t in range(4):
        a(f"s_add_u32 s53, s3, {t+1}")
        a("s_and_b32 s53, s53, 3")
        a("s_lshl_b32 s53, s53, 10")
        a("v_add_u32 v12, s53, v3")
        for w in range(4): a(f"ds_read_b32 v{S+w}, v12 offset:{256*w}")
        a("s_waitcnt lgkmcnt(0)")
        a(f"v_max3_f32 v{MX+t}, v{S}, v{S+1}, v{S+2}")
        a(f"v_max_f32 v{MX+t}, v{MX+t}, v{S+3}")
    a("s_barrier")
    a("s_mov_b32 s61, 0")
    a.label("KB_s2")
    a("s_add_u32 s53, s52, s61")
    for i in range(4): a(f"buffer_load_dwordx4 {vr(KVR+4*i,4)}, v1, s[16:19], s53 offen offset:{1024*i} sc1")
    a("s_waitcnt vmcnt(0)")
    for t in range(4):
        a(mfma32(vr(S,16), vr(KVR,4), vr(Q+8*t,4), "0"))
        a(mfma32(vr(S,16), vr(KVR+4,4), vr(Q+8*t+4,4), vr(S,16)))
        a("s_nop 7")
        a("s_nop 3")
        for i in range(16): a(f"v_sub_f32 v{S+i}, v{S+i}, v{MX+t}")
        for i in range(16): a(f"v_exp_f32 v{S+i}, v{S+i}")
        a("s_nop 0")
        for i in range(8): a(f"v_cvt_pk_bf16_f32 v{P+i}, v{S+2*i}, v{S+2*i+1}")
        a("s_nop 1")
        a(mfma32(ar(16*t,16), vr(KVR+8,4), vr(P,4), ar(16*t,16)))
        a(mfma32(ar(16*t,16), vr(KVR+12,4), vr(P+4,4), ar(16*t,16)))
    a("s_add_u32 s61, s61, 4096")
    a("s_cmp_lt_u32 s61, 0x10000")
    a("s_cbranch_scc1 KB_s2")
    a("s_nop 7")
    a("s_nop 3")
    for t in range(3):
        for q in range(4): a(redw(t, q)[1])
    a("s_branch KB_red")
    p1_body(a, "k")
    p1_body(a, "v")
    a.label("KB_code_end")
    return kd(n, 512, 102, 256), f"; @launch grid=(256,1,1) block=(256,1,1) lds={KB_LDS}"


def build(force_slow=False, extra=0, force_fence=False):
    a = Asm()
    parts = [gen_kb(a, force_slow, force_fence)]
    launches = [p[1] for p in parts]
    kds = [p[0] for p in parts]
    if extra:
        header(a, "nop_kernel")
        a("s_endpgm")
        kds.append(kd("nop_kernel", 8, 16, 8))
        launches += ["; @launch kernel=nop_kernel grid=(256,1,1) block=(64,1,1) lds=0"] * extra
    out = "\n".join(launches) + "\n"
    out += '.amdgcn_target "amdgcn-amd-amdhsa--gfx950"\n.text\n'
    out += a.text()
    out += '.section .rodata,"a"\n' + "".join(kds)
    return out

if __name__ == "__main__":
    import argparse
    ap = argparse.ArgumentParser()
    ap.add_argument("-o", default="v2.s")
    ap.add_argument("--slow", action="store_true")
    ap.add_argument("--fence", action="store_true")
    ap.add_argument("--opt", default="")
    ap.add_argument("--extra", type=int, default=0)
    ap.add_argument("--stamps", default="", help="up to six stamp names for the fused kernel")
    args = ap.parse_args()
    for kv in args.opt.split(","):
        if kv:
            k_, _, v_ = kv.partition("=")
            OPT[k_] = int(v_) if v_ else 1
    STAMPS = bool(args.stamps)
    STAMP_SET = args.stamps.split(",")
    txt = build(args.slow, args.extra, args.fence)
    import hazard, itouch, re
    plain = re.sub(r"(K[AB])_CHAIN\d", r"\1_tret", txt)
    print("hazards:", hazard.check(plain), "waits:", 0 if STAMPS else hazard.waitcheck(plain))
    txt = re.sub(r"(K[AB])_CHAIN(\d)", r"\1_tret ;chain\1\2", txt)
    for pre, end in (("KA", "KB_red"), ("KB", "KB_end")):
        if f"{pre}_tret:" not in txt: continue
        txt, nb = itouch.insert(txt, pre, f"{pre}_tret", end, lambda n: [list(range(1 + w, n + 1, 4)) for w in range(4)], f"{pre}_tret")
        ch = [list(range(1 + w, nb + 1, 4)) for w in range(4)]
        txt = re.sub(rf"{pre}_tret ;chain{pre}(\d)", lambda m: f"{pre}_t{ch[int(m.group(1))][0]}" if ch[int(m.group(1))] else f"{pre}_tret", txt)
        print("code blocks touched:", nb)
    open(args.o, "w").write(txt)
```

```python
import math, struct, sys

NAME = "sequential_preLN__grouped_kv_mqa__dense_activation_mish__prompt"

QF   = 0x000000
KV   = 0x200000
SYNC = 0x240000
WOF  = 0x260000
W1F  = 0x300000
W2F  = 0x500000
OF   = 0x700000
HF   = 0x900000
PART = 0xB00000
QF2  = PART + 32*8*8*7168
WS_SIZE = QF2 + 0x200000
W1S = 29*1024

X_BYTES = 2048*896
WQ_BYTES = 448*896
WK_BYTES = 448*56
W1_BYTES = 448*3584
W2_BYTES = 1792*896

def f2u(f): return struct.unpack("<I", struct.pack("<f", f))[0]
def hexf(f): return "0x%08x" % f2u(f)
LOG2E = math.log2(math.e)
QSCALE = LOG2E / math.sqrt(28.0)
ONES_BF = "0x3f803f80"

class Asm:
    def __init__(self):
        self.L = []
    def __call__(self, s):
        for ln in s.split("\n"):
            ln = ln.strip()
            if ln: self.L.append("    " + ln)
    def label(self, s): self.L.append(s + ":")
    def c(self, s): self.L.append("    ; " + s)
    def text(self): return "\n".join(self.L) + "\n"

def vr(b, n=1): return f"v{b}" if n == 1 else f"v[{b}:{b+n-1}]"
def ar(b, n=1): return f"a{b}" if n == 1 else f"a[{b}:{b+n-1}]"
def sr(b, n=1): return f"s{b}" if n == 1 else f"s[{b}:{b+n-1}]"

def srd(a, d, lo, hi, nbytes):
    a(f"s_mov_b32 s{d}, s{lo}")
    a(f"s_mov_b32 s{d+1}, s{hi}")
    a(f"s_mov_b32 s{d+2}, {nbytes if isinstance(nbytes, str) else hex(nbytes)}")
    a(f"s_mov_b32 s{d+3}, 0x20000")

def header(a, name):
    a.L.append(f".globl {name}")
    a.L.append(".p2align 12")
    if OPT.get("pad", 1): a.L.append(".fill 832, 4, 0xbf800000")
    a.L.append(".p2align 8")
    a.L.append(f".type {name},@function")
    a.label(name)

def kd(name, vgpr, sgpr, accum):
    return f""".p2align 6
.amdhsa_kernel {name}
  .amdhsa_next_free_vgpr {vgpr}
  .amdhsa_next_free_sgpr {max(96, sgpr) if STAMPS else sgpr}
  .amdhsa_accum_offset {accum}
  .amdhsa_group_segment_fixed_size 0
  .amdhsa_kernarg_size 96
  .amdhsa_user_sgpr_count 2
  .amdhsa_user_sgpr_kernarg_segment_ptr 1
  .amdhsa_system_sgpr_workgroup_id_x 1
.end_amdhsa_kernel
"""

STAMPS = False
STAMP_BASE = 0x8000000
def stamp(a, i):
    if STAMPS: a(f"{'s_memtime' if OPT.get('cyc') and 0 < i < 7 else 's_memrealtime'} s[{72+2*i}:{73+2*i}]")
STAMP_SET = []
OPT = {}
def SM(k):
    return {0: '', 1: ' sc1', 2: ' sc0 sc1', 3: ' nt', 4: ' sc1 nt', 5: ' sc0 sc1 nt'}[int(OPT.get(k, {'pm': 1, 'k1m': 1, 'qm': 0}.get(k, 0)))]
def nstamp(a, name):
    if STAMPS and name in STAMP_SET:
        i = 1 + STAMP_SET.index(name)
        a(f"{'s_memtime' if OPT.get('cyc') else 's_memrealtime'} s[{72+2*i}:{73+2*i}]")
def stamp_init(a):
    if STAMPS:
        for i in range(8): a(f"s_mov_b32 s{72+2*i}, 0")
        stamp(a, 0)
        if OPT.get("dbg"): a("s_load_dwordx2 s[92:93], s[0:1], 80")
def fin(a, kidx, wslo):
    if STAMPS and OPT.get("dbg"):
        stamp(a, 7)
        a("s_mov_b64 exec, 0xff")
        a("s_waitcnt lgkmcnt(0)")
        a("s_not_b32 s72, s72")
        a("v_mbcnt_lo_u32_b32 v1, -1, 0")
        for i in range(8):
            a(f"v_mov_b32 v2, s{72+2*i}")
            a(f"v_cmp_eq_u32 vcc, {i}, v1")
            a("v_cndmask_b32 v0, v0, v2, vcc")
        a("v_lshlrev_b32 v1, 2, v1")
        a(f"s_add_u32 s92, s92, {32 if kidx else 512}")
        a("s_addc_u32 s93, s93, 0")
        a("s_and_b32 s90, s2, 31")
        a("s_lshl_b32 s91, s3, 5")
        a("s_or_b32 s90, s90, s91")
        a("s_cmp_eq_u32 s90, 5")
        a("s_cselect_b64 exec, exec, 0")
        a("global_atomic_umax v1, v0, s[92:93]")
    elif STAMPS:
        stamp(a, 7)
        a("s_mov_b64 exec, 1")
        a("s_waitcnt lgkmcnt(0)")
        for i in range(8): a(f"v_mov_b32 v{i}, s{72+2*i}")
        srd(a, 68, wslo, wslo+1, 0x10000000)
        a("s_lshl_b32 s90, s2, 3")
        a("s_add_u32 s90, s90, s3")
        a(f"s_add_u32 s90, s90, {kidx*4096}")
        a("s_lshl_b32 s90, s90, 5")
        a(f"s_add_u32 s90, s90, {STAMP_BASE}")
        a("v_mov_b32 v8, 0")
        a("buffer_store_dwordx4 v[0:3], v8, s[68:71], s90 offen")
        a("buffer_store_dwordx4 v[4:7], v8, s[68:71], s90 offen offset:16")
        if kidx == 1 and "pa" in OPT:
            lab = f"PRB{len(a.L)}"
            a("s_lshl_b32 s91, s3, 8")
            a("s_or_b32 s91, s91, s2")
            a(f"s_cmp_lg_u32 s91, {OPT.get('pw', 5)}")
            a(f"s_cbranch_scc1 {lab}_e")
            a(f"s_add_u32 s68, s68, {STAMP_BASE + 5*8*32}")
            a("s_addc_u32 s69, s69, 0")
            a("s_load_dwordx8 s[40:47], s[68:69], 0")
            a("s_waitcnt lgkmcnt(0)")
            reg = lambda i: f"s{40+i}" if i < 8 else f"s{72+2*(i-8)}"
            a(f"s_sub_u32 s91, {reg(int(OPT['pb']))}, {reg(int(OPT['pa']))}")
            a("s_lshl_b32 s91, s91, 3")
            a("s_min_u32 s91, s91, 40000")
            a("s_add_u32 s91, s91, s86")
            a.label(lab)
            a("s_memrealtime s[48:49]")
            a("s_waitcnt lgkmcnt(0)")
            a("s_sub_u32 s50, s48, s91")
            a("s_cmp_lt_i32 s50, 0")
            a(f"s_cbranch_scc1 {lab}")
            a.label(lab + "_e")
    a("s_endpgm")

def mfma32(d, A, B, C): return f"v_mfma_f32_32x32x16_bf16 {d}, {A}, {B}, {C}"
def mfma16(d, A, B, C): return f"v_mfma_f32_16x16x32_bf16 {d}, {A}, {B}, {C}"

def split16(m, ph):
    import re
    g = re.match(r"v_mfma_f32_32x32x16_bf16 ([va])\[(\d+):\d+\], (\S+), (\S+), (\S+)", m)
    t, d, A, B, C = g.group(1), int(g.group(2)), g.group(3), g.group(4), g.group(5)
    out = []
    for j in range(2):
        r = f"{t}[{d + 8*ph[0] + 4*j}:{d + 8*ph[0] + 4*j + 3}]"
        out.append(f"v_mfma_f32_16x16x32_bf16 {r}, {A}, {B}, {'0' if ph[1] else r}")
    return out

def half_sum(a, x, t, op="v_add_f32"):
    a(f"v_mov_b32 v{t}, v{x}")
    a("s_nop 1")
    a(f"v_permlane32_swap_b32 v{t}, v{x}")
    a("s_nop 1")
    a(f"{op} v{x}, v{x}, v{t}")

K1_X, K1_W, K1_RL, K1_ST, K1_CS, K1_RP = 0, 57344, 114688, 131072, 131584, 132096
F_W, F_O, F_H, F_P1, F_L, F_M, F_R = 0, 128, 256, 384, 512, 640, 1024
D_CLR = 0
NA = 3

def chunk_items(kind, i):
    it = []
    if kind == "q":
        it.append(["s_lshl_b32 s49, s48, 7", "s_add_u32 s49, s49, s44", f"s_add_u32 m0, s45, {1024*i}", "s_mul_i32 s50, s48, 64*896", "buffer_load_dwordx4 v9, s[8:11], s49 offen lds"])
        it.append(["s_add_u32 s49, s49, 8*896", f"s_add_u32 m0, s45, {1024*i + 7168}", "s_add_u32 s50, s50, s46", "buffer_load_dwordx4 v9, s[8:11], s49 offen lds"])
        it.append([f"s_add_u32 m0, s47, {8192*i}", "s_add_u32 s48, s48, 1", "buffer_load_dwordx4 v8, s[12:15], s50 offen lds"])
        it.append(["s_add_u32 s50, s50, 8*896", f"s_add_u32 m0, s47, {8192*i + 1024}", "s_cmp_eq_u32 s48, 7", "s_cselect_b32 s48, 0, s48", "buffer_load_dwordx4 v8, s[12:15], s50 offen lds"])
    else:
        it.append([f"s_add_u32 m0, s45, {1024*i}", f"s_add_u32 s49, s44, {128*i}", "buffer_load_dwordx4 v9, s[8:11], s49 offen lds"])
        it.append([f"s_add_u32 m0, s45, {1024*i + 7168}", f"s_add_u32 s49, s44, {128*i + 7168}", "buffer_load_dwordx4 v9, s[8:11], s49 offen lds"])
        it.append([f"s_add_u32 m0, s47, {4096*i}", f"s_add_u32 s50, s46, {4096*i}", "buffer_load_dwordx4 v8, s[12:15], s50 offen lds"])
        it.append([f"s_add_u32 m0, s47, {4096*i + 2048}", f"s_add_u32 s50, s46, {4096*i + 2048}", "buffer_load_dwordx4 v8, s[12:15], s50 offen lds"])
    return it

ACC, CS, SS, SQ, SEL, ONE, BUF, SB = 96, 112, 116, 120, 124, 128, 32, 16
RLV, ACK, BIA, RT0, RT1, LN16, CLO = 136, 137, 138, 139, 140, 141, 142

def tlbw(a):
    if not OPT.get("tw"): return
    for d, b, o in ((96, 36, 0), (97, 40, 0), (98, 32, 0), (99, 38, 0), (100, 94, 0), (101, 94, 0x200000), (88, 94, 0x400000), (89, 94, 0x600000)):
        if o: a(f"s_mov_b32 s90, {o}")
        a(f"s_load_dword s{d}, s[{b}:{b+1}], {'s90' if o else 0}")

def p1_head(a):
    a("s_cmp_ge_u32 s2, 256")
    a("s_cbranch_scc1 KB_end")
    stamp_init(a)
    a("s_load_dwordx4 s[24:27], s[0:1], 0")
    a("s_load_dwordx4 s[28:31], s[0:1], 16")
    a("s_load_dwordx4 s[92:95], s[0:1], 80")
    a("s_load_dwordx2 s[32:33], s[0:1], 32")
    a("s_load_dwordx4 s[36:39], s[0:1], 48")
    a("s_load_dwordx4 s[40:43], s[0:1], 64")
    a("v_lshrrev_b32 v1, 6, v0")
    a("v_and_b32 v0, 63, v0")
    a("v_readfirstlane_b32 s3, v1")
    a("s_and_b32 s4, s2, 7")
    a("s_lshl_b32 s4, s4, 2")
    a("s_bfe_u32 s5, s2, 0x20003")
    a("s_add_u32 s4, s4, s5")
    a("s_lshr_b32 s5, s2, 5")
    a("v_lshrrev_b32 v6, 3, v0")
    a("v_and_b32 v7, 7, v0")
    a("s_and_b32 s6, s3, 1")
    a("s_lshr_b32 s7, s3, 1")
    a("v_lshrrev_b32 v10, 1, v6")
    a("v_xor_b32 v9, v7, v10")
    a("s_lshl_b32 s44, s6, 2")
    a("v_xor_b32 v9, s44, v9")
    a("v_mul_u32_u24 v8, 896, v6")
    a("v_lshl_add_u32 v9, v9, 4, v8")
    a("v_and_b32 v11, 1, v10")
    a("v_lshlrev_b32 v11, 2, v11")
    a("v_xor_b32 v11, v7, v11")
    a("v_lshlrev_b32 v11, 4, v11")
    a("s_lshl_b32 s44, s4, 6")
    a("s_lshl_b32 s45, s3, 4")
    a("s_add_u32 s44, s44, s45")
    a("s_mul_i32 s44, s44, 896")
    a("s_mul_i32 s45, s3, 14336")
    a(f"s_mov_b32 s10, {X_BYTES}")
    a("s_mov_b32 s11, 0x20000")
    a("s_mov_b32 s15, 0x20000")
    a(f"v_lshlrev_b32 v{LN16}, 4, v0")
    a("s_lshl_b32 s63, s4, 12")
    a(f"s_add_u32 s63, s63, {SYNC}")
    a("s_cmp_eq_u32 s5, 0")
    a("s_cbranch_scc1 P1_kv")
    a("s_sub_u32 s68, s5, 1")
    a("v_add_u32 v8, v8, v11")
    a("s_mul_i32 s46, s3, 16*896")
    a("s_lshl_b32 s47, s68, 7")
    a("s_add_u32 s46, s46, s47")
    a("s_lshl_b32 s47, s3, 11")
    a(f"s_add_u32 s47, s47, {K1_W}")
    a("s_and_b32 s48, s4, 3")
    a(f"s_mul_i32 s48, s48, {OPT.get('rotm', 2)}")
    a("s_add_u32 s48, s48, s68")
    a("s_cmp_ge_u32 s48, 7")
    a("s_cselect_b32 s49, 7, 0")
    a("s_sub_u32 s48, s48, s49")
    a(f"s_mov_b32 s14, {WQ_BYTES}")
    a("s_sub_u32 s50, s2, 224")
    a("s_cmp_lt_u32 s50, 8")
    a("s_waitcnt lgkmcnt(0)")
    a("s_mov_b32 s8, s24")
    a("s_mov_b32 s9, s25")
    a("s_mov_b32 s12, s26")
    a("s_mov_b32 s13, s27")
    a("s_cbranch_scc1 P1_clr")
    a.label("P1_clr_done")
    for i in range(OPT.get("naq", NA)):
        for it in chunk_items("q", i):
            for x in it: a(x)
    nstamp(a, "p1ld")
    a("v_lshrrev_b32 v2, 5, v0")
    a("v_and_b32 v13, 31, v0")
    a("s_lshl_b32 s51, s68, 4")
    a("s_lshl_b32 s52, s6, 3")
    a("s_add_u32 s51, s51, s52")
    a("v_add_u32 v14, s51, v2")
    a("v_lshrrev_b32 v12, 3, v13")
    a("v_lshlrev_b32 v12, 13, v12")
    a("v_lshl_add_u32 v12, v7, 4, v12")
    for q in range(4):
        d = 132 + q
        a("v_mul_u32_u24 v30, 147, v14")
        a("v_lshrrev_b32 v30, 10, v30")
        a("v_mul_u32_u24 v31, 7, v30")
        a("v_sub_u32 v31, v14, v31")
        a(f"v_lshrrev_b32 v{d}, 2, v30")
        a(f"v_lshl_add_u32 v{d}, v{d}, 11, v12")
        a("v_and_b32 v30, 3, v30")
        a(f"v_lshl_add_u32 v{d}, v30, 7, v{d}")
        a("v_lshrrev_b32 v30, 2, v31")
        a(f"v_lshl_add_u32 v{d}, v30, 10, v{d}")
        a("v_and_b32 v30, 1, v31")
        a(f"v_lshl_add_u32 v{d}, v30, 9, v{d}")
        a("v_bfe_u32 v30, v31, 1, 1")
        a(f"v_lshl_add_u32 v{d}, v30, 3, v{d}")
        if q < 3: a("v_add_u32 v14, 2, v14")
    a("v_bfe_u32 v4, v0, 2, 2")
    a("v_lshlrev_b32 v10, 3, v2")
    a("v_add_u32 v10, v10, v4")
    a("v_lshrrev_b32 v12, 1, v4")
    a("v_xor_b32 v12, s6, v12")
    a("v_lshlrev_b32 v10, 7, v10")
    a("v_lshl_add_u32 v10, v12, 6, v10")
    a(f"v_add_u32 v10, {K1_W}, v10")
    a("s_branch P1_s2")
    a.label("P1_clr")
    for i in range(4): a(f"v_mov_b32 v{20+i}, 0")
    a("s_lshl_b32 s50, s50, 2")
    a("s_add_u32 s50, s50, s3")
    a("s_lshl_b32 s50, s50, 12")
    a(f"s_add_u32 s50, s50, {SYNC}")
    a("s_add_u32 s66, s94, s50")
    a("s_addc_u32 s67, s95, 0")
    a(f"global_store_dwordx4 v{LN16}, v[20:23], s[66:67] sc0 sc1")
    a(f"global_store_dwordx4 v{LN16}, v[20:23], s[66:67] offset:1024 sc0 sc1")
    a("s_branch P1_clr_done")
    a.label("P1_kv")
    a("s_lshl_b32 s46, s7, 10")
    a("s_mul_i32 s47, s6, 28672")
    a("s_add_u32 s47, s47, s46")
    a(f"s_add_u32 s47, s47, {K1_W}")
    a(f"v_mov_b32 v8, v{LN16}")
    a(f"s_mov_b32 s14, {WK_BYTES}")
    a("s_cmp_eq_u32 s6, 0")
    a("s_waitcnt lgkmcnt(0)")
    a("s_cselect_b32 s12, s28, s30")
    a("s_cselect_b32 s13, s29, s31")
    a("s_mov_b32 s8, s24")
    a("s_mov_b32 s9, s25")
    for i in range(OPT.get("nakv", NA)):
        for it in chunk_items("k", i):
            for x in it: a(x)
    nstamp(a, "p1ld")
    a("v_lshrrev_b32 v2, 5, v0")
    a("v_and_b32 v13, 31, v0")
    a("v_bfe_u32 v4, v0, 2, 2")
    a("v_lshlrev_b32 v10, 3, v2")
    a("v_add_u32 v10, v10, v4")
    a("v_mul_u32_u24 v10, 56, v10")
    a("s_mul_i32 s51, s6, 28672")
    a(f"s_add_u32 s51, s51, {K1_W}")
    a("v_add_u32 v10, s51, v10")
    for q in range(4): a(f"v_mov_b32 v{132+q}, 0")
    a.label("P1_s2")
    a("v_bfe_u32 v3, v0, 4, 1")
    a("v_and_b32 v5, 3, v0")
    srd(a, 16, 94, 95, WS_SIZE)
    a("s_add_u32 s66, s94, s63")
    a("s_addc_u32 s67, s95, 0")
    a("s_getpc_b64 s[50:51]")
    a.label("KB_pc")
    a("s_lshr_b32 s52, s2, 3")
    a("s_lshl_b32 s52, s52, 2")
    a("s_add_u32 s52, s52, s3")
    a("s_lshl_b32 s52, s52, 13")
    a("v_lshlrev_b32 v12, 7, v0")
    a("v_add_u32 v12, s52, v12")
    a("v_min_u32 v12, KB_code_end-KB_pc-4, v12")
    a("global_load_dword v165, v12, s[50:51]")
    a("s_getreg_b32 s69, hwreg(HW_REG_XCC_ID, 0, 4)")
    a("s_or_b32 s69, s69, 16")
    a("v_lshl_add_u32 v10, v3, 5, v10")
    a("v_lshl_add_u32 v10, v5, 3, v10")
    a("v_bfe_u32 v14, v13, 1, 2")
    a("v_lshrrev_b32 v15, 2, v13")
    a("v_and_b32 v15, 4, v15")
    a("v_or_b32 v14, v14, v15")
    a("v_xor_b32 v14, v14, v2")
    a("v_lshrrev_b32 v15, 3, v13")
    a("v_mul_u32_u24 v15, 7168, v15")
    a("v_lshl_add_u32 v15, v7, 7, v15")
    a("s_mul_i32 s51, s7, 28672")
    a("v_add_u32 v15, s51, v15")
    for j in range(4):
        a(f"v_xor_b32 v12, {2*j}, v14")
        a(f"v_lshl_add_u32 v{24+j}, v12, 4, v15")
    a("v_bfe_u32 v14, v0, 3, 1")
    a("v_mul_u32_u24 v14, 7168, v14")
    a("v_lshl_add_u32 v14, v7, 7, v14")
    a("v_lshrrev_b32 v12, 4, v0")
    a("v_lshrrev_b32 v28, 1, v7")
    a("v_xor_b32 v12, v12, v28")
    a("v_lshl_add_u32 v14, v12, 4, v14")
    a("v_add_u32 v28, s45, v14")
    a("v_xor_b32 v29, 64, v28")
    a("v_xor_b32 v14, v0, v3")
    a("v_and_b32 v14, 1, v14")
    a(f"v_mov_b32 v12, {ONES_BF}")
    a("v_cmp_eq_u32 vcc, 0, v14")
    for i in range(4): a(f"v_mov_b32 v{ONE+i}, v12")
    for i in range(4): a(f"v_cndmask_b32 v{SEL+i}, 0, v12, vcc")
    a("s_movk_i32 s60, 896")
    a(f"s_mov_b32 s22, {W1_BYTES}")
    a("s_mov_b32 s23, 0x20000")
    a(f"s_mov_b32 s34, {W1S}")
    a(f"s_mov_b32 s35, {W1F}")
    a("s_movk_i32 s61, 256")
    a("s_movk_i32 s62, 2341")
    a("s_cmp_lt_u32 s2, 130")
    a("s_cselect_b32 s60, 3584, s60")
    a("s_cselect_b32 s61, s61, 256 + 784")
    a("s_cselect_b32 s62, s62, 586")
    a("s_cselect_b32 s53, 28, 112")
    a("s_cselect_b32 s57, 0, 1")
    a("s_cselect_b32 s20, s36, s40")
    a("s_cselect_b32 s21, s37, s41")
    a("s_cselect_b32 s34, s34, 112*1024")
    a(f"s_cselect_b32 s35, s35, {W2F}")
    a("s_cmp_lt_u32 s2, 228")
    a("s_cselect_b32 s61, s61, 256 + 1568")
    a("s_cselect_b32 s62, s62, 2048")
    a("s_cselect_b32 s53, s53, 32")
    a("s_cselect_b32 s57, s57, 2")
    a("s_cselect_b32 s20, s20, s32")
    a("s_cselect_b32 s21, s21, s33")
    a(f"s_cselect_b32 s22, s22, {WQ_BYTES}")
    a("s_cselect_b32 s34, s34, 32768")
    a(f"s_cselect_b32 s35, s35, {WOF}")
    a("s_cselect_b32 s51, 16, 14")
    a("s_lshl_b32 s59, s2, 2")
    a("s_add_u32 s59, s59, s3")
    a("s_lshl_b32 s59, s59, 1")
    a("s_sub_u32 s59, s59, s61")
    a("s_mul_i32 s58, s59, s62")
    a("s_lshr_b32 s58, s58, 16")
    a("s_mul_i32 s53, s53, s58")
    a("s_sub_u32 s59, s59, s53")
    a("s_mul_i32 s61, s59, s51")
    a("s_mul_i32 s61, s61, s60")
    a("s_lshl_b32 s64, s58, 7")
    a("s_add_u32 s61, s61, s64")
    a(f"v_mad_u32_u24 v{RLV}, v6, s60, v11")
    a("s_lshl_b32 s60, s60, 3")
    a("s_lshl_b32 s53, s59, 10")
    a("s_add_u32 s35, s35, s53")
    a("s_mul_i32 s53, s34, s58")
    a("s_lshl_b32 s53, s53, 1")
    a("s_add_u32 s35, s35, s53")
    a("s_lshl_b32 s65, s3, 12")
    a(f"s_add_u32 s65, s65, {K1_RL}")
    a("s_mov_b32 s36, s38")
    a("s_mov_b32 s37, s39")
    a("s_movk_i32 s38, 3584")
    a("s_mov_b32 s39, 0x20000")
    a(f"v_lshlrev_b32 v{RT0}, 2, v2")
    a(f"v_add_u32 v{RT0}, v{RT0}, v4")
    a(f"v_lshlrev_b32 v{RT0}, 7, v{RT0}")
    a("v_lshrrev_b32 v12, 1, v4")
    a(f"v_lshl_add_u32 v{RT0}, v12, 6, v{RT0}")
    a(f"v_lshl_add_u32 v{RT0}, v3, 5, v{RT0}")
    a(f"v_lshl_add_u32 v{RT0}, v5, 3, v{RT0}")
    a(f"v_add_u32 v{RT0}, s65, v{RT0}")
    a(f"v_xor_b32 v{RT1}, 64, v{RT0}")
    a(f"v_lshlrev_b32 v{BIA}, 1, v0")
    if OPT.get("tw2"):
        a("s_lshl_b32 s51, s3, 15")
        a(f"s_add_u32 s51, s51, {SYNC + 3072}")
        a("v_lshl_add_u32 v166, v7, 12, s51")
        a("s_add_u32 s51, s63, 3072")
        a("v_mov_b32 v12, s51")
        a("v_cmp_ne_u32 vcc, 0, v2")
        a("s_nop 1")
        a("v_cndmask_b32 v166, v166, v12, vcc")
    if OPT.get("qt", 0):
        a("s_lshl_b32 s51, s4, 5")
        a("s_lshl_b32 s52, s5, 2")
        a("s_add_u32 s51, s51, s52")
        a("s_add_u32 s51, s51, s3")
        a("s_lshl_b32 s51, s51, 11")
        a("v_and_b32 v168, 15, v0")
        a("v_lshl_add_u32 v168, v168, 7, s51")
    a(f"v_and_b32 v{CLO}, 1, v0")
    a(f"v_lshlrev_b32 v{CLO}, 7, v{CLO}")
    if OPT.get("it1", 1):
        for w in range(3):
            a(f"s_cmp_eq_u32 s3, {w}")
            a(f"s_cbranch_scc1 KA_CHAIN{w}")
        a("s_branch KA_CHAIN3")
        a.label("KA_tret")
    a("s_cmp_eq_u32 s5, 0")
    a("s_cbranch_scc0 P1_q")
    a("s_cmp_eq_u32 s6, 0")
    a("s_cbranch_scc1 P1_k")
    a("s_branch P1_v")

def p1_body(a, kind):
    a.L.append(".p2align 12")
    a.label("P1_" + kind)
    def reads(i):
        b = BUF + 32*(i & 1); L = []
        for k in range(4):
            wo = 8192*i + 2048*k if kind == "q" else 896*(4*i + k)
            L += [f"ds_read_b64_tr_b16 {vr(b+8*k,2)}, v10 offset:{wo}",
                  f"ds_read_b64_tr_b16 {vr(b+8*k+2,2)}, v10 offset:{wo + (512 if kind == 'q' else 224)}",
                  f"ds_read_b128 {vr(b+8*k+4,4)}, v{24+k} offset:{1024*i}"]
        L += [f"ds_read_b128 {vr(SB+4*hf,4)}, v{28+hf} offset:{1024*i}" for hf in range(2)]
        return L
    def mfmas(i):
        b = BUF + 32*(i & 1); L = []
        z = lambda r, n_, first: "0" if first else vr(r, n_)
        for k in range(4):
            W, X = vr(b+8*k,4), vr(b+8*k+4,4)
            f = i == 0 and k == 0
            if kind == "v":
                L += [mfma32(vr(ACC,16), X, W, z(ACC,16,f)), mfma16(vr(CS,4), vr(SEL,4), W, z(CS,4,f))]
            else:
                L += [mfma32(vr(ACC,16), W, X, z(ACC,16,f)), mfma16(vr(CS,4), W, vr(SEL,4), z(CS,4,f))]
        return L
    def smfmas(i):
        L = []
        for hf in range(2):
            f = i == 0 and hf == 0
            X = vr(SB+4*hf,4)
            L += [mfma16(vr(SS,4), X, vr(ONE,4), "0" if f else vr(SS,4)), mfma16(vr(SQ,4), X, X, "0" if f else vr(SQ,4))]
        return L
    rl = [[f"s_add_u32 m0, s65, {1024*j}", "s_add_u32 s61, s61, s60" if j else "s_nop 0", f"buffer_load_dwordx4 v{RLV}, s[20:23], s61 offen lds"] for j in range(4)]
    rl += [[f"buffer_load_ushort v{BIA}, v{BIA}, s[36:39], s64 offen"]]
    if kind != "q": rl = []
    RLI = OPT.get("rli", 3)
    NA = OPT.get("naq", 3) if kind == "q" else OPT.get("nakv", 3)
    ACI, ACL = OPT.get("aci", 0), OPT.get("acl", 6)
    vq = [f"c{i}" for i in range(NA) for _ in range(4)] + ["warm"]
    ack = []
    if kind == "q":
        a("s_and_b32 s51, s2, 1")
        a("s_lshl_b32 s51, s51, 7")
        a("s_bfe_u32 s52, s2, 0x20001")
        a("s_add_u32 s51, s51, s52")
        a("v_mov_b32 v166, s51")
        a("v_mov_b32 v167, 1")
        a("s_sub_u32 s51, s2, 224")
        a("s_lshl_b32 s52, s3, 3")
        a("s_or_b32 s51, s51, s52")
        a("s_cmp_lt_u32 s51, 8")
        a("s_cselect_b64 s[52:53], 1, 0")
        ack = [["s_mov_b64 exec, s[52:53]", f"global_store_byte v166, v167, s[92:93] offset:{D_CLR} sc0 sc1", "s_mov_b64 exec, -1"]]
    ackl = [[f"global_load_dword v{ACK}, v{CLO}, s[92:93] offset:{D_CLR} sc1"]]
    for i in range(8):
        fillers = []
        if i < 7:
            k = len(vq) - 1 - vq[::-1].index(f"c{i}")
            a(f"s_waitcnt vmcnt({len(vq) - 1 - k})")
            a("s_barrier")
            if i == 0: nstamp(a, "p1b0")
            nstamp(a, f"it{i}")
            fillers = [[x] for x in reads(i)]
        ld = chunk_items(kind, i + NA) if i + NA < 7 else []
        vq += [f"c{i + NA}"] * len(ld)
        if i == RLI:
            ld = ld + rl; vq += ["rl"] * len(rl)
        if i == ACL:
            ld = ld + ackl; vq += ["ack"]
            if OPT.get("tw2"):
                ld = ld + [["global_load_dword v167, v166, s[94:95] sc1"]]; vq += ["ack"]
        if i == OPT.get("qt", 0) > 0:
            ld = ld + [[f"global_load_dword v169, v168, s[94:95] offset:{QF} sc1"]]; vq += ["qt"]
        if i == ACI:
            ld = ld + ack
        if i == 0:
            for it in fillers + ld:
                for x in it: a(x)
            continue
        a("s_waitcnt lgkmcnt(0)")
        M = smfmas(i - 1) + mfmas(i - 1)
        rest = fillers[:12] + ld
        late = fillers[12:]
        for k, m in enumerate(M):
            a(m)
            if k >= 4 and late and k in (6, 8):
                for x in late.pop(0): a(x)
            take = -(-len(rest) // (len(M) - k))
            for _ in range(take):
                for x in rest.pop(0): a(x)
        assert not rest and not late
    nstamp(a, "p1lp")
    def done(nst):
        nstamp(a, "p1st")
        if kind != "q": a("s_branch P1_join")
    a("v_cmp_eq_u32 vcc, 1, v5")
    a("v_cmp_eq_u32 s[52:53], 2, v5")
    a("v_cmp_eq_u32 s[44:45], 3, v5")
    a("v_lshrrev_b32 v11, 4, v0")
    a("v_cmp_eq_u32 s[46:47], v11, v4")
    for r in (SS, SQ):
        a(f"v_cndmask_b32 v{r}, v{r}, v{r+1}, vcc")
        a(f"v_cndmask_b32 v{r}, v{r}, v{r+2}, s[52:53]")
        a(f"v_cndmask_b32 v{r}, v{r}, v{r+3}, s[44:45]")
    a(f"v_mul_f32 v20, {hexf(1.0/448)}, v{SS}")
    a(f"v_mul_f32 v22, {hexf(1.0/448)}, v{SQ}")
    a("v_fma_f32 v22, -v20, v20, v22")
    a("v_max_f32 v22, 0, v22")
    a(f"v_add_f32 v22, {hexf(1e-5)}, v22")
    a("v_rsq_f32 v22, v22")
    a("s_lshl_b32 s51, s3, 7")
    a(f"s_add_u32 s51, s51, {K1_ST}")
    a("v_and_b32 v11, 15, v0")
    a("v_lshl_add_u32 v11, v11, 3, s51")
    a("v_mul_f32 v23, -v20, v22")
    a("s_mov_b64 exec, s[46:47]")
    a("ds_write_b64 v11, v[22:23]")
    a("s_mov_b64 exec, -1")
    if kind != "v":
        a("s_lshl_b32 s51, s3, 7")
        a(f"s_add_u32 s51, s51, {K1_CS}")
        a("v_lshrrev_b32 v11, 4, v0")
        a("v_lshlrev_b32 v11, 4, v11")
        a("v_and_b32 v14, 15, v0")
        a("v_lshl_add_u32 v11, v14, 6, v11")
        a("v_add_u32 v11, s51, v11")
        a("v_lshl_add_u32 v14, v2, 4, s51")
        a("s_mov_b32 exec_lo, 0x00030003")
        a("s_mov_b32 exec_hi, 0x00030003")
        a(f"ds_write_b128 v11, {vr(CS,4)}")
        a("s_mov_b64 exec, -1")
        for i in range(4): a(f"ds_read_b128 {vr(32+4*i,4)}, v14 offset:{32*i}")
    else:
        a("v_cmp_ne_u32 vcc, 0, v3")
        a("s_nop 1")
        a(f"v_cndmask_b32 v{CS}, v{CS}, v{CS+1}, vcc")
    a("s_lshl_b32 s51, s7, 8")
    a(f"s_add_u32 s51, s51, {K1_ST}")
    a("s_waitcnt lgkmcnt(0)")
    a("s_barrier")
    nstamp(a, "p1e")
    if kind != "v":
        a("v_lshl_add_u32 v11, v13, 3, s51")
        a("ds_read_b64 v[20:21], v11")
        a("v_cmp_ne_u32 s[52:53], 0, v2")
        if kind == "q":
            a("s_lshl_b32 s51, s4, 3")
            a("s_lshl_b32 s50, s7, 2")
            a("s_add_u32 s51, s51, s50")
            a("s_lshl_b32 s51, s51, 13")
            if QF: a(f"s_add_u32 s51, s51, {QF}")
        a("s_waitcnt lgkmcnt(0)")
        if kind == "q":
            a(f"v_mul_f32 v20, {hexf(QSCALE)}, v20")
            a(f"v_mul_f32 v21, {hexf(QSCALE)}, v21")
        for q in range(4):
            for i in range(4*q, 4*q + 4):
                a(f"v_mul_f32 v{ACC+i}, v{ACC+i}, v20")
                a(f"v_fmac_f32 v{ACC+i}, v{32+i}, v21")
            for i in range(2): a(f"v_cvt_pk_bf16_f32 v{48+2*q+i}, v{ACC+4*q+2*i}, v{ACC+4*q+2*i+1}")
            if kind == "q": a(f"buffer_store_dwordx2 {vr(48+2*q,2)}, v{132+q}, s[16:19], s51 offen{SM('qm')}")
        if kind == "q":
            done(4)
            return
        a("v_cndmask_b32 v54, v54, 0, s[52:53]")
        a("v_cndmask_b32 v55, v55, 0, s[52:53]")
        a("v_mov_b32 v20, 0")
        a("v_mov_b32 v22, 0x3f80")
        for i in range(8): a(f"v_dot2c_f32_bf16 v20, v{48+i}, v{48+i}")
        a("v_cndmask_b32 v54, v54, v22, s[52:53]")
        a("s_lshl_b32 s51, s4, 1")
        a("s_add_u32 s51, s51, s7")
        a("s_lshl_b32 s50, s7, 2")
        a(f"s_add_u32 s50, s50, {K1_RP + 1088}")
        a("s_lshl_b32 s51, s51, 12")
        a(f"s_add_u32 s51, s51, {KV}")
        a(f"buffer_store_dwordx4 v[48:51], v{LN16}, s[16:19], s51 offen{SM('k1m')}")
        a(f"buffer_store_dwordx4 v[52:55], v{LN16}, s[16:19], s51 offen offset:1024{SM('k1m')}")
        half_sum(a, 20, 21)
        a("s_nop 1")
        for m in ("quad_perm:[1,0,3,2]", "quad_perm:[2,3,0,1]", "row_half_mirror", "row_mirror"):
            a(f"v_max_f32_dpp v20, v20, v20 {m} row_mask:0xf bank_mask:0xf")
            a("s_nop 1")
        a("v_mov_b32 v21, v20")
        a("s_nop 1")
        a("v_permlane16_swap_b32 v21, v20")
        a("s_nop 1")
        a("v_max_f32 v20, v20, v21")
        a("v_mov_b32 v17, s50")
        a("ds_write_b32 v17, v20")
        done(3)
        return
    a("v_lshl_add_u32 v11, v2, 5, s51")
    for i in range(8): a(f"ds_read_b128 {vr(32+4*i,4)}, v11 offset:{64*(i>>1) + 16*(i&1)}")
    a("v_cmp_eq_u32 s[52:53], 28, v13")
    a(f"v_mov_b32 v21, {ONES_BF}")
    a("v_cmp_lt_u32 s[44:45], 27, v13")
    a("v_cndmask_b32 v21, 0, v21, s[52:53]")
    a("s_lshl_b32 s51, s4, 1")
    a("s_add_u32 s51, s51, s7")
    a("s_lshl_b32 s51, s51, 12")
    a(f"s_add_u32 s51, s51, {KV}")
    a("s_waitcnt lgkmcnt(0)")
    for i in range(16):
        a(f"v_mul_f32 v{ACC+i}, v{ACC+i}, v{32+2*i}")
        a(f"v_fmac_f32 v{ACC+i}, v{33+2*i}, v{CS}")
    for i in range(8): a(f"v_cvt_pk_bf16_f32 v{64+i}, v{ACC+2*i}, v{ACC+2*i+1}")
    for i in range(8): a(f"v_cndmask_b32 v{64+i}, v{64+i}, v21, s[44:45]")
    a(f"buffer_store_dwordx4 v[64:67], v{LN16}, s[16:19], s51 offen offset:2048{SM('k1m')}")
    a(f"buffer_store_dwordx4 v[68:71], v{LN16}, s[16:19], s51 offen offset:3072{SM('k1m')}")
    done(2)

L_RED, L_XC, L_HN, L_ACT, L_W2 = 0, 49152, 0, 65536, 98304
KB_LDS = 163840
H_ST, H_T1 = 28672, 36864
SHIFT_LIMIT = 40.0
SPIN_LIMIT = 1 << 17
LN2F = math.log(2.0)

class Cnt:
    def __init__(self, name, cap): self.q = []; self.name = name; self.cap = cap
    def issue(self, tag):
        self.q.append(tag)
        assert self.name != "vmcnt" or len(self.q) <= self.cap, (self.name, tag, len(self.q))
    def wait(self, tag):
        if tag not in self.q: return None
        k = len(self.q) - 1 - self.q[::-1].index(tag)
        n = min(len(self.q) - 1 - k, self.cap)
        self.q = self.q[len(self.q)-n:] if n else []
        return f"s_waitcnt {self.name}({n})"
    def clear(self): self.q = []

def cost(t):
    mn = t.split()[0]
    if mn.startswith(("v_exp", "v_rcp", "v_rsq", "v_sqrt")): return 8
    if mn.startswith(("ds_write_b128", "global_store")): return 20
    if mn.startswith(("ds_", "global_", "buffer_")): return 12
    if mn.startswith(("v_cvt_pk", "v_fma_")): return 5
    return 4.3

def gen_kb(a, force_slow=False, force_fence=False):
    n = NAME + "_kernel"
    header(a, n)
    vm = Cnt("vmcnt", 63); lg = Cnt("lgkmcnt", 15)
    def V(text, tag="-"):
        if len(vm.q) >= 63:
            a("s_waitcnt vmcnt(48)"); vm.q = vm.q[-48:]
        a(text); vm.issue(tag)
    def D(text, tag="-"): a(text); lg.issue(tag)
    def WV(tag):
        w = vm.wait(tag)
        if w: a(w)
    def WL(tag):
        w = lg.wait(tag)
        if w: a(w)
    def add64(d, s, off):
        a(f"s_add_u32 s{d}, s{s}, {off}")
        a(f"s_addc_u32 s{d+1}, s{s+1}, 0")
    m0now = [None, False]
    def emit_item(it):
        if it[0] == "s" and " m0," in it[1]:
            m0now[1] = it[1] == m0now[0]
            if m0now[1]: return
            m0now[0] = it[1]
        elif it[0] == "s" and it[1] == "s_nop 0" and m0now[1]:
            m0now[1] = False
            return
        if it[0] == "s": a(it[1])
        elif it[0] == "v": V(it[1], it[2])
        elif it[0] == "d": D(it[1], it[2])
        elif it[0] == "wv": WV(it[1])
        elif it[0] == "wl": WL(it[1])
        elif it[0] == "l": a.label(it[1])
    XR, Q, KVR, S, P, WOV = 16, 32, 64, 96, 128, 144
    WS = " sc1" if OPT.get("wsc", 0) else ""
    p1_head(a)
    p1_body(a, "q")
    a.label("P1_join")
    nstamp(a, "p1j")
    a("v_cmp_ne_u32 s[64:65], 0, v2")
    for d_, s_ in ((8, 94), (9, 95), (10, 24), (11, 25), (12, 42), (13, 43)): a(f"s_mov_b32 s{d_}, s{s_}")
    a("s_lshl_b32 s53, s5, 2")
    a("s_add_u32 s53, s53, s3")
    a("v_mov_b32 v16, s53")
    a("v_mov_b32 v17, s69")
    a("s_mul_i32 s69, s69, 0x01010101")
    a("v_and_b32 v30, 7, v0")
    a("v_lshlrev_b32 v30, 2, v30")
    a("s_mov_b32 s88, s35")
    a("s_add_u32 s89, s35, s34")
    a("s_cmp_eq_u32 s57, 2")
    a("s_cselect_b64 s[52:53], s[64:65], 0")
    a("v_lshlrev_b32 v8, 2, v0")
    a("v_cndmask_b32 v143, -1, 0, s[52:53]")
    a("s_add_u32 s62, s59, 2")
    a("s_lshr_b32 s62, s62, 3")
    a(f"s_mul_i32 s71, s58, {2*W1S}")
    a("s_lshr_b32 s54, s62, 1")
    a("s_lshl_b32 s54, s54, 9")
    a("s_add_u32 s71, s71, s54")
    a(f"s_add_u32 s71, s71, {W1F + 28*1024}")
    a("s_lshl_b32 s54, s3, 5")
    a("s_add_u32 s54, s54, s59")
    a("s_cmp_eq_u32 s54, 32 + 26")
    a("s_cselect_b32 s91, 0, -1")
    a("s_cmp_eq_u32 s54, 96 + 2")
    a("s_cselect_b32 s90, 0, -1")
    a("s_cselect_b32 s54, 1, s3")
    a("s_lshl_b32 s53, s57, 2")
    a("s_or_b32 s54, s54, s53")
    a("s_cmp_eq_u32 s54, 1")
    a("s_cselect_b32 s62, s62, 4")
    a("s_cmp_eq_u32 s5, 0")
    a("s_cselect_b32 s62, 4, s62")
    a(f"s_cselect_b32 s26, 0, {WS_SIZE}")
    a("s_mov_b32 s24, s94")
    a("s_mov_b32 s25, s95")
    a("s_mov_b32 s27, 0x20000")
    a("s_mov_b32 s70, s57")
    a("s_cbranch_scc0 P1_qf")
    a(f"v_mov_b32 v19, {K1_RP + 1088}")
    a("v_lshlrev_b32 v21, 7, v0")
    a("v_mov_b32 v20, 1")
    a("s_cmp_eq_u32 s3, 0")
    a("s_cselect_b32 s46, 0xff, 0")
    a("s_mov_b32 s47, 0")
    a("s_waitcnt lgkmcnt(0)")
    a("s_barrier")
    a("ds_read_b64 v[18:19], v19")
    a("s_mov_b32 s68, 0")
    a("s_waitcnt vmcnt(2)")
    a.label("P1_kvf_ack")
    a(f"v_cmp_ne_u32 vcc, 0x01010101, v{ACK}")
    a("s_cbranch_vccz P1_kvf_go")
    a(f"global_load_dword v{ACK}, v{CLO}, s[92:93] offset:{D_CLR} sc1")
    a("s_add_u32 s68, s68, 1")
    a(f"s_cmp_lt_u32 s68, {SPIN_LIMIT}")
    a("s_waitcnt vmcnt(0)")
    a("s_cbranch_scc1 P1_kvf_ack")
    a.label("P1_kvf_go")
    a("s_mov_b64 exec, 1")
    a(f"global_store_byte v16, v17, s[66:67] offset:{F_L}")
    a("s_mov_b64 exec, -1")
    nstamp(a, "p1w")
    a("s_waitcnt vmcnt(0) lgkmcnt(0)")
    a("s_barrier")
    a("s_mov_b64 exec, s[46:47]")
    a(f"global_store_dwordx3 v21, v[18:20], s[66:67] offset:{F_R} sc0 sc1")
    a("s_mov_b64 exec, -1")
    a("s_branch P1_lf_done")
    a.label("P1_qf")
    nstamp(a, "p1w")
    a("s_waitcnt vmcnt(0)")
    a(f"v_cmp_ne_u32 vcc, 0x01010101, v{ACK}")
    a("s_cbranch_vccnz P1_ack")
    a.label("P1_ack_done")
    a("s_mov_b64 exec, 1")
    a(f"global_store_byte v16, v17, s[66:67] offset:{F_L}")
    a("s_mov_b64 exec, -1")
    a.label("P1_lf_done")
    nstamp(a, "p1fl")
    pollL = f"global_load_dword v29, v30, s[66:67] offset:{F_L} sc1"
    a(pollL)
    a("s_lshr_b32 s7, s2, 3")
    a("s_lshl_b32 s6, s4, 3")
    a("s_add_u32 s6, s6, s5")
    a("v_lshlrev_b32 v1, 4, v0")
    a("s_lshl_b32 s54, s6, 13")
    if QF: a(f"s_add_u32 s54, s54, {QF}")
    for t in range(4):
        a(f"s_add_u32 s{58+t}, s3, {t+1}")
        a(f"s_and_b32 s{58+t}, s{58+t}, 3")
        a(f"s_lshl_b32 s{58+t}, s{58+t}, 11")
        a(f"s_add_u32 s{58+t}, s{58+t}, s54")
    a("s_lshl_b32 s54, s3, 15")
    a("s_and_b32 s53, s2, 7")
    a("s_lshl_b32 s53, s53, 7")
    a("s_add_u32 s54, s54, s53")
    a(f"s_add_u32 s54, s54, {SYNC + F_R}")
    a("v_lshl_add_u32 v31, v7, 12, s54")
    a("s_lshl_b32 s52, s3, 16")
    a(f"s_add_u32 s52, s52, {KV + 4096}")
    NKP = 3
    S0, S1, S8 = KVR, KVR + 16, WOV + 96
    KVA = OPT.get('kva', 26)
    kvs = [S0, S1, S8] + [256 + 64 + 16*k for k in range(10)] + [S0, S1, S8]
    kvr = lambda i, part: vr(kvs[i] + 4*part, 4) if kvs[i] < 256 else ar(kvs[i] - 256 + 4*part, 4)
    def kvld(i, part):
        b = 32 + 2*(i >> 1)
        return f"global_load_dwordx4 {kvr(i, part)}, v1, s[{b}:{b+1}] offset:{4096*(i&1) - 4096 + 1024*part}{' sc1' if i < 2 else ''}"
    def kvbase(p):
        a(f"s_add_u32 s53, s5, {p}")
        a("s_and_b32 s53, s53, 7")
        a("s_lshl_b32 s53, s53, 13")
        a("s_add_u32 s53, s53, s52")
        add64(32+2*p, 8, "s53")
    NPRO = OPT.get('npro', 2)
    VOFF = (1, 7, 9, 8)
    def woreg(f):
        return vr(WOV+4*f, 4) if f < 24 else ar(224+4*(f-24), 4)
    def wo_item(f):
        b = 48 if f < 16 else 50
        return [("v", f"global_load_dwordx4 {woreg(f)}, v{VOFF[(f%16)//8]}, s[{b}:{b+1}] offset:{1024*(f%8) - 4096}{WS}", f"wo{f}")]
    def w1reg(i):
        return ar(64+4*i, 4) if i < 40 else ar(4*(i-40), 4)
    def w1_item(i):
        b, ks = (96, i) if i < 28 else (98, i - 28)
        return [("v", f"global_load_dwordx4 {w1reg(i)}, v{VOFF[ks//8]}, s[{b}:{b+1}] offset:{1024*(ks%8) - 4096}{WS}", f"w1_{i}")]
    def setup_b():
        for p in range(8): kvbase(p)
        a("s_and_b32 s14, s3, 1")
        a("s_lshr_b32 s15, s3, 1")
        a("s_min_u32 s28, s5, 6")
        a("s_lshl_b32 s53, s28, 16")
        a("s_lshl_b32 s54, s14, 14")
        a("s_add_u32 s53, s53, s54")
        a(f"s_add_u32 s53, s53, {WOF + 4096}")
        a("s_lshl_b32 s54, s14, 15")
        a("s_add_u32 s55, s53, s54")
        add64(50, 8, "s55")
        a("s_xor_b32 s54, s54, 0x8000")
        a("s_add_u32 s55, s53, s54")
        add64(48, 8, "s55")
        a("s_lshl_b32 s53, s28, 3")
        a("s_add_u32 s53, s53, s3")
        a(f"s_mul_i32 s53, s53, {W1S}")
        a(f"s_add_u32 s53, s53, {W1F + 4096}")
        add64(96, 8, "s53")
        add64(98, 96, 4*W1S)
        a("v_and_b32 v5, 31, v0")
    RB, CP = WOV, WOV + 16
    WSL = 1
    wflag = [("s", "s_mov_b64 exec, 1"), ("v", f"global_store_byte v16, v17, s[66:67] offset:{F_W} sc0 sc1", "wfl"), ("s", "s_mov_b64 exec, -1")]
    PL, PA, PB = S, S + 4, S + 8
    pollA = f"global_load_dwordx3 {vr(PA,3)}, v31, s[8:9] sc1"
    pollB = f"global_load_dwordx3 {vr(PB,3)}, v31, s[8:9] sc1"
    xr = [("v", f"global_load_dwordx4 {vr(XR+4*i,4)}, v3, s[100:101] offset:{32*i}", "xr") for i in range(2)]
    def setup_c():
        a("v_lshrrev_b32 v6, 2, v5")
        a("v_mul_u32_u24 v3, 7168, v6")
        a("v_and_b32 v6, 3, v0")
        a("v_mul_u32_u24 v11, 896, v6")
        a("v_add_u32 v3, v3, v11")
        a("v_lshl_add_u32 v3, v2, 4, v3")
        a("s_lshl_b32 s53, s4, 4")
        a("s_add_u32 s53, s53, s15")
        a("s_mul_i32 s53, s53, 3584")
        a("s_lshl_b32 s54, s28, 7")
        a("s_add_u32 s53, s53, s54")
        a("s_lshl_b32 s54, s14, 6")
        a("s_add_u32 s53, s53, s54")
        add64(100, 10, "s53")
        a("v_add_u32 v7, 8192, v1")
        a("v_add_u32 v9, 16384, v1")
        for t in range(3):
            a(f"s_add_u32 s53, s3, {t+1}")
            a("s_and_b32 s53, s53, 3")
            a("s_mul_i32 s53, s53, 12288")
            a(f"s_add_u32 s53, s53, {L_RED + 4096*t}")
            a(f"v_add_u32 v{13+t}, s53, v1")
        a("v_lshrrev_b32 v11, 3, v5")
        a("v_lshlrev_b32 v24, 11, v11")
        a("v_bfe_u32 v11, v5, 2, 1")
        a("v_lshl_add_u32 v24, v11, 15, v24")
        a("v_lshl_add_u32 v24, v2, 9, v24")
        a("v_lshl_add_u32 v24, v6, 4, v24")
        a("v_and_b32 v11, 1, v0")
        a("v_lshl_add_u32 v25, v11, 10, v24")
        a("s_lshl_b32 s29, s4, 16")
        a("s_lshl_b32 s53, s3, 13")
        a("s_lshl_b32 s54, s5, 6")
        a("s_add_u32 s53, s53, s54")
        a("s_add_u32 s53, s53, s29")
        a(f"s_add_u32 s53, s53, {OF}")
        add64(20, 8, "s53")
        a("s_lshl_b32 s53, s15, 15")
        a("s_lshl_b32 s54, s14, 14")
        a("s_add_u32 s53, s53, s54")
        a("s_add_u32 s53, s53, s29")
        a(f"s_add_u32 s53, s53, {OF + 4096}")
        add64(22, 8, "s53")
        a(f"s_add_u32 s53, s29, {HF}")
        add64(54, 8, "s53")
        a("s_lshl_b32 s53, s28, 1")
        a("s_add_u32 s53, s53, s14")
        a(f"s_mul_i32 s30, s15, {H_T1}")
        a("s_lshl_b32 s31, s53, 11")
        a("s_add_u32 s30, s30, s31")
        a("s_lshl_b32 s31, s15, 12")
        a("s_lshl_b32 s53, s53, 8")
        a("s_add_u32 s31, s31, s53")
        a(f"s_add_u32 s31, s31, {H_ST}")
        a("v_add_u32 v26, s30, v1")
        a("v_lshl_add_u32 v27, v5, 3, s31")
        a("v_and_b32 v11, 15, v0")
        a("v_lshl_add_u32 v12, v11, 7, s30")
        a("v_and_b32 v11, 1, v0")
        a("v_lshl_add_u32 v11, v11, 7, s31")
        a("v_cmp_gt_u32 vcc, 16, v0")
        a("s_lshl_b32 s53, s7, 2")
        a("s_add_u32 s53, s53, s3")
        a("v_cndmask_b32 v12, v11, v12, vcc")
        a("s_min_u32 s63, s53, 55")
        a("s_lshl_b32 s63, s63, 13")
        a(f"s_add_u32 s63, s63, {WOF}")
        a("v_lshl_add_u32 v21, v0, 7, s63")
        a("s_mul_i32 s53, s53, 13056")
        a(f"s_add_u32 s53, s53, {W1F + 4096}")
        add64(56, 8, "s53")
        a("v_lshrrev_b32 v10, 2, v0")
        a("v_lshlrev_b32 v10, 7, v10")
        a(f"v_lshl_add_u32 v10, v6, {OPT.get('w1s', 2)}, v10")
        a("v_add_u32 v11, 8192, v10")
        a("v_lshrrev_b32 v20, 1, v0")
        a("v_lshlrev_b32 v20, 12, v20")
        a("v_and_b32 v22, 16, v1")
        a("v_add_u32 v20, v22, v20")
        a(f"v_add_u32 v20, {SYNC + F_W}, v20")
        a(f"v_mov_b32 v19, {K1_RP + 1024}")
    setup_b()
    a("s_mov_b32 s68, 0")
    if force_fence: a("s_branch P1_far")
    a.label("P1_l")
    a("s_waitcnt vmcnt(0)")
    nstamp(a, "p1l1")
    a("v_cmp_ne_u32 vcc, s69, v29")
    a("s_cbranch_vccz P1_l_done")
    a(pollL)
    a("s_add_u32 s68, s68, 1")
    a(f"s_cmp_lt_u32 s68, {OPT.get('lrounds', 48)}")
    a("s_cbranch_scc1 P1_l")
    a("s_branch P1_far")
    a.label("P1_l_done")
    nstamp(a, "p1ll")
    if STAMPS and "cntl" in STAMP_SET: a(f"s_mov_b32 s{72 + 2*(1 + STAMP_SET.index('cntl'))}, s68")
    for t in range(4):
        V(f"buffer_load_dwordx4 {vr(Q+8*t,4)}, v1, s[16:19], s{58+t} offen sc1", f"q{t}")
        V(f"buffer_load_dwordx4 {vr(Q+8*t+4,4)}, v1, s[16:19], s{58+t} offen offset:1024 sc1", f"q{t}")
    body, a.L = a.L, []
    for p in range(2):
        for t in range(2):
            b = RB + 8*p + 4*t
            a(f"ds_read_b64_tr_b16 {vr(b,2)}, v{RT0+t} offset:{2048*p}")
            a(f"ds_read_b64_tr_b16 {vr(b+2,2)}, v{RT0+t} offset:{2048*p + 1024}")
    a("s_lshl_b32 s53, s3, 2")
    a(f"s_add_u32 s53, s53, {K1_RP + 1024}")
    a("v_mov_b32 v28, s53")
    setup_c()
    fillc, a.L = a.L, body
    NC0, NC1 = OPT.get('nc0', 60), OPT.get('nc1', 40)
    NC1 = min(NC1, len(fillc) - NC0)
    iv = [k for k, x in enumerate(fillc) if "vcc" in x]
    while NC0 + NC1 < len(fillc) and ("s_addc" in fillc[NC0 + NC1] or iv[0] < NC0 + NC1 <= iv[1]): NC1 += 1
    assert NC0 + NC1 >= 11
    a.L += fillc[:NC0]
    nstamp(a, "p1pa")
    V(pollA, "pa")
    a.L += fillc[NC0:NC0 + NC1]
    a("s_mov_b32 s68, 0")
    a.label("P1_poll")
    a(pollB)
    a("s_add_u32 s68, s68, 1")
    a("s_waitcnt vmcnt(1)")
    nstamp(a, "p1p1")
    a(f"v_cmp_ne_u32 vcc, 1, v{PA+2}")
    a(f"v_max_f32 v4, v{PA}, v{PA+1}")
    a("s_cbranch_vccz P1_poll_done")
    a(pollA)
    a("s_waitcnt vmcnt(1)")
    a(f"v_cmp_ne_u32 vcc, 1, v{PB+2}")
    a(f"v_max_f32 v4, v{PB}, v{PB+1}")
    a("s_cbranch_vccz P1_poll_done")
    a(f"s_cmp_lt_u32 s68, {SPIN_LIMIT}")
    a("s_cbranch_scc1 P1_poll")
    a.label("P1_poll_done")
    vm.clear(); vm.issue("older")
    nstamp(a, "p1pl")
    if STAMPS and "cntp" in STAMP_SET: a(f"s_mov_b32 s{72 + 2*(1 + STAMP_SET.index('cntp'))}, s68")
    for i in range(NPRO):
        for part in range(4): V(kvld(i, part), f"{'KV'[part>>1]}{i}")
    for m_ in ("quad_perm:[1,0,3,2]", "quad_perm:[2,3,0,1]", "row_half_mirror"):
        a("s_nop 1")
        a(f"v_max_f32_dpp v4, v4, v4 {m_} row_mask:0xf bank_mask:0xf")
    a("s_waitcnt lgkmcnt(0)")
    a("ds_write_b32 v28, v4")
    for r in (10, 11, 14, 15): a(f"v_and_b32 v{RB+r}, v143, v{RB+r}")
    V(f"buffer_store_dwordx4 {vr(RB,4)}, v1, s[24:27], s88 offen sc1", "wst")
    V(f"buffer_store_dwordx4 {vr(RB+4,4)}, v1, s[24:27], s89 offen sc1", "wst")
    V(f"buffer_store_dwordx4 {vr(RB+8,4)}, v1, s[24:27], s88 offen offset:1024 sc1", "wst")
    V(f"buffer_store_dwordx4 {vr(RB+12,4)}, v1, s[24:27], s89 offen offset:1024 sc1", "wst")
    srd(a, 24, 12, 13, X_BYTES)
    a("s_cmp_eq_u32 s70, 0")
    a("s_cbranch_scc0 P1_wb_done")
    a(f"s_mov_b32 s88, {ONES_BF}")
    for i in range(4): a(f"v_mov_b32 v{CP+i}, 0")
    a("s_lshl_b32 s89, s3, 8")
    a(f"s_add_u32 s89, s89, {K1_RP}")
    a("v_add_u32 v29, s89, v8")
    for hf in range(2):
        for i in range(8): a(f"v_dot2c_f32_bf16 v{CP + 2*(i>>2) + (i&1)}, s88, v{RB+8*hf+i}")
    a("s_nop 2")
    a(f"v_add_f32 v{CP}, v{CP}, v{CP+1}")
    a(f"v_add_f32 v{CP+2}, v{CP+2}, v{CP+3}")
    a(f"v_mov_b32 v{CP+1}, v{CP}")
    a(f"v_mov_b32 v{CP+3}, v{CP+2}")
    a("s_nop 0")
    a(f"v_permlane32_swap_b32 v{CP+1}, v{CP}")
    a(f"v_permlane32_swap_b32 v{CP+3}, v{CP+2}")
    a("s_nop 0")
    a(f"v_add_f32 v{CP}, v{CP}, v{CP+1}")
    a(f"v_add_f32 v{CP+2}, v{CP+2}, v{CP+3}")
    a(f"v_cndmask_b32 v{CP}, v{CP}, v{CP+2}, s[64:65]")
    a(f"ds_write_b32 v29, v{CP}")
    a.label("P1_wb_done")
    nstamp(a, "p1ws")
    a.L += fillc[NC0 + NC1:]
    B0 = S + 16
    for t in range(4): a(f"v_mov_b32 v{B0+t}, 0")
    for t in range(4):
        for i in (6, 7): a(f"v_cndmask_b32 v{Q+8*t+i}, v{Q+8*t+i}, 0, s[64:65]")
    for i in range(8):
        for t in range(4): a(f"v_dot2c_f32_bf16 v{B0+t}, v{Q+8*t+i}, v{Q+8*t+i}")
    a("s_waitcnt lgkmcnt(0)")
    a("s_barrier")
    a(f"ds_read_b128 {vr(PL,4)}, v19")
    for t in range(4): a(f"v_mov_b32 v{B0+4+t}, v{B0+t}")
    a("s_nop 0")
    for t in range(4): a(f"v_permlane32_swap_b32 v{B0+4+t}, v{B0+t}")
    a("s_nop 0")
    for t in range(4): a(f"v_add_f32 v{B0+t}, v{B0+t}, v{B0+4+t}")
    nstamp(a, "p1qn")
    a("s_cmp_lt_u32 s62, 4")
    a("s_cbranch_scc1 P1_aug")
    a.label("P1_aug_done")
    late = [("v", f"global_load_dword v29, v30, s[66:67] offset:{F_W} sc1", "xcc"),
            ("v", "global_load_dword v4, v25, s[20:21] sc1", "late"),
            ("v", "global_load_dword v4, v12, s[54:55] sc1", "late")]
    warm = [("v", f"global_load_dword v31, v21, s[8:9]{WS}", "warm")]
    warm += [("v", f"global_load_dword v4, v{10 + (k >> 2)}, s[56:57] offset:{2048*(k & 3) - 4096}{WS}", "warm")
             for k in range(7)][:OPT.get('nwarm', 7)]
    wpoll = "global_load_dwordx4 v[16:19], v20, s[8:9] sc1"
    wtest = ["v_and_b32 v16, v16, v17", "v_and_b32 v18, v18, v19", "v_and_b32 v16, v16, v18", "v_and_b32 v16, 0x10101010, v16", "v_cmp_ne_u32 vcc, 0x10101010, v16"]
    nstamp(a, "pro")
    a("s_waitcnt lgkmcnt(0)")
    a(f"v_max3_f32 v4, v{PL}, v{PL+1}, v{PL+2}")
    a(f"v_max_f32 v4, v4, v{PL+3}")
    a(f"v_mul_f32 v4, {hexf(1.02)}, v4")
    for t in range(4): a(f"v_mul_f32 v{B0+t}, v{B0+t}, v4")
    for t in range(4): a(f"v_sqrt_f32 v{B0+t}, v{B0+t}")
    a("s_nop 0")
    a(f"v_max3_f32 v8, v{B0}, v{B0+1}, v{B0+2}")
    a(f"v_max_f32 v8, v8, v{B0+3}")
    lim = -1.0 if force_slow else SHIFT_LIMIT
    a(f"v_cmp_nge_f32 vcc, {hexf(lim)}, v8")
    a("v_add_u32 v8, 24576, v1")
    a("s_cbranch_vccnz KB_slow")
    vm_at_slow = list(vm.q)
    for t in range(4): a(f"v_cvt_pk_bf16_f32 v{B0+t}, -v{B0+t}, 0")
    for t in range(4): a(f"v_cndmask_b32 v{Q+8*t+6}, v{Q+8*t+6}, v{B0+t}, s[64:65]")
    WV("K0")
    a(mfma32(vr(S,16), vr(KVR,4), vr(Q,4), "0"))
    a(mfma32(vr(S,16), vr(KVR+4,4), vr(Q+4,4), vr(S,16)))
    a("s_nop 7")
    a("s_nop 3")
    nstamp(a, "loop")
    slots = {}
    def put(u, k, it):
        while (u, k) in slots: u, k = (u, k + 1) if k < 3 else (u + 1, 0)
        slots[(u, k)] = it if isinstance(it, list) else [it]
        return u, k
    for i in range(16):
        if i <= 14: slots[(4*i+2, 3)] = [("wv", f"K{i+1}")]
        slots[(4*i+1, 1)] = [("wv", f"V{i}")]
    pos = (0, 0)
    for i in range(NPRO, NKP):
        for part in range(4):
            pos = put(pos[0], pos[1], ("v", kvld(i, part), f"{'KV'[part>>1]}{i}"))
            if pos[1] == 2: pos = (pos[0] + 1, 0)
    if KVA:
        if WSL: slots[(OPT.get('wfu', 7), 0)] = [("wv", "K2")] + wflag
        fr = [(u, k) for u in range(2, KVA) for k in range(4) if (u, k) not in slots]
        its = [("v", kvld(i, part), f"{'KV'[part>>1]}{i}") for i in range(NKP, 16) for part in range(4)]
        for q, it in enumerate(its):
            sl = fr[q*len(fr)//len(its)]
            assert sl[0] < 4*(NKP + q//4) - 6 or q < 4, (q, sl)
            slots[sl] = [it]
    for q, it in enumerate(xr): put(OPT.get('x0', 58), 0, it)
    WP0, WP1 = OPT.get('wp0', 23 if WSL else 9), OPT.get('wp1', 26 if WSL else 12)
    if WSL and not KVA: put(7, 0, wflag)
    put(WP0, 0, ("v", wpoll, "wp"))
    pos = put(WP1, 0, [("wv", "wp")] + [("s", x) for x in wtest] + [("s", "s_cbranch_vccnz KB_wspin"), ("l", "KB_wspin_done")])
    assert pos[0] == WP1
    for q, it in enumerate(warm): put(OPT.get('e0', WP1 + 1) + q*OPT.get('de', 3), 2, it)
    if OPT.get('pta', 0):
        for q in range(3 - OPT.get('npl', 0), 3):
            put(OPT['pta'] + q*OPT.get('ptd', 3), 1, [("s", "s_mov_b64 exec, 0xffff"), ("v", f"global_load_dword v4, v23, s[8:9] offset:{256*q} sc1", "late"), ("s", "s_mov_b64 exec, -1")])
    NW1A = OPT.get('nw1a', 28)
    pref = [wo_item(f) for f in range(32)] + [w1_item(i) for i in range(NW1A)]
    free = [(u, k) for u in range(OPT.get('wo0', WP1 + 2), 57) for k in range(4) if (u, k) not in slots]
    for q, it in enumerate(pref):
        sl = free[q*len(free)//len(pref)]
        assert not KVA or q < 32 or sl[0] >= 4*(3 + (q - 32)//4) + 5, (q, sl)
        slots[sl] = it
    lf = [(u, k) for u in range(57, 62) for k in range(4) if (u, k) not in slots]
    for q, it in enumerate(late): slots[lf[2*q]] = [it]
    slots[lf[1]] = [("s", f"s_load_dword s{88+i}, s[66:67], {o} glc") for i, o in enumerate((F_O, F_H, F_P1))]
    def redw(t, q): return ("d", f"ds_write_b128 v{13+t}, {ar(16*t+4*q,4)} offset:{1024*q}", "red")
    for q, sl in enumerate([(62,1), (62,2), (62,3), (63,2)]): slots.setdefault(sl, []).append(redw(0, q))
    tail63 = [redw(1, q) for q in range(4)]
    slots.setdefault((63,3), []).append(tail63[0])
    for u in range(64):
        sb, pb = S + 16*(u & 1), P + 8*(u & 1)
        sn, pp = S + 16*((u+1) & 1), P + 8*((u-1) & 1)
        un, up = u + 1, u - 1
        kt = min(un >> 2, 15); qn = Q + 8*(un & 3)
        vt = max(up >> 2, 0); oa = ar(16*(up & 3), 16)
        M = [mfma32(vr(sn,16), kvr(kt, 0), vr(qn,4), "0"),
             mfma32(vr(sn,16), kvr(kt, 1), vr(qn+4,4), vr(sn,16)),
             mfma32(oa, kvr(vt, 2), vr(pp,4), "0" if up < 4 else oa),
             mfma32(oa, kvr(vt, 3), vr(pp+4,4), oa)]
        e = lambda k: f"v_exp_f32 v{sb+k}, v{sb+k}"
        c = lambda k: f"v_cvt_pk_bf16_f32 v{pb+k}, v{sb+2*k}, v{sb+2*k+1}"
        groups = [[e(0), e(1), e(2), e(3), c(0)], [e(4), c(1), e(5), e(6), e(7), c(2)],
                  [e(8), c(3), e(9), e(10), e(11), c(4)], [e(12), c(5), e(13), e(14), e(15), c(6), c(7)]]
        nstamp(a, f"u{u}")
        for k in range(4):
            on = not ((u == 63 and k < 2) or (u == 0 and k >= 2))
            if OPT.get("m16a"):
                h = split16(M[k], (k & 1, k < 2 or up < 4))
                if on: a(h[0])
                for it in slots.get((u, k), []): emit_item(it)
                for x in groups[k][:2]: a(x)
                if on: a(h[1])
                for x in groups[k][2:]: a(x)
                continue
            if on: a(M[k])
            for it in slots.get((u, k), []): emit_item(it)
            for x in groups[k]: a(x)
    emit_item(tail63[1])
    a(mfma32(ar(48,16), vr(kvs[15]+8,4), vr(P+8,4), ar(48,16)))
    emit_item(tail63[2])
    a(mfma32(ar(48,16), vr(kvs[15]+12,4), vr(P+12,4), ar(48,16)))
    emit_item(tail63[3])
    for q in range(4): emit_item(redw(2, q))
    a.label("KB_red")
    nstamp(a, "red")
    AUG, BAUG, RS = 32, 40, 16
    def w2base(u): return 32 + 2*u
    NST = OPT.get('nst', 16)
    def w2reg(q):
        if q < 8: return ar(224+4*q, 4)
        if q < 8 + NST: return w1reg(28 - NST + q - 8)
        j = q - 8 - NST
        return w1reg(28 + j) if j < 28 else w1reg(j - 28)
    def w2_item(q):
        u, ks = divmod(q, 16)
        b = w2base(u)
        return [("v", f"global_load_dwordx4 {w2reg(q)}, v{VOFF[ks//8]}, s[{b}:{b+1}] offset:{1024*(ks%8) - 4096}{WS}", f"w2_{q}")]
    def st_item(i):
        it = [("s", f"s_add_u32 m0, s60, {4096*(i//4)}")]
        d = {4: 4096, 8: 112*1024 - 12288, 12: 4096}.get(i)
        if d: it += [("s", f"s_add_u32 s70, s70, {d}"), ("s", "s_addc_u32 s71, s71, 0")]
        else: it += [("s", "s_nop 0")]
        return it + [("v", f"global_load_lds_dwordx4 v1, s[70:71] offset:{1024*(i%4)}{WS}", f"st{i}")]
    aug_items = [[("v", f"global_load_dwordx4 {vr(AUG+4*k,4)}, v8, s[{96+2*k}:{97+2*k}] sc1", f"aug{k}")] for k in range(2)]
    early = [w1_item(i) for i in range(NW1A, 56)] + [st_item(i) for i in range(NST)]
    after = aug_items + [w2_item(q) for q in range(8)]
    def bulk(n, allow_after=False):
        out = []
        for _ in range(n):
            src = after if allow_after and after and not any(x[-1][2].startswith("w1_") for x in early) else early
            if not src: src = after if allow_after else []
            if src: out += src.pop(0)
        return out
    def nve(items): return sum(1 for x in items if x[0] == "v")
    fences = []
    def signal(off, lab, items):
        m0now[0] = None
        for it in items: emit_item(it)
        k = nve(items)
        a(f"s_waitcnt vmcnt({k})"); vm.q = vm.q[len(vm.q)-k:] if k else []
        a("s_cmp_eq_u32 s68, 0")
        a(f"s_cbranch_scc1 {lab}_fence")
        a("s_mov_b64 exec, 1")
        V(f"global_store_byte v10, v11, s[66:67] offset:{off}", "sig")
        a("s_mov_b64 exec, -1")
        a.label(f"{lab}_done")
        fences.append(("sig", off, lab, []))
    def poll(off, lab, items):
        a("s_mov_b32 s52, 0")
        a("s_cmp_eq_u32 s68, 0")
        a(f"s_cbranch_scc1 {lab}_fence")
        m0now[0] = None
        if items:
            V(f"global_load_dword v31, v30, s[66:67] offset:{off} sc1", "poll")
            for it in items: emit_item(it)
            if off == F_O and OPT.get("it", 1):
                for w in range(3):
                    a(f"s_cmp_eq_u32 s3, {w}")
                    a(f"s_cbranch_scc1 KB_CHAIN{w}")
                a("s_branch KB_CHAIN3")
                a.label("KB_tret")
            WV("poll")
            a("v_cmp_ne_u32 vcc, 0x01010101, v31")
            a(f"s_cbranch_vccz {lab}_done")
        else: vm.clear()
        a.label(f"{lab}_loop")
        a(f"global_load_dword v31, v30, s[66:67] offset:{off} sc1")
        a("s_add_u32 s52, s52, 1")
        a("s_waitcnt vmcnt(0)")
        a("v_cmp_ne_u32 vcc, 0x01010101, v31")
        a(f"s_cbranch_vccz {lab}_done")
        a(f"s_cmp_lt_u32 s52, {SPIN_LIMIT}")
        a(f"s_cbranch_scc1 {lab}_loop")
        a.label(f"{lab}_done")
        fences.append(("poll", off, lab, items))
        m0now[0] = None
        if STAMPS and f"cnt{off}" in STAMP_SET: a(f"s_mov_b32 s{72 + 2*(1 + STAMP_SET.index(f'cnt{off}'))}, s52")
    a("s_mul_i32 s53, s3, 12288")
    a("v_add_u32 v10, s53, v1")
    a("s_mul_i32 s53, s3, 3*112*1024")
    a("s_lshl_b32 s61, s28, 14")
    a("s_add_u32 s53, s53, s61")
    a(f"s_add_u32 s53, s53, {W2F + 4096}")
    add64(32, 8, "s53")
    add64(34, 32, 112*1024)
    add64(36, 34, 112*1024)
    a("s_add_u32 s53, s15, 12")
    a("s_mul_i32 s53, s53, 112*1024")
    a("s_add_u32 s53, s53, s61")
    a(f"s_add_u32 s53, s53, {W2F + 4096}")
    add64(38, 8, "s53")
    add64(70, 32, 4096)
    a("s_lshl_b32 s60, s3, 14")
    a(f"s_add_u32 s60, s60, {L_W2}")
    for i in range(16): a(f"v_accvgpr_read_b32 v{32+i}, a{48+i}")
    a("s_waitcnt lgkmcnt(0)"); lg.clear()
    a("s_barrier")
    for j in range(12): D(f"ds_read_b128 {vr(48+4*j,4)}, v10 offset:{L_RED+1024*j}", f"r{j//4}")
    for it in bulk(OPT.get('wa', 5)): emit_item(it)
    WV("xcc")
    a("s_mov_b32 s68, 1")
    a("v_cmp_ne_u32 vcc, s69, v29")
    if force_fence: a("s_branch KB_xcc")
    else: a("s_cbranch_vccnz KB_xcc")
    a.label("KB_xcc_done")
    a("s_lshl_b32 s53, s5, 2")
    a("s_add_u32 s53, s53, s3")
    a("v_mov_b32 v10, s53")
    a("v_mov_b32 v11, 1")
    for j in range(3):
        WL(f"r{j}")
        for i in range(16): a(f"v_add_f32 v{32+i}, v{32+i}, v{48+16*j+i}")
    a("v_mov_b32 v12, v44")
    a("v_mov_b32 v13, v44")
    a("s_nop 1")
    a("v_permlane32_swap_b32 v12, v13")
    a("s_nop 1")
    a("v_rcp_f32 v13, v13")
    a("s_nop 0")
    for i in range(16): a(f"v_mul_f32 v{32+i}, v{32+i}, v13")
    a("s_cmp_eq_u32 s68, 0")
    for i in range(8): a(f"v_cvt_pk_bf16_f32 v{48+i}, v{32+2*i}, v{33+2*i}")
    a("s_cbranch_scc1 KB_ost_fence")
    for hf in range(2): V(f"global_store_dwordx4 v24, {vr(48+4*hf,4)}, s[20:21] offset:{1024*hf}{SM('osm')}", "ost")
    a.label("KB_ost_done")
    nstamp(a, "ost")
    KA, GA = 96, 112
    WV("xr")
    for u in range(2):
        for i in range(2): a(f"v_permlane32_swap_b32 v{XR+4*u+i}, v{XR+4*u+2+i}")
    a("s_mul_i32 s53, s3, 4096")
    a(f"s_add_u32 s53, s53, {L_XC}")
    a("v_add_u32 v14, s53, v1")
    a("v_xor_b32 v15, 4096, v14")
    for i in range(8):
        a(f"v_lshlrev_b32 v{KA+2*i}, 16, v{XR+i}")
        a(f"v_and_b32 v{KA+2*i+1}, 0xffff0000, v{XR+i}")
    signal(F_O, "KB_sg0", bulk(OPT.get('wb', 6)))
    nstamp(a, "sig0")
    a("s_cmp_eq_u32 s5, 7")
    a("s_cbranch_scc1 KB_m7")
    q_m7 = list(vm.q)
    poll(F_O, "KB_pl0", bulk(OPT.get('wc', 5)))
    nstamp(a, "poll0")
    OB = 32
    for i in range(16): V(f"global_load_dwordx4 {vr(OB+4*i,4)}, v{VOFF[i//8]}, s[22:23] offset:{1024*(i%8) - 4096} sc1", f"ob{i}")
    wd = bulk(OPT.get('wd', 7))
    wdv = []
    while wd:
        k = next(j for j, x in enumerate(wd) if x[0] == "v") + 1
        wdv.append(wd[:k]); wd = wd[k:]
    a("v_min_u32 v30, 24, v30")
    a(f"s_mov_b32 s53, {ONES_BF}")
    a("v_mov_b32 v12, 0")
    a("v_mov_b32 v13, 0")
    NDEF = OPT.get('ndef', 7)
    WV("wo31")
    for k in range(16):
        WV(f"ob{k}")
        a(mfma32(vr(GA,16), woreg(k), vr(OB+4*k,4), "0" if k == 0 else vr(GA,16)))
        if wdv:
            for it in wdv.pop(0): emit_item(it)
        if k < 16 - NDEF: a(mfma32(vr(KA,16), woreg(16+k), vr(OB+4*k,4), vr(KA,16)))
    for it in wdv:
        for x in it: emit_item(x)
    nstamp(a, "wog")
    for j, k in enumerate(range(16 - NDEF, 16)):
        a(mfma32(vr(KA,16), woreg(16+k), vr(OB+4*k,4), vr(KA,16)))
        if j in (1, 2):
            for q in range(2): D(f"ds_write_b128 v14, {vr(GA+8*(j-1)+4*q,4)} offset:{2048*(j-1) + 1024*q}", "xw")
        if j == min(4, NDEF - 1):
            a("s_waitcnt lgkmcnt(0)"); lg.clear()
            a("s_barrier")
            for q in range(4): D(f"ds_read_b128 {vr(32+4*q,4)}, v15 offset:{1024*q}", f"xr{q}")
    a("s_nop 7")
    a("s_nop 2")
    H = 48
    for hf in range(2):
        for q in (2*hf, 2*hf+1):
            WL(f"xr{q}")
            for i in range(4): a(f"v_add_f32 v{KA+4*q+i}, v{KA+4*q+i}, v{32+4*q+i}")
        for i in range(4): a(f"v_cvt_pk_bf16_f32 v{H+4*hf+i}, v{KA+8*hf+2*i}, v{KA+8*hf+2*i+1}")
        V(f"global_store_dwordx4 v26, {vr(H+4*hf,4)}, s[54:55] offset:{1024*hf}{SM('hnm')}", "hst")
    nstamp(a, "hst")
    for i in range(8):
        a(f"v_dot2c_f32_bf16 v12, s53, v{H+i}")
        a(f"v_dot2c_f32_bf16 v13, v{H+i}, v{H+i}")
    a("s_nop 2")
    a("v_mov_b32 v14, v12")
    a("v_mov_b32 v15, v13")
    a("s_nop 0")
    a("v_permlane32_swap_b32 v14, v12")
    a("v_permlane32_swap_b32 v15, v13")
    a("s_mov_b32 exec_hi, 0")
    a("v_add_f32 v12, v12, v14")
    a("v_add_f32 v13, v13, v15")
    V(f"global_store_dwordx2 v27, v[12:13], s[54:55]{SM('hnm')}", "hst")
    a("s_mov_b32 exec_hi, -1")
    signal(F_H, "KB_sg1", bulk(OPT.get('we', 6), True))
    nstamp(a, "sig1")
    T0, A2, A1, HOLD = 24, 48, 80, 144
    accs = {("A",0): A1, ("B",0): A1+16, ("B",1): A1+32, ("A",1): A1+48}
    a("s_lshl_b32 s61, s3, 12")
    a("s_add_u32 s29, s61, 12288")
    a(f"s_add_u32 s30, s61, {H_T1 - 4096}")
    a(f"s_add_u32 s31, s61, {H_T1 + 12288}")
    a("s_cmp_eq_u32 s3, 3")
    a(f"s_cselect_b32 s59, {H_ST}, s61")
    a(f"s_cselect_b32 s29, {H_ST + 4096}, s29")
    a("s_cmp_eq_u32 s3, 0")
    a("s_cselect_b32 s30, 24576, s30")
    add64(48, 54, "s59")
    add64(50, 54, "s29")
    add64(56, 54, "s30")
    add64(62, 54, "s31")
    a("s_mul_i32 s53, s4, 458752")
    a("s_mul_i32 s58, s5, 3584")
    a("s_add_u32 s53, s53, s58")
    a(f"s_add_u32 s53, s53, {PART}")
    add64(40, 8, "s53")
    a("s_mul_i32 s58, s14, 28672")
    a("s_lshl_b32 s53, s15, 8")
    a("s_add_u32 s58, s58, s53")
    a("s_add_u32 s58, s58, 3072")
    add64(44, 40, "s58")
    a("s_mul_i32 s58, s3, 768")
    add64(40, 40, "s58")
    add64(42, 40, 28672)
    a("v_lshrrev_b32 v12, 2, v5")
    a("v_mul_u32_u24 v12, 57344, v12")
    a("v_lshl_add_u32 v12, v2, 6, v12")
    a("v_lshl_add_u32 v12, v6, 4, v12")
    if OPT.get('tch', 0) or OPT.get('npl', 0):
        a("v_and_b32 v22, 7, v0")
        a("v_mul_u32_u24 v22, 57344, v22")
        a("v_lshrrev_b32 v21, 3, v0")
        a("v_lshl_add_u32 v22, v21, 7, v22")
    a("s_lshl_b32 s53, s3, 11")
    a(f"s_add_u32 s53, s53, {L_ACT}")
    a("v_add_u32 v13, s53, v1")
    a(f"v_add_u32 v14, {L_ACT}, v1")
    a("s_lshl_b32 s53, s14, 14")
    a("v_add_u32 v15, s53, v14")
    a("v_add_u32 v18, s60, v1")
    a("v_mul_u32_u24 v19, 1792, v2")
    a("v_lshl_add_u32 v19, v5, 3, v19")
    a(f"v_lshlrev_b32 v20, 2, v5")
    a(f"v_add_u32 v20, {H_ST + 3584}, v20")
    a("s_lshl_b32 s53, s5, 2")
    a("s_or_b32 s53, s53, s3")
    a("s_cmp_eq_u32 s53, 0")
    a("s_cselect_b32 s46, -1, 0")
    a("s_mov_b32 s47, 0")
    a(f"s_mov_b32 s58, {hexf(math.sqrt(0.5))}")
    nstamp(a, "pl1")
    poll(F_H, "KB_pl1", bulk(OPT.get('wf', 5), True))
    nstamp(a, "poll1")
    def dma_items(q):
        g = q // 4
        m = f"s_mov_b32 m0, s{(59, 29, 30, 31)[g]}"
        b = (48, 50, 56, 62)[g]
        return [("s", m), ("s", "s_nop 0"), ("v", f"global_load_lds_dwordx4 v1, s[{b}:{b+1}] offset:{1024*(q%4)} sc1", f"hn{q}")]
    NDM = OPT.get('ndm', 8)
    for q in range(NDM):
        for it in dma_items(q): emit_item(it)
    G0 = 116
    NM = G0 + 112
    pre = {i: [] for i in range(NM + 1)}
    post = {i: [] for i in range(NM)}
    mf = []
    hold = lambda ks: vr(HOLD+4*ks, 4)
    for X, tt in (("A",0), ("B",0), ("B",1), ("A",1)):
        d = vr(accs[(X,tt)], 16)
        for ks in range(28): mf.append(mfma32(d, w1reg(ks + (28 if X == "B" else 0)), hold(ks), "0" if ks == 0 else d))
        mf.append(mfma32(d, vr(AUG + (4 if X == "B" else 0), 4), vr(BAUG + 4*tt, 4), d))
    act0 = lambda ks: vr(HOLD+4*ks, 4)
    act1 = lambda ks: vr(HOLD+64+4*ks, 4) if ks < 12 else vr(A1+4*(ks-12), 4)
    ring = lambda ks: vr(A1+16+4*(ks & 7), 4)
    acc2 = lambda ui: (A2, A2 + 16, AUG)[ui % 3]
    units = [(0, act0, 40, 0), (1, act0, 40, 1), (2, act0, 40, 2), (3, ring, 44, 0), (0, act1, 42, 0), (1, act1, 42, 1), (2, act1, 42, 2)]
    for ui, (u, breg, sb_, no) in enumerate(units):
        d = vr(acc2(ui), 16)
        for ks in range(16): mf.append(mfma32(d, w2reg(16*u+ks), breg(ks), "0" if ks == 0 else d))
    AHEAD = 4
    rd0 = lambda ks: ("d", f"ds_read_b128 {hold(ks)}, v1 offset:{L_HN + 1024*ks}", f"h0_{ks}")
    rd1 = lambda ks: ("d", f"ds_read_b128 {hold(ks)}, v1 offset:{L_HN + H_T1 + 1024*ks}", f"h1_{ks}")
    ST = A2
    rds = lambda tt, i: ("d", f"ds_read_b64 {vr(ST+16*tt+2*i,2)}, v19 offset:{L_HN + H_ST + 4096*tt + 256*i}", f"s{tt}")
    pre[0] += [("wv", "hn3"), ("s", "s_barrier")] + [rd0(ks) for ks in range(AHEAD)] + [rds(0, i) for i in range(7)]
    for ks in range(28):
        if ks + AHEAD == 12: post[ks] += [("wv", "hn7"), ("s", "s_barrier")]
        if ks + AHEAD == 24: post[ks] += [("wv", "hn11"), ("s", "s_barrier")]
        if ks + AHEAD < 28: post[ks].append(rd0(ks + AHEAD))
        if ks < 2 or ks % 2 == 0: pre[ks].append(("wl", f"h0_{ks if ks < 2 else ks + 1}"))
        pre[ks].append(("wv", f"w1_{ks}"))
    for q in range(NDM, 16): post[1 + (q-NDM)] += dma_items(q)
    k = 2 + (16 - NDM)
    while early or after:
        post[k] += bulk(1, True); k += 2
    assert k < 58, k
    pre[28].append(("wv", "aug0"))
    pre[57].append(("wv", "aug1"))
    post[40] += [("wv", "hn15"), ("s", "s_barrier")]
    for ks in range(28):
        pre[29+ks].append(("wv", f"w1_{28+ks}"))
        post[29+ks].append(rd1(ks))
    for i in range(7): post[9 + i].append(rds(1, i))
    for ks in range(0, 28, 4): pre[58+ks].append(("wl", f"h1_{min(ks+3, 27)}"))
    nd = 56 - NST
    for j in range(nd):
        if j >= OPT.get('skipw2', 0): post[OPT.get('w20', 58) + j*OPT.get('w2n', 5)//2] += w2_item(8 + NST + j)
    for i in range(NST):
        k = 87 + 28 - NST + i + 2
        post[k] += [("wv", f"st{min(i | 3, NST - 1)}"), ("d", f"ds_read_b128 {w2reg(8+i)}, v18 offset:{1024*i}", f"sr{i}")]
        if i % 4 == 0: pre[G0+8+i].append(("wl", f"sr{min(i + 3, NST - 1)}"))
    for q in range(0, 64, 2): pre[G0+q].append(("wv", f"w2_{q+1}"))
    def stat_items(tt, start):
        b = ST + 16*tt; o = BAUG + 4*tt
        L = [("wl", f"s{tt}", start)]
        X = []
        for d_, s_ in ((0, 1), (2, 3), (4, 5), (0, 2), (4, 6), (0, 4)):
            X += [f"v_add_f32 v{b+2*d_+e}, v{b+2*d_+e}, v{b+2*s_+e}" for e in range(2)]
        X += [f"v_mov_b32 v{b+2}, v{b}", f"v_mov_b32 v{b+3}, v{b+1}", "s_nop 0",
              f"v_permlane32_swap_b32 v{b+2}, v{b}", f"v_permlane32_swap_b32 v{b+3}, v{b+1}", "s_nop 0",
              f"v_add_f32 v{b}, v{b}, v{b+2}", f"v_add_f32 v{b+1}, v{b+1}, v{b+3}",
              f"v_mul_f32 v{b}, {hexf(-1.0/448)}, v{b}", f"v_mul_f32 v{b+1}, {hexf(1.0/448)}, v{b+1}",
              f"v_fma_f32 v{b+1}, -v{b}, v{b}, v{b+1}", f"v_cvt_pk_bf16_f32 v{o+1}, v{b}, v{b}",
              f"v_max_f32 v{b+1}, 0, v{b+1}", f"v_lshlrev_b32 v{b+2}, 16, v{o+1}",
              f"v_add_f32 v{b+1}, {hexf(1e-5)}, v{b+1}", f"v_sub_f32 v{b+3}, v{b}, v{b+2}",
              f"v_rsq_f32 v{RS+tt}, v{b+1}", f"v_cvt_pk_bf16_f32 v{o}, v{b+2}, v{b+3}",
              f"v_cvt_pk_bf16_f32 v{o+2}, v{b+3}, v{b+2}", f"v_mul_f32 v{b+1}, v{b+1}, v{RS+tt}",
              f"v_mul_f32 v{RS+tt}, {hexf(LOG2E)}, v{RS+tt}", f"v_cvt_pk_bf16_f32 v{b+2}, v{b+1}, v{b+1}",
              f"v_lshlrev_b32 v{b+2}, 16, v{b+2}", f"v_sub_f32 v{b+3}, v{b+1}, v{b+2}",
              f"v_cvt_pk_bf16_f32 v{o+3}, v{b+2}, v{b+3}", f"v_cndmask_b32 v{o+3}, v{o+3}, 0, s[64:65]", "s_nop 1"]
        pub = [("s", "s_mov_b64 exec, s[46:47]", start), ("v", f"global_store_dword v20, v{RS+tt}, s[54:55] offset:{128*tt}", start), ("s", "s_mov_b64 exec, -1", start)]
        return L + [("s", x, start) for x in X] + [("mark", f"st{tt}", 0)] + [("grp", pub, start)]
    def mish_items(X, tt, start):
        x0 = accs[(X,tt)]; pk = x0
        L = []
        for g in range(4):
            t = T0 + 4*(g & 1); x = x0 + 4*g
            L += [f"v_fma_f32 v{t+i}, v{x+i}, v{RS+tt}, -0.5" for i in range(4)]
            L += [f"v_exp_f32 v{t+i}, v{t+i}" for i in range(4)]
            L += [f"v_add_f32 v{t+i}, s58, v{t+i}" for i in range(4)]
            L += [f"v_fma_f32 v{t+i}, -v{t+i}, v{t+i}, -0.5" for i in range(4)]
            L += [f"v_rcp_f32 v{t+i}, v{t+i}" for i in range(4)]
            L += [f"v_fmac_f32 v{x+i}, v{x+i}, v{t+i}" for i in range(4)]
            L += [f"v_cvt_pk_bf16_f32 v{pk+2*g+i}, v{x+2*i}, v{x+2*i+1}" for i in range(2)]
        it = [("s", x, start) for x in L]
        off = tt*16384 + (8192 if X == "B" else 0)
        it += [("d", f"ds_write_b128 v13, {vr(pk+4*hf,4)} offset:{off + 1024*hf}", start) for hf in range(2)]
        return it
    fill = stat_items(0, 3) + stat_items(1, 18) + mish_items("A", 0, 31) + mish_items("B", 0, 60)
    fill += [("bar", "b1", 0)]
    fill += mish_items("B", 1, 89) + mish_items("A", 1, 118)
    fill += [("bar", "b2", 0)]
    rda = lambda reg, addr, tt, ks, tag: ("d", f"ds_read_b128 {reg}, {addr} offset:{16384*tt + 1024*ks}", tag)
    need_pre = {28: "st0", 86: "st1"}
    need_post = {G0 - 11: "b1", G0 + 43: "b2"}
    for ks in range(16):
        post[G0 - 11 + ks].append(rda(act0(ks), "v14", 0, ks, f"a0_{ks}"))
        post[G0 + 43 + ks].append(rda(ring(ks), "v15", 0, ks, f"am_{ks}"))
        post[G0 + 49 + ks].append(rda(act1(ks), "v14", 1, ks, f"a1_{ks}"))
        if ks % 2 == 0:
            pre[G0+ks].append(("wl", f"a0_{ks+1}"))
            pre[G0+48+ks].append(("wl", f"am_{ks+1}"))
            pre[G0+64+ks].append(("wl", f"a1_{ks+1}"))
    outq = []
    for ui, (u, breg, sb_, no) in enumerate(units):
        d = acc2(ui); pk = d
        L = []
        for hf in range(2):
            p4 = pk + 4*hf
            L += [("s", f"v_cvt_pk_bf16_f32 v{p4+i}, v{d+8*hf+2*i}, v{d+8*hf+2*i+1}") for i in range(4)]
            L += [("v", f"global_store_dwordx4 v12, {vr(p4,4)}, s[{sb_}:{sb_+1}] offset:{256*no + 128*hf}{SM('pm') if ui < 7 - OPT.get('npl', 0) else ''}", "pst")]
        outq.append((max(G0 + 16*ui + 18, G0 + (OPT.get('o0', 36), 46)[ui] if ui < 2 else 0), L, G0 + 16*ui + 46))
    for ui in range(OPT.get('tch', 0)):
        u, breg, sb_, no = units[ui]
        i = G0 + [OPT.get('t0', 64), OPT.get('t1', 72), OPT.get('t2', 80), OPT.get('t3', 92), OPT.get('t4', 104), OPT.get('t5', 111)][ui]
        post[i] += [("s", "s_mov_b64 exec, 0xffff"), ("v", f"global_load_dword v21, v22, s[{sb_}:{sb_+1}] offset:{256*no} sc1", "tch"), ("s", "s_mov_b64 exec, -1")]
    NPL = OPT.get('npl', 0)
    if NPL and not OPT.get('pta', 0):
        n1 = min(NPL, 3)
        post[OPT.get('pt0', 20)] += [("s", f"s_bfm_b64 exec, {16*n1}, 0"), ("v", f"global_load_dword v21, v22, s[42:43] offset:{256*(3 - n1)} sc1", "tch"), ("s", "s_mov_b64 exec, -1")]
        if NPL > 3: post[OPT.get('pt0', 20) + 6] += [("s", "s_mov_b64 exec, 0xffff"), ("v", "global_load_dword v21, v22, s[44:45] sc1", "tch"), ("s", "s_mov_b64 exec, -1")]
        if NPL > 4:
            n1 = NPL - 4
            post[OPT.get('pt0', 20) + 12] += [("s", f"s_bfm_b64 exec, {16*n1}, 0"), ("v", f"global_load_dword v21, v22, s[40:41] offset:{256*(3 - n1)} sc1", "tch"), ("s", "s_mov_b64 exec, -1")]
    done = set()
    fq = list(fill); cur = [0]
    def emit_fill(it):
        if it[0] == "bar":
            a("s_waitcnt lgkmcnt(0)"); lg.clear()
            a("s_barrier"); done.add(it[1]); print("note: barrier", it[1], "after MFMA", cur[0])
            return 8
        if it[0] == "mark":
            done.add(it[1]); print("note:", it[1], "complete after MFMA", cur[0])
            return 0
        if it[0] == "wl":
            WL(it[1]); return 0
        if it[0] == "grp":
            for x in it[1]:
                if x[0] == "v": V(x[1], "pub")
                else: a(x[1])
            return 16
        if it[0] == "d": D(it[1])
        else: a(it[1])
        return cost(it[1])
    credit = 0.0
    lastw = [-9]
    def flush(tag, i):
        c = 0
        while tag not in done: c += emit_fill(fq.pop(0))
        if c: print(f"note: {c:.0f} cycles of vector work flushed at MFMA {i}")
        return c
    for i in range(NM):
        cur[0] = i
        assert not outq or i < outq[0][2], i
        if i in need_pre: credit -= flush(need_pre[i], i)
        n0 = len(a.L)
        for it in pre[i]: emit_item(it)
        if OPT.get("m16f"):
            kk = i % 29 if i < G0 else (i - G0) % 16
            hh = split16(mf[i], (kk & 1, kk < 2))
            a(hh[0]); n1 = len(a.L)
        else: a(mf[i])
        if i in need_post: credit -= flush(need_post[i], i); n0 = len(a.L) - 1
        for it in post[i]: emit_item(it)
        nmem = 0
        credit = max(min(credit, 0), -12) + OPT.get('cr', 31)
        for ln in a.L[n0:]:
            if ln.split()[0].startswith(("ds_", "global_")):
                credit -= 10 if nmem else 4; nmem += 1
            else: credit -= 4
        nstamp(a, f"m{i}")
        while outq and outq[0][0] <= i and credit > 0:
            L = outq[0][1]
            it = L.pop(0); emit_item(it); credit -= cost(it[1])
            if not L: outq.pop(0)
        while fq and credit > 0:
            k = 0
            if fq[0][0] == "bar" and i < lastw[0] + OPT.get('bd', 3):
                k = 1
                if len(fq) < 2: break
            if not (fq[k][0] in ("bar", "mark") or fq[k][2] <= i): break
            if fq[k][0] == "d": lastw[0] = i
            credit -= emit_fill(fq.pop(k))
        if OPT.get("m16f"):
            tail = a.L[n1:]
            k = 0; c = 0
            while k < len(tail) and c < 10 and not tail[k].strip().startswith(("s_barrier", "s_mov_b64")):
                c += cost(tail[k].strip()); k += 1
            a.L.insert(n1 + k, "    " + hh[1])
    assert not fq, len(fq)
    a("s_nop 7")
    a("s_nop 3")
    for _, L, _ in outq:
        for it in L: emit_item(it)
    nstamp(a, "g2end")
    signal(F_P1, "KB_sg2", [])
    nstamp(a, "sig2")
    a.label("KB_fin")
    R, SUM, HR, HF32 = 144, 80, 200, 96
    a("s_mul_i32 s53, s4, 458752")
    a("s_mul_i32 s52, s5, 57344")
    a("s_add_u32 s53, s53, s52")
    a("s_lshl_b32 s52, s3, 10")
    a("s_add_u32 s53, s53, s52")
    a(f"s_add_u32 s53, s53, {PART + 3584}")
    add64(32, 8, "s53")
    for k in range(1, 5): add64(32 + 2*k, 30 + 2*k, 3*3584)
    a("s_lshl_b32 s53, s3, 13")
    a("s_lshl_b32 s52, s5, 6")
    a("s_add_u32 s53, s53, s52")
    add64(42, 54, "s53")
    add64(44, 42, H_T1)
    for i in range(16): a(f"v_mov_b32 v{SUM+i}, 0")
    a("v_lshrrev_b32 v13, 3, v0")
    a("v_bfe_u32 v14, v0, 2, 1")
    a("v_lshlrev_b32 v15, 10, v13")
    a("v_lshl_add_u32 v15, v14, 9, v15")
    a("v_lshl_add_u32 v15, v6, 4, v15")
    a("v_mul_u32_u24 v12, 896, v6")
    a("v_lshl_add_u32 v12, v13, 5, v12")
    a("v_lshl_add_u32 v12, v14, 4, v12")
    a("s_mul_i32 s60, s6, 8*896")
    a("s_lshl_b32 s61, s3, 8")
    a("s_add_u32 s60, s60, s61")
    a("s_mov_b32 s62, 0x00003f80")
    a("s_mov_b32 s63, 0x3f800000")
    a("s_lshl_b32 s61, s5, 4")
    a(f"s_add_u32 s61, s61, {H_ST + 3584}")
    a("v_lshl_add_u32 v16, v6, 2, s61")
    a("s_cmp_eq_u32 s3, 3")
    a("s_cselect_b32 s59, 0, -1")
    a("v_and_b32 v30, 7, v0")
    a("v_min_u32 v30, 6, v30")
    a("v_lshlrev_b32 v30, 2, v30")
    nstamp(a, "pl2")
    poll(F_P1, "KB_pl2", [])
    nstamp(a, "poll2")
    vm.clear(); vm.issue("older")
    if OPT.get('m3', 0): a("s_mov_b32 exec_hi, s59")
    for tt in range(2):
        V(f"global_load_dword v{18+tt}, v16, s[54:55] offset:{128*tt} sc1", f"hr{tt}")
        V(f"global_load_dwordx4 {vr(HR+4*tt,4)}, v15, s[{42+2*tt}:{43+2*tt}] sc1", f"hr{tt}")
        for p in range(7):
            k, r = divmod(8*tt + p, 3)
            V(f"global_load_dwordx4 {vr(R+28*tt+4*p,4)}, v1, s[{32+2*k}:{33+2*k}] offset:{3584*(r-1)} sc1", f"p{tt}{p}")
    for tt in range(2):
        WV(f"hr{tt}")
        nstamp(a, f"fh{tt}")
        a(f"v_mul_f32 v{18+tt}, {hexf(LN2F)}, v{18+tt}")
        for i in range(4):
            a(f"v_lshlrev_b32 v{HF32+8*tt+2*i}, 16, v{HR+4*tt+i}")
            a(f"v_and_b32 v{HF32+8*tt+2*i+1}, 0xffff0000, v{HR+4*tt+i}")
        for p in range(7):
            WV(f"p{tt}{p}")
            nstamp(a, f"fp{tt}{p}")
            for i in range(4):
                a(f"v_dot2c_f32_bf16 v{SUM+8*tt+2*i}, s62, v{R+28*tt+4*p+i}")
                a(f"v_dot2c_f32_bf16 v{SUM+8*tt+2*i+1}, s63, v{R+28*tt+4*p+i}")
        a("s_nop 2")
        b = 32 + 4*tt
        for i in range(8): a(f"v_fmac_f32 v{HF32+8*tt+i}, v{18+tt}, v{SUM+8*tt+i}")
        for i in range(4): a(f"v_cvt_pk_bf16_f32 v{b+i}, v{HF32+8*tt+2*i}, v{HF32+8*tt+2*i+1}")
        a(f"v_mov_b32 v40, v{b+2}")
        a(f"v_mov_b32 v41, v{b+3}")
        a("s_nop 0")
        a(f"v_mov_b32_dpp v{b+2}, v{b} row_shl:4 row_mask:0xf bank_mask:0x5")
        a(f"v_mov_b32_dpp v{b+3}, v{b+1} row_shl:4 row_mask:0xf bank_mask:0x5")
        a(f"v_mov_b32_dpp v{b}, v40 row_shr:4 row_mask:0xf bank_mask:0xa")
        a(f"v_mov_b32_dpp v{b+1}, v41 row_shr:4 row_mask:0xf bank_mask:0xa")
        if not OPT.get('m3', 0): a("s_mov_b32 exec_hi, s59")
        a(f"buffer_store_dwordx4 {vr(b,4)}, v12, s[24:27], s60 offen offset:{3584*tt}{SM('om')}")
        if tt == 0 and not OPT.get('m3', 0): a("s_mov_b32 exec_hi, -1")
    fin(a, 1, 8)
    a.label("KB_end")
    a("s_endpgm")

    a.label("KB_m7")
    a("v_lshlrev_b32 v12, 7, v0")
    a("v_mov_b32 v13, 0")
    a("s_cmp_eq_u32 s4, 0")
    a("s_cselect_b64 exec, 3, 0")
    a("global_store_dword v12, v13, s[92:93] sc0 sc1")
    a("s_mov_b64 exec, -1")
    a("s_and_b32 s53, s4, 3")
    a("s_lshl_b32 s53, s53, 2")
    a("s_add_u32 s53, s53, s3")
    a("s_mul_i32 s53, s53, 100352")
    a(f"s_add_u32 s53, s53, {W2F}")
    add64(56, 8, "s53")
    sh = OPT.get('m7s', 7)
    a(f"v_lshlrev_b32 v12, {sh}, v0")
    for k in range(13 << (7 - sh) if OPT.get('m7w', 1) else 0):
        a(f"global_load_dword v4, v12, s[56:57]{WS}")
        add64(56, 56, 64 << sh)
    if OPT.get('m7t', 0):
        a("s_mul_i32 s53, s4, 458752")
        a("s_mul_i32 s52, s3, 114688")
        a("s_add_u32 s53, s53, s52")
        a(f"s_add_u32 s53, s53, {PART}")
        add64(56, 8, "s53")
        for k in range(14):
            a("global_load_dword v4, v12, s[56:57] sc1")
            add64(56, 56, 8192)
    if OPT.get('m7wb', 0):
        a("s_cmp_eq_u32 s3, 0")
        a("s_cbranch_scc0 KB_fin")
        a("v_min_u32 v30, 24, v30")
        a("s_mov_b32 s52, 0")
        a.label("KB_m7p")
        a(f"global_load_dword v31, v30, s[66:67] offset:{F_H} sc1")
        a("s_add_u32 s52, s52, 1")
        a("s_waitcnt vmcnt(0)")
        a("v_cmp_ne_u32 vcc, 0x01010101, v31")
        a("s_cbranch_vccz KB_m7q")
        a(f"s_cmp_lt_u32 s52, {SPIN_LIMIT}")
        a("s_cbranch_scc1 KB_m7p")
        a.label("KB_m7q")
        a("buffer_wbl2 sc1")
        a("s_waitcnt vmcnt(0)")
    a("s_branch KB_fin")

    a.label("KB_xcc")
    a("s_mov_b32 s68, 0")
    a("s_branch KB_xcc_done")
    a.label("KB_ost_fence")
    for hf in range(2): a(f"global_store_dwordx4 v24, {vr(48+4*hf,4)}, s[20:21] offset:{1024*hf} sc0 sc1")
    a("s_branch KB_ost_done")
    for kind, off, lab, items in fences:
        a.label(f"{lab}_fence")
        if kind == "sig":
            a("buffer_wbl2 sc1")
            a("s_waitcnt vmcnt(0)")
            a("s_mov_b64 exec, 1")
            a(f"global_store_byte v10, v11, s[66:67] offset:{off} sc0 sc1")
            a("s_mov_b64 exec, -1")
            a(f"s_branch {lab}_done")
            continue
        for it in items: a(it[1])
        a.label(f"{lab}_floop")
        a(f"global_load_dword v31, v30, s[66:67] offset:{off} sc0 sc1")
        a("s_add_u32 s52, s52, 1")
        a("s_waitcnt vmcnt(0)")
        a("v_cmp_ne_u32 vcc, 0x01010101, v31")
        a(f"s_cbranch_vccz {lab}_fdone")
        a(f"s_cmp_lt_u32 s52, {SPIN_LIMIT}")
        a(f"s_cbranch_scc1 {lab}_floop")
        a.label(f"{lab}_fdone")
        a("buffer_inv sc1")
        a("s_waitcnt vmcnt(0) lgkmcnt(0)")
        a(f"s_branch {lab}_done")

    a.label("KB_wspin")
    a("s_mov_b32 s68, 0")
    a.label("KB_wspin_loop")
    a(wpoll)
    a("s_add_u32 s68, s68, 1")
    a("s_waitcnt vmcnt(0)")
    for x in wtest: a(x)
    a("s_cbranch_vccz KB_wspin_done")
    a(f"s_cmp_lt_u32 s68, {SPIN_LIMIT}")
    a("s_cbranch_scc1 KB_wspin_loop")
    a("s_branch KB_wspin_done")
    a.label("P1_ack")
    a("s_mov_b32 s68, 0")
    a.label("P1_ack_loop")
    a(f"global_load_dword v{ACK}, v{CLO}, s[92:93] offset:{D_CLR} sc1")
    a("s_add_u32 s68, s68, 1")
    a("s_waitcnt vmcnt(0)")
    a(f"v_cmp_ne_u32 vcc, 0x01010101, v{ACK}")
    a("s_cbranch_vccz P1_ack_done")
    a(f"s_cmp_lt_u32 s68, {SPIN_LIMIT}")
    a("s_cbranch_scc1 P1_ack_loop")
    a("s_branch P1_ack_done")
    a.label("P1_far")
    a("s_lshl_b32 s53, s4, 3")
    a("s_and_b32 s68, s3, 2")
    a("s_lshl_b32 s68, s68, 1")
    a("s_add_u32 s53, s53, s68")
    a("s_lshl_b32 s53, s53, 13")
    a(f"s_add_u32 s53, s53, {QF2}")
    a("s_cmp_eq_u32 s5, 0")
    a("s_cbranch_scc1 P1_far_f")
    for q in range(4): a(f"buffer_store_dwordx2 {vr(48+2*q,2)}, v{132+q}, s[16:19], s53 offen sc0 sc1")
    a.label("P1_far_f")
    a("v_mov_b32 v18, 1")
    a("s_waitcnt vmcnt(0)")
    a("s_mov_b64 exec, 1")
    a(f"global_store_byte v16, v18, s[66:67] offset:{F_M} sc0 sc1")
    a("s_mov_b64 exec, -1")
    a("s_mov_b32 s68, 0")
    a.label("P1_far_l")
    a(pollL)
    a(f"global_load_dword v18, v30, s[66:67] offset:{F_M} sc0 sc1")
    a("s_add_u32 s68, s68, 1")
    a("s_waitcnt vmcnt(0)")
    if not force_fence:
        a("v_cmp_ne_u32 vcc, s69, v29")
        a("s_cbranch_vccz P1_l_done")
    a("v_cmp_ne_u32 vcc, 0x01010101, v18")
    a("s_cbranch_vccz P1_far_d")
    a(f"s_cmp_lt_u32 s68, {SPIN_LIMIT}")
    a("s_cbranch_scc1 P1_far_l")
    a.label("P1_far_d")
    for t in range(4): a(f"s_add_u32 s{58+t}, s{58+t}, {QF2 - QF}")
    a("s_branch P1_l_done")
    a.label("P1_aug")
    a(f"v_add_u32 v28, {K1_RP}, v8")
    for w in range(4): a(f"ds_read_b32 v{CP+w}, v28 offset:{256*w}")
    a(f"v_mul_u32_u24 v29, {W1S}, v2")
    a("v_lshl_add_u32 v29, v5, 4, v29")
    a("s_and_b32 s63, s62, 1")
    a("s_mul_i32 s53, s63, 6")
    a("s_add_u32 s53, s53, s71")
    a(f"v_lshl_or_b32 v{BIA}, v{BIA}, 16, v{BIA}")
    a("s_cmp_eq_u32 s62, 0")
    a("s_cselect_b32 s70, -1, 0")
    a(f"v_and_b32 v{BIA}, s70, v{BIA}")
    a("s_waitcnt lgkmcnt(0)")
    a(f"v_add_f32 v{CP}, v{CP}, v{CP+1}")
    a(f"v_add_f32 v{CP+2}, v{CP+2}, v{CP+3}")
    a(f"v_and_b32 v{CP}, s90, v{CP}")
    a(f"v_and_b32 v{CP+2}, s91, v{CP+2}")
    a(f"v_add_f32 v{CP}, v{CP}, v{CP+2}")
    a(f"v_cvt_pk_bf16_f32 v{CP+1}, v{CP}, v{CP}")
    a(f"v_lshlrev_b32 v{CP+2}, 16, v{CP+1}")
    a(f"v_sub_f32 v{CP+2}, v{CP}, v{CP+2}")
    a(f"v_cvt_pk_bf16_f32 v{CP+2}, v{CP+2}, v{CP+2}")
    a(f"buffer_store_short v{CP+1}, v29, s[16:19], s53 offen sc1")
    a(f"buffer_store_short v{CP+1}, v29, s[16:19], s53 offen offset:2 sc1")
    a(f"buffer_store_short v{CP+2}, v29, s[16:19], s53 offen offset:4 sc1")
    a("s_cmp_eq_u32 s63, 0")
    a("s_cbranch_scc0 P1_aug_done")
    a(f"buffer_store_dword v{BIA}, v29, s[16:19], s71 offen offset:12 sc1")
    a("s_branch P1_aug_done")
    a.label("KB_slow")
    vm.q = list(vm_at_slow)
    if WSL:
        a("s_waitcnt vmcnt(0)")
        for it in wflag: a(it[1])
    a("s_mov_b32 s68, 0")
    a.label("KB_slow_w")
    a(wpoll)
    a("s_add_u32 s68, s68, 1")
    a("s_waitcnt vmcnt(0)"); vm.clear()
    for x in wtest: a(x)
    a("s_cbranch_vccz KB_slow_wd")
    a(f"s_cmp_lt_u32 s68, {SPIN_LIMIT}")
    a("s_cbranch_scc1 KB_slow_w")
    a.label("KB_slow_wd")
    for k, it in enumerate([x for f in pref for x in f] + xr + late):
        emit_item(it)
        if len(vm.q) >= 32: a("s_waitcnt vmcnt(0)"); vm.clear()
    MX = P + 8
    for t in range(4): a(f"v_mov_b32 v{MX+t}, 0xff800000")
    for i in range(64): a(f"v_accvgpr_write_b32 a{i}, 0")
    a("v_lshlrev_b32 v3, 2, v0")
    a("s_sub_u32 s52, s52, 4096")
    a("s_mov_b32 s61, 0")
    a.label("KB_s1")
    a("s_add_u32 s53, s52, s61")
    for i in range(2): a(f"buffer_load_dwordx4 {vr(KVR+4*i,4)}, v1, s[16:19], s53 offen offset:{1024*i} sc1")
    a("s_waitcnt vmcnt(0)")
    for t in range(4):
        a(mfma32(vr(S,16), vr(KVR,4), vr(Q+8*t,4), "0"))
        a(mfma32(vr(S,16), vr(KVR+4,4), vr(Q+8*t+4,4), vr(S,16)))
        a("s_nop 7")
        a("s_nop 3")
        for i in range(8): a(f"v_max3_f32 v{MX+t}, v{S+2*i}, v{S+2*i+1}, v{MX+t}")
    a("s_add_u32 s61, s61, 4096")
    a("s_cmp_lt_u32 s61, 0x10000")
    a("s_cbranch_scc1 KB_s1")
    for t in range(4):
        half_sum(a, MX+t, 12, "v_max_f32")
        a(f"s_add_u32 s53, s3, {t+1}")
        a("s_and_b32 s53, s53, 3")
        a("s_lshl_b32 s53, s53, 10")
        a("s_lshl_b32 s61, s3, 8")
        a("s_add_u32 s53, s53, s61")
        a("v_add_u32 v12, s53, v3")
        a(f"ds_write_b32 v12, v{MX+t}")
    a("s_waitcnt lgkmcnt(0)")
    a("s_barrier")
    for t in range(4):
        a(f"s_add_u32 s53, s3, {t+1}")
        a("s_and_b32 s53, s53, 3")
        a("s_lshl_b32 s53, s53, 10")
        a("v_add_u32 v12, s53, v3")
        for w in range(4): a(f"ds_read_b32 v{S+w}, v12 offset:{256*w}")
        a("s_waitcnt lgkmcnt(0)")
        a(f"v_max3_f32 v{MX+t}, v{S}, v{S+1}, v{S+2}")
        a(f"v_max_f32 v{MX+t}, v{MX+t}, v{S+3}")
    a("s_barrier")
    a("s_mov_b32 s61, 0")
    a.label("KB_s2")
    a("s_add_u32 s53, s52, s61")
    for i in range(4): a(f"buffer_load_dwordx4 {vr(KVR+4*i,4)}, v1, s[16:19], s53 offen offset:{1024*i} sc1")
    a("s_waitcnt vmcnt(0)")
    for t in range(4):
        a(mfma32(vr(S,16), vr(KVR,4), vr(Q+8*t,4), "0"))
        a(mfma32(vr(S,16), vr(KVR+4,4), vr(Q+8*t+4,4), vr(S,16)))
        a("s_nop 7")
        a("s_nop 3")
        for i in range(16): a(f"v_sub_f32 v{S+i}, v{S+i}, v{MX+t}")
        for i in range(16): a(f"v_exp_f32 v{S+i}, v{S+i}")
        a("s_nop 0")
        for i in range(8): a(f"v_cvt_pk_bf16_f32 v{P+i}, v{S+2*i}, v{S+2*i+1}")
        a("s_nop 1")
        a(mfma32(ar(16*t,16), vr(KVR+8,4), vr(P,4), ar(16*t,16)))
        a(mfma32(ar(16*t,16), vr(KVR+12,4), vr(P+4,4), ar(16*t,16)))
    a("s_add_u32 s61, s61, 4096")
    a("s_cmp_lt_u32 s61, 0x10000")
    a("s_cbranch_scc1 KB_s2")
    a("s_nop 7")
    a("s_nop 3")
    for t in range(3):
        for q in range(4): a(redw(t, q)[1])
    a("s_branch KB_red")
    p1_body(a, "k")
    p1_body(a, "v")
    a.label("KB_code_end")
    return kd(n, 512, 102, 256), f"; @launch grid=(256,1,1) block=(256,1,1) lds={KB_LDS}"


def build(force_slow=False, extra=0, force_fence=False):
    a = Asm()
    parts = [gen_kb(a, force_slow, force_fence)]
    launches = [p[1] for p in parts]
    kds = [p[0] for p in parts]
    if extra:
        header(a, "nop_kernel")
        a("s_endpgm")
        kds.append(kd("nop_kernel", 8, 16, 8))
        launches += ["; @launch kernel=nop_kernel grid=(256,1,1) block=(64,1,1) lds=0"] * extra
    out = "\n".join(launches) + "\n"
    out += '.amdgcn_target "amdgcn-amd-amdhsa--gfx950"\n.text\n'
    out += a.text()
    out += '.section .rodata,"a"\n' + "".join(kds)
    return out

if __name__ == "__main__":
    import argparse
    ap = argparse.ArgumentParser()
    ap.add_argument("-o", default="v2.s")
    ap.add_argument("--slow", action="store_true")
    ap.add_argument("--fence", action="store_true")
    ap.add_argument("--opt", default="")
    ap.add_argument("--extra", type=int, default=0)
    ap.add_argument("--stamps", default="", help="up to six stamp names for the fused kernel")
    args = ap.parse_args()
    for kv in args.opt.split(","):
        if kv:
            k_, _, v_ = kv.partition("=")
            OPT[k_] = int(v_) if v_ else 1
    STAMPS = bool(args.stamps)
    STAMP_SET = args.stamps.split(",")
    txt = build(args.slow, args.extra, args.fence)
    import hazard, itouch, re
    plain = re.sub(r"(K[AB])_CHAIN\d", r"\1_tret", txt)
    print("hazards:", hazard.check(plain), "waits:", 0 if STAMPS else hazard.waitcheck(plain))
    txt = re.sub(r"(K[AB])_CHAIN(\d)", r"\1_tret ;chain\1\2", txt)
    for pre, end in (("KA", "KB_red"), ("KB", "KB_end")):
        if f"{pre}_tret:" not in txt: continue
        txt, nb = itouch.insert(txt, pre, f"{pre}_tret", end, lambda n: [list(range(1 + w, n + 1, 4)) for w in range(4)], f"{pre}_tret")
        ch = [list(range(1 + w, nb + 1, 4)) for w in range(4)]
        txt = re.sub(rf"{pre}_tret ;chain{pre}(\d)", lambda m: f"{pre}_t{ch[int(m.group(1))][0]}" if ch[int(m.group(1))] else f"{pre}_tret", txt)
        print("code blocks touched:", nb)
    open(args.o, "w").write(txt)
```
